```python
import torch

def _softmax(x, axis=-1):
    return torch.softmax(x, dim=axis)
def _gelu(x):
    return torch.nn.functional.gelu(x, approximate="tanh")
def _silu(x):
    return torch.nn.functional.silu(x)
def _sigmoid(x):
    return torch.sigmoid(x)
def _layernorm(x, axis=-1, eps=1e-5):
    m = x.mean(dim=axis, keepdim=True)
    v = x.var(dim=axis, keepdim=True, unbiased=False)
    return (x - m) / torch.sqrt(v + eps)
def _scatter_add(tgt, idx, src, axis=0):
    return tgt.clone().index_add_(axis, idx, src)
def _segment_sum(src, seg, n):
    out = torch.zeros((n,) + src.shape[1:], dtype=src.dtype)
    return out.index_add_(0, seg, src)
def _pad(x, pw):
    flat = tuple(v for pair in reversed(pw) for v in pair)
    return torch.nn.functional.pad(x, flat)

kernel_name = 'gated_mix__grouped_kv_mqa__geglu_ffn__prompt'

def setup_inputs():

    _w = (lambda a: (lambda t: t.to(torch.bfloat16) if t.is_floating_point() else t)(torch.as_tensor(a)))
    def _A_setup():
        B, S, D, H = 1, 2048, 640, 32
        Dh = D // H
        return {
            "x": _w((lambda *s: torch.randn(*s, dtype=torch.bfloat16) * 0.05)(B, S, D)),
            "wq": _w((lambda *s: torch.randn(*s, dtype=torch.bfloat16) * 0.8)(D, H * Dh)),
            "wk": _w((lambda *s: torch.randn(*s, dtype=torch.bfloat16) * 0.8)(D, Dh)),
            "wv": _w((lambda *s: torch.randn(*s, dtype=torch.bfloat16) * 0.05)(D, Dh)),
            "wo": _w((lambda *s: torch.randn(*s, dtype=torch.bfloat16) * 0.05)(H * Dh, D)),
        }
    _A_in = _A_setup()

    def _B_setup():
        B, S, D, F = 1, 2048, 640, 1728
        return {
            "x": _w((lambda *s: torch.randn(*s, dtype=torch.bfloat16) * 0.05)(B, S, D)),
            "w_gate": _w((lambda *s: torch.randn(*s, dtype=torch.bfloat16) * 0.05)(D, F)),
            "w_up": _w((lambda *s: torch.randn(*s, dtype=torch.bfloat16) * 0.05)(D, F)),
            "w_down": _w((lambda *s: torch.randn(*s, dtype=torch.bfloat16) * 0.05)(F, D)),
        }
    _B_in = _B_setup()

    return {
        "A_x": _A_in["x"],
        "A_wq": _A_in["wq"],
        "A_wk": _A_in["wk"],
        "A_wv": _A_in["wv"],
        "A_wo": _A_in["wo"],
        "B_x": _B_in["x"],
        "B_w_gate": _B_in["w_gate"],
        "B_w_up": _B_in["w_up"],
        "B_w_down": _B_in["w_down"],
        "gate_w": _w((lambda *s: torch.randn(*s, dtype=torch.bfloat16) * 0.05)(640) * 16.0),
    }

def reference(A_x, A_wq, A_wk, A_wv, A_wo, B_x, B_w_gate, B_w_up, B_w_down, gate_w):
    def _A_ref(x, wq, wk, wv, wo):
        B, S, D = x.shape
        H = 32
        Dh = D // H
        q = (lambda x, *d: x.permute(*d))((x @ wq).reshape(B, S, H, Dh), 0, 2, 1, 3)
        k = x @ wk
        v = x @ wv
        scores = torch.einsum("bhqd,bkd->bhqk", q, k) * (Dh ** -0.5)
        p = _softmax(scores, axis=-1)
        o = torch.einsum("bhqk,bkd->bhqd", p, v)
        return (lambda x, *d: x.permute(*d))(o, 0, 2, 1, 3).reshape(B, S, H * Dh) @ wo

    def _B_ref(x, w_gate, w_up, w_down):
        return (_gelu(x @ w_gate) * (x @ w_up)) @ w_down

    x = A_x
    g = _sigmoid((x * gate_w).sum(-1, keepdims=True))
    a = _A_ref(x, A_wq, A_wk, A_wv, A_wo)
    b = _B_ref(x, B_w_gate, B_w_up, B_w_down)
    return g * a + (1 - g) * b
```

```python
class Asm:
    def __init__(self):
        self.lines = []
    def __call__(self, s=""):
        for l in s.split("\n"):
            l = l.strip()
            if not l:
                continue
            if l.endswith(":") or l.startswith("."):
                self.lines.append(l)
            else:
                self.lines.append("    " + l)
    def c(self, s):
        self.lines.append("    ; " + s)
    def text(self):
        return "\n".join(self.lines) + "\n"

def vr(b, n):
    return f"v[{b}:{b+n-1}]" if n > 1 else f"v{b}"
def sr(b, n):
    return f"s[{b}:{b+n-1}]" if n > 1 else f"s{b}"

import struct
def f32(x):
    return "0x%08x" % struct.unpack("<I", struct.pack("<f", x))[0]

WS_Q    = 0x0000000
WS_KV   = 0x0300000
WS_KMAX = 0x0340000
WS_G    = 0x0341000
WS_H    = 0x0400000
WS_O    = 0x0C00000
WS_B    = 0x1000000
WS_SIZE = 0x2000000

def srd(a, d, lo, hi, size):
    a(f"s_mov_b32 s{d}, s{lo}")
    a(f"s_and_b32 s{d+1}, s{hi}, 0xffff")
    if isinstance(size, int):
        a(f"s_mov_b32 s{d+2}, {size}")
    else:
        a(f"s_mov_b32 s{d+2}, {size}")
    a(f"s_mov_b32 s{d+3}, 0x20000")

def kernel_head(a, name):
    a(".text")
    a(f".globl {name}")
    a(".p2align 8")
    a(f".type {name},@function")
    a(f"{name}:")

def kernel_desc(a, name, nv, ns, acc=None):
    acc = acc if acc is not None else ((nv + 3) // 4) * 4
    a('.section .rodata,"a"')
    a(".p2align 6")
    a(f".amdhsa_kernel {name}")
    a.lines.append(f"  .amdhsa_next_free_vgpr {nv}")
    a.lines.append(f"  .amdhsa_next_free_sgpr {ns}")
    a.lines.append(f"  .amdhsa_accum_offset {acc}")
    a.lines.append("  .amdhsa_group_segment_fixed_size 0")
    a.lines.append("  .amdhsa_kernarg_size 104")
    a.lines.append("  .amdhsa_user_sgpr_count 2")
    a.lines.append("  .amdhsa_user_sgpr_kernarg_segment_ptr 1")
    a.lines.append("  .amdhsa_system_sgpr_workgroup_id_x 1")
    a(".end_amdhsa_kernel")
```

```python
from common import *
import math
LOG2E = 1.4426950408889634
QSCALE = LOG2E / math.sqrt(20.0)
STG = 26624
NSLOT = 6
K1_LDS = STG * NSLOT

def dpp_max32(a, v, t):
    for sh in (1, 2, 4, 8):
        a("s_nop 1")
        a(f"v_max_f32_dpp v{v}, v{v}, v{v} row_shr:{sh} row_mask:0xf bank_mask:0xf")
    a("s_nop 1")
    a(f"v_max_f32_dpp v{v}, v{v}, v{v} row_bcast:15 row_mask:0xa bank_mask:0xf")

def gen_k1(a, name):
    kernel_head(a, name)
    L = name
    a(f"""
    s_cmp_ge_u32 s2, 256
    s_cbranch_scc1 {L}_end
    s_load_dwordx8 s[4:11], s[0:1], 0
    s_load_dwordx4 s[12:15], s[0:1], 48
    s_load_dwordx2 s[16:17], s[0:1], 72
    s_load_dwordx2 s[18:19], s[0:1], 96
    v_lshrrev_b32 v2, 6, v0
    v_and_b32 v1, 63, v0
    v_readfirstlane_b32 s22, v2
    s_and_b32 s47, s2, 7
    s_lshr_b32 s51, s2, 3
    s_and_b32 s20, s47, 1
    s_lshl_b32 s20, s20, 2
    s_and_b32 s52, s51, 3
    s_add_u32 s20, s20, s52
    s_lshr_b32 s21, s47, 1
    s_lshl_b32 s21, s21, 3
    s_lshr_b32 s52, s51, 2
    s_add_u32 s21, s21, s52
    s_sub_i32 s23, s21, 27
    s_and_b32 s65, s23, 1
    s_cmp_ge_i32 s23, 0
    s_cselect_b32 s65, s65, 0
    """)
    a.c("s20=rg s21=cg s22=wave s23=qg (negative for gate/up groups)")
    a(f"""
    v_lshrrev_b32 v13, 2, v1
    v_lshrrev_b32 v14, 4, v1
    v_and_b32 v15, 3, v1
    v_xor_b32 v15, v15, v14
    s_lshl_b32 s52, s20, 8
    s_xor_b32 s53, s22, s65
    s_lshl_b32 s53, s53, 5
    s_add_u32 s52, s52, s53
    v_add_u32 v13, s52, v13
    s_movk_i32 s54, 1280
    v_mul_lo_u32 v2, v13, s54
    v_lshl_add_u32 v2, v15, 4, v2
    """)
    a.c("v2 = X dma voffset")
    a("s_waitcnt lgkmcnt(0)")
    srd(a, 24, 4, 5, 2621440)
    a(f"""
    s_cmp_ge_u32 s22, 4
    s_cselect_b32 s56, s14, s12
    s_cselect_b32 s57, s15, s13
    s_cselect_b32 s58, 128, 0
    s_lshl_b32 s59, s21, 7
    s_lshl_b32 s60, s23, 8
    s_add_u32 s60, s60, s58
    s_cmp_ge_i32 s23, 0
    s_cselect_b32 s28, s6, s56
    s_cselect_b32 s29, s7, s57
    s_mov_b32 s61, 2211840
    s_cselect_b32 s61, 819200, s61
    s_movk_i32 s62, 3456
    s_cselect_b32 s62, 1280, s62
    s_cselect_b32 s59, s60, s59
    s_and_b32 s29, s29, 0xffff
    s_mov_b32 s30, s61
    s_mov_b32 s31, 0x20000
    s_lshl_b32 s40, s62, 5
    """)
    a.c("s61=W size s62=W row stride s59=col byte offset; s40 = stage step")
    a(f"""
    s_cmp_ge_i32 s23, 2
    s_cselect_b32 s32, s10, s8
    s_cselect_b32 s33, s11, s9
    s_and_b32 s33, s33, 0xffff
    s_mov_b32 s34, 25600
    s_mov_b32 s35, 0x20000
    """)
    srd(a, 36, 18, 19, WS_SIZE)
    a(f"""
    s_and_b32 s52, s22, 3
    s_lshl_b32 s52, s52, 3
    v_lshrrev_b32 v13, 3, v1
    v_add_u32 v13, s52, v13
    v_mul_lo_u32 v3, v13, s62
    v_and_b32 v14, 7, v1
    v_bfe_u32 v15, v1, 4, 1
    v_lshlrev_b32 v15, 2, v15
    v_xor_b32 v14, v14, v15
    v_lshl_add_u32 v3, v14, 4, v3
    v_add_u32 v3, s59, v3
    s_and_b32 s52, s22, 1
    s_lshl_b32 s52, s52, 10
    v_lshlrev_b32 v4, 4, v1
    v_add_u32 v4, s52, v4
    s_add_u32 s50, s52, 24576
    s_lshl_b32 s48, s22, 11
    s_lshl_b32 s49, s22, 10
    s_add_u32 s49, s49, 16384
    """)
    a.c("v3 = W voffset, v4 = S voffset; s48/s49/s50 = lds dest bases inside a stage")
    a(f"""
    s_and_b32 s63, s22, 3
    s_lshr_b32 s64, s22, 2
    v_and_b32 v13, 31, v1
    v_lshrrev_b32 v14, 5, v1
    v_bfe_u32 v15, v1, 2, 2
    v_xor_b32 v5, v14, v15
    v_xor_b32 v6, 2, v5
    v_lshlrev_b32 v5, 4, v5
    v_lshlrev_b32 v6, 4, v6
    v_lshl_add_u32 v5, v13, 6, v5
    v_lshl_add_u32 v6, v13, 6, v6
    s_lshl_b32 s52, s63, 12
    v_add_u32 v5, s52, v5
    v_add_u32 v6, s52, v6
    """)
    a.c("v5/v6 = x frag address (ks0/ks1) for row block 2rp; second row block at +2048")
    a.c("s63=rp s64=cp s65=flip")
    a(f"""
    v_lshlrev_b32 v7, 3, v14
    v_add_u32 v7, v7, v15
    v_mul_u32_u24 v8, 40, v7
    v_lshlrev_b32 v7, 7, v7
    v_lshrrev_b32 v16, 1, v15
    v_xor_b32 v16, s64, v16
    v_lshl_add_u32 v7, v16, 6, v7
    v_bfe_u32 v16, v1, 4, 1
    v_and_b32 v17, 3, v1
    v_lshlrev_b32 v16, 5, v16
    v_lshl_add_u32 v16, v17, 3, v16
    v_add_u32 v7, v7, v16
    v_add_u32 v8, v8, v16
    v_add_u32 v7, 16384, v7
    v_add_u32 v8, 24576, v8
    """)
    a.c("v7 = W frag address, v8 = S frag address")
    for r in range(64, 144):
        a(f"v_mov_b32 v{r}, 0")
    a("""
    s_mov_b32 s41, 0
    s_mov_b32 s42, 0
    s_mov_b32 s43, 0
    s_mov_b32 s44, 0
    s_mov_b32 s45, 0
    s_mov_b32 s46, 0
    """)
    a(f"""
    s_mov_b32 s66, 0
    s_cmp_lt_i32 s23, 0
    s_cbranch_scc1 {L}_plain
    s_cmp_ge_i32 s23, 4
    s_cbranch_scc1 {L}_plain
    s_cmp_ge_u32 s22, 4
    s_cbranch_scc1 {L}_plain
    s_cmp_ge_i32 s23, 2
    s_cbranch_scc1 {L}_modeV
    s_branch {L}_modeK
    """)

    XA = [16, 36]
    def dma(extra):
        a(f"""
        s_add_u32 m0, s44, s48
        s_add_u32 s52, s41, {16*1280-1024}
        buffer_load_dwordx4 v2, s[24:27], s41 offen lds
        buffer_load_dwordx4 v2, s[24:27], s52 offen offset:1024 lds
        s_add_u32 m0, s44, s49
        s_add_u32 s41, s41, 64
        buffer_load_dwordx4 v3, s[28:31], s42 offen lds
        s_add_u32 s42, s42, s40
        """)
        if extra:
            a(f"""
            s_add_u32 m0, s44, s50
            s_nop 0
            buffer_load_dwordx4 v4, s[32:35], s43 offen lds
            s_add_u32 s43, s43, 1280
            """)
        a(f"""
        s_add_u32 s44, s44, {STG}
        s_cmp_ge_u32 s44, {STG*NSLOT}
        s_cselect_b32 s44, 0, s44
        """)
    def addrs(extra):
        a("v_add_u32 v9, s45, v5")
        a("v_add_u32 v10, s45, v6")
        a("v_add_u32 v11, s45, v7")
        if extra:
            a("v_add_u32 v12, s45, v8")
        a(f"""
        s_add_u32 s45, s45, {STG}
        s_cmp_ge_u32 s45, {STG*NSLOT}
        s_cselect_b32 s45, 0, s45
        """)
    def reads(ks, extra):
        b = XA[ks]
        xa = 9 + ks
        n = 0
        a(f"ds_read_b128 {vr(b,4)}, v{xa}")
        a(f"ds_read_b64_tr_b16 {vr(b+8,2)}, v11 offset:{ks*2048}")
        a(f"ds_read_b64_tr_b16 {vr(b+10,2)}, v11 offset:{ks*2048+512}")
        a(f"ds_read_b64_tr_b16 {vr(b+12,2)}, v11 offset:{4096+ks*2048}")
        a(f"ds_read_b64_tr_b16 {vr(b+14,2)}, v11 offset:{4096+ks*2048+512}")
        a(f"ds_read_b128 {vr(b+4,4)}, v{xa} offset:2048")
        n = 6
        if extra:
            a(f"ds_read_b64_tr_b16 {vr(b+16,2)}, v12 offset:{ks*640}")
            a(f"ds_read_b64_tr_b16 {vr(b+18,2)}, v12 offset:{ks*640+160}")
            n = 8
        return n
    def mfmas(ks, mode):
        b = XA[ks]
        x0, x1, wg, wu, ws = vr(b,4), vr(b+4,4), vr(b+8,4), vr(b+12,4), vr(b+16,4)
        M = "v_mfma_f32_32x32x16_bf16"
        a(f"{M} v[64:79], {wg}, {x0}, v[64:79]")
        a(f"{M} v[80:95], {wu}, {x0}, v[80:95]")
        a(f"{M} v[96:111], {wg}, {x1}, v[96:111]")
        a(f"{M} v[112:127], {wu}, {x1}, v[112:127]")
        if mode == 1:
            a(f"{M} v[128:143], {ws}, {x0}, v[128:143]")
        if mode == 2:
            a(f"{M} v[128:143], {x0}, {ws}, v[128:143]")

    for mode, tag in ((0, "plain"), (1, "modeK"), (2, "modeV")):
        ex = mode != 0
        D = 4 if ex else 3
        a(f"{L}_{tag}:")
        if ex:
            a(f"s_mov_b32 s66, {mode}")
        for st in range(5):
            dma(ex)
        a(f"s_waitcnt vmcnt({4*D})")
        a("s_barrier")
        addrs(ex)
        a("s_nop 0")
        n = reads(0, ex)
        a(f".p2align 6")
        a(f"{L}_{tag}_loop:")
        n = reads(1, ex)
        a(f"s_waitcnt lgkmcnt({n})")
        mfmas(0, mode)
        a(f"""
        s_cmp_lt_u32 s46, 15
        s_cselect_b32 s26, 2621440, 0
        s_cselect_b32 s30, s61, 0
        s_cselect_b32 s34, 25600, 0
        s_waitcnt vmcnt({3*D})
        s_barrier
        """)
        dma(ex)
        addrs(ex)
        a("s_nop 0")
        n = reads(0, ex)
        a(f"s_waitcnt lgkmcnt({n})")
        mfmas(1, mode)
        a(f"""
        s_add_u32 s46, s46, 1
        s_cmp_lt_u32 s46, 20
        s_cbranch_scc1 {L}_{tag}_loop
        s_branch {L}_epi
        """)
    return

def gen_k1_epi(a, name):
    L = name
    a(f"{L}_epi:")
    a("s_nop 15")
    a("s_waitcnt vmcnt(0) lgkmcnt(0)")
    a(f"""
    s_lshl_b32 s52, s20, 3
    s_lshl_b32 s53, s63, 1
    s_add_u32 s52, s52, s53
    s_add_u32 s52, s52, s65
    """)
    a.c("s52 = global row block of acc set 0 (set 1 is s52 ^ 1)")
    a(f"""
    s_cmp_ge_i32 s23, 0
    s_cbranch_scc1 {L}_epiq
    """)
    C0 = -2.0 * 0.7978845608028654 * LOG2E
    C1 = C0 * 0.044715
    a(f"""
    v_mov_b32 v16, {f32(C0)}
    v_mov_b32 v17, {f32(C1)}
    v_lshlrev_b32 v18, 4, v1
    s_mul_i32 s53, s52, {108*1024}
    s_lshl_b32 s54, s21, 12
    s_lshl_b32 s55, s64, 11
    s_add_u32 s53, s53, s54
    s_add_u32 s53, s53, s55
    s_add_u32 s53, s53, {WS_H}
    s_add_u32 s54, s53, {108*1024}
    """)
    for j in range(2):
        G, U = 64 + 32*j, 80 + 32*j
        for half in range(2):
            T = 20
            rs = list(range(8*half, 8*half+8))
            for i, r in enumerate(rs): a(f"v_mul_f32 v{T+i}, v{G+r}, v{G+r}")
            for i, r in enumerate(rs): a(f"v_fma_f32 v{T+i}, v{T+i}, v17, v16")
            for i, r in enumerate(rs): a(f"v_mul_f32 v{T+i}, v{G+r}, v{T+i}")
            for i, r in enumerate(rs): a(f"v_exp_f32 v{T+i}, v{T+i}")
            for i, r in enumerate(rs): a(f"v_mul_f32 v{U+r}, v{G+r}, v{U+r}")
            for i, r in enumerate(rs): a(f"v_add_f32 v{T+i}, 1.0, v{T+i}")
            for i, r in enumerate(rs): a(f"v_rcp_f32 v{T+i}, v{T+i}")
            a("s_nop 0")
            for i, r in enumerate(rs): a(f"v_mul_f32 v{T+i}, v{U+r}, v{T+i}")
            O = 28 + 4*(2*j+half)
            for i in range(4): a(f"v_cvt_pk_bf16_f32 v{O+i}, v{T+2*i}, v{T+2*i+1}")
            a(f"buffer_store_dwordx4 {vr(O,4)}, v18, s[36:39], s{53+j} offen offset:{1024*half}")
    a(f"s_branch {L}_end")

    a(f"{L}_epiq:")
    a(f"""
    s_cmp_lg_u32 s23, 4
    s_cbranch_scc1 {L}_q1
    s_mov_b32 s26, 2621440
    s_mov_b32 s68, s16
    s_and_b32 s69, s17, 0xffff
    s_mov_b32 s70, 1280
    s_mov_b32 s71, 0x20000
    v_and_b32 v16, 7, v1
    v_lshlrev_b32 v16, 4, v16
    v_lshrrev_b32 v17, 3, v1
    s_lshl_b32 s53, s20, 8
    s_lshl_b32 s54, s22, 5
    s_add_u32 s53, s53, s54
    v_add_u32 v18, s53, v17
    s_movk_i32 s54, 1280
    v_mul_lo_u32 v17, v18, s54
    v_add_u32 v17, v17, v16
    """)
    for j in range(10):
        a(f"buffer_load_dwordx4 {vr(144+4*j,4)}, v16, s[68:71], 0 offen offset:{128*j}")
    for j in range(10):
        a(f"buffer_load_dwordx4 {vr(184+4*j,4)}, v17, s[24:27], 0 offen offset:{128*j}")
    a(f"{L}_q1:")
    a(f"""
    v_mov_b32 v20, {f32(QSCALE)}
    v_and_b32 v21, 31, v1
    v_lshrrev_b32 v22, 5, v1
    s_lshl_b32 s53, s23, 7
    s_lshl_b32 s54, s64, 5
    s_add_u32 s53, s53, s54
    v_lshl_add_u32 v22, v22, 2, s53
    v_lshlrev_b32 v23, 4, v21
    v_lshlrev_b32 v24, 3, v21
    v_add_u32 v24, 1024, v24
    s_mul_i32 s54, s52, 40960
    s_add_u32 s54, s54, {WS_Q}
    s_xor_b32 s55, s52, 1
    s_mul_i32 s55, s55, 40960
    s_add_u32 s55, s55, {WS_Q}
    s_movk_i32 s56, 3277
    s_movk_i32 s57, 1280
    """)
    a.c("v22 = column of quad 0 of tile G for this lane; v23 = 16m; v24 = 1024+8m")
    for T in range(2):
        for q in range(4):
            a(f"""
            v_add_u32 v25, {64*T+8*q}, v22
            v_mul_u32_u24 v26, s56, v25
            v_lshrrev_b32 v26, 16, v26
            v_mul_u32_u24 v27, 20, v26
            v_sub_u32 v27, v25, v27
            v_bfe_u32 v28, v27, 2, 1
            v_lshl_add_u32 v28, v28, 9, v23
            v_and_b32 v29, 8, v27
            v_add_u32 v28, v28, v29
            v_cmp_eq_u32 vcc, 16, v27
            s_nop 1
            v_cndmask_b32 v28, v28, v24, vcc
            v_mad_u32_u24 v28, v26, s57, v28
            """)
            for j in range(2):
                A = 64 + 32*j + 16*T + 4*q
                for i in range(4): a(f"v_mul_f32 v{A+i}, v20, v{A+i}")
                a(f"v_cvt_pk_bf16_f32 v{30+2*j}, v{A}, v{A+1}")
                a(f"v_cvt_pk_bf16_f32 v{31+2*j}, v{A+2}, v{A+3}")
                a(f"buffer_store_dwordx2 {vr(30+2*j,2)}, v28, s[36:39], s{54+j} offen")
            a("s_nop 0")
    a(f"""
    s_cmp_eq_u32 s66, 1
    s_cbranch_scc1 {L}_epik
    s_cmp_eq_u32 s66, 2
    s_cbranch_scc1 {L}_epiv
    s_cmp_eq_u32 s23, 4
    s_cbranch_scc1 {L}_epig
    s_branch {L}_end
    """)
    E = 128
    a(f"{L}_epik:")
    a(f"""
    s_mul_i32 s53, s52, 3072
    s_add_u32 s53, s53, {WS_KV}
    v_lshlrev_b32 v16, 4, v1
    """)
    for i in range(4): a(f"v_cvt_pk_bf16_f32 v{20+i}, v{E+2*i}, v{E+2*i+1}")
    a(f"buffer_store_dwordx4 v[20:23], v16, s[36:39], s53 offen")
    a(f"v_cvt_pk_bf16_f32 v24, v{E+8}, v{E+9}")
    a(f"v_cvt_pk_bf16_f32 v25, v{E+10}, v{E+11}")
    a("v_mov_b32 v26, 0x3f803f80")
    a("v_mov_b32 v27, 0x00003f80")
    a(f"v_mul_f32 v30, v{E}, v{E}")
    for i in range(1, 8): a(f"v_fmac_f32 v30, v{E+i}, v{E+i}")
    a(f"v_mul_f32 v31, v{E+8}, v{E+8}")
    for i in range(9, 12): a(f"v_fmac_f32 v31, v{E+i}, v{E+i}")
    a(f"""
    v_cmp_gt_u32 vcc, 32, v1
    s_nop 1
    v_cndmask_b32 v31, 0, v31, vcc
    v_add_f32 v30, v30, v31
    v_mov_b32 v31, v30
    s_nop 1
    v_permlane32_swap_b32 v30, v31
    s_nop 1
    v_add_f32 v30, v30, v31
    """)
    dpp_max32(a, 30, 31)
    a(f"""
    s_lshl_b32 s54, s52, 2
    s_add_u32 s54, s54, {WS_KMAX}
    v_mov_b32 v17, 0
    s_mov_b32 exec_hi, 0
    buffer_store_dwordx4 v[24:27], v16, s[36:39], s53 offen offset:1024
    s_mov_b32 exec_lo, 0x80000000
    buffer_store_dword v30, v17, s[36:39], s54 offen
    s_branch {L}_end
    """)
    a(f"{L}_epiv:")
    a(f"""
    s_mul_i32 s53, s52, 3072
    s_add_u32 s53, s53, {WS_KV+1536}
    v_and_b32 v17, 31, v1
    v_lshrrev_b32 v18, 5, v1
    v_mul_u32_u24 v18, 384, v18
    v_lshl_add_u32 v16, v17, 4, v18
    v_mov_b32 v19, 0x3f803f80
    v_cmp_eq_u32 vcc, 20, v17
    """)
    for i in range(8): a(f"v_cvt_pk_bf16_f32 v{20+i}, v{E+2*i}, v{E+2*i+1}")
    for i in range(8): a(f"v_cndmask_b32 v{20+i}, v{20+i}, v19, vcc")
    a(f"""
    v_cmp_gt_u32 vcc, 24, v17
    s_nop 1
    s_and_b64 exec, exec, vcc
    buffer_store_dwordx4 v[20:23], v16, s[36:39], s53 offen
    buffer_store_dwordx4 v[24:27], v16, s[36:39], s53 offen offset:768
    s_branch {L}_end
    """)
    a(f"{L}_epig:")
    a(f"""
    v_lshlrev_b32 v19, 2, v18
    v_mov_b32 v21, {f32(-LOG2E)}
    """)
    for rnd in range(4):
        a("s_waitcnt vmcnt(0)")
        a("v_mov_b32 v20, 0")
        for i in range(40):
            a(f"v_dot2_f32_bf16 v20, v{184+i}, v{144+i}, v20")
        if rnd < 3:
            a(f"v_add_u32 v17, {8*1280}, v17")
            a("s_nop 2")
            for j in range(10):
                a(f"buffer_load_dwordx4 {vr(184+4*j,4)}, v17, s[24:27], 0 offen offset:{128*j}")
        a(f"""
        s_nop 3
        v_add_f32_dpp v20, v20, v20 quad_perm:[1,0,3,2] row_mask:0xf bank_mask:0xf
        s_nop 1
        v_add_f32_dpp v20, v20, v20 quad_perm:[2,3,0,1] row_mask:0xf bank_mask:0xf
        s_nop 1
        v_add_f32_dpp v20, v20, v20 row_half_mirror row_mask:0xf bank_mask:0xf
        v_cvt_pk_bf16_f32 v20, v20, v20
        v_lshlrev_b32 v20, 16, v20
        v_mul_f32 v20, v21, v20
        v_exp_f32 v20, v20
        s_nop 0
        v_add_f32 v20, 1.0, v20
        v_rcp_f32 v20, v20
        s_nop 0
        v_cvt_pk_bf16_f32 v20, v20, v20
        v_lshlrev_b32 v22, 16, v20
        s_mov_b32 s53, {WS_G + 32*rnd}
        buffer_store_dword v22, v19, s[36:39], s53 offen
        """)
    a(f"{L}_end:")
    a("s_endpgm")
    kernel_desc(a, name, 224, 80)
```

```python
from common import *
CH = 12288
KV_LDS = 3 * CH
M = "v_mfma_f32_32x32x16_bf16"

QA1, QA2, QB1, QB2 = 12, 16, 20, 24
KVB = [28, 44]
SA, SB, OA, OB, PA, PB = 64, 80, 96, 112, 128, 136

def split3(a, m, d0, d1, t0, t1):
    a(f"""
    v_and_b32 v{t0}, 0xffff0000, v{m}
    v_sub_f32 v{t1}, v{m}, v{t0}
    v_lshrrev_b32 v{d0}, 16, v{t0}
    v_and_b32 v{t0}, 0xffff0000, v{t1}
    v_or_b32 v{d0}, v{d0}, v{t0}
    v_sub_f32 v{t1}, v{t1}, v{t0}
    v_lshrrev_b32 v{d1}, 16, v{t1}
    v_xor_b32 v{d0}, 0x80008000, v{d0}
    v_xor_b32 v{d1}, 0x8000, v{d1}
    """)

def exp_groups(S, P):
    e = lambda i: f"v_exp_f32 v{S+i}, v{S+i}"
    c = lambda j: f"v_cvt_pk_bf16_f32 v{P+j}, v{S+2*j}, v{S+2*j+1}"
    return [[e(0), e(1), e(2), e(3), c(0)],
            [e(4), e(5), c(1), e(6), e(7), c(2)],
            [e(8), e(9), c(3), e(10), e(11), c(4)],
            [e(12), e(13), c(5), e(14), e(15), c(6), c(7)]]

def slot(a, S, P, mf, pre=()):
    g = exp_groups(S, P)
    for p in pre: a(p)
    for i in range(4):
        a(mf[i])
        for x in g[i]: a(x)

def qk(Sd, kb, q1, q2):
    return [f"{M} {vr(Sd,16)}, {vr(kb,4)}, {vr(q1,4)}, 0",
            f"{M} {vr(Sd,16)}, {vr(kb+4,4)}, {vr(q2,4)}, {vr(Sd,16)}"]
def pv(O, kb, P):
    return [f"{M} {vr(O,16)}, {vr(kb+8,4)}, {vr(P,4)}, {vr(O,16)}",
            f"{M} {vr(O,16)}, {vr(kb+12,4)}, {vr(P+4,4)}, {vr(O,16)}"]

def kv_dma(a):
    a(f"""
    s_add_u32 m0, s21, s24
    s_nop 0
    buffer_load_dwordx4 v2, s[12:15], s20 offen lds
    buffer_load_dwordx4 v2, s[12:15], s20 offen offset:1024 lds
    buffer_load_dwordx4 v2, s[12:15], s20 offen offset:2048 lds
    s_add_u32 s20, s20, {CH}
    s_add_u32 s21, s21, {CH}
    s_cmp_ge_u32 s21, {3*CH}
    s_cselect_b32 s21, 0, s21
    """)

def gen_k2(a, name):
    kernel_head(a, name)
    L = name
    a(f"""
    s_cmp_ge_u32 s2, 256
    s_cbranch_scc1 {L}_end
    s_load_dwordx2 s[4:5], s[0:1], 96
    v_lshrrev_b32 v2, 6, v0
    v_and_b32 v1, 63, v0
    v_readfirstlane_b32 s16, v2
    s_lshr_b32 s17, s2, 2
    s_and_b32 s18, s2, 3
    s_lshl_b32 s18, s18, 3
    """)
    a.c("s16=wave s17=rb s18=first head of WG")
    a(f"""
    v_lshlrev_b32 v2, 4, v1
    v_and_b32 v9, 31, v1
    v_lshrrev_b32 v10, 5, v1
    v_mov_b32 v3, v2
    v_lshlrev_b32 v4, 4, v9
    v_add_u32 v4, 1024, v4
    v_subrev_u32 v11, 4, v9
    v_cmp_lt_u32 vcc, 23, v9
    s_nop 1
    v_cndmask_b32 v5, v9, v11, vcc
    v_subrev_u32 v11, 12, v9
    v_cmp_lt_u32 vcc, 27, v9
    s_nop 1
    v_cndmask_b32 v5, v5, v11, vcc
    v_mul_u32_u24 v11, 384, v10
    v_lshl_add_u32 v5, v5, 4, v11
    v_add_u32 v5, 1536, v5
    s_lshl_b32 s19, s16, 1
    s_add_u32 s18, s18, s19
    s_mul_i32 s22, s17, 40960
    s_mul_i32 s23, s18, 1280
    s_add_u32 s22, s22, s23
    s_add_u32 s22, s22, {WS_Q}
    s_mul_i32 s24, s16, 3072
    s_add_u32 s20, s24, {WS_KV}
    s_mov_b32 s21, 0
    v_lshlrev_b32 v6, 3, v9
    v_lshlrev_b32 v7, 2, v1
    s_mov_b32 s25, {WS_KMAX}
    s_waitcnt lgkmcnt(0)
    """)
    a.c("s18 = head of q-block a; s22 = Q image offset; s24 = wave part of chunk; s20 = dma src; s21 = dma slot")
    srd(a, 8, 4, 5, WS_SIZE)
    srd(a, 12, 4, 5, WS_KV + 64*3072)
    a(f"""
    buffer_load_dword v144, v7, s[8:11], s25 offen
    buffer_load_dwordx4 {vr(QA1,4)}, v2, s[8:11], s22 offen
    buffer_load_dwordx2 {vr(QA2,2)}, v6, s[8:11], s22 offen offset:1024
    buffer_load_dwordx4 {vr(QB1,4)}, v2, s[8:11], s22 offen offset:1280
    buffer_load_dwordx2 {vr(QB2,2)}, v6, s[8:11], s22 offen offset:2304
    """)
    kv_dma(a)
    kv_dma(a)
    for r in list(range(OA, OA+32)) + list(range(PB, PB+8)) + list(range(KVB[1]+8, KVB[1]+16)):
        a(f"v_mov_b32 v{r}, 0")
    a("s_waitcnt vmcnt(6)")
    for sh in (1, 2, 4, 8):
        a("s_nop 1")
        a(f"v_max_f32_dpp v144, v144, v144 row_shr:{sh} row_mask:0xf bank_mask:0xf")
    a("s_nop 1")
    a("v_max_f32_dpp v144, v144, v144 row_bcast:15 row_mask:0xa bank_mask:0xf")
    a("s_nop 1")
    a("v_max_f32_dpp v144, v144, v144 row_bcast:31 row_mask:0xc bank_mask:0xf")
    a("s_nop 1")
    a("v_readlane_b32 s26, v144, 63")
    a("v_cmp_gt_u32 s[28:29], 32, v1")
    for (q1, q2) in ((QA1, QA2), (QB1, QB2)):
        a(f"""
        v_cndmask_b32 v{q2}, 0, v{q2}, s[28:29]
        v_cndmask_b32 v{q2+1}, 0, v{q2+1}, s[28:29]
        v_mov_b32 v145, 0
        v_dot2_f32_bf16 v145, v{q1}, v{q1}, v145
        v_dot2_f32_bf16 v145, v{q1+1}, v{q1+1}, v145
        v_dot2_f32_bf16 v145, v{q1+2}, v{q1+2}, v145
        v_dot2_f32_bf16 v145, v{q1+3}, v{q1+3}, v145
        v_dot2_f32_bf16 v145, v{q2}, v{q2}, v145
        v_dot2_f32_bf16 v145, v{q2+1}, v{q2+1}, v145
        s_nop 3
        v_mov_b32 v146, v145
        s_nop 1
        v_permlane32_swap_b32 v145, v146
        s_nop 1
        v_add_f32 v145, v145, v146
        v_mul_f32 v145, s26, v145
        v_sqrt_f32 v145, v145
        s_nop 0
        v_mul_f32 v145, {f32(1.02)}, v145
        """)
        split3(a, 145, q2+2, q2+3, 146, 147)
        a(f"""
        v_cndmask_b32 v{q2+2}, 0, v{q2+2}, s[28:29]
        v_cndmask_b32 v{q2+3}, 0, v{q2+3}, s[28:29]
        """)
    a(f"""
    s_waitcnt vmcnt(3)
    s_barrier
    ds_read_b128 {vr(KVB[0],4)}, v3
    ds_read_b128 {vr(KVB[0]+4,4)}, v4
    ds_read_b128 {vr(KVB[1],4)}, v3 offset:3072
    ds_read_b128 {vr(KVB[1]+4,4)}, v4 offset:3072
    ds_read_b128 {vr(KVB[0]+8,4)}, v5
    ds_read_b128 {vr(KVB[0]+12,4)}, v5 offset:768
    v_mov_b32 v6, v3
    v_mov_b32 v7, v4
    v_mov_b32 v8, v5
    s_mov_b32 s27, {CH}
    s_mov_b32 s30, 0
    s_waitcnt lgkmcnt(4)
    """)
    for x in qk(SA, KVB[0], QA1, QA2): a(x)
    a("s_nop 11")
    a(".p2align 6")
    a(f"{L}_loop:")
    for t in range(4):
        cur, nxt = KVB[t & 1], KVB[(t + 1) & 1]
        slot(a, SA, PA, qk(SB, cur, QB1, QB2) + pv(OB, nxt, PB))
        pre = []
        if t == 0:
            a("s_waitcnt vmcnt(0) lgkmcnt(0)")
            a("s_barrier")
            kv_dma(a)
        else:
            pre.append("s_waitcnt lgkmcnt(0)")
        if t == 2:
            pre += ["v_add_u32 v6, s27, v3", "v_add_u32 v7, s27, v4"]
        if t == 3:
            pre += ["v_add_u32 v8, s27, v5",
                    f"s_add_u32 s27, s27, {CH}", f"s_cmp_ge_u32 s27, {3*CH}", "s_cselect_b32 s27, 0, s27"]
        ko = ((t + 2) & 3) * 3072
        vo = ((t + 1) & 3) * 3072
        pre += [f"ds_read_b128 {vr(cur,4)}, v6 offset:{ko}",
                f"ds_read_b128 {vr(cur+4,4)}, v7 offset:{ko}",
                f"ds_read_b128 {vr(nxt+8,4)}, v8 offset:{vo}",
                f"ds_read_b128 {vr(nxt+12,4)}, v8 offset:{vo+768}"]
        slot(a, SB, PB, qk(SA, nxt, QA1, QA2) + pv(OA, cur, PA), pre)
    a(f"""
    s_add_u32 s30, s30, 1
    s_cmp_lt_u32 s30, 16
    s_cbranch_scc1 {L}_loop
    s_nop 1
    """)
    for x in pv(OB, KVB[1], PB): a(x)
    a("s_waitcnt vmcnt(0) lgkmcnt(0)")
    a("s_nop 15")
    a(f"""
    v_and_b32 v9, 31, v1
    v_lshrrev_b32 v10, 5, v1
    v_lshlrev_b32 v9, 4, v9
    s_mul_i32 s22, s17, 40960
    s_add_u32 s22, s22, {WS_O}
    s_mul_i32 s23, s18, 20
    v_lshl_add_u32 v10, v10, 2, s23
    """)
    for blk, O in enumerate((OA, OB)):
        a(f"""
        v_mov_b32 v144, v{O+8}
        v_mov_b32 v145, v{O+8}
        s_nop 1
        v_permlane32_swap_b32 v144, v145
        s_nop 1
        v_rcp_f32 v145, v145
        s_nop 0
        """)
        for q in range(3):
            for i in range(4): a(f"v_mul_f32 v{O+4*q+i}, v145, v{O+4*q+i}")
            a(f"""
            v_cvt_pk_bf16_f32 v{146+2*q}, v{O+4*q}, v{O+4*q+1}
            v_cvt_pk_bf16_f32 v{147+2*q}, v{O+4*q+2}, v{O+4*q+3}
            v_add_u32 v152, {20*blk+8*q}, v10
            v_lshrrev_b32 v153, 4, v152
            v_lshl_add_u32 v153, v153, 10, v9
            v_bfe_u32 v154, v152, 2, 1
            v_lshl_add_u32 v153, v154, 9, v153
            v_and_b32 v154, 8, v152
            v_add_u32 v{155+q}, v153, v154
            """)
            if q == 2:
                a("s_mov_b32 exec_hi, 0")
            a(f"buffer_store_dwordx2 {vr(146+2*q,2)}, v{155+q}, s[8:11], s22 offen")
            if q == 2:
                a("s_mov_b64 exec, -1")
        a("s_nop 0")
    a(f"{L}_end:")
    a("s_endpgm")
    kernel_desc(a, name, 160, 40)
```

```python
from common import *
M = "v_mfma_f32_32x32x16_bf16"
SLOT = 6144
def gen_k3(a, name):
    kernel_head(a, name)
    L = name
    a(f"""
    s_cmp_ge_u32 s2, 256
    s_cbranch_scc1 {L}_end
    s_load_dwordx2 s[4:5], s[0:1], 32
    s_load_dwordx2 s[6:7], s[0:1], 64
    s_load_dwordx2 s[8:9], s[0:1], 80
    s_load_dwordx2 s[10:11], s[0:1], 96
    v_lshrrev_b32 v2, 6, v0
    v_and_b32 v1, 63, v0
    v_readfirstlane_b32 s16, v2
    s_and_b32 s17, s2, 7
    s_lshl_b32 s17, s17, 3
    s_lshr_b32 s18, s2, 5
    s_add_u32 s17, s17, s18
    s_bfe_u32 s18, s2, 0x20003
    """)
    a.c("s16=wave s17=rb s18=ng")
    a(f"""
    s_mul_i32 s19, s16, 20
    s_sub_u32 s20, s16, 2
    s_mul_i32 s20, s20, 18
    s_mul_i32 s21, s17, 40
    s_mul_i32 s22, s17, 108
    s_cmp_lt_u32 s16, 2
    s_cselect_b32 s19, s19, s20
    s_cselect_b32 s23, 20, 18
    s_cselect_b32 s21, s21, s22
    s_mov_b32 s22, {WS_H}
    s_cselect_b32 s22, {WS_O}, s22
    s_mov_b32 s24, 2211840
    s_cselect_b32 s24, 819200, s24
    s_add_u32 s21, s21, s19
    s_lshl_b32 s21, s21, 10
    s_add_u32 s40, s21, s22
    s_mul_i32 s41, s19, {16*1280}
    s_mul_i32 s42, s16, 20480
    """)
    a.c("s19=first ks, s23=count, s40=act soffset, s41=W soffset, s42=wave lds base")
    a("s_waitcnt lgkmcnt(0)")
    a(f"""
    s_cmp_lt_u32 s16, 2
    s_cselect_b32 s28, s4, s6
    s_cselect_b32 s29, s5, s7
    s_and_b32 s29, s29, 0xffff
    s_mov_b32 s30, s24
    s_mov_b32 s31, 0x20000
    """)
    srd(a, 32, 10, 11, WS_SIZE)
    srd(a, 36, 10, 11, WS_SIZE)
    srd(a, 12, 8, 9, 2621440)
    a(f"""
    v_lshlrev_b32 v2, 4, v1
    s_mul_i32 s25, s18, 320
    s_movk_i32 s26, 3277
    s_movk_i32 s27, 1280
    """)
    for i in range(5):
        a(f"""
        v_add_u32 v8, {64*i}, v1
        v_mul_u32_u24 v9, s26, v8
        v_lshrrev_b32 v9, 16, v9
        v_mul_u32_u24 v10, 20, v9
        v_sub_u32 v10, v8, v10
        v_mul_u32_u24 v9, s27, v9
        v_lshl_add_u32 v9, v10, 4, v9
        v_add_u32 v{3+i}, s25, v9
        """)
    a(f"""
    v_lshrrev_b32 v8, 5, v1
    v_bfe_u32 v9, v1, 2, 2
    v_lshl_add_u32 v8, v8, 2, v9
    v_mul_u32_u24 v8, 320, v8
    v_bfe_u32 v9, v1, 4, 1
    v_lshl_add_u32 v8, v9, 5, v8
    v_and_b32 v9, 3, v1
    v_lshl_add_u32 v8, v9, 3, v8
    v_add_u32 v11, 1024, v8
    v_add_u32 v10, s42, v2
    v_add_u32 v11, s42, v11
    s_mov_b32 s43, 0
    s_mov_b32 s44, 0
    s_mov_b32 s45, 0
    s_mov_b32 s46, 0
    """)
    a.c("v10/v11 read bases; s43=dma slot off, s44=read slot off, s45=dma step idx, s46=loop idx")
    ACC = 64
    for r in range(ACC, ACC+80): a(f"v_mov_b32 v{r}, 0")
    def dma():
        a(f"""
        s_cmp_lt_u32 s45, s23
        s_cselect_b32 s34, {WS_SIZE}, 0
        s_cselect_b32 s30, s24, 0
        s_add_u32 s47, s42, s43
        s_mov_b32 m0, s47
        s_add_u32 s45, s45, 1
        buffer_load_dwordx4 v2, s[32:35], s40 offen lds
        s_add_u32 m0, s47, 1024
        s_add_u32 s40, s40, 1024
        """)
        for i in range(5):
            if i: a(f"s_add_u32 m0, s47, {1024*(i+1)}")
            if i: a("s_nop 0")
            a(f"buffer_load_dwordx4 v{3+i}, s[28:31], s41 offen lds")
        a(f"""
        s_add_u32 s41, s41, {16*1280}
        s_add_u32 s43, s43, {SLOT}
        s_cmp_ge_u32 s43, {3*SLOT}
        s_cselect_b32 s43, 0, s43
        """)
    FR = [16, 40]
    def reads(b):
        a(f"""
        v_add_u32 v12, s44, v10
        v_add_u32 v13, s44, v11
        s_add_u32 s44, s44, {SLOT}
        s_cmp_ge_u32 s44, {3*SLOT}
        s_cselect_b32 s44, 0, s44
        ds_read_b128 {vr(b,4)}, v12
        """)
        for cb in range(5):
            a(f"ds_read_b64_tr_b16 {vr(b+4+4*cb,2)}, v13 offset:{64*cb}")
            a(f"ds_read_b64_tr_b16 {vr(b+6+4*cb,2)}, v13 offset:{64*cb+8*320}")
    def mf(b):
        for cb in range(5):
            a(f"{M} {vr(ACC+16*cb,16)}, {vr(b+4+4*cb,4)}, {vr(b,4)}, {vr(ACC+16*cb,16)}")
    dma(); dma(); dma()
    a("s_waitcnt vmcnt(12)")
    reads(FR[0])
    a(".p2align 6")
    a(f"{L}_loop:")
    for hlf in range(2):
        a("s_waitcnt vmcnt(6) lgkmcnt(0)")
        reads(FR[1-hlf])
        dma()
        mf(FR[hlf])
    a(f"""
    s_add_u32 s46, s46, 2
    s_cmp_lt_u32 s46, s23
    s_cbranch_scc1 {L}_loop
    s_waitcnt vmcnt(0) lgkmcnt(0)
    s_nop 15
    """)
    for it in range(20):
        a(f"ds_write_b128 v10, {vr(ACC+4*it,4)} offset:{1024*it}")
    a(f"""
    v_and_b32 v3, 31, v1
    s_lshl_b32 s19, s17, 5
    v_add_u32 v3, s19, v3
    v_lshlrev_b32 v4, 2, v3
    s_mov_b32 s20, {WS_G}
    buffer_load_dword v5, v4, s[36:39], s20 offen
    v_mul_lo_u32 v3, v3, s27
    v_lshrrev_b32 v4, 5, v1
    v_lshl_add_u32 v3, v4, 3, v3
    v_add_u32 v3, s25, v3
    s_waitcnt lgkmcnt(0)
    s_barrier
    s_mov_b32 s19, s16
    s_waitcnt vmcnt(0)
    v_sub_f32 v6, 1.0, v5
    v_cvt_pk_bf16_f32 v6, v6, v6
    v_lshlrev_b32 v6, 16, v6
    {L}_red:
    s_lshl_b32 s20, s19, 10
    v_add_u32 v7, s20, v2
    v_add_u32 v8, 61440, v7
    v_add_u32 v9, 122880, v7
    ds_read_b128 v[16:19], v7
    ds_read_b128 v[20:23], v7 offset:20480
    ds_read_b128 v[24:27], v7 offset:40960
    ds_read_b128 v[28:31], v8
    ds_read_b128 v[32:35], v8 offset:20480
    ds_read_b128 v[36:39], v8 offset:40960
    ds_read_b128 v[40:43], v9
    ds_read_b128 v[44:47], v9 offset:20480
    s_lshl_b32 s21, s19, 4
    s_waitcnt lgkmcnt(0)
    """)
    for i in range(4):
        a(f"""
        v_add_f32 v{16+i}, v{16+i}, v{20+i}
        v_add_f32 v{24+i}, v{24+i}, v{28+i}
        v_add_f32 v{32+i}, v{32+i}, v{36+i}
        v_add_f32 v{40+i}, v{40+i}, v{44+i}
        v_add_f32 v{24+i}, v{24+i}, v{32+i}
        v_add_f32 v{24+i}, v{24+i}, v{40+i}
        v_mul_f32 v{16+i}, v5, v{16+i}
        v_fmac_f32 v{16+i}, v6, v{24+i}
        """)
    a(f"""
    v_cvt_pk_bf16_f32 v16, v16, v17
    v_cvt_pk_bf16_f32 v17, v18, v19
    buffer_store_dwordx2 v[16:17], v3, s[12:15], s21 offen
    s_add_u32 s19, s19, 8
    s_cmp_lt_u32 s19, 20
    s_cbranch_scc1 {L}_red
    {L}_end:
    s_endpgm
    """)
    kernel_desc(a, name, 144, 56)
```

```python
import sys
sys.path.insert(0, 'gen')
from common import *
import k1, k2, k3
HEAD = open('gated_mix__grouped_kv_mqa__geglu_ffn__prompt.s.ref').read().split('; Override')[0]
a = Asm()
launch = [("proj_kernel", 256, k1.K1_BLOCK, k1.K1_LDS), ("attn_kernel", 256, 512, k2.KV_LDS), ("outp_kernel", 256, 512, 163840)]
hdr = HEAD
for n, g, b, l in launch:
    hdr += f"; @launch kernel={n} grid=({g},1,1) block=({b},1,1) lds={l}\n"
hdr += '.amdgcn_target "amdgcn-amd-amdhsa--gfx950"\n'
k1.gen_k1(a, "proj_kernel")
k2.gen_k2(a, "attn_kernel")
k3.gen_k3(a, "outp_kernel")
out = sys.argv[1] if len(sys.argv) > 1 else 'gated_mix__grouped_kv_mqa__geglu_ffn__prompt.s'
open(out, 'w').write(hdr + a.text())
```

```python
class Asm:
    def __init__(self):
        self.lines = []
    def __call__(self, s=""):
        for l in s.split("\n"):
            l = l.strip()
            if not l:
                continue
            if l.endswith(":") or l.startswith("."):
                self.lines.append(l)
            else:
                self.lines.append("    " + l)
    def c(self, s):
        self.lines.append("    ; " + s)
    def text(self):
        return "\n".join(self.lines) + "\n"

def vr(b, n):
    return f"v[{b}:{b+n-1}]" if n > 1 else f"v{b}"
def sr(b, n):
    return f"s[{b}:{b+n-1}]" if n > 1 else f"s{b}"

import struct
def f32(x):
    return "0x%08x" % struct.unpack("<I", struct.pack("<f", x))[0]

WS_Q    = 0x0000000
WS_KV   = 0x0300000
WS_KMAX = 0x0340000
WS_G    = 0x0341000
WS_H    = 0x0400000
WS_O    = 0x0C00000
WS_B    = 0x1000000
WS_SIZE = 0x2000000

def srd(a, d, lo, hi, size):
    a(f"s_mov_b32 s{d}, s{lo}")
    a(f"s_and_b32 s{d+1}, s{hi}, 0xffff")
    if isinstance(size, int):
        a(f"s_mov_b32 s{d+2}, {size}")
    else:
        a(f"s_mov_b32 s{d+2}, {size}")
    a(f"s_mov_b32 s{d+3}, 0x20000")

def kernel_head(a, name):
    a(".text")
    a(f".globl {name}")
    a(".p2align 8")
    a(f".type {name},@function")
    a(f"{name}:")

def kernel_desc(a, name, nv, ns, acc=None):
    acc = acc if acc is not None else ((nv + 3) // 4) * 4
    a('.section .rodata,"a"')
    a(".p2align 6")
    a(f".amdhsa_kernel {name}")
    a.lines.append(f"  .amdhsa_next_free_vgpr {nv}")
    a.lines.append(f"  .amdhsa_next_free_sgpr {ns}")
    a.lines.append(f"  .amdhsa_accum_offset {acc}")
    a.lines.append("  .amdhsa_group_segment_fixed_size 0")
    a.lines.append("  .amdhsa_kernarg_size 104")
    a.lines.append("  .amdhsa_user_sgpr_count 2")
    a.lines.append("  .amdhsa_user_sgpr_kernarg_segment_ptr 1")
    a.lines.append("  .amdhsa_system_sgpr_workgroup_id_x 1")
    a(".end_amdhsa_kernel")

import os
STAMP = os.environ.get("STAMP", "0") == "1"
def stamp(a, i):
    if STAMP:
        a(f"s_memtime s[{84+2*i}:{85+2*i}]")
def stamp_out(a, n, label):
    if not STAMP: return
    a("s_mov_b64 exec, -1")
    a(f"s_memtime s[{84+2*n}:{85+2*n}]")
    a("s_load_dwordx2 s[80:81], s[0:1], 96")
    a("v_lshrrev_b32 v2, 6, v0")
    a("s_nop 0")
    a("v_readfirstlane_b32 s82, v2")
    a("s_waitcnt lgkmcnt(0)")
    a("s_lshl_b32 s83, s2, 4")
    a("s_add_u32 s83, s83, s82")
    a("s_lshl_b32 s83, s83, 6")
    a(f"s_add_u32 s83, s83, {0x1800000 + label*0x40000}")
    a("v_mov_b32 v2, s83")
    for i in range(n+1):
        a(f"v_mov_b32 v3, s{84+2*i}")
        a(f"global_store_dword v2, v3, s[80:81] offset:{4*i}")
```

```python
from common import *
import math
LOG2E = 1.4426950408889634
QSCALE = LOG2E / math.sqrt(20.0)
STG = 26624
NSLOT = 6
K1_LDS = STG * NSLOT
K1_BLOCK = 704

def dpp_max32(a, v):
    for sh in (1, 2, 4, 8):
        a("s_nop 1")
        a(f"v_max_f32_dpp v{v}, v{v}, v{v} row_shr:{sh} row_mask:0xf bank_mask:0xf")
    a("s_nop 1")
    a(f"v_max_f32_dpp v{v}, v{v}, v{v} row_bcast:15 row_mask:0xa bank_mask:0xf")

def gen_k1(a, name):
    kernel_head(a, name)
    L = name
    a(f"""
    s_cmp_ge_u32 s2, 256
    s_cbranch_scc1 {L}_end
    s_load_dwordx8 s[4:11], s[0:1], 0
    s_load_dwordx4 s[12:15], s[0:1], 48
    s_load_dwordx2 s[18:19], s[0:1], 96
    """)
    stamp(a, 0)
    a(f"""
    v_lshrrev_b32 v2, 6, v0
    v_and_b32 v1, 63, v0
    v_readfirstlane_b32 s22, v2
    s_and_b32 s47, s2, 7
    s_lshr_b32 s51, s2, 3
    s_and_b32 s20, s47, 1
    s_lshl_b32 s20, s20, 2
    s_and_b32 s67, s51, 3
    s_add_u32 s20, s20, s67
    s_lshr_b32 s21, s47, 1
    s_lshl_b32 s21, s21, 3
    s_lshr_b32 s68, s51, 2
    s_add_u32 s21, s21, s68
    s_sub_i32 s23, s21, 27
    s_and_b32 s65, s23, 1
    s_movk_i32 s62, 3456
    s_mov_b32 s61, 2211840
    s_lshl_b32 s59, s21, 7
    s_lshl_b32 s60, s23, 8
    s_cmp_ge_i32 s23, 0
    s_cselect_b32 s65, s65, 0
    s_cselect_b32 s62, 1280, s62
    s_cselect_b32 s61, 819200, s61
    s_cselect_b32 s59, s60, s59
    s_cselect_b32 s60, 128, 0
    s_cmp_lt_u32 s22, 8
    s_cbranch_scc1 {L}_comp
    s_cmp_eq_u32 s22, 10
    s_cbranch_scc1 {L}_touch
    """)
    a.c("s20=rg s21=cg s22=wave s23=qg s65=flip s62=W stride s61=W size s59=W col byte off (G), s60=extra col off for U")
    a.c("s67 = rg within half, s68 = cg within quarter")
    a(f"""
    s_and_b32 s63, s22, 1
    v_lshrrev_b32 v10, 2, v1
    v_lshrrev_b32 v11, 4, v1
    v_and_b32 v12, 3, v1
    v_xor_b32 v12, v12, v11
    s_movk_i32 s54, 1280
    v_mul_u32_u24 v10, s54, v10
    v_lshl_add_u32 v10, v12, 4, v10
    s_lshl_b32 s52, s20, 3
    s_lshl_b32 s53, s63, 2
    s_add_u32 s52, s52, s53
    """)
    for i in range(8):
        a(f"""
        s_add_u32 s53, s52, {i>>1}
        s_xor_b32 s53, s53, s65
        s_mul_i32 s53, s53, 40960
        s_add_u32 s53, s53, {(i&1)*20480 - 1024*(i&3) + 4096}
        v_add_u32 v{2+i}, s53, v10
        """)
    a(f"""
    v_lshrrev_b32 v13, 3, v1
    v_mul_lo_u32 v13, v13, s62
    v_and_b32 v14, 7, v1
    v_bfe_u32 v15, v1, 4, 1
    v_lshlrev_b32 v15, 2, v15
    v_xor_b32 v14, v14, v15
    v_lshl_add_u32 v13, v14, 4, v13
    s_mul_i32 s53, s63, s60
    s_add_u32 s53, s53, s59
    s_add_u32 s53, s53, 4096
    s_lshl_b32 s40, s62, 3
    s_sub_u32 s40, s40, 1024
    v_add_u32 v10, s53, v13
    v_add_u32 v11, s40, v10
    v_add_u32 v12, s40, v11
    v_add_u32 v13, s40, v12
    v_lshlrev_b32 v14, 4, v1
    s_lshl_b32 s40, s62, 5
    s_lshl_b32 s48, s63, 13
    s_lshl_b32 s49, s63, 12
    s_add_u32 s49, s49, 16384
    s_mov_b32 s44, 0
    s_mov_b32 s46, 0
    s_waitcnt lgkmcnt(0)
    """)
    a.c("voffsets carry +4096 so that they stay non negative; the SRD bases carry -4096")
    a(f"""
    s_sub_u32 s24, s4, 4096
    s_subb_u32 s25, s5, 0
    s_and_b32 s25, s25, 0xffff
    s_mov_b32 s26, {2621440+4096}
    s_mov_b32 s27, 0x20000
    s_cmp_eq_u32 s63, 1
    s_cselect_b32 s56, s14, s12
    s_cselect_b32 s57, s15, s13
    s_cmp_ge_i32 s23, 0
    s_cselect_b32 s28, s6, s56
    s_cselect_b32 s29, s7, s57
    s_sub_u32 s28, s28, 4096
    s_subb_u32 s29, s29, 0
    s_and_b32 s29, s29, 0xffff
    s_add_u32 s30, s61, 4096
    s_mov_b32 s31, 0x20000
    s_mov_b32 s41, 0
    s_mov_b32 s42, 0
    s_cmp_ge_i32 s23, 2
    s_cselect_b32 s32, s10, s8
    s_cselect_b32 s33, s11, s9
    s_and_b32 s33, s33, 0xffff
    s_cmp_lt_u32 s23, 4
    s_cselect_b32 s34, 25600, 0
    s_mov_b32 s35, 0x20000
    s_lshl_b32 s43, s63, 10
    s_add_u32 s50, s43, 24576
    s_mov_b32 s47, 0
    s_mov_b32 s58, 2
    """)
    EXP = os.environ.get("EXP", "")
    if EXP == "null":
        a("s_mov_b32 s26, 0")
        a("s_mov_b32 s30, 0")
    if EXP == "same":
        for i in range(12):
            a(f"v_lshlrev_b32 v{2+i}, 4, v1")
            a(f"v_add_u32 v{2+i}, {4096 + (i//4)*4096}, v{2+i}")
        a("s_movk_i32 s40, 12288")

    D = 13
    a(f"""
    {L}_ld_issue:
    s_add_u32 m0, s44, s48
    s_add_u32 s46, s46, 1
    buffer_load_dwordx4 v2, s[24:27], s41 offen lds
    buffer_load_dwordx4 v3, s[24:27], s41 offen offset:1024 lds
    buffer_load_dwordx4 v4, s[24:27], s41 offen offset:2048 lds
    buffer_load_dwordx4 v5, s[24:27], s41 offen offset:3072 lds
    s_add_u32 m0, m0, 4096
    s_nop 0
    buffer_load_dwordx4 v6, s[24:27], s41 offen lds
    buffer_load_dwordx4 v7, s[24:27], s41 offen offset:1024 lds
    buffer_load_dwordx4 v8, s[24:27], s41 offen offset:2048 lds
    buffer_load_dwordx4 v9, s[24:27], s41 offen offset:3072 lds
    s_add_u32 m0, s44, s49
    s_add_u32 s41, s41, {12288 if EXP == 'same' else 64}
    buffer_load_dwordx4 v10, s[28:31], s42 offen lds
    buffer_load_dwordx4 v11, s[28:31], s42 offen offset:1024 lds
    buffer_load_dwordx4 v12, s[28:31], s42 offen offset:2048 lds
    buffer_load_dwordx4 v13, s[28:31], s42 offen offset:3072 lds
    s_add_u32 m0, s44, s50
    s_add_u32 s42, s42, s40
    buffer_load_dwordx4 v14, s[32:35], s43 offen lds
    s_add_u32 s43, s43, 1280
    s_add_u32 s44, s44, {STG}
    s_cmp_ge_u32 s44, {STG*NSLOT}
    s_cselect_b32 s44, 0, s44
    s_cmp_lt_u32 s46, s58
    s_cbranch_scc1 {L}_ld_issue
    s_cmp_ge_u32 s47, 3
    s_cbranch_scc1 {L}_ld_w3
    s_cmp_eq_u32 s47, 2
    s_cbranch_scc1 {L}_ld_w2
    s_waitcnt vmcnt({D})
    {L}_ld_w2:
    s_waitcnt vmcnt({2*D})
    {L}_ld_w3:
    s_waitcnt vmcnt({3*D})
    s_barrier
    s_lshl_b32 s58, s47, 1
    s_add_u32 s58, s58, 3
    s_add_u32 s52, s47, 5
    s_min_u32 s58, s58, s52
    s_add_u32 s47, s47, 1
    s_cmp_le_u32 s58, 20
    s_cbranch_scc1 {L}_ld_issue
    """)
    for n in (2, 1, 0):
        a(f"s_waitcnt vmcnt({n*D})")
        a("s_barrier")
    a("s_barrier")
    a(f"""
    {L}_ldtail:
    s_cmp_eq_u32 s63, 1
    s_cbranch_scc1 {L}_gate
    s_load_dwordx2 s[4:5], s[0:1], 32
    s_load_dwordx2 s[6:7], s[0:1], 64
    s_lshl_b32 s52, s2, 6
    v_add_u32 v2, s52, v1
    v_lshlrev_b32 v2, 7, v2
    s_waitcnt lgkmcnt(0)
    """)
    srd(a, 24, 4, 5, 819200)
    srd(a, 28, 6, 7, 2211840)
    a(f"""
    buffer_load_dword v3, v2, s[24:27], 0 offen
    buffer_load_dword v4, v2, s[28:31], 0 offen
    s_mov_b32 s52, {16384*128}
    buffer_load_dword v5, v2, s[28:31], s52 offen
    s_branch {L}_fin
    {L}_gate:
    s_load_dwordx2 s[16:17], s[0:1], 72
    v_and_b32 v16, 7, v1
    v_lshlrev_b32 v16, 4, v16
    v_lshrrev_b32 v17, 3, v1
    s_lshl_b32 s53, s20, 8
    s_lshl_b32 s54, s21, 3
    s_add_u32 s53, s53, s54
    v_add_u32 v18, s53, v17
    s_movk_i32 s54, 1280
    v_mul_lo_u32 v17, v18, s54
    v_add_u32 v17, v17, v16
    v_add_u32 v17, 4096, v17
    """)
    for j in range(10):
        a(f"buffer_load_dwordx4 {vr(64+4*j,4)}, v17, s[24:27], 0 offen offset:{128*j}")
    a("s_waitcnt lgkmcnt(0)")
    srd(a, 68, 16, 17, 1280)
    srd(a, 36, 18, 19, WS_SIZE)
    for j in range(10):
        a(f"buffer_load_dwordx4 {vr(24+4*j,4)}, v16, s[68:71], 0 offen offset:{128*j}")
    a(f"""
    v_lshlrev_b32 v19, 2, v18
    v_mov_b32 v21, {f32(-LOG2E)}
    v_mov_b32 v20, 0
    v_mov_b32 v22, 0
    s_waitcnt vmcnt(0)
    """)
    for i in range(0, 40, 2):
        a(f"v_dot2_f32_bf16 v20, v{64+i}, v{24+i}, v20")
        a(f"v_dot2_f32_bf16 v22, v{65+i}, v{25+i}, v22")
    a(f"""
    s_nop 3
    v_add_f32 v20, v20, v22
    s_nop 1
    v_add_f32_dpp v20, v20, v20 quad_perm:[1,0,3,2] row_mask:0xf bank_mask:0xf
    s_nop 1
    v_add_f32_dpp v20, v20, v20 quad_perm:[2,3,0,1] row_mask:0xf bank_mask:0xf
    s_nop 1
    v_add_f32_dpp v20, v20, v20 row_half_mirror row_mask:0xf bank_mask:0xf
    v_cvt_pk_bf16_f32 v20, v20, v20
    v_lshlrev_b32 v20, 16, v20
    v_mul_f32 v20, v21, v20
    v_exp_f32 v20, v20
    s_nop 0
    v_add_f32 v20, 1.0, v20
    v_rcp_f32 v20, v20
    s_nop 0
    v_cvt_pk_bf16_f32 v20, v20, v20
    v_lshlrev_b32 v22, 16, v20
    s_mov_b32 s53, {WS_G}
    buffer_store_dword v22, v19, s[36:39], s53 offen
    s_branch {L}_fin
    """)

    T0 = int(os.environ.get("T0", "2"))
    a(f"""
    {L}_touch:
    v_lshrrev_b32 v2, 1, v1
    v_lshlrev_b32 v2, 2, v2
    s_add_u32 s52, s67, {T0*32}
    v_add_u32 v2, s52, v2
    v_mul_lo_u32 v2, v2, s62
    v_add_u32 v2, s59, v2
    v_and_b32 v3, 1, v1
    v_mul_u32_u24 v4, s60, v3
    v_add_u32 v2, v2, v4
    s_lshl_b32 s52, s20, 8
    s_lshl_b32 s53, s68, 5
    s_add_u32 s52, s52, s53
    s_sub_u32 s52, s52, 16
    v_add_u32 v5, s52, v1
    s_movk_i32 s53, 1280
    v_mul_lo_u32 v5, v5, s53
    v_add_u32 v5, {T0*64}, v5
    s_lshl_b32 s40, s62, 5
    v_cmp_gt_u32 s[54:55], 16, v1
    v_cmp_eq_u32 s[56:57], 1, v3
    v_mov_b32 v6, s40
    s_waitcnt lgkmcnt(0)
    s_cmp_ge_i32 s23, 0
    s_cselect_b32 s24, s6, s12
    s_cselect_b32 s25, s7, s13
    s_cselect_b32 s28, s6, s14
    s_cselect_b32 s29, s7, s15
    v_cndmask_b32 v2, v5, v2, s[54:55]
    v_cndmask_b32 v6, 64, v6, s[54:55]
    v_mov_b32 v8, s24
    v_mov_b32 v9, s25
    v_mov_b32 v10, s28
    v_mov_b32 v11, s29
    v_cndmask_b32 v8, v8, v10, s[56:57]
    v_cndmask_b32 v9, v9, v11, s[56:57]
    v_mov_b32 v10, s4
    v_mov_b32 v11, s5
    v_cndmask_b32 v8, v10, v8, s[54:55]
    v_cndmask_b32 v9, v11, v9, s[54:55]
    v_add_co_u32 v8, vcc, v8, v2
    s_nop 1
    v_addc_co_u32 v9, vcc, 0, v9, vcc
    s_mov_b32 exec_hi, 0xffff
    s_mov_b32 s46, {T0}
    s_sleep {int(os.environ.get("TSLEEP","0"))}
    {L}_t_loop:
    global_load_dword v12, v[8:9], off
    v_add_co_u32 v8, vcc, v8, v6
    s_add_u32 s46, s46, 1
    s_cmp_lt_u32 s46, 20
    v_addc_co_u32 v9, vcc, 0, v9, vcc
    s_cbranch_scc1 {L}_t_loop
    s_endpgm
    """)

    a(f"{L}_comp:")
    a(f"""
    s_and_b32 s63, s22, 3
    s_lshr_b32 s64, s22, 2
    s_waitcnt lgkmcnt(0)
    """)
    srd(a, 36, 18, 19, WS_SIZE)
    a(f"""
    v_and_b32 v13, 31, v1
    v_lshrrev_b32 v14, 5, v1
    v_bfe_u32 v15, v1, 2, 2
    v_xor_b32 v5, v14, v15
    v_xor_b32 v6, 2, v5
    v_lshlrev_b32 v5, 4, v5
    v_lshlrev_b32 v6, 4, v6
    v_lshl_add_u32 v5, v13, 6, v5
    v_lshl_add_u32 v6, v13, 6, v6
    s_lshl_b32 s52, s63, 12
    v_add_u32 v5, s52, v5
    v_add_u32 v6, s52, v6
    v_lshlrev_b32 v7, 3, v14
    v_add_u32 v7, v7, v15
    v_mul_u32_u24 v8, 40, v7
    v_lshlrev_b32 v7, 7, v7
    v_lshrrev_b32 v16, 1, v15
    v_xor_b32 v16, s64, v16
    v_lshl_add_u32 v7, v16, 6, v7
    v_bfe_u32 v16, v1, 4, 1
    v_and_b32 v17, 3, v1
    v_lshlrev_b32 v16, 5, v16
    v_lshl_add_u32 v16, v17, 3, v16
    v_add_u32 v7, v7, v16
    v_add_u32 v8, v8, v16
    v_add_u32 v7, 16384, v7
    v_add_u32 v8, 24576, v8
    s_mov_b32 s45, 0
    s_mov_b32 s46, 0
    s_mov_b32 s66, 0
    """)
    a.c("v5/v6 x frag addr (ks0/ks1), v7 W frag addr, v8 S frag addr; s63=rp s64=cp")
    for r in range(64, 144):
        a(f"v_mov_b32 v{r}, 0")
    a(f"""
    s_cmp_ge_u32 s23, 4
    s_cbranch_scc1 {L}_plain
    s_cmp_ge_u32 s22, 4
    s_cbranch_scc1 {L}_plain
    s_cmp_ge_i32 s23, 2
    s_cbranch_scc1 {L}_modeV
    s_branch {L}_modeK
    """)
    XA = [16, 36]
    def addrs(extra):
        a("v_add_u32 v9, s45, v5")
        a("v_add_u32 v10, s45, v6")
        a("v_add_u32 v11, s45, v7")
        if extra:
            a("v_add_u32 v12, s45, v8")
        a(f"""
        s_add_u32 s45, s45, {STG}
        s_cmp_ge_u32 s45, {STG*NSLOT}
        s_cselect_b32 s45, 0, s45
        """)
    def read_list(ks, extra):
        b = XA[ks]
        xa = 9 + ks
        l = [f"ds_read_b128 {vr(b,4)}, v{xa}",
             f"ds_read_b64_tr_b16 {vr(b+8,2)}, v11 offset:{ks*2048}",
             f"ds_read_b64_tr_b16 {vr(b+10,2)}, v11 offset:{ks*2048+512}",
             f"ds_read_b64_tr_b16 {vr(b+12,2)}, v11 offset:{4096+ks*2048}",
             f"ds_read_b64_tr_b16 {vr(b+14,2)}, v11 offset:{4096+ks*2048+512}",
             f"ds_read_b128 {vr(b+4,4)}, v{xa} offset:2048"]
        if extra:
            l += [f"ds_read_b64_tr_b16 {vr(b+16,2)}, v12 offset:{ks*640}",
                  f"ds_read_b64_tr_b16 {vr(b+18,2)}, v12 offset:{ks*640+160}"]
        return l
    def mfma_list(ks, mode):
        b = XA[ks]
        x0, x1, wg, wu, ws = vr(b,4), vr(b+4,4), vr(b+8,4), vr(b+12,4), vr(b+16,4)
        M = "v_mfma_f32_32x32x16_bf16"
        l = [f"{M} v[64:79], {wg}, {x0}, v[64:79]",
             f"{M} v[80:95], {wu}, {x0}, v[80:95]",
             f"{M} v[96:111], {wg}, {x1}, v[96:111]",
             f"{M} v[112:127], {wu}, {x1}, v[112:127]"]
        if mode == 1:
            l.append(f"{M} v[128:143], {ws}, {x0}, v[128:143]")
        if mode == 2:
            l.append(f"{M} v[128:143], {x0}, {ws}, v[128:143]")
        return l
    for mode, tag in ((0, "plain"), (1, "modeK"), (2, "modeV")):
        ex = mode != 0
        a(f"{L}_{tag}:")
        if ex:
            a(f"s_mov_b32 s66, {mode}")
        addrs(ex)
        a("s_barrier")
        for x in read_list(0, ex): a(x)
        stamp(a, 1)
        a(f".p2align 6")
        a(f"{L}_{tag}_loop:")
        rl = read_list(1, ex)
        for x in rl: a(x)
        a(f"s_waitcnt lgkmcnt({len(rl)})")
        for x in mfma_list(0, mode): a(x)
        addrs(ex)
        a("s_barrier")
        rl = read_list(0, ex)
        for x in rl: a(x)
        a(f"s_waitcnt lgkmcnt({len(rl)})")
        for x in mfma_list(1, mode): a(x)
        a(f"""
        s_add_u32 s46, s46, 1
        s_cmp_lt_u32 s46, 20
        s_cbranch_scc1 {L}_{tag}_loop
        """)
        if mode != 2 or True:
            a(f"s_branch {L}_epi")

    a(f"{L}_epi:")
    stamp(a, 2)
    a(f"""
    s_lshl_b32 s52, s20, 3
    s_lshl_b32 s53, s63, 1
    s_add_u32 s52, s52, s53
    s_add_u32 s52, s52, s65
    s_nop 7
    s_cmp_ge_i32 s23, 0
    s_cbranch_scc1 {L}_epiq
    """)
    a.c("s52 = global row block of acc set 0 (set 1 is s52 ^ 1)")
    C0 = -2.0 * 0.7978845608028654 * LOG2E
    C1 = C0 * 0.044715
    a(f"""
    s_waitcnt vmcnt(0) lgkmcnt(0)
    v_mov_b32 v16, {f32(C0)}
    v_mov_b32 v17, {f32(C1)}
    v_lshlrev_b32 v18, 4, v1
    s_mul_i32 s53, s52, {108*1024}
    s_lshl_b32 s54, s21, 12
    s_lshl_b32 s55, s64, 11
    s_add_u32 s53, s53, s54
    s_add_u32 s53, s53, s55
    s_add_u32 s53, s53, {WS_H}
    s_add_u32 s54, s53, {108*1024}
    """)
    for j in range(2):
        G, U = 64 + 32*j, 80 + 32*j
        for half in range(2):
            T = 20
            rs = list(range(8*half, 8*half+8))
            for i, r in enumerate(rs): a(f"v_mul_f32 v{T+i}, v{G+r}, v{G+r}")
            for i, r in enumerate(rs): a(f"v_fma_f32 v{T+i}, v{T+i}, v17, v16")
            for i, r in enumerate(rs): a(f"v_mul_f32 v{T+i}, v{G+r}, v{T+i}")
            for i, r in enumerate(rs): a(f"v_exp_f32 v{T+i}, v{T+i}")
            for i, r in enumerate(rs): a(f"v_mul_f32 v{U+r}, v{G+r}, v{U+r}")
            for i, r in enumerate(rs): a(f"v_add_f32 v{T+i}, 1.0, v{T+i}")
            for i, r in enumerate(rs): a(f"v_rcp_f32 v{T+i}, v{T+i}")
            a("s_nop 0")
            for i, r in enumerate(rs): a(f"v_mul_f32 v{T+i}, v{U+r}, v{T+i}")
            O = 28 + 4*(2*j+half)
            for i in range(4): a(f"v_cvt_pk_bf16_f32 v{O+i}, v{T+2*i}, v{T+2*i+1}")
            a(f"buffer_store_dwordx4 {vr(O,4)}, v18, s[36:39], s{53+j} offen offset:{1024*half}")
    a(f"s_branch {L}_fin")

    a(f"{L}_epiq:")
    a(f"""
    s_waitcnt vmcnt(0) lgkmcnt(0)
    v_mov_b32 v20, {f32(QSCALE)}
    v_and_b32 v21, 31, v1
    v_lshrrev_b32 v22, 5, v1
    s_lshl_b32 s53, s23, 7
    s_lshl_b32 s54, s64, 5
    s_add_u32 s53, s53, s54
    v_lshl_add_u32 v22, v22, 2, s53
    v_lshlrev_b32 v23, 4, v21
    v_lshlrev_b32 v24, 3, v21
    v_add_u32 v24, 1024, v24
    s_mul_i32 s54, s52, 40960
    s_add_u32 s54, s54, {WS_Q}
    s_xor_b32 s55, s52, 1
    s_mul_i32 s55, s55, 40960
    s_add_u32 s55, s55, {WS_Q}
    s_movk_i32 s56, 3277
    s_movk_i32 s57, 1280
    """)
    for T in range(2):
        for q in range(4):
            a(f"""
            v_add_u32 v25, {64*T+8*q}, v22
            v_mul_u32_u24 v26, s56, v25
            v_lshrrev_b32 v26, 16, v26
            v_mul_u32_u24 v27, 20, v26
            v_sub_u32 v27, v25, v27
            v_bfe_u32 v28, v27, 2, 1
            v_lshl_add_u32 v28, v28, 9, v23
            v_and_b32 v29, 8, v27
            v_add_u32 v28, v28, v29
            v_cmp_eq_u32 vcc, 16, v27
            s_nop 1
            v_cndmask_b32 v28, v28, v24, vcc
            v_mad_u32_u24 v28, v26, s57, v28
            """)
            for j in range(2):
                A = 64 + 32*j + 16*T + 4*q
                for i in range(4): a(f"v_mul_f32 v{A+i}, v20, v{A+i}")
                a(f"v_cvt_pk_bf16_f32 v{30+2*j}, v{A}, v{A+1}")
                a(f"v_cvt_pk_bf16_f32 v{31+2*j}, v{A+2}, v{A+3}")
                a(f"buffer_store_dwordx2 {vr(30+2*j,2)}, v28, s[36:39], s{54+j} offen")
            a("s_nop 0")
    a(f"""
    s_cmp_eq_u32 s66, 2
    s_cbranch_scc1 {L}_epiv
    s_cmp_lg_u32 s66, 1
    s_cbranch_scc1 {L}_fin
    """)
    E = 128
    a(f"""
    s_mul_i32 s53, s52, 3072
    s_add_u32 s53, s53, {WS_KV}
    v_lshlrev_b32 v16, 4, v1
    """)
    for i in range(4): a(f"v_cvt_pk_bf16_f32 v{20+i}, v{E+2*i}, v{E+2*i+1}")
    a(f"buffer_store_dwordx4 v[20:23], v16, s[36:39], s53 offen")
    a(f"v_cvt_pk_bf16_f32 v24, v{E+8}, v{E+9}")
    a(f"v_cvt_pk_bf16_f32 v25, v{E+10}, v{E+11}")
    a("v_mov_b32 v26, 0x3f803f80")
    a("v_mov_b32 v27, 0x00003f80")
    a(f"v_mul_f32 v30, v{E}, v{E}")
    for i in range(1, 8): a(f"v_fmac_f32 v30, v{E+i}, v{E+i}")
    a(f"v_mul_f32 v31, v{E+8}, v{E+8}")
    for i in range(9, 12): a(f"v_fmac_f32 v31, v{E+i}, v{E+i}")
    a(f"""
    v_cmp_gt_u32 vcc, 32, v1
    s_nop 1
    v_cndmask_b32 v31, 0, v31, vcc
    v_add_f32 v30, v30, v31
    v_mov_b32 v31, v30
    s_nop 1
    v_permlane32_swap_b32 v30, v31
    s_nop 1
    v_add_f32 v30, v30, v31
    """)
    dpp_max32(a, 30)
    a(f"""
    s_lshl_b32 s54, s52, 2
    s_add_u32 s54, s54, {WS_KMAX}
    v_mov_b32 v17, 0
    s_mov_b32 exec_hi, 0
    buffer_store_dwordx4 v[24:27], v16, s[36:39], s53 offen offset:1024
    s_mov_b32 exec_lo, 0x80000000
    buffer_store_dword v30, v17, s[36:39], s54 offen
    s_branch {L}_fin
    """)
    a(f"{L}_epiv:")
    a(f"""
    s_mul_i32 s53, s52, 3072
    s_add_u32 s53, s53, {WS_KV+1536}
    v_and_b32 v17, 31, v1
    v_lshrrev_b32 v18, 5, v1
    v_mul_u32_u24 v18, 384, v18
    v_lshl_add_u32 v16, v17, 4, v18
    v_mov_b32 v19, 0x3f803f80
    v_cmp_eq_u32 vcc, 20, v17
    """)
    for i in range(8): a(f"v_cvt_pk_bf16_f32 v{20+i}, v{E+2*i}, v{E+2*i+1}")
    for i in range(8): a(f"v_cndmask_b32 v{20+i}, v{20+i}, v19, vcc")
    a(f"""
    v_cmp_gt_u32 vcc, 24, v17
    s_nop 1
    s_and_b64 exec, exec, vcc
    buffer_store_dwordx4 v[20:23], v16, s[36:39], s53 offen
    buffer_store_dwordx4 v[24:27], v16, s[36:39], s53 offen offset:768
    """)
    a(f"{L}_fin:")
    stamp_out(a, 3, 0)
    a(f"{L}_end:")
    a("s_endpgm")
    kernel_desc(a, name, 144, 100)
```

```python
from common import *
CH = 12288
KV_LDS = 3 * CH
M = "v_mfma_f32_32x32x16_bf16"

QA1, QA2, QB1, QB2 = 12, 16, 20, 24
KVB = [28, 44]
SA, SB, OA, OB, PA, PB = 64, 80, 96, 112, 128, 136

def split3(a, m, d0, d1, t0, t1):
    a(f"""
    v_and_b32 v{t0}, 0xffff0000, v{m}
    v_sub_f32 v{t1}, v{m}, v{t0}
    v_lshrrev_b32 v{d0}, 16, v{t0}
    v_and_b32 v{t0}, 0xffff0000, v{t1}
    v_or_b32 v{d0}, v{d0}, v{t0}
    v_sub_f32 v{t1}, v{t1}, v{t0}
    v_lshrrev_b32 v{d1}, 16, v{t1}
    v_xor_b32 v{d0}, 0x80008000, v{d0}
    v_xor_b32 v{d1}, 0x8000, v{d1}
    """)

def exp_groups(S, P):
    e = lambda i: f"v_exp_f32 v{S+i}, v{S+i}"
    c = lambda j: f"v_cvt_pk_bf16_f32 v{P+j}, v{S+2*j}, v{S+2*j+1}"
    return [[e(0), e(1), e(2), e(3), c(0)],
            [e(4), e(5), c(1), e(6), e(7), c(2)],
            [e(8), e(9), c(3), e(10), e(11), c(4)],
            [e(12), e(13), c(5), e(14), e(15), c(6), c(7)]]

def slot(a, S, P, mf, pre=(), rd=None):
    g = exp_groups(S, P)
    for p in pre: a(p)
    for i in range(4):
        a(mf[i])
        if rd: a(rd[i])
        for x in g[i]: a(x)

def qk(Sd, kb, q1, q2):
    return [f"{M} {vr(Sd,16)}, {vr(kb,4)}, {vr(q1,4)}, 0",
            f"{M} {vr(Sd,16)}, {vr(kb+4,4)}, {vr(q2,4)}, {vr(Sd,16)}"]
def pv(O, kb, P):
    return [f"{M} {vr(O,16)}, {vr(kb+8,4)}, {vr(P,4)}, {vr(O,16)}",
            f"{M} {vr(O,16)}, {vr(kb+12,4)}, {vr(P+4,4)}, {vr(O,16)}"]

def kv_dma_all(a):
    for w in range(4):
        a(f"""
        s_add_u32 m0, s21, {3072*w}
        s_add_u32 s31, s20, {3072*w}
        buffer_load_dwordx4 v2, s[12:15], s31 offen lds
        buffer_load_dwordx4 v2, s[12:15], s31 offen offset:1024 lds
        buffer_load_dwordx4 v2, s[12:15], s31 offen offset:2048 lds
        """)
    a(f"""
    s_add_u32 s20, s20, {CH}
    s_add_u32 s21, s21, {CH}
    s_cmp_ge_u32 s21, {3*CH}
    s_cselect_b32 s21, 0, s21
    """)

def kv_dma(a):
    return
    a(f"""
    s_add_u32 m0, s21, s24
    s_nop 0
    buffer_load_dwordx4 v2, s[12:15], s20 offen lds
    buffer_load_dwordx4 v2, s[12:15], s20 offen offset:1024 lds
    buffer_load_dwordx4 v2, s[12:15], s20 offen offset:2048 lds
    s_add_u32 s20, s20, {CH}
    s_add_u32 s21, s21, {CH}
    s_cmp_ge_u32 s21, {3*CH}
    s_cselect_b32 s21, 0, s21
    """)

def gen_k2(a, name):
    kernel_head(a, name)
    L = name
    a(f"""
    s_cmp_ge_u32 s2, 256
    s_cbranch_scc1 {L}_end
    s_load_dwordx2 s[4:5], s[0:1], 96
    """)
    stamp(a, 0)
    a(f"""
    v_lshrrev_b32 v2, 6, v0
    v_and_b32 v1, 63, v0
    v_readfirstlane_b32 s16, v2
    s_lshr_b32 s17, s2, 2
    s_and_b32 s18, s2, 3
    s_lshl_b32 s18, s18, 3
    """)
    a.c("s16=wave s17=rb s18=first head of WG")
    a(f"""
    v_lshlrev_b32 v2, 4, v1
    v_and_b32 v9, 31, v1
    v_lshrrev_b32 v10, 5, v1
    v_mov_b32 v3, v2
    v_lshlrev_b32 v4, 4, v9
    v_add_u32 v4, 1024, v4
    v_subrev_u32 v11, 4, v9
    v_cmp_lt_u32 vcc, 23, v9
    s_nop 1
    v_cndmask_b32 v5, v9, v11, vcc
    v_subrev_u32 v11, 12, v9
    v_cmp_lt_u32 vcc, 27, v9
    s_nop 1
    v_cndmask_b32 v5, v5, v11, vcc
    v_mul_u32_u24 v11, 384, v10
    v_lshl_add_u32 v5, v5, 4, v11
    v_add_u32 v5, 1536, v5
    s_lshl_b32 s19, s16, 1
    s_add_u32 s18, s18, s19
    s_mul_i32 s22, s17, 40960
    s_mul_i32 s23, s18, 1280
    s_add_u32 s22, s22, s23
    s_add_u32 s22, s22, {WS_Q}
    s_mul_i32 s24, s16, 3072
    s_add_u32 s20, s24, {WS_KV}
    s_mov_b32 s21, 0
    v_lshlrev_b32 v6, 3, v9
    v_lshlrev_b32 v7, 2, v1
    s_mov_b32 s25, {WS_KMAX}
    s_waitcnt lgkmcnt(0)
    """)
    a.c("s18 = head of q-block a; s22 = Q image offset; s24 = wave part of chunk; s20 = dma src; s21 = dma slot")
    srd(a, 8, 4, 5, WS_SIZE)
    srd(a, 12, 4, 5, WS_KV + 64*3072)
    a(f"""
    s_cmp_lg_u32 s16, 4
    s_cbranch_scc1 {L}_awave
    s_mov_b32 s20, {WS_KV}
    """)
    kv_dma_all(a)
    kv_dma_all(a)
    a(f"""
    s_waitcnt vmcnt(12)
    s_barrier
    s_mov_b32 s30, 0
    {L}_ld:
    s_waitcnt vmcnt(0)
    """)
    if os.environ.get("NOBAR","0") != "1": a("s_barrier")
    kv_dma_all(a)
    a(f"""
    s_add_u32 s30, s30, 1
    s_cmp_lt_u32 s30, 16
    s_cbranch_scc1 {L}_ld
    s_endpgm
    {L}_awave:
    """)
    a(f"""
    buffer_load_dword v144, v7, s[8:11], s25 offen
    buffer_load_dwordx4 {vr(QA1,4)}, v2, s[8:11], s22 offen
    buffer_load_dwordx2 {vr(QA2,2)}, v6, s[8:11], s22 offen offset:1024
    buffer_load_dwordx4 {vr(QB1,4)}, v2, s[8:11], s22 offen offset:1280
    buffer_load_dwordx2 {vr(QB2,2)}, v6, s[8:11], s22 offen offset:2304
    """)
    kv_dma(a)
    kv_dma(a)
    for r in list(range(OA, OA+32)) + list(range(PB, PB+8)) + list(range(KVB[1]+8, KVB[1]+16)):
        a(f"v_mov_b32 v{r}, 0")
    a("s_waitcnt vmcnt(0)")
    for sh in (1, 2, 4, 8):
        a("s_nop 1")
        a(f"v_max_f32_dpp v144, v144, v144 row_shr:{sh} row_mask:0xf bank_mask:0xf")
    a("s_nop 1")
    a("v_max_f32_dpp v144, v144, v144 row_bcast:15 row_mask:0xa bank_mask:0xf")
    a("s_nop 1")
    a("v_max_f32_dpp v144, v144, v144 row_bcast:31 row_mask:0xc bank_mask:0xf")
    a("s_nop 1")
    a("v_readlane_b32 s26, v144, 63")
    a("v_cmp_gt_u32 s[28:29], 32, v1")
    for (q1, q2) in ((QA1, QA2), (QB1, QB2)):
        a(f"""
        v_cndmask_b32 v{q2}, 0, v{q2}, s[28:29]
        v_cndmask_b32 v{q2+1}, 0, v{q2+1}, s[28:29]
        v_mov_b32 v145, 0
        v_dot2_f32_bf16 v145, v{q1}, v{q1}, v145
        v_dot2_f32_bf16 v145, v{q1+1}, v{q1+1}, v145
        v_dot2_f32_bf16 v145, v{q1+2}, v{q1+2}, v145
        v_dot2_f32_bf16 v145, v{q1+3}, v{q1+3}, v145
        v_dot2_f32_bf16 v145, v{q2}, v{q2}, v145
        v_dot2_f32_bf16 v145, v{q2+1}, v{q2+1}, v145
        s_nop 3
        v_mov_b32 v146, v145
        s_nop 1
        v_permlane32_swap_b32 v145, v146
        s_nop 1
        v_add_f32 v145, v145, v146
        v_mul_f32 v145, s26, v145
        v_sqrt_f32 v145, v145
        s_nop 0
        v_mul_f32 v145, {f32(1.02)}, v145
        """)
        split3(a, 145, q2+2, q2+3, 146, 147)
        a(f"""
        v_cndmask_b32 v{q2+2}, 0, v{q2+2}, s[28:29]
        v_cndmask_b32 v{q2+3}, 0, v{q2+3}, s[28:29]
        """)
    a(f"""
    s_barrier
    ds_read_b128 {vr(KVB[0],4)}, v3
    ds_read_b128 {vr(KVB[0]+4,4)}, v4
    ds_read_b128 {vr(KVB[1],4)}, v3 offset:3072
    ds_read_b128 {vr(KVB[1]+4,4)}, v4 offset:3072
    ds_read_b128 {vr(KVB[0]+8,4)}, v5
    ds_read_b128 {vr(KVB[0]+12,4)}, v5 offset:768
    v_mov_b32 v6, v3
    v_mov_b32 v7, v4
    v_mov_b32 v8, v5
    s_mov_b32 s27, {CH}
    s_mov_b32 s30, 0
    s_waitcnt lgkmcnt(4)
    """)
    for x in qk(SA, KVB[0], QA1, QA2): a(x)
    a("s_nop 11")
    stamp(a, 1)
    a(".p2align 6")
    a(f"{L}_loop:")
    for t in range(4):
        cur, nxt = KVB[t & 1], KVB[(t + 1) & 1]
        slot(a, SA, PA, qk(SB, cur, QB1, QB2) + pv(OB, nxt, PB))
        pre = []
        if t == 0:
            a("s_waitcnt lgkmcnt(0)")
            if os.environ.get("NOBAR","0") != "1": a("s_barrier")
            kv_dma(a)
        else:
            pre.append("s_waitcnt lgkmcnt(0)")
        if t == 2:
            pre += ["v_add_u32 v6, s27, v3", "v_add_u32 v7, s27, v4"]
        if t == 3:
            pre += ["v_add_u32 v8, s27, v5",
                    f"s_add_u32 s27, s27, {CH}", f"s_cmp_ge_u32 s27, {3*CH}", "s_cselect_b32 s27, 0, s27"]
        ko = ((t + 2) & 3) * 3072
        vo = ((t + 1) & 3) * 3072
        rd = [f"ds_read_b128 {vr(cur,4)}, v6 offset:{ko}",
                f"ds_read_b128 {vr(cur+4,4)}, v7 offset:{ko}",
                f"ds_read_b128 {vr(nxt+8,4)}, v8 offset:{vo}",
                f"ds_read_b128 {vr(nxt+12,4)}, v8 offset:{vo+768}"]
        slot(a, SB, PB, qk(SA, nxt, QA1, QA2) + pv(OA, cur, PA), pre, rd)
    a(f"""
    s_add_u32 s30, s30, 1
    s_cmp_lt_u32 s30, 16
    s_cbranch_scc1 {L}_loop
    s_nop 1
    """)
    for x in pv(OB, KVB[1], PB): a(x)
    stamp(a, 2)
    a("s_waitcnt vmcnt(0) lgkmcnt(0)")
    a("s_nop 15")
    a(f"""
    v_and_b32 v9, 31, v1
    v_lshrrev_b32 v10, 5, v1
    v_lshlrev_b32 v9, 4, v9
    s_mul_i32 s22, s17, 40960
    s_add_u32 s22, s22, {WS_O}
    s_mul_i32 s23, s18, 20
    v_lshl_add_u32 v10, v10, 2, s23
    """)
    for blk, O in enumerate((OA, OB)):
        a(f"""
        v_mov_b32 v144, v{O+8}
        v_mov_b32 v145, v{O+8}
        s_nop 1
        v_permlane32_swap_b32 v144, v145
        s_nop 1
        v_rcp_f32 v145, v145
        s_nop 0
        """)
        for q in range(3):
            for i in range(4): a(f"v_mul_f32 v{O+4*q+i}, v145, v{O+4*q+i}")
            a(f"""
            v_cvt_pk_bf16_f32 v{146+2*q}, v{O+4*q}, v{O+4*q+1}
            v_cvt_pk_bf16_f32 v{147+2*q}, v{O+4*q+2}, v{O+4*q+3}
            v_add_u32 v152, {20*blk+8*q}, v10
            v_lshrrev_b32 v153, 4, v152
            v_lshl_add_u32 v153, v153, 10, v9
            v_bfe_u32 v154, v152, 2, 1
            v_lshl_add_u32 v153, v154, 9, v153
            v_and_b32 v154, 8, v152
            v_add_u32 v{155+q}, v153, v154
            """)
            if q == 2:
                a("s_mov_b32 exec_hi, 0")
            a(f"buffer_store_dwordx2 {vr(146+2*q,2)}, v{155+q}, s[8:11], s22 offen")
            if q == 2:
                a("s_mov_b64 exec, -1")
        a("s_nop 0")
    stamp_out(a, 3, 1)
    a(f"{L}_end:")
    a("s_endpgm")
    kernel_desc(a, name, 160, 100)
```

```python
from common import *
M = "v_mfma_f32_32x32x16_bf16"
SLOT = 6144
def gen_k3(a, name):
    kernel_head(a, name)
    L = name
    a(f"""
    s_cmp_ge_u32 s2, 256
    s_cbranch_scc1 {L}_end
    s_load_dwordx2 s[4:5], s[0:1], 32
    s_load_dwordx2 s[6:7], s[0:1], 64
    s_load_dwordx2 s[8:9], s[0:1], 80
    s_load_dwordx2 s[10:11], s[0:1], 96
    """)
    stamp(a, 0)
    a(f"""
    v_lshrrev_b32 v2, 6, v0
    v_and_b32 v1, 63, v0
    v_readfirstlane_b32 s16, v2
    s_and_b32 s17, s2, 7
    s_lshl_b32 s17, s17, 3
    s_lshr_b32 s18, s2, 5
    s_add_u32 s17, s17, s18
    s_bfe_u32 s18, s2, 0x20003
    """)
    a.c("s16=wave s17=rb s18=ng")
    a(f"""
    s_mul_i32 s19, s16, 20
    s_sub_u32 s20, s16, 2
    s_mul_i32 s20, s20, 18
    s_mul_i32 s21, s17, 40
    s_mul_i32 s22, s17, 108
    s_cmp_lt_u32 s16, 2
    s_cselect_b32 s19, s19, s20
    s_cselect_b32 s23, 20, 18
    s_cselect_b32 s21, s21, s22
    s_mov_b32 s22, {WS_H}
    s_cselect_b32 s22, {WS_O}, s22
    s_mov_b32 s24, 2211840
    s_cselect_b32 s24, 819200, s24
    s_add_u32 s21, s21, s19
    s_lshl_b32 s21, s21, 10
    s_add_u32 s40, s21, s22
    s_mul_i32 s41, s19, {16*1280}
    s_mul_i32 s42, s16, 20480
    """)
    a.c("s19=first ks, s23=count, s40=act soffset, s41=W soffset, s42=wave lds base")
    a("s_waitcnt lgkmcnt(0)")
    a(f"""
    s_cmp_lt_u32 s16, 2
    s_cselect_b32 s28, s4, s6
    s_cselect_b32 s29, s5, s7
    s_and_b32 s29, s29, 0xffff
    s_mov_b32 s30, s24
    s_mov_b32 s31, 0x20000
    """)
    srd(a, 32, 10, 11, WS_SIZE)
    srd(a, 36, 10, 11, WS_SIZE)
    srd(a, 12, 8, 9, 2621440)
    a(f"""
    v_lshlrev_b32 v2, 4, v1
    s_mul_i32 s25, s18, 320
    s_movk_i32 s26, 3277
    s_movk_i32 s27, 1280
    """)
    for i in range(5):
        a(f"""
        v_add_u32 v8, {64*i}, v1
        v_mul_u32_u24 v9, s26, v8
        v_lshrrev_b32 v9, 16, v9
        v_mul_u32_u24 v10, 20, v9
        v_sub_u32 v10, v8, v10
        v_mul_u32_u24 v9, s27, v9
        v_lshl_add_u32 v9, v10, 4, v9
        v_add_u32 v{3+i}, s25, v9
        """)
    a(f"""
    v_lshrrev_b32 v8, 5, v1
    v_bfe_u32 v9, v1, 2, 2
    v_lshl_add_u32 v8, v8, 2, v9
    v_mul_u32_u24 v8, 320, v8
    v_bfe_u32 v9, v1, 4, 1
    v_lshl_add_u32 v8, v9, 5, v8
    v_and_b32 v9, 3, v1
    v_lshl_add_u32 v8, v9, 3, v8
    v_add_u32 v11, 1024, v8
    v_add_u32 v10, s42, v2
    v_add_u32 v11, s42, v11
    s_mov_b32 s43, 0
    s_mov_b32 s44, 0
    s_mov_b32 s45, 0
    s_mov_b32 s46, 0
    """)
    a.c("v10/v11 read bases; s43=dma slot off, s44=read slot off, s45=dma step idx, s46=loop idx")
    ACC = 64
    for r in range(ACC, ACC+80): a(f"v_mov_b32 v{r}, 0")
    def dma():
        a(f"""
        s_cmp_lt_u32 s45, s23
        s_cselect_b32 s34, {WS_SIZE}, 0
        s_cselect_b32 s30, s24, 0
        s_add_u32 s47, s42, s43
        s_mov_b32 m0, s47
        s_add_u32 s45, s45, 1
        buffer_load_dwordx4 v2, s[32:35], s40 offen lds
        s_add_u32 m0, s47, 1024
        s_add_u32 s40, s40, 1024
        """)
        for i in range(5):
            if i: a(f"s_add_u32 m0, s47, {1024*(i+1)}")
            if i: a("s_nop 0")
            a(f"buffer_load_dwordx4 v{3+i}, s[28:31], s41 offen lds")
        a(f"""
        s_add_u32 s41, s41, {16*1280}
        s_add_u32 s43, s43, {SLOT}
        s_cmp_ge_u32 s43, {3*SLOT}
        s_cselect_b32 s43, 0, s43
        """)
    FR = [16, 40]
    def reads(b):
        a(f"""
        v_add_u32 v12, s44, v10
        v_add_u32 v13, s44, v11
        s_add_u32 s44, s44, {SLOT}
        s_cmp_ge_u32 s44, {3*SLOT}
        s_cselect_b32 s44, 0, s44
        ds_read_b128 {vr(b,4)}, v12
        """)
        for cb in range(5):
            a(f"ds_read_b64_tr_b16 {vr(b+4+4*cb,2)}, v13 offset:{64*cb}")
            a(f"ds_read_b64_tr_b16 {vr(b+6+4*cb,2)}, v13 offset:{64*cb+8*320}")
    def mf(b):
        for cb in range(5):
            a(f"{M} {vr(ACC+16*cb,16)}, {vr(b+4+4*cb,4)}, {vr(b,4)}, {vr(ACC+16*cb,16)}")
    dma(); dma(); dma()
    a("s_waitcnt vmcnt(12)")
    reads(FR[0])
    stamp(a, 1)
    a(".p2align 6")
    a(f"{L}_loop:")
    for hlf in range(2):
        a("s_waitcnt vmcnt(6) lgkmcnt(0)")
        reads(FR[1-hlf])
        dma()
        mf(FR[hlf])
    a(f"""
    s_add_u32 s46, s46, 2
    s_cmp_lt_u32 s46, s23
    s_cbranch_scc1 {L}_loop
    """)
    stamp(a, 2)
    a(f"""
    s_waitcnt vmcnt(0) lgkmcnt(0)
    s_nop 15
    """)
    for it in range(20):
        a(f"ds_write_b128 v10, {vr(ACC+4*it,4)} offset:{1024*it}")
    a(f"""
    v_and_b32 v3, 31, v1
    s_lshl_b32 s19, s17, 5
    v_add_u32 v3, s19, v3
    v_lshlrev_b32 v4, 2, v3
    s_mov_b32 s20, {WS_G}
    buffer_load_dword v5, v4, s[36:39], s20 offen
    v_mul_lo_u32 v3, v3, s27
    v_lshrrev_b32 v4, 5, v1
    v_lshl_add_u32 v3, v4, 3, v3
    v_add_u32 v3, s25, v3
    s_waitcnt lgkmcnt(0)
    s_barrier
    s_mov_b32 s19, s16
    s_waitcnt vmcnt(0)
    v_sub_f32 v6, 1.0, v5
    v_cvt_pk_bf16_f32 v6, v6, v6
    v_lshlrev_b32 v6, 16, v6
    {L}_red:
    s_lshl_b32 s20, s19, 10
    v_add_u32 v7, s20, v2
    v_add_u32 v8, 61440, v7
    v_add_u32 v9, 122880, v7
    ds_read_b128 v[16:19], v7
    ds_read_b128 v[20:23], v7 offset:20480
    ds_read_b128 v[24:27], v7 offset:40960
    ds_read_b128 v[28:31], v8
    ds_read_b128 v[32:35], v8 offset:20480
    ds_read_b128 v[36:39], v8 offset:40960
    ds_read_b128 v[40:43], v9
    ds_read_b128 v[44:47], v9 offset:20480
    s_lshl_b32 s21, s19, 4
    s_waitcnt lgkmcnt(0)
    """)
    for i in range(4):
        a(f"""
        v_add_f32 v{16+i}, v{16+i}, v{20+i}
        v_add_f32 v{24+i}, v{24+i}, v{28+i}
        v_add_f32 v{32+i}, v{32+i}, v{36+i}
        v_add_f32 v{40+i}, v{40+i}, v{44+i}
        v_add_f32 v{24+i}, v{24+i}, v{32+i}
        v_add_f32 v{24+i}, v{24+i}, v{40+i}
        v_mul_f32 v{16+i}, v5, v{16+i}
        v_fmac_f32 v{16+i}, v6, v{24+i}
        """)
    a(f"""
    v_cvt_pk_bf16_f32 v16, v16, v17
    v_cvt_pk_bf16_f32 v17, v18, v19
    buffer_store_dwordx2 v[16:17], v3, s[12:15], s21 offen
    s_add_u32 s19, s19, 8
    s_cmp_lt_u32 s19, 20
    s_cbranch_scc1 {L}_red
    """)
    stamp_out(a, 3, 2)
    a(f"""
    {L}_end:
    s_endpgm
    """)
    kernel_desc(a, name, 144, 100)
```

```python
from common import *
import math
LOG2E = 1.4426950408889634
QSCALE = LOG2E / math.sqrt(20.0)
STG = 26624
NSLOT = 6
K1_LDS = STG * NSLOT
K1_BLOCK = 704

def dpp_max32(a, v):
    for sh in (1, 2, 4, 8):
        a("s_nop 1")
        a(f"v_max_f32_dpp v{v}, v{v}, v{v} row_shr:{sh} row_mask:0xf bank_mask:0xf")
    a("s_nop 1")
    a(f"v_max_f32_dpp v{v}, v{v}, v{v} row_bcast:15 row_mask:0xa bank_mask:0xf")

def gen_k1(a, name):
    kernel_head(a, name)
    L = name
    a(f"""
    s_cmp_ge_u32 s2, 256
    s_cbranch_scc1 {L}_end
    s_load_dwordx8 s[4:11], s[0:1], 0
    s_load_dwordx4 s[12:15], s[0:1], 48
    s_load_dwordx2 s[18:19], s[0:1], 96
    """)
    stamp(a, 0)
    a(f"""
    v_lshrrev_b32 v2, 6, v0
    v_and_b32 v1, 63, v0
    v_readfirstlane_b32 s22, v2
    s_and_b32 s47, s2, 7
    s_lshr_b32 s51, s2, 3
    s_and_b32 s20, s47, 1
    s_lshl_b32 s20, s20, 2
    s_and_b32 s67, s51, 3
    s_add_u32 s20, s20, s67
    s_lshr_b32 s21, s47, 1
    s_lshl_b32 s21, s21, 3
    s_lshr_b32 s68, s51, 2
    s_add_u32 s21, s21, s68
    s_sub_i32 s23, s21, 27
    s_and_b32 s65, s23, 1
    s_movk_i32 s62, 3456
    s_mov_b32 s61, 2211840
    s_lshl_b32 s59, s21, 7
    s_lshl_b32 s60, s23, 8
    s_cmp_ge_i32 s23, 0
    s_cselect_b32 s65, s65, 0
    s_cselect_b32 s62, 1280, s62
    s_cselect_b32 s61, 819200, s61
    s_cselect_b32 s59, s60, s59
    s_cselect_b32 s60, 128, 0
    s_cmp_lt_u32 s22, 8
    s_cbranch_scc1 {L}_comp
    s_cmp_eq_u32 s22, 10
    s_cbranch_scc1 {L}_touch
    """)
    a.c("s20=rg s21=cg s22=wave s23=qg s65=flip s62=W stride s61=W size s59=W col byte off (G), s60=extra col off for U")
    a.c("s67 = rg within half, s68 = cg within quarter")
    a(f"""
    s_and_b32 s63, s22, 1
    v_lshrrev_b32 v10, 2, v1
    v_lshrrev_b32 v11, 4, v1
    v_and_b32 v12, 3, v1
    v_xor_b32 v12, v12, v11
    s_movk_i32 s54, 1280
    v_mul_u32_u24 v10, s54, v10
    v_lshl_add_u32 v10, v12, 4, v10
    s_lshl_b32 s52, s20, 3
    s_lshl_b32 s53, s63, 2
    s_add_u32 s52, s52, s53
    """)
    for i in range(8):
        a(f"""
        s_add_u32 s53, s52, {i>>1}
        s_xor_b32 s53, s53, s65
        s_mul_i32 s53, s53, 40960
        s_add_u32 s53, s53, {(i&1)*20480 - 1024*(i&3) + 4096}
        v_add_u32 v{2+i}, s53, v10
        """)
    a(f"""
    v_lshrrev_b32 v13, 3, v1
    v_mul_lo_u32 v13, v13, s62
    v_and_b32 v14, 7, v1
    v_bfe_u32 v15, v1, 4, 1
    v_lshlrev_b32 v15, 2, v15
    v_xor_b32 v14, v14, v15
    v_lshl_add_u32 v13, v14, 4, v13
    s_mul_i32 s53, s63, s60
    s_add_u32 s53, s53, s59
    s_add_u32 s53, s53, 4096
    s_lshl_b32 s40, s62, 3
    s_sub_u32 s40, s40, 1024
    v_add_u32 v10, s53, v13
    v_add_u32 v11, s40, v10
    v_add_u32 v12, s40, v11
    v_add_u32 v13, s40, v12
    v_lshlrev_b32 v14, 4, v1
    s_lshl_b32 s40, s62, 5
    s_lshl_b32 s48, s63, 13
    s_lshl_b32 s49, s63, 12
    s_add_u32 s49, s49, 16384
    s_mov_b32 s44, 0
    s_mov_b32 s46, 0
    s_waitcnt lgkmcnt(0)
    """)
    a.c("voffsets carry +4096 so that they stay non negative; the SRD bases carry -4096")
    a(f"""
    s_sub_u32 s24, s4, 4096
    s_subb_u32 s25, s5, 0
    s_and_b32 s25, s25, 0xffff
    s_mov_b32 s26, {2621440+4096}
    s_mov_b32 s27, 0x20000
    s_cmp_eq_u32 s63, 1
    s_cselect_b32 s56, s14, s12
    s_cselect_b32 s57, s15, s13
    s_cmp_ge_i32 s23, 0
    s_cselect_b32 s28, s6, s56
    s_cselect_b32 s29, s7, s57
    s_sub_u32 s28, s28, 4096
    s_subb_u32 s29, s29, 0
    s_and_b32 s29, s29, 0xffff
    s_add_u32 s30, s61, 4096
    s_mov_b32 s31, 0x20000
    s_mov_b32 s41, 0
    s_mov_b32 s42, 0
    s_cmp_ge_i32 s23, 2
    s_cselect_b32 s32, s10, s8
    s_cselect_b32 s33, s11, s9
    s_and_b32 s33, s33, 0xffff
    s_cmp_lt_u32 s23, 4
    s_cselect_b32 s34, 25600, 0
    s_mov_b32 s35, 0x20000
    s_lshl_b32 s43, s63, 10
    s_add_u32 s50, s43, 24576
    s_mov_b32 s47, 0
    s_mov_b32 s58, 2
    s_mov_b32 s51, s43
    """)
    ROT = int(os.environ.get("ROT", "5"))
    if ROT:
        a(f"""
        s_add_u32 s52, s67, s68
        s_and_b32 s52, s52, 3
        s_mul_i32 s52, s52, {ROT}
        s_lshl_b32 s41, s52, 6
        s_mul_i32 s42, s52, s40
        s_mul_i32 s52, s52, 1280
        s_add_u32 s43, s43, s52
        """)

    EXP = os.environ.get("EXP", "")
    if EXP == "null":
        a("s_mov_b32 s26, 0")
        a("s_mov_b32 s30, 0")
    if EXP == "same":
        for i in range(12):
            a(f"v_lshlrev_b32 v{2+i}, 4, v1")
            a(f"v_add_u32 v{2+i}, {4096 + (i//4)*4096}, v{2+i}")
        a("s_movk_i32 s40, 12288")

    D = 13
    a(f"""
    {L}_ld_issue:
    s_add_u32 m0, s44, s48
    s_add_u32 s46, s46, 1
    buffer_load_dwordx4 v2, s[24:27], s41 offen lds
    buffer_load_dwordx4 v3, s[24:27], s41 offen offset:1024 lds
    buffer_load_dwordx4 v4, s[24:27], s41 offen offset:2048 lds
    buffer_load_dwordx4 v5, s[24:27], s41 offen offset:3072 lds
    s_add_u32 m0, m0, 4096
    s_nop 0
    buffer_load_dwordx4 v6, s[24:27], s41 offen lds
    buffer_load_dwordx4 v7, s[24:27], s41 offen offset:1024 lds
    buffer_load_dwordx4 v8, s[24:27], s41 offen offset:2048 lds
    buffer_load_dwordx4 v9, s[24:27], s41 offen offset:3072 lds
    s_add_u32 m0, s44, s49
    s_add_u32 s41, s41, {12288 if EXP == 'same' else 64}
    buffer_load_dwordx4 v10, s[28:31], s42 offen lds
    buffer_load_dwordx4 v11, s[28:31], s42 offen offset:1024 lds
    buffer_load_dwordx4 v12, s[28:31], s42 offen offset:2048 lds
    buffer_load_dwordx4 v13, s[28:31], s42 offen offset:3072 lds
    s_add_u32 m0, s44, s50
    s_add_u32 s42, s42, s40
    buffer_load_dwordx4 v14, s[32:35], s43 offen lds
    s_add_u32 s43, s43, 1280
    s_cmp_eq_u32 s41, 1280
    s_cselect_b32 s41, 0, s41
    s_cselect_b32 s42, 0, s42
    s_cselect_b32 s43, s51, s43
    s_add_u32 s44, s44, {STG}
    s_cmp_ge_u32 s44, {STG*NSLOT}
    s_cselect_b32 s44, 0, s44
    s_cmp_lt_u32 s46, s58
    s_cbranch_scc1 {L}_ld_issue
    s_cmp_ge_u32 s47, 3
    s_cbranch_scc1 {L}_ld_w3
    s_cmp_eq_u32 s47, 2
    s_cbranch_scc1 {L}_ld_w2
    s_waitcnt vmcnt({D})
    {L}_ld_w2:
    s_waitcnt vmcnt({2*D})
    {L}_ld_w3:
    s_waitcnt vmcnt({3*D})
    s_barrier
    s_lshl_b32 s58, s47, 1
    s_add_u32 s58, s58, 3
    s_add_u32 s52, s47, 5
    s_min_u32 s58, s58, s52
    s_add_u32 s47, s47, 1
    s_cmp_le_u32 s58, 20
    s_cbranch_scc1 {L}_ld_issue
    """)
    for n in (2, 1, 0):
        a(f"s_waitcnt vmcnt({n*D})")
        a("s_barrier")
    a("s_barrier")
    a(f"""
    {L}_ldtail:
    s_cmp_eq_u32 s63, 1
    s_cbranch_scc1 {L}_gate
    s_load_dwordx2 s[4:5], s[0:1], 32
    s_load_dwordx2 s[6:7], s[0:1], 64
    s_lshl_b32 s52, s2, 6
    v_add_u32 v2, s52, v1
    v_lshlrev_b32 v2, 7, v2
    s_waitcnt lgkmcnt(0)
    """)
    srd(a, 24, 4, 5, 819200)
    srd(a, 28, 6, 7, 2211840)
    a(f"""
    buffer_load_dword v3, v2, s[24:27], 0 offen
    buffer_load_dword v4, v2, s[28:31], 0 offen
    s_mov_b32 s52, {16384*128}
    buffer_load_dword v5, v2, s[28:31], s52 offen
    s_branch {L}_fin
    {L}_gate:
    s_load_dwordx2 s[16:17], s[0:1], 72
    v_and_b32 v16, 7, v1
    v_lshlrev_b32 v16, 4, v16
    v_lshrrev_b32 v17, 3, v1
    s_lshl_b32 s53, s20, 8
    s_lshl_b32 s54, s21, 3
    s_add_u32 s53, s53, s54
    v_add_u32 v18, s53, v17
    s_movk_i32 s54, 1280
    v_mul_lo_u32 v17, v18, s54
    v_add_u32 v17, v17, v16
    v_add_u32 v17, 4096, v17
    """)
    for j in range(10):
        a(f"buffer_load_dwordx4 {vr(64+4*j,4)}, v17, s[24:27], 0 offen offset:{128*j}")
    a("s_waitcnt lgkmcnt(0)")
    srd(a, 68, 16, 17, 1280)
    srd(a, 36, 18, 19, WS_SIZE)
    for j in range(10):
        a(f"buffer_load_dwordx4 {vr(24+4*j,4)}, v16, s[68:71], 0 offen offset:{128*j}")
    a(f"""
    v_lshlrev_b32 v19, 2, v18
    v_mov_b32 v21, {f32(-LOG2E)}
    v_mov_b32 v20, 0
    v_mov_b32 v22, 0
    s_waitcnt vmcnt(0)
    """)
    for i in range(0, 40, 2):
        a(f"v_dot2_f32_bf16 v20, v{64+i}, v{24+i}, v20")
        a(f"v_dot2_f32_bf16 v22, v{65+i}, v{25+i}, v22")
    a(f"""
    s_nop 3
    v_add_f32 v20, v20, v22
    s_nop 1
    v_add_f32_dpp v20, v20, v20 quad_perm:[1,0,3,2] row_mask:0xf bank_mask:0xf
    s_nop 1
    v_add_f32_dpp v20, v20, v20 quad_perm:[2,3,0,1] row_mask:0xf bank_mask:0xf
    s_nop 1
    v_add_f32_dpp v20, v20, v20 row_half_mirror row_mask:0xf bank_mask:0xf
    v_cvt_pk_bf16_f32 v20, v20, v20
    v_lshlrev_b32 v20, 16, v20
    v_mul_f32 v20, v21, v20
    v_exp_f32 v20, v20
    s_nop 0
    v_add_f32 v20, 1.0, v20
    v_rcp_f32 v20, v20
    s_nop 0
    v_cvt_pk_bf16_f32 v20, v20, v20
    v_lshlrev_b32 v22, 16, v20
    s_mov_b32 s53, {WS_G}
    buffer_store_dword v22, v19, s[36:39], s53 offen
    s_branch {L}_fin
    """)

    T0 = int(os.environ.get("T0", "2"))
    a(f"""
    {L}_touch:
    v_lshrrev_b32 v2, 1, v1
    v_lshlrev_b32 v2, 2, v2
    s_add_u32 s52, s67, {T0*32}
    v_add_u32 v2, s52, v2
    v_mul_lo_u32 v2, v2, s62
    v_add_u32 v2, s59, v2
    v_and_b32 v3, 1, v1
    v_mul_u32_u24 v4, s60, v3
    v_add_u32 v2, v2, v4
    s_lshl_b32 s52, s20, 8
    s_lshl_b32 s53, s68, 5
    s_add_u32 s52, s52, s53
    s_sub_u32 s52, s52, 16
    v_add_u32 v5, s52, v1
    s_movk_i32 s53, 1280
    v_mul_lo_u32 v5, v5, s53
    v_add_u32 v5, {T0*64}, v5
    s_lshl_b32 s40, s62, 5
    v_cmp_gt_u32 s[54:55], 16, v1
    v_cmp_eq_u32 s[56:57], 1, v3
    v_mov_b32 v6, s40
    s_waitcnt lgkmcnt(0)
    s_cmp_ge_i32 s23, 0
    s_cselect_b32 s24, s6, s12
    s_cselect_b32 s25, s7, s13
    s_cselect_b32 s28, s6, s14
    s_cselect_b32 s29, s7, s15
    v_cndmask_b32 v2, v5, v2, s[54:55]
    v_cndmask_b32 v6, 64, v6, s[54:55]
    v_mov_b32 v8, s24
    v_mov_b32 v9, s25
    v_mov_b32 v10, s28
    v_mov_b32 v11, s29
    v_cndmask_b32 v8, v8, v10, s[56:57]
    v_cndmask_b32 v9, v9, v11, s[56:57]
    v_mov_b32 v10, s4
    v_mov_b32 v11, s5
    v_cndmask_b32 v8, v10, v8, s[54:55]
    v_cndmask_b32 v9, v11, v9, s[54:55]
    v_add_co_u32 v8, vcc, v8, v2
    s_nop 1
    v_addc_co_u32 v9, vcc, 0, v9, vcc
    s_mov_b32 exec_hi, 0xffff
    s_mov_b32 s46, {T0}
    s_sleep {int(os.environ.get("TSLEEP","0"))}
    {L}_t_loop:
    global_load_dword v12, v[8:9], off
    v_add_co_u32 v8, vcc, v8, v6
    s_add_u32 s46, s46, 1
    s_cmp_lt_u32 s46, 20
    v_addc_co_u32 v9, vcc, 0, v9, vcc
    s_cbranch_scc1 {L}_t_loop
    s_endpgm
    """)

    a(f"{L}_comp:")
    a(f"""
    s_and_b32 s63, s22, 3
    s_lshr_b32 s64, s22, 2
    s_waitcnt lgkmcnt(0)
    """)
    srd(a, 36, 18, 19, WS_SIZE)
    a(f"""
    v_and_b32 v13, 31, v1
    v_lshrrev_b32 v14, 5, v1
    v_bfe_u32 v15, v1, 2, 2
    v_xor_b32 v5, v14, v15
    v_xor_b32 v6, 2, v5
    v_lshlrev_b32 v5, 4, v5
    v_lshlrev_b32 v6, 4, v6
    v_lshl_add_u32 v5, v13, 6, v5
    v_lshl_add_u32 v6, v13, 6, v6
    s_lshl_b32 s52, s63, 12
    v_add_u32 v5, s52, v5
    v_add_u32 v6, s52, v6
    v_lshlrev_b32 v7, 3, v14
    v_add_u32 v7, v7, v15
    v_mul_u32_u24 v8, 40, v7
    v_lshlrev_b32 v7, 7, v7
    v_lshrrev_b32 v16, 1, v15
    v_xor_b32 v16, s64, v16
    v_lshl_add_u32 v7, v16, 6, v7
    v_bfe_u32 v16, v1, 4, 1
    v_and_b32 v17, 3, v1
    v_lshlrev_b32 v16, 5, v16
    v_lshl_add_u32 v16, v17, 3, v16
    v_add_u32 v7, v7, v16
    v_add_u32 v8, v8, v16
    v_add_u32 v7, 16384, v7
    v_add_u32 v8, 24576, v8
    s_mov_b32 s45, 0
    s_mov_b32 s46, 0
    s_mov_b32 s66, 0
    """)
    a.c("v5/v6 x frag addr (ks0/ks1), v7 W frag addr, v8 S frag addr; s63=rp s64=cp")
    for r in range(64, 144):
        a(f"v_mov_b32 v{r}, 0")
    a(f"""
    s_cmp_ge_u32 s23, 4
    s_cbranch_scc1 {L}_plain
    s_cmp_ge_u32 s22, 4
    s_cbranch_scc1 {L}_plain
    s_cmp_ge_i32 s23, 2
    s_cbranch_scc1 {L}_modeV
    s_branch {L}_modeK
    """)
    XA = [16, 36]
    def addrs(extra):
        a("v_add_u32 v9, s45, v5")
        a("v_add_u32 v10, s45, v6")
        a("v_add_u32 v11, s45, v7")
        if extra:
            a("v_add_u32 v12, s45, v8")
        a(f"""
        s_add_u32 s45, s45, {STG}
        s_cmp_ge_u32 s45, {STG*NSLOT}
        s_cselect_b32 s45, 0, s45
        """)
    def read_list(ks, extra):
        b = XA[ks]
        xa = 9 + ks
        l = [f"ds_read_b128 {vr(b,4)}, v{xa}",
             f"ds_read_b64_tr_b16 {vr(b+8,2)}, v11 offset:{ks*2048}",
             f"ds_read_b64_tr_b16 {vr(b+10,2)}, v11 offset:{ks*2048+512}",
             f"ds_read_b64_tr_b16 {vr(b+12,2)}, v11 offset:{4096+ks*2048}",
             f"ds_read_b64_tr_b16 {vr(b+14,2)}, v11 offset:{4096+ks*2048+512}",
             f"ds_read_b128 {vr(b+4,4)}, v{xa} offset:2048"]
        if extra:
            l += [f"ds_read_b64_tr_b16 {vr(b+16,2)}, v12 offset:{ks*640}",
                  f"ds_read_b64_tr_b16 {vr(b+18,2)}, v12 offset:{ks*640+160}"]
        return l
    def mfma_list(ks, mode):
        b = XA[ks]
        x0, x1, wg, wu, ws = vr(b,4), vr(b+4,4), vr(b+8,4), vr(b+12,4), vr(b+16,4)
        M = "v_mfma_f32_32x32x16_bf16"
        l = [f"{M} v[64:79], {wg}, {x0}, v[64:79]",
             f"{M} v[80:95], {wu}, {x0}, v[80:95]",
             f"{M} v[96:111], {wg}, {x1}, v[96:111]",
             f"{M} v[112:127], {wu}, {x1}, v[112:127]"]
        if mode == 1:
            l.append(f"{M} v[128:143], {ws}, {x0}, v[128:143]")
        if mode == 2:
            l.append(f"{M} v[128:143], {x0}, {ws}, v[128:143]")
        return l
    for mode, tag in ((0, "plain"), (1, "modeK"), (2, "modeV")):
        ex = mode != 0
        a(f"{L}_{tag}:")
        if ex:
            a(f"s_mov_b32 s66, {mode}")
        addrs(ex)
        a("s_barrier")
        for x in read_list(0, ex): a(x)
        stamp(a, 1)
        a(f".p2align 6")
        a(f"{L}_{tag}_loop:")
        rl = read_list(1, ex)
        for x in rl: a(x)
        a(f"s_waitcnt lgkmcnt({len(rl)})")
        for x in mfma_list(0, mode): a(x)
        addrs(ex)
        a("s_barrier")
        rl = read_list(0, ex)
        for x in rl: a(x)
        a(f"s_waitcnt lgkmcnt({len(rl)})")
        for x in mfma_list(1, mode): a(x)
        a(f"""
        s_add_u32 s46, s46, 1
        s_cmp_lt_u32 s46, 20
        s_cbranch_scc1 {L}_{tag}_loop
        """)
        if mode != 2 or True:
            a(f"s_branch {L}_epi")

    a(f"{L}_epi:")
    stamp(a, 2)
    a(f"""
    s_lshl_b32 s52, s20, 3
    s_lshl_b32 s53, s63, 1
    s_add_u32 s52, s52, s53
    s_add_u32 s52, s52, s65
    s_nop 7
    s_cmp_ge_i32 s23, 0
    s_cbranch_scc1 {L}_epiq
    """)
    a.c("s52 = global row block of acc set 0 (set 1 is s52 ^ 1)")
    C0 = -2.0 * 0.7978845608028654 * LOG2E
    C1 = C0 * 0.044715
    a(f"""
    s_waitcnt vmcnt(0) lgkmcnt(0)
    v_mov_b32 v16, {f32(C0)}
    v_mov_b32 v17, {f32(C1)}
    v_lshlrev_b32 v18, 4, v1
    s_mul_i32 s53, s52, {108*1024}
    s_lshl_b32 s54, s21, 12
    s_lshl_b32 s55, s64, 11
    s_add_u32 s53, s53, s54
    s_add_u32 s53, s53, s55
    s_add_u32 s53, s53, {WS_H}
    s_add_u32 s54, s53, {108*1024}
    """)
    for j in range(2):
        G, U = 64 + 32*j, 80 + 32*j
        for half in range(2):
            T = 20
            rs = list(range(8*half, 8*half+8))
            for i, r in enumerate(rs): a(f"v_mul_f32 v{T+i}, v{G+r}, v{G+r}")
            for i, r in enumerate(rs): a(f"v_fma_f32 v{T+i}, v{T+i}, v17, v16")
            for i, r in enumerate(rs): a(f"v_mul_f32 v{T+i}, v{G+r}, v{T+i}")
            for i, r in enumerate(rs): a(f"v_exp_f32 v{T+i}, v{T+i}")
            for i, r in enumerate(rs): a(f"v_mul_f32 v{U+r}, v{G+r}, v{U+r}")
            for i, r in enumerate(rs): a(f"v_add_f32 v{T+i}, 1.0, v{T+i}")
            for i, r in enumerate(rs): a(f"v_rcp_f32 v{T+i}, v{T+i}")
            a("s_nop 0")
            for i, r in enumerate(rs): a(f"v_mul_f32 v{T+i}, v{U+r}, v{T+i}")
            O = 28 + 4*(2*j+half)
            for i in range(4): a(f"v_cvt_pk_bf16_f32 v{O+i}, v{T+2*i}, v{T+2*i+1}")
            a(f"buffer_store_dwordx4 {vr(O,4)}, v18, s[36:39], s{53+j} offen offset:{1024*half}")
    a(f"s_branch {L}_fin")

    a(f"{L}_epiq:")
    a(f"""
    s_waitcnt vmcnt(0) lgkmcnt(0)
    v_mov_b32 v20, {f32(QSCALE)}
    v_and_b32 v21, 31, v1
    v_lshrrev_b32 v22, 5, v1
    s_lshl_b32 s53, s23, 7
    s_lshl_b32 s54, s64, 5
    s_add_u32 s53, s53, s54
    v_lshl_add_u32 v22, v22, 2, s53
    v_lshlrev_b32 v23, 4, v21
    v_lshlrev_b32 v24, 3, v21
    v_add_u32 v24, 1024, v24
    s_mul_i32 s54, s52, 40960
    s_add_u32 s54, s54, {WS_Q}
    s_xor_b32 s55, s52, 1
    s_mul_i32 s55, s55, 40960
    s_add_u32 s55, s55, {WS_Q}
    s_movk_i32 s56, 3277
    s_movk_i32 s57, 1280
    """)
    for T in range(2):
        for q in range(4):
            a(f"""
            v_add_u32 v25, {64*T+8*q}, v22
            v_mul_u32_u24 v26, s56, v25
            v_lshrrev_b32 v26, 16, v26
            v_mul_u32_u24 v27, 20, v26
            v_sub_u32 v27, v25, v27
            v_bfe_u32 v28, v27, 2, 1
            v_lshl_add_u32 v28, v28, 9, v23
            v_and_b32 v29, 8, v27
            v_add_u32 v28, v28, v29
            v_cmp_eq_u32 vcc, 16, v27
            s_nop 1
            v_cndmask_b32 v28, v28, v24, vcc
            v_mad_u32_u24 v28, v26, s57, v28
            """)
            for j in range(2):
                A = 64 + 32*j + 16*T + 4*q
                for i in range(4): a(f"v_mul_f32 v{A+i}, v20, v{A+i}")
                a(f"v_cvt_pk_bf16_f32 v{30+2*j}, v{A}, v{A+1}")
                a(f"v_cvt_pk_bf16_f32 v{31+2*j}, v{A+2}, v{A+3}")
                a(f"buffer_store_dwordx2 {vr(30+2*j,2)}, v28, s[36:39], s{54+j} offen")
            a("s_nop 0")
    a(f"""
    s_cmp_eq_u32 s66, 2
    s_cbranch_scc1 {L}_epiv
    s_cmp_lg_u32 s66, 1
    s_cbranch_scc1 {L}_fin
    """)
    E = 128
    a(f"""
    s_mul_i32 s53, s52, 3072
    s_add_u32 s53, s53, {WS_KV}
    v_lshlrev_b32 v16, 4, v1
    """)
    for i in range(4): a(f"v_cvt_pk_bf16_f32 v{20+i}, v{E+2*i}, v{E+2*i+1}")
    a(f"buffer_store_dwordx4 v[20:23], v16, s[36:39], s53 offen")
    a(f"v_cvt_pk_bf16_f32 v24, v{E+8}, v{E+9}")
    a(f"v_cvt_pk_bf16_f32 v25, v{E+10}, v{E+11}")
    a("v_mov_b32 v26, 0x3f803f80")
    a("v_mov_b32 v27, 0x00003f80")
    a(f"v_mul_f32 v30, v{E}, v{E}")
    for i in range(1, 8): a(f"v_fmac_f32 v30, v{E+i}, v{E+i}")
    a(f"v_mul_f32 v31, v{E+8}, v{E+8}")
    for i in range(9, 12): a(f"v_fmac_f32 v31, v{E+i}, v{E+i}")
    a(f"""
    v_cmp_gt_u32 vcc, 32, v1
    s_nop 1
    v_cndmask_b32 v31, 0, v31, vcc
    v_add_f32 v30, v30, v31
    v_mov_b32 v31, v30
    s_nop 1
    v_permlane32_swap_b32 v30, v31
    s_nop 1
    v_add_f32 v30, v30, v31
    """)
    dpp_max32(a, 30)
    a(f"""
    s_lshl_b32 s54, s52, 2
    s_add_u32 s54, s54, {WS_KMAX}
    v_mov_b32 v17, 0
    s_mov_b32 exec_hi, 0
    buffer_store_dwordx4 v[24:27], v16, s[36:39], s53 offen offset:1024
    s_mov_b32 exec_lo, 0x80000000
    buffer_store_dword v30, v17, s[36:39], s54 offen
    s_branch {L}_fin
    """)
    a(f"{L}_epiv:")
    a(f"""
    s_mul_i32 s53, s52, 3072
    s_add_u32 s53, s53, {WS_KV+1536}
    v_and_b32 v17, 31, v1
    v_lshrrev_b32 v18, 5, v1
    v_mul_u32_u24 v18, 384, v18
    v_lshl_add_u32 v16, v17, 4, v18
    v_mov_b32 v19, 0x3f803f80
    v_cmp_eq_u32 vcc, 20, v17
    """)
    for i in range(8): a(f"v_cvt_pk_bf16_f32 v{20+i}, v{E+2*i}, v{E+2*i+1}")
    for i in range(8): a(f"v_cndmask_b32 v{20+i}, v{20+i}, v19, vcc")
    a(f"""
    v_cmp_gt_u32 vcc, 24, v17
    s_nop 1
    s_and_b64 exec, exec, vcc
    buffer_store_dwordx4 v[20:23], v16, s[36:39], s53 offen
    buffer_store_dwordx4 v[24:27], v16, s[36:39], s53 offen offset:768
    """)
    a(f"{L}_fin:")
    stamp_out(a, 3, 0)
    a(f"{L}_end:")
    a("s_endpgm")
    kernel_desc(a, name, 144, 100)
```

```python
class Asm:
    def __init__(self):
        self.lines = []
    def __call__(self, s=""):
        for l in s.split("\n"):
            l = l.strip()
            if not l:
                continue
            if l.endswith(":") or l.startswith("."):
                self.lines.append(l)
            else:
                self.lines.append("    " + l)
    def c(self, s):
        self.lines.append("    ; " + s)
    def text(self):
        return "\n".join(self.lines) + "\n"

def vr(b, n):
    return f"v[{b}:{b+n-1}]" if n > 1 else f"v{b}"
def sr(b, n):
    return f"s[{b}:{b+n-1}]" if n > 1 else f"s{b}"

import struct
def f32(x):
    return "0x%08x" % struct.unpack("<I", struct.pack("<f", x))[0]

WS_Q    = 0x0000000
WS_KV   = 0x0300000
WS_KMAX = 0x0340000
WS_G    = 0x0341000
WS_H    = 0x0400000
WS_O    = 0x0C00000
WS_B    = 0x1000000
WS_SIZE = 0x2000000

def srd(a, d, lo, hi, size):
    a(f"s_mov_b32 s{d}, s{lo}")
    a(f"s_and_b32 s{d+1}, s{hi}, 0xffff")
    if isinstance(size, int):
        a(f"s_mov_b32 s{d+2}, {size}")
    else:
        a(f"s_mov_b32 s{d+2}, {size}")
    a(f"s_mov_b32 s{d+3}, 0x20000")

def kernel_head(a, name):
    a(".text")
    a(f".globl {name}")
    a(".p2align 8")
    a(f".type {name},@function")
    a(f"{name}:")

def kernel_desc(a, name, nv, ns, acc=None):
    acc = acc if acc is not None else ((nv + 3) // 4) * 4
    a('.section .rodata,"a"')
    a(".p2align 6")
    a(f".amdhsa_kernel {name}")
    a.lines.append(f"  .amdhsa_next_free_vgpr {nv}")
    a.lines.append(f"  .amdhsa_next_free_sgpr {ns}")
    a.lines.append(f"  .amdhsa_accum_offset {acc}")
    a.lines.append("  .amdhsa_group_segment_fixed_size 0")
    a.lines.append("  .amdhsa_kernarg_size 104")
    a.lines.append("  .amdhsa_user_sgpr_count 2")
    a.lines.append("  .amdhsa_user_sgpr_kernarg_segment_ptr 1")
    a.lines.append("  .amdhsa_system_sgpr_workgroup_id_x 1")
    a(".end_amdhsa_kernel")

import os
STAMP = os.environ.get("STAMP", "0") == "1"
def stamp(a, i):
    if STAMP:
        a(f"s_memtime s[{84+2*i}:{85+2*i}]")
        if i == 0: a("s_memrealtime s[94:95]")
def stamp_out(a, n, label):
    if not STAMP: return
    a("s_mov_b64 exec, -1")
    a(f"s_memtime s[{84+2*n}:{85+2*n}]")
    a("s_memrealtime s[96:97]")
    a("s_load_dwordx2 s[80:81], s[0:1], 96")
    a("v_lshrrev_b32 v2, 6, v0")
    a("s_nop 0")
    a("v_readfirstlane_b32 s82, v2")
    a("s_waitcnt lgkmcnt(0)")
    a("s_lshl_b32 s83, s2, 4")
    a("s_add_u32 s83, s83, s82")
    a("s_lshl_b32 s83, s83, 6")
    a(f"s_add_u32 s83, s83, {0x1800000 + label*0x40000}")
    a("v_mov_b32 v2, s83")
    for i in range(n+1):
        a(f"v_mov_b32 v3, s{84+2*i}")
        a(f"global_store_dword v2, v3, s[80:81] offset:{4*i}")
    a("v_mov_b32 v3, s94")
    a("global_store_dword v2, v3, s[80:81] offset:16")
    a("v_mov_b32 v3, s96")
    a("global_store_dword v2, v3, s[80:81] offset:20")
```

```python
from common import *
import math
LOG2E = 1.4426950408889634
QSCALE = LOG2E / math.sqrt(20.0)
XSL = 32768
WSL = 10240
WB = 3 * XSL
K1_LDS = WB + 4 * WSL
K1_BLOCK = 640

def dpp_max32(a, v):
    for sh in (1, 2, 4, 8):
        a("s_nop 1")
        a(f"v_max_f32_dpp v{v}, v{v}, v{v} row_shr:{sh} row_mask:0xf bank_mask:0xf")
    a("s_nop 1")
    a(f"v_max_f32_dpp v{v}, v{v}, v{v} row_bcast:15 row_mask:0xa bank_mask:0xf")

def gen_k1(a, name):
    kernel_head(a, name)
    L = name
    a(f"""
    s_cmp_ge_u32 s2, 256
    s_cbranch_scc1 {L}_end
    s_load_dwordx8 s[4:11], s[0:1], 0
    s_load_dwordx4 s[12:15], s[0:1], 48
    s_load_dwordx2 s[18:19], s[0:1], 96
    """)
    stamp(a, 0)
    a(f"""
    v_lshrrev_b32 v2, 6, v0
    v_and_b32 v1, 63, v0
    v_readfirstlane_b32 s22, v2
    s_and_b32 s47, s2, 7
    s_lshr_b32 s51, s2, 3
    s_and_b32 s20, s47, 1
    s_lshl_b32 s20, s20, 2
    s_and_b32 s67, s51, 3
    s_add_u32 s20, s20, s67
    s_lshr_b32 s21, s47, 1
    s_lshl_b32 s21, s21, 3
    s_lshr_b32 s68, s51, 2
    s_add_u32 s21, s21, s68
    s_sub_i32 s23, s21, 27
    """)
    if os.environ.get("EXP", "") == "same2":
        a("s_mov_b32 s20, 0")
        a("s_mov_b32 s21, 0")
        a("s_mov_b32 s23, -27")
    a(f"""
    s_and_b32 s65, s23, 1
    s_movk_i32 s62, 3456
    s_mov_b32 s61, 2211840
    s_lshl_b32 s59, s21, 7
    s_lshl_b32 s60, s23, 8
    s_cmp_ge_i32 s23, 0
    s_cselect_b32 s65, s65, 0
    s_cselect_b32 s62, 1280, s62
    s_cselect_b32 s61, 819200, s61
    s_cselect_b32 s59, s60, s59
    s_cselect_b32 s60, 128, 0
    s_cmp_lt_u32 s22, 8
    s_cbranch_scc1 {L}_comp
    """)
    a.c("s20=rg s21=cg s22=wave s23=qg s65=flip s62=W stride s61=W size s59=W col byte off (G), s60=extra col off for U")
    a.c("s67 = rg within half, s68 = cg within quarter")
    a(f"""
    s_and_b32 s63, s22, 1
    v_lshrrev_b32 v10, 3, v1
    v_lshrrev_b32 v11, 4, v1
    v_and_b32 v12, 7, v1
    v_xor_b32 v12, v12, v11
    v_xor_b32 v11, 4, v12
    s_movk_i32 s54, 1280
    v_mul_u32_u24 v10, s54, v10
    v_lshl_add_u32 v15, v11, 4, v10
    v_lshl_add_u32 v10, v12, 4, v10
    s_lshl_b32 s52, s20, 3
    s_lshl_b32 s53, s63, 1
    s_add_u32 s52, s52, s53
    """)
    for i in range(8):
        if i % 4 == 0:
            a(f"""
            s_add_u32 s53, s52, {i>>2}
            s_xor_b32 s53, s53, s65
            s_mul_i32 s53, s53, 40960
            """)
        a(f"s_add_u32 s55, s53, {(i&3)*(10240-1024) + 4096}")
        a(f"v_add_u32 v{2+i}, s55, v{15 if i & 1 else 10}")
    a(f"""
    v_lshrrev_b32 v13, 3, v1
    v_mul_lo_u32 v13, v13, s62
    v_and_b32 v14, 7, v1
    v_bfe_u32 v15, v1, 4, 1
    v_lshlrev_b32 v15, 2, v15
    v_xor_b32 v14, v14, v15
    v_lshl_add_u32 v13, v14, 4, v13
    s_mul_i32 s53, s63, s60
    s_add_u32 s53, s53, s59
    s_add_u32 s53, s53, 4096
    s_lshl_b32 s40, s62, 3
    s_sub_u32 s40, s40, 1024
    v_add_u32 v10, s53, v13
    v_add_u32 v11, s40, v10
    v_add_u32 v12, s40, v11
    v_add_u32 v13, s40, v12
    v_lshlrev_b32 v14, 4, v1
    s_lshl_b32 s40, s62, 5
    s_lshl_b32 s48, s63, 13
    s_lshl_b32 s49, s63, 12
    s_add_u32 s49, s49, {WB}
    s_lshl_b32 s51, s63, 10
    s_add_u32 s50, s51, {WB+8192}
    s_add_u32 s52, s67, s68
    s_and_b32 s52, s52, 3
    s_mul_i32 s52, s52, 5
    s_lshr_b32 s52, s52, 1
    s_lshl_b32 s41, s52, 7
    s_lshl_b32 s52, s52, 1
    s_mul_i32 s42, s52, s40
    s_mul_i32 s43, s52, 1280
    s_add_u32 s43, s43, s51
    s_mul_i32 s57, s40, 20
    s_mov_b32 s44, 0
    s_mov_b32 s46, 0
    s_waitcnt lgkmcnt(0)
    s_sub_u32 s24, s4, 4096
    s_subb_u32 s25, s5, 0
    s_and_b32 s25, s25, 0xffff
    s_mov_b32 s26, {2621440+4096}
    s_mov_b32 s27, 0x20000
    s_mov_b32 m0, s48
    s_cmp_eq_u32 s63, 1
    """)
    a.c("voffsets carry +4096 so that they stay non negative; the SRD bases carry -4096")
    def xdma(so):
        a(f"""
        buffer_load_dwordx4 v2, s[24:27], {so} offen lds
        buffer_load_dwordx4 v3, s[24:27], {so} offen offset:1024 lds
        buffer_load_dwordx4 v4, s[24:27], {so} offen offset:2048 lds
        buffer_load_dwordx4 v5, s[24:27], {so} offen offset:3072 lds
        s_add_u32 m0, m0, 4096
        s_nop 0
        buffer_load_dwordx4 v6, s[24:27], {so} offen lds
        buffer_load_dwordx4 v7, s[24:27], {so} offen offset:1024 lds
        buffer_load_dwordx4 v8, s[24:27], {so} offen offset:2048 lds
        buffer_load_dwordx4 v9, s[24:27], {so} offen offset:3072 lds
        """)
    a("""
    s_cselect_b32 s56, s14, s12
    s_cselect_b32 s55, s15, s13
    """)
    xdma("s41")
    a(f"""
    s_cmp_ge_i32 s23, 0
    s_cselect_b32 s28, s6, s56
    s_cselect_b32 s29, s7, s55
    s_sub_u32 s28, s28, 4096
    s_subb_u32 s29, s29, 0
    s_and_b32 s29, s29, 0xffff
    s_add_u32 s30, s61, 4096
    s_mov_b32 s31, 0x20000
    s_cmp_ge_i32 s23, 2
    s_cselect_b32 s32, s10, s8
    s_cselect_b32 s33, s11, s9
    s_and_b32 s33, s33, 0xffff
    s_cmp_lt_u32 s23, 4
    s_cselect_b32 s34, 25600, 0
    s_mov_b32 s35, 0x20000
    s_add_u32 s45, s48, 16384
    s_add_u32 s54, s41, 163840
    s_mov_b32 s58, 2
    """)
    a.c("s45 = lds dest of next x half, s54 = its soffset, s41 = k byte offset of current pair, s44 = W slot offset")
    D = 13
    a(f"""
    {L}_ld_issue:
    s_mov_b32 m0, s45
    s_add_u32 s46, s46, 1
    """)
    xdma("s54")
    a(f"""
    s_add_u32 m0, s44, s49
    s_add_u32 s45, s45, 16384
    buffer_load_dwordx4 v10, s[28:31], s42 offen lds
    buffer_load_dwordx4 v11, s[28:31], s42 offen offset:1024 lds
    buffer_load_dwordx4 v12, s[28:31], s42 offen offset:2048 lds
    buffer_load_dwordx4 v13, s[28:31], s42 offen offset:3072 lds
    s_add_u32 m0, s44, s50
    s_add_u32 s42, s42, s40
    buffer_load_dwordx4 v14, s[32:35], s43 offen lds
    s_add_u32 s43, s43, 1280
    s_cmp_eq_u32 s42, s57
    s_cselect_b32 s42, 0, s42
    s_cselect_b32 s43, s51, s43
    s_add_u32 s44, s44, {WSL}
    s_cmp_ge_u32 s44, {4*WSL}
    s_cselect_b32 s44, 0, s44
    s_cmp_ge_u32 s45, {WB}
    s_cselect_b32 s45, s48, s45
    s_add_u32 s52, s41, 128
    s_cmp_eq_u32 s52, 1280
    s_cselect_b32 s52, 0, s52
    s_add_u32 s53, s41, 163840
    s_bitcmp1_b32 s46, 0
    s_cselect_b32 s41, s52, s41
    s_cselect_b32 s54, s52, s53
    s_cmp_eq_u32 s46, 19
    s_cselect_b32 s26, 0, s26
    s_cmp_lt_u32 s46, s58
    s_cbranch_scc1 {L}_ld_issue
    s_waitcnt vmcnt({D})
    s_barrier
    s_add_u32 s58, s58, 1
    s_cmp_le_u32 s58, 20
    s_cbranch_scc1 {L}_ld_issue
    s_waitcnt vmcnt(0)
    s_barrier
    s_barrier
    s_mov_b32 s26, {2621440+4096}
    """)
    a(f"""
    {L}_ldtail:
    s_cmp_eq_u32 s63, 1
    s_cbranch_scc1 {L}_gate
    s_load_dwordx2 s[4:5], s[0:1], 32
    s_load_dwordx2 s[6:7], s[0:1], 64
    s_lshl_b32 s52, s2, 6
    v_add_u32 v2, s52, v1
    v_lshlrev_b32 v2, 7, v2
    s_waitcnt lgkmcnt(0)
    """)
    srd(a, 24, 4, 5, 819200)
    srd(a, 28, 6, 7, 2211840)
    a(f"""
    buffer_load_dword v3, v2, s[24:27], 0 offen
    buffer_load_dword v4, v2, s[28:31], 0 offen
    s_mov_b32 s52, {16384*128}
    buffer_load_dword v5, v2, s[28:31], s52 offen
    s_branch {L}_fin
    {L}_gate:
    s_load_dwordx2 s[16:17], s[0:1], 72
    v_and_b32 v16, 7, v1
    v_lshlrev_b32 v16, 4, v16
    v_lshrrev_b32 v17, 3, v1
    s_lshl_b32 s53, s20, 8
    s_lshl_b32 s54, s21, 3
    s_add_u32 s53, s53, s54
    v_add_u32 v18, s53, v17
    s_movk_i32 s54, 1280
    v_mul_lo_u32 v17, v18, s54
    v_add_u32 v17, v17, v16
    v_add_u32 v17, 4096, v17
    """)
    for j in range(10):
        a(f"buffer_load_dwordx4 {vr(64+4*j,4)}, v17, s[24:27], 0 offen offset:{128*j}")
    a("s_waitcnt lgkmcnt(0)")
    srd(a, 68, 16, 17, 1280)
    srd(a, 36, 18, 19, WS_SIZE)
    for j in range(10):
        a(f"buffer_load_dwordx4 {vr(24+4*j,4)}, v16, s[68:71], 0 offen offset:{128*j}")
    a(f"""
    v_lshlrev_b32 v19, 2, v18
    v_mov_b32 v21, {f32(-LOG2E)}
    v_mov_b32 v20, 0
    v_mov_b32 v22, 0
    s_waitcnt vmcnt(0)
    """)
    for i in range(0, 40, 2):
        a(f"v_dot2_f32_bf16 v20, v{64+i}, v{24+i}, v20")
        a(f"v_dot2_f32_bf16 v22, v{65+i}, v{25+i}, v22")
    a(f"""
    s_nop 3
    v_add_f32 v20, v20, v22
    s_nop 1
    v_add_f32_dpp v20, v20, v20 quad_perm:[1,0,3,2] row_mask:0xf bank_mask:0xf
    s_nop 1
    v_add_f32_dpp v20, v20, v20 quad_perm:[2,3,0,1] row_mask:0xf bank_mask:0xf
    s_nop 1
    v_add_f32_dpp v20, v20, v20 row_half_mirror row_mask:0xf bank_mask:0xf
    v_cvt_pk_bf16_f32 v20, v20, v20
    v_lshlrev_b32 v20, 16, v20
    v_mul_f32 v20, v21, v20
    v_exp_f32 v20, v20
    s_nop 0
    v_add_f32 v20, 1.0, v20
    v_rcp_f32 v20, v20
    s_nop 0
    v_cvt_pk_bf16_f32 v20, v20, v20
    v_lshlrev_b32 v22, 16, v20
    s_mov_b32 s53, {WS_G}
    buffer_store_dword v22, v19, s[36:39], s53 offen
    s_branch {L}_fin
    """)

    a(f"{L}_comp:")
    a(f"""
    s_and_b32 s63, s22, 3
    s_lshr_b32 s64, s22, 2
    v_and_b32 v13, 31, v1
    v_lshrrev_b32 v14, 5, v1
    v_bfe_u32 v15, v1, 1, 3
    v_xor_b32 v2, v14, v15
    v_lshlrev_b32 v2, 4, v2
    v_lshl_add_u32 v2, v13, 7, v2
    s_lshl_b32 s52, s63, 13
    v_add_u32 v2, s52, v2
    v_xor_b32 v3, 32, v2
    v_xor_b32 v4, 64, v2
    v_xor_b32 v5, 96, v2
    v_bfe_u32 v15, v1, 2, 2
    v_lshlrev_b32 v7, 3, v14
    v_add_u32 v7, v7, v15
    v_mul_u32_u24 v8, 40, v7
    v_lshlrev_b32 v7, 7, v7
    v_lshrrev_b32 v16, 1, v15
    v_xor_b32 v16, s64, v16
    v_lshl_add_u32 v7, v16, 6, v7
    v_bfe_u32 v16, v1, 4, 1
    v_and_b32 v17, 3, v1
    v_lshlrev_b32 v16, 5, v16
    v_lshl_add_u32 v16, v17, 3, v16
    v_add_u32 v7, v7, v16
    v_add_u32 v8, v8, v16
    v_add_u32 v7, {WB}, v7
    v_add_u32 v8, {WB+8192}, v8
    s_mov_b32 s44, 0
    s_mov_b32 s45, 0
    s_mov_b32 s46, 0
    s_mov_b32 s66, 0
    """)
    a.c("v2..v5 x frag addr for the 4 k steps of a pair, v7 W frag addr, v8 S frag addr; s63=rp s64=cp")
    for r in range(64, 144):
        a(f"v_mov_b32 v{r}, 0")
    a("s_waitcnt lgkmcnt(0)")
    srd(a, 36, 18, 19, WS_SIZE)
    a(f"""
    s_cmp_ge_u32 s23, 4
    s_cbranch_scc1 {L}_plain
    s_cmp_ge_u32 s22, 4
    s_cbranch_scc1 {L}_plain
    s_cmp_ge_i32 s23, 2
    s_cbranch_scc1 {L}_modeV
    s_branch {L}_modeK
    """)
    XA = [16, 36]
    XC = [56, 57, 58, 59]
    def xaddrs():
        return [f"v_add_u32 v{XC[j]}, s45, v{2+j}" for j in range(4)] + \
               [f"s_add_u32 s45, s45, {XSL}", f"s_cmp_ge_u32 s45, {WB}", "s_cselect_b32 s45, 0, s45"]
    def waddrs(extra):
        return ["v_add_u32 v11, s44, v7"] + (["v_add_u32 v12, s44, v8"] if extra else []) + \
               [f"s_add_u32 s44, s44, {WSL}", f"s_cmp_ge_u32 s44, {4*WSL}", "s_cselect_b32 s44, 0, s44"]
    def read_list(j, extra):
        ks = j & 1
        b = XA[ks]
        xa = XC[j]
        l = [f"ds_read_b128 {vr(b,4)}, v{xa}",
             f"ds_read_b64_tr_b16 {vr(b+8,2)}, v11 offset:{ks*2048}",
             f"ds_read_b64_tr_b16 {vr(b+10,2)}, v11 offset:{ks*2048+512}",
             f"ds_read_b64_tr_b16 {vr(b+12,2)}, v11 offset:{4096+ks*2048}",
             f"ds_read_b64_tr_b16 {vr(b+14,2)}, v11 offset:{4096+ks*2048+512}",
             f"ds_read_b128 {vr(b+4,4)}, v{xa} offset:4096"]
        if extra:
            l += [f"ds_read_b64_tr_b16 {vr(b+16,2)}, v12 offset:{ks*640}",
                  f"ds_read_b64_tr_b16 {vr(b+18,2)}, v12 offset:{ks*640+160}"]
        return l
    def mfma_list(ks, mode):
        b = XA[ks]
        x0, x1, wg, wu, ws = vr(b,4), vr(b+4,4), vr(b+8,4), vr(b+12,4), vr(b+16,4)
        M = "v_mfma_f32_32x32x16_bf16"
        l = [f"{M} v[64:79], {wg}, {x0}, v[64:79]",
             f"{M} v[80:95], {wu}, {x0}, v[80:95]",
             f"{M} v[96:111], {wg}, {x1}, v[96:111]",
             f"{M} v[112:127], {wu}, {x1}, v[112:127]"]
        if mode == 1:
            l.append(f"{M} v[128:143], {ws}, {x0}, v[128:143]")
        if mode == 2:
            l.append(f"{M} v[128:143], {x0}, {ws}, v[128:143]")
        return l
    def half(ml, rl, post):
        a("s_waitcnt lgkmcnt(0)")
        for i, m in enumerate(ml):
            a(m)
            for x in rl[2*i:2*i+2]: a(x)
            if i == len(ml) - 2:
                for x in post: a(x)
    for mode, tag in ((0, "plain"), (1, "modeK"), (2, "modeV")):
        ex = mode != 0
        a(f"{L}_{tag}:")
        if ex:
            a(f"s_mov_b32 s66, {mode}")
        for x in xaddrs() + waddrs(ex): a(x)
        a("s_barrier")
        for x in read_list(0, ex): a(x)
        stamp(a, 1)
        a(f".p2align 6")
        a(f"{L}_{tag}_loop:")
        half(mfma_list(0, mode), read_list(1, ex), waddrs(ex))
        a("s_barrier")
        half(mfma_list(1, mode), read_list(2, ex), [])
        half(mfma_list(0, mode), read_list(3, ex), waddrs(ex) + xaddrs())
        a("s_barrier")
        half(mfma_list(1, mode), read_list(0, ex), ["s_add_u32 s46, s46, 1", "s_cmp_lt_u32 s46, 10"])
        a(f"s_cbranch_scc1 {L}_{tag}_loop")
        a(f"s_branch {L}_epi")

    a(f"{L}_epi:")
    stamp(a, 2)
    a(f"""
    s_lshl_b32 s52, s20, 3
    s_lshl_b32 s53, s63, 1
    s_add_u32 s52, s52, s53
    s_add_u32 s52, s52, s65
    s_nop 7
    s_cmp_ge_i32 s23, 0
    s_cbranch_scc1 {L}_epiq
    """)
    a.c("s52 = global row block of acc set 0 (set 1 is s52 ^ 1)")
    C0 = -2.0 * 0.7978845608028654 * LOG2E
    C1 = C0 * 0.044715
    a(f"""
    s_waitcnt vmcnt(0) lgkmcnt(0)
    v_mov_b32 v16, {f32(C0)}
    v_mov_b32 v17, {f32(C1)}
    v_lshlrev_b32 v18, 4, v1
    s_mul_i32 s53, s52, {108*1024}
    s_lshl_b32 s54, s21, 12
    s_lshl_b32 s55, s64, 11
    s_add_u32 s53, s53, s54
    s_add_u32 s53, s53, s55
    s_add_u32 s53, s53, {WS_H}
    s_add_u32 s54, s53, {108*1024}
    """)
    for j in range(2):
        G, U = 64 + 32*j, 80 + 32*j
        for half in range(2):
            T = 20
            rs = list(range(8*half, 8*half+8))
            for i, r in enumerate(rs): a(f"v_mul_f32 v{T+i}, v{G+r}, v{G+r}")
            for i, r in enumerate(rs): a(f"v_fma_f32 v{T+i}, v{T+i}, v17, v16")
            for i, r in enumerate(rs): a(f"v_mul_f32 v{T+i}, v{G+r}, v{T+i}")
            for i, r in enumerate(rs): a(f"v_exp_f32 v{T+i}, v{T+i}")
            for i, r in enumerate(rs): a(f"v_mul_f32 v{U+r}, v{G+r}, v{U+r}")
            for i, r in enumerate(rs): a(f"v_add_f32 v{T+i}, 1.0, v{T+i}")
            for i, r in enumerate(rs): a(f"v_rcp_f32 v{T+i}, v{T+i}")
            a("s_nop 0")
            for i, r in enumerate(rs): a(f"v_mul_f32 v{T+i}, v{U+r}, v{T+i}")
            O = 28 + 4*(2*j+half)
            for i in range(4): a(f"v_cvt_pk_bf16_f32 v{O+i}, v{T+2*i}, v{T+2*i+1}")
            a(f"buffer_store_dwordx4 {vr(O,4)}, v18, s[36:39], s{53+j} offen offset:{1024*half}")
    a(f"s_branch {L}_fin")

    a(f"{L}_epiq:")
    a(f"""
    s_waitcnt vmcnt(0) lgkmcnt(0)
    v_mov_b32 v20, {f32(QSCALE)}
    v_and_b32 v21, 31, v1
    v_lshrrev_b32 v22, 5, v1
    s_lshl_b32 s53, s23, 7
    s_lshl_b32 s54, s64, 5
    s_add_u32 s53, s53, s54
    v_lshl_add_u32 v22, v22, 2, s53
    v_lshlrev_b32 v23, 4, v21
    v_lshlrev_b32 v24, 3, v21
    v_add_u32 v24, 1024, v24
    s_mul_i32 s54, s52, 40960
    s_add_u32 s54, s54, {WS_Q}
    s_xor_b32 s55, s52, 1
    s_mul_i32 s55, s55, 40960
    s_add_u32 s55, s55, {WS_Q}
    s_movk_i32 s56, 3277
    s_movk_i32 s57, 1280
    """)
    for T in range(2):
        for q in range(4):
            a(f"""
            v_add_u32 v25, {64*T+8*q}, v22
            v_mul_u32_u24 v26, s56, v25
            v_lshrrev_b32 v26, 16, v26
            v_mul_u32_u24 v27, 20, v26
            v_sub_u32 v27, v25, v27
            v_bfe_u32 v28, v27, 2, 1
            v_lshl_add_u32 v28, v28, 9, v23
            v_and_b32 v29, 8, v27
            v_add_u32 v28, v28, v29
            v_cmp_eq_u32 vcc, 16, v27
            s_nop 1
            v_cndmask_b32 v28, v28, v24, vcc
            v_mad_u32_u24 v28, v26, s57, v28
            """)
            for j in range(2):
                A = 64 + 32*j + 16*T + 4*q
                for i in range(4): a(f"v_mul_f32 v{A+i}, v20, v{A+i}")
                a(f"v_cvt_pk_bf16_f32 v{30+2*j}, v{A}, v{A+1}")
                a(f"v_cvt_pk_bf16_f32 v{31+2*j}, v{A+2}, v{A+3}")
                a(f"buffer_store_dwordx2 {vr(30+2*j,2)}, v28, s[36:39], s{54+j} offen")
            a("s_nop 0")
    a(f"""
    s_cmp_eq_u32 s66, 2
    s_cbranch_scc1 {L}_epiv
    s_cmp_lg_u32 s66, 1
    s_cbranch_scc1 {L}_fin
    """)
    E = 128
    a(f"""
    s_mul_i32 s53, s52, 3072
    s_add_u32 s53, s53, {WS_KV}
    v_lshlrev_b32 v16, 4, v1
    """)
    for i in range(4): a(f"v_cvt_pk_bf16_f32 v{20+i}, v{E+2*i}, v{E+2*i+1}")
    a(f"buffer_store_dwordx4 v[20:23], v16, s[36:39], s53 offen")
    a(f"v_cvt_pk_bf16_f32 v24, v{E+8}, v{E+9}")
    a(f"v_cvt_pk_bf16_f32 v25, v{E+10}, v{E+11}")
    a("v_mov_b32 v26, 0x3f803f80")
    a("v_mov_b32 v27, 0x00003f80")
    a(f"v_mul_f32 v30, v{E}, v{E}")
    for i in range(1, 8): a(f"v_fmac_f32 v30, v{E+i}, v{E+i}")
    a(f"v_mul_f32 v31, v{E+8}, v{E+8}")
    for i in range(9, 12): a(f"v_fmac_f32 v31, v{E+i}, v{E+i}")
    a(f"""
    v_cmp_gt_u32 vcc, 32, v1
    s_nop 1
    v_cndmask_b32 v31, 0, v31, vcc
    v_add_f32 v30, v30, v31
    v_mov_b32 v31, v30
    s_nop 1
    v_permlane32_swap_b32 v30, v31
    s_nop 1
    v_add_f32 v30, v30, v31
    """)
    dpp_max32(a, 30)
    a(f"""
    s_lshl_b32 s54, s52, 2
    s_add_u32 s54, s54, {WS_KMAX}
    v_mov_b32 v17, 0
    s_mov_b32 exec_hi, 0
    buffer_store_dwordx4 v[24:27], v16, s[36:39], s53 offen offset:1024
    s_mov_b32 exec_lo, 0x80000000
    buffer_store_dword v30, v17, s[36:39], s54 offen
    s_branch {L}_fin
    """)
    a(f"{L}_epiv:")
    a(f"""
    s_mul_i32 s53, s52, 3072
    s_add_u32 s53, s53, {WS_KV+1536}
    v_and_b32 v17, 31, v1
    v_lshrrev_b32 v18, 5, v1
    v_mul_u32_u24 v18, 384, v18
    v_lshl_add_u32 v16, v17, 4, v18
    v_mov_b32 v19, 0x3f803f80
    v_cmp_eq_u32 vcc, 20, v17
    """)
    for i in range(8): a(f"v_cvt_pk_bf16_f32 v{20+i}, v{E+2*i}, v{E+2*i+1}")
    for i in range(8): a(f"v_cndmask_b32 v{20+i}, v{20+i}, v19, vcc")
    a(f"""
    v_cmp_gt_u32 vcc, 24, v17
    s_nop 1
    s_and_b64 exec, exec, vcc
    buffer_store_dwordx4 v[20:23], v16, s[36:39], s53 offen
    buffer_store_dwordx4 v[24:27], v16, s[36:39], s53 offen offset:768
    """)
    a(f"{L}_fin:")
    stamp_out(a, 3, 0)
    a(f"{L}_end:")
    a("s_endpgm")
    kernel_desc(a, name, 144, 100)
```

```python
from common import *
CH = 12288
GB = 3 * CH
GSL = 24576
KV_LDS = GB + 3 * GSL
M = "v_mfma_f32_32x32x16_bf16"

QA1, QA2, QB1, QB2 = 12, 16, 20, 24
KVB = [28, 44]
SA, SB, OA, OB, PA, PB = 64, 80, 96, 112, 128, 136

def split3(a, m, d0, d1, t0, t1):
    a(f"""
    v_and_b32 v{t0}, 0xffff0000, v{m}
    v_sub_f32 v{t1}, v{m}, v{t0}
    v_lshrrev_b32 v{d0}, 16, v{t0}
    v_and_b32 v{t0}, 0xffff0000, v{t1}
    v_or_b32 v{d0}, v{d0}, v{t0}
    v_sub_f32 v{t1}, v{t1}, v{t0}
    v_lshrrev_b32 v{d1}, 16, v{t1}
    v_xor_b32 v{d0}, 0x80008000, v{d0}
    v_xor_b32 v{d1}, 0x8000, v{d1}
    """)

def exp_groups(S, P):
    e = lambda i: f"v_exp_f32 v{S+i}, v{S+i}"
    c = lambda j: f"v_cvt_pk_bf16_f32 v{P+j}, v{S+2*j}, v{S+2*j+1}"
    return [[e(0), e(1), e(2), e(3), c(0)],
            [e(4), e(5), c(1), e(6), e(7), c(2)],
            [e(8), e(9), c(3), e(10), e(11), c(4)],
            [e(12), e(13), c(5), e(14), e(15), c(6), c(7)]]

def slot(a, S, P, mf, pre=(), rd=None):
    g = exp_groups(S, P)
    for p in pre: a(p)
    for i in range(4):
        a(mf[i])
        if rd: a(rd[i])
        for x in g[i]: a(x)

def qk(Sd, kb, q1, q2):
    return [f"{M} {vr(Sd,16)}, {vr(kb,4)}, {vr(q1,4)}, 0",
            f"{M} {vr(Sd,16)}, {vr(kb+4,4)}, {vr(q2,4)}, {vr(Sd,16)}"]
def pv(O, kb, P):
    return [f"{M} {vr(O,16)}, {vr(kb+8,4)}, {vr(P,4)}, {vr(O,16)}",
            f"{M} {vr(O,16)}, {vr(kb+12,4)}, {vr(P+4,4)}, {vr(O,16)}"]


def gen_gwave(a, L):
    a(f"""
    {L}_gwave:
    s_and_b32 s16, s16, 3
    v_lshlrev_b32 v2, 4, v1
    s_mul_i32 s24, s16, 3072
    s_add_u32 s20, s24, {WS_KV}
    s_mov_b32 s21, 0
    s_cmp_ge_u32 s32, 15
    s_cselect_b32 s33, 1, 0
    s_cselect_b32 s34, 15, 0
    s_sub_u32 s34, s32, s34
    s_lshl_b32 s35, s31, 1
    s_add_u32 s33, s33, s35
    s_mul_i32 s35, s34, 13
    s_lshr_b32 s35, s35, 6
    s_mul_i32 s36, s35, 5
    s_sub_u32 s34, s34, s36
    """)
    a.c("s33 = row group (128 rows), s34 = col group (128 cols), s35 = k split; s32 >= 30: no tile")
    a(f"""
    s_lshl_b32 s36, s33, 2
    s_add_u32 s36, s36, s16
    s_mul_i32 s36, s36, 108
    s_mul_i32 s37, s35, 36
    s_add_u32 s36, s36, s37
    s_lshl_b32 s36, s36, 10
    s_add_u32 s40, s36, {WS_H}
    s_mul_i32 s41, s35, {576*1280}
    s_mul_i32 s36, s16, {12*1280}
    s_add_u32 s41, s41, s36
    s_lshl_b32 s36, s34, 8
    s_add_u32 s41, s41, s36
    v_lshrrev_b32 v3, 4, v1
    v_lshlrev_b32 v4, 2, v3
    v_and_b32 v5, 15, v1
    v_xor_b32 v4, v4, v5
    s_movk_i32 s36, 1280
    v_mul_u32_u24 v3, s36, v3
    v_lshl_add_u32 v3, v4, 4, v3
    v_add_u32 v4, {5120-1024}, v3
    v_add_u32 v5, {2*(5120-1024)}, v3
    s_add_u32 s42, s24, {GB}
    s_add_u32 s43, s24, {GB+12288}
    s_mov_b32 s44, 0
    s_mov_b32 s45, 0
    s_mov_b32 s30, 0
    s_mov_b32 s46, 0
    s_waitcnt lgkmcnt(0)
    """)
    srd(a, 12, 4, 5, WS_KV + 64*3072)
    srd(a, 8, 4, 5, WS_SIZE)
    srd(a, 48, 4, 5, WS_SIZE)
    srd(a, 52, 6, 7, 2211840)
    a(f"""
    s_cmp_lt_u32 s32, 30
    s_cselect_b32 s47, 12, 0
    """)
    a.c("s47 = number of G stages for this WG; s46 = stages issued")
    def kv():
        a(f"""
        s_add_u32 m0, s21, s24
        s_add_u32 s21, s21, {CH}
        buffer_load_dwordx4 v2, s[12:15], s20 offen lds
        buffer_load_dwordx4 v2, s[12:15], s20 offen offset:1024 lds
        buffer_load_dwordx4 v2, s[12:15], s20 offen offset:2048 lds
        s_add_u32 s20, s20, {CH}
        s_cmp_ge_u32 s21, {3*CH}
        s_cselect_b32 s21, 0, s21
        """)
    def gd():
        a(f"""
        s_cmp_lt_u32 s46, s47
        s_cselect_b32 s50, {WS_SIZE}, 0
        s_cselect_b32 s54, 2211840, 0
        s_add_u32 m0, s44, s42
        s_add_u32 s46, s46, 1
        buffer_load_dwordx4 v2, s[48:51], s40 offen lds
        buffer_load_dwordx4 v2, s[48:51], s40 offen offset:1024 lds
        buffer_load_dwordx4 v2, s[48:51], s40 offen offset:2048 lds
        s_add_u32 m0, s44, s43
        s_add_u32 s40, s40, 3072
        buffer_load_dwordx4 v3, s[52:55], s41 offen lds
        buffer_load_dwordx4 v4, s[52:55], s41 offen offset:1024 lds
        buffer_load_dwordx4 v5, s[52:55], s41 offen offset:2048 lds
        s_add_u32 s41, s41, {48*1280}
        s_add_u32 s44, s44, {GSL}
        s_cmp_ge_u32 s44, {3*GSL}
        s_cselect_b32 s44, 0, s44
        """)
    kv(); kv(); gd(); gd()
    a(f"""
    s_and_b32 s36, s16, 1
    s_lshr_b32 s37, s16, 1
    s_mul_i32 s38, s36, 6144
    s_add_u32 s38, s38, {GB}
    v_add_u32 v6, s38, v2
    v_lshrrev_b32 v8, 5, v1
    v_bfe_u32 v9, v1, 2, 2
    v_lshl_add_u32 v8, v8, 2, v9
    v_lshlrev_b32 v8, 8, v8
    s_lshl_b32 s38, s37, 1
    v_xor_b32 v9, s38, v9
    v_lshl_add_u32 v8, v9, 6, v8
    v_bfe_u32 v9, v1, 4, 1
    v_lshl_add_u32 v8, v9, 5, v8
    v_and_b32 v9, 3, v1
    v_lshl_add_u32 v8, v9, 3, v8
    v_add_u32 v7, {GB+12288}, v8
    v_xor_b32 v8, 64, v7
    """)
    for r in range(64, 128): a(f"v_mov_b32 v{r}, 0")
    a(f"""
    s_waitcnt vmcnt(15)
    s_barrier
    s_waitcnt vmcnt(6)
    {L}_gloop:
    s_barrier
    """)
    kv(); gd()
    a(f"""
    s_cmp_ge_u32 s30, s47
    s_cbranch_scc1 {L}_gskip
    v_add_u32 v10, s45, v6
    v_add_u32 v11, s45, v7
    v_add_u32 v12, s45, v8
    s_add_u32 s45, s45, {GSL}
    s_cmp_ge_u32 s45, {3*GSL}
    s_cselect_b32 s45, 0, s45
    """)
    FB = [16, 32]
    def rl(ks):
        b = FB[ks & 1]
        return [f"ds_read_b128 {vr(b,4)}, v10 offset:{ks*1024}",
                f"ds_read_b64_tr_b16 {vr(b+8,2)}, v11 offset:{ks*4096}",
                f"ds_read_b64_tr_b16 {vr(b+10,2)}, v11 offset:{ks*4096+2048}",
                f"ds_read_b64_tr_b16 {vr(b+12,2)}, v12 offset:{ks*4096}",
                f"ds_read_b64_tr_b16 {vr(b+14,2)}, v12 offset:{ks*4096+2048}",
                f"ds_read_b128 {vr(b+4,4)}, v10 offset:{ks*1024+3072}"]
    def ml(ks):
        b = FB[ks & 1]
        x0, x1, w0, w1 = vr(b,4), vr(b+4,4), vr(b+8,4), vr(b+12,4)
        return [f"{M} v[64:79], {w0}, {x0}, v[64:79]", f"{M} v[80:95], {w1}, {x0}, v[80:95]",
                f"{M} v[96:111], {w0}, {x1}, v[96:111]", f"{M} v[112:127], {w1}, {x1}, v[112:127]"]
    for x in rl(0): a(x)
    for ks in range(3):
        a("s_waitcnt lgkmcnt(0)")
        r = rl(ks + 1) if ks < 2 else []
        for i, m in enumerate(ml(ks)):
            a(m)
            for x in r[2*i:2*i+2]: a(x)
    a(f"""
    s_add_u32 s36, s30, 1
    s_cmp_lg_u32 s36, s47
    s_cbranch_scc1 {L}_gskip
    """)
    a(f"""
    s_lshl_b32 s36, s35, 6
    s_lshl_b32 s37, s33, 2
    s_add_u32 s36, s36, s37
    s_and_b32 s37, s16, 1
    s_lshl_b32 s37, s37, 1
    s_add_u32 s36, s36, s37
    s_mul_i32 s36, s36, 40
    s_lshl_b32 s37, s34, 3
    s_add_u32 s36, s36, s37
    s_lshr_b32 s37, s16, 1
    s_lshl_b32 s37, s37, 2
    s_add_u32 s36, s36, s37
    s_lshl_b32 s36, s36, 10
    s_add_u32 s36, s36, {WS_B}
    s_add_u32 s37, s36, 40960
    s_nop 7
    """)
    for u in range(4):
        A = 64 + 16*u
        for qp in range(2):
            O = 16 + 4*((2*u+qp) % 8)
            for i in range(4):
                a(f"v_cvt_pk_bf16_f32 v{O+i}, v{A+8*qp+2*i}, v{A+8*qp+2*i+1}")
            a(f"buffer_store_dwordx4 {vr(O,4)}, v2, s[8:11], s{36 + (u>>1)} offen offset:{(u&1)*2048 + qp*1024}")
    a(f"""
    s_waitcnt vmcnt(0)
    {L}_gskip:
    s_add_u32 s30, s30, 1
    s_cmp_lt_u32 s30, 16
    s_waitcnt vmcnt(6)
    s_cbranch_scc1 {L}_gloop
    s_endpgm
    """)

def gen_k2(a, name):
    kernel_head(a, name)
    L = name
    a(f"""
    s_cmp_ge_u32 s2, 256
    s_cbranch_scc1 {L}_end
    s_load_dwordx2 s[4:5], s[0:1], 96
    s_load_dwordx2 s[6:7], s[0:1], 64
    """)
    stamp(a, 0)
    a(f"""
    v_lshrrev_b32 v2, 6, v0
    v_and_b32 v1, 63, v0
    v_readfirstlane_b32 s16, v2
    s_and_b32 s31, s2, 7
    s_lshr_b32 s32, s2, 3
    s_lshl_b32 s17, s31, 3
    s_lshr_b32 s18, s32, 2
    s_add_u32 s17, s17, s18
    s_and_b32 s18, s32, 3
    s_lshl_b32 s18, s18, 3
    s_cmp_ge_u32 s16, 4
    s_cbranch_scc1 {L}_gwave
    s_setprio {int(os.environ.get("APRIO", "1"))}
    """)
    a.c("s16=wave s17=rb s18=first head of WG")
    a(f"""
    v_lshlrev_b32 v2, 4, v1
    v_and_b32 v9, 31, v1
    v_lshrrev_b32 v10, 5, v1
    v_mov_b32 v3, v2
    v_lshlrev_b32 v4, 4, v9
    v_add_u32 v4, 1024, v4
    v_subrev_u32 v11, 4, v9
    v_cmp_lt_u32 vcc, 23, v9
    s_nop 1
    v_cndmask_b32 v5, v9, v11, vcc
    v_subrev_u32 v11, 12, v9
    v_cmp_lt_u32 vcc, 27, v9
    s_nop 1
    v_cndmask_b32 v5, v5, v11, vcc
    v_mul_u32_u24 v11, 384, v10
    v_lshl_add_u32 v5, v5, 4, v11
    v_add_u32 v5, 1536, v5
    s_lshl_b32 s19, s16, 1
    s_add_u32 s18, s18, s19
    s_mul_i32 s22, s17, 40960
    s_mul_i32 s23, s18, 1280
    s_add_u32 s22, s22, s23
    s_add_u32 s22, s22, {WS_Q}
    s_mul_i32 s24, s16, 3072
    s_add_u32 s20, s24, {WS_KV}
    s_mov_b32 s21, 0
    v_lshlrev_b32 v6, 3, v9
    v_lshlrev_b32 v7, 2, v1
    s_mov_b32 s25, {WS_KMAX}
    s_waitcnt lgkmcnt(0)
    """)
    a.c("s18 = head of q-block a; s22 = Q image offset; s24 = wave part of chunk; s20 = dma src; s21 = dma slot")
    srd(a, 8, 4, 5, WS_SIZE)
    a(f"""
    buffer_load_dword v144, v7, s[8:11], s25 offen
    buffer_load_dwordx4 {vr(QA1,4)}, v2, s[8:11], s22 offen
    buffer_load_dwordx2 {vr(QA2,2)}, v6, s[8:11], s22 offen offset:1024
    buffer_load_dwordx4 {vr(QB1,4)}, v2, s[8:11], s22 offen offset:1280
    buffer_load_dwordx2 {vr(QB2,2)}, v6, s[8:11], s22 offen offset:2304
    """)
    for r in list(range(OA, OA+32)) + list(range(PB, PB+8)) + list(range(KVB[1]+8, KVB[1]+16)):
        a(f"v_mov_b32 v{r}, 0")
    a("s_waitcnt vmcnt(0)")
    for sh in (1, 2, 4, 8):
        a("s_nop 1")
        a(f"v_max_f32_dpp v144, v144, v144 row_shr:{sh} row_mask:0xf bank_mask:0xf")
    a("s_nop 1")
    a("v_max_f32_dpp v144, v144, v144 row_bcast:15 row_mask:0xa bank_mask:0xf")
    a("s_nop 1")
    a("v_max_f32_dpp v144, v144, v144 row_bcast:31 row_mask:0xc bank_mask:0xf")
    a("s_nop 1")
    a("v_readlane_b32 s26, v144, 63")
    a("v_cmp_gt_u32 s[28:29], 32, v1")
    for (q1, q2) in ((QA1, QA2), (QB1, QB2)):
        a(f"""
        v_cndmask_b32 v{q2}, 0, v{q2}, s[28:29]
        v_cndmask_b32 v{q2+1}, 0, v{q2+1}, s[28:29]
        v_mov_b32 v145, 0
        v_dot2_f32_bf16 v145, v{q1}, v{q1}, v145
        v_dot2_f32_bf16 v145, v{q1+1}, v{q1+1}, v145
        v_dot2_f32_bf16 v145, v{q1+2}, v{q1+2}, v145
        v_dot2_f32_bf16 v145, v{q1+3}, v{q1+3}, v145
        v_dot2_f32_bf16 v145, v{q2}, v{q2}, v145
        v_dot2_f32_bf16 v145, v{q2+1}, v{q2+1}, v145
        s_nop 3
        v_mov_b32 v146, v145
        s_nop 1
        v_permlane32_swap_b32 v145, v146
        s_nop 1
        v_add_f32 v145, v145, v146
        v_mul_f32 v145, s26, v145
        v_sqrt_f32 v145, v145
        s_nop 0
        v_mul_f32 v145, {f32(1.02)}, v145
        """)
        split3(a, 145, q2+2, q2+3, 146, 147)
        a(f"""
        v_cndmask_b32 v{q2+2}, 0, v{q2+2}, s[28:29]
        v_cndmask_b32 v{q2+3}, 0, v{q2+3}, s[28:29]
        """)
    a(f"""
    s_barrier
    ds_read_b128 {vr(KVB[0],4)}, v3
    ds_read_b128 {vr(KVB[0]+4,4)}, v4
    ds_read_b128 {vr(KVB[1],4)}, v3 offset:3072
    ds_read_b128 {vr(KVB[1]+4,4)}, v4 offset:3072
    ds_read_b128 {vr(KVB[0]+8,4)}, v5
    ds_read_b128 {vr(KVB[0]+12,4)}, v5 offset:768
    v_mov_b32 v6, v3
    v_mov_b32 v7, v4
    v_mov_b32 v8, v5
    s_mov_b32 s27, {CH}
    s_mov_b32 s30, 0
    s_waitcnt lgkmcnt(4)
    """)
    for x in qk(SA, KVB[0], QA1, QA2): a(x)
    a("s_nop 11")
    stamp(a, 1)
    a(".p2align 6")
    a(f"{L}_loop:")
    for t in range(4):
        cur, nxt = KVB[t & 1], KVB[(t + 1) & 1]
        slot(a, SA, PA, qk(SB, cur, QB1, QB2) + pv(OB, nxt, PB))
        pre = []
        if t == 0:
            a("s_waitcnt lgkmcnt(0)")
            if os.environ.get("NOBAR","0") != "1": a("s_barrier")
        else:
            pre.append("s_waitcnt lgkmcnt(0)")
        if t == 2:
            pre += ["v_add_u32 v6, s27, v3", "v_add_u32 v7, s27, v4"]
        if t == 3:
            pre += ["v_add_u32 v8, s27, v5",
                    f"s_add_u32 s27, s27, {CH}", f"s_cmp_ge_u32 s27, {3*CH}", "s_cselect_b32 s27, 0, s27"]
        ko = ((t + 2) & 3) * 3072
        vo = ((t + 1) & 3) * 3072
        rd = [f"ds_read_b128 {vr(cur,4)}, v6 offset:{ko}",
                f"ds_read_b128 {vr(cur+4,4)}, v7 offset:{ko}",
                f"ds_read_b128 {vr(nxt+8,4)}, v8 offset:{vo}",
                f"ds_read_b128 {vr(nxt+12,4)}, v8 offset:{vo+768}"]
        slot(a, SB, PB, qk(SA, nxt, QA1, QA2) + pv(OA, cur, PA), pre, rd)
    a(f"""
    s_add_u32 s30, s30, 1
    s_cmp_lt_u32 s30, 16
    s_cbranch_scc1 {L}_loop
    s_nop 1
    """)
    for x in pv(OB, KVB[1], PB): a(x)
    stamp(a, 2)
    a("s_waitcnt vmcnt(0) lgkmcnt(0)")
    a("s_nop 15")
    a(f"""
    v_and_b32 v9, 31, v1
    v_lshrrev_b32 v10, 5, v1
    v_lshlrev_b32 v9, 4, v9
    s_mul_i32 s22, s17, 40960
    s_add_u32 s22, s22, {WS_O}
    s_mul_i32 s23, s18, 20
    v_lshl_add_u32 v10, v10, 2, s23
    """)
    for blk, O in enumerate((OA, OB)):
        a(f"""
        v_mov_b32 v144, v{O+8}
        v_mov_b32 v145, v{O+8}
        s_nop 1
        v_permlane32_swap_b32 v144, v145
        s_nop 1
        v_rcp_f32 v145, v145
        s_nop 0
        """)
        for q in range(3):
            for i in range(4): a(f"v_mul_f32 v{O+4*q+i}, v145, v{O+4*q+i}")
            a(f"""
            v_cvt_pk_bf16_f32 v{146+2*q}, v{O+4*q}, v{O+4*q+1}
            v_cvt_pk_bf16_f32 v{147+2*q}, v{O+4*q+2}, v{O+4*q+3}
            v_add_u32 v152, {20*blk+8*q}, v10
            v_lshrrev_b32 v153, 4, v152
            v_lshl_add_u32 v153, v153, 10, v9
            v_bfe_u32 v154, v152, 2, 1
            v_lshl_add_u32 v153, v154, 9, v153
            v_and_b32 v154, 8, v152
            v_add_u32 v{155+q}, v153, v154
            """)
            if q == 2:
                a("s_mov_b32 exec_hi, 0")
            a(f"buffer_store_dwordx2 {vr(146+2*q,2)}, v{155+q}, s[8:11], s22 offen")
            if q == 2:
                a("s_mov_b64 exec, -1")
        a("s_nop 0")
    a(f"s_branch {L}_fin")
    gen_gwave(a, L)
    a(f"{L}_fin:")
    stamp_out(a, 3, 1)
    a(f"{L}_end:")
    a("s_endpgm")
    kernel_desc(a, name, 160, 100)
```

```python
from common import *
M = "v_mfma_f32_32x32x16_bf16"
SLOT = 6144
def gen_k3(a, name):
    kernel_head(a, name)
    L = name
    a(f"""
    s_cmp_ge_u32 s2, 256
    s_cbranch_scc1 {L}_end
    s_load_dwordx2 s[4:5], s[0:1], 32
    s_load_dwordx2 s[6:7], s[0:1], 64
    s_load_dwordx2 s[8:9], s[0:1], 80
    s_load_dwordx2 s[10:11], s[0:1], 96
    """)
    stamp(a, 0)
    a(f"""
    v_lshrrev_b32 v2, 6, v0
    v_and_b32 v1, 63, v0
    v_readfirstlane_b32 s16, v2
    s_and_b32 s17, s2, 7
    s_lshl_b32 s17, s17, 3
    s_lshr_b32 s18, s2, 5
    s_add_u32 s17, s17, s18
    s_bfe_u32 s18, s2, 0x20003
    """)
    a.c("s16=wave s17=rb s18=ng")
    a(f"""
    s_mul_i32 s19, s16, 5
    s_mul_i32 s21, s17, 40
    s_mov_b32 s23, 5
    s_mov_b32 s24, 819200
    s_add_u32 s21, s21, s19
    s_lshl_b32 s21, s21, 10
    s_add_u32 s40, s21, {WS_O}
    s_mul_i32 s41, s19, {16*1280}
    s_mul_i32 s42, s16, 20480
    s_waitcnt lgkmcnt(0)
    """)
    srd(a, 28, 4, 5, 819200)
    srd(a, 32, 10, 11, WS_SIZE)
    srd(a, 36, 10, 11, WS_SIZE)
    srd(a, 12, 8, 9, 2621440)
    a(f"""
    v_lshlrev_b32 v2, 4, v1
    s_mul_i32 s25, s18, 320
    s_movk_i32 s26, 3277
    s_movk_i32 s27, 1280
    """)
    for i in range(5):
        a(f"""
        v_add_u32 v8, {64*i}, v1
        v_mul_u32_u24 v9, s26, v8
        v_lshrrev_b32 v9, 16, v9
        v_mul_u32_u24 v10, 20, v9
        v_sub_u32 v10, v8, v10
        v_mul_u32_u24 v9, s27, v9
        v_lshl_add_u32 v9, v10, 4, v9
        v_add_u32 v{3+i}, s25, v9
        """)
    a(f"""
    v_lshrrev_b32 v8, 5, v1
    v_bfe_u32 v9, v1, 2, 2
    v_lshl_add_u32 v8, v8, 2, v9
    v_mul_u32_u24 v8, 320, v8
    v_bfe_u32 v9, v1, 4, 1
    v_lshl_add_u32 v8, v9, 5, v8
    v_and_b32 v9, 3, v1
    v_lshl_add_u32 v8, v9, 3, v8
    v_add_u32 v11, 1024, v8
    v_add_u32 v10, s42, v2
    v_add_u32 v11, s42, v11
    s_mov_b32 s43, 0
    s_mov_b32 s44, 0
    s_mov_b32 s45, 0
    s_mov_b32 s46, 0
    """)
    a.c("v10/v11 read bases; s43=dma slot off, s44=read slot off, s45=dma step idx, s46=loop idx")
    ACC = 64
    for r in range(ACC, ACC+80): a(f"v_mov_b32 v{r}, 0")
    def dma():
        a(f"""
        s_cmp_lt_u32 s45, s23
        s_cselect_b32 s34, {WS_SIZE}, 0
        s_cselect_b32 s30, s24, 0
        s_add_u32 s47, s42, s43
        s_mov_b32 m0, s47
        s_add_u32 s45, s45, 1
        buffer_load_dwordx4 v2, s[32:35], s40 offen lds
        s_add_u32 m0, s47, 1024
        s_add_u32 s40, s40, 1024
        """)
        for i in range(5):
            if i: a(f"s_add_u32 m0, s47, {1024*(i+1)}")
            if i: a("s_nop 0")
            a(f"buffer_load_dwordx4 v{3+i}, s[28:31], s41 offen lds")
        a(f"""
        s_add_u32 s41, s41, {16*1280}
        s_add_u32 s43, s43, {SLOT}
        s_cmp_ge_u32 s43, {3*SLOT}
        s_cselect_b32 s43, 0, s43
        """)
    FR = [16, 40]
    def reads(b):
        a(f"""
        v_add_u32 v12, s44, v10
        v_add_u32 v13, s44, v11
        s_add_u32 s44, s44, {SLOT}
        s_cmp_ge_u32 s44, {3*SLOT}
        s_cselect_b32 s44, 0, s44
        ds_read_b128 {vr(b,4)}, v12
        """)
        for cb in range(5):
            a(f"ds_read_b64_tr_b16 {vr(b+4+4*cb,2)}, v13 offset:{64*cb}")
            a(f"ds_read_b64_tr_b16 {vr(b+6+4*cb,2)}, v13 offset:{64*cb+8*320}")
    def mf(b):
        for cb in range(5):
            a(f"{M} {vr(ACC+16*cb,16)}, {vr(b+4+4*cb,4)}, {vr(b,4)}, {vr(ACC+16*cb,16)}")
    dma(); dma(); dma()
    a("s_waitcnt vmcnt(12)")
    reads(FR[0])
    stamp(a, 1)
    a(".p2align 6")
    a(f"{L}_loop:")
    for hlf in range(2):
        a("s_waitcnt vmcnt(6) lgkmcnt(0)")
        reads(FR[1-hlf])
        dma()
        mf(FR[hlf])
    a(f"""
    s_add_u32 s46, s46, 2
    s_cmp_lt_u32 s46, s23
    s_cbranch_scc1 {L}_loop
    """)
    stamp(a, 2)
    a(f"""
    s_waitcnt vmcnt(0) lgkmcnt(0)
    s_nop 15
    """)
    for it in range(20):
        a(f"ds_write_b128 v10, {vr(ACC+4*it,4)} offset:{1024*it}")
    a(f"""
    v_and_b32 v3, 31, v1
    s_lshl_b32 s19, s17, 5
    v_add_u32 v3, s19, v3
    v_lshlrev_b32 v4, 2, v3
    s_mov_b32 s20, {WS_G}
    buffer_load_dword v5, v4, s[36:39], s20 offen
    v_mul_lo_u32 v3, v3, s27
    v_lshrrev_b32 v4, 5, v1
    v_lshl_add_u32 v3, v4, 3, v3
    v_add_u32 v3, s25, v3
    s_waitcnt lgkmcnt(0)
    s_barrier
    s_mov_b32 s19, s16
    s_waitcnt vmcnt(0)
    v_sub_f32 v6, 1.0, v5
    v_cvt_pk_bf16_f32 v6, v6, v6
    v_lshlrev_b32 v6, 16, v6
    s_mul_i32 s22, s17, 40
    s_mul_i32 s21, s18, 10
    s_add_u32 s22, s22, s21
    s_lshl_b32 s22, s22, 10
    s_add_u32 s22, s22, {WS_B}
    {L}_red:
    s_lshr_b32 s20, s19, 1
    s_lshl_b32 s20, s20, 10
    s_and_b32 s21, s19, 1
    s_lshl_b32 s21, s21, 3
    s_add_u32 s20, s20, s21
    s_add_u32 s20, s20, s22
    buffer_load_dwordx2 v[48:49], v2, s[36:39], s20 offen
    s_add_u32 s20, s20, {64*40960}
    buffer_load_dwordx2 v[50:51], v2, s[36:39], s20 offen
    s_add_u32 s20, s20, {64*40960}
    buffer_load_dwordx2 v[52:53], v2, s[36:39], s20 offen
    s_lshl_b32 s20, s19, 10
    v_add_u32 v7, s20, v2
    v_add_u32 v8, 61440, v7
    v_add_u32 v9, 122880, v7
    ds_read_b128 v[16:19], v7
    ds_read_b128 v[20:23], v7 offset:20480
    ds_read_b128 v[24:27], v7 offset:40960
    ds_read_b128 v[28:31], v8
    ds_read_b128 v[32:35], v8 offset:20480
    ds_read_b128 v[36:39], v8 offset:40960
    ds_read_b128 v[40:43], v9
    ds_read_b128 v[44:47], v9 offset:20480
    s_lshl_b32 s21, s19, 4
    s_waitcnt lgkmcnt(0) vmcnt(0)
    """)
    for i in range(4):
        ex = (lambda r: f"v_lshlrev_b32 v55, 16, v{r}") if i % 2 == 0 else (lambda r: f"v_and_b32 v55, 0xffff0000, v{r}")
        a(f"""
        v_add_f32 v{16+i}, v{16+i}, v{20+i}
        v_add_f32 v{24+i}, v{24+i}, v{28+i}
        v_add_f32 v{32+i}, v{32+i}, v{36+i}
        v_add_f32 v{40+i}, v{40+i}, v{44+i}
        v_add_f32 v{16+i}, v{16+i}, v{24+i}
        v_add_f32 v{32+i}, v{32+i}, v{40+i}
        v_add_f32 v{16+i}, v{16+i}, v{32+i}
        {ex(48 + i//2).replace("v55", "v54")}
        {ex(50 + i//2)}
        v_add_f32 v54, v54, v55
        {ex(52 + i//2)}
        v_add_f32 v54, v54, v55
        v_mul_f32 v{16+i}, v5, v{16+i}
        v_fmac_f32 v{16+i}, v6, v54
        """)
    a(f"""
    v_cvt_pk_bf16_f32 v16, v16, v17
    v_cvt_pk_bf16_f32 v17, v18, v19
    buffer_store_dwordx2 v[16:17], v3, s[12:15], s21 offen
    s_add_u32 s19, s19, 8
    s_cmp_lt_u32 s19, 20
    s_cbranch_scc1 {L}_red
    """)
    stamp_out(a, 3, 2)
    a(f"""
    {L}_end:
    s_endpgm
    """)
    kernel_desc(a, name, 144, 100)
```

```python
class Asm:
    def __init__(self):
        self.lines = []
    def __call__(self, s=""):
        for l in s.split("\n"):
            l = l.strip()
            if not l:
                continue
            if l.endswith(":") or l.startswith("."):
                self.lines.append(l)
            else:
                self.lines.append("    " + l)
    def c(self, s):
        self.lines.append("    ; " + s)
    def text(self):
        return "\n".join(self.lines) + "\n"

def vr(b, n):
    return f"v[{b}:{b+n-1}]" if n > 1 else f"v{b}"
def sr(b, n):
    return f"s[{b}:{b+n-1}]" if n > 1 else f"s{b}"

import struct
def f32(x):
    return "0x%08x" % struct.unpack("<I", struct.pack("<f", x))[0]

WS_Q    = 0x0000000
WS_KV   = 0x0300000
WS_KMAX = 0x0340000
WS_G    = 0x0380000
WS_H    = 0x0400000
WS_O    = 0x0C00000
WS_O2   = 0x1A00000
WS_B    = 0x1000000
WS_F    = 0x0340000
FQ, F2, F3 = 0x8000, 0x10000, 0x18000
WS_SIZE = 0x2000000

def srd(a, d, lo, hi, size):
    a(f"s_mov_b32 s{d}, s{lo}")
    a(f"s_and_b32 s{d+1}, s{hi}, 0xffff")
    if isinstance(size, int):
        a(f"s_mov_b32 s{d+2}, {size}")
    else:
        a(f"s_mov_b32 s{d+2}, {size}")
    a(f"s_mov_b32 s{d+3}, 0x20000")

def kernel_head(a, name):
    a(".text")
    a(f".globl {name}")
    a(".p2align 8")
    a(f".type {name},@function")
    a(f"{name}:")

def kernel_desc(a, name, nv, ns, acc=None):
    acc = acc if acc is not None else ((nv + 3) // 4) * 4
    a('.section .rodata,"a"')
    a(".p2align 6")
    a(f".amdhsa_kernel {name}")
    a.lines.append(f"  .amdhsa_next_free_vgpr {nv}")
    a.lines.append(f"  .amdhsa_next_free_sgpr {ns}")
    a.lines.append(f"  .amdhsa_accum_offset {acc}")
    a.lines.append("  .amdhsa_group_segment_fixed_size 0")
    a.lines.append("  .amdhsa_kernarg_size 104")
    a.lines.append("  .amdhsa_user_sgpr_count 2")
    a.lines.append("  .amdhsa_user_sgpr_kernarg_segment_ptr 1")
    a.lines.append("  .amdhsa_system_sgpr_workgroup_id_x 1")
    a(".end_amdhsa_kernel")

import os
STAMP = os.environ.get("STAMP", "0") == "1"
TM = "s_memrealtime" if os.environ.get("RT", "0") == "1" else "s_memtime"
def stamp(a, i):
    if STAMP:
        a(f"{TM} s[{84+2*i}:{85+2*i}]")
        if i == 0: a("s_memrealtime s[76:77]")
def stamp_out(a, n, label):
    if not STAMP: return
    a("s_mov_b64 exec, -1")
    a(f"{TM} s[{84+2*n}:{85+2*n}]")
    a("s_memrealtime s[78:79]")
    a("s_load_dwordx2 s[80:81], s[0:1], 96")
    a("v_lshrrev_b32 v2, 6, v0")
    a("s_nop 0")
    a("v_readfirstlane_b32 s82, v2")
    a("s_waitcnt lgkmcnt(0)")
    a("s_lshl_b32 s83, s2, 4")
    a("s_add_u32 s83, s83, s82")
    a("s_lshl_b32 s83, s83, 6")
    a(f"s_add_u32 s83, s83, {0x1800000 + label*0x40000}")
    a("v_mov_b32 v2, s83")
    for i in range(n+1):
        a(f"v_mov_b32 v3, s{84+2*i}")
        a(f"global_store_dword v2, v3, s[80:81] offset:{4*i}")
    a("v_mov_b32 v3, s76")
    a("global_store_dword v2, v3, s[80:81] offset:56")
    a("v_mov_b32 v3, s78")
    a("global_store_dword v2, v3, s[80:81] offset:60")
```

```python
from common import *
import k1
from k2 import (M, QA1, QA2, QB1, QB2, KVB, SA, SB, OA, OB, PA, PB, split3, exp_groups, slot, qk, pv, CH)
QS = 3 * CH
GB = 47360
GSL = 24576
WOB = 40960
OST = 2 * CH
F_LDS = 163840
F_BLOCK = 640
SPIN = 1 << 20

_pc = [0]
def poll(a, L, loads, nreg=24):
    _pc[0] += 1
    T = f"{L}_poll{_pc[0]}"
    a(f"s_mov_b32 s70, {SPIN}")
    a(f"{T}:")
    for (_, _, ins) in loads: a(ins)
    a("s_waitcnt vmcnt(0)")
    a("s_mov_b64 s[72:73], 0")
    for (r, n, _) in loads:
        for k in range(0, n, 2):
            a(f"v_cmp_ne_u64 vcc, v[{r+k}:{r+k+1}], v[20:21]")
            a("s_or_b64 s[72:73], s[72:73], vcc")
    a(f"""
    s_cmp_eq_u64 s[72:73], 0
    s_cbranch_scc1 {T}_ok
    s_sleep 2
    s_sub_u32 s70, s70, 1
    s_cmp_lg_u32 s70, 0
    s_cbranch_scc1 {T}
    {T}_ok:
    """)

def ids(a):
    a("""
    s_and_b32 s31, s2, 7
    s_lshr_b32 s32, s2, 3
    s_lshl_b32 s17, s31, 3
    s_lshr_b32 s33, s32, 2
    s_add_u32 s17, s17, s33
    """)
    a.c("s31 = xcd guess, s32 = index inside it, s17 = row block of the attention role")

def gen_fused(a, name):
    L = name
    k1.gen_k1(a, name, fused=True)
    a(f"""
    {L}_p1c_done:
    s_mov_b64 exec, -1
    s_waitcnt vmcnt(0)
    s_barrier
    """)
    stamp(a, 3)
    ids(a)
    srd(a, 8, 18, 19, WS_SIZE)
    a(f"""
    v_lshlrev_b32 v2, 4, v1
    s_cmp_ge_u32 s22, 4
    s_cbranch_scc1 {L}_gwave
    """)
    a(f"""
    s_setprio 1
    s_and_b32 s16, s32, 3
    s_lshl_b32 s16, s16, 3
    s_lshl_b32 s33, s22, 1
    s_add_u32 s16, s16, s33
    v_and_b32 v9, 31, v1
    v_lshrrev_b32 v10, 5, v1
    v_mov_b32 v3, v2
    v_lshlrev_b32 v4, 4, v9
    v_add_u32 v4, 1024, v4
    v_subrev_u32 v11, 4, v9
    v_cmp_lt_u32 vcc, 23, v9
    s_nop 1
    v_cndmask_b32 v5, v9, v11, vcc
    v_subrev_u32 v11, 12, v9
    v_cmp_lt_u32 vcc, 27, v9
    s_nop 1
    v_cndmask_b32 v5, v5, v11, vcc
    v_mul_u32_u24 v11, 384, v10
    v_lshl_add_u32 v5, v5, 4, v11
    v_add_u32 v5, 1536, v5
    s_mul_i32 s33, s22, 40
    v_lshl_add_u32 v10, v10, 2, s33
    v_lshlrev_b32 v9, 4, v9
    v_lshlrev_b32 v146, 2, v1
    v_mov_b32 v6, v3
    v_mov_b32 v7, v4
    v_mov_b32 v8, v5
    s_mov_b32 s27, {CH}
    s_mov_b32 s30, 0
    v_cmp_gt_u32 s[28:29], 32, v1
    """)
    a.c("s16 = head of q-block a; v10 = first local column of this lane's groups, v9 = 16 * row")
    def grp_addr(d, c):
        a(f"""
        v_add_u32 v152, {c}, v10
        v_lshrrev_b32 v153, 4, v152
        v_lshl_add_u32 v153, v153, 10, v9
        v_bfe_u32 v154, v152, 2, 1
        v_lshl_add_u32 v153, v154, 9, v153
        v_and_b32 v154, 8, v152
        v_add_u32 v{d}, v153, v154
        """)
    GA = [60, 61, 62, 63, 158, 159]
    for blk in range(2):
        for q in range(3): grp_addr(GA[3*blk+q], 20*blk + 8*q)
    for r in list(range(OA, OA+32)) + list(range(PB, PB+8)) + list(range(KVB[1]+8, KVB[1]+16)):
        a(f"v_mov_b32 v{r}, 0")
    a(f"""
    s_barrier
    ds_read_b32 v146, v146 offset:{QS+10240}
    ds_read_b64 {vr(QA1,2)}, v60 offset:{QS}
    ds_read_b64 {vr(QA1+2,2)}, v61 offset:{QS}
    ds_read_b64 {vr(QA2,2)}, v62 offset:{QS}
    ds_read_b64 {vr(QB1,2)}, v63 offset:{QS}
    ds_read_b64 {vr(QB1+2,2)}, v158 offset:{QS}
    ds_read_b64 {vr(QB2,2)}, v159 offset:{QS}
    ds_read_b128 {vr(KVB[0],4)}, v3
    ds_read_b128 {vr(KVB[0]+4,4)}, v4
    ds_read_b128 {vr(KVB[1],4)}, v3 offset:3072
    ds_read_b128 {vr(KVB[1]+4,4)}, v4 offset:3072
    ds_read_b128 {vr(KVB[0]+8,4)}, v5
    ds_read_b128 {vr(KVB[0]+12,4)}, v5 offset:768
    """)
    stamp(a, 4)
    a("s_waitcnt lgkmcnt(6)")
    for i, (q1, q2) in enumerate(((QA1, QA2), (QB1, QB2))):
        t = 147 + i
        a(f"""
        v_cndmask_b32 v{q2}, 0, v{q2}, s[28:29]
        v_cndmask_b32 v{q2+1}, 0, v{q2+1}, s[28:29]
        v_mov_b32 v{t}, 0
        v_max_f32_dpp v146, v146, v146 row_shr:{1 if i == 0 else 4} row_mask:0xf bank_mask:0xf
        v_dot2_f32_bf16 v{t}, v{q1}, v{q1}, v{t}
        v_dot2_f32_bf16 v{t}, v{q1+1}, v{q1+1}, v{t}
        v_dot2_f32_bf16 v{t}, v{q1+2}, v{q1+2}, v{t}
        v_max_f32_dpp v146, v146, v146 row_shr:{2 if i == 0 else 8} row_mask:0xf bank_mask:0xf
        v_dot2_f32_bf16 v{t}, v{q1+3}, v{q1+3}, v{t}
        v_dot2_f32_bf16 v{t}, v{q2}, v{q2}, v{t}
        v_dot2_f32_bf16 v{t}, v{q2+1}, v{q2+1}, v{t}
        """)
    a(f"""
    v_max_f32_dpp v146, v146, v146 row_bcast:15 row_mask:0xa bank_mask:0xf
    v_mov_b32 v149, v147
    s_nop 0
    v_mov_b32 v150, v148
    v_max_f32_dpp v146, v146, v146 row_bcast:31 row_mask:0xc bank_mask:0xf
    s_nop 0
    v_permlane32_swap_b32 v147, v149
    v_permlane32_swap_b32 v148, v150
    v_readlane_b32 s26, v146, 63
    v_add_f32 v147, v147, v149
    v_add_f32 v148, v148, v150
    v_mul_f32 v147, s26, v147
    v_mul_f32 v148, s26, v148
    v_sqrt_f32 v147, v147
    v_sqrt_f32 v148, v148
    v_mul_f32 v147, {f32(1.02)}, v147
    v_mul_f32 v148, {f32(1.02)}, v148
    """)
    def set_shift(ma, mb):
        for m, q2 in ((ma, QA2), (mb, QB2)):
            split3(a, m, q2+2, q2+3, 149, 150)
            a(f"v_cndmask_b32 v{q2+2}, 0, v{q2+2}, s[28:29]")
            a(f"v_cndmask_b32 v{q2+3}, 0, v{q2+3}, s[28:29]")
    set_shift(147, 148)
    a("s_waitcnt lgkmcnt(0)")
    for x in qk(SA, KVB[0], QA1, QA2): a(x)
    a("s_nop 11")
    a(".p2align 6")
    a(f"{L}_aloop:")
    for t in range(4):
        cur, nxt = KVB[t & 1], KVB[(t + 1) & 1]
        slot(a, SA, PA, qk(SB, cur, QB1, QB2) + pv(OB, nxt, PB))
        pre = ["s_waitcnt lgkmcnt(0)"]
        if t == 0: pre.append("s_barrier")
        if t == 2:
            pre += ["v_add_u32 v6, s27, v3", "v_add_u32 v7, s27, v4"]
        if t == 3:
            pre += ["v_add_u32 v8, s27, v5",
                    f"s_add_u32 s27, s27, {CH}", f"s_cmp_ge_u32 s27, {3*CH}", "s_cselect_b32 s27, 0, s27"]
        ko = ((t + 2) & 3) * 3072
        vo = ((t + 1) & 3) * 3072
        rd = [f"ds_read_b128 {vr(cur,4)}, v6 offset:{ko}",
              f"ds_read_b128 {vr(cur+4,4)}, v7 offset:{ko}",
              f"ds_read_b128 {vr(nxt+8,4)}, v8 offset:{vo}",
              f"ds_read_b128 {vr(nxt+12,4)}, v8 offset:{vo+768}"]
        slot(a, SB, PB, qk(SA, nxt, QA1, QA2) + pv(OA, cur, PA), pre, rd)
    a(f"""
    s_add_u32 s30, s30, 1
    s_cmp_lt_u32 s30, 16
    s_cbranch_scc1 {L}_aloop
    s_nop 1
    """)
    for x in pv(OB, KVB[1], PB): a(x)
    stamp(a, 5)
    a(f"""
    s_mov_b32 s34, 0
    {L}_aepi:
    s_mov_b32 s35, {f32(2.0**-90)}
    s_waitcnt lgkmcnt(0)
    s_nop 11
    v_mov_b32 v144, v{OA+8}
    v_mov_b32 v145, v{OA+8}
    v_mov_b32 v146, v{OB+8}
    v_mov_b32 v147, v{OB+8}
    s_nop 0
    v_permlane32_swap_b32 v144, v145
    v_permlane32_swap_b32 v146, v147
    s_nop 0
    v_cmp_nle_f32 vcc, s35, v145
    v_cmp_nle_f32 s[36:37], s35, v147
    v_rcp_f32 v145, v145
    v_rcp_f32 v147, v147
    s_or_b64 s[36:37], vcc, s[36:37]
    s_cmp_eq_u32 s34, 0
    s_cselect_b64 s[36:37], s[36:37], 0
    s_cmp_lg_u64 s[36:37], 0
    s_cbranch_scc1 {L}_slow
    """)
    for blk, O in enumerate((OA, OB)):
        R = 145 + 2*blk
        for q in range(3):
            for i in range(4): a(f"v_mul_f32 v{O+4*q+i}, v{R}, v{O+4*q+i}")
            D = 64 + 8*blk + 2*q
            a(f"""
            v_cvt_pk_bf16_f32 v{D}, v{O+4*q}, v{O+4*q+1}
            v_cvt_pk_bf16_f32 v{D+1}, v{O+4*q+2}, v{O+4*q+3}
            """)
            if q == 2: a("s_mov_b32 exec_hi, 0")
            a(f"ds_write_b64 v{GA[3*blk+q]}, {vr(D,2)} offset:{OST}")
            if q == 2: a("s_mov_b64 exec, -1")
    a(f"""
    s_setprio 0
    s_waitcnt lgkmcnt(0)
    s_branch {L}_p3
    """)
    kb = KVB[0]
    a(f"""
    {L}_slow:
    s_mov_b32 s34, 1
    v_mov_b32 v{QA2+2}, 0
    v_mov_b32 v{QA2+3}, 0
    v_mov_b32 v{QB2+2}, 0
    v_mov_b32 v{QB2+3}, 0
    v_mov_b32 v147, 0xff800000
    v_mov_b32 v148, 0xff800000
    s_mov_b32 s36, {WS_KV}
    {L}_slow1:
    buffer_load_dwordx4 {vr(kb,4)}, v3, s[8:11], s36 offen sc1
    buffer_load_dwordx4 {vr(kb+4,4)}, v4, s[8:11], s36 offen sc1
    s_add_u32 s36, s36, 3072
    s_waitcnt vmcnt(0)
    """)
    for x in qk(SA, kb, QA1, QA2) + qk(SB, kb, QB1, QB2): a(x)
    a("s_nop 15")
    for i in range(0, 16, 2):
        a(f"v_max3_f32 v147, v{SA+i}, v{SA+i+1}, v147")
        a(f"v_max3_f32 v148, v{SB+i}, v{SB+i+1}, v148")
    a(f"""
    s_cmp_lt_u32 s36, {WS_KV + 64*3072}
    s_cbranch_scc1 {L}_slow1
    v_mov_b32 v149, v147
    v_mov_b32 v150, v148
    s_nop 1
    v_permlane32_swap_b32 v147, v149
    v_permlane32_swap_b32 v148, v150
    s_nop 1
    v_max_f32 v147, v147, v149
    v_max_f32 v148, v148, v150
    """)
    set_shift(147, 148)
    for r in range(OA, OA+32): a(f"v_mov_b32 v{r}, 0")
    a(f"""
    s_mov_b32 s36, {WS_KV}
    {L}_slow2:
    buffer_load_dwordx4 {vr(kb,4)}, v3, s[8:11], s36 offen sc1
    buffer_load_dwordx4 {vr(kb+4,4)}, v4, s[8:11], s36 offen sc1
    buffer_load_dwordx4 {vr(kb+8,4)}, v5, s[8:11], s36 offen sc1
    buffer_load_dwordx4 {vr(kb+12,4)}, v5, s[8:11], s36 offen offset:768 sc1
    s_add_u32 s36, s36, 3072
    s_waitcnt vmcnt(0)
    """)
    for x in qk(SA, kb, QA1, QA2) + qk(SB, kb, QB1, QB2): a(x)
    a("s_nop 15")
    for g in exp_groups(SA, PA) + exp_groups(SB, PB):
        for x in g: a(x)
    a("s_nop 1")
    for x in pv(OA, kb, PA) + pv(OB, kb, PB): a(x)
    a(f"""
    s_cmp_lt_u32 s36, {WS_KV + 64*3072}
    s_cbranch_scc1 {L}_slow2
    s_nop 7
    s_branch {L}_aepi
    """)

    a(f"""
    {L}_gwave:
    s_load_dwordx2 s[6:7], s[0:1], 64
    s_and_b32 s16, s22, 3
    s_mul_i32 s24, s16, 3072
    s_cmp_ge_u32 s32, 15
    s_cselect_b32 s33, 1, 0
    s_cselect_b32 s34, 15, 0
    s_sub_u32 s34, s32, s34
    s_lshl_b32 s35, s31, 1
    s_add_u32 s33, s33, s35
    s_mul_i32 s35, s34, 13
    s_lshr_b32 s35, s35, 6
    s_mul_i32 s36, s35, 5
    s_sub_u32 s34, s34, s36
    s_lshl_b32 s36, s33, 2
    s_add_u32 s36, s36, s16
    s_mul_i32 s36, s36, 108
    s_mul_i32 s37, s35, 36
    s_add_u32 s36, s36, s37
    s_lshl_b32 s36, s36, 10
    s_add_u32 s40, s36, {WS_H}
    s_mul_i32 s41, s35, {576*1280}
    s_mul_i32 s36, s16, {12*1280}
    s_add_u32 s41, s41, s36
    s_lshl_b32 s36, s34, 8
    s_add_u32 s41, s41, s36
    v_lshrrev_b32 v3, 4, v1
    v_lshlrev_b32 v4, 2, v3
    v_and_b32 v5, 15, v1
    v_xor_b32 v4, v4, v5
    s_movk_i32 s36, 1280
    v_mul_u32_u24 v3, s36, v3
    v_lshl_add_u32 v3, v4, 4, v3
    v_add_u32 v4, {5120-1024}, v3
    v_add_u32 v5, {2*(5120-1024)}, v3
    s_add_u32 s42, s24, {GB}
    s_add_u32 s43, s24, {GB+12288}
    s_mov_b32 s44, 0
    s_mov_b32 s45, 0
    s_mov_b32 s30, 0
    s_mov_b32 s46, 0
    s_cmp_lt_u32 s32, 30
    s_cselect_b32 s47, 12, 0
    s_cselect_b32 s50, {WS_SIZE}, 0
    s_cselect_b32 s54, 2211840, 0
    s_mov_b32 s48, s18
    s_and_b32 s49, s19, 0xffff
    s_mov_b32 s51, 0x20000
    s_mov_b32 s55, 0x20000
    s_mov_b32 m0, s43
    s_waitcnt lgkmcnt(0)
    s_mov_b32 s52, s6
    s_and_b32 s53, s7, 0xffff
    """)
    a.c("s33 = row group (128 rows), s34 = col group (128 cols), s35 = k split, s47 = stages of this WG")
    def gw():
        a(f"""
        buffer_load_dwordx4 v3, s[52:55], s41 offen lds
        buffer_load_dwordx4 v4, s[52:55], s41 offen offset:1024 lds
        buffer_load_dwordx4 v5, s[52:55], s41 offen offset:2048 lds
        s_add_u32 s41, s41, {48*1280}
        """)
    def gh():
        a(f"""
        buffer_load_dwordx4 v2, s[48:51], s40 offen sc1 lds
        buffer_load_dwordx4 v2, s[48:51], s40 offen offset:1024 sc1 lds
        buffer_load_dwordx4 v2, s[48:51], s40 offen offset:2048 sc1 lds
        s_add_u32 s40, s40, 3072
        """)
    gw()
    a(f"""
    s_and_b32 s36, s16, 1
    s_lshr_b32 s37, s16, 1
    s_mul_i32 s38, s36, 6144
    s_add_u32 s38, s38, {GB}
    v_add_u32 v6, s38, v2
    v_lshrrev_b32 v8, 5, v1
    v_bfe_u32 v9, v1, 2, 2
    v_lshl_add_u32 v8, v8, 2, v9
    v_lshlrev_b32 v8, 8, v8
    s_lshl_b32 s38, s37, 1
    v_xor_b32 v9, s38, v9
    v_lshl_add_u32 v8, v9, 6, v8
    v_bfe_u32 v9, v1, 4, 1
    v_lshl_add_u32 v8, v9, 5, v8
    v_and_b32 v9, 3, v1
    v_lshl_add_u32 v8, v9, 3, v8
    v_add_u32 v7, {GB+12288}, v8
    v_xor_b32 v8, 64, v7
    """)
    for r in range(64, 128): a(f"v_mov_b32 v{r}, 0")
    a(f"""
    s_mov_b32 m0, s42
    s_barrier
    s_barrier
    s_barrier
    """)
    gh()
    a(f"""
    s_mov_b32 s44, {GSL}
    s_branch {L}_gin
    {L}_gloop:
    s_barrier
    {L}_gin:
    s_add_u32 s46, s46, 1
    s_cmp_lt_u32 s46, s47
    s_cselect_b32 s50, s50, 0
    s_cselect_b32 s54, s54, 0
    s_add_u32 m0, s44, s42
    s_nop 0
    """)
    gh()
    a("s_add_u32 m0, s44, s43")
    a(f"s_add_u32 s44, s44, {GSL}")
    gw()
    a(f"""
    s_cmp_ge_u32 s44, {3*GSL}
    s_cselect_b32 s44, 0, s44
    s_sub_u32 s36, s30, 1
    s_cmp_ge_u32 s36, s47
    s_cbranch_scc1 {L}_gskip
    v_add_u32 v10, s45, v6
    v_add_u32 v11, s45, v7
    v_add_u32 v12, s45, v8
    s_add_u32 s45, s45, {GSL}
    s_cmp_ge_u32 s45, {3*GSL}
    s_cselect_b32 s45, 0, s45
    """)
    FB = [16, 32]
    def rl(ks):
        b = FB[ks & 1]
        return [f"ds_read_b128 {vr(b,4)}, v10 offset:{ks*1024}",
                f"ds_read_b64_tr_b16 {vr(b+8,2)}, v11 offset:{ks*4096}",
                f"ds_read_b64_tr_b16 {vr(b+10,2)}, v11 offset:{ks*4096+2048}",
                f"ds_read_b64_tr_b16 {vr(b+12,2)}, v12 offset:{ks*4096}",
                f"ds_read_b64_tr_b16 {vr(b+14,2)}, v12 offset:{ks*4096+2048}",
                f"ds_read_b128 {vr(b+4,4)}, v10 offset:{ks*1024+3072}"]
    def ml(ks):
        b = FB[ks & 1]
        x0, x1, w0, w1 = vr(b,4), vr(b+4,4), vr(b+8,4), vr(b+12,4)
        return [f"{M} v[64:79], {w0}, {x0}, v[64:79]", f"{M} v[80:95], {w1}, {x0}, v[80:95]",
                f"{M} v[96:111], {w0}, {x1}, v[96:111]", f"{M} v[112:127], {w1}, {x1}, v[112:127]"]
    for x in rl(0): a(x)
    for ks in range(3):
        a("s_waitcnt lgkmcnt(0)")
        r = rl(ks + 1) if ks < 2 else []
        for i, m in enumerate(ml(ks)):
            a(m)
            for x in r[2*i:2*i+2]: a(x)
    a(f"""
    s_cmp_lg_u32 s30, s47
    s_cbranch_scc1 {L}_gskip
    s_lshl_b32 s36, s35, 6
    s_lshl_b32 s37, s33, 2
    s_add_u32 s36, s36, s37
    s_and_b32 s37, s16, 1
    s_lshl_b32 s37, s37, 1
    s_add_u32 s36, s36, s37
    s_mul_i32 s36, s36, 40
    s_lshl_b32 s37, s34, 3
    s_add_u32 s36, s36, s37
    s_lshr_b32 s37, s16, 1
    s_lshl_b32 s37, s37, 2
    s_add_u32 s36, s36, s37
    s_lshl_b32 s36, s36, 10
    s_add_u32 s36, s36, {WS_B}
    s_add_u32 s37, s36, 40960
    s_nop 7
    """)
    for u in range(4):
        A = 64 + 16*u
        for qp in range(2):
            O = 16 + 4*((2*u+qp) % 8)
            for i in range(4):
                a(f"v_cvt_pk_bf16_f32 v{O+i}, v{A+8*qp+2*i}, v{A+8*qp+2*i+1}")
            a(f"buffer_store_dwordx4 {vr(O,4)}, v2, s[8:11], s{36 + (u>>1)} offen offset:{(u&1)*2048 + qp*1024} sc1")
    a(f"""
    s_waitcnt vmcnt(0)
    {L}_gskip:
    s_add_u32 s30, s30, 1
    s_cmp_lt_u32 s30, 13
    s_waitcnt vmcnt(6)
    s_cbranch_scc1 {L}_gloop
    s_waitcnt vmcnt(0)
    s_barrier
    s_barrier
    s_branch {L}_p3
    """)

    a(f"""
    {L}_p1l_done:
    s_load_dwordx2 s[4:5], s[0:1], 32
    s_load_dwordx2 s[6:7], s[0:1], 88
    s_lshl_b32 s34, s20, 5
    s_add_u32 s34, s34, s21
    s_mul_i32 s35, s20, 5
    s_add_u32 s35, s35, s23
    s_add_u32 s35, s35, 256
    s_cmp_ge_i32 s23, 0
    s_cselect_b32 s34, s35, s34
    s_lshl_b32 s34, s34, 3
    s_add_u32 s34, s34, {WS_F}
    """)
    ids(a)
    srd(a, 8, 18, 19, WS_SIZE)
    srd(a, 12, 18, 19, WS_KV + 64*3072)
    a(f"""
    v_lshlrev_b32 v2, 4, v1
    v_lshlrev_b32 v3, 3, v1
    v_mov_b32 v5, 0
    s_mov_b32 s70, {SPIN}
    s_waitcnt lgkmcnt(0)
    {L}_l_non:
    global_load_dwordx2 v[20:21], v5, s[6:7] sc0 sc1
    s_waitcnt vmcnt(0)
    v_cmp_ne_u32 vcc, 0, v20
    s_sub_u32 s70, s70, 1
    s_cselect_b64 vcc, -1, vcc
    s_cmp_eq_u64 vcc, 0
    s_cbranch_scc1 {L}_l_non
    s_lshl_b32 s33, s31, 5
    s_add_u32 s33, s33, s32
    s_mul_i32 s24, s63, 6144
    s_add_u32 s20, s24, {WS_KV}
    s_add_u32 s25, s20, 4096
    s_mov_b32 s21, 0
    s_mul_i32 s35, s17, 40960
    s_and_b32 s36, s32, 3
    s_mul_i32 s36, s36, 10240
    s_add_u32 s35, s35, s36
    s_mul_i32 s36, s63, 5120
    s_add_u32 s35, s35, s36
    s_add_u32 s35, s35, {WS_Q}
    s_add_u32 s36, s36, {QS}
    s_mov_b32 s37, {WS_F+2048}
    s_barrier
    s_cmp_lg_u32 s63, 0
    s_cbranch_scc1 {L}_l_nf
    s_mov_b64 exec, 1
    buffer_store_dwordx2 v[20:21], v5, s[8:11], s34 offen sc1
    {L}_l_nf:
    s_mov_b32 exec_lo, -1
    s_mov_b32 exec_hi, 0xff
    """)
    a.c("s33 = logical WG index, s35/s36 = Q image source / lds dest, s20/s25 kv source, s21 kv slot")
    poll(a, L, [(24, 2, "buffer_load_dwordx2 v[24:25], v3, s[8:11], s37 offen sc1")])
    a("s_mov_b64 exec, -1")
    def kv():
        a(f"""
        s_add_u32 m0, s21, s24
        s_add_u32 s21, s21, {CH}
        buffer_load_dwordx4 v2, s[12:15], s20 offen sc1 lds
        buffer_load_dwordx4 v2, s[12:15], s20 offen offset:1024 sc1 lds
        buffer_load_dwordx4 v2, s[12:15], s20 offen offset:2048 sc1 lds
        buffer_load_dwordx4 v2, s[12:15], s20 offen offset:3072 sc1 lds
        s_add_u32 m0, m0, 4096
        s_add_u32 s20, s20, {CH}
        buffer_load_dwordx4 v2, s[12:15], s25 offen sc1 lds
        buffer_load_dwordx4 v2, s[12:15], s25 offen offset:1024 sc1 lds
        s_add_u32 s25, s25, {CH}
        s_cmp_ge_u32 s21, {3*CH}
        s_cselect_b32 s21, 0, s21
        """)
    a(f"""
    s_mov_b32 m0, s36
    s_add_u32 s37, s35, 4096
    buffer_load_dwordx4 v2, s[8:11], s35 offen sc1 lds
    buffer_load_dwordx4 v2, s[8:11], s35 offen offset:1024 sc1 lds
    buffer_load_dwordx4 v2, s[8:11], s35 offen offset:2048 sc1 lds
    buffer_load_dwordx4 v2, s[8:11], s35 offen offset:3072 sc1 lds
    s_add_u32 m0, s36, 4096
    s_mov_b32 s38, {WS_KMAX}
    buffer_load_dwordx4 v2, s[8:11], s37 offen sc1 lds
    s_mov_b32 m0, {QS+10240}
    v_lshlrev_b32 v6, 2, v1
    buffer_load_dword v6, s[8:11], s38 offen sc1 lds
    """)
    kv(); kv()
    a(f"""
    s_and_b32 s38, s32, 7
    s_mul_i32 s38, s38, 160
    s_movk_i32 s39, 5462
    s_movk_i32 s40, 1280
    """)
    for i in range(3):
        a(f"""
        v_add_u32 v6, {64*i}, v1
        v_mul_u32_u24 v7, s39, v6
        v_lshrrev_b32 v7, 16, v7
        v_mul_u32_u24 v8, 12, v7
        v_sub_u32 v8, v6, v8
        v_mul_u32_u24 v7, s40, v7
        v_lshl_add_u32 v7, v8, 4, v7
        v_add_u32 v7, s38, v7
        v_subrev_u32 v{10+i}, {1024*i}, v7
        """)
    srd(a, 40, 4, 5, 819200)
    a(f"""
    s_mul_i32 s44, s63, {20*20480}
    s_mul_i32 s45, s63, {20*3072}
    s_add_u32 s45, s45, {WOB}
    s_mov_b32 s30, 1
    s_lshl_b32 s34, s33, 3
    s_add_u32 s34, s34, {WS_F+4096}
    s_waitcnt vmcnt(6)
    s_barrier
    s_waitcnt vmcnt(0)
    s_barrier
    """)
    kv()
    a(f"""
    s_lshl_b32 s37, s31, 8
    s_add_u32 s37, s37, {WS_F}
    s_mov_b64 exec, 0x7ffffff
    """)
    poll(a, L, [(24, 2, "buffer_load_dwordx2 v[24:25], v3, s[8:11], s37 offen sc1")])
    a(f"""
    s_mov_b64 exec, -1
    {L}_lloop:
    s_waitcnt vmcnt(0)
    s_barrier
    """)
    kv()
    a(f"""
    s_add_u32 s30, s30, 1
    s_cmp_lt_u32 s30, 14
    s_cbranch_scc1 {L}_lloop
    s_waitcnt vmcnt(0)
    s_barrier
    """)
    a.c("barrier 14 passed: G waves are done with their ring and their stores")
    a(f"""
    s_cmp_lg_u32 s63, 0
    s_cbranch_scc1 {L}_l_nf2
    s_mov_b64 exec, 1
    buffer_store_dwordx2 v[20:21], v5, s[8:11], s34 offen sc1
    s_mov_b64 exec, -1
    {L}_l_nf2:
    s_mov_b32 s46, s34
    """)
    def wo(n, tag):
        a(f"""
        s_mov_b32 s47, {n}
        {L}_wo{tag}:
        s_mov_b32 m0, s45
        s_add_u32 s45, s45, 3072
        buffer_load_dwordx4 v10, s[40:43], s44 offen lds
        buffer_load_dwordx4 v11, s[40:43], s44 offen offset:1024 lds
        buffer_load_dwordx4 v12, s[40:43], s44 offen offset:2048 lds
        s_add_u32 s44, s44, 20480
        s_sub_u32 s47, s47, 1
        s_cmp_lg_u32 s47, 0
        s_cbranch_scc1 {L}_wo{tag}
        """)
    wo(10, "a")
    a("s_barrier")
    wo(10, "b")
    a(f"""
    s_lshl_b32 s37, s31, 8
    s_add_u32 s37, s37, {WS_F+4096}
    s_mov_b32 exec_hi, 0
    """)
    poll(a, L, [(24, 2, "buffer_load_dwordx2 v[24:25], v3, s[8:11], s37 offen sc1")])
    a(f"""
    s_mov_b64 exec, -1
    """)

    a(f"""
    {L}_p3:
    s_lshl_b32 s39, s22, 10
    v_add_u32 v6, s39, v2
    s_mul_i32 s40, s17, 40960
    s_and_b32 s41, s32, 3
    s_mul_i32 s41, s41, 10240
    s_add_u32 s40, s40, s41
    s_add_u32 s40, s40, s39
    s_add_u32 s40, s40, {WS_O}
    s_barrier
    ds_read_b128 v[16:19], v6 offset:{OST}
    s_waitcnt lgkmcnt(0)
    buffer_store_dwordx4 v[16:19], v2, s[8:11], s40 offen sc1
    s_load_dwordx2 s[4:5], s[0:1], 80
    s_and_b32 s17, s17, 0xfe
    s_and_b32 s16, s32, 7
    s_and_b32 s33, s22, 1
    s_lshr_b32 s34, s22, 1
    s_add_u32 s35, s17, s33
    s_mul_i32 s36, s35, 40
    s_mul_i32 s37, s34, 10
    s_add_u32 s36, s36, s37
    s_lshl_b32 s36, s36, 10
    s_add_u32 s36, s36, {WS_O}
    s_add_u32 s37, s36, 4096
    s_add_u32 s38, s36, 8192
    v_lshrrev_b32 v8, 5, v1
    v_bfe_u32 v9, v1, 2, 2
    v_lshl_add_u32 v8, v8, 2, v9
    v_mul_u32_u24 v8, 192, v8
    v_bfe_u32 v9, v1, 4, 1
    v_lshl_add_u32 v8, v9, 5, v8
    v_and_b32 v9, 3, v1
    v_lshl_add_u32 v8, v9, 3, v8
    s_mul_i32 s39, s34, 30720
    s_add_u32 s39, s39, {WOB}
    v_add_u32 v8, s39, v8
    """)
    a.c("final items: item = wave and wave + 10; rb = item / 10, quad = item % 10")
    a(f"""
    v_and_b32 v3, 31, v1
    s_lshl_b32 s39, s17, 5
    v_add_u32 v3, s39, v3
    v_lshlrev_b32 v4, 2, v3
    s_mov_b32 s40, {WS_G}
    s_mul_i32 s41, s16, 10
    s_add_u32 s41, s41, s22
    s_lshr_b32 s42, s41, 1
    s_lshl_b32 s42, s42, 10
    s_and_b32 s43, s41, 1
    s_lshl_b32 s43, s43, 3
    s_add_u32 s42, s42, s43
    s_mul_i32 s43, s17, 40960
    s_add_u32 s42, s42, s43
    s_add_u32 s42, s42, {WS_B}
    s_waitcnt vmcnt(0)
    s_barrier
    s_cmp_lg_u32 s22, 8
    s_cbranch_scc1 {L}_p3nf
    s_add_u32 s43, s46, 4096
    s_mov_b64 exec, 1
    buffer_store_dwordx2 v[20:21], v5, s[8:11], s43 offen sc1
    s_mov_b64 exec, -1
    {L}_p3nf:
    buffer_load_dword v140, v4, s[8:11], s40 offen sc1
    buffer_load_dword v141, v4, s[8:11], s40 offen offset:128 sc1
    """)
    for j in range(2):
        for sk in range(3):
            a(f"s_add_u32 s43, s42, {j*40960 + sk*64*40960}")
            a(f"buffer_load_dwordx2 {vr(128+6*j+2*sk,2)}, v2, s[8:11], s43 offen sc1")
    a(f"""
    s_movk_i32 s43, 1280
    v_mul_lo_u32 v3, v3, s43
    v_lshrrev_b32 v4, 5, v1
    v_lshl_add_u32 v3, v4, 3, v3
    s_lshl_b32 s41, s41, 4
    s_add_u32 s44, s41, 40960
    s_waitcnt lgkmcnt(0)
    """)
    srd(a, 12, 4, 5, 2621440)
    for r in range(64, 112): a(f"v_mov_b32 v{r}, 0")
    a(f"""
    s_cmp_lg_u32 s22, 8
    s_cbranch_scc1 {L}_p3np
    s_and_b32 s43, s46, 0xffffffc0
    s_add_u32 s43, s43, 4096
    v_lshlrev_b32 v22, 3, v1
    s_mov_b64 exec, 0xff
    """)
    poll(a, L, [(24, 2, "buffer_load_dwordx2 v[24:25], v22, s[8:11], s43 offen sc1")])
    a(f"""
    s_mov_b64 exec, -1
    {L}_p3np:
    s_barrier
    """)
    stamp(a, 6)
    a(f"""
    s_cmp_ge_u32 s22, 8
    s_cbranch_scc1 {L}_p3r
    """)
    OF = 16
    for ks in range(10):
        a(f"buffer_load_dwordx4 {vr(OF+4*ks,4)}, v2, s[8:11], s{36+ks//4} offen offset:{(ks%4)*1024} sc1")
    WF = [112, 144]
    def wr(ks):
        b = WF[ks & 1]
        return [f"ds_read_b64_tr_b16 {vr(b+4*cb+2*t,2)}, v8 offset:{ks*3072 + t*1536 + 64*cb}" for cb in range(3) for t in range(2)]
    for x in wr(0): a(x)
    for ks in range(10):
        a(f"s_waitcnt vmcnt({9-ks}) lgkmcnt(0)")
        r = wr(ks+1) if ks < 9 else []
        b = WF[ks & 1]
        for cb in range(3):
            a(f"{M} {vr(64+16*cb,16)}, {vr(b+4*cb,4)}, {vr(OF+4*ks,4)}, {vr(64+16*cb,16)}")
            for x in r[2*cb:2*cb+2]: a(x)
    a(f"""
    s_mul_i32 s39, s22, 10240
    v_add_u32 v5, s39, v2
    {L}_p3r:
    s_barrier
    s_cmp_ge_u32 s22, 8
    s_cbranch_scc1 {L}_p3r2
    s_nop 7
    """)
    for q in range(10):
        a(f"ds_write_b128 v5, {vr(64+4*q,4)} offset:{1024*q}")
    a(f"""
    s_waitcnt lgkmcnt(0)
    {L}_p3r2:
    s_lshl_b32 s39, s22, 10
    v_add_u32 v5, s39, v2
    v_add_u32 v6, 40960, v5
    s_barrier
    """)
    for j in range(2):
        for kq in range(4):
            a(f"ds_read_b128 {vr(16+16*j+4*kq,4)}, v{5 + kq//2} offset:{j*10240 + (kq%2)*20480}")
    a("s_waitcnt vmcnt(0)")
    for j in range(2):
        a(f"""
        v_sub_f32 v{142+j}, 1.0, v{140+j}
        v_cvt_pk_bf16_f32 v{142+j}, v{142+j}, v{142+j}
        v_lshlrev_b32 v{142+j}, 16, v{142+j}
        """)
        B = 128 + 6*j
        for i in range(4):
            ex = (lambda d, r: f"v_lshlrev_b32 v{d}, 16, v{r}") if i % 2 == 0 else (lambda d, r: f"v_and_b32 v{d}, 0xffff0000, v{r}")
            a(f"""
            {ex(56+4*j+i, B + i//2)}
            {ex(55, B + 2 + i//2)}
            v_add_f32 v{56+4*j+i}, v{56+4*j+i}, v55
            {ex(55, B + 4 + i//2)}
            v_add_f32 v{56+4*j+i}, v{56+4*j+i}, v55
            """)
    a("s_waitcnt lgkmcnt(0)")
    for j in range(2):
        P = 16 + 16*j
        for i in range(4):
            a(f"""
            v_add_f32 v{P+i}, v{P+i}, v{P+4+i}
            v_add_f32 v{P+8+i}, v{P+8+i}, v{P+12+i}
            v_add_f32 v{P+i}, v{P+i}, v{P+8+i}
            v_mul_f32 v{P+i}, v{140+j}, v{P+i}
            v_fmac_f32 v{P+i}, v{142+j}, v{56+4*j+i}
            """)
        a(f"""
        v_cvt_pk_bf16_f32 v{P}, v{P}, v{P+1}
        v_cvt_pk_bf16_f32 v{P+1}, v{P+2}, v{P+3}
        buffer_store_dwordx2 {vr(P,2)}, v3, s[12:15], s{41 if j == 0 else 44} offen
        """)
    stamp_out(a, 7, 0)
    a(f"{L}_end:")
    a("s_endpgm")
    kernel_desc(a, name, 160, 100)
```

```python
from common import *
import math
LOG2E = 1.4426950408889634
QSCALE = LOG2E / math.sqrt(20.0)
XSL = 32768
WSL = 10240
WB = 3 * XSL
K1_LDS = WB + 4 * WSL
K1_BLOCK = 640

def dpp_max32(a, v):
    for sh in (1, 2, 4, 8):
        a("s_nop 1")
        a(f"v_max_f32_dpp v{v}, v{v}, v{v} row_shr:{sh} row_mask:0xf bank_mask:0xf")
    a("s_nop 1")
    a(f"v_max_f32_dpp v{v}, v{v}, v{v} row_bcast:15 row_mask:0xa bank_mask:0xf")

def gen_k1(a, name, fused=False):
    kernel_head(a, name)
    L = name
    SC = ' sc1' if fused else ''
    CFIN = f'{L}_p1c_done' if fused else f'{L}_fin'
    LFIN = f'{L}_p1l_done' if fused else f'{L}_fin'
    a(f"""
    s_cmp_ge_u32 s2, 256
    s_cbranch_scc1 {L}_end
    s_load_dwordx8 s[4:11], s[0:1], 0
    s_load_dwordx4 s[12:15], s[0:1], 48
    s_load_dwordx2 s[18:19], s[0:1], 96
    """)
    stamp(a, 0)
    a(f"""
    v_lshrrev_b32 v2, 6, v0
    v_and_b32 v1, 63, v0
    v_readfirstlane_b32 s22, v2
    s_and_b32 s47, s2, 7
    s_lshr_b32 s51, s2, 3
    s_and_b32 s20, s47, 1
    s_lshl_b32 s20, s20, 2
    s_and_b32 s67, s51, 3
    s_add_u32 s20, s20, s67
    s_lshr_b32 s21, s47, 1
    s_lshl_b32 s21, s21, 3
    s_lshr_b32 s68, s51, 2
    s_add_u32 s21, s21, s68
    s_sub_i32 s23, s21, 27
    """)
    if os.environ.get("EXP", "") == "same2":
        a("s_mov_b32 s20, 0")
        a("s_mov_b32 s21, 0")
        a("s_mov_b32 s23, -27")
    a(f"""
    s_and_b32 s65, s23, 1
    s_movk_i32 s62, 3456
    s_mov_b32 s61, 2211840
    s_lshl_b32 s59, s21, 7
    s_lshl_b32 s60, s23, 8
    s_cmp_ge_i32 s23, 0
    s_cselect_b32 s65, s65, 0
    s_cselect_b32 s62, 1280, s62
    s_cselect_b32 s61, 819200, s61
    s_cselect_b32 s59, s60, s59
    s_cselect_b32 s60, 128, 0
    s_cmp_lt_u32 s22, 8
    s_cbranch_scc1 {L}_comp
    """)
    a.c("s20=rg s21=cg s22=wave s23=qg s65=flip s62=W stride s61=W size s59=W col byte off (G), s60=extra col off for U")
    a.c("s67 = rg within half, s68 = cg within quarter")
    a(f"""
    s_and_b32 s63, s22, 1
    v_lshrrev_b32 v10, 3, v1
    v_lshrrev_b32 v11, 4, v1
    v_and_b32 v12, 7, v1
    v_xor_b32 v12, v12, v11
    v_xor_b32 v11, 4, v12
    s_movk_i32 s54, 1280
    v_mul_u32_u24 v10, s54, v10
    v_lshl_add_u32 v15, v11, 4, v10
    v_lshl_add_u32 v10, v12, 4, v10
    s_lshl_b32 s52, s20, 3
    s_lshl_b32 s53, s63, 1
    s_add_u32 s52, s52, s53
    """)
    for i in range(8):
        if i % 4 == 0:
            a(f"""
            s_add_u32 s53, s52, {i>>2}
            s_xor_b32 s53, s53, s65
            s_mul_i32 s53, s53, 40960
            """)
        a(f"s_add_u32 s55, s53, {(i&3)*(10240-1024) + 4096}")
        a(f"v_add_u32 v{2+i}, s55, v{15 if i & 1 else 10}")
    a(f"""
    v_lshrrev_b32 v13, 3, v1
    v_mul_lo_u32 v13, v13, s62
    v_and_b32 v14, 7, v1
    v_bfe_u32 v15, v1, 4, 1
    v_lshlrev_b32 v15, 2, v15
    v_xor_b32 v14, v14, v15
    v_lshl_add_u32 v13, v14, 4, v13
    s_mul_i32 s53, s63, s60
    s_add_u32 s53, s53, s59
    s_add_u32 s53, s53, 4096
    s_lshl_b32 s40, s62, 3
    s_sub_u32 s40, s40, 1024
    v_add_u32 v10, s53, v13
    v_add_u32 v11, s40, v10
    v_add_u32 v12, s40, v11
    v_add_u32 v13, s40, v12
    v_lshlrev_b32 v14, 4, v1
    s_lshl_b32 s40, s62, 5
    s_lshl_b32 s48, s63, 13
    s_lshl_b32 s49, s63, 12
    s_add_u32 s49, s49, {WB}
    s_lshl_b32 s51, s63, 10
    s_add_u32 s50, s51, {WB+8192}
    s_add_u32 s52, s67, s68
    s_and_b32 s52, s52, 3
    s_mul_i32 s52, s52, 5
    s_lshr_b32 s52, s52, 1
    s_lshl_b32 s41, s52, 7
    s_lshl_b32 s52, s52, 1
    s_mul_i32 s42, s52, s40
    s_mul_i32 s43, s52, 1280
    s_add_u32 s43, s43, s51
    s_mul_i32 s57, s40, 20
    s_mov_b32 s44, 0
    s_mov_b32 s46, 0
    s_waitcnt lgkmcnt(0)
    s_sub_u32 s24, s4, 4096
    s_subb_u32 s25, s5, 0
    s_and_b32 s25, s25, 0xffff
    s_mov_b32 s26, {2621440+4096}
    s_mov_b32 s27, 0x20000
    s_mov_b32 m0, s48
    s_cmp_eq_u32 s63, 1
    """)
    a.c("voffsets carry +4096 so that they stay non negative; the SRD bases carry -4096")
    def xdma(so):
        a(f"""
        buffer_load_dwordx4 v2, s[24:27], {so} offen lds
        buffer_load_dwordx4 v3, s[24:27], {so} offen offset:1024 lds
        buffer_load_dwordx4 v4, s[24:27], {so} offen offset:2048 lds
        buffer_load_dwordx4 v5, s[24:27], {so} offen offset:3072 lds
        s_add_u32 m0, m0, 4096
        s_nop 0
        buffer_load_dwordx4 v6, s[24:27], {so} offen lds
        buffer_load_dwordx4 v7, s[24:27], {so} offen offset:1024 lds
        buffer_load_dwordx4 v8, s[24:27], {so} offen offset:2048 lds
        buffer_load_dwordx4 v9, s[24:27], {so} offen offset:3072 lds
        """)
    a("""
    s_cselect_b32 s56, s14, s12
    s_cselect_b32 s55, s15, s13
    """)
    xdma("s41")
    a(f"""
    s_cmp_ge_i32 s23, 0
    s_cselect_b32 s28, s6, s56
    s_cselect_b32 s29, s7, s55
    s_sub_u32 s28, s28, 4096
    s_subb_u32 s29, s29, 0
    s_and_b32 s29, s29, 0xffff
    s_add_u32 s30, s61, 4096
    s_mov_b32 s31, 0x20000
    s_cmp_ge_i32 s23, 2
    s_cselect_b32 s32, s10, s8
    s_cselect_b32 s33, s11, s9
    s_and_b32 s33, s33, 0xffff
    s_cmp_lt_u32 s23, 4
    s_cselect_b32 s34, 25600, 0
    s_mov_b32 s35, 0x20000
    s_add_u32 s45, s48, 16384
    s_add_u32 s54, s41, 163840
    s_mov_b32 s58, 2
    """)
    a.c("s45 = lds dest of next x half, s54 = its soffset, s41 = k byte offset of current pair, s44 = W slot offset")
    D = 13
    a(f"""
    {L}_ld_issue:
    s_mov_b32 m0, s45
    s_add_u32 s46, s46, 1
    """)
    xdma("s54")
    a(f"""
    s_add_u32 m0, s44, s49
    s_add_u32 s45, s45, 16384
    buffer_load_dwordx4 v10, s[28:31], s42 offen lds
    buffer_load_dwordx4 v11, s[28:31], s42 offen offset:1024 lds
    buffer_load_dwordx4 v12, s[28:31], s42 offen offset:2048 lds
    buffer_load_dwordx4 v13, s[28:31], s42 offen offset:3072 lds
    s_add_u32 m0, s44, s50
    s_add_u32 s42, s42, s40
    buffer_load_dwordx4 v14, s[32:35], s43 offen lds
    s_add_u32 s43, s43, 1280
    s_cmp_eq_u32 s42, s57
    s_cselect_b32 s42, 0, s42
    s_cselect_b32 s43, s51, s43
    s_add_u32 s44, s44, {WSL}
    s_cmp_ge_u32 s44, {4*WSL}
    s_cselect_b32 s44, 0, s44
    s_cmp_ge_u32 s45, {WB}
    s_cselect_b32 s45, s48, s45
    s_add_u32 s52, s41, 128
    s_cmp_eq_u32 s52, 1280
    s_cselect_b32 s52, 0, s52
    s_add_u32 s53, s41, 163840
    s_bitcmp1_b32 s46, 0
    s_cselect_b32 s41, s52, s41
    s_cselect_b32 s54, s52, s53
    s_cmp_eq_u32 s46, 19
    s_cselect_b32 s26, 0, s26
    s_cmp_lt_u32 s46, s58
    s_cbranch_scc1 {L}_ld_issue
    s_waitcnt vmcnt({D})
    s_barrier
    s_add_u32 s58, s58, 1
    s_cmp_le_u32 s58, 20
    s_cbranch_scc1 {L}_ld_issue
    s_waitcnt vmcnt(0)
    s_barrier
    s_barrier
    s_mov_b32 s26, {2621440+4096}
    """)
    a(f"""
    {L}_ldtail:
    s_cmp_eq_u32 s63, 1
    s_cbranch_scc1 {L}_gate
    s_load_dwordx2 s[4:5], s[0:1], 32
    s_load_dwordx2 s[6:7], s[0:1], 64
    s_lshl_b32 s52, s2, 6
    v_add_u32 v2, s52, v1
    v_lshlrev_b32 v2, 7, v2
    s_waitcnt lgkmcnt(0)
    """)
    srd(a, 24, 4, 5, 819200)
    srd(a, 28, 6, 7, 2211840)
    a(f"""
    buffer_load_dword v40, v2, s[24:27], 0 offen
    buffer_load_dword v41, v2, s[28:31], 0 offen
    s_mov_b32 s52, {16384*128}
    buffer_load_dword v42, v2, s[28:31], s52 offen
    s_branch {LFIN}
    {L}_gate:
    s_load_dwordx2 s[16:17], s[0:1], 72
    v_and_b32 v16, 7, v1
    v_lshlrev_b32 v16, 4, v16
    v_lshrrev_b32 v17, 3, v1
    s_lshl_b32 s53, s20, 8
    s_lshl_b32 s54, s21, 3
    s_add_u32 s53, s53, s54
    v_add_u32 v18, s53, v17
    s_movk_i32 s54, 1280
    v_mul_lo_u32 v17, v18, s54
    v_add_u32 v17, v17, v16
    v_add_u32 v17, 4096, v17
    """)
    for j in range(10):
        a(f"buffer_load_dwordx4 {vr(64+4*j,4)}, v17, s[24:27], 0 offen offset:{128*j}")
    a("s_waitcnt lgkmcnt(0)")
    srd(a, 68, 16, 17, 1280)
    srd(a, 36, 18, 19, WS_SIZE)
    for j in range(10):
        a(f"buffer_load_dwordx4 {vr(24+4*j,4)}, v16, s[68:71], 0 offen offset:{128*j}")
    a(f"""
    v_lshlrev_b32 v19, 2, v18
    v_mov_b32 v21, {f32(-LOG2E)}
    v_mov_b32 v20, 0
    v_mov_b32 v22, 0
    s_waitcnt vmcnt(0)
    """)
    for i in range(0, 40, 2):
        a(f"v_dot2_f32_bf16 v20, v{64+i}, v{24+i}, v20")
        a(f"v_dot2_f32_bf16 v22, v{65+i}, v{25+i}, v22")
    a(f"""
    s_nop 3
    v_add_f32 v20, v20, v22
    s_nop 1
    v_add_f32_dpp v20, v20, v20 quad_perm:[1,0,3,2] row_mask:0xf bank_mask:0xf
    s_nop 1
    v_add_f32_dpp v20, v20, v20 quad_perm:[2,3,0,1] row_mask:0xf bank_mask:0xf
    s_nop 1
    v_add_f32_dpp v20, v20, v20 row_half_mirror row_mask:0xf bank_mask:0xf
    v_cvt_pk_bf16_f32 v20, v20, v20
    v_lshlrev_b32 v20, 16, v20
    v_mul_f32 v20, v21, v20
    v_exp_f32 v20, v20
    s_nop 0
    v_add_f32 v20, 1.0, v20
    v_rcp_f32 v20, v20
    s_nop 0
    v_cvt_pk_bf16_f32 v20, v20, v20
    v_lshlrev_b32 v22, 16, v20
    s_mov_b32 s53, {WS_G}
    v_cmp_eq_u32 vcc, 0, v16
    s_nop 1
    s_mov_b64 exec, vcc
    buffer_store_dword v22, v19, s[36:39], s53 offen{SC}
    s_mov_b64 exec, -1
    s_branch {LFIN}
    """)

    a(f"{L}_comp:")
    a(f"""
    s_and_b32 s63, s22, 3
    s_lshr_b32 s64, s22, 2
    v_and_b32 v13, 31, v1
    v_lshrrev_b32 v14, 5, v1
    v_bfe_u32 v15, v1, 1, 3
    v_xor_b32 v2, v14, v15
    v_lshlrev_b32 v2, 4, v2
    v_lshl_add_u32 v2, v13, 7, v2
    s_lshl_b32 s52, s63, 13
    v_add_u32 v2, s52, v2
    v_xor_b32 v3, 32, v2
    v_xor_b32 v4, 64, v2
    v_xor_b32 v5, 96, v2
    v_bfe_u32 v15, v1, 2, 2
    v_lshlrev_b32 v7, 3, v14
    v_add_u32 v7, v7, v15
    v_mul_u32_u24 v8, 40, v7
    v_lshlrev_b32 v7, 7, v7
    v_lshrrev_b32 v16, 1, v15
    v_xor_b32 v16, s64, v16
    v_lshl_add_u32 v7, v16, 6, v7
    v_bfe_u32 v16, v1, 4, 1
    v_and_b32 v17, 3, v1
    v_lshlrev_b32 v16, 5, v16
    v_lshl_add_u32 v16, v17, 3, v16
    v_add_u32 v7, v7, v16
    v_add_u32 v8, v8, v16
    v_add_u32 v7, {WB}, v7
    v_add_u32 v8, {WB+8192}, v8
    s_mov_b32 s44, 0
    s_mov_b32 s45, 0
    s_mov_b32 s46, 0
    s_mov_b32 s66, 0
    """)
    a.c("v2..v5 x frag addr for the 4 k steps of a pair, v7 W frag addr, v8 S frag addr; s63=rp s64=cp")
    for r in range(64, 144):
        a(f"v_mov_b32 v{r}, 0")
    a("s_waitcnt lgkmcnt(0)")
    srd(a, 36, 18, 19, WS_SIZE)
    if fused:
        a(f"""
        s_or_b32 s52, s22, s2
        s_cmp_lg_u32 s52, 0
        s_cbranch_scc1 {L}_nonon
        s_load_dwordx2 s[52:53], s[0:1], 88
        s_memrealtime s[54:55]
        v_mov_b32 v148, 0
        s_waitcnt lgkmcnt(0)
        s_or_b32 s54, s54, 1
        v_mov_b32 v144, s54
        v_mov_b32 v145, s55
        s_mov_b64 exec, 1
        global_store_dwordx2 v148, v[144:145], s[52:53] sc0 sc1
        s_mov_b64 exec, -1
        {L}_nonon:
        """)
    a(f"""
    s_cmp_ge_u32 s23, 4
    s_cbranch_scc1 {L}_plain
    s_cmp_ge_u32 s22, 4
    s_cbranch_scc1 {L}_plain
    s_cmp_ge_i32 s23, 2
    s_cbranch_scc1 {L}_modeV
    s_branch {L}_modeK
    """)
    XA = [16, 36]
    XC = [56, 57, 58, 59]
    def xaddrs():
        return [f"v_add_u32 v{XC[j]}, s45, v{2+j}" for j in range(4)] + \
               [f"s_add_u32 s45, s45, {XSL}", f"s_cmp_ge_u32 s45, {WB}", "s_cselect_b32 s45, 0, s45"]
    def waddrs(extra):
        return ["v_add_u32 v11, s44, v7"] + (["v_add_u32 v12, s44, v8"] if extra else []) + \
               [f"s_add_u32 s44, s44, {WSL}", f"s_cmp_ge_u32 s44, {4*WSL}", "s_cselect_b32 s44, 0, s44"]
    def read_list(j, extra):
        ks = j & 1
        b = XA[ks]
        xa = XC[j]
        l = [f"ds_read_b128 {vr(b,4)}, v{xa}",
             f"ds_read_b64_tr_b16 {vr(b+8,2)}, v11 offset:{ks*2048}",
             f"ds_read_b64_tr_b16 {vr(b+10,2)}, v11 offset:{ks*2048+512}",
             f"ds_read_b64_tr_b16 {vr(b+12,2)}, v11 offset:{4096+ks*2048}",
             f"ds_read_b64_tr_b16 {vr(b+14,2)}, v11 offset:{4096+ks*2048+512}",
             f"ds_read_b128 {vr(b+4,4)}, v{xa} offset:4096"]
        if extra:
            l += [f"ds_read_b64_tr_b16 {vr(b+16,2)}, v12 offset:{ks*640}",
                  f"ds_read_b64_tr_b16 {vr(b+18,2)}, v12 offset:{ks*640+160}"]
        return l
    def mfma_list(ks, mode):
        b = XA[ks]
        x0, x1, wg, wu, ws = vr(b,4), vr(b+4,4), vr(b+8,4), vr(b+12,4), vr(b+16,4)
        M = "v_mfma_f32_32x32x16_bf16"
        l = [f"{M} v[64:79], {wg}, {x0}, v[64:79]",
             f"{M} v[80:95], {wu}, {x0}, v[80:95]",
             f"{M} v[96:111], {wg}, {x1}, v[96:111]",
             f"{M} v[112:127], {wu}, {x1}, v[112:127]"]
        if mode == 1:
            l.append(f"{M} v[128:143], {ws}, {x0}, v[128:143]")
        if mode == 2:
            l.append(f"{M} v[128:143], {x0}, {ws}, v[128:143]")
        return l
    def half(ml, rl, post):
        a("s_waitcnt lgkmcnt(0)")
        for i, m in enumerate(ml):
            a(m)
            for x in rl[2*i:2*i+2]: a(x)
            if i == len(ml) - 2:
                for x in post: a(x)
    for mode, tag in ((0, "plain"), (1, "modeK"), (2, "modeV")):
        ex = mode != 0
        a(f"{L}_{tag}:")
        if ex:
            a(f"s_mov_b32 s66, {mode}")
        for x in xaddrs() + waddrs(ex): a(x)
        a("s_barrier")
        for x in read_list(0, ex): a(x)
        stamp(a, 1)
        a(f".p2align 6")
        a(f"{L}_{tag}_loop:")
        half(mfma_list(0, mode), read_list(1, ex), waddrs(ex))
        a("s_barrier")
        half(mfma_list(1, mode), read_list(2, ex), [])
        half(mfma_list(0, mode), read_list(3, ex), waddrs(ex) + xaddrs())
        a("s_barrier")
        half(mfma_list(1, mode), read_list(0, ex), ["s_add_u32 s46, s46, 1", "s_cmp_lt_u32 s46, 10"])
        a(f"s_cbranch_scc1 {L}_{tag}_loop")
        a(f"s_branch {L}_epi")

    a(f"{L}_epi:")
    stamp(a, 2)
    a(f"""
    s_lshl_b32 s52, s20, 3
    s_lshl_b32 s53, s63, 1
    s_add_u32 s52, s52, s53
    s_add_u32 s52, s52, s65
    s_nop 7
    s_cmp_ge_i32 s23, 0
    s_cbranch_scc1 {L}_epiq
    """)
    a.c("s52 = global row block of acc set 0 (set 1 is s52 ^ 1)")
    C0 = -2.0 * 0.7978845608028654 * LOG2E
    C1 = C0 * 0.044715
    a(f"""
    s_waitcnt vmcnt(0) lgkmcnt(0)
    v_mov_b32 v16, {f32(C0)}
    v_mov_b32 v17, {f32(C1)}
    v_lshlrev_b32 v18, 4, v1
    s_mul_i32 s53, s52, {108*1024}
    s_lshl_b32 s54, s21, 12
    s_lshl_b32 s55, s64, 11
    s_add_u32 s53, s53, s54
    s_add_u32 s53, s53, s55
    s_add_u32 s53, s53, {WS_H}
    s_add_u32 s54, s53, {108*1024}
    """)
    for j in range(2):
        G, U = 64 + 32*j, 80 + 32*j
        for half in range(2):
            T = 20
            rs = list(range(8*half, 8*half+8))
            for i, r in enumerate(rs): a(f"v_mul_f32 v{T+i}, v{G+r}, v{G+r}")
            for i, r in enumerate(rs): a(f"v_fma_f32 v{T+i}, v{T+i}, v17, v16")
            for i, r in enumerate(rs): a(f"v_mul_f32 v{T+i}, v{G+r}, v{T+i}")
            for i, r in enumerate(rs): a(f"v_exp_f32 v{T+i}, v{T+i}")
            for i, r in enumerate(rs): a(f"v_mul_f32 v{U+r}, v{G+r}, v{U+r}")
            for i, r in enumerate(rs): a(f"v_add_f32 v{T+i}, 1.0, v{T+i}")
            for i, r in enumerate(rs): a(f"v_rcp_f32 v{T+i}, v{T+i}")
            a("s_nop 0")
            for i, r in enumerate(rs): a(f"v_mul_f32 v{T+i}, v{U+r}, v{T+i}")
            O = 28 + 4*(2*j+half)
            for i in range(4): a(f"v_cvt_pk_bf16_f32 v{O+i}, v{T+2*i}, v{T+2*i+1}")
            a(f"buffer_store_dwordx4 {vr(O,4)}, v18, s[36:39], s{53+j} offen offset:{1024*half}{SC}")
    a(f"s_branch {CFIN}")

    a(f"{L}_epiq:")
    a(f"""
    s_waitcnt vmcnt(0) lgkmcnt(0)
    v_mov_b32 v20, {f32(QSCALE)}
    v_lshlrev_b32 v18, 4, v1
    s_lshl_b32 s53, s23, 13
    s_lshl_b32 s54, s64, 11
    s_add_u32 s53, s53, s54
    s_add_u32 s53, s53, {WS_Q}
    s_mul_i32 s54, s52, 40960
    s_add_u32 s54, s54, s53
    s_xor_b32 s55, s52, 1
    s_mul_i32 s55, s55, 40960
    s_add_u32 s55, s55, s53
    s_add_u32 s56, s54, 4096
    s_add_u32 s57, s55, 4096
    """)
    for j in range(2):
        for T in range(2):
            for hf in range(2):
                A = 64 + 32*j + 16*T + 8*hf
                O = 24 + 4*((4*j+2*T+hf) % 8)
                for i in range(8): a(f"v_mul_f32 v{A+i}, v20, v{A+i}")
                for i in range(4): a(f"v_cvt_pk_bf16_f32 v{O+i}, v{A+2*i}, v{A+2*i+1}")
                a(f"buffer_store_dwordx4 {vr(O,4)}, v18, s[36:39], s{54+j+2*T} offen offset:{1024*hf}{SC}")
    a(f"""
    s_cmp_eq_u32 s66, 2
    s_cbranch_scc1 {L}_epiv
    s_cmp_lg_u32 s66, 1
    s_cbranch_scc1 {CFIN}
    """)
    E = 128
    a(f"""
    s_mul_i32 s53, s52, 3072
    s_add_u32 s53, s53, {WS_KV}
    v_lshlrev_b32 v16, 4, v1
    """)
    for i in range(4): a(f"v_cvt_pk_bf16_f32 v{20+i}, v{E+2*i}, v{E+2*i+1}")
    a(f"buffer_store_dwordx4 v[20:23], v16, s[36:39], s53 offen{SC}")
    a(f"v_cvt_pk_bf16_f32 v24, v{E+8}, v{E+9}")
    a(f"v_cvt_pk_bf16_f32 v25, v{E+10}, v{E+11}")
    a("v_mov_b32 v26, 0x3f803f80")
    a("v_mov_b32 v27, 0x00003f80")
    a(f"v_mul_f32 v30, v{E}, v{E}")
    for i in range(1, 8): a(f"v_fmac_f32 v30, v{E+i}, v{E+i}")
    a(f"v_mul_f32 v31, v{E+8}, v{E+8}")
    for i in range(9, 12): a(f"v_fmac_f32 v31, v{E+i}, v{E+i}")
    a(f"""
    v_cmp_gt_u32 vcc, 32, v1
    s_nop 1
    v_cndmask_b32 v31, 0, v31, vcc
    v_add_f32 v30, v30, v31
    v_mov_b32 v31, v30
    s_nop 1
    v_permlane32_swap_b32 v30, v31
    s_nop 1
    v_add_f32 v30, v30, v31
    """)
    dpp_max32(a, 30)
    a(f"""
    s_lshl_b32 s54, s52, 2
    s_add_u32 s54, s54, {WS_KMAX}
    v_mov_b32 v17, 0
    s_mov_b32 exec_hi, 0
    buffer_store_dwordx4 v[24:27], v16, s[36:39], s53 offen offset:1024{SC}
    s_mov_b32 exec_lo, 0x80000000
    buffer_store_dword v30, v17, s[36:39], s54 offen{SC}
    s_branch {CFIN}
    """)
    a(f"{L}_epiv:")
    a(f"""
    s_mul_i32 s53, s52, 3072
    s_add_u32 s53, s53, {WS_KV+1536}
    v_and_b32 v17, 31, v1
    v_lshrrev_b32 v18, 5, v1
    v_mul_u32_u24 v18, 384, v18
    v_lshl_add_u32 v16, v17, 4, v18
    v_mov_b32 v19, 0x3f803f80
    v_cmp_eq_u32 vcc, 20, v17
    """)
    for i in range(8): a(f"v_cvt_pk_bf16_f32 v{20+i}, v{E+2*i}, v{E+2*i+1}")
    a("v_cmp_lt_u32 s[54:55], 19, v17")
    a("v_cndmask_b32 v19, 0, v19, vcc")
    a("s_nop 0")
    for i in range(8): a(f"v_cndmask_b32 v{20+i}, v{20+i}, v19, s[54:55]")
    a(f"""
    v_cmp_gt_u32 vcc, 24, v17
    s_nop 1
    s_and_b64 exec, exec, vcc
    buffer_store_dwordx4 v[20:23], v16, s[36:39], s53 offen{SC}
    buffer_store_dwordx4 v[24:27], v16, s[36:39], s53 offen offset:768{SC}
    """)
    if fused:
        a("s_mov_b64 exec, -1")
        return
    a(f"{L}_fin:")
    stamp_out(a, 3, 0)
    a(f"{L}_end:")
    a("s_endpgm")
    kernel_desc(a, name, 144, 100)
```

```python
import sys
sys.path.insert(0, 'gen')
from common import *
import fused
NAME = "gated_mix__grouped_kv_mqa__geglu_ffn__prompt"
HEAD = open(f'cdna_kernels/{NAME}.s.ref').read().split('; Override')[0]
a = Asm()
hdr = HEAD + f"; @launch grid=(256,1,1) block=({fused.F_BLOCK},1,1) lds={fused.F_LDS}\n"
hdr += '.amdgcn_target "amdgcn-amd-amdhsa--gfx950"\n'
fused.gen_fused(a, NAME + "_kernel")
out = sys.argv[1] if len(sys.argv) > 1 else f'cdna_kernels/{NAME}.s'
open(out, 'w').write(hdr + a.text())
```

```python
from common import *
import math
from k2 import (M, QA1, QA2, QB1, QB2, KVB, SA, SB, OA, OB, PA, PB, split3, exp_groups, qk, pv, CH)
LOG2E = 1.4426950408889634
QSCALE = LOG2E / math.sqrt(20.0)
E = os.environ.get
XSL = 32768
WB = 3 * XSL
WSL = 10240
QST = WB
KVR = 163840 - 3 * CH
GSL = 32768
F_LDS = 163840
F_BLOCK = 640
SPIN = int(E("SPIN", 1 << 16))
SC = " sc1"

_pc = [0]
def poll(a, L, voff, soff):
    _pc[0] += 1
    T = f"{L}_poll{_pc[0]}"
    a(f"""
    s_mov_b32 s70, {SPIN}
    {T}:
    buffer_load_dwordx2 v[24:25], {voff}, s[8:11], {soff} offen sc1
    s_sub_u32 s70, s70, 1
    s_cbranch_scc1 {T}_ok
    s_waitcnt vmcnt(0)
    v_cmp_ne_u64 vcc, v[24:25], v[20:21]
    s_cmp_lg_u64 vcc, 0
    s_cbranch_scc1 {T}
    {T}_ok:
    """)

def flag(a, soff):
    a(f"""
    s_mov_b64 exec, 1
    buffer_store_dwordx2 v[20:21], v5, s[8:11], {soff} offen sc1
    s_mov_b64 exec, -1
    """)

def aslot(a, S, P, mf, pre=(), rd=None):
    g = exp_groups(S, P)
    flat = [x for gg in g for x in gg]
    pos = [int(x) for x in E("MPOS", "0,5,11,17").split(",")]
    for p in pre: a(p)
    k = 0
    for i, x in enumerate(flat):
        while k < 4 and pos[k] == i:
            a(mf[k])
            if rd: a(rd[k])
            k += 1
        a(x)

def gen(a, name):
    kernel_head(a, name)
    L = name
    a(f"""
    s_cmp_ge_u32 s2, 256
    s_cbranch_scc1 {L}_end
    s_load_dwordx8 s[4:11], s[0:1], 0
    s_load_dwordx4 s[12:15], s[0:1], 48
    s_load_dwordx2 s[18:19], s[0:1], 96
    """)
    stamp(a, 0)
    a(f"""
    v_lshrrev_b32 v2, 6, v0
    v_and_b32 v1, 63, v0
    v_readfirstlane_b32 s22, v2
    s_and_b32 s47, s2, 7
    s_lshr_b32 s51, s2, 3
    s_and_b32 s20, s47, 1
    s_lshl_b32 s20, s20, 2
    s_and_b32 s67, s51, 3
    s_add_u32 s20, s20, s67
    s_lshr_b32 s21, s47, 1
    s_lshl_b32 s21, s21, 3
    s_lshr_b32 s68, s51, 2
    s_add_u32 s21, s21, s68
    s_cmp_lt_u32 s22, 8
    s_cbranch_scc1 {L}_comp
    """)
    a.c("s20 = row group (256 rows), s21 = cg = head = column group, s22 = wave; kept for the whole kernel, as is s[18:19]")
    a(f"""
    s_and_b32 s63, s22, 1
    v_lshrrev_b32 v10, 3, v1
    v_lshrrev_b32 v11, 4, v1
    v_and_b32 v12, 7, v1
    v_xor_b32 v12, v12, v11
    v_xor_b32 v11, 4, v12
    s_movk_i32 s54, 1280
    v_mul_u32_u24 v10, s54, v10
    v_lshl_add_u32 v15, v11, 4, v10
    v_lshl_add_u32 v10, v12, 4, v10
    s_mul_i32 s53, s20, {256*1280}
    s_mul_i32 s55, s63, {64*1280}
    s_add_u32 s53, s53, s55
    """)
    for i in range(8):
        a(f"s_add_u32 s55, s53, {i*10240 - 1024*(i&3) + 4096}")
        a(f"v_add_u32 v{2+i}, s55, v{15 if i & 1 else 10}")
    a(f"""
    s_add_u32 s52, s67, s68
    s_and_b32 s52, s52, 3
    s_mul_i32 s52, s52, 5
    s_lshr_b32 s52, s52, 1
    s_lshl_b32 s41, s52, 7
    s_lshl_b32 s48, s63, 13
    s_mov_b32 m0, s48
    s_waitcnt lgkmcnt(0)
    s_sub_u32 s24, s4, 4096
    s_subb_u32 s25, s5, 0
    s_and_b32 s25, s25, 0xffff
    s_mov_b32 s26, {2621440+4096}
    s_mov_b32 s27, 0x20000
    """)
    a.c("x voffsets carry +4096 so that they stay non negative; the SRD base carries -4096")
    def xdma(so):
        a(f"""
        buffer_load_dwordx4 v2, s[24:27], {so} offen lds
        buffer_load_dwordx4 v3, s[24:27], {so} offen offset:1024 lds
        buffer_load_dwordx4 v4, s[24:27], {so} offen offset:2048 lds
        buffer_load_dwordx4 v5, s[24:27], {so} offen offset:3072 lds
        s_add_u32 m0, m0, 4096
        s_nop 0
        buffer_load_dwordx4 v6, s[24:27], {so} offen lds
        buffer_load_dwordx4 v7, s[24:27], {so} offen offset:1024 lds
        buffer_load_dwordx4 v8, s[24:27], {so} offen offset:2048 lds
        buffer_load_dwordx4 v9, s[24:27], {so} offen offset:3072 lds
        """)
    xdma("s41")
    a(f"""
    v_lshrrev_b32 v13, 3, v1
    s_movk_i32 s62, 3456
    v_mul_u32_u24 v13, s62, v13
    v_and_b32 v14, 7, v1
    v_bfe_u32 v15, v1, 4, 1
    v_lshlrev_b32 v15, 2, v15
    v_xor_b32 v14, v14, v15
    v_lshl_add_u32 v13, v14, 4, v13
    s_lshl_b32 s53, s21, 7
    v_add_u32 v10, s53, v13
    v_add_u32 v11, {8*3456-1024}, v10
    v_add_u32 v12, {2*(8*3456-1024)}, v10
    v_add_u32 v13, {3*(8*3456-1024)}, v10
    v_lshrrev_b32 v14, 2, v1
    v_mul_u32_u24 v14, s54, v14
    v_and_b32 v15, 3, v1
    v_lshl_add_u32 v14, v15, 4, v14
    s_mul_i32 s53, s21, 40
    s_mul_i32 s55, s63, {16*1280}
    s_add_u32 s53, s53, s55
    v_add_u32 v14, s53, v14
    v_lshlrev_b32 v15, 4, v1
    s_cmp_eq_u32 s63, 1
    s_cselect_b32 s28, s14, s12
    s_cselect_b32 s29, s15, s13
    s_and_b32 s29, s29, 0xffff
    s_mov_b32 s30, 2211840
    s_mov_b32 s31, 0x20000
    s_mov_b32 s32, s6
    s_and_b32 s33, s7, 0xffff
    s_mov_b32 s34, 819200
    s_mov_b32 s35, 0x20000
    s_cmp_eq_u32 s21, 27
    s_cselect_b32 s36, s8, s10
    s_cselect_b32 s37, s9, s11
    s_and_b32 s37, s37, 0xffff
    s_sub_u32 s53, s21, 27
    s_cmp_lt_u32 s53, 2
    s_cselect_b32 s38, 25600, 0
    s_mov_b32 s39, 0x20000
    s_lshl_b32 s52, s52, 1
    s_mul_i32 s42, s52, {32*3456}
    s_mul_i32 s43, s52, {32*1280}
    s_mul_i32 s40, s52, 1280
    s_lshl_b32 s51, s63, 10
    s_add_u32 s40, s40, s51
    s_lshl_b32 s49, s63, 12
    s_add_u32 s49, s49, {WB}
    s_add_u32 s50, s51, {WB+8192}
    s_add_u32 s56, s51, {WB}
    s_add_u32 s45, s48, 16384
    s_add_u32 s54, s41, 163840
    s_mov_b32 s44, 0
    s_mov_b32 s46, 0
    s_mov_b32 s58, 2
    s_cmp_ge_u32 s21, 27
    s_cbranch_scc1 {L}_ldl_issue
    """)
    a.c("s45/s54 next x half (lds, soffset), s41 k byte offset of the pair, s42 W, s43 wq, s40 wk/wv soffsets, s44 W slot")
    for tag, D in (("ldf", 13), ("ldl", 10)):
        a(f"""
        {L}_{tag}_issue:
        s_mov_b32 m0, s45
        s_add_u32 s46, s46, 1
        """)
        xdma("s54")
        if tag == "ldf":
            a(f"""
            s_add_u32 m0, s44, s49
            s_add_u32 s45, s45, 16384
            buffer_load_dwordx4 v10, s[28:31], s42 offen lds
            buffer_load_dwordx4 v11, s[28:31], s42 offen offset:1024 lds
            buffer_load_dwordx4 v12, s[28:31], s42 offen offset:2048 lds
            buffer_load_dwordx4 v13, s[28:31], s42 offen offset:3072 lds
            """)
        else:
            a(f"""
            s_add_u32 m0, s44, s56
            s_add_u32 s45, s45, 16384
            buffer_load_dwordx4 v15, s[36:39], s40 offen lds
            """)
        a(f"""
        s_add_u32 m0, s44, s50
        s_add_u32 s42, s42, {32*3456}
        buffer_load_dwordx4 v14, s[32:35], s43 offen lds
        s_add_u32 s43, s43, {32*1280}
        s_add_u32 s40, s40, 1280
        s_cmp_eq_u32 s43, 819200
        s_cselect_b32 s42, 0, s42
        s_cselect_b32 s43, 0, s43
        s_cselect_b32 s40, s51, s40
        s_add_u32 s44, s44, {WSL}
        s_cmp_ge_u32 s44, {4*WSL}
        s_cselect_b32 s44, 0, s44
        s_cmp_ge_u32 s45, {WB}
        s_cselect_b32 s45, s48, s45
        s_add_u32 s52, s41, 128
        s_cmp_eq_u32 s52, 1280
        s_cselect_b32 s52, 0, s52
        s_add_u32 s53, s41, 163840
        s_bitcmp1_b32 s46, 0
        s_cselect_b32 s41, s52, s41
        s_cselect_b32 s54, s52, s53
        s_cmp_eq_u32 s46, 19
        s_cselect_b32 s26, 0, s26
        s_cmp_lt_u32 s46, s58
        s_cbranch_scc1 {L}_{tag}_issue
        s_waitcnt vmcnt({D})
        s_barrier
        s_add_u32 s58, s58, 1
        s_cmp_le_u32 s58, 20
        s_cbranch_scc1 {L}_{tag}_issue
        """)
        if tag == "ldf": a(f"s_branch {L}_ld_tail")
    a(f"""
    {L}_ld_tail:
    s_load_dwordx2 s[4:5], s[0:1], 32
    s_load_dwordx2 s[6:7], s[0:1], 88
    v_mov_b32 v5, 0
    s_waitcnt vmcnt(0) lgkmcnt(0)
    s_barrier
    global_load_dwordx2 v[20:21], v5, s[6:7] sc0 sc1
    s_barrier
    """)
    srd(a, 8, 18, 19, WS_SIZE)
    srd(a, 12, 18, 19, WS_KV + 64*3072)
    a(f"""
    v_lshlrev_b32 v2, 4, v1
    v_lshlrev_b32 v3, 7, v1
    s_mov_b32 s70, {SPIN}
    s_branch {L}_l_non2
    {L}_l_non:
    global_load_dwordx2 v[20:21], v5, s[6:7] sc0 sc1
    {L}_l_non2:
    s_sub_u32 s70, s70, 1
    s_cbranch_scc1 {L}_l_non3
    s_waitcnt vmcnt(0)
    v_cmp_ne_u32 vcc, 0, v20
    s_cmp_eq_u64 vcc, 0
    s_cbranch_scc1 {L}_l_non
    {L}_l_non3:
    s_lshl_b32 s33, s20, 5
    s_add_u32 s33, s33, s21
    s_lshl_b32 s34, s33, 7
    s_add_u32 s34, s34, {WS_F}
    s_lshl_b32 s35, s20, 12
    s_add_u32 s35, s35, {WS_F}
    s_sub_u32 s53, s21, 27
    s_cmp_ge_u32 s53, 2
    s_cbranch_scc1 {L}_l_nokv
    s_barrier
    s_cmp_lg_u32 s63, 0
    s_cbranch_scc1 {L}_l_nokv
    s_lshl_b32 s52, s20, 1
    s_add_u32 s52, s52, s53
    s_lshl_b32 s52, s52, 7
    s_add_u32 s52, s52, {WS_F+FQ}
    """)
    flag(a, "s52")
    a(f"""
    {L}_l_nokv:
    s_mul_i32 s24, s63, 6144
    s_add_u32 s30, s24, {WS_KV}
    s_add_u32 s31, s30, 4096
    s_add_u32 s24, s24, {KVR}
    s_mov_b32 s25, {CH}
    s_mov_b32 s52, {WS_F+FQ}
    s_mov_b64 exec, 0xffff
    """)
    a.c("s34 = own flag line, s35 = flag lines of this row group; s30/s31 kv source, s24 + s25 kv destination")
    stamp(a, 1)
    poll(a, L, "v3", "s52")
    a("s_mov_b64 exec, -1")
    stamp(a, 2)
    def kv():
        a(f"""
        s_add_u32 m0, s25, s24
        s_add_u32 s25, s25, {CH}
        buffer_load_dwordx4 v2, s[12:15], s30 offen lds
        buffer_load_dwordx4 v2, s[12:15], s30 offen offset:1024 lds
        buffer_load_dwordx4 v2, s[12:15], s30 offen offset:2048 lds
        buffer_load_dwordx4 v2, s[12:15], s30 offen offset:3072 lds
        s_add_u32 m0, m0, 4096
        s_add_u32 s30, s30, {CH}
        buffer_load_dwordx4 v2, s[12:15], s31 offen lds
        buffer_load_dwordx4 v2, s[12:15], s31 offen offset:1024 lds
        s_add_u32 s31, s31, {CH}
        s_cmp_ge_u32 s25, {3*CH}
        s_cselect_b32 s25, 0, s25
        """)
    a(f"""
    s_mov_b32 m0, {QST+6144}
    s_mov_b32 s52, {WS_KV+1024+31*16+12}
    v_mul_u32_u24 v6, 3072, v1
    buffer_load_dword v6, s[8:11], s52 offen lds
    """)
    kv(); kv()
    a(f"""
    s_and_b32 s38, s21, 7
    s_mul_i32 s38, s38, 160
    s_movk_i32 s39, 5462
    s_movk_i32 s40, 1280
    """)
    for i in range(3):
        a(f"""
        v_add_u32 v6, {64*i}, v1
        v_mul_u32_u24 v7, s39, v6
        v_lshrrev_b32 v7, 16, v7
        v_mul_u32_u24 v8, 12, v7
        v_sub_u32 v8, v6, v8
        v_mul_u32_u24 v7, s40, v7
        v_lshl_add_u32 v7, v8, 4, v7
        v_add_u32 v7, s38, v7
        v_subrev_u32 v{10+i}, {1024*i}, v7
        """)
    srd(a, 40, 4, 5, 819200)
    a(f"""
    s_mul_i32 s44, s63, {20*20480}
    s_mul_i32 s45, s63, {20*3072}
    s_waitcnt vmcnt(6)
    s_barrier
    """)
    stamp(a, 3)
    def bar_kv():
        a("s_waitcnt vmcnt(0)")
        a("s_barrier")
        kv()
    bar_kv()
    a(f"""
    s_cmp_eq_u32 s63, 1
    s_cbranch_scc1 {L}_gate
    s_lshl_b32 s52, s2, 6
    v_add_u32 v6, s52, v1
    v_lshlrev_b32 v6, 7, v6
    buffer_load_dword v30, v6, s[40:43], 0 offen
    s_waitcnt vmcnt(1)
    s_barrier
    """)
    a.c("B1 passed: every wave has drained its h stores")
    flag(a, "s34")
    kv()
    a(f"""
    s_waitcnt vmcnt(0)
    s_branch {L}_gate_done
    {L}_gate:
    s_load_dwordx2 s[16:17], s[0:1], 72
    s_load_dwordx2 s[4:5], s[0:1], 0
    v_and_b32 v16, 7, v1
    v_lshlrev_b32 v16, 4, v16
    v_lshrrev_b32 v17, 3, v1
    s_lshl_b32 s53, s33, 3
    v_add_u32 v18, s53, v17
    s_movk_i32 s54, 1280
    v_mul_lo_u32 v17, v18, s54
    v_add_u32 v17, v17, v16
    s_waitcnt lgkmcnt(0)
    """)
    srd(a, 56, 4, 5, 2621440)
    srd(a, 68, 16, 17, 1280)
    for j in range(10):
        a(f"buffer_load_dwordx4 {vr(72+4*j,4)}, v17, s[56:59], 0 offen offset:{128*j}")
    for j in range(10):
        a(f"buffer_load_dwordx4 {vr(32+4*j,4)}, v16, s[68:71], 0 offen offset:{128*j}")
    a(f"""
    v_lshrrev_b32 v19, 3, v1
    v_lshlrev_b32 v19, 2, v19
    v_mov_b32 v27, {f32(-LOG2E)}
    v_mov_b32 v26, 0
    v_mov_b32 v28, 0
    s_waitcnt vmcnt(20)
    s_barrier
    """)
    kv()
    a("s_waitcnt vmcnt(6)")
    for i in range(0, 40, 2):
        a(f"v_dot2_f32_bf16 v26, v{72+i}, v{32+i}, v26")
        a(f"v_dot2_f32_bf16 v28, v{73+i}, v{33+i}, v28")
    a(f"""
    s_nop 3
    v_add_f32 v26, v26, v28
    s_nop 1
    v_add_f32_dpp v26, v26, v26 quad_perm:[1,0,3,2] row_mask:0xf bank_mask:0xf
    s_nop 1
    v_add_f32_dpp v26, v26, v26 quad_perm:[2,3,0,1] row_mask:0xf bank_mask:0xf
    s_nop 1
    v_add_f32_dpp v26, v26, v26 row_half_mirror row_mask:0xf bank_mask:0xf
    v_cvt_pk_bf16_f32 v26, v26, v26
    v_lshlrev_b32 v26, 16, v26
    v_mul_f32 v26, v27, v26
    v_exp_f32 v26, v26
    s_nop 0
    v_add_f32 v26, 1.0, v26
    v_rcp_f32 v26, v26
    s_nop 0
    v_cvt_pk_bf16_f32 v26, v26, v26
    v_lshlrev_b32 v28, 16, v26
    s_lshl_b32 s53, s33, 7
    s_add_u32 s53, s53, {WS_G}
    v_cmp_eq_u32 vcc, 0, v16
    s_nop 1
    s_mov_b64 exec, vcc
    buffer_store_dword v28, v19, s[8:11], s53 offen sc1
    s_mov_b64 exec, -1
    s_waitcnt vmcnt(1)
    {L}_gate_done:
    s_barrier
    """)
    kv()
    a(f"""
    s_cmp_eq_u32 s63, 1
    s_cbranch_scc1 {L}_l_np
    """)
    a("s_mov_b64 exec, 0x7ffffff")
    poll(a, L, "v3", "s35")
    a(f"""
    s_mov_b64 exec, -1
    {L}_l_np:
    s_mov_b32 s46, 3
    {L}_lloop:
    """)
    bar_kv()
    a(f"""
    s_add_u32 s46, s46, 1
    s_cmp_lt_u32 s46, 14
    s_cbranch_scc1 {L}_lloop
    s_add_u32 s34, s34, {F2}
    s_add_u32 s35, s35, {F2}
    """)
    a.c("barrier 13 passed: G waves are done with their ring")
    def wo(n, tag):
        a(f"""
        s_mov_b32 s47, {n}
        {L}_wo{tag}:
        s_mov_b32 m0, s45
        s_add_u32 s45, s45, 3072
        buffer_load_dwordx4 v10, s[40:43], s44 offen lds
        buffer_load_dwordx4 v11, s[40:43], s44 offen offset:1024 lds
        buffer_load_dwordx4 v12, s[40:43], s44 offen offset:2048 lds
        s_add_u32 s44, s44, 20480
        s_sub_u32 s47, s47, 1
        s_cmp_lg_u32 s47, 0
        s_cbranch_scc1 {L}_wo{tag}
        """)
    wo(8, "a")
    a("s_waitcnt vmcnt(24)")
    a("s_barrier")
    a(f"s_cmp_lg_u32 s63, 0\ns_cbranch_scc1 {L}_l_nf2")
    flag(a, "s34")
    a(f"{L}_l_nf2:")
    wo(8, "b")
    a("s_barrier")
    wo(4, "c")
    a(f"s_cmp_eq_u32 s63, 0\ns_cbranch_scc1 {L}_l_np2")
    a("s_mov_b32 exec_hi, 0")
    poll(a, L, "v3", "s35")
    a(f"{L}_l_np2:")
    a(f"""
    s_mov_b64 exec, -1
    s_add_u32 s34, s34, {F3-F2}
    s_add_u32 s35, s35, {F3-F2}
    s_branch {L}_p3
    """)

    a(f"""
    {L}_comp:
    s_and_b32 s63, s22, 3
    s_lshr_b32 s64, s22, 2
    v_and_b32 v13, 31, v1
    v_lshrrev_b32 v14, 5, v1
    v_bfe_u32 v15, v1, 1, 3
    v_xor_b32 v2, v14, v15
    v_lshlrev_b32 v2, 4, v2
    v_lshl_add_u32 v2, v13, 7, v2
    s_lshl_b32 s52, s63, 13
    s_lshl_b32 s53, s64, 12
    s_add_u32 s52, s52, s53
    v_add_u32 v2, s52, v2
    v_xor_b32 v3, 32, v2
    v_xor_b32 v4, 64, v2
    v_xor_b32 v5, 96, v2
    v_bfe_u32 v15, v1, 2, 2
    v_lshlrev_b32 v7, 3, v14
    v_add_u32 v7, v7, v15
    v_mul_u32_u24 v9, 40, v7
    v_lshlrev_b32 v8, 6, v7
    v_lshlrev_b32 v7, 7, v7
    v_lshrrev_b32 v16, 1, v15
    v_xor_b32 v16, s64, v16
    v_lshl_add_u32 v7, v16, 6, v7
    v_bfe_u32 v16, v1, 4, 1
    v_and_b32 v17, 3, v1
    v_lshlrev_b32 v16, 5, v16
    v_lshl_add_u32 v16, v17, 3, v16
    v_add_u32 v7, v7, v16
    v_add_u32 v8, v8, v16
    v_add_u32 v9, v9, v16
    v_add_u32 v7, {WB}, v7
    v_add_u32 v8, {WB+8192}, v8
    v_add_u32 v9, {WB}, v9
    s_mov_b32 s44, 0
    s_mov_b32 s45, 0
    s_mov_b32 s46, 0
    """)
    a.c("v2..v5 x frag addr (row block 2rp+cp) for the 4 k steps of a pair; v7 W, v8 wq slice, v9 wk/wv slice addr; s63=rp s64=cp")
    for r in range(64, 144):
        a(f"v_mov_b32 v{r}, 0")
    a("s_waitcnt lgkmcnt(0)")
    srd(a, 8, 18, 19, WS_SIZE)
    a(f"""
    s_or_b32 s52, s22, s2
    s_cmp_lg_u32 s52, 0
    s_cbranch_scc1 {L}_nonon
    s_load_dwordx2 s[52:53], s[0:1], 88
    s_memrealtime s[54:55]
    v_mov_b32 v148, 0
    s_waitcnt lgkmcnt(0)
    s_or_b32 s54, s54, 1
    v_mov_b32 v144, s54
    v_mov_b32 v145, s55
    s_mov_b64 exec, 1
    global_store_dwordx2 v148, v[144:145], s[52:53] sc0 sc1
    s_mov_b64 exec, -1
    {L}_nonon:
    s_cmp_eq_u32 s21, 27
    s_cbranch_scc1 {L}_modeK
    s_cmp_eq_u32 s21, 28
    s_cbranch_scc1 {L}_modeV
    s_cmp_gt_u32 s21, 28
    s_cbranch_scc1 {L}_modeQ
    """)
    XA = [16, 36]
    XC = [56, 57, 58, 59]
    XD = [60, 61, 62, 63]
    def xaddrs(full):
        l = [f"v_add_u32 v{XC[j]}, s45, v{2+j}" for j in range(4)]
        if full: l += [f"v_xor_b32 v{XD[j]}, 4096, v{XC[j]}" for j in range(4)]
        return l + [f"s_add_u32 s45, s45, {XSL}", f"s_cmp_ge_u32 s45, {WB}", "s_cselect_b32 s45, 0, s45"]
    def waddrs(mode):
        l = ["v_add_u32 v12, s44, v8"]
        if mode == 0: l.append("v_add_u32 v11, s44, v7")
        if mode in (1, 2): l.append("v_add_u32 v11, s44, v9")
        return l + [f"s_add_u32 s44, s44, {WSL}", f"s_cmp_ge_u32 s44, {4*WSL}", "s_cselect_b32 s44, 0, s44"]
    def read_list(j, mode):
        ks = j & 1
        b = XA[ks]
        l = [f"ds_read_b128 {vr(b,4)}, v{XC[j]}"]
        if mode == 0:
            l += [f"ds_read_b64_tr_b16 {vr(b+8,2)}, v11 offset:{ks*2048}",
                  f"ds_read_b64_tr_b16 {vr(b+10,2)}, v11 offset:{ks*2048+512}",
                  f"ds_read_b64_tr_b16 {vr(b+12,2)}, v11 offset:{4096+ks*2048}",
                  f"ds_read_b64_tr_b16 {vr(b+14,2)}, v11 offset:{4096+ks*2048+512}",
                  f"ds_read_b128 {vr(b+4,4)}, v{XD[j]}"]
        if mode in (1, 2):
            l += [f"ds_read_b64_tr_b16 {vr(b+8,2)}, v11 offset:{ks*640}",
                  f"ds_read_b64_tr_b16 {vr(b+10,2)}, v11 offset:{ks*640+160}"]
        l += [f"ds_read_b64_tr_b16 {vr(b+16,2)}, v12 offset:{ks*1024}",
              f"ds_read_b64_tr_b16 {vr(b+18,2)}, v12 offset:{ks*1024+256}"]
        return l
    def mfma_list(ks, mode):
        b = XA[ks]
        x0, x1, wg, wu, ws = vr(b,4), vr(b+4,4), vr(b+8,4), vr(b+12,4), vr(b+16,4)
        l = []
        if mode == 0:
            l = [f"{M} v[64:79], {wg}, {x0}, v[64:79]", f"{M} v[80:95], {wu}, {x0}, v[80:95]",
                 f"{M} v[96:111], {wg}, {x1}, v[96:111]", f"{M} v[112:127], {wu}, {x1}, v[112:127]"]
        if mode == 1: l = [f"{M} v[64:79], {wg}, {x0}, v[64:79]"]
        if mode == 2: l = [f"{M} v[64:79], {x0}, {wg}, v[64:79]"]
        return l + [f"{M} v[128:143], {ws}, {x0}, v[128:143]"]
    def half(ml, rl, post):
        a("s_waitcnt lgkmcnt(0)")
        n = len(ml)
        per = -(-len(rl) // max(n - 1, 1))
        for i, m in enumerate(ml):
            a(m)
            if n == 1:
                for x in rl + post: a(x)
                continue
            for x in rl[per*i:per*i+per]: a(x)
            if i == n - 2:
                for x in post: a(x)
    for mode, tag in ((0, "full"), (1, "modeK"), (2, "modeV"), (3, "modeQ")):
        a(f"{L}_{tag}:")
        for x in xaddrs(mode == 0) + waddrs(mode): a(x)
        a("s_barrier")
        for x in read_list(0, mode): a(x)
        stamp(a, 1)
        if mode == 0: a(".p2align 6")
        a(f"{L}_{tag}_loop:")
        half(mfma_list(0, mode), read_list(1, mode), waddrs(mode))
        a("s_barrier")
        half(mfma_list(1, mode), read_list(2, mode), [])
        half(mfma_list(0, mode), read_list(3, mode), waddrs(mode) + xaddrs(mode == 0))
        a("s_barrier")
        half(mfma_list(1, mode), read_list(0, mode), ["s_add_u32 s46, s46, 1", "s_cmp_lt_u32 s46, 10"])
        a(f"s_cbranch_scc1 {L}_{tag}_loop")
        stamp(a, 2)
        a(f"""
        s_lshl_b32 s52, s20, 3
        s_lshl_b32 s53, s63, 1
        s_add_u32 s52, s52, s53
        s_add_u32 s52, s52, s64
        v_lshlrev_b32 v2, 4, v1
        """)
        a(f"s_branch {L}_epi{mode}")
    a.c("s52 = global row block of acc set 0 and of the q chain (set 1 is s52 ^ 1)")
    EK = 64
    a(f"""
    {L}_epi1:
    s_mul_i32 s53, s52, 3072
    s_add_u32 s53, s53, {WS_KV}
    s_nop 7
    s_waitcnt lgkmcnt(0)
    """)
    for i in range(4): a(f"v_cvt_pk_bf16_f32 v{20+i}, v{EK+2*i}, v{EK+2*i+1}")
    a(f"buffer_store_dwordx4 v[20:23], v2, s[8:11], s53 offen{SC}")
    a(f"v_cvt_pk_bf16_f32 v24, v{EK+8}, v{EK+9}")
    a(f"v_cvt_pk_bf16_f32 v25, v{EK+10}, v{EK+11}")
    a("v_mov_b32 v26, 0x3f803f80")
    a("v_mov_b32 v27, 0x00003f80")
    a(f"v_mul_f32 v30, v{EK}, v{EK}")
    for i in range(1, 8): a(f"v_fmac_f32 v30, v{EK+i}, v{EK+i}")
    a(f"v_mul_f32 v31, v{EK+8}, v{EK+8}")
    for i in range(9, 12): a(f"v_fmac_f32 v31, v{EK+i}, v{EK+i}")
    a(f"""
    v_cmp_gt_u32 vcc, 32, v1
    s_nop 1
    v_cndmask_b32 v31, 0, v31, vcc
    v_add_f32 v30, v30, v31
    v_mov_b32 v31, v30
    s_nop 1
    v_permlane32_swap_b32 v30, v31
    s_nop 1
    v_add_f32 v30, v30, v31
    """)
    for sh in (1, 2, 4, 8):
        a("s_nop 1")
        a(f"v_max_f32_dpp v30, v30, v30 row_shr:{sh} row_mask:0xf bank_mask:0xf")
    a(f"""
    s_nop 1
    v_max_f32_dpp v30, v30, v30 row_bcast:15 row_mask:0xa bank_mask:0xf
    v_cmp_eq_u32 vcc, 31, v1
    v_and_b32 v30, 0xffff0000, v30
    v_or_b32 v30, 0x3f80, v30
    v_cndmask_b32 v27, v27, v30, vcc
    s_mov_b32 exec_hi, 0
    buffer_store_dwordx4 v[24:27], v2, s[8:11], s53 offen offset:1024{SC}
    s_branch {L}_kvdone
    {L}_epi2:
    s_mul_i32 s53, s52, 3072
    s_add_u32 s53, s53, {WS_KV+1536}
    v_and_b32 v17, 31, v1
    v_lshrrev_b32 v18, 5, v1
    v_mul_u32_u24 v18, 384, v18
    v_lshl_add_u32 v16, v17, 4, v18
    v_mov_b32 v19, 0x3f803f80
    v_cmp_eq_u32 vcc, 20, v17
    v_cmp_lt_u32 s[54:55], 19, v17
    s_nop 3
    v_cndmask_b32 v19, 0, v19, vcc
    s_waitcnt lgkmcnt(0)
    """)
    for i in range(8): a(f"v_cvt_pk_bf16_f32 v{20+i}, v{EK+2*i}, v{EK+2*i+1}")
    for i in range(8): a(f"v_cndmask_b32 v{20+i}, v{20+i}, v19, s[54:55]")
    a(f"""
    v_cmp_gt_u32 vcc, 24, v17
    s_nop 1
    s_and_b64 exec, exec, vcc
    buffer_store_dwordx4 v[20:23], v16, s[8:11], s53 offen{SC}
    buffer_store_dwordx4 v[24:27], v16, s[8:11], s53 offen offset:768{SC}
    {L}_kvdone:
    s_mov_b64 exec, -1
    s_waitcnt vmcnt(0)
    s_barrier
    s_branch {L}_epi3
    """)
    C0 = -2.0 * 0.7978845608028654 * LOG2E
    C1 = C0 * 0.044715
    a(f"""
    {L}_epi0:
    v_mov_b32 v16, {f32(C0)}
    v_mov_b32 v17, {f32(C1)}
    s_lshl_b32 s54, s21, 12
    s_lshl_b32 s55, s64, 11
    s_add_u32 s54, s54, s55
    s_add_u32 s54, s54, {WS_H}
    s_mul_i32 s53, s52, {108*1024}
    s_add_u32 s53, s53, s54
    s_xor_b32 s55, s52, 1
    s_mul_i32 s55, s55, {108*1024}
    s_add_u32 s54, s54, s55
    s_waitcnt lgkmcnt(0)
    """)
    for j in range(2):
        G, U = 64 + 32*j, 80 + 32*j
        for hf in range(2):
            T = 20
            rs = list(range(8*hf, 8*hf+8))
            for i, r in enumerate(rs): a(f"v_mul_f32 v{T+i}, v{G+r}, v{G+r}")
            for i, r in enumerate(rs): a(f"v_fma_f32 v{T+i}, v{T+i}, v17, v16")
            for i, r in enumerate(rs): a(f"v_mul_f32 v{T+i}, v{G+r}, v{T+i}")
            for i, r in enumerate(rs): a(f"v_exp_f32 v{T+i}, v{T+i}")
            for i, r in enumerate(rs): a(f"v_mul_f32 v{U+r}, v{G+r}, v{U+r}")
            for i, r in enumerate(rs): a(f"v_add_f32 v{T+i}, 1.0, v{T+i}")
            for i, r in enumerate(rs): a(f"v_rcp_f32 v{T+i}, v{T+i}")
            a("s_nop 0")
            for i, r in enumerate(rs): a(f"v_mul_f32 v{T+i}, v{U+r}, v{T+i}")
            O = 28 + 4*(2*j+hf)
            for i in range(4): a(f"v_cvt_pk_bf16_f32 v{O+i}, v{T+2*i}, v{T+2*i+1}")
            a(f"buffer_store_dwordx4 {vr(O,4)}, v2, s[8:11], s{53+j} offen offset:{1024*hf}{SC}")
    a(f"""
    {L}_epi3:
    s_nop 7
    v_mov_b32 v144, {f32(QSCALE)}
    s_waitcnt lgkmcnt(0)
    """)
    for i in range(12): a(f"v_mul_f32 v{128+i}, v144, v{128+i}")
    for i in range(6): a(f"v_cvt_pk_bf16_f32 v{QA1+i}, v{128+2*i}, v{129+2*i}")
    a(f"""
    s_mul_i32 s52, s63, 1536
    s_add_u32 s52, s52, {QST}
    v_add_u32 v144, s52, v2
    v_lshl_add_u32 v145, v1, 3, s52
    s_cmp_ge_u32 s22, 4
    s_cbranch_scc1 {L}_gwave
    """)
    a(f"""
    s_setprio {E("APRIO", "1")}
    v_and_b32 v9, 31, v1
    v_lshrrev_b32 v10, 5, v1
    v_add_u32 v3, {KVR}, v2
    v_lshlrev_b32 v4, 4, v9
    v_add_u32 v4, {KVR+1024}, v4
    v_min_u32 v5, 23, v9
    v_mul_u32_u24 v11, 384, v10
    v_lshl_add_u32 v5, v5, 4, v11
    v_add_u32 v5, {KVR+1536}, v5
    v_lshlrev_b32 v146, 2, v1
    v_add_u32 v146, {QST+6144}, v146
    v_add_u32 v6, {CH}, v3
    v_add_u32 v7, {CH}, v4
    v_add_u32 v8, {CH}, v5
    s_mov_b32 s27, {2*CH}
    s_mov_b32 s30, 0
    v_cmp_gt_u32 s[28:29], 32, v1
    v_lshlrev_b32 v60, 3, v9
    v_lshl_add_u32 v60, v10, 8, v60
    s_lshl_b32 s33, s20, 3
    s_lshl_b32 s52, s22, 1
    s_add_u32 s33, s33, s52
    s_mul_i32 s33, s33, 40960
    s_mul_i32 s52, s21, 1280
    s_add_u32 s33, s33, s52
    s_add_u32 s33, s33, {WS_O}
    s_add_u32 s31, s33, 40960
    """)
    a.c("v60 = o store offset, s33/s31 = o image base of block a / b")
    for r in list(range(OA, OA+32)) + list(range(PB, PB+8)) + list(range(KVB[1]+8, KVB[1]+16)):
        a(f"v_mov_b32 v{r}, 0")
    def qnorm(q1, q2, t, extra=()):
        ex = list(extra) + [""] * 2
        a(f"""
        v_cndmask_b32 v{q2}, 0, v{q2}, s[28:29]
        v_cndmask_b32 v{q2+1}, 0, v{q2+1}, s[28:29]
        v_mov_b32 v{t}, 0
        {ex[0]}
        v_dot2_f32_bf16 v{t}, v{q1}, v{q1}, v{t}
        v_dot2_f32_bf16 v{t}, v{q1+1}, v{q1+1}, v{t}
        v_dot2_f32_bf16 v{t}, v{q1+2}, v{q1+2}, v{t}
        {ex[1]}
        v_dot2_f32_bf16 v{t}, v{q1+3}, v{q1+3}, v{t}
        v_dot2_f32_bf16 v{t}, v{q2}, v{q2}, v{t}
        v_dot2_f32_bf16 v{t}, v{q2+1}, v{q2+1}, v{t}
        """)
    qnorm(QA1, QA2, 147)
    a(f"""
    s_barrier
    ds_read_b32 v146, v146
    ds_read_b128 {vr(QB1,4)}, v144
    ds_read_b64 {vr(QB2,2)}, v145 offset:1024
    ds_read_b128 {vr(KVB[0],4)}, v6
    ds_read_b128 {vr(KVB[0]+4,4)}, v7
    ds_read_b128 {vr(KVB[1],4)}, v6 offset:3072
    ds_read_b128 {vr(KVB[1]+4,4)}, v7 offset:3072
    ds_read_b128 {vr(KVB[0]+8,4)}, v8
    ds_read_b128 {vr(KVB[0]+12,4)}, v8 offset:768
    """)
    stamp(a, 4)
    dm = lambda k: f"v_max_f32_dpp v146, v146, v146 {k} bank_mask:0xf"
    a(f"""
    v_mov_b32 v149, v147
    s_waitcnt lgkmcnt(6)
    v_and_b32 v146, 0xffff0000, v146
    v_permlane32_swap_b32 v147, v149
    s_nop 0
    {dm("row_shr:1 row_mask:0xf")}
    v_add_f32 v147, v147, v149
    s_nop 0
    {dm("row_shr:2 row_mask:0xf")}
    """)
    qnorm(QB1, QB2, 148, [dm("row_shr:4 row_mask:0xf"), dm("row_shr:8 row_mask:0xf")])
    a(f"""
    {dm("row_bcast:15 row_mask:0xa")}
    s_nop 1
    v_mov_b32 v150, v148
    {dm("row_bcast:31 row_mask:0xc")}
    s_nop 0
    v_permlane32_swap_b32 v148, v150
    v_readlane_b32 s26, v146, 63
    s_nop 0
    v_add_f32 v148, v148, v150
    v_mul_f32 v147, s26, v147
    v_mul_f32 v148, s26, v148
    v_sqrt_f32 v147, v147
    v_sqrt_f32 v148, v148
    v_mul_f32 v147, {f32(1.02)}, v147
    v_mul_f32 v148, {f32(1.02)}, v148
    """)
    def set_shift(ma, mb):
        for m, q2 in ((ma, QA2), (mb, QB2)):
            split3(a, m, q2+2, q2+3, 149, 150)
            a(f"v_cndmask_b32 v{q2+2}, 0, v{q2+2}, s[28:29]")
            a(f"v_cndmask_b32 v{q2+3}, 0, v{q2+3}, s[28:29]")
    set_shift(147, 148)
    a("s_waitcnt lgkmcnt(0)")
    for x in qk(SA, KVB[0], QA1, QA2): a(x)
    a("s_nop 11")
    a(".p2align 6")
    a(f"{L}_aloop:")
    for t in range(4):
        cur, nxt = KVB[t & 1], KVB[(t + 1) & 1]
        aslot(a, SA, PA, qk(SB, cur, QB1, QB2) + pv(OB, nxt, PB))
        pre = ["s_waitcnt lgkmcnt(0)" if t != 3 else "s_waitcnt vmcnt(0) lgkmcnt(0)"]
        if t == 0 and STAMP: pre.append("s_memtime s[38:39]")
        if t == 0: pre.append("s_barrier")
        if t == 0 and STAMP: pre.append("s_memtime s[36:37]")
        if t == 1 and STAMP: pre += ["s_mov_b32 m0, s30", "s_nop 0", "v_writelane_b32 v61, s36, m0", "v_writelane_b32 v62, s38, m0"]
        if t == 2:
            pre += ["v_add_u32 v6, s27, v3", "v_add_u32 v7, s27, v4"]
        if t == 3:
            pre += ["v_add_u32 v8, s27, v5",
                    f"s_add_u32 s27, s27, {CH}", f"s_cmp_ge_u32 s27, {3*CH}", "s_cselect_b32 s27, 0, s27"]
        ko = ((t + 2) & 3) * 3072
        vo = ((t + 1) & 3) * 3072
        rd = [f"ds_read_b128 {vr(cur,4)}, v6 offset:{ko}",
              f"ds_read_b128 {vr(cur+4,4)}, v7 offset:{ko}",
              f"ds_read_b128 {vr(nxt+8,4)}, v8 offset:{vo}",
              f"ds_read_b128 {vr(nxt+12,4)}, v8 offset:{vo+768}"]
        aslot(a, SB, PB, qk(SA, nxt, QA1, QA2) + pv(OA, cur, PA), pre, rd)
    a(f"""
    s_add_u32 s30, s30, 1
    s_cmp_lt_u32 s30, 16
    s_cbranch_scc1 {L}_aloop
    s_nop 1
    """)
    for x in pv(OB, KVB[1], PB): a(x)
    stamp(a, 5)
    a(f"""
    s_mov_b32 s34, 0
    {L}_aepi:
    s_mov_b32 s35, {f32(2.0**-90)}
    s_waitcnt lgkmcnt(0)
    s_nop 11
    v_mov_b32 v144, v{OA+8}
    v_mov_b32 v145, v{OA+8}
    v_mov_b32 v146, v{OB+8}
    v_mov_b32 v147, v{OB+8}
    s_nop 0
    v_permlane32_swap_b32 v144, v145
    v_permlane32_swap_b32 v146, v147
    s_nop 0
    v_cmp_nle_f32 vcc, s35, v145
    v_cmp_nle_f32 s[36:37], s35, v147
    v_rcp_f32 v145, v145
    v_rcp_f32 v147, v147
    s_or_b64 s[36:37], vcc, s[36:37]
    s_cmp_eq_u32 s34, 0
    s_cselect_b64 s[36:37], s[36:37], 0
    s_cmp_lg_u64 s[36:37], 0
    s_cbranch_scc1 {L}_slow
    """)
    for blk, O in enumerate((OA, OB)):
        R = 145 + 2*blk
        for q in range(3):
            for i in range(4): a(f"v_mul_f32 v{O+4*q+i}, v{R}, v{O+4*q+i}")
            D = 64 + 8*blk + 2*q
            a(f"v_cvt_pk_bf16_f32 v{D}, v{O+4*q}, v{O+4*q+1}")
            a(f"v_cvt_pk_bf16_f32 v{D+1}, v{O+4*q+2}, v{O+4*q+3}")
            if q == 2: a("s_mov_b32 exec_hi, 0")
            a(f"buffer_store_dwordx2 {vr(D,2)}, v60, s[8:11], s{33 if blk == 0 else 31} offen offset:{512*q} sc1")
            if q == 2: a("s_mov_b64 exec, -1")
    if STAMP:
        a(f"""
        s_lshl_b32 s36, s2, 2
        s_add_u32 s36, s36, s22
        s_lshl_b32 s36, s36, 9
        s_add_u32 s36, s36, {0x1900000}
        v_lshlrev_b32 v63, 2, v1
        buffer_store_dword v61, v63, s[8:11], s36 offen
        buffer_store_dword v62, v63, s[8:11], s36 offen offset:256
        """)
    a(f"""
    s_setprio 0
    s_branch {L}_p3
    """)
    kb = KVB[0]
    a(f"""
    {L}_slow:
    s_mov_b32 s34, 1
    v_mov_b32 v{QA2+2}, 0
    v_mov_b32 v{QA2+3}, 0
    v_mov_b32 v{QB2+2}, 0
    v_mov_b32 v{QB2+3}, 0
    v_mov_b32 v147, 0xff800000
    v_mov_b32 v148, 0xff800000
    s_mov_b32 s36, {WS_KV - KVR}
    {L}_slow1:
    buffer_load_dwordx4 {vr(kb,4)}, v3, s[8:11], s36 offen
    buffer_load_dwordx4 {vr(kb+4,4)}, v4, s[8:11], s36 offen
    s_add_u32 s36, s36, 3072
    s_waitcnt vmcnt(0)
    """)
    for x in qk(SA, kb, QA1, QA2) + qk(SB, kb, QB1, QB2): a(x)
    a("s_nop 15")
    for i in range(0, 16, 2):
        a(f"v_max3_f32 v147, v{SA+i}, v{SA+i+1}, v147")
        a(f"v_max3_f32 v148, v{SB+i}, v{SB+i+1}, v148")
    a(f"""
    s_cmp_lt_u32 s36, {WS_KV - KVR + 64*3072}
    s_cbranch_scc1 {L}_slow1
    v_mov_b32 v149, v147
    v_mov_b32 v150, v148
    s_nop 1
    v_permlane32_swap_b32 v147, v149
    v_permlane32_swap_b32 v148, v150
    s_nop 1
    v_max_f32 v147, v147, v149
    v_max_f32 v148, v148, v150
    """)
    set_shift(147, 148)
    for r in range(OA, OA+32): a(f"v_mov_b32 v{r}, 0")
    a(f"""
    s_mov_b32 s36, {WS_KV - KVR}
    {L}_slow2:
    buffer_load_dwordx4 {vr(kb,4)}, v3, s[8:11], s36 offen
    buffer_load_dwordx4 {vr(kb+4,4)}, v4, s[8:11], s36 offen
    buffer_load_dwordx4 {vr(kb+8,4)}, v5, s[8:11], s36 offen
    buffer_load_dwordx4 {vr(kb+12,4)}, v5, s[8:11], s36 offen offset:768
    s_add_u32 s36, s36, 3072
    s_waitcnt vmcnt(0)
    """)
    for x in qk(SA, kb, QA1, QA2) + qk(SB, kb, QB1, QB2): a(x)
    a("s_nop 15")
    for g in exp_groups(SA, PA) + exp_groups(SB, PB):
        for x in g: a(x)
    a("s_nop 1")
    for x in pv(OA, kb, PA) + pv(OB, kb, PB): a(x)
    a(f"""
    s_cmp_lt_u32 s36, {WS_KV - KVR + 64*3072}
    s_cbranch_scc1 {L}_slow2
    s_nop 7
    s_branch {L}_aepi
    """)

    a(f"""
    {L}_gwave:
    ds_write_b128 v144, {vr(QA1,4)}
    ds_write_b64 v145, {vr(QA2,2)} offset:1024
    s_load_dwordx2 s[6:7], s[0:1], 64
    s_and_b32 s16, s22, 3
    s_cmp_ge_u32 s21, 15
    s_cselect_b32 s33, 1, 0
    s_cselect_b32 s34, 15, 0
    s_sub_u32 s34, s21, s34
    s_lshl_b32 s35, s20, 1
    s_add_u32 s33, s33, s35
    s_mul_i32 s35, s34, 13
    s_lshr_b32 s35, s35, 6
    s_mul_i32 s36, s35, 5
    s_sub_u32 s34, s34, s36
    s_waitcnt lgkmcnt(0)
    s_barrier
    s_lshl_b32 s36, s33, 2
    s_add_u32 s36, s36, s16
    s_mul_i32 s36, s36, 108
    s_mul_i32 s37, s35, 36
    s_add_u32 s36, s36, s37
    s_lshl_b32 s36, s36, 10
    s_add_u32 s40, s36, {WS_H}
    s_mul_i32 s41, s35, {576*1280}
    s_mul_i32 s36, s16, {16*1280}
    s_add_u32 s41, s41, s36
    s_lshl_b32 s36, s34, 8
    s_add_u32 s41, s41, s36
    v_lshrrev_b32 v3, 4, v1
    v_lshlrev_b32 v4, 2, v3
    v_and_b32 v5, 15, v1
    v_xor_b32 v4, v4, v5
    s_movk_i32 s36, 1280
    v_mul_u32_u24 v3, s36, v3
    v_lshl_add_u32 v3, v4, 4, v3
    v_add_u32 v4, {5120-1024}, v3
    v_add_u32 v5, {2*(5120-1024)}, v3
    v_add_u32 v13, {3*(5120-1024)}, v3
    s_lshl_b32 s42, s16, 12
    s_add_u32 s43, s42, 16384
    s_mov_b32 s45, 0
    s_mov_b32 s30, 0
    s_mov_b32 s46, 0
    s_cmp_lt_u32 s21, 30
    s_cselect_b32 s47, 9, 0
    s_cselect_b32 s50, {WS_SIZE}, 0
    s_cselect_b32 s54, 2211840, 0
    s_mov_b32 s48, s18
    s_and_b32 s49, s19, 0xffff
    s_mov_b32 s51, 0x20000
    s_mov_b32 s55, 0x20000
    s_mov_b32 m0, s43
    s_mov_b32 s52, s6
    s_and_b32 s53, s7, 0xffff
    """)
    a.c("s33 = row group (128 rows), s34 = col group (128 cols), s35 = k split, s47 = stages of this WG")
    def gw():
        a(f"""
        buffer_load_dwordx4 v3, s[52:55], s41 offen lds
        buffer_load_dwordx4 v4, s[52:55], s41 offen offset:1024 lds
        buffer_load_dwordx4 v5, s[52:55], s41 offen offset:2048 lds
        buffer_load_dwordx4 v13, s[52:55], s41 offen offset:3072 lds
        s_add_u32 s41, s41, {64*1280}
        """)
    def gh():
        a(f"""
        buffer_load_dwordx4 v2, s[48:51], s40 offen lds
        buffer_load_dwordx4 v2, s[48:51], s40 offen offset:1024 lds
        buffer_load_dwordx4 v2, s[48:51], s40 offen offset:2048 lds
        buffer_load_dwordx4 v2, s[48:51], s40 offen offset:3072 lds
        s_add_u32 s40, s40, 4096
        """)
    gw()
    a(f"""
    s_and_b32 s36, s16, 1
    s_lshr_b32 s37, s16, 1
    s_lshl_b32 s38, s36, 13
    v_add_u32 v6, s38, v2
    v_lshrrev_b32 v8, 5, v1
    v_bfe_u32 v9, v1, 2, 2
    v_lshl_add_u32 v8, v8, 2, v9
    v_lshlrev_b32 v8, 8, v8
    s_lshl_b32 s38, s37, 1
    v_xor_b32 v9, s38, v9
    v_lshl_add_u32 v8, v9, 6, v8
    v_bfe_u32 v9, v1, 4, 1
    v_lshl_add_u32 v8, v9, 5, v8
    v_and_b32 v9, 3, v1
    v_lshl_add_u32 v8, v9, 3, v8
    v_add_u32 v7, 16384, v8
    v_xor_b32 v8, 64, v7
    """)
    for r in range(64, 128): a(f"v_mov_b32 v{r}, 0")
    a(f"""
    s_mov_b32 m0, s42
    s_barrier
    s_waitcnt vmcnt(0)
    s_barrier
    s_barrier
    s_barrier
    """)
    gh()
    a(f"""
    s_mov_b32 s44, {GSL}
    s_branch {L}_gin
    {L}_gloop:
    s_barrier
    {L}_gin:
    s_add_u32 s46, s46, 1
    s_cmp_ge_u32 s46, s47
    s_cbranch_scc1 {L}_gnod
    s_add_u32 m0, s44, s42
    s_nop 0
    """)
    gh()
    a("s_add_u32 m0, s44, s43")
    a(f"s_add_u32 s44, s44, {GSL}")
    gw()
    a(f"""
    s_cmp_ge_u32 s44, {3*GSL}
    s_cselect_b32 s44, 0, s44
    {L}_gnod:
    s_sub_u32 s36, s30, 1
    s_cmp_ge_u32 s36, s47
    s_cbranch_scc1 {L}_gskip
    v_add_u32 v10, s45, v6
    v_add_u32 v11, s45, v7
    v_add_u32 v12, s45, v8
    s_add_u32 s45, s45, {GSL}
    s_cmp_ge_u32 s45, {3*GSL}
    s_cselect_b32 s45, 0, s45
    """)
    FB = [16, 32]
    def rl(ks):
        b = FB[ks & 1]
        return [f"ds_read_b128 {vr(b,4)}, v10 offset:{ks*1024}",
                f"ds_read_b64_tr_b16 {vr(b+8,2)}, v11 offset:{ks*4096}",
                f"ds_read_b64_tr_b16 {vr(b+10,2)}, v11 offset:{ks*4096+2048}",
                f"ds_read_b64_tr_b16 {vr(b+12,2)}, v12 offset:{ks*4096}",
                f"ds_read_b64_tr_b16 {vr(b+14,2)}, v12 offset:{ks*4096+2048}",
                f"ds_read_b128 {vr(b+4,4)}, v10 offset:{ks*1024+4096}"]
    def ml(ks):
        b = FB[ks & 1]
        x0, x1, w0, w1 = vr(b,4), vr(b+4,4), vr(b+8,4), vr(b+12,4)
        return [f"{M} v[64:79], {w0}, {x0}, v[64:79]", f"{M} v[80:95], {w1}, {x0}, v[80:95]",
                f"{M} v[96:111], {w0}, {x1}, v[96:111]", f"{M} v[112:127], {w1}, {x1}, v[112:127]"]
    for x in rl(0): a(x)
    for ks in range(4):
        a("s_waitcnt lgkmcnt(0)")
        r = rl(ks + 1) if ks < 3 else []
        for i, m in enumerate(ml(ks)):
            a(m)
            for x in r[2*i:2*i+2]: a(x)
    a(f"""
    s_cmp_lg_u32 s30, s47
    s_cbranch_scc1 {L}_gskip
    s_lshl_b32 s36, s35, 6
    s_lshl_b32 s37, s33, 2
    s_add_u32 s36, s36, s37
    s_and_b32 s37, s16, 1
    s_lshl_b32 s37, s37, 1
    s_add_u32 s36, s36, s37
    s_mul_i32 s36, s36, 40
    s_lshl_b32 s37, s34, 3
    s_add_u32 s36, s36, s37
    s_lshr_b32 s37, s16, 1
    s_lshl_b32 s37, s37, 2
    s_add_u32 s36, s36, s37
    s_lshl_b32 s36, s36, 10
    s_add_u32 s36, s36, {WS_B}
    s_add_u32 s37, s36, 40960
    s_nop 7
    """)
    for u in range(4):
        A = 64 + 16*u
        for qp in range(2):
            O = 16 + 4*((2*u+qp) % 8)
            for i in range(4):
                a(f"v_cvt_pk_bf16_f32 v{O+i}, v{A+8*qp+2*i}, v{A+8*qp+2*i+1}")
            a(f"buffer_store_dwordx4 {vr(O,4)}, v2, s[8:11], s{36 + (u>>1)} offen offset:{(u&1)*2048 + qp*1024} sc1")
    a(f"""
    s_branch {L}_gend
    {L}_gskip:
    s_add_u32 s30, s30, 1
    s_cmp_ge_u32 s30, 10
    s_cbranch_scc1 {L}_gend
    s_cmp_lt_u32 s46, s47
    s_cbranch_scc1 {L}_gw8
    s_waitcnt vmcnt(0)
    {L}_gw8:
    s_waitcnt vmcnt(8)
    s_branch {L}_gloop
    {L}_gend:
    s_barrier
    s_waitcnt vmcnt(0)
    s_barrier
    s_barrier
    """)

    a(f"""
    {L}_p3:
    s_load_dwordx2 s[4:5], s[0:1], 80
    s_lshl_b32 s17, s20, 3
    s_lshr_b32 s16, s21, 3
    s_lshl_b32 s16, s16, 1
    s_add_u32 s17, s17, s16
    s_and_b32 s16, s21, 7
    s_and_b32 s36, s22, 1
    s_lshr_b32 s39, s22, 1
    s_add_u32 s36, s17, s36
    s_mul_i32 s36, s36, 40
    s_mul_i32 s37, s39, 10
    s_add_u32 s36, s36, s37
    s_lshl_b32 s36, s36, 10
    s_add_u32 s36, s36, {WS_O}
    s_add_u32 s37, s36, 4096
    s_add_u32 s38, s36, 8192
    v_lshrrev_b32 v8, 5, v1
    v_bfe_u32 v9, v1, 2, 2
    v_lshl_add_u32 v8, v8, 2, v9
    v_mul_u32_u24 v8, 192, v8
    v_bfe_u32 v9, v1, 4, 1
    v_lshl_add_u32 v8, v9, 5, v8
    v_and_b32 v9, 3, v1
    v_lshl_add_u32 v8, v9, 3, v8
    s_mul_i32 s39, s39, 30720
    v_add_u32 v8, s39, v8
    v_lshlrev_b32 v7, 3, v1
    v_and_b32 v6, 31, v1
    s_lshl_b32 s39, s17, 5
    v_add_u32 v6, s39, v6
    v_lshrrev_b32 v4, 3, v6
    v_lshlrev_b32 v4, 7, v4
    v_and_b32 v9, 7, v1
    v_lshl_add_u32 v4, v9, 2, v4
    s_mov_b32 s40, {WS_G}
    s_mul_i32 s41, s16, 10
    s_add_u32 s41, s41, s22
    s_lshr_b32 s42, s41, 1
    s_lshl_b32 s42, s42, 10
    s_and_b32 s43, s41, 1
    s_lshl_b32 s43, s43, 3
    s_add_u32 s42, s42, s43
    s_mul_i32 s43, s17, 40960
    s_add_u32 s42, s42, s43
    s_add_u32 s42, s42, {WS_B}
    s_waitcnt vmcnt(0)
    s_barrier
    s_cmp_lg_u32 s22, 8
    s_cbranch_scc1 {L}_p3nf
    """)
    a.c("s17 = first row block of the tile, s16 = column group; final items: quad = wave, both row blocks")
    stamp(a, 5)
    flag(a, "s34")
    a(f"{L}_p3nf:")
    for j in range(2):
        for sk in range(3):
            a(f"s_add_u32 s43, s42, {j*40960 + sk*64*40960}")
            a(f"buffer_load_dwordx2 {vr(128+6*j+2*sk,2)}, v2, s[8:11], s43 offen sc1")
    a(f"""
    s_movk_i32 s43, 1280
    v_mul_lo_u32 v6, v6, s43
    v_lshrrev_b32 v9, 5, v1
    v_lshl_add_u32 v6, v9, 3, v6
    s_lshl_b32 s41, s41, 4
    s_add_u32 s44, s41, 40960
    s_waitcnt lgkmcnt(0)
    """)
    srd(a, 12, 4, 5, 2621440)
    for r in range(64, 112): a(f"v_mov_b32 v{r}, 0")
    WF = [112, 144]
    def wr(ks):
        b = WF[ks & 1]
        return [f"ds_read_b64_tr_b16 {vr(b+4*cb+2*t,2)}, v8 offset:{ks*3072 + t*1536 + 64*cb}" for cb in range(3) for t in range(2)]
    a(f"""
    s_cmp_lt_u32 s22, 8
    s_cbranch_scc1 {L}_p3np
    s_cmp_eq_u32 s22, 9
    s_cbranch_scc1 {L}_p3nq
    s_mov_b32 exec_hi, 0
    """)
    poll(a, L, "v3", "s35")
    a(f"""
    s_mov_b64 exec, -1
    {L}_p3nq:
    s_barrier
    buffer_load_dword v140, v4, s[8:11], s40 offen sc1
    buffer_load_dword v141, v4, s[8:11], s40 offen offset:512 sc1
    s_branch {L}_p3r
    {L}_p3np:
    """)
    for x in wr(0): a(x)
    a("s_barrier")
    stamp(a, 6)
    OF = 16
    for ks in range(10):
        for sl in range(2):
            a(f"buffer_load_dwordx2 {vr(OF+4*ks+2*sl,2)}, v7, s[8:11], s{36+ks//4} offen offset:{(ks%4)*1024+512*sl} sc1")
    a("buffer_load_dword v140, v4, s[8:11], s40 offen sc1")
    a("buffer_load_dword v141, v4, s[8:11], s40 offen offset:512 sc1")
    for ks in range(10):
        a(f"s_waitcnt vmcnt({20-2*ks}) lgkmcnt(0)")
        r = wr(ks+1) if ks < 9 else []
        b = WF[ks & 1]
        for cb in range(3):
            a(f"{M} {vr(64+16*cb,16)}, {vr(b+4*cb,4)}, {vr(OF+4*ks,4)}, {vr(64+16*cb,16)}")
            for x in r[2*cb:2*cb+2]: a(x)
    a(f"""
    s_mul_i32 s39, s22, 10240
    v_add_u32 v5, s39, v2
    {L}_p3r:
    s_barrier
    s_cmp_ge_u32 s22, 8
    s_cbranch_scc1 {L}_p3r2
    s_nop 7
    """)
    for q in range(10):
        a(f"ds_write_b128 v5, {vr(64+4*q,4)} offset:{1024*q}")
    a(f"""
    s_waitcnt lgkmcnt(0)
    {L}_p3r2:
    s_lshl_b32 s39, s22, 10
    v_add_u32 v5, s39, v2
    v_add_u32 v7, 40960, v5
    s_barrier
    """)
    for j in range(2):
        for kq in range(4):
            a(f"ds_read_b128 {vr(16+16*j+4*kq,4)}, v{5 if kq < 2 else 7} offset:{j*10240 + (kq%2)*20480}")
    a("s_waitcnt vmcnt(0)")
    for j in range(2):
        a(f"""
        v_sub_f32 v{142+j}, 1.0, v{140+j}
        v_cvt_pk_bf16_f32 v{142+j}, v{142+j}, v{142+j}
        v_lshlrev_b32 v{142+j}, 16, v{142+j}
        """)
        B = 128 + 6*j
        for i in range(4):
            ex = (lambda d, r: f"v_lshlrev_b32 v{d}, 16, v{r}") if i % 2 == 0 else (lambda d, r: f"v_and_b32 v{d}, 0xffff0000, v{r}")
            a(f"""
            {ex(56+4*j+i, B + i//2)}
            {ex(55, B + 2 + i//2)}
            v_add_f32 v{56+4*j+i}, v{56+4*j+i}, v55
            {ex(55, B + 4 + i//2)}
            v_add_f32 v{56+4*j+i}, v{56+4*j+i}, v55
            """)
    a("s_waitcnt lgkmcnt(0)")
    for j in range(2):
        P = 16 + 16*j
        for i in range(4):
            a(f"""
            v_add_f32 v{P+i}, v{P+i}, v{P+4+i}
            v_add_f32 v{P+8+i}, v{P+8+i}, v{P+12+i}
            v_add_f32 v{P+i}, v{P+i}, v{P+8+i}
            v_mul_f32 v{P+i}, v{140+j}, v{P+i}
            v_fmac_f32 v{P+i}, v{142+j}, v{56+4*j+i}
            """)
        a(f"""
        v_cvt_pk_bf16_f32 v{P}, v{P}, v{P+1}
        v_cvt_pk_bf16_f32 v{P+1}, v{P+2}, v{P+3}
        buffer_store_dwordx2 {vr(P,2)}, v6, s[12:15], s{41 if j == 0 else 44} offen
        """)
    stamp_out(a, 7, 0)
    a(f"{L}_end:")
    a("s_endpgm")
    kernel_desc(a, name, 160, 100)
```

```python
import sys
sys.path.insert(0, 'gen')
from common import *
import fk as fused
NAME = "gated_mix__grouped_kv_mqa__geglu_ffn__prompt"
HEAD = open(f'cdna_kernels/{NAME}.s.ref').read().split('; Override')[0]
a = Asm()
hdr = HEAD + f"; @launch grid=(256,1,1) block=({fused.F_BLOCK},1,1) lds={fused.F_LDS}\n"
hdr += '.amdgcn_target "amdgcn-amd-amdhsa--gfx950"\n'
hdr += """; One persistent launch, 256 workgroups (one per CU) x 10 waves; workgroup = (256-row group rg, head/column group cg).
"""
fused.gen(a, NAME + "_kernel")
out = sys.argv[1] if len(sys.argv) > 1 else f'cdna_kernels/{NAME}.s'
open(out, 'w').write(hdr + a.text())
```

```python
from common import *
import math
from k2 import (M, QA1, QA2, QB1, QB2, KVB, SA, SB, OA, OB, PA, PB, split3, exp_groups, qk, pv, CH)
LOG2E = 1.4426950408889634
QSCALE = LOG2E / math.sqrt(20.0)
E = os.environ.get
XSL = 32768
WB = 3 * XSL
WSL = 10240
QST = WB
KVR = 163840 - 3 * CH
GSL = 32768
NONCE = 122880
BREG = True
F_LDS = 163840
F_BLOCK = 640
SPIN = int(E("SPIN", 1 << 16))
SC = " sc1"

_pc = [0]
def poll(a, L, voff, soff):
    _pc[0] += 1
    T = f"{L}_poll{_pc[0]}"
    a(f"""
    s_mov_b32 s70, {SPIN}
    {T}:
    buffer_load_dwordx2 v[24:25], {voff}, s[8:11], {soff} offen sc1
    s_sub_u32 s70, s70, 1
    s_cbranch_scc1 {T}_ok
    s_waitcnt vmcnt(0)
    v_cmp_ne_u64 vcc, v[24:25], v[20:21]
    s_cmp_eq_u64 vcc, 0
    s_cbranch_scc1 {T}_ok
    s_sleep {E("PSLEEP", "2")}
    s_branch {T}
    {T}_ok:
    """)

def flag(a, soff):
    a(f"""
    s_mov_b64 exec, 1
    buffer_store_dwordx2 v[20:21], v5, s[8:11], {soff} offen sc1
    s_mov_b64 exec, -1
    """)

def aslot(a, S, P, mf, pre=(), rd=None):
    g = exp_groups(S, P)
    flat = [x for gg in g for x in gg]
    pos = [int(x) for x in E("MPOS", "0,5,11,17").split(",")]
    for p in pre: a(p)
    k = 0
    for i, x in enumerate(flat):
        while k < 4 and pos[k] == i:
            a(mf[k])
            if rd: a(rd[k])
            k += 1
        a(x)

def gen(a, name):
    kernel_head(a, name)
    L = name
    a(f"""
    s_cmp_ge_u32 s2, 256
    s_cbranch_scc1 {L}_end
    s_load_dwordx8 s[4:11], s[0:1], 0
    s_load_dwordx4 s[12:15], s[0:1], 48
    s_load_dwordx2 s[18:19], s[0:1], 96
    """)
    stamp(a, 0)
    a(f"""
    v_lshrrev_b32 v2, 6, v0
    v_and_b32 v1, 63, v0
    v_readfirstlane_b32 s22, v2
    s_and_b32 s47, s2, 7
    s_lshr_b32 s51, s2, 3
    s_and_b32 s20, s47, 1
    s_lshl_b32 s20, s20, 2
    s_and_b32 s67, s51, 3
    s_add_u32 s20, s20, s67
    s_lshr_b32 s21, s47, 1
    s_lshl_b32 s21, s21, 3
    s_lshr_b32 s68, s51, 2
    s_add_u32 s21, s21, s68
    s_cmp_lt_u32 s22, 8
    s_cbranch_scc1 {L}_comp
    """)
    a.c("s20 = row group (256 rows), s21 = cg = head = column group, s22 = wave; kept for the whole kernel, as is s[18:19]")
    a(f"""
    s_and_b32 s63, s22, 1
    v_lshrrev_b32 v10, 3, v1
    v_lshrrev_b32 v11, 4, v1
    v_and_b32 v12, 7, v1
    v_xor_b32 v12, v12, v11
    v_xor_b32 v11, 4, v12
    s_movk_i32 s54, 1280
    v_mul_u32_u24 v10, s54, v10
    v_lshl_add_u32 v15, v11, 4, v10
    v_lshl_add_u32 v10, v12, 4, v10
    s_mul_i32 s53, s20, {256*1280}
    s_mul_i32 s55, s63, {64*1280}
    s_add_u32 s53, s53, s55
    """)
    for i in range(8):
        a(f"s_add_u32 s55, s53, {i*10240 - 1024*(i&3) + 4096}")
        a(f"v_add_u32 v{2+i}, s55, v{15 if i & 1 else 10}")
    a(f"""
    s_add_u32 s52, s67, s68
    s_and_b32 s52, s52, 3
    s_mul_i32 s52, s52, 5
    s_lshr_b32 s52, s52, 1
    s_lshl_b32 s41, s52, 7
    s_lshl_b32 s48, s63, 13
    s_mov_b32 m0, s48
    s_waitcnt lgkmcnt(0)
    s_sub_u32 s24, s4, 4096
    s_subb_u32 s25, s5, 0
    s_and_b32 s25, s25, 0xffff
    s_mov_b32 s26, {2621440+4096}
    s_mov_b32 s27, 0x20000
    """)
    a.c("x voffsets carry +4096 so that they stay non negative; the SRD base carries -4096")
    def xdma(so):
        a(f"""
        buffer_load_dwordx4 v2, s[24:27], {so} offen lds
        buffer_load_dwordx4 v3, s[24:27], {so} offen offset:1024 lds
        buffer_load_dwordx4 v4, s[24:27], {so} offen offset:2048 lds
        buffer_load_dwordx4 v5, s[24:27], {so} offen offset:3072 lds
        s_add_u32 m0, m0, 4096
        s_nop 0
        buffer_load_dwordx4 v6, s[24:27], {so} offen lds
        buffer_load_dwordx4 v7, s[24:27], {so} offen offset:1024 lds
        buffer_load_dwordx4 v8, s[24:27], {so} offen offset:2048 lds
        buffer_load_dwordx4 v9, s[24:27], {so} offen offset:3072 lds
        """)
    xdma("s41")
    a(f"""
    v_lshrrev_b32 v13, 3, v1
    s_movk_i32 s62, 3456
    v_mul_u32_u24 v13, s62, v13
    v_and_b32 v14, 7, v1
    v_bfe_u32 v15, v1, 4, 1
    v_lshlrev_b32 v15, 2, v15
    v_xor_b32 v14, v14, v15
    v_lshl_add_u32 v13, v14, 4, v13
    s_lshl_b32 s53, s21, 7
    v_add_u32 v10, s53, v13
    v_add_u32 v11, {8*3456-1024}, v10
    v_add_u32 v12, {2*(8*3456-1024)}, v10
    v_add_u32 v13, {3*(8*3456-1024)}, v10
    v_lshrrev_b32 v14, 2, v1
    v_mul_u32_u24 v14, s54, v14
    v_and_b32 v15, 3, v1
    v_lshl_add_u32 v14, v15, 4, v14
    s_mul_i32 s53, s21, 40
    s_mul_i32 s55, s63, {16*1280}
    s_add_u32 s53, s53, s55
    v_add_u32 v14, s53, v14
    v_lshlrev_b32 v15, 4, v1
    s_cmp_eq_u32 s63, 1
    s_cselect_b32 s28, s14, s12
    s_cselect_b32 s29, s15, s13
    s_and_b32 s29, s29, 0xffff
    s_mov_b32 s30, 2211840
    s_mov_b32 s31, 0x20000
    s_mov_b32 s32, s6
    s_and_b32 s33, s7, 0xffff
    s_mov_b32 s34, 819200
    s_mov_b32 s35, 0x20000
    s_cmp_eq_u32 s21, 27
    s_cselect_b32 s36, s8, s10
    s_cselect_b32 s37, s9, s11
    s_and_b32 s37, s37, 0xffff
    s_sub_u32 s53, s21, 27
    s_cmp_lt_u32 s53, 2
    s_cselect_b32 s38, 25600, 0
    s_mov_b32 s39, 0x20000
    s_lshl_b32 s52, s52, 1
    s_mul_i32 s42, s52, {32*3456}
    s_mul_i32 s43, s52, {32*1280}
    s_mul_i32 s40, s52, 1280
    s_lshl_b32 s51, s63, 10
    s_add_u32 s40, s40, s51
    s_lshl_b32 s49, s63, 12
    s_add_u32 s49, s49, {WB}
    s_add_u32 s50, s51, {WB+8192}
    s_add_u32 s56, s51, {WB}
    s_add_u32 s45, s48, 16384
    s_add_u32 s54, s41, 163840
    s_mov_b32 s44, 0
    s_mov_b32 s46, 0
    s_mov_b32 s58, 2
    s_cmp_ge_u32 s21, 27
    s_cbranch_scc1 {L}_ldl_issue
    """)
    a.c("s45/s54 next x half (lds, soffset), s41 k byte offset of the pair, s42 W, s43 wq, s40 wk/wv soffsets, s44 W slot")
    for tag, D in (("ldf", 13), ("ldl", 10)):
        a(f"""
        {L}_{tag}_issue:
        s_mov_b32 m0, s45
        s_add_u32 s46, s46, 1
        """)
        xdma("s54")
        if tag == "ldf":
            a(f"""
            s_add_u32 m0, s44, s49
            s_add_u32 s45, s45, 16384
            buffer_load_dwordx4 v10, s[28:31], s42 offen lds
            buffer_load_dwordx4 v11, s[28:31], s42 offen offset:1024 lds
            buffer_load_dwordx4 v12, s[28:31], s42 offen offset:2048 lds
            buffer_load_dwordx4 v13, s[28:31], s42 offen offset:3072 lds
            """)
        else:
            a(f"""
            s_add_u32 m0, s44, s56
            s_add_u32 s45, s45, 16384
            buffer_load_dwordx4 v15, s[36:39], s40 offen lds
            """)
        a(f"""
        s_add_u32 m0, s44, s50
        s_add_u32 s42, s42, {32*3456}
        buffer_load_dwordx4 v14, s[32:35], s43 offen lds
        s_add_u32 s43, s43, {32*1280}
        s_add_u32 s40, s40, 1280
        s_cmp_eq_u32 s43, 819200
        s_cselect_b32 s42, 0, s42
        s_cselect_b32 s43, 0, s43
        s_cselect_b32 s40, s51, s40
        s_add_u32 s44, s44, {WSL}
        s_cmp_ge_u32 s44, {4*WSL}
        s_cselect_b32 s44, 0, s44
        s_cmp_ge_u32 s45, {WB}
        s_cselect_b32 s45, s48, s45
        s_add_u32 s52, s41, 128
        s_cmp_eq_u32 s52, 1280
        s_cselect_b32 s52, 0, s52
        s_add_u32 s53, s41, 163840
        s_bitcmp1_b32 s46, 0
        s_cselect_b32 s41, s52, s41
        s_cselect_b32 s54, s52, s53
        s_cmp_eq_u32 s46, 19
        s_cselect_b32 s26, 0, s26
        s_cmp_lt_u32 s46, s58
        s_cbranch_scc1 {L}_{tag}_issue
        s_waitcnt vmcnt({D})
        s_barrier
        s_add_u32 s58, s58, 1
        s_cmp_le_u32 s58, 20
        s_cbranch_scc1 {L}_{tag}_issue
        """)
        if tag == "ldf": a(f"s_branch {L}_ld_tail")
    a(f"""
    {L}_ld_tail:
    s_load_dwordx2 s[4:5], s[0:1], 32
    s_load_dwordx2 s[6:7], s[0:1], 88
    v_mov_b32 v5, 0
    s_waitcnt vmcnt(0) lgkmcnt(0)
    s_barrier
    global_load_dwordx2 v[20:21], v5, s[6:7] sc0 sc1
    s_barrier
    """)
    srd(a, 8, 18, 19, WS_SIZE)
    srd(a, 12, 18, 19, WS_KV + 64*3072)
    a(f"""
    v_lshlrev_b32 v2, 4, v1
    v_lshlrev_b32 v3, 7, v1
    s_mov_b32 s70, {SPIN}
    s_branch {L}_l_non2
    {L}_l_non:
    global_load_dwordx2 v[20:21], v5, s[6:7] sc0 sc1
    {L}_l_non2:
    s_sub_u32 s70, s70, 1
    s_cbranch_scc1 {L}_l_non3
    s_waitcnt vmcnt(0)
    v_cmp_ne_u32 vcc, 0, v20
    s_cmp_eq_u64 vcc, 0
    s_cbranch_scc1 {L}_l_non
    {L}_l_non3:
    s_lshl_b32 s33, s20, 5
    s_add_u32 s33, s33, s21
    s_lshl_b32 s34, s33, 7
    s_add_u32 s34, s34, {WS_F}
    s_lshl_b32 s35, s20, 12
    s_add_u32 s35, s35, {WS_F}
    s_sub_u32 s53, s21, 27
    s_cmp_ge_u32 s53, 2
    s_cbranch_scc1 {L}_l_nokv
    s_barrier
    s_cmp_lg_u32 s63, 0
    s_cbranch_scc1 {L}_l_nokv
    s_lshl_b32 s52, s20, 1
    s_add_u32 s52, s52, s53
    s_lshl_b32 s52, s52, 7
    s_add_u32 s52, s52, {WS_F+FQ}
    """)
    flag(a, "s52")
    a(f"""
    {L}_l_nokv:
    s_cmp_lt_u32 s21, 27
    s_cbranch_scc1 {L}_l_now
    s_cmp_eq_u32 s63, 0
    s_cbranch_scc1 {L}_l_now
    s_load_dwordx2 s[16:17], s[0:1], 64
    s_mul_i32 s52, s20, 5
    s_add_u32 s52, s52, s53
    s_mul_i32 s52, s52, {7*8192}
    s_waitcnt lgkmcnt(0)
    s_mov_b32 s56, s16
    s_and_b32 s57, s17, 0xffff
    s_mov_b32 s58, 2211840
    s_mov_b32 s59, 0x20000
    s_mov_b32 s54, 7
    {L}_l_warm:
    buffer_load_dword v31, v3, s[56:59], s52 offen
    s_add_u32 s52, s52, 8192
    s_sub_u32 s54, s54, 1
    s_cmp_lg_u32 s54, 0
    s_cbranch_scc1 {L}_l_warm
    {L}_l_now:
    s_mul_i32 s24, s63, 6144
    s_add_u32 s30, s24, {WS_KV}
    s_add_u32 s31, s30, 4096
    s_add_u32 s24, s24, {KVR}
    s_mov_b32 s25, {CH}
    s_mov_b32 s52, {WS_F+FQ}
    s_mov_b64 exec, 0xffff
    """)
    a.c("s34 = own flag line, s35 = flag lines of this row group; s30/s31 kv source, s24 + s25 kv destination")
    stamp(a, 1)
    poll(a, L, "v3", "s52")
    a("s_mov_b64 exec, -1")
    stamp(a, 2)
    def kv():
        a(f"""
        s_add_u32 m0, s25, s24
        s_add_u32 s25, s25, {CH}
        buffer_load_dwordx4 v2, s[12:15], s30 offen lds
        buffer_load_dwordx4 v2, s[12:15], s30 offen offset:1024 lds
        buffer_load_dwordx4 v2, s[12:15], s30 offen offset:2048 lds
        buffer_load_dwordx4 v2, s[12:15], s30 offen offset:3072 lds
        s_add_u32 m0, m0, 4096
        s_add_u32 s30, s30, {CH}
        buffer_load_dwordx4 v2, s[12:15], s31 offen lds
        buffer_load_dwordx4 v2, s[12:15], s31 offen offset:1024 lds
        s_add_u32 s31, s31, {CH}
        s_cmp_ge_u32 s25, {3*CH}
        s_cselect_b32 s25, 0, s25
        """)
    a(f"""
    s_mov_b32 m0, {QST+6144}
    s_mov_b32 s52, {WS_KV+1024+31*16+12}
    v_mul_u32_u24 v6, 3072, v1
    buffer_load_dword v6, s[8:11], s52 offen lds
    """)
    kv(); kv()
    a(f"""
    s_and_b32 s38, s21, 7
    s_mul_i32 s38, s38, 160
    s_movk_i32 s39, 5462
    s_movk_i32 s40, 1280
    """)
    for i in range(3):
        a(f"""
        v_add_u32 v6, {64*i}, v1
        v_mul_u32_u24 v7, s39, v6
        v_lshrrev_b32 v7, 16, v7
        v_mul_u32_u24 v8, 12, v7
        v_sub_u32 v8, v6, v8
        v_mul_u32_u24 v7, s40, v7
        v_lshl_add_u32 v7, v8, 4, v7
        v_add_u32 v7, s38, v7
        v_subrev_u32 v{10+i}, {1024*i}, v7
        """)
    srd(a, 40, 4, 5, 819200)
    a(f"""
    s_mul_i32 s44, s63, {20*20480}
    s_mul_i32 s45, s63, {20*3072}
    s_waitcnt vmcnt(6)
    s_barrier
    """)
    stamp(a, 3)
    def bar_kv():
        a("s_waitcnt vmcnt(0)")
        a("s_barrier")
        kv()
    bar_kv()
    a(f"""
    s_cmp_eq_u32 s63, 1
    s_cbranch_scc1 {L}_gate
    s_lshl_b32 s52, s2, 6
    v_add_u32 v6, s52, v1
    v_lshlrev_b32 v6, 7, v6
    buffer_load_dword v30, v6, s[40:43], 0 offen
    v_mov_b32 v6, {NONCE}
    ds_write_b64 v6, v[20:21]
    v_mov_b32 v8, 0
    v_mov_b32 v9, 0
    ds_write_b64 v6, v[8:9] offset:8
    ds_write_b64 v6, v[8:9] offset:16
    ds_write_b64 v6, v[8:9] offset:24
    s_waitcnt vmcnt(1) lgkmcnt(0)
    s_barrier
    """)
    a.c("B1 passed: every wave has drained its h stores")
    flag(a, "s34")
    kv()
    a(f"""
    s_waitcnt vmcnt(0)
    s_branch {L}_gate_done
    {L}_gate:
    s_load_dwordx2 s[16:17], s[0:1], 72
    s_load_dwordx2 s[4:5], s[0:1], 0
    v_and_b32 v16, 7, v1
    v_lshlrev_b32 v16, 4, v16
    v_lshrrev_b32 v17, 3, v1
    s_lshl_b32 s53, s33, 3
    v_add_u32 v18, s53, v17
    s_movk_i32 s54, 1280
    v_mul_lo_u32 v17, v18, s54
    v_add_u32 v17, v17, v16
    s_waitcnt lgkmcnt(0)
    """)
    srd(a, 56, 4, 5, 2621440)
    srd(a, 68, 16, 17, 1280)
    for j in range(10):
        a(f"buffer_load_dwordx4 {vr(72+4*j,4)}, v17, s[56:59], 0 offen offset:{128*j}")
    for j in range(10):
        a(f"buffer_load_dwordx4 {vr(32+4*j,4)}, v16, s[68:71], 0 offen offset:{128*j}")
    a(f"""
    v_lshrrev_b32 v19, 3, v1
    v_lshlrev_b32 v19, 2, v19
    v_mov_b32 v27, {f32(-LOG2E)}
    v_mov_b32 v26, 0
    v_mov_b32 v28, 0
    s_waitcnt vmcnt(20)
    s_barrier
    """)
    kv()
    a("s_waitcnt vmcnt(6)")
    for i in range(0, 40, 2):
        a(f"v_dot2_f32_bf16 v26, v{72+i}, v{32+i}, v26")
        a(f"v_dot2_f32_bf16 v28, v{73+i}, v{33+i}, v28")
    a(f"""
    s_nop 3
    v_add_f32 v26, v26, v28
    s_nop 1
    v_add_f32_dpp v26, v26, v26 quad_perm:[1,0,3,2] row_mask:0xf bank_mask:0xf
    s_nop 1
    v_add_f32_dpp v26, v26, v26 quad_perm:[2,3,0,1] row_mask:0xf bank_mask:0xf
    s_nop 1
    v_add_f32_dpp v26, v26, v26 row_half_mirror row_mask:0xf bank_mask:0xf
    v_cvt_pk_bf16_f32 v26, v26, v26
    v_lshlrev_b32 v26, 16, v26
    v_mul_f32 v26, v27, v26
    v_exp_f32 v26, v26
    s_nop 0
    v_add_f32 v26, 1.0, v26
    v_rcp_f32 v26, v26
    s_nop 0
    v_cvt_pk_bf16_f32 v26, v26, v26
    v_lshlrev_b32 v28, 16, v26
    s_lshl_b32 s53, s33, 7
    s_add_u32 s53, s53, {WS_G}
    v_cmp_eq_u32 vcc, 0, v16
    s_nop 1
    s_mov_b64 exec, vcc
    buffer_store_dword v28, v19, s[8:11], s53 offen sc1
    s_mov_b64 exec, -1
    s_waitcnt vmcnt(1)
    {L}_gate_done:
    s_barrier
    """)
    kv()
    a(f"""
    s_cmp_eq_u32 s63, 1
    s_cbranch_scc1 {L}_l_np
    """)
    a("s_mov_b64 exec, 0x7ffffff")
    poll(a, L, "v3", "s35")
    a(f"""
    s_mov_b64 exec, -1
    {L}_l_np:
    s_mov_b32 s46, 3
    {L}_lloop:
    """)
    bar_kv()
    a(f"""
    s_add_u32 s46, s46, 1
    s_cmp_lt_u32 s46, 14
    s_cbranch_scc1 {L}_lloop
    s_add_u32 s34, s34, {F2}
    s_add_u32 s35, s35, {F2}
    """)
    a.c("barrier 13 passed: G waves are done with their ring")
    def wo(n, tag):
        a(f"""
        s_mov_b32 s47, {n}
        {L}_wo{tag}:
        s_mov_b32 m0, s45
        s_add_u32 s45, s45, 3072
        buffer_load_dwordx4 v10, s[40:43], s44 offen lds
        buffer_load_dwordx4 v11, s[40:43], s44 offen offset:1024 lds
        buffer_load_dwordx4 v12, s[40:43], s44 offen offset:2048 lds
        s_add_u32 s44, s44, 20480
        s_sub_u32 s47, s47, 1
        s_cmp_lg_u32 s47, 0
        s_cbranch_scc1 {L}_wo{tag}
        """)
    wo(8, "a")
    a("s_waitcnt vmcnt(24)")
    a("s_barrier")
    a(f"s_cmp_lg_u32 s63, 0\ns_cbranch_scc1 {L}_l_nf2")
    flag(a, "s34")
    a(f"{L}_l_nf2:")
    wo(8, "b")
    a("s_barrier")
    wo(4, "c")
    a(f"s_cmp_eq_u32 s63, 0\ns_cbranch_scc1 {L}_l_np2")
    a("s_mov_b32 exec_hi, 0")
    poll(a, L, "v3", "s35")
    a(f"{L}_l_np2:")
    a(f"""
    s_mov_b64 exec, -1
    s_add_u32 s34, s34, {F3-F2}
    s_add_u32 s35, s35, {F3-F2}
    s_branch {L}_p3
    """)

    a(f"""
    {L}_comp:
    s_and_b32 s63, s22, 3
    s_lshr_b32 s64, s22, 2
    v_and_b32 v13, 31, v1
    v_lshrrev_b32 v14, 5, v1
    v_bfe_u32 v15, v1, 1, 3
    v_xor_b32 v2, v14, v15
    v_lshlrev_b32 v2, 4, v2
    v_lshl_add_u32 v2, v13, 7, v2
    s_lshl_b32 s52, s63, 13
    s_lshl_b32 s53, s64, 12
    s_add_u32 s52, s52, s53
    v_add_u32 v2, s52, v2
    v_xor_b32 v3, 32, v2
    v_xor_b32 v4, 64, v2
    v_xor_b32 v5, 96, v2
    v_bfe_u32 v15, v1, 2, 2
    v_lshlrev_b32 v7, 3, v14
    v_add_u32 v7, v7, v15
    v_mul_u32_u24 v9, 40, v7
    v_lshlrev_b32 v8, 6, v7
    v_lshlrev_b32 v7, 7, v7
    v_lshrrev_b32 v16, 1, v15
    v_xor_b32 v16, s64, v16
    v_lshl_add_u32 v7, v16, 6, v7
    v_bfe_u32 v16, v1, 4, 1
    v_and_b32 v17, 3, v1
    v_lshlrev_b32 v16, 5, v16
    v_lshl_add_u32 v16, v17, 3, v16
    v_add_u32 v7, v7, v16
    v_add_u32 v8, v8, v16
    v_add_u32 v9, v9, v16
    v_add_u32 v7, {WB}, v7
    v_add_u32 v8, {WB+8192}, v8
    v_add_u32 v9, {WB}, v9
    s_mov_b32 s44, 0
    s_mov_b32 s45, 0
    s_mov_b32 s46, 0
    """)
    a.c("v2..v5 x frag addr (row block 2rp+cp) for the 4 k steps of a pair; v7 W, v8 wq slice, v9 wk/wv slice addr; s63=rp s64=cp")
    for r in range(64, 144):
        a(f"v_mov_b32 v{r}, 0")
    a("s_waitcnt lgkmcnt(0)")
    srd(a, 8, 18, 19, WS_SIZE)
    a(f"""
    s_or_b32 s52, s22, s2
    s_cmp_lg_u32 s52, 0
    s_cbranch_scc1 {L}_nonon
    s_load_dwordx2 s[52:53], s[0:1], 88
    s_memrealtime s[54:55]
    v_mov_b32 v148, 0
    s_waitcnt lgkmcnt(0)
    s_or_b32 s54, s54, 1
    v_mov_b32 v144, s54
    v_mov_b32 v145, s55
    s_mov_b64 exec, 1
    global_store_dwordx2 v148, v[144:145], s[52:53] sc0 sc1
    s_mov_b64 exec, -1
    {L}_nonon:
    s_lshr_b32 s52, s21, 2
    s_xor_b32 s53, s22, 1
    s_or_b32 s52, s52, s53
    s_cmp_lg_u32 s52, 0
    s_cbranch_scc1 {L}_noin
    s_lshl_b32 s52, s20, 5
    s_add_u32 s52, s52, s21
    s_lshl_b32 s52, s52, 7
    s_add_u32 s52, s52, {WS_F+F3}
    s_mov_b64 exec, 1
    buffer_store_dword v64, v64, s[8:11], s52 offen sc1
    s_mov_b64 exec, -1
    {L}_noin:
    """)
    if E("CPF", "1") == "1":
        a(f"""
        s_lshr_b32 s52, s2, {3 + int(E("CPFS", "0"))}
        s_xor_b32 s53, s22, 2
        s_or_b32 s52, s52, s53
        s_cmp_lg_u32 s52, 0
        s_cbranch_scc1 {L}_nocpf
        s_getpc_b64 s[52:53]
        {L}_pc:
        s_sub_u32 s52, s52, {L}_pc-{L}
        s_subb_u32 s53, s53, 0
        v_lshlrev_b32 v144, 7, v1
        global_load_dword v145, v144, s[52:53]
        v_add_u32 v144, 8192, v144
        v_cmp_gt_u32 vcc, {L}_end-{L}, v144
        s_nop 1
        s_mov_b64 exec, vcc
        global_load_dword v145, v144, s[52:53]
        s_mov_b64 exec, -1
        {L}_nocpf:
        """)
    a(f"""
    s_cmp_eq_u32 s21, 27
    s_cbranch_scc1 {L}_modeK
    s_cmp_eq_u32 s21, 28
    s_cbranch_scc1 {L}_modeV
    s_cmp_gt_u32 s21, 28
    s_cbranch_scc1 {L}_modeQ
    """)
    XA = [16, 36]
    XC = [56, 57, 58, 59]
    XD = [60, 61, 62, 63]
    def xaddrs(full):
        l = [f"v_add_u32 v{XC[j]}, s45, v{2+j}" for j in range(4)]
        if full: l += [f"v_xor_b32 v{XD[j]}, 4096, v{XC[j]}" for j in range(4)]
        return l + [f"s_add_u32 s45, s45, {XSL}", f"s_cmp_ge_u32 s45, {WB}", "s_cselect_b32 s45, 0, s45"]
    def waddrs(mode):
        l = ["v_add_u32 v12, s44, v8"]
        if mode == 0: l.append("v_add_u32 v11, s44, v7")
        if mode in (1, 2): l.append("v_add_u32 v11, s44, v9")
        return l + [f"s_add_u32 s44, s44, {WSL}", f"s_cmp_ge_u32 s44, {4*WSL}", "s_cselect_b32 s44, 0, s44"]
    def read_list(j, mode):
        ks = j & 1
        b = XA[ks]
        l = [f"ds_read_b128 {vr(b,4)}, v{XC[j]}"]
        if mode == 0:
            l += [f"ds_read_b64_tr_b16 {vr(b+8,2)}, v11 offset:{ks*2048}",
                  f"ds_read_b64_tr_b16 {vr(b+10,2)}, v11 offset:{ks*2048+512}",
                  f"ds_read_b64_tr_b16 {vr(b+12,2)}, v11 offset:{4096+ks*2048}",
                  f"ds_read_b64_tr_b16 {vr(b+14,2)}, v11 offset:{4096+ks*2048+512}",
                  f"ds_read_b128 {vr(b+4,4)}, v{XD[j]}"]
        if mode in (1, 2):
            l += [f"ds_read_b64_tr_b16 {vr(b+8,2)}, v11 offset:{ks*640}",
                  f"ds_read_b64_tr_b16 {vr(b+10,2)}, v11 offset:{ks*640+160}"]
        l += [f"ds_read_b64_tr_b16 {vr(b+16,2)}, v12 offset:{ks*1024}",
              f"ds_read_b64_tr_b16 {vr(b+18,2)}, v12 offset:{ks*1024+256}"]
        return l
    def mfma_list(ks, mode):
        b = XA[ks]
        x0, x1, wg, wu, ws = vr(b,4), vr(b+4,4), vr(b+8,4), vr(b+12,4), vr(b+16,4)
        l = []
        if mode == 0:
            l = [f"{M} v[64:79], {wg}, {x0}, v[64:79]", f"{M} v[80:95], {wu}, {x0}, v[80:95]",
                 f"{M} v[96:111], {wg}, {x1}, v[96:111]", f"{M} v[112:127], {wu}, {x1}, v[112:127]"]
        if mode == 1: l = [f"{M} v[64:79], {wg}, {x0}, v[64:79]"]
        if mode == 2: l = [f"{M} v[64:79], {x0}, {wg}, v[64:79]"]
        return l + [f"{M} v[128:143], {ws}, {x0}, v[128:143]"]
    def half(ml, rl, post):
        a("s_waitcnt lgkmcnt(0)")
        n = len(ml)
        per = -(-len(rl) // max(n - 1, 1))
        for i, m in enumerate(ml):
            a(m)
            if n == 1:
                for x in rl + post: a(x)
                continue
            for x in rl[per*i:per*i+per]: a(x)
            if i == n - 2:
                for x in post: a(x)
    for mode, tag in ((0, "full"), (1, "modeK"), (2, "modeV"), (3, "modeQ")):
        a(f"{L}_{tag}:")
        for x in xaddrs(mode == 0) + waddrs(mode): a(x)
        a("s_barrier")
        for x in read_list(0, mode): a(x)
        stamp(a, 1)
        if mode == 0: a(".p2align 6")
        a(f"{L}_{tag}_loop:")
        half(mfma_list(0, mode), read_list(1, mode), waddrs(mode))
        a("s_barrier")
        half(mfma_list(1, mode), read_list(2, mode), [])
        half(mfma_list(0, mode), read_list(3, mode), waddrs(mode) + xaddrs(mode == 0))
        a("s_barrier")
        half(mfma_list(1, mode), read_list(0, mode), ["s_add_u32 s46, s46, 1", "s_cmp_lt_u32 s46, 10"])
        a(f"s_cbranch_scc1 {L}_{tag}_loop")
        stamp(a, 2)
        a(f"""
        s_lshl_b32 s52, s20, 3
        s_lshl_b32 s53, s63, 1
        s_add_u32 s52, s52, s53
        s_add_u32 s52, s52, s64
        v_lshlrev_b32 v2, 4, v1
        """)
        a(f"s_branch {L}_epi{mode}")
    a.c("s52 = global row block of acc set 0 and of the q chain (set 1 is s52 ^ 1)")
    EK = 64
    a(f"""
    {L}_epi1:
    s_mul_i32 s53, s52, 3072
    s_add_u32 s53, s53, {WS_KV}
    s_nop 7
    s_waitcnt lgkmcnt(0)
    """)
    for i in range(4): a(f"v_cvt_pk_bf16_f32 v{20+i}, v{EK+2*i}, v{EK+2*i+1}")
    a(f"buffer_store_dwordx4 v[20:23], v2, s[8:11], s53 offen{SC}")
    a(f"v_cvt_pk_bf16_f32 v24, v{EK+8}, v{EK+9}")
    a(f"v_cvt_pk_bf16_f32 v25, v{EK+10}, v{EK+11}")
    a("v_mov_b32 v26, 0x3f803f80")
    a("v_mov_b32 v27, 0x00003f80")
    a(f"v_mul_f32 v30, v{EK}, v{EK}")
    for i in range(1, 8): a(f"v_fmac_f32 v30, v{EK+i}, v{EK+i}")
    a(f"v_mul_f32 v31, v{EK+8}, v{EK+8}")
    for i in range(9, 12): a(f"v_fmac_f32 v31, v{EK+i}, v{EK+i}")
    a(f"""
    v_cmp_gt_u32 vcc, 32, v1
    s_nop 1
    v_cndmask_b32 v31, 0, v31, vcc
    v_add_f32 v30, v30, v31
    v_mov_b32 v31, v30
    s_nop 1
    v_permlane32_swap_b32 v30, v31
    s_nop 1
    v_add_f32 v30, v30, v31
    """)
    for sh in (1, 2, 4, 8):
        a("s_nop 1")
        a(f"v_max_f32_dpp v30, v30, v30 row_shr:{sh} row_mask:0xf bank_mask:0xf")
    a(f"""
    s_nop 1
    v_max_f32_dpp v30, v30, v30 row_bcast:15 row_mask:0xa bank_mask:0xf
    v_cmp_eq_u32 vcc, 31, v1
    v_and_b32 v30, 0xffff0000, v30
    v_or_b32 v30, 0x3f80, v30
    v_cndmask_b32 v27, v27, v30, vcc
    s_mov_b32 exec_hi, 0
    buffer_store_dwordx4 v[24:27], v2, s[8:11], s53 offen offset:1024{SC}
    s_branch {L}_kvdone
    {L}_epi2:
    s_mul_i32 s53, s52, 3072
    s_add_u32 s53, s53, {WS_KV+1536}
    v_and_b32 v17, 31, v1
    v_lshrrev_b32 v18, 5, v1
    v_mul_u32_u24 v18, 384, v18
    v_lshl_add_u32 v16, v17, 4, v18
    v_mov_b32 v19, 0x3f803f80
    v_cmp_eq_u32 vcc, 20, v17
    v_cmp_lt_u32 s[54:55], 19, v17
    s_nop 3
    v_cndmask_b32 v19, 0, v19, vcc
    s_waitcnt lgkmcnt(0)
    """)
    for i in range(8): a(f"v_cvt_pk_bf16_f32 v{20+i}, v{EK+2*i}, v{EK+2*i+1}")
    for i in range(8): a(f"v_cndmask_b32 v{20+i}, v{20+i}, v19, s[54:55]")
    a(f"""
    v_cmp_gt_u32 vcc, 24, v17
    s_nop 1
    s_and_b64 exec, exec, vcc
    buffer_store_dwordx4 v[20:23], v16, s[8:11], s53 offen{SC}
    buffer_store_dwordx4 v[24:27], v16, s[8:11], s53 offen offset:768{SC}
    {L}_kvdone:
    s_mov_b64 exec, -1
    s_waitcnt vmcnt(0)
    s_barrier
    s_branch {L}_epi3
    """)
    C0 = -2.0 * 0.7978845608028654 * LOG2E
    C1 = C0 * 0.044715
    a(f"""
    {L}_epi0:
    v_mov_b32 v16, {f32(C0)}
    v_mov_b32 v17, {f32(C1)}
    s_lshl_b32 s54, s21, 12
    s_lshl_b32 s55, s64, 11
    s_add_u32 s54, s54, s55
    s_add_u32 s54, s54, {WS_H}
    s_mul_i32 s53, s52, {108*1024}
    s_add_u32 s53, s53, s54
    s_xor_b32 s55, s52, 1
    s_mul_i32 s55, s55, {108*1024}
    s_add_u32 s54, s54, s55
    s_waitcnt lgkmcnt(0)
    """)
    for j in range(2):
        G, U = 64 + 32*j, 80 + 32*j
        for hf in range(2):
            T = 20
            rs = list(range(8*hf, 8*hf+8))
            for i, r in enumerate(rs): a(f"v_mul_f32 v{T+i}, v{G+r}, v{G+r}")
            for i, r in enumerate(rs): a(f"v_fma_f32 v{T+i}, v{T+i}, v17, v16")
            for i, r in enumerate(rs): a(f"v_mul_f32 v{T+i}, v{G+r}, v{T+i}")
            for i, r in enumerate(rs): a(f"v_exp_f32 v{T+i}, v{T+i}")
            for i, r in enumerate(rs): a(f"v_mul_f32 v{U+r}, v{G+r}, v{U+r}")
            for i, r in enumerate(rs): a(f"v_add_f32 v{T+i}, 1.0, v{T+i}")
            for i, r in enumerate(rs): a(f"v_rcp_f32 v{T+i}, v{T+i}")
            a("s_nop 0")
            for i, r in enumerate(rs): a(f"v_mul_f32 v{T+i}, v{U+r}, v{T+i}")
            O = 28 + 4*(2*j+hf)
            for i in range(4): a(f"v_cvt_pk_bf16_f32 v{O+i}, v{T+2*i}, v{T+2*i+1}")
            a(f"buffer_store_dwordx4 {vr(O,4)}, v2, s[8:11], s{53+j} offen offset:{1024*hf}{SC}")
    a(f"""
    {L}_epi3:
    s_nop 7
    v_mov_b32 v144, {f32(QSCALE)}
    s_waitcnt lgkmcnt(0)
    """)
    for i in range(12): a(f"v_mul_f32 v{128+i}, v144, v{128+i}")
    for i in range(6): a(f"v_cvt_pk_bf16_f32 v{QA1+i}, v{128+2*i}, v{129+2*i}")
    a(f"""
    s_mul_i32 s52, s63, 1536
    s_add_u32 s52, s52, {QST}
    v_add_u32 v144, s52, v2
    v_lshl_add_u32 v145, v1, 3, s52
    s_cmp_ge_u32 s22, 4
    s_cbranch_scc1 {L}_gwave
    """)
    a(f"""
    s_setprio {E("APRIO", "1")}
    v_and_b32 v9, 31, v1
    v_lshrrev_b32 v10, 5, v1
    v_add_u32 v3, {KVR}, v2
    v_lshlrev_b32 v4, 4, v9
    v_add_u32 v4, {KVR+1024}, v4
    v_min_u32 v5, 23, v9
    v_mul_u32_u24 v11, 384, v10
    v_lshl_add_u32 v5, v5, 4, v11
    v_add_u32 v5, {KVR+1536}, v5
    v_lshlrev_b32 v146, 2, v1
    v_add_u32 v146, {QST+6144}, v146
    v_add_u32 v6, {CH}, v3
    v_add_u32 v7, {CH}, v4
    v_add_u32 v8, {CH}, v5
    s_mov_b32 s27, {2*CH}
    s_mov_b32 s30, 0
    v_cmp_gt_u32 s[28:29], 32, v1
    v_lshlrev_b32 v60, 3, v9
    v_lshl_add_u32 v60, v10, 8, v60
    s_lshl_b32 s33, s20, 3
    s_lshl_b32 s52, s22, 1
    s_add_u32 s33, s33, s52
    s_mul_i32 s33, s33, 40960
    s_mul_i32 s52, s21, 1280
    s_add_u32 s33, s33, s52
    s_add_u32 s33, s33, {WS_O}
    s_add_u32 s31, s33, 40960
    """)
    a.c("v60 = o store offset, s33/s31 = o image base of block a / b")
    for r in list(range(OA, OA+32)) + list(range(PB, PB+8)) + list(range(KVB[1]+8, KVB[1]+16)):
        a(f"v_mov_b32 v{r}, 0")
    def qnorm(q1, q2, t, extra=()):
        ex = list(extra) + [""] * 2
        a(f"""
        v_cndmask_b32 v{q2}, 0, v{q2}, s[28:29]
        v_cndmask_b32 v{q2+1}, 0, v{q2+1}, s[28:29]
        v_mov_b32 v{t}, 0
        {ex[0]}
        v_dot2_f32_bf16 v{t}, v{q1}, v{q1}, v{t}
        v_dot2_f32_bf16 v{t}, v{q1+1}, v{q1+1}, v{t}
        v_dot2_f32_bf16 v{t}, v{q1+2}, v{q1+2}, v{t}
        {ex[1]}
        v_dot2_f32_bf16 v{t}, v{q1+3}, v{q1+3}, v{t}
        v_dot2_f32_bf16 v{t}, v{q2}, v{q2}, v{t}
        v_dot2_f32_bf16 v{t}, v{q2+1}, v{q2+1}, v{t}
        """)
    qnorm(QA1, QA2, 147)
    a(f"""
    s_barrier
    ds_read_b32 v146, v146
    ds_read_b128 {vr(QB1,4)}, v144
    ds_read_b64 {vr(QB2,2)}, v145 offset:1024
    ds_read_b128 {vr(KVB[0],4)}, v6
    ds_read_b128 {vr(KVB[0]+4,4)}, v7
    ds_read_b128 {vr(KVB[1],4)}, v6 offset:3072
    ds_read_b128 {vr(KVB[1]+4,4)}, v7 offset:3072
    ds_read_b128 {vr(KVB[0]+8,4)}, v8
    ds_read_b128 {vr(KVB[0]+12,4)}, v8 offset:768
    """)
    stamp(a, 4)
    dm = lambda k: f"v_max_f32_dpp v146, v146, v146 {k} bank_mask:0xf"
    a(f"""
    v_mov_b32 v149, v147
    s_waitcnt lgkmcnt(6)
    v_and_b32 v146, 0xffff0000, v146
    v_permlane32_swap_b32 v147, v149
    s_nop 0
    {dm("row_shr:1 row_mask:0xf")}
    v_add_f32 v147, v147, v149
    s_nop 0
    {dm("row_shr:2 row_mask:0xf")}
    """)
    qnorm(QB1, QB2, 148, [dm("row_shr:4 row_mask:0xf"), dm("row_shr:8 row_mask:0xf")])
    a(f"""
    {dm("row_bcast:15 row_mask:0xa")}
    s_nop 1
    v_mov_b32 v150, v148
    {dm("row_bcast:31 row_mask:0xc")}
    s_nop 0
    v_permlane32_swap_b32 v148, v150
    v_readlane_b32 s26, v146, 63
    s_nop 0
    v_add_f32 v148, v148, v150
    v_mul_f32 v147, s26, v147
    v_mul_f32 v148, s26, v148
    v_sqrt_f32 v147, v147
    v_sqrt_f32 v148, v148
    v_mul_f32 v147, {f32(1.02)}, v147
    v_mul_f32 v148, {f32(1.02)}, v148
    """)
    def set_shift(ma, mb):
        for m, q2 in ((ma, QA2), (mb, QB2)):
            split3(a, m, q2+2, q2+3, 149, 150)
            a(f"v_cndmask_b32 v{q2+2}, 0, v{q2+2}, s[28:29]")
            a(f"v_cndmask_b32 v{q2+3}, 0, v{q2+3}, s[28:29]")
    set_shift(147, 148)
    a("s_waitcnt lgkmcnt(0)")
    for x in qk(SA, KVB[0], QA1, QA2): a(x)
    a("s_nop 11")
    a(".p2align 6")
    a(f"{L}_aloop:")
    for t in range(4):
        cur, nxt = KVB[t & 1], KVB[(t + 1) & 1]
        aslot(a, SA, PA, qk(SB, cur, QB1, QB2) + pv(OB, nxt, PB))
        pre = ["s_waitcnt lgkmcnt(0)" if t != 3 else "s_waitcnt vmcnt(0) lgkmcnt(0)"]
        if t == 0 and STAMP: pre.append("s_memtime s[38:39]")
        if t == 0: pre.append("s_barrier")
        if t == 0 and STAMP: pre.append("s_memtime s[36:37]")
        if t == 1 and STAMP: pre += ["s_mov_b32 m0, s30", "s_nop 0", "v_writelane_b32 v61, s36, m0", "v_writelane_b32 v62, s38, m0"]
        if t == 2:
            pre += ["v_add_u32 v6, s27, v3", "v_add_u32 v7, s27, v4"]
        if t == 3:
            pre += ["v_add_u32 v8, s27, v5",
                    f"s_add_u32 s27, s27, {CH}", f"s_cmp_ge_u32 s27, {3*CH}", "s_cselect_b32 s27, 0, s27"]
        ko = ((t + 2) & 3) * 3072
        vo = ((t + 1) & 3) * 3072
        rd = [f"ds_read_b128 {vr(cur,4)}, v6 offset:{ko}",
              f"ds_read_b128 {vr(cur+4,4)}, v7 offset:{ko}",
              f"ds_read_b128 {vr(nxt+8,4)}, v8 offset:{vo}",
              f"ds_read_b128 {vr(nxt+12,4)}, v8 offset:{vo+768}"]
        aslot(a, SB, PB, qk(SA, nxt, QA1, QA2) + pv(OA, cur, PA), pre, rd)
    a(f"""
    s_add_u32 s30, s30, 1
    s_cmp_lt_u32 s30, 16
    s_cbranch_scc1 {L}_aloop
    s_nop 1
    """)
    for x in pv(OB, KVB[1], PB): a(x)
    stamp(a, 5)
    a(f"""
    s_mov_b32 s34, 0
    {L}_aepi:
    s_mov_b32 s35, {f32(2.0**-90)}
    s_waitcnt lgkmcnt(0)
    s_nop 11
    v_mov_b32 v144, v{OA+8}
    v_mov_b32 v145, v{OA+8}
    v_mov_b32 v146, v{OB+8}
    v_mov_b32 v147, v{OB+8}
    s_nop 0
    v_permlane32_swap_b32 v144, v145
    v_permlane32_swap_b32 v146, v147
    s_nop 0
    v_cmp_nle_f32 vcc, s35, v145
    v_cmp_nle_f32 s[36:37], s35, v147
    v_rcp_f32 v145, v145
    v_rcp_f32 v147, v147
    s_or_b64 s[36:37], vcc, s[36:37]
    s_cmp_eq_u32 s34, 0
    s_cselect_b64 s[36:37], s[36:37], 0
    s_cmp_lg_u64 s[36:37], 0
    s_cbranch_scc1 {L}_slow
    """)
    for blk, O in enumerate((OA, OB)):
        R = 145 + 2*blk
        for q in range(3):
            for i in range(4): a(f"v_mul_f32 v{O+4*q+i}, v{R}, v{O+4*q+i}")
            D = 64 + 8*blk + 2*q
            a(f"v_cvt_pk_bf16_f32 v{D}, v{O+4*q}, v{O+4*q+1}")
            a(f"v_cvt_pk_bf16_f32 v{D+1}, v{O+4*q+2}, v{O+4*q+3}")
            if q == 2: a("s_mov_b32 exec_hi, 0")
            a(f"buffer_store_dwordx2 {vr(D,2)}, v60, s[8:11], s{33 if blk == 0 else 31} offen offset:{512*q} sc1")
            if q == 2: a("s_mov_b64 exec, -1")
    if STAMP:
        a(f"""
        s_lshl_b32 s36, s2, 2
        s_add_u32 s36, s36, s22
        s_lshl_b32 s36, s36, 9
        s_add_u32 s36, s36, {0x1900000}
        v_lshlrev_b32 v63, 2, v1
        buffer_store_dword v61, v63, s[8:11], s36 offen
        buffer_store_dword v62, v63, s[8:11], s36 offen offset:256
        """)
    a(f"""
    s_setprio 0
    s_branch {L}_p3
    """)
    kb = KVB[0]
    a(f"""
    {L}_slow:
    s_mov_b32 s34, 1
    v_mov_b32 v{QA2+2}, 0
    v_mov_b32 v{QA2+3}, 0
    v_mov_b32 v{QB2+2}, 0
    v_mov_b32 v{QB2+3}, 0
    v_mov_b32 v147, 0xff800000
    v_mov_b32 v148, 0xff800000
    s_mov_b32 s36, {WS_KV - KVR}
    {L}_slow1:
    buffer_load_dwordx4 {vr(kb,4)}, v3, s[8:11], s36 offen
    buffer_load_dwordx4 {vr(kb+4,4)}, v4, s[8:11], s36 offen
    s_add_u32 s36, s36, 3072
    s_waitcnt vmcnt(0)
    """)
    for x in qk(SA, kb, QA1, QA2) + qk(SB, kb, QB1, QB2): a(x)
    a("s_nop 15")
    for i in range(0, 16, 2):
        a(f"v_max3_f32 v147, v{SA+i}, v{SA+i+1}, v147")
        a(f"v_max3_f32 v148, v{SB+i}, v{SB+i+1}, v148")
    a(f"""
    s_cmp_lt_u32 s36, {WS_KV - KVR + 64*3072}
    s_cbranch_scc1 {L}_slow1
    v_mov_b32 v149, v147
    v_mov_b32 v150, v148
    s_nop 1
    v_permlane32_swap_b32 v147, v149
    v_permlane32_swap_b32 v148, v150
    s_nop 1
    v_max_f32 v147, v147, v149
    v_max_f32 v148, v148, v150
    """)
    set_shift(147, 148)
    for r in range(OA, OA+32): a(f"v_mov_b32 v{r}, 0")
    a(f"""
    s_mov_b32 s36, {WS_KV - KVR}
    {L}_slow2:
    buffer_load_dwordx4 {vr(kb,4)}, v3, s[8:11], s36 offen
    buffer_load_dwordx4 {vr(kb+4,4)}, v4, s[8:11], s36 offen
    buffer_load_dwordx4 {vr(kb+8,4)}, v5, s[8:11], s36 offen
    buffer_load_dwordx4 {vr(kb+12,4)}, v5, s[8:11], s36 offen offset:768
    s_add_u32 s36, s36, 3072
    s_waitcnt vmcnt(0)
    """)
    for x in qk(SA, kb, QA1, QA2) + qk(SB, kb, QB1, QB2): a(x)
    a("s_nop 15")
    for g in exp_groups(SA, PA) + exp_groups(SB, PB):
        for x in g: a(x)
    a("s_nop 1")
    for x in pv(OA, kb, PA) + pv(OB, kb, PB): a(x)
    a(f"""
    s_cmp_lt_u32 s36, {WS_KV - KVR + 64*3072}
    s_cbranch_scc1 {L}_slow2
    s_nop 7
    s_branch {L}_aepi
    """)

    a(f"""
    {L}_gwave:
    ds_write_b128 v144, {vr(QA1,4)}
    ds_write_b64 v145, {vr(QA2,2)} offset:1024
    s_load_dwordx2 s[6:7], s[0:1], 64
    s_and_b32 s16, s22, 3
    s_cmp_ge_u32 s21, 15
    s_cselect_b32 s33, 1, 0
    s_cselect_b32 s34, 15, 0
    s_sub_u32 s34, s21, s34
    s_lshl_b32 s35, s20, 1
    s_add_u32 s33, s33, s35
    s_mul_i32 s35, s34, 13
    s_lshr_b32 s35, s35, 6
    s_mul_i32 s36, s35, 5
    s_sub_u32 s34, s34, s36
    s_waitcnt lgkmcnt(0)
    s_barrier
    s_lshl_b32 s36, s33, 2
    s_add_u32 s36, s36, s16
    s_mul_i32 s36, s36, 108
    s_mul_i32 s37, s35, 36
    s_add_u32 s36, s36, s37
    s_lshl_b32 s36, s36, 10
    s_add_u32 s40, s36, {WS_H}
    s_mul_i32 s41, s35, {576*1280}
    s_mul_i32 s36, s16, {16*1280}
    s_add_u32 s41, s41, s36
    s_lshl_b32 s36, s34, 8
    s_add_u32 s41, s41, s36
    v_lshrrev_b32 v3, 4, v1
    v_lshlrev_b32 v4, 2, v3
    v_and_b32 v5, 15, v1
    v_xor_b32 v4, v4, v5
    s_movk_i32 s36, 1280
    v_mul_u32_u24 v3, s36, v3
    v_lshl_add_u32 v3, v4, 4, v3
    v_add_u32 v4, {5120-1024}, v3
    v_add_u32 v5, {2*(5120-1024)}, v3
    v_add_u32 v13, {3*(5120-1024)}, v3
    s_lshl_b32 s42, s16, 12
    s_add_u32 s43, s42, 16384
    s_mov_b32 s45, 0
    s_mov_b32 s30, 0
    s_mov_b32 s46, 0
    s_cmp_lt_u32 s21, 30
    s_cselect_b32 s47, 9, 0
    s_cselect_b32 s50, {WS_SIZE}, 0
    s_cselect_b32 s54, 2211840, 0
    s_mov_b32 s48, s18
    s_and_b32 s49, s19, 0xffff
    s_mov_b32 s51, 0x20000
    s_mov_b32 s55, 0x20000
    s_mov_b32 m0, s43
    s_mov_b32 s52, s6
    s_and_b32 s53, s7, 0xffff
    """)
    a.c("s33 = row group (128 rows), s34 = col group (128 cols), s35 = k split, s47 = stages of this WG")
    def gw():
        a(f"""
        buffer_load_dwordx4 v3, s[52:55], s41 offen lds
        buffer_load_dwordx4 v4, s[52:55], s41 offen offset:1024 lds
        buffer_load_dwordx4 v5, s[52:55], s41 offen offset:2048 lds
        buffer_load_dwordx4 v13, s[52:55], s41 offen offset:3072 lds
        s_add_u32 s41, s41, {64*1280}
        """)
    def gh():
        a(f"""
        buffer_load_dwordx4 v2, s[48:51], s40 offen lds
        buffer_load_dwordx4 v2, s[48:51], s40 offen offset:1024 lds
        buffer_load_dwordx4 v2, s[48:51], s40 offen offset:2048 lds
        buffer_load_dwordx4 v2, s[48:51], s40 offen offset:3072 lds
        s_add_u32 s40, s40, 4096
        """)
    gw()
    a(f"""
    s_and_b32 s36, s16, 1
    s_lshr_b32 s37, s16, 1
    s_lshl_b32 s38, s36, 13
    v_add_u32 v6, s38, v2
    v_lshrrev_b32 v8, 5, v1
    v_bfe_u32 v9, v1, 2, 2
    v_lshl_add_u32 v8, v8, 2, v9
    v_lshlrev_b32 v8, 8, v8
    s_lshl_b32 s38, s37, 1
    v_xor_b32 v9, s38, v9
    v_lshl_add_u32 v8, v9, 6, v8
    v_bfe_u32 v9, v1, 4, 1
    v_lshl_add_u32 v8, v9, 5, v8
    v_and_b32 v9, 3, v1
    v_lshl_add_u32 v8, v9, 3, v8
    v_add_u32 v7, 16384, v8
    v_xor_b32 v8, 64, v7
    """)
    for r in range(64, 128): a(f"v_mov_b32 v{r}, 0")
    a(f"""
    s_mov_b32 m0, s42
    s_barrier
    s_waitcnt vmcnt(0)
    s_barrier
    s_barrier
    s_barrier
    """)
    gh()
    a(f"""
    s_mov_b32 s44, {GSL}
    s_branch {L}_gin
    {L}_gloop:
    s_barrier
    {L}_gin:
    s_add_u32 s46, s46, 1
    s_cmp_ge_u32 s46, s47
    s_cbranch_scc1 {L}_gnod
    s_add_u32 m0, s44, s42
    s_nop 0
    """)
    gh()
    a("s_add_u32 m0, s44, s43")
    a(f"s_add_u32 s44, s44, {GSL}")
    gw()
    a(f"""
    s_cmp_ge_u32 s44, {3*GSL}
    s_cselect_b32 s44, 0, s44
    {L}_gnod:
    s_sub_u32 s36, s30, 1
    s_cmp_ge_u32 s36, s47
    s_cbranch_scc1 {L}_gskip
    v_add_u32 v10, s45, v6
    v_add_u32 v11, s45, v7
    v_add_u32 v12, s45, v8
    s_add_u32 s45, s45, {GSL}
    s_cmp_ge_u32 s45, {3*GSL}
    s_cselect_b32 s45, 0, s45
    """)
    FB = [16, 32]
    def rl(ks):
        b = FB[ks & 1]
        return [f"ds_read_b128 {vr(b,4)}, v10 offset:{ks*1024}",
                f"ds_read_b64_tr_b16 {vr(b+8,2)}, v11 offset:{ks*4096}",
                f"ds_read_b64_tr_b16 {vr(b+10,2)}, v11 offset:{ks*4096+2048}",
                f"ds_read_b64_tr_b16 {vr(b+12,2)}, v12 offset:{ks*4096}",
                f"ds_read_b64_tr_b16 {vr(b+14,2)}, v12 offset:{ks*4096+2048}",
                f"ds_read_b128 {vr(b+4,4)}, v10 offset:{ks*1024+4096}"]
    def ml(ks):
        b = FB[ks & 1]
        x0, x1, w0, w1 = vr(b,4), vr(b+4,4), vr(b+8,4), vr(b+12,4)
        return [f"{M} v[64:79], {w0}, {x0}, v[64:79]", f"{M} v[80:95], {w1}, {x0}, v[80:95]",
                f"{M} v[96:111], {w0}, {x1}, v[96:111]", f"{M} v[112:127], {w1}, {x1}, v[112:127]"]
    for x in rl(0): a(x)
    for ks in range(4):
        a("s_waitcnt lgkmcnt(0)")
        r = rl(ks + 1) if ks < 3 else []
        for i, m in enumerate(ml(ks)):
            a(m)
            for x in r[2*i:2*i+2]: a(x)
    a(f"""
    s_cmp_lg_u32 s30, s47
    s_cbranch_scc1 {L}_gskip
    s_lshl_b32 s36, s35, 6
    s_lshl_b32 s37, s33, 2
    s_add_u32 s36, s36, s37
    s_and_b32 s37, s16, 1
    s_lshl_b32 s37, s37, 1
    s_add_u32 s36, s36, s37
    s_mul_i32 s36, s36, 40
    s_lshl_b32 s37, s34, 3
    s_add_u32 s36, s36, s37
    s_lshr_b32 s37, s16, 1
    s_lshl_b32 s37, s37, 2
    s_add_u32 s36, s36, s37
    s_lshl_b32 s36, s36, 10
    s_add_u32 s36, s36, {WS_B}
    s_add_u32 s37, s36, 40960
    s_nop 7
    """)
    for u in range(4):
        A = 64 + 16*u
        for qp in range(2):
            O = 16 + 4*((2*u+qp) % 8)
            for i in range(4):
                a(f"v_cvt_pk_bf16_f32 v{O+i}, v{A+8*qp+2*i}, v{A+8*qp+2*i+1}")
            a(f"buffer_store_dwordx4 {vr(O,4)}, v2, s[8:11], s{36 + (u>>1)} offen offset:{(u&1)*2048 + qp*1024} sc1")
    a(f"""
    s_branch {L}_gend
    {L}_gskip:
    s_add_u32 s30, s30, 1
    s_cmp_ge_u32 s30, 10
    s_cbranch_scc1 {L}_gend
    s_cmp_lt_u32 s46, s47
    s_cbranch_scc1 {L}_gw8
    s_waitcnt vmcnt(0)
    {L}_gw8:
    s_waitcnt vmcnt(8)
    s_branch {L}_gloop
    {L}_gend:
    s_barrier
    s_waitcnt vmcnt(0)
    s_barrier
    s_barrier
    """)

    a(f"""
    {L}_p3:
    s_load_dwordx2 s[4:5], s[0:1], 80
    s_lshl_b32 s17, s20, 3
    s_lshr_b32 s16, s21, 3
    s_lshl_b32 s16, s16, 1
    s_add_u32 s17, s17, s16
    s_and_b32 s16, s21, 7
    s_and_b32 s36, s22, 1
    s_lshr_b32 s39, s22, 1
    s_add_u32 s36, s17, s36
    s_mul_i32 s36, s36, 40
    s_mul_i32 s37, s39, 10
    s_add_u32 s36, s36, s37
    s_lshl_b32 s36, s36, 10
    s_add_u32 s36, s36, {WS_O}
    s_add_u32 s37, s36, 4096
    s_add_u32 s38, s36, 8192
    v_lshrrev_b32 v8, 5, v1
    v_bfe_u32 v9, v1, 2, 2
    v_lshl_add_u32 v8, v8, 2, v9
    v_mul_u32_u24 v8, 192, v8
    v_bfe_u32 v9, v1, 4, 1
    v_lshl_add_u32 v8, v9, 5, v8
    v_and_b32 v9, 3, v1
    v_lshl_add_u32 v8, v9, 3, v8
    s_lshl_b32 s48, s39, 2
    s_mul_i32 s49, s39, 30720
    v_add_u32 v8, s49, v8
    v_lshlrev_b32 v7, 3, v1
    v_and_b32 v6, 31, v1
    s_lshl_b32 s39, s17, 5
    v_add_u32 v6, s39, v6
    v_lshrrev_b32 v4, 3, v6
    v_lshlrev_b32 v4, 7, v4
    v_and_b32 v9, 7, v1
    v_lshl_add_u32 v4, v9, 2, v4
    s_mov_b32 s40, {WS_G}
    s_mul_i32 s41, s16, 10
    s_add_u32 s41, s41, s22
    s_lshr_b32 s42, s41, 1
    s_lshl_b32 s42, s42, 10
    s_and_b32 s43, s41, 1
    s_lshl_b32 s43, s43, 3
    s_add_u32 s42, s42, s43
    s_mul_i32 s43, s17, 40960
    s_add_u32 s42, s42, s43
    s_add_u32 s42, s42, {WS_B}
    v_mov_b32 v22, {NONCE}
    s_lshr_b32 s46, s22, 1
    s_lshl_b32 s45, 1, s46
    s_waitcnt vmcnt(0) lgkmcnt(0)
    """)
    stamp(a, 3)
    a(f"""
    s_barrier
    s_cmp_lg_u32 s22, 8
    s_cbranch_scc1 {L}_p3nf
    """)
    a.c("s17 = first row block of the tile, s16 = column group; final items: quad = wave, both row blocks")
    stamp(a, 5)
    a(f"""
    s_lshr_b32 s43, s21, 3
    s_lshl_b32 s43, s43, 7
    s_add_u32 s43, s43, s35
    v_mov_b32 v9, 1
    s_mov_b64 exec, 1
    buffer_atomic_add v9, v5, s[8:11], s43 offen sc1
    s_mov_b64 exec, -1
    """)
    a(f"{L}_p3nf:")
    a("buffer_load_dword v140, v4, s[8:11], s40 offen sc1")
    a("buffer_load_dword v141, v4, s[8:11], s40 offen offset:512 sc1")
    for j in range(2):
        for sk in range(3):
            a(f"s_add_u32 s43, s42, {j*40960 + sk*64*40960}")
            a(f"buffer_load_dwordx2 {vr(128+6*j+2*sk,2)}, v2, s[8:11], s43 offen sc1")
    a(f"""
    s_movk_i32 s43, 1280
    v_mul_lo_u32 v6, v6, s43
    v_lshrrev_b32 v9, 5, v1
    v_lshl_add_u32 v6, v9, 3, v6
    s_lshl_b32 s41, s41, 4
    s_add_u32 s44, s41, 40960
    s_waitcnt lgkmcnt(0)
    """)
    srd(a, 12, 4, 5, 2621440)
    for r in range(64, 112): a(f"v_mov_b32 v{r}, 0")
    WF = [112, 144]
    def wr(ks):
        b = WF[ks & 1]
        return [f"ds_read_b64_tr_b16 {vr(b+4*cb+2*t,2)}, v8 offset:{ks*3072 + t*1536 + 64*cb}" for cb in range(3) for t in range(2)]
    a(f"""
    s_cmp_eq_u32 s22, 8
    s_cbranch_scc1 {L}_p3r
    s_mov_b32 s70, {SPIN}
    s_cmp_lt_u32 s22, 8
    s_cbranch_scc1 {L}_p3m
    s_mov_b64 exec, 0xf
    {L}_p3poll:
    buffer_load_dword v24, v3, s[8:11], s35 offen sc1
    s_sub_u32 s70, s70, 1
    s_cselect_b32 s47, -1, 0
    s_waitcnt vmcnt(0)
    v_cmp_eq_u32 vcc, 8, v24
    s_or_b32 s47, s47, vcc_lo
    s_or_b32 s47, s47, 0xfffffff0
    v_mov_b32 v23, s47
    ds_write_b32 v22, v23 offset:8
    s_sleep {E("PSLEEP", "2")}
    s_cmp_lg_u32 s47, -1
    s_cbranch_scc1 {L}_p3poll
    """)
    stamp(a, 6)
    a(f"""
    s_mov_b64 exec, -1
    s_branch {L}_p3r
    {L}_p3m:
    """)
    for x in wr(0): a(x)
    a(f"""
    {L}_p3w:
    ds_read_b32 v23, v22 offset:8
    s_waitcnt lgkmcnt(0)
    v_readfirstlane_b32 s47, v23
    s_and_b32 s47, s47, s45
    s_cmp_eq_u32 s47, s45
    s_cbranch_scc1 {L}_p3go
    s_sleep 1
    s_branch {L}_p3w
    {L}_p3go:
    """)
    stamp(a, 6)
    OF = 24
    for ks in range(10):
        for sl in range(2):
            a(f"buffer_load_dwordx2 {vr(OF+4*ks+2*sl,2)}, v7, s[8:11], s{36+ks//4} offen offset:{(ks%4)*1024+512*sl}{E('OSC', ' sc1')}")
    for ks in range(10):
        a(f"s_waitcnt vmcnt({18-2*ks}) lgkmcnt(0)")
        r = wr(ks+1) if ks < 9 else []
        b = WF[ks & 1]
        for cb in range(3):
            a(f"{M} {vr(64+16*cb,16)}, {vr(b+4*cb,4)}, {vr(OF+4*ks,4)}, {vr(64+16*cb,16)}")
            for x in r[2*cb:2*cb+2]: a(x)
    a(f"""
    v_add_u32 v23, s48, v22
    v_mov_b32 v9, 1
    s_mov_b64 exec, 1
    ds_add_u32 v23, v9 offset:16
    s_mov_b64 exec, -1
    s_and_b32 s47, s22, 1
    s_mul_i32 s47, s47, 10240
    s_add_u32 s39, s49, s47
    v_add_u32 v5, s39, v2
    {L}_p3pw:
    ds_read_b32 v9, v23 offset:16
    s_waitcnt lgkmcnt(0)
    v_readfirstlane_b32 s47, v9
    s_cmp_lg_u32 s47, 2
    s_cbranch_scc1 {L}_p3pw
    """)
    for q in range(10):
        a(f"ds_write_b128 v5, {vr(64+4*q,4)} offset:{1024*q}")
    a(f"""
    s_waitcnt lgkmcnt(0)
    {L}_p3r:
    """)
    if STAMP:
        a(f"s_cmp_lt_u32 s22, 4\ns_cbranch_scc1 {L}_st4")
        stamp(a, 4)
        a(f"{L}_st4:")
    a(f"""
    s_lshl_b32 s39, s22, 10
    v_add_u32 v5, s39, v2
    v_add_u32 v7, 61440, v5
    s_barrier
    """)
    for j in range(2):
        for kq in range(4):
            a(f"ds_read_b128 {vr(16+16*j+4*kq,4)}, v{5 if kq < 2 else 7} offset:{j*10240 + (kq%2)*30720}")
    a("s_waitcnt vmcnt(0)")
    for j in range(2):
        a(f"""
        v_sub_f32 v{142+j}, 1.0, v{140+j}
        v_cvt_pk_bf16_f32 v{142+j}, v{142+j}, v{142+j}
        v_lshlrev_b32 v{142+j}, 16, v{142+j}
        """)
        B = 128 + 6*j
        for i in range(4):
            ex = (lambda d, r: f"v_lshlrev_b32 v{d}, 16, v{r}") if i % 2 == 0 else (lambda d, r: f"v_and_b32 v{d}, 0xffff0000, v{r}")
            a(f"""
            {ex(56+4*j+i, B + i//2)}
            {ex(55, B + 2 + i//2)}
            v_add_f32 v{56+4*j+i}, v{56+4*j+i}, v55
            {ex(55, B + 4 + i//2)}
            v_add_f32 v{56+4*j+i}, v{56+4*j+i}, v55
            """)
    a("s_waitcnt lgkmcnt(0)")
    for j in range(2):
        P = 16 + 16*j
        for i in range(4):
            a(f"""
            v_add_f32 v{P+i}, v{P+i}, v{P+4+i}
            v_add_f32 v{P+8+i}, v{P+8+i}, v{P+12+i}
            v_add_f32 v{P+i}, v{P+i}, v{P+8+i}
            v_mul_f32 v{P+i}, v{140+j}, v{P+i}
            v_fmac_f32 v{P+i}, v{142+j}, v{56+4*j+i}
            """)
        a(f"""
        v_cvt_pk_bf16_f32 v{P}, v{P}, v{P+1}
        v_cvt_pk_bf16_f32 v{P+1}, v{P+2}, v{P+3}
        buffer_store_dwordx2 {vr(P,2)}, v6, s[12:15], s{41 if j == 0 else 44} offen
        """)
    stamp_out(a, 7, 0)
    a(f"{L}_end:")
    a("s_endpgm")
    kernel_desc(a, name, 160, 100)
```

```python
from common import *
import math
from k2 import (M, QA1, QA2, QB1, QB2, KVB, SA, SB, OA, OB, PA, PB, split3, exp_groups, pv, CH)
def qk(Sd, kb, q1, q2):
    return [f"{M} {vr(Sd,16)}, {vr(kb,4)}, {vr(q1,4)}, 0",
            f"v_mfma_f32_32x32x8_bf16 {vr(Sd,16)}, {vr(kb+4,2)}, {vr(q2,2)}, {vr(Sd,16)}"]
LOG2E = 1.4426950408889634
QSCALE = LOG2E / math.sqrt(20.0)
E = os.environ.get
XSL = 32768
WB = 3 * XSL
WSL = 10240
QST = WB
KVR = 163840 - 3 * CH
GSL = 32768
NONCE = 122880
BREG = True
F_LDS = 163840
F_BLOCK = 640
SPIN = int(E("SPIN", 1 << 16))
SC = " sc1"
SCL = E('SCL', ' sc1')

_pc = [0]
def poll(a, L, voff, soff):
    _pc[0] += 1
    T = f"{L}_poll{_pc[0]}"
    a(f"""
    s_mov_b32 s70, {SPIN}
    {T}:
    buffer_load_dwordx2 v[24:25], {voff}, s[8:11], {soff} offen sc1
    s_sub_u32 s70, s70, 1
    s_cbranch_scc1 {T}_ok
    s_waitcnt vmcnt(0)
    v_cmp_ne_u64 vcc, v[24:25], v[20:21]
    s_cmp_eq_u64 vcc, 0
    s_cbranch_scc1 {T}_ok
    s_sleep {E("PSLEEP", "2")}
    s_branch {T}
    {T}_ok:
    """)

def flag(a, soff):
    a(f"""
    s_mov_b64 exec, 1
    buffer_store_dwordx2 v[20:21], v5, s[8:11], {soff} offen sc1
    s_mov_b64 exec, -1
    """)

def aslot(a, S, P, mf, pre=(), rd=None):
    g = exp_groups(S, P)
    flat = [x for gg in g for x in gg]
    pos = [int(x) for x in E("MPOS", "0,5,11,17").split(",")]
    for p in pre: a(p)
    k = 0
    for i, x in enumerate(flat):
        while k < 4 and pos[k] == i:
            a(mf[k])
            if rd: a(rd[k])
            k += 1
        a(x)

def gen(a, name):
    kernel_head(a, name)
    L = name
    a(f"""
    s_cmp_ge_u32 s2, 256
    s_cbranch_scc1 {L}_end
    s_load_dwordx8 s[4:11], s[0:1], 0
    s_load_dwordx4 s[12:15], s[0:1], 48
    s_load_dwordx2 s[18:19], s[0:1], 96
    """)
    stamp(a, 0)
    a(f"""
    v_lshrrev_b32 v2, 6, v0
    v_and_b32 v1, 63, v0
    v_readfirstlane_b32 s22, v2
    s_and_b32 s47, s2, 7
    s_lshr_b32 s51, s2, 3
    s_and_b32 s20, s47, 1
    s_lshl_b32 s20, s20, 2
    s_and_b32 s67, s51, 3
    s_add_u32 s20, s20, s67
    s_lshr_b32 s21, s47, 1
    s_lshl_b32 s21, s21, 3
    s_lshr_b32 s68, s51, 2
    s_add_u32 s21, s21, s68
    s_cmp_lt_u32 s22, 8
    s_cbranch_scc1 {L}_comp
    """)
    a.c("s20 = row group (256 rows), s21 = cg = head = column group, s22 = wave; kept for the whole kernel, as is s[18:19]")
    a(f"""
    s_and_b32 s63, s22, 1
    v_lshrrev_b32 v10, 3, v1
    v_lshrrev_b32 v11, 4, v1
    v_and_b32 v12, 7, v1
    v_xor_b32 v12, v12, v11
    v_xor_b32 v11, 4, v12
    s_movk_i32 s54, 1280
    v_mul_u32_u24 v10, s54, v10
    v_lshl_add_u32 v15, v11, 4, v10
    v_lshl_add_u32 v10, v12, 4, v10
    s_mul_i32 s53, s20, {256*1280}
    s_mul_i32 s55, s63, {64*1280}
    s_add_u32 s53, s53, s55
    """)
    for i in range(8):
        a(f"s_add_u32 s55, s53, {i*10240 - 1024*(i&3) + 4096}")
        a(f"v_add_u32 v{2+i}, s55, v{15 if i & 1 else 10}")
    a(f"""
    s_add_u32 s52, s67, s68
    s_and_b32 s52, s52, 3
    s_mul_i32 s52, s52, 5
    s_lshr_b32 s52, s52, 1
    s_lshl_b32 s41, s52, 7
    s_lshl_b32 s48, s63, 13
    s_mov_b32 m0, s48
    s_waitcnt lgkmcnt(0)
    s_sub_u32 s24, s4, 4096
    s_subb_u32 s25, s5, 0
    s_and_b32 s25, s25, 0xffff
    s_mov_b32 s26, {2621440+4096}
    s_mov_b32 s27, 0x20000
    """)
    a.c("x voffsets carry +4096 so that they stay non negative; the SRD base carries -4096")
    def xdma(so):
        a(f"""
        buffer_load_dwordx4 v2, s[24:27], {so} offen lds
        buffer_load_dwordx4 v3, s[24:27], {so} offen offset:1024 lds
        buffer_load_dwordx4 v4, s[24:27], {so} offen offset:2048 lds
        buffer_load_dwordx4 v5, s[24:27], {so} offen offset:3072 lds
        s_add_u32 m0, m0, 4096
        s_nop 0
        buffer_load_dwordx4 v6, s[24:27], {so} offen lds
        buffer_load_dwordx4 v7, s[24:27], {so} offen offset:1024 lds
        buffer_load_dwordx4 v8, s[24:27], {so} offen offset:2048 lds
        buffer_load_dwordx4 v9, s[24:27], {so} offen offset:3072 lds
        """)
    xdma("s41")
    a(f"""
    v_lshrrev_b32 v13, 3, v1
    s_movk_i32 s62, 3456
    v_mul_u32_u24 v13, s62, v13
    v_and_b32 v14, 7, v1
    v_bfe_u32 v15, v1, 4, 1
    v_lshlrev_b32 v15, 2, v15
    v_xor_b32 v14, v14, v15
    v_lshl_add_u32 v13, v14, 4, v13
    s_lshl_b32 s53, s21, 7
    v_add_u32 v10, s53, v13
    v_add_u32 v11, {8*3456-1024}, v10
    v_add_u32 v12, {2*(8*3456-1024)}, v10
    v_add_u32 v13, {3*(8*3456-1024)}, v10
    v_lshrrev_b32 v14, 2, v1
    v_mul_u32_u24 v14, s54, v14
    v_and_b32 v15, 3, v1
    v_lshl_add_u32 v14, v15, 4, v14
    s_mul_i32 s53, s21, 40
    s_mul_i32 s55, s63, {16*1280}
    s_add_u32 s53, s53, s55
    v_add_u32 v14, s53, v14
    v_lshlrev_b32 v15, 4, v1
    s_cmp_eq_u32 s63, 1
    s_cselect_b32 s28, s14, s12
    s_cselect_b32 s29, s15, s13
    s_and_b32 s29, s29, 0xffff
    s_mov_b32 s30, 2211840
    s_mov_b32 s31, 0x20000
    s_mov_b32 s32, s6
    s_and_b32 s33, s7, 0xffff
    s_mov_b32 s34, 819200
    s_mov_b32 s35, 0x20000
    s_cmp_eq_u32 s21, 27
    s_cselect_b32 s36, s8, s10
    s_cselect_b32 s37, s9, s11
    s_and_b32 s37, s37, 0xffff
    s_sub_u32 s53, s21, 27
    s_cmp_lt_u32 s53, 2
    s_cselect_b32 s38, 25600, 0
    s_mov_b32 s39, 0x20000
    s_lshl_b32 s52, s52, 1
    s_mul_i32 s42, s52, {32*3456}
    s_mul_i32 s43, s52, {32*1280}
    s_mul_i32 s40, s52, 1280
    s_lshl_b32 s51, s63, 10
    s_add_u32 s40, s40, s51
    s_lshl_b32 s49, s63, 12
    s_add_u32 s49, s49, {WB}
    s_add_u32 s50, s51, {WB+8192}
    s_add_u32 s56, s51, {WB}
    s_add_u32 s45, s48, 16384
    s_add_u32 s54, s41, 163840
    s_mov_b32 s44, 0
    s_mov_b32 s46, 0
    s_mov_b32 s58, 2
    {"s_mov_b32 s26, 0" if "x" in E("NULLD", "") else ""}
    {"s_mov_b32 s30, 0" if "w" in E("NULLD", "") else ""}
    {"s_mov_b32 s34, 0" if "q" in E("NULLD", "") else ""}
    s_cmp_ge_u32 s21, 27
    s_cbranch_scc1 {L}_ldl_issue
    """)
    a.c("s45/s54 next x half (lds, soffset), s41 k byte offset of the pair, s42 W, s43 wq, s40 wk/wv soffsets, s44 W slot")
    for tag, D in (("ldf", 13), ("ldl", 10)):
        a(f"""
        {L}_{tag}_issue:
        s_mov_b32 m0, s45
        s_add_u32 s46, s46, 1
        """)
        xdma("s54")
        if tag == "ldf":
            a(f"""
            s_add_u32 m0, s44, s49
            s_add_u32 s45, s45, 16384
            buffer_load_dwordx4 v10, s[28:31], s42 offen lds
            buffer_load_dwordx4 v11, s[28:31], s42 offen offset:1024 lds
            buffer_load_dwordx4 v12, s[28:31], s42 offen offset:2048 lds
            buffer_load_dwordx4 v13, s[28:31], s42 offen offset:3072 lds
            """)
        else:
            a(f"""
            s_add_u32 m0, s44, s56
            s_add_u32 s45, s45, 16384
            buffer_load_dwordx4 v15, s[36:39], s40 offen lds
            """)
        a(f"""
        s_add_u32 m0, s44, s50
        s_add_u32 s42, s42, {32*3456}
        buffer_load_dwordx4 v14, s[32:35], s43 offen lds
        s_add_u32 s43, s43, {32*1280}
        s_add_u32 s40, s40, 1280
        s_cmp_eq_u32 s43, 819200
        s_cselect_b32 s42, 0, s42
        s_cselect_b32 s43, 0, s43
        s_cselect_b32 s40, s51, s40
        s_add_u32 s44, s44, {WSL}
        s_cmp_ge_u32 s44, {4*WSL}
        s_cselect_b32 s44, 0, s44
        s_cmp_ge_u32 s45, {WB}
        s_cselect_b32 s45, s48, s45
        s_add_u32 s52, s41, 128
        s_cmp_eq_u32 s52, 1280
        s_cselect_b32 s52, 0, s52
        s_add_u32 s53, s41, 163840
        s_bitcmp1_b32 s46, 0
        s_cselect_b32 s41, s52, s41
        s_cselect_b32 s54, s52, s53
        s_cmp_eq_u32 s46, 19
        s_cselect_b32 s26, 0, s26
        s_cmp_lt_u32 s46, s58
        s_cbranch_scc1 {L}_{tag}_issue
        s_waitcnt vmcnt({D})
        s_barrier
        s_add_u32 s58, s58, 1
        s_cmp_le_u32 s58, 20
        s_cbranch_scc1 {L}_{tag}_issue
        """)
        if tag == "ldf": a(f"s_branch {L}_ld_tail")
    a(f"""
    {L}_ld_tail:
    s_load_dwordx2 s[4:5], s[0:1], 32
    s_load_dwordx2 s[6:7], s[0:1], 88
    v_mov_b32 v5, 0
    s_waitcnt vmcnt(0) lgkmcnt(0)
    s_barrier
    global_load_dwordx2 v[20:21], v5, s[6:7] sc0 sc1
    s_barrier
    """)
    srd(a, 8, 18, 19, WS_SIZE)
    srd(a, 12, 18, 19, WS_KV + 64*3072)
    a(f"""
    v_lshlrev_b32 v2, 4, v1
    v_lshlrev_b32 v3, 7, v1
    s_mov_b32 s70, {SPIN}
    s_branch {L}_l_non2
    {L}_l_non:
    global_load_dwordx2 v[20:21], v5, s[6:7] sc0 sc1
    {L}_l_non2:
    s_sub_u32 s70, s70, 1
    s_cbranch_scc1 {L}_l_non3
    s_waitcnt vmcnt(0)
    v_cmp_ne_u32 vcc, 0, v20
    s_cmp_eq_u64 vcc, 0
    s_cbranch_scc1 {L}_l_non
    {L}_l_non3:
    s_lshl_b32 s33, s20, 5
    s_add_u32 s33, s33, s21
    s_lshl_b32 s34, s33, 7
    s_add_u32 s34, s34, {WS_F}
    s_lshl_b32 s35, s20, 12
    s_add_u32 s35, s35, {WS_F}
    s_sub_u32 s53, s21, 27
    s_cmp_ge_u32 s53, 2
    s_cbranch_scc1 {L}_l_nokv
    s_barrier
    s_cmp_lg_u32 s63, 0
    s_cbranch_scc1 {L}_l_nokv
    s_lshl_b32 s52, s20, 1
    s_add_u32 s52, s52, s53
    s_lshl_b32 s52, s52, 7
    s_add_u32 s52, s52, {WS_F+FQ}
    """)
    flag(a, "s52")
    a(f"""
    {L}_l_nokv:
    s_cmp_lt_u32 s21, 27
    s_cbranch_scc1 {L}_l_now
    s_cmp_eq_u32 s63, 0
    s_cbranch_scc1 {L}_l_now
    s_load_dwordx2 s[16:17], s[0:1], 64
    s_mul_i32 s52, s20, 5
    s_add_u32 s52, s52, s53
    s_mul_i32 s52, s52, {7*8192}
    s_waitcnt lgkmcnt(0)
    s_mov_b32 s56, s16
    s_and_b32 s57, s17, 0xffff
    s_mov_b32 s58, 2211840
    s_mov_b32 s59, 0x20000
    s_mov_b32 s54, 7
    {L}_l_warm:
    buffer_load_dword v31, v3, s[56:59], s52 offen
    s_add_u32 s52, s52, 8192
    s_sub_u32 s54, s54, 1
    s_cmp_lg_u32 s54, 0
    s_cbranch_scc1 {L}_l_warm
    {L}_l_now:
    s_mul_i32 s24, s63, 6144
    s_add_u32 s30, s24, {WS_KV}
    s_add_u32 s31, s30, 4096
    s_add_u32 s24, s24, {KVR}
    s_mov_b32 s25, {CH}
    s_mov_b32 s52, {WS_F+FQ}
    s_mov_b64 exec, 0xffff
    """)
    a.c("s34 = own flag line, s35 = flag lines of this row group; s30/s31 kv source, s24 + s25 kv destination")
    stamp(a, 1)
    poll(a, L, "v3", "s52")
    a("s_mov_b64 exec, -1")
    stamp(a, 2)
    def kv():
        a(f"""
        s_add_u32 m0, s25, s24
        s_add_u32 s25, s25, {CH}
        buffer_load_dwordx4 v2, s[12:15], s30 offen{SCL} lds
        buffer_load_dwordx4 v2, s[12:15], s30 offen offset:1024{SCL} lds
        buffer_load_dwordx4 v2, s[12:15], s30 offen offset:2048{SCL} lds
        buffer_load_dwordx4 v2, s[12:15], s30 offen offset:3072{SCL} lds
        s_add_u32 m0, m0, 4096
        s_add_u32 s30, s30, {CH}
        buffer_load_dwordx4 v2, s[12:15], s31 offen{SCL} lds
        buffer_load_dwordx4 v2, s[12:15], s31 offen offset:1024{SCL} lds
        s_add_u32 s31, s31, {CH}
        s_cmp_ge_u32 s25, {3*CH}
        s_cselect_b32 s25, 0, s25
        """)
    a(f"""
    s_mov_b32 m0, {QST+6144}
    s_mov_b32 s52, {WS_KV+1024+31*16+12}
    v_mul_u32_u24 v6, 3072, v1
    buffer_load_dword v6, s[8:11], s52 offen{SCL} lds
    """)
    kv(); kv()
    a(f"""
    s_and_b32 s38, s21, 7
    s_mul_i32 s38, s38, 160
    s_movk_i32 s39, 5462
    s_movk_i32 s40, 1280
    """)
    for i in range(3):
        a(f"""
        v_add_u32 v6, {64*i}, v1
        v_mul_u32_u24 v7, s39, v6
        v_lshrrev_b32 v7, 16, v7
        v_mul_u32_u24 v8, 12, v7
        v_sub_u32 v8, v6, v8
        v_mul_u32_u24 v7, s40, v7
        v_lshl_add_u32 v7, v8, 4, v7
        v_add_u32 v7, s38, v7
        v_subrev_u32 v{10+i}, {1024*i}, v7
        """)
    srd(a, 40, 4, 5, 819200)
    a(f"""
    s_mul_i32 s44, s63, {20*20480}
    s_mul_i32 s45, s63, {20*3072}
    s_waitcnt vmcnt(6)
    """)
    stamp(a, 3)
    a("s_barrier")
    def bar_kv():
        a("s_waitcnt vmcnt(0)")
        a("s_barrier")
        kv()
    bar_kv()
    a(f"""
    s_cmp_eq_u32 s63, 1
    s_cbranch_scc1 {L}_gate
    s_lshl_b32 s52, s2, 6
    v_add_u32 v6, s52, v1
    v_lshlrev_b32 v6, 7, v6
    buffer_load_dword v30, v6, s[40:43], 0 offen
    v_mov_b32 v6, {NONCE}
    ds_write_b64 v6, v[20:21]
    v_mov_b32 v8, 0
    v_mov_b32 v9, 0
    ds_write_b64 v6, v[8:9] offset:8
    ds_write_b64 v6, v[8:9] offset:16
    ds_write_b64 v6, v[8:9] offset:24
    s_waitcnt vmcnt(1) lgkmcnt(0)
    s_barrier
    """)
    a.c("B1 passed: every wave has drained its h stores")
    flag(a, "s34")
    kv()
    a(f"""
    s_waitcnt vmcnt(0)
    s_branch {L}_gate_done
    {L}_gate:
    s_load_dwordx2 s[16:17], s[0:1], 72
    s_load_dwordx2 s[4:5], s[0:1], 0
    v_and_b32 v16, 7, v1
    v_lshlrev_b32 v16, 4, v16
    v_lshrrev_b32 v17, 3, v1
    s_lshl_b32 s53, s33, 3
    v_add_u32 v18, s53, v17
    s_movk_i32 s54, 1280
    v_mul_lo_u32 v17, v18, s54
    v_add_u32 v17, v17, v16
    s_waitcnt lgkmcnt(0)
    """)
    srd(a, 56, 4, 5, 2621440)
    srd(a, 68, 16, 17, 1280)
    for j in range(10):
        a(f"buffer_load_dwordx4 {vr(72+4*j,4)}, v17, s[56:59], 0 offen offset:{128*j}")
    for j in range(10):
        a(f"buffer_load_dwordx4 {vr(32+4*j,4)}, v16, s[68:71], 0 offen offset:{128*j}")
    a(f"""
    v_lshrrev_b32 v19, 3, v1
    v_lshlrev_b32 v19, 2, v19
    v_mov_b32 v27, {f32(-LOG2E)}
    v_mov_b32 v26, 0
    v_mov_b32 v28, 0
    s_waitcnt vmcnt(20)
    s_barrier
    """)
    kv()
    a("s_waitcnt vmcnt(6)")
    for i in range(0, 40, 2):
        a(f"v_dot2_f32_bf16 v26, v{72+i}, v{32+i}, v26")
        a(f"v_dot2_f32_bf16 v28, v{73+i}, v{33+i}, v28")
    a(f"""
    s_nop 3
    v_add_f32 v26, v26, v28
    s_nop 1
    v_add_f32_dpp v26, v26, v26 quad_perm:[1,0,3,2] row_mask:0xf bank_mask:0xf
    s_nop 1
    v_add_f32_dpp v26, v26, v26 quad_perm:[2,3,0,1] row_mask:0xf bank_mask:0xf
    s_nop 1
    v_add_f32_dpp v26, v26, v26 row_half_mirror row_mask:0xf bank_mask:0xf
    v_cvt_pk_bf16_f32 v26, v26, v26
    v_lshlrev_b32 v26, 16, v26
    v_mul_f32 v26, v27, v26
    v_exp_f32 v26, v26
    s_nop 0
    v_add_f32 v26, 1.0, v26
    v_rcp_f32 v26, v26
    s_nop 0
    v_cvt_pk_bf16_f32 v26, v26, v26
    v_lshlrev_b32 v28, 16, v26
    s_lshl_b32 s53, s33, 7
    s_add_u32 s53, s53, {WS_G}
    v_cmp_eq_u32 vcc, 0, v16
    s_nop 1
    s_mov_b64 exec, vcc
    buffer_store_dword v28, v19, s[8:11], s53 offen sc1
    s_mov_b64 exec, -1
    s_waitcnt vmcnt(1)
    {L}_gate_done:
    s_barrier
    """)
    kv()
    a(f"""
    s_cmp_eq_u32 s63, 1
    s_cbranch_scc1 {L}_l_np
    """)
    a("s_mov_b64 exec, 0x7ffffff")
    poll(a, L, "v3", "s35")
    a(f"""
    s_mov_b64 exec, -1
    {L}_l_np:
    s_mov_b32 s46, 3
    {L}_lloop:
    """)
    bar_kv()
    a(f"""
    s_add_u32 s46, s46, 1
    s_cmp_lt_u32 s46, 14
    s_cbranch_scc1 {L}_lloop
    s_add_u32 s34, s34, {F2}
    s_add_u32 s35, s35, {F2}
    """)
    a.c("barrier 13 passed: G waves are done with their ring")
    def wo(n, tag):
        a(f"""
        s_mov_b32 s47, {n}
        {L}_wo{tag}:
        s_mov_b32 m0, s45
        s_add_u32 s45, s45, 3072
        buffer_load_dwordx4 v10, s[40:43], s44 offen lds
        buffer_load_dwordx4 v11, s[40:43], s44 offen offset:1024 lds
        buffer_load_dwordx4 v12, s[40:43], s44 offen offset:2048 lds
        s_add_u32 s44, s44, 20480
        s_sub_u32 s47, s47, 1
        s_cmp_lg_u32 s47, 0
        s_cbranch_scc1 {L}_wo{tag}
        """)
    wo(8, "a")
    a("s_waitcnt vmcnt(24)")
    a("s_barrier")
    a(f"s_cmp_lg_u32 s63, 0\ns_cbranch_scc1 {L}_l_nf2")
    flag(a, "s34")
    a(f"{L}_l_nf2:")
    wo(8, "b")
    a("s_barrier")
    wo(4, "c")
    a(f"s_cmp_eq_u32 s63, 0\ns_cbranch_scc1 {L}_l_np2")
    a("s_mov_b32 exec_hi, 0")
    poll(a, L, "v3", "s35")
    a(f"{L}_l_np2:")
    a(f"""
    s_mov_b64 exec, 1
    v_mov_b32 v22, {NONCE}
    v_mov_b32 v9, 1
    s_waitcnt vmcnt(0)
    ds_add_u32 v22, v9 offset:12
    s_mov_b64 exec, -1
    s_lshr_b32 s52, s21, 3
    s_lshl_b32 s52, s52, 9
    s_add_u32 s35, s35, s52
    s_add_u32 s35, s35, {F3-F2}
    s_branch {L}_p3
    """)

    a(f"""
    {L}_comp:
    s_and_b32 s63, s22, 3
    s_lshr_b32 s64, s22, 2
    v_and_b32 v13, 31, v1
    v_lshrrev_b32 v14, 5, v1
    v_bfe_u32 v15, v1, 1, 3
    v_xor_b32 v2, v14, v15
    v_lshlrev_b32 v2, 4, v2
    v_lshl_add_u32 v2, v13, 7, v2
    s_lshl_b32 s52, s63, 13
    s_lshl_b32 s53, s64, 12
    s_add_u32 s52, s52, s53
    v_add_u32 v2, s52, v2
    v_xor_b32 v3, 32, v2
    v_xor_b32 v4, 64, v2
    v_xor_b32 v5, 96, v2
    v_bfe_u32 v15, v1, 2, 2
    v_lshlrev_b32 v7, 3, v14
    v_add_u32 v7, v7, v15
    v_mul_u32_u24 v9, 40, v7
    v_lshlrev_b32 v8, 6, v7
    v_lshlrev_b32 v7, 7, v7
    v_lshrrev_b32 v16, 1, v15
    v_xor_b32 v16, s64, v16
    v_lshl_add_u32 v7, v16, 6, v7
    v_bfe_u32 v16, v1, 4, 1
    v_and_b32 v17, 3, v1
    v_lshlrev_b32 v16, 5, v16
    v_lshl_add_u32 v16, v17, 3, v16
    v_add_u32 v7, v7, v16
    v_add_u32 v8, v8, v16
    v_add_u32 v9, v9, v16
    v_add_u32 v7, {WB}, v7
    v_add_u32 v8, {WB+8192}, v8
    v_add_u32 v9, {WB}, v9
    s_mov_b32 s44, 0
    s_mov_b32 s45, 0
    s_mov_b32 s46, 0
    """)
    a.c("v2..v5 x frag addr (row block 2rp+cp) for the 4 k steps of a pair; v7 W, v8 wq slice, v9 wk/wv slice addr; s63=rp s64=cp")
    for r in range(64, 144):
        a(f"v_mov_b32 v{r}, 0")
    a("s_waitcnt lgkmcnt(0)")
    srd(a, 8, 18, 19, WS_SIZE)
    a(f"""
    s_or_b32 s52, s22, s2
    s_cmp_lg_u32 s52, 0
    s_cbranch_scc1 {L}_nonon
    s_load_dwordx2 s[52:53], s[0:1], 88
    s_memrealtime s[54:55]
    v_mov_b32 v148, 0
    s_waitcnt lgkmcnt(0)
    s_or_b32 s54, s54, 1
    v_mov_b32 v144, s54
    v_mov_b32 v145, s55
    s_mov_b64 exec, 1
    global_store_dwordx2 v148, v[144:145], s[52:53] sc0 sc1
    s_mov_b64 exec, -1
    {L}_nonon:
    s_lshr_b32 s52, s21, 4
    s_xor_b32 s53, s22, 1
    s_or_b32 s52, s52, s53
    s_cmp_lg_u32 s52, 0
    s_cbranch_scc1 {L}_noin
    s_lshl_b32 s52, s20, 5
    s_add_u32 s52, s52, s21
    s_lshl_b32 s52, s52, 7
    s_add_u32 s52, s52, {WS_F+F3}
    s_mov_b64 exec, 1
    buffer_store_dword v64, v64, s[8:11], s52 offen sc1
    s_mov_b64 exec, -1
    {L}_noin:
    """)
    if E("CPF", "1") == "1":
        a(f"""
        s_lshr_b32 s52, s2, {3 + int(E("CPFS", "0"))}
        s_xor_b32 s53, s22, 2
        s_or_b32 s52, s52, s53
        s_cmp_lg_u32 s52, 0
        s_cbranch_scc1 {L}_nocpf
        s_getpc_b64 s[52:53]
        {L}_pc:
        s_sub_u32 s52, s52, {L}_pc-{L}
        s_subb_u32 s53, s53, 0
        v_lshlrev_b32 v144, 7, v1
        global_load_dword v145, v144, s[52:53]
        v_add_u32 v144, 8192, v144
        v_cmp_gt_u32 vcc, {L}_end-{L}, v144
        s_nop 1
        s_mov_b64 exec, vcc
        global_load_dword v145, v144, s[52:53]
        s_mov_b64 exec, -1
        {L}_nocpf:
        """)
    a(f"""
    s_cmp_eq_u32 s21, 27
    s_cbranch_scc1 {L}_modeK
    s_cmp_eq_u32 s21, 28
    s_cbranch_scc1 {L}_modeV
    s_cmp_gt_u32 s21, 28
    s_cbranch_scc1 {L}_modeQ
    """)
    XA = [16, 36]
    XC = [56, 57, 58, 59]
    XD = [60, 61, 62, 63]
    def xaddrs(full):
        l = [f"v_add_u32 v{XC[j]}, s45, v{2+j}" for j in range(4)]
        if full: l += [f"v_xor_b32 v{XD[j]}, 4096, v{XC[j]}" for j in range(4)]
        return l + [f"s_add_u32 s45, s45, {XSL}", f"s_cmp_ge_u32 s45, {WB}", "s_cselect_b32 s45, 0, s45"]
    def waddrs(mode):
        l = ["v_add_u32 v12, s44, v8"]
        if mode == 0: l.append("v_add_u32 v11, s44, v7")
        if mode in (1, 2): l.append("v_add_u32 v11, s44, v9")
        return l + [f"s_add_u32 s44, s44, {WSL}", f"s_cmp_ge_u32 s44, {4*WSL}", "s_cselect_b32 s44, 0, s44"]
    def read_list(j, mode):
        ks = j & 1
        b = XA[ks]
        l = [f"ds_read_b128 {vr(b,4)}, v{XC[j]}"]
        if mode == 0:
            l += [f"ds_read_b64_tr_b16 {vr(b+8,2)}, v11 offset:{ks*2048}",
                  f"ds_read_b64_tr_b16 {vr(b+10,2)}, v11 offset:{ks*2048+512}",
                  f"ds_read_b64_tr_b16 {vr(b+12,2)}, v11 offset:{4096+ks*2048}",
                  f"ds_read_b64_tr_b16 {vr(b+14,2)}, v11 offset:{4096+ks*2048+512}",
                  f"ds_read_b128 {vr(b+4,4)}, v{XD[j]}"]
        if mode in (1, 2):
            l += [f"ds_read_b64_tr_b16 {vr(b+8,2)}, v11 offset:{ks*640}",
                  f"ds_read_b64_tr_b16 {vr(b+10,2)}, v11 offset:{ks*640+160}"]
        l += [f"ds_read_b64_tr_b16 {vr(b+16,2)}, v12 offset:{ks*1024}",
              f"ds_read_b64_tr_b16 {vr(b+18,2)}, v12 offset:{ks*1024+256}"]
        return l
    def mfma_list(ks, mode):
        b = XA[ks]
        x0, x1, wg, wu, ws = vr(b,4), vr(b+4,4), vr(b+8,4), vr(b+12,4), vr(b+16,4)
        l = []
        if mode == 0:
            l = [f"{M} v[64:79], {wg}, {x0}, v[64:79]", f"{M} v[80:95], {wu}, {x0}, v[80:95]",
                 f"{M} v[96:111], {wg}, {x1}, v[96:111]", f"{M} v[112:127], {wu}, {x1}, v[112:127]"]
        if mode == 1: l = [f"{M} v[64:79], {wg}, {x0}, v[64:79]"]
        if mode == 2: l = [f"{M} v[64:79], {x0}, {wg}, v[64:79]"]
        l = l + [f"{M} v[128:143], {ws}, {x0}, v[128:143]"]
        if E("HACK16", "0") == "1" and mode == 0:
            import re
            l2 = []
            for m in l:
                b0 = int(re.search(r"v\[(\d+):", m).group(1)); ops = m.split(", ")
                t = f"v_mfma_f32_16x16x32_bf16 {{d}}, {ops[1]}, {ops[2]}, {{d}}"
                l2.append(t.format(d=vr(b0+8*ks,4)) + "\n" + t.format(d=vr(b0+8*ks+4,4)))
            l = l2
        return l
    def half(ml, rl, post):
        n = len(ml)
        if n == 5 and E("P1V", "1") == "1":
            a("s_waitcnt lgkmcnt(2)")
            cuts = [int(x) for x in E("P1CUT", "3,6,8,8").split(",")]
            lo = 0
            for i, m in enumerate(ml):
                if i == 4: a("s_waitcnt lgkmcnt(8)")
                a(m)
                if i < 4:
                    for x in rl[lo:cuts[i]]: a(x)
                    lo = cuts[i]
                if i == 3:
                    for x in post: a(x)
            return
        a("s_waitcnt lgkmcnt(0)")
        per = -(-len(rl) // max(n - 1, 1))
        for i, m in enumerate(ml):
            a(m)
            if n == 1:
                for x in rl + post: a(x)
                continue
            for x in rl[per*i:per*i+per]: a(x)
            if i == n - 2:
                for x in post: a(x)
    for mode, tag in ((0, "full"), (1, "modeK"), (2, "modeV"), (3, "modeQ")):
        a(f"{L}_{tag}:")
        for x in xaddrs(mode == 0) + waddrs(mode): a(x)
        a("s_barrier")
        for x in read_list(0, mode): a(x)
        stamp(a, 1)
        if mode == 0: a(".p2align 6")
        a(f"{L}_{tag}_loop:")
        half(mfma_list(0, mode), read_list(1, mode), waddrs(mode))
        a("s_barrier")
        half(mfma_list(1, mode), read_list(2, mode), [])
        half(mfma_list(0, mode), read_list(3, mode), waddrs(mode) + xaddrs(mode == 0))
        a("s_barrier")
        half(mfma_list(1, mode), read_list(0, mode), ["s_add_u32 s46, s46, 1", "s_cmp_lt_u32 s46, 10"])
        a(f"s_cbranch_scc1 {L}_{tag}_loop")
        stamp(a, 2)
        a(f"""
        s_lshl_b32 s52, s20, 3
        s_lshl_b32 s53, s63, 1
        s_add_u32 s52, s52, s53
        s_add_u32 s52, s52, s64
        v_lshlrev_b32 v2, 4, v1
        """)
        a(f"s_branch {L}_epi{mode}")
    a.c("s52 = global row block of acc set 0 and of the q chain (set 1 is s52 ^ 1)")
    EK = 64
    a(f"""
    {L}_epi1:
    s_mul_i32 s53, s52, 3072
    s_add_u32 s53, s53, {WS_KV}
    s_nop 7
    s_waitcnt lgkmcnt(0)
    """)
    for i in range(4): a(f"v_cvt_pk_bf16_f32 v{20+i}, v{EK+2*i}, v{EK+2*i+1}")
    a(f"buffer_store_dwordx4 v[20:23], v2, s[8:11], s53 offen{SC}")
    a(f"v_cvt_pk_bf16_f32 v24, v{EK+8}, v{EK+9}")
    a(f"v_cvt_pk_bf16_f32 v25, v{EK+10}, v{EK+11}")
    a("v_mov_b32 v26, 0x3f803f80")
    a("v_mov_b32 v27, 0x00003f80")
    a(f"v_mul_f32 v30, v{EK}, v{EK}")
    for i in range(1, 8): a(f"v_fmac_f32 v30, v{EK+i}, v{EK+i}")
    a(f"v_mul_f32 v31, v{EK+8}, v{EK+8}")
    for i in range(9, 12): a(f"v_fmac_f32 v31, v{EK+i}, v{EK+i}")
    a(f"""
    v_cmp_gt_u32 vcc, 32, v1
    s_nop 1
    v_cndmask_b32 v31, 0, v31, vcc
    v_add_f32 v30, v30, v31
    v_mov_b32 v31, v30
    s_nop 1
    v_permlane32_swap_b32 v30, v31
    s_nop 1
    v_add_f32 v30, v30, v31
    """)
    for sh in (1, 2, 4, 8):
        a("s_nop 1")
        a(f"v_max_f32_dpp v30, v30, v30 row_shr:{sh} row_mask:0xf bank_mask:0xf")
    a(f"""
    s_nop 1
    v_max_f32_dpp v30, v30, v30 row_bcast:15 row_mask:0xa bank_mask:0xf
    v_cmp_eq_u32 vcc, 31, v1
    v_and_b32 v30, 0xffff0000, v30
    v_or_b32 v30, 0x3f80, v30
    v_cndmask_b32 v27, v27, v30, vcc
    s_mov_b32 exec_hi, 0
    buffer_store_dwordx4 v[24:27], v2, s[8:11], s53 offen offset:1024{SC}
    s_branch {L}_kvdone
    {L}_epi2:
    s_mul_i32 s53, s52, 3072
    s_add_u32 s53, s53, {WS_KV+1536}
    v_and_b32 v17, 31, v1
    v_lshrrev_b32 v18, 5, v1
    v_mul_u32_u24 v18, 384, v18
    v_lshl_add_u32 v16, v17, 4, v18
    v_mov_b32 v19, 0x3f803f80
    v_cmp_eq_u32 vcc, 20, v17
    v_cmp_lt_u32 s[54:55], 19, v17
    s_nop 3
    v_cndmask_b32 v19, 0, v19, vcc
    s_waitcnt lgkmcnt(0)
    """)
    for i in range(8): a(f"v_cvt_pk_bf16_f32 v{20+i}, v{EK+2*i}, v{EK+2*i+1}")
    for i in range(8): a(f"v_cndmask_b32 v{20+i}, v{20+i}, v19, s[54:55]")
    a(f"""
    v_cmp_gt_u32 vcc, 24, v17
    s_nop 1
    s_and_b64 exec, exec, vcc
    buffer_store_dwordx4 v[20:23], v16, s[8:11], s53 offen{SC}
    buffer_store_dwordx4 v[24:27], v16, s[8:11], s53 offen offset:768{SC}
    {L}_kvdone:
    s_mov_b64 exec, -1
    s_waitcnt vmcnt(0)
    s_barrier
    s_branch {L}_epi3
    """)
    C0 = -2.0 * 0.7978845608028654 * LOG2E
    C1 = C0 * 0.044715
    a(f"""
    {L}_epi0:
    v_mov_b32 v16, {f32(C0)}
    v_mov_b32 v17, {f32(C1)}
    s_lshl_b32 s54, s21, 12
    s_lshl_b32 s55, s64, 11
    s_add_u32 s54, s54, s55
    s_add_u32 s54, s54, {WS_H}
    s_mul_i32 s53, s52, {108*1024}
    s_add_u32 s53, s53, s54
    s_xor_b32 s55, s52, 1
    s_mul_i32 s55, s55, {108*1024}
    s_add_u32 s54, s54, s55
    s_waitcnt lgkmcnt(0)
    """)
    for j in range(2):
        G, U = 64 + 32*j, 80 + 32*j
        for hf in range(2):
            T = 20
            rs = list(range(8*hf, 8*hf+8))
            for i, r in enumerate(rs): a(f"v_mul_f32 v{T+i}, v{G+r}, v{G+r}")
            for i, r in enumerate(rs): a(f"v_fma_f32 v{T+i}, v{T+i}, v17, v16")
            for i, r in enumerate(rs): a(f"v_mul_f32 v{T+i}, v{G+r}, v{T+i}")
            for i, r in enumerate(rs): a(f"v_exp_f32 v{T+i}, v{T+i}")
            for i, r in enumerate(rs): a(f"v_mul_f32 v{U+r}, v{G+r}, v{U+r}")
            for i, r in enumerate(rs): a(f"v_add_f32 v{T+i}, 1.0, v{T+i}")
            for i, r in enumerate(rs): a(f"v_rcp_f32 v{T+i}, v{T+i}")
            a("s_nop 0")
            for i, r in enumerate(rs): a(f"v_mul_f32 v{T+i}, v{U+r}, v{T+i}")
            O = 28 + 4*(2*j+hf)
            for i in range(4): a(f"v_cvt_pk_bf16_f32 v{O+i}, v{T+2*i}, v{T+2*i+1}")
            a(f"buffer_store_dwordx4 {vr(O,4)}, v2, s[8:11], s{53+j} offen offset:{1024*hf}{SC}")
    a(f"""
    {L}_epi3:
    """)
    if E("ES"): stamp(a, 6)
    a(f"""
    s_nop 7
    v_mov_b32 v144, {f32(QSCALE)}
    s_waitcnt lgkmcnt(0)
    """)
    for i in range(12): a(f"v_mul_f32 v{128+i}, v144, v{128+i}")
    for i in range(6): a(f"v_cvt_pk_bf16_f32 v{QA1+i}, v{128+2*i}, v{129+2*i}")
    a(f"""
    s_mul_i32 s52, s63, 1536
    s_add_u32 s52, s52, {QST}
    v_add_u32 v144, s52, v2
    v_lshl_add_u32 v145, v1, 3, s52
    s_cmp_ge_u32 s22, 4
    s_cbranch_scc1 {L}_gwave
    """)
    a(f"""
    s_setprio {E("APRIO", "1")}
    v_and_b32 v9, 31, v1
    v_lshrrev_b32 v10, 5, v1
    v_add_u32 v3, {KVR}, v2
    v_lshlrev_b32 v4, 4, v9
    v_lshl_add_u32 v4, v10, 3, v4
    v_add_u32 v4, {KVR+1024}, v4
    v_min_u32 v5, 23, v9
    v_mul_u32_u24 v11, 384, v10
    v_lshl_add_u32 v5, v5, 4, v11
    v_add_u32 v5, {KVR+1536}, v5
    v_lshlrev_b32 v146, 2, v1
    v_add_u32 v146, {QST+6144}, v146
    v_add_u32 v6, {CH}, v3
    v_add_u32 v7, {CH}, v4
    v_add_u32 v8, {CH}, v5
    s_mov_b32 s27, {2*CH}
    s_mov_b32 s30, 0
    v_cmp_gt_u32 s[28:29], 32, v1
    v_lshlrev_b32 v60, 3, v9
    v_lshl_add_u32 v60, v10, 8, v60
    s_lshl_b32 s33, s20, 3
    s_lshl_b32 s52, s22, 1
    s_add_u32 s33, s33, s52
    s_mul_i32 s33, s33, 40960
    s_mul_i32 s52, s21, 1280
    s_add_u32 s33, s33, s52
    s_add_u32 s33, s33, {WS_O}
    s_add_u32 s31, s33, 40960
    """)
    a.c("v60 = o store offset, s33/s31 = o image base of block a / b")
    for r in list(range(OA, OA+32)) + list(range(PB, PB+8)) + list(range(KVB[1]+8, KVB[1]+16)):
        a(f"v_mov_b32 v{r}, 0")
    def qnorm(q1, q2, t, extra=()):
        ex = list(extra) + [""] * 2
        a(f"""
        v_cndmask_b32 v{q2}, 0, v{q2}, s[28:29]
        v_cndmask_b32 v{q2+1}, 0, v{q2+1}, s[28:29]
        v_mov_b32 v{t}, 0
        {ex[0]}
        v_dot2_f32_bf16 v{t}, v{q1}, v{q1}, v{t}
        v_dot2_f32_bf16 v{t}, v{q1+1}, v{q1+1}, v{t}
        v_dot2_f32_bf16 v{t}, v{q1+2}, v{q1+2}, v{t}
        {ex[1]}
        v_dot2_f32_bf16 v{t}, v{q1+3}, v{q1+3}, v{t}
        v_dot2_f32_bf16 v{t}, v{q2}, v{q2}, v{t}
        v_dot2_f32_bf16 v{t}, v{q2+1}, v{q2+1}, v{t}
        """)
    qnorm(QA1, QA2, 147)
    if E("ES"): stamp(a, 3)
    a(f"""
    s_barrier
    ds_read_b32 v146, v146
    ds_read_b128 {vr(QB1,4)}, v144
    ds_read_b64 {vr(QB2,2)}, v145 offset:1024
    ds_read_b128 {vr(KVB[0],4)}, v6
    ds_read_b64 {vr(KVB[0]+4,2)}, v7
    ds_read_b128 {vr(KVB[1],4)}, v6 offset:3072
    ds_read_b64 {vr(KVB[1]+4,2)}, v7 offset:3072
    ds_read_b128 {vr(KVB[0]+8,4)}, v8
    ds_read_b128 {vr(KVB[0]+12,4)}, v8 offset:768
    """)
    stamp(a, 4)
    dm = lambda k: f"v_max_f32_dpp v146, v146, v146 {k} bank_mask:0xf"
    a(f"""
    v_mov_b32 v149, v147
    s_waitcnt lgkmcnt(6)
    v_and_b32 v146, 0xffff0000, v146
    v_permlane32_swap_b32 v147, v149
    s_nop 0
    {dm("row_shr:1 row_mask:0xf")}
    v_add_f32 v147, v147, v149
    s_nop 0
    {dm("row_shr:2 row_mask:0xf")}
    """)
    qnorm(QB1, QB2, 148, [dm("row_shr:4 row_mask:0xf"), dm("row_shr:8 row_mask:0xf")])
    a(f"""
    {dm("row_bcast:15 row_mask:0xa")}
    s_nop 1
    v_mov_b32 v150, v148
    {dm("row_bcast:31 row_mask:0xc")}
    s_nop 0
    v_permlane32_swap_b32 v148, v150
    v_readlane_b32 s26, v146, 63
    s_nop 0
    v_add_f32 v148, v148, v150
    v_mul_f32 v147, s26, v147
    v_mul_f32 v148, s26, v148
    v_sqrt_f32 v147, v147
    v_sqrt_f32 v148, v148
    v_mul_f32 v147, {f32(1.02)}, v147
    v_mul_f32 v148, {f32(1.02)}, v148
    """)
    def set_shift(ma, mb):
        for m, q2 in ((ma, QA2), (mb, QB2)):
            split3(a, m, q2+2, q2+3, 149, 150)
            a(f"v_cndmask_b32 v{q2}, v{q2+2}, v{q2}, s[28:29]")
            a(f"v_cndmask_b32 v{q2+1}, v{q2+3}, v{q2+1}, s[28:29]")
    set_shift(147, 148)
    a("s_waitcnt lgkmcnt(0)")
    for x in qk(SA, KVB[0], QA1, QA2): a(x)
    a("s_nop 11")
    a(".p2align 6")
    a(f"{L}_aloop:")
    for t in range(4):
        cur, nxt = KVB[t & 1], KVB[(t + 1) & 1]
        aslot(a, SA, PA, qk(SB, cur, QB1, QB2) + pv(OB, nxt, PB))
        pre = ["s_waitcnt lgkmcnt(0)" if t != 3 else "s_waitcnt vmcnt(0) lgkmcnt(0)"]
        if t == 0 and STAMP: pre.append("s_memtime s[38:39]")
        if t == 0: pre.append("s_barrier")
        if t == 0 and STAMP: pre.append("s_memtime s[36:37]")
        if t == 1 and STAMP: pre += ["s_mov_b32 m0, s30", "s_nop 0", "v_writelane_b32 v61, s36, m0", "v_writelane_b32 v62, s38, m0"]
        if t == 2:
            pre += ["v_add_u32 v6, s27, v3", "v_add_u32 v7, s27, v4"]
        if t == 3:
            pre += ["v_add_u32 v8, s27, v5",
                    f"s_add_u32 s27, s27, {CH}", f"s_cmp_ge_u32 s27, {3*CH}", "s_cselect_b32 s27, 0, s27"]
        ko = ((t + 2) & 3) * 3072
        vo = ((t + 1) & 3) * 3072
        rd = [f"ds_read_b128 {vr(cur,4)}, v6 offset:{ko}",
              f"ds_read_b64 {vr(cur+4,2)}, v7 offset:{ko}",
              f"ds_read_b128 {vr(nxt+8,4)}, v8 offset:{vo}",
              f"ds_read_b128 {vr(nxt+12,4)}, v8 offset:{vo+768}"]
        aslot(a, SB, PB, qk(SA, nxt, QA1, QA2) + pv(OA, cur, PA), pre, rd)
    a(f"""
    s_add_u32 s30, s30, 1
    s_cmp_lt_u32 s30, 16
    s_cbranch_scc1 {L}_aloop
    s_nop 1
    """)
    for x in pv(OB, KVB[1], PB): a(x)
    stamp(a, 5)
    a(f"""
    s_mov_b32 s34, 0
    {L}_aepi:
    s_mov_b32 s35, {f32(2.0**-90)}
    s_waitcnt lgkmcnt(0)
    s_nop 11
    v_mov_b32 v144, v{OA+8}
    v_mov_b32 v145, v{OA+8}
    v_mov_b32 v146, v{OB+8}
    v_mov_b32 v147, v{OB+8}
    s_nop 0
    v_permlane32_swap_b32 v144, v145
    v_permlane32_swap_b32 v146, v147
    s_nop 0
    v_cmp_nle_f32 vcc, s35, v145
    v_cmp_nle_f32 s[36:37], s35, v147
    v_rcp_f32 v145, v145
    v_rcp_f32 v147, v147
    s_or_b64 s[36:37], vcc, s[36:37]
    s_cmp_eq_u32 s34, 0
    s_cselect_b64 s[36:37], s[36:37], 0
    s_cmp_lg_u64 s[36:37], 0
    s_cbranch_scc1 {L}_slow
    """)
    for blk, O in enumerate((OA, OB)):
        R = 145 + 2*blk
        for q in range(3):
            for i in range(4): a(f"v_mul_f32 v{O+4*q+i}, v{R}, v{O+4*q+i}")
            D = 64 + 8*blk + 2*q
            a(f"v_cvt_pk_bf16_f32 v{D}, v{O+4*q}, v{O+4*q+1}")
            a(f"v_cvt_pk_bf16_f32 v{D+1}, v{O+4*q+2}, v{O+4*q+3}")
            if q == 2: a("s_mov_b32 exec_hi, 0")
            a(f"buffer_store_dwordx2 {vr(D,2)}, v60, s[8:11], s{33 if blk == 0 else 31} offen offset:{512*q} sc1")
            if q == 2: a("s_mov_b64 exec, -1")
    if STAMP:
        a(f"""
        s_lshl_b32 s36, s2, 2
        s_add_u32 s36, s36, s22
        s_lshl_b32 s36, s36, 9
        s_add_u32 s36, s36, {0x1900000}
        v_lshlrev_b32 v63, 2, v1
        buffer_store_dword v61, v63, s[8:11], s36 offen
        buffer_store_dword v62, v63, s[8:11], s36 offen offset:256
        """)
    a(f"""
    s_setprio 0
    s_lshl_b32 s36, s20, 5
    s_lshl_b32 s37, s22, 2
    s_add_u32 s36, s36, s37
    s_lshr_b32 s37, s21, 3
    s_add_u32 s36, s36, s37
    s_lshl_b32 s36, s36, 7
    s_add_u32 s36, s36, {WS_F+F3}
    v_mov_b32 v9, 1
    v_mov_b32 v5, 0
    s_waitcnt vmcnt(0)
    s_mov_b64 exec, 1
    buffer_atomic_add v9, v5, s[8:11], s36 offen sc1
    s_mov_b64 exec, -1
    """)
    if not E("ES"): stamp(a, 3)
    a(f"""
    s_branch {L}_p3
    """)
    kb = KVB[0]
    a(f"""
    {L}_slow:
    s_mov_b32 s34, 1
    v_cndmask_b32 v{QA2}, 0, v{QA2}, s[28:29]
    v_cndmask_b32 v{QA2+1}, 0, v{QA2+1}, s[28:29]
    v_cndmask_b32 v{QB2}, 0, v{QB2}, s[28:29]
    v_cndmask_b32 v{QB2+1}, 0, v{QB2+1}, s[28:29]
    v_mov_b32 v147, 0xff800000
    v_mov_b32 v148, 0xff800000
    s_mov_b32 s36, {WS_KV - KVR}
    {L}_slow1:
    buffer_load_dwordx4 {vr(kb,4)}, v3, s[8:11], s36 offen sc1
    buffer_load_dwordx2 {vr(kb+4,2)}, v4, s[8:11], s36 offen sc1
    s_add_u32 s36, s36, 3072
    s_waitcnt vmcnt(0)
    """)
    for x in qk(SA, kb, QA1, QA2) + qk(SB, kb, QB1, QB2): a(x)
    a("s_nop 15")
    for i in range(0, 16, 2):
        a(f"v_max3_f32 v147, v{SA+i}, v{SA+i+1}, v147")
        a(f"v_max3_f32 v148, v{SB+i}, v{SB+i+1}, v148")
    a(f"""
    s_cmp_lt_u32 s36, {WS_KV - KVR + 64*3072}
    s_cbranch_scc1 {L}_slow1
    v_mov_b32 v149, v147
    v_mov_b32 v150, v148
    s_nop 1
    v_permlane32_swap_b32 v147, v149
    v_permlane32_swap_b32 v148, v150
    s_nop 1
    v_max_f32 v147, v147, v149
    v_max_f32 v148, v148, v150
    """)
    set_shift(147, 148)
    for r in range(OA, OA+32): a(f"v_mov_b32 v{r}, 0")
    a(f"""
    s_mov_b32 s36, {WS_KV - KVR}
    {L}_slow2:
    buffer_load_dwordx4 {vr(kb,4)}, v3, s[8:11], s36 offen sc1
    buffer_load_dwordx2 {vr(kb+4,2)}, v4, s[8:11], s36 offen sc1
    buffer_load_dwordx4 {vr(kb+8,4)}, v5, s[8:11], s36 offen sc1
    buffer_load_dwordx4 {vr(kb+12,4)}, v5, s[8:11], s36 offen offset:768 sc1
    s_add_u32 s36, s36, 3072
    s_waitcnt vmcnt(0)
    """)
    for x in qk(SA, kb, QA1, QA2) + qk(SB, kb, QB1, QB2): a(x)
    a("s_nop 15")
    for g in exp_groups(SA, PA) + exp_groups(SB, PB):
        for x in g: a(x)
    a("s_nop 1")
    for x in pv(OA, kb, PA) + pv(OB, kb, PB): a(x)
    a(f"""
    s_cmp_lt_u32 s36, {WS_KV - KVR + 64*3072}
    s_cbranch_scc1 {L}_slow2
    s_nop 7
    s_branch {L}_aepi
    """)

    a(f"""
    {L}_gwave:
    ds_write_b128 v144, {vr(QA1,4)}
    ds_write_b64 v145, {vr(QA2,2)} offset:1024
    s_load_dwordx2 s[6:7], s[0:1], 64
    s_and_b32 s16, s22, 3
    s_cmp_ge_u32 s21, 15
    s_cselect_b32 s33, 1, 0
    s_cselect_b32 s34, 15, 0
    s_sub_u32 s34, s21, s34
    s_lshl_b32 s35, s20, 1
    s_add_u32 s33, s33, s35
    s_mul_i32 s35, s34, 13
    s_lshr_b32 s35, s35, 6
    s_mul_i32 s36, s35, 5
    s_sub_u32 s34, s34, s36
    s_waitcnt lgkmcnt(0)
    """)
    if E("ES"): stamp(a, 3)
    a(f"""
    s_barrier
    s_lshl_b32 s36, s33, 2
    s_add_u32 s36, s36, s16
    s_mul_i32 s36, s36, 108
    s_mul_i32 s37, s35, 36
    s_add_u32 s36, s36, s37
    s_lshl_b32 s36, s36, 10
    s_add_u32 s40, s36, {WS_H}
    s_mul_i32 s41, s35, {576*1280}
    s_mul_i32 s36, s16, {16*1280}
    s_add_u32 s41, s41, s36
    s_lshl_b32 s36, s34, 8
    s_add_u32 s41, s41, s36
    v_lshrrev_b32 v3, 4, v1
    v_lshlrev_b32 v4, 2, v3
    v_and_b32 v5, 15, v1
    v_xor_b32 v4, v4, v5
    s_movk_i32 s36, 1280
    v_mul_u32_u24 v3, s36, v3
    v_lshl_add_u32 v3, v4, 4, v3
    v_add_u32 v4, {5120-1024}, v3
    v_add_u32 v5, {2*(5120-1024)}, v3
    v_add_u32 v13, {3*(5120-1024)}, v3
    s_lshl_b32 s42, s16, 12
    s_add_u32 s43, s42, 16384
    s_mov_b32 s45, 0
    s_mov_b32 s30, 0
    s_mov_b32 s46, 0
    s_cmp_lt_u32 s21, 30
    s_cselect_b32 s47, 9, 0
    s_cselect_b32 s50, {WS_SIZE}, 0
    s_cselect_b32 s54, 2211840, 0
    s_mov_b32 s48, s18
    s_and_b32 s49, s19, 0xffff
    s_mov_b32 s51, 0x20000
    s_mov_b32 s55, 0x20000
    s_mov_b32 m0, s43
    s_mov_b32 s52, s6
    s_and_b32 s53, s7, 0xffff
    """)
    a.c("s33 = row group (128 rows), s34 = col group (128 cols), s35 = k split, s47 = stages of this WG")
    def gw():
        a(f"""
        buffer_load_dwordx4 v3, s[52:55], s41 offen lds
        buffer_load_dwordx4 v4, s[52:55], s41 offen offset:1024 lds
        buffer_load_dwordx4 v5, s[52:55], s41 offen offset:2048 lds
        buffer_load_dwordx4 v13, s[52:55], s41 offen offset:3072 lds
        s_add_u32 s41, s41, {64*1280}
        """)
    def gh():
        a(f"""
        buffer_load_dwordx4 v2, s[48:51], s40 offen{SCL} lds
        buffer_load_dwordx4 v2, s[48:51], s40 offen offset:1024{SCL} lds
        buffer_load_dwordx4 v2, s[48:51], s40 offen offset:2048{SCL} lds
        buffer_load_dwordx4 v2, s[48:51], s40 offen offset:3072{SCL} lds
        s_add_u32 s40, s40, 4096
        """)
    gw()
    a(f"""
    s_and_b32 s36, s16, 1
    s_lshr_b32 s37, s16, 1
    s_lshl_b32 s38, s36, 13
    v_add_u32 v6, s38, v2
    v_lshrrev_b32 v8, 5, v1
    v_bfe_u32 v9, v1, 2, 2
    v_lshl_add_u32 v8, v8, 2, v9
    v_lshlrev_b32 v8, 8, v8
    s_lshl_b32 s38, s37, 1
    v_xor_b32 v9, s38, v9
    v_lshl_add_u32 v8, v9, 6, v8
    v_bfe_u32 v9, v1, 4, 1
    v_lshl_add_u32 v8, v9, 5, v8
    v_and_b32 v9, 3, v1
    v_lshl_add_u32 v8, v9, 3, v8
    v_add_u32 v7, 16384, v8
    v_xor_b32 v8, 64, v7
    """)
    for r in range(64, 128): a(f"v_mov_b32 v{r}, 0")
    a(f"""
    s_mov_b32 m0, s42
    s_barrier
    s_waitcnt vmcnt(0)
    s_barrier
    s_barrier
    s_barrier
    """)
    gh()
    a(f"""
    s_mov_b32 s44, {GSL}
    s_branch {L}_gin
    {L}_gloop:
    s_barrier
    {L}_gin:
    s_add_u32 s46, s46, 1
    s_cmp_ge_u32 s46, s47
    s_cbranch_scc1 {L}_gnod
    s_add_u32 m0, s44, s42
    s_nop 0
    """)
    gh()
    a("s_add_u32 m0, s44, s43")
    a(f"s_add_u32 s44, s44, {GSL}")
    gw()
    a(f"""
    s_cmp_ge_u32 s44, {3*GSL}
    s_cselect_b32 s44, 0, s44
    {L}_gnod:
    s_sub_u32 s36, s30, 1
    s_cmp_ge_u32 s36, s47
    s_cbranch_scc1 {L}_gskip
    v_add_u32 v10, s45, v6
    v_add_u32 v11, s45, v7
    v_add_u32 v12, s45, v8
    s_add_u32 s45, s45, {GSL}
    s_cmp_ge_u32 s45, {3*GSL}
    s_cselect_b32 s45, 0, s45
    """)
    FB = [16, 32]
    def rl(ks):
        b = FB[ks & 1]
        return [f"ds_read_b128 {vr(b,4)}, v10 offset:{ks*1024}",
                f"ds_read_b64_tr_b16 {vr(b+8,2)}, v11 offset:{ks*4096}",
                f"ds_read_b64_tr_b16 {vr(b+10,2)}, v11 offset:{ks*4096+2048}",
                f"ds_read_b64_tr_b16 {vr(b+12,2)}, v12 offset:{ks*4096}",
                f"ds_read_b64_tr_b16 {vr(b+14,2)}, v12 offset:{ks*4096+2048}",
                f"ds_read_b128 {vr(b+4,4)}, v10 offset:{ks*1024+4096}"]
    def ml(ks):
        b = FB[ks & 1]
        x0, x1, w0, w1 = vr(b,4), vr(b+4,4), vr(b+8,4), vr(b+12,4)
        return [f"{M} v[64:79], {w0}, {x0}, v[64:79]", f"{M} v[80:95], {w1}, {x0}, v[80:95]",
                f"{M} v[96:111], {w0}, {x1}, v[96:111]", f"{M} v[112:127], {w1}, {x1}, v[112:127]"]
    for x in rl(0): a(x)
    for ks in range(4):
        a("s_waitcnt lgkmcnt(0)")
        r = rl(ks + 1) if ks < 3 else []
        for i, m in enumerate(ml(ks)):
            a(m)
            for x in r[2*i:2*i+2]: a(x)
    a(f"""
    s_cmp_lg_u32 s30, s47
    s_cbranch_scc1 {L}_gskip
    s_lshl_b32 s36, s35, 6
    s_lshl_b32 s37, s33, 2
    s_add_u32 s36, s36, s37
    s_and_b32 s37, s16, 1
    s_lshl_b32 s37, s37, 1
    s_add_u32 s36, s36, s37
    s_mul_i32 s36, s36, 40
    s_lshl_b32 s37, s34, 3
    s_add_u32 s36, s36, s37
    s_lshr_b32 s37, s16, 1
    s_lshl_b32 s37, s37, 2
    s_add_u32 s36, s36, s37
    s_lshl_b32 s36, s36, 10
    s_add_u32 s36, s36, {WS_B}
    s_add_u32 s37, s36, 40960
    s_nop 7
    """)
    for u in range(4):
        A = 64 + 16*u
        for qp in range(2):
            O = 16 + 4*((2*u+qp) % 8)
            for i in range(4):
                a(f"v_cvt_pk_bf16_f32 v{O+i}, v{A+8*qp+2*i}, v{A+8*qp+2*i+1}")
            a(f"buffer_store_dwordx4 {vr(O,4)}, v2, s[8:11], s{36 + (u>>1)} offen offset:{(u&1)*2048 + qp*1024} sc1")
    a(f"""
    s_branch {L}_gend
    {L}_gskip:
    s_add_u32 s30, s30, 1
    s_cmp_ge_u32 s30, 10
    s_cbranch_scc1 {L}_gend
    s_cmp_lt_u32 s46, s47
    s_cbranch_scc1 {L}_gw8
    s_waitcnt vmcnt(0)
    {L}_gw8:
    s_waitcnt vmcnt(8)
    s_branch {L}_gloop
    {L}_gend:
    s_barrier
    s_waitcnt vmcnt(0)
    s_barrier
    s_barrier
    """)

    a(f"""
    {L}_p3:
    s_load_dwordx2 s[4:5], s[0:1], 80
    s_lshl_b32 s17, s20, 3
    s_lshr_b32 s16, s21, 3
    s_lshl_b32 s16, s16, 1
    s_add_u32 s17, s17, s16
    s_and_b32 s16, s21, 7
    s_and_b32 s36, s22, 1
    s_lshr_b32 s39, s22, 1
    s_add_u32 s36, s17, s36
    s_mul_i32 s36, s36, 40
    s_mul_i32 s37, s39, 10
    s_add_u32 s36, s36, s37
    s_lshl_b32 s36, s36, 10
    s_add_u32 s36, s36, {WS_O}
    s_add_u32 s37, s36, 4096
    s_add_u32 s38, s36, 8192
    v_lshrrev_b32 v8, 5, v1
    v_bfe_u32 v9, v1, 2, 2
    v_lshl_add_u32 v8, v8, 2, v9
    v_mul_u32_u24 v8, 192, v8
    v_bfe_u32 v9, v1, 4, 1
    v_lshl_add_u32 v8, v9, 5, v8
    v_and_b32 v9, 3, v1
    v_lshl_add_u32 v8, v9, 3, v8
    s_lshl_b32 s48, s39, 2
    s_mul_i32 s49, s39, 30720
    v_add_u32 v8, s49, v8
    v_lshlrev_b32 v7, 3, v1
    v_and_b32 v6, 31, v1
    s_lshl_b32 s39, s17, 5
    v_add_u32 v6, s39, v6
    v_lshrrev_b32 v4, 3, v6
    v_lshlrev_b32 v4, 7, v4
    v_and_b32 v9, 7, v1
    v_lshl_add_u32 v4, v9, 2, v4
    s_mov_b32 s40, {WS_G}
    s_mul_i32 s41, s16, 10
    s_add_u32 s41, s41, s22
    s_lshr_b32 s42, s41, 1
    s_lshl_b32 s42, s42, 10
    s_and_b32 s43, s41, 1
    s_lshl_b32 s43, s43, 3
    s_add_u32 s42, s42, s43
    s_mul_i32 s43, s17, 40960
    s_add_u32 s42, s42, s43
    s_add_u32 s42, s42, {WS_B}
    v_mov_b32 v22, {NONCE}
    s_lshr_b32 s46, s22, 1
    s_lshl_b32 s45, 1, s46
    """)
    a.c("s17 = first row block of the tile, s16 = column group; final items: quad = wave, both row blocks")
    def bg():
        a("buffer_load_dword v140, v4, s[8:11], s40 offen sc1")
        a("buffer_load_dword v141, v4, s[8:11], s40 offen offset:512 sc1")
        for j in range(2):
            for sk in range(3):
                a(f"s_add_u32 s43, s42, {j*40960 + sk*64*40960}")
                a(f"buffer_load_dwordx2 {vr(128+6*j+2*sk,2)}, v2, s[8:11], s43 offen sc1")
    a(f"""
    s_movk_i32 s43, 1280
    v_mul_lo_u32 v6, v6, s43
    v_lshrrev_b32 v9, 5, v1
    v_lshl_add_u32 v6, v9, 3, v6
    s_lshl_b32 s41, s41, 4
    s_add_u32 s44, s41, 40960
    s_waitcnt lgkmcnt(0)
    """)
    srd(a, 12, 4, 5, 2621440)
    for r in range(64, 112): a(f"v_mov_b32 v{r}, 0")
    WF = [112, 144]
    def wr(ks):
        b = WF[ks & 1]
        return [f"ds_read_b64_tr_b16 {vr(b+4*cb+2*t,2)}, v8 offset:{ks*3072 + t*1536 + 64*cb}" for cb in range(3) for t in range(2)]
    a(f"""
    s_mov_b32 s70, {SPIN}
    s_cmp_lg_u32 s22, 8
    s_cbranch_scc1 {L}_p3w
    s_mov_b64 exec, 0xf
    {L}_p3poll:
    buffer_load_dword v24, v3, s[8:11], s35 offen sc1
    s_sub_u32 s70, s70, 1
    s_cselect_b32 s47, -1, 0
    s_waitcnt vmcnt(0)
    v_cmp_eq_u32 vcc, 8, v24
    s_or_b32 s47, s47, vcc_lo
    s_or_b32 s47, s47, 0xfffffff0
    v_mov_b32 v23, s47
    ds_write_b32 v22, v23 offset:8
    s_sleep {E("PSLEEP", "2")}
    s_cmp_lg_u32 s47, -1
    s_cbranch_scc1 {L}_p3poll
    """)
    stamp(a, 6)
    a(f"""
    s_mov_b64 exec, -1
    {L}_p3w:
    ds_read_b64 v[10:11], v22 offset:8
    s_waitcnt lgkmcnt(0)
    v_readfirstlane_b32 s47, v10
    v_readfirstlane_b32 s46, v11
    s_or_b32 s47, s47, 0x10
    s_and_b32 s47, s47, s45
    s_xor_b32 s47, s47, s45
    s_xor_b32 s46, s46, 2
    s_or_b32 s47, s47, s46
    s_cmp_eq_u32 s47, 0
    s_cbranch_scc1 {L}_p3go
    s_sleep 1
    s_branch {L}_p3w
    {L}_p3go:
    s_cmp_lt_u32 s22, 8
    s_cbranch_scc1 {L}_p3m
    """)
    bg()
    a(f"""
    s_branch {L}_p3r
    {L}_p3m:
    """)
    if not E("ES"): stamp(a, 6)
    OF = 24
    for ks in range(10):
        for sl in range(2):
            a(f"buffer_load_dwordx2 {vr(OF+4*ks+2*sl,2)}, v7, s[8:11], s{36+ks//4} offen offset:{(ks%4)*1024+512*sl}{E('OSC', ' sc1')}")
    for x in wr(0): a(x)
    bg()
    for ks in range(10):
        a(f"s_waitcnt vmcnt({26-2*ks}) lgkmcnt(0)")
        r = wr(ks+1) if ks < 9 else []
        b = WF[ks & 1]
        for cb in range(3):
            a(f"{M} {vr(64+16*cb,16)}, {vr(b+4*cb,4)}, {vr(OF+4*ks,4)}, {vr(64+16*cb,16)}")
            for x in r[2*cb:2*cb+2]: a(x)
    a(f"""
    v_add_u32 v23, s48, v22
    v_mov_b32 v9, 1
    s_mov_b64 exec, 1
    ds_add_u32 v23, v9 offset:16
    s_mov_b64 exec, -1
    s_and_b32 s47, s22, 1
    s_mul_i32 s47, s47, 10240
    s_add_u32 s39, s49, s47
    v_add_u32 v5, s39, v2
    {L}_p3pw:
    ds_read_b32 v9, v23 offset:16
    s_waitcnt lgkmcnt(0)
    v_readfirstlane_b32 s47, v9
    s_cmp_lg_u32 s47, 2
    s_cbranch_scc1 {L}_p3pw
    """)
    for q in range(10):
        a(f"ds_write_b128 v5, {vr(64+4*q,4)} offset:{1024*q}")
    a(f"""
    s_waitcnt lgkmcnt(0)
    {L}_p3r:
    """)
    if STAMP:
        a(f"s_cmp_lt_u32 s22, 4\ns_cbranch_scc1 {L}_st4")
        stamp(a, 4)
        a(f"{L}_st4:")
    a(f"""
    s_lshl_b32 s39, s22, 10
    v_add_u32 v5, s39, v2
    v_add_u32 v7, 61440, v5
    s_barrier
    """)
    for j in range(2):
        for kq in range(4):
            a(f"ds_read_b128 {vr(16+16*j+4*kq,4)}, v{5 if kq < 2 else 7} offset:{j*10240 + (kq%2)*30720}")
    a("s_waitcnt vmcnt(0)")
    for j in range(2):
        a(f"""
        v_sub_f32 v{142+j}, 1.0, v{140+j}
        v_cvt_pk_bf16_f32 v{142+j}, v{142+j}, v{142+j}
        v_lshlrev_b32 v{142+j}, 16, v{142+j}
        """)
        B = 128 + 6*j
        for i in range(4):
            ex = (lambda d, r: f"v_lshlrev_b32 v{d}, 16, v{r}") if i % 2 == 0 else (lambda d, r: f"v_and_b32 v{d}, 0xffff0000, v{r}")
            a(f"""
            {ex(56+4*j+i, B + i//2)}
            {ex(55, B + 2 + i//2)}
            v_add_f32 v{56+4*j+i}, v{56+4*j+i}, v55
            {ex(55, B + 4 + i//2)}
            v_add_f32 v{56+4*j+i}, v{56+4*j+i}, v55
            """)
    a("s_waitcnt lgkmcnt(0)")
    for j in range(2):
        P = 16 + 16*j
        for i in range(4):
            a(f"""
            v_add_f32 v{P+i}, v{P+i}, v{P+4+i}
            v_add_f32 v{P+8+i}, v{P+8+i}, v{P+12+i}
            v_add_f32 v{P+i}, v{P+i}, v{P+8+i}
            v_mul_f32 v{P+i}, v{140+j}, v{P+i}
            v_fmac_f32 v{P+i}, v{142+j}, v{56+4*j+i}
            """)
        a(f"""
        v_cvt_pk_bf16_f32 v{P}, v{P}, v{P+1}
        v_cvt_pk_bf16_f32 v{P+1}, v{P+2}, v{P+3}
        buffer_store_dwordx2 {vr(P,2)}, v6, s[12:15], s{41 if j == 0 else 44} offen
        """)
    stamp_out(a, 7, 0)
    a(f"{L}_end:")
    a("s_endpgm")
    kernel_desc(a, name, 160, 100)
```

```python
from common import *
import math
from k2 import (M, QA1, QA2, QB1, QB2, KVB, SA, SB, OA, OB, PA, PB, split3, exp_groups, pv, CH)
def qk(Sd, kb, q1, q2):
    return [f"{M} {vr(Sd,16)}, {vr(kb,4)}, {vr(q1,4)}, 0",
            f"v_mfma_f32_32x32x8_bf16 {vr(Sd,16)}, {vr(kb+4,2)}, {vr(q2,2)}, {vr(Sd,16)}"]
LOG2E = 1.4426950408889634
QSCALE = LOG2E / math.sqrt(20.0)
E = os.environ.get
XSL = 32768
WB = 3 * XSL
WSL = 10240
QST = WB
KVR = 163840 - 3 * CH
GSL = 32768
NONCE = 122880
BREG = True
F_LDS = 163840
F_BLOCK = 640
SPIN = int(E("SPIN", 1 << 16))
SC = " sc1"
SCL = E('SCL', ' sc1')

_pc = [0]
def poll(a, L, voff, soff):
    _pc[0] += 1
    T = f"{L}_poll{_pc[0]}"
    a(f"""
    s_mov_b32 s70, {SPIN}
    {T}:
    buffer_load_dwordx2 v[24:25], {voff}, s[8:11], {soff} offen sc1
    s_sub_u32 s70, s70, 1
    s_cbranch_scc1 {T}_ok
    s_waitcnt vmcnt(0)
    v_cmp_ne_u64 vcc, v[24:25], v[20:21]
    s_cmp_eq_u64 vcc, 0
    s_cbranch_scc1 {T}_ok
    s_sleep {E("PSLEEP", "2")}
    s_branch {T}
    {T}_ok:
    """)

def flag(a, soff):
    a(f"""
    s_mov_b64 exec, 1
    buffer_store_dwordx2 v[20:21], v5, s[8:11], {soff} offen sc1
    s_mov_b64 exec, -1
    """)

def aslot(a, S, P, mf, pre=(), rd=None):
    g = exp_groups(S, P)
    flat = [x for gg in g for x in gg]
    pos = [int(x) for x in E("MPOS", "0,5,11,17").split(",")]
    for p in pre: a(p)
    k = 0
    for i, x in enumerate(flat):
        while k < 4 and pos[k] == i:
            a(mf[k])
            if rd: a(rd[k])
            k += 1
        a(x)

def gen(a, name):
    kernel_head(a, name)
    L = name
    a(f"""
    s_cmp_ge_u32 s2, 256
    s_cbranch_scc1 {L}_end
    s_load_dwordx8 s[4:11], s[0:1], 0
    s_load_dwordx4 s[12:15], s[0:1], 48
    s_load_dwordx2 s[18:19], s[0:1], 96
    """)
    stamp(a, 0)
    a(f"""
    v_lshrrev_b32 v2, 6, v0
    v_and_b32 v1, 63, v0
    v_readfirstlane_b32 s22, v2
    s_and_b32 s47, s2, 7
    s_lshr_b32 s51, s2, 3
    s_and_b32 s20, s47, 1
    s_lshl_b32 s20, s20, 2
    s_and_b32 s67, s51, 3
    s_add_u32 s20, s20, s67
    s_lshr_b32 s21, s47, 1
    s_lshr_b32 s68, s51, 2
    s_lshl_b32 s52, s68, 2
    s_add_u32 s21, s21, s52
    s_cmp_lt_u32 s22, 8
    s_cbranch_scc1 {L}_comp
    """)
    a.c("s20 = row group (256 rows), s21 = cg = head = column group, s22 = wave; kept for the whole kernel, as is s[18:19]")
    a(f"""
    s_and_b32 s63, s22, 1
    v_lshrrev_b32 v10, 3, v1
    v_lshrrev_b32 v11, 4, v1
    v_and_b32 v12, 7, v1
    v_xor_b32 v12, v12, v11
    v_xor_b32 v11, 4, v12
    s_movk_i32 s54, 1280
    v_mul_u32_u24 v10, s54, v10
    v_lshl_add_u32 v15, v11, 4, v10
    v_lshl_add_u32 v10, v12, 4, v10
    s_mul_i32 s53, s20, {256*1280}
    s_mul_i32 s55, s63, {64*1280}
    s_add_u32 s53, s53, s55
    """)
    for i in range(8):
        a(f"s_add_u32 s55, s53, {i*10240 - 1024*(i&3) + 4096}")
        a(f"v_add_u32 v{2+i}, s55, v{15 if i & 1 else 10}")
    a(f"""
    s_add_u32 s52, s67, s68
    s_and_b32 s52, s52, 3
    s_mul_i32 s52, s52, 5
    s_lshr_b32 s52, s52, 1
    s_lshl_b32 s41, s52, 7
    s_lshl_b32 s48, s63, 13
    s_mov_b32 m0, s48
    s_waitcnt lgkmcnt(0)
    s_sub_u32 s24, s4, 4096
    s_subb_u32 s25, s5, 0
    s_and_b32 s25, s25, 0xffff
    s_mov_b32 s26, {2621440+4096}
    s_mov_b32 s27, 0x20000
    """)
    a.c("x voffsets carry +4096 so that they stay non negative; the SRD base carries -4096")
    def xdma(so):
        a(f"""
        buffer_load_dwordx4 v2, s[24:27], {so} offen lds
        buffer_load_dwordx4 v3, s[24:27], {so} offen offset:1024 lds
        buffer_load_dwordx4 v4, s[24:27], {so} offen offset:2048 lds
        buffer_load_dwordx4 v5, s[24:27], {so} offen offset:3072 lds
        s_add_u32 m0, m0, 4096
        s_nop 0
        buffer_load_dwordx4 v6, s[24:27], {so} offen lds
        buffer_load_dwordx4 v7, s[24:27], {so} offen offset:1024 lds
        buffer_load_dwordx4 v8, s[24:27], {so} offen offset:2048 lds
        buffer_load_dwordx4 v9, s[24:27], {so} offen offset:3072 lds
        """)
    xdma("s41")
    a(f"""
    v_lshrrev_b32 v13, 3, v1
    s_movk_i32 s62, 3456
    v_mul_u32_u24 v13, s62, v13
    v_and_b32 v14, 7, v1
    v_bfe_u32 v15, v1, 4, 1
    v_lshlrev_b32 v15, 2, v15
    v_xor_b32 v14, v14, v15
    v_lshl_add_u32 v13, v14, 4, v13
    s_lshl_b32 s53, s21, 7
    v_add_u32 v10, s53, v13
    v_add_u32 v11, {8*3456-1024}, v10
    v_add_u32 v12, {2*(8*3456-1024)}, v10
    v_add_u32 v13, {3*(8*3456-1024)}, v10
    v_lshrrev_b32 v14, 2, v1
    v_mul_u32_u24 v14, s54, v14
    v_and_b32 v15, 3, v1
    v_lshl_add_u32 v14, v15, 4, v14
    s_mul_i32 s53, s21, 40
    s_mul_i32 s55, s63, {16*1280}
    s_add_u32 s53, s53, s55
    v_add_u32 v14, s53, v14
    v_lshlrev_b32 v15, 4, v1
    s_cmp_eq_u32 s63, 1
    s_cselect_b32 s28, s14, s12
    s_cselect_b32 s29, s15, s13
    s_and_b32 s29, s29, 0xffff
    s_mov_b32 s30, 2211840
    s_mov_b32 s31, 0x20000
    s_mov_b32 s32, s6
    s_and_b32 s33, s7, 0xffff
    s_mov_b32 s34, 819200
    s_mov_b32 s35, 0x20000
    s_cmp_eq_u32 s21, 27
    s_cselect_b32 s36, s8, s10
    s_cselect_b32 s37, s9, s11
    s_and_b32 s37, s37, 0xffff
    s_sub_u32 s53, s21, 27
    s_cmp_lt_u32 s53, 2
    s_cselect_b32 s38, 25600, 0
    s_mov_b32 s39, 0x20000
    s_lshl_b32 s52, s52, 1
    s_mul_i32 s42, s52, {32*3456}
    s_mul_i32 s43, s52, {32*1280}
    s_mul_i32 s40, s52, 1280
    s_lshl_b32 s51, s63, 10
    s_add_u32 s40, s40, s51
    s_lshl_b32 s49, s63, 12
    s_add_u32 s49, s49, {WB}
    s_add_u32 s50, s51, {WB+8192}
    s_add_u32 s56, s51, {WB}
    s_add_u32 s45, s48, 16384
    s_add_u32 s54, s41, 163840
    s_mov_b32 s44, 0
    s_mov_b32 s46, 0
    s_mov_b32 s58, 2
    {"s_mov_b32 s26, 0" if "x" in E("NULLD", "") else ""}
    {"s_mov_b32 s30, 0" if "w" in E("NULLD", "") else ""}
    {"s_mov_b32 s34, 0" if "q" in E("NULLD", "") else ""}
    s_cmp_ge_u32 s21, 27
    s_cbranch_scc1 {L}_ldl_issue
    """)
    a.c("s45/s54 next x half (lds, soffset), s41 k byte offset of the pair, s42 W, s43 wq, s40 wk/wv soffsets, s44 W slot")
    for tag, D in (("ldf", 13), ("ldl", 10)):
        a(f"""
        {L}_{tag}_issue:
        s_mov_b32 m0, s45
        s_add_u32 s46, s46, 1
        """)
        xdma("s54")
        if tag == "ldf":
            a(f"""
            s_add_u32 m0, s44, s49
            s_add_u32 s45, s45, 16384
            buffer_load_dwordx4 v10, s[28:31], s42 offen lds
            buffer_load_dwordx4 v11, s[28:31], s42 offen offset:1024 lds
            buffer_load_dwordx4 v12, s[28:31], s42 offen offset:2048 lds
            buffer_load_dwordx4 v13, s[28:31], s42 offen offset:3072 lds
            """)
        else:
            a(f"""
            s_add_u32 m0, s44, s56
            s_add_u32 s45, s45, 16384
            buffer_load_dwordx4 v15, s[36:39], s40 offen lds
            """)
        a(f"""
        s_add_u32 m0, s44, s50
        s_add_u32 s42, s42, {32*3456}
        buffer_load_dwordx4 v14, s[32:35], s43 offen lds
        s_add_u32 s43, s43, {32*1280}
        s_add_u32 s40, s40, 1280
        s_cmp_eq_u32 s43, 819200
        s_cselect_b32 s42, 0, s42
        s_cselect_b32 s43, 0, s43
        s_cselect_b32 s40, s51, s40
        s_add_u32 s44, s44, {WSL}
        s_cmp_ge_u32 s44, {4*WSL}
        s_cselect_b32 s44, 0, s44
        s_cmp_ge_u32 s45, {WB}
        s_cselect_b32 s45, s48, s45
        s_add_u32 s52, s41, 128
        s_cmp_eq_u32 s52, 1280
        s_cselect_b32 s52, 0, s52
        s_add_u32 s53, s41, 163840
        s_bitcmp1_b32 s46, 0
        s_cselect_b32 s41, s52, s41
        s_cselect_b32 s54, s52, s53
        s_cmp_eq_u32 s46, 19
        s_cselect_b32 s26, 0, s26
        s_cmp_lt_u32 s46, s58
        s_cbranch_scc1 {L}_{tag}_issue
        s_waitcnt vmcnt({D})
        s_barrier
        s_add_u32 s58, s58, 1
        s_cmp_le_u32 s58, 20
        s_cbranch_scc1 {L}_{tag}_issue
        """)
        if tag == "ldf": a(f"s_branch {L}_ld_tail")
    a(f"""
    {L}_ld_tail:
    s_load_dwordx2 s[4:5], s[0:1], 32
    s_load_dwordx2 s[6:7], s[0:1], 88
    v_mov_b32 v5, 0
    s_waitcnt vmcnt(0) lgkmcnt(0)
    s_barrier
    global_load_dwordx2 v[20:21], v5, s[6:7] sc0 sc1
    s_barrier
    """)
    srd(a, 8, 18, 19, WS_SIZE)
    srd(a, 12, 18, 19, WS_KV + 64*3072)
    a(f"""
    v_lshlrev_b32 v2, 4, v1
    v_lshlrev_b32 v3, 7, v1
    s_mov_b32 s70, {SPIN}
    s_branch {L}_l_non2
    {L}_l_non:
    global_load_dwordx2 v[20:21], v5, s[6:7] sc0 sc1
    {L}_l_non2:
    s_sub_u32 s70, s70, 1
    s_cbranch_scc1 {L}_l_non3
    s_waitcnt vmcnt(0)
    v_cmp_ne_u32 vcc, 0, v20
    s_cmp_eq_u64 vcc, 0
    s_cbranch_scc1 {L}_l_non
    {L}_l_non3:
    s_lshl_b32 s33, s20, 5
    s_add_u32 s33, s33, s21
    s_lshl_b32 s34, s33, 7
    s_add_u32 s34, s34, {WS_F}
    s_lshl_b32 s35, s20, 12
    s_add_u32 s35, s35, {WS_F}
    s_sub_u32 s53, s21, 27
    s_cmp_ge_u32 s53, 2
    s_cbranch_scc1 {L}_l_nokv
    s_barrier
    s_cmp_lg_u32 s63, 0
    s_cbranch_scc1 {L}_l_nokv
    s_lshl_b32 s52, s20, 1
    s_add_u32 s52, s52, s53
    s_lshl_b32 s52, s52, 7
    s_add_u32 s52, s52, {WS_F+FQ}
    """)
    flag(a, "s52")
    a(f"""
    {L}_l_nokv:
    s_cmp_lt_u32 s21, 27
    s_cbranch_scc1 {L}_l_now
    s_cmp_eq_u32 s63, 0
    s_cbranch_scc1 {L}_l_now
    s_load_dwordx2 s[16:17], s[0:1], 64
    s_mul_i32 s52, s20, 5
    s_add_u32 s52, s52, s53
    s_mul_i32 s52, s52, {7*8192}
    s_waitcnt lgkmcnt(0)
    s_mov_b32 s56, s16
    s_and_b32 s57, s17, 0xffff
    s_mov_b32 s58, 2211840
    s_mov_b32 s59, 0x20000
    s_mov_b32 s54, 7
    {L}_l_warm:
    buffer_load_dword v31, v3, s[56:59], s52 offen
    s_add_u32 s52, s52, 8192
    s_sub_u32 s54, s54, 1
    s_cmp_lg_u32 s54, 0
    s_cbranch_scc1 {L}_l_warm
    {L}_l_now:
    s_mul_i32 s24, s63, 6144
    s_add_u32 s30, s24, {WS_KV}
    s_add_u32 s31, s30, 4096
    s_add_u32 s24, s24, {KVR}
    s_mov_b32 s25, {CH}
    s_mov_b32 s52, {WS_F+FQ}
    s_mov_b64 exec, 0xffff
    """)
    a.c("s34 = own flag line, s35 = flag lines of this row group; s30/s31 kv source, s24 + s25 kv destination")
    stamp(a, 1)
    poll(a, L, "v3", "s52")
    a("s_mov_b64 exec, -1")
    stamp(a, 2)
    def kv():
        a(f"""
        s_add_u32 m0, s25, s24
        s_add_u32 s25, s25, {CH}
        buffer_load_dwordx4 v2, s[12:15], s30 offen{SCL} lds
        buffer_load_dwordx4 v2, s[12:15], s30 offen offset:1024{SCL} lds
        buffer_load_dwordx4 v2, s[12:15], s30 offen offset:2048{SCL} lds
        buffer_load_dwordx4 v2, s[12:15], s30 offen offset:3072{SCL} lds
        s_add_u32 m0, m0, 4096
        s_add_u32 s30, s30, {CH}
        buffer_load_dwordx4 v2, s[12:15], s31 offen{SCL} lds
        buffer_load_dwordx4 v2, s[12:15], s31 offen offset:1024{SCL} lds
        s_add_u32 s31, s31, {CH}
        s_cmp_ge_u32 s25, {3*CH}
        s_cselect_b32 s25, 0, s25
        """)
    a(f"""
    s_mov_b32 m0, {QST+6144}
    s_mov_b32 s52, {WS_KV+1024+63*8+4}
    v_mul_u32_u24 v6, 3072, v1
    buffer_load_dword v6, s[8:11], s52 offen{SCL} lds
    """)
    kv(); kv()
    a(f"""
    s_lshr_b32 s38, s21, 2
    s_mul_i32 s38, s38, 160
    s_movk_i32 s39, 5462
    s_movk_i32 s40, 1280
    """)
    for i in range(3):
        a(f"""
        v_add_u32 v6, {64*i}, v1
        v_mul_u32_u24 v7, s39, v6
        v_lshrrev_b32 v7, 16, v7
        v_mul_u32_u24 v8, 12, v7
        v_sub_u32 v8, v6, v8
        v_mul_u32_u24 v7, s40, v7
        v_lshl_add_u32 v7, v8, 4, v7
        v_add_u32 v7, s38, v7
        v_subrev_u32 v{10+i}, {1024*i}, v7
        """)
    srd(a, 40, 4, 5, 819200)
    a(f"""
    s_mul_i32 s44, s63, {4*20480}
    s_mul_i32 s45, s63, {4*3072}
    s_add_u32 s44, s44, {32*20480}
    s_add_u32 s45, s45, {32*3072}
    s_waitcnt vmcnt(6)
    """)
    stamp(a, 3)
    a("s_barrier")
    def wo(n, tag):
        a(f"""
        s_mov_b32 s47, {n}
        {L}_wo{tag}:
        s_mov_b32 m0, s45
        s_add_u32 s45, s45, 3072
        buffer_load_dwordx4 v10, s[40:43], s44 offen lds
        buffer_load_dwordx4 v11, s[40:43], s44 offen offset:1024 lds
        buffer_load_dwordx4 v12, s[40:43], s44 offen offset:2048 lds
        s_add_u32 s44, s44, 20480
        s_sub_u32 s47, s47, 1
        s_cmp_lg_u32 s47, 0
        s_cbranch_scc1 {L}_wo{tag}
        """)
    def bar_kv():
        a("s_waitcnt vmcnt(0)")
        a("s_barrier")
        kv()
    bar_kv()
    a(f"""
    s_cmp_eq_u32 s63, 1
    s_cbranch_scc1 {L}_gate
    s_lshl_b32 s52, s2, 6
    v_add_u32 v6, s52, v1
    v_lshlrev_b32 v6, 7, v6
    buffer_load_dword v30, v6, s[40:43], 0 offen
    v_mov_b32 v6, {NONCE}
    ds_write_b64 v6, v[20:21]
    v_mov_b32 v8, 0
    v_mov_b32 v9, 0
    ds_write_b64 v6, v[8:9] offset:8
    ds_write_b64 v6, v[8:9] offset:16
    ds_write_b64 v6, v[8:9] offset:24
    ds_write_b64 v6, v[8:9] offset:32
    s_waitcnt vmcnt(1) lgkmcnt(0)
    s_barrier
    """)
    a.c("B1 passed: every wave has drained its h stores")
    flag(a, "s34")
    kv()
    a(f"""
    s_waitcnt vmcnt(0)
    s_branch {L}_gate_done
    {L}_gate:
    s_load_dwordx2 s[16:17], s[0:1], 72
    s_load_dwordx2 s[4:5], s[0:1], 0
    v_and_b32 v16, 7, v1
    v_lshlrev_b32 v16, 4, v16
    v_lshrrev_b32 v17, 3, v1
    s_lshl_b32 s53, s33, 3
    v_add_u32 v18, s53, v17
    s_movk_i32 s54, 1280
    v_mul_lo_u32 v17, v18, s54
    v_add_u32 v17, v17, v16
    s_waitcnt lgkmcnt(0)
    """)
    srd(a, 56, 4, 5, 2621440)
    srd(a, 68, 16, 17, 1280)
    for j in range(10):
        a(f"buffer_load_dwordx4 {vr(72+4*j,4)}, v17, s[56:59], 0 offen offset:{128*j}")
    for j in range(10):
        a(f"buffer_load_dwordx4 {vr(32+4*j,4)}, v16, s[68:71], 0 offen offset:{128*j}")
    a(f"""
    v_lshrrev_b32 v19, 3, v1
    v_lshlrev_b32 v19, 2, v19
    v_mov_b32 v27, {f32(-LOG2E)}
    v_mov_b32 v26, 0
    v_mov_b32 v28, 0
    s_waitcnt vmcnt(20)
    s_barrier
    """)
    kv()
    a("s_waitcnt vmcnt(6)")
    for i in range(0, 40, 2):
        a(f"v_dot2_f32_bf16 v26, v{72+i}, v{32+i}, v26")
        a(f"v_dot2_f32_bf16 v28, v{73+i}, v{33+i}, v28")
    a(f"""
    s_nop 3
    v_add_f32 v26, v26, v28
    s_nop 1
    v_add_f32_dpp v26, v26, v26 quad_perm:[1,0,3,2] row_mask:0xf bank_mask:0xf
    s_nop 1
    v_add_f32_dpp v26, v26, v26 quad_perm:[2,3,0,1] row_mask:0xf bank_mask:0xf
    s_nop 1
    v_add_f32_dpp v26, v26, v26 row_half_mirror row_mask:0xf bank_mask:0xf
    v_cvt_pk_bf16_f32 v26, v26, v26
    v_lshlrev_b32 v26, 16, v26
    v_mul_f32 v26, v27, v26
    v_exp_f32 v26, v26
    s_nop 0
    v_add_f32 v26, 1.0, v26
    v_rcp_f32 v26, v26
    s_nop 0
    v_cvt_pk_bf16_f32 v26, v26, v26
    v_lshlrev_b32 v28, 16, v26
    s_lshl_b32 s53, s33, 7
    s_add_u32 s53, s53, {WS_G}
    v_cmp_eq_u32 vcc, 0, v16
    s_nop 1
    s_mov_b64 exec, vcc
    buffer_store_dword v28, v19, s[8:11], s53 offen sc1
    s_mov_b64 exec, -1
    s_waitcnt vmcnt(1)
    {L}_gate_done:
    s_barrier
    """)
    kv()
    a(f"""
    s_cmp_eq_u32 s63, 1
    s_cbranch_scc1 {L}_l_np
    """)
    a("s_mov_b64 exec, 0x7ffffff")
    poll(a, L, "v3", "s35")
    a(f"""
    s_mov_b64 exec, -1
    {L}_l_np:
    """)
    bar_kv()
    wo(4, "e")
    a(f"""
    s_mul_i32 s44, s63, {16*20480}
    s_mul_i32 s45, s63, {16*3072}
    s_waitcnt vmcnt(12)
    s_barrier
    """)
    kv()
    a(f"""
    s_mov_b32 s46, 5
    {L}_lloop:
    """)
    bar_kv()
    a(f"""
    s_add_u32 s46, s46, 1
    s_cmp_lt_u32 s46, 14
    s_cbranch_scc1 {L}_lloop
    s_add_u32 s34, s34, {F2}
    s_add_u32 s35, s35, {F2}
    """)
    a.c("barrier 13 passed: G waves are done with their ring")
    W0, W1 = [int(x) for x in E("WOS", "5,8").split(",")]
    wo(W0, "a")
    a(f"s_waitcnt vmcnt({3*W0})")
    a("s_barrier")
    wo(W1, "b")
    a("s_barrier")
    wo(16 - W0 - W1, "c")
    a(f"s_cmp_eq_u32 s63, 0\ns_cbranch_scc1 {L}_l_np2")
    a("s_mov_b32 exec_hi, 0")
    poll(a, L, "v3", "s35")
    a(f"{L}_l_np2:")
    a(f"""
    s_mov_b64 exec, 1
    v_mov_b32 v22, {NONCE}
    v_mov_b32 v9, 1
    s_waitcnt vmcnt(0)
    ds_add_u32 v22, v9 offset:12
    s_mov_b64 exec, -1
    s_and_b32 s52, s21, 3
    s_lshl_b32 s52, s52, 9
    s_add_u32 s35, s35, s52
    s_add_u32 s35, s35, {F3-F2}
    s_branch {L}_p3
    """)

    a(f"""
    {L}_comp:
    s_and_b32 s63, s22, 3
    s_lshr_b32 s64, s22, 2
    v_and_b32 v13, 31, v1
    v_lshrrev_b32 v14, 5, v1
    v_bfe_u32 v15, v1, 1, 3
    v_xor_b32 v2, v14, v15
    v_lshlrev_b32 v2, 4, v2
    v_lshl_add_u32 v2, v13, 7, v2
    s_lshl_b32 s52, s63, 13
    s_lshl_b32 s53, s64, 12
    s_add_u32 s52, s52, s53
    v_add_u32 v2, s52, v2
    v_xor_b32 v3, 32, v2
    v_xor_b32 v4, 64, v2
    v_xor_b32 v5, 96, v2
    v_bfe_u32 v15, v1, 2, 2
    v_lshlrev_b32 v7, 3, v14
    v_add_u32 v7, v7, v15
    v_mul_u32_u24 v9, 40, v7
    v_lshlrev_b32 v8, 6, v7
    v_lshlrev_b32 v7, 7, v7
    v_lshrrev_b32 v16, 1, v15
    v_xor_b32 v16, s64, v16
    v_lshl_add_u32 v7, v16, 6, v7
    v_bfe_u32 v16, v1, 4, 1
    v_and_b32 v17, 3, v1
    v_lshlrev_b32 v16, 5, v16
    v_lshl_add_u32 v16, v17, 3, v16
    v_add_u32 v7, v7, v16
    v_add_u32 v8, v8, v16
    v_add_u32 v9, v9, v16
    v_add_u32 v7, {WB}, v7
    v_add_u32 v8, {WB+8192}, v8
    v_add_u32 v9, {WB}, v9
    s_mov_b32 s44, 0
    s_mov_b32 s45, 0
    s_mov_b32 s46, 0
    """)
    a.c("v2..v5 x frag addr (row block 2rp+cp) for the 4 k steps of a pair; v7 W, v8 wq slice, v9 wk/wv slice addr; s63=rp s64=cp")
    for r in range(64, 144):
        a(f"v_mov_b32 v{r}, 0")
    a("s_waitcnt lgkmcnt(0)")
    srd(a, 8, 18, 19, WS_SIZE)
    a(f"""
    s_or_b32 s52, s22, s2
    s_cmp_lg_u32 s52, 0
    s_cbranch_scc1 {L}_nonon
    s_load_dwordx2 s[52:53], s[0:1], 88
    s_memrealtime s[54:55]
    v_mov_b32 v148, 0
    s_waitcnt lgkmcnt(0)
    s_or_b32 s54, s54, 1
    v_mov_b32 v144, s54
    v_mov_b32 v145, s55
    s_mov_b64 exec, 1
    global_store_dwordx2 v148, v[144:145], s[52:53] sc0 sc1
    s_mov_b64 exec, -1
    {L}_nonon:
    s_lshr_b32 s52, s21, 4
    s_xor_b32 s53, s22, 1
    s_or_b32 s52, s52, s53
    s_cmp_lg_u32 s52, 0
    s_cbranch_scc1 {L}_noin
    s_lshl_b32 s52, s20, 5
    s_add_u32 s52, s52, s21
    s_lshl_b32 s52, s52, 7
    s_add_u32 s52, s52, {WS_F+F3}
    s_mov_b64 exec, 1
    buffer_store_dword v64, v64, s[8:11], s52 offen sc1
    s_mov_b64 exec, -1
    {L}_noin:
    """)
    if E("CPF", "1") == "1":
        a(f"""
        s_lshr_b32 s52, s2, {3 + int(E("CPFS", "0"))}
        s_xor_b32 s53, s22, 2
        s_or_b32 s52, s52, s53
        s_cmp_lg_u32 s52, 0
        s_cbranch_scc1 {L}_nocpf
        s_getpc_b64 s[52:53]
        {L}_pc:
        s_sub_u32 s52, s52, {L}_pc-{L}
        s_subb_u32 s53, s53, 0
        v_lshlrev_b32 v144, 7, v1
        global_load_dword v145, v144, s[52:53]
        v_add_u32 v144, 8192, v144
        v_cmp_gt_u32 vcc, {L}_end-{L}, v144
        s_nop 1
        s_mov_b64 exec, vcc
        global_load_dword v145, v144, s[52:53]
        s_mov_b64 exec, -1
        {L}_nocpf:
        """)
    a(f"""
    s_cmp_eq_u32 s21, 27
    s_cbranch_scc1 {L}_modeK
    s_cmp_eq_u32 s21, 28
    s_cbranch_scc1 {L}_modeV
    s_cmp_gt_u32 s21, 28
    s_cbranch_scc1 {L}_modeQ
    """)
    XA = [16, 36]
    XC = [56, 57, 58, 59]
    XD = [60, 61, 62, 63]
    def xaddrs(full):
        l = [f"v_add_u32 v{XC[j]}, s45, v{2+j}" for j in range(4)]
        if full: l += [f"v_xor_b32 v{XD[j]}, 4096, v{XC[j]}" for j in range(4)]
        return l + [f"s_add_u32 s45, s45, {XSL}", f"s_cmp_ge_u32 s45, {WB}", "s_cselect_b32 s45, 0, s45"]
    def waddrs(mode):
        l = ["v_add_u32 v12, s44, v8"]
        if mode == 0: l.append("v_add_u32 v11, s44, v7")
        if mode in (1, 2): l.append("v_add_u32 v11, s44, v9")
        return l + [f"s_add_u32 s44, s44, {WSL}", f"s_cmp_ge_u32 s44, {4*WSL}", "s_cselect_b32 s44, 0, s44"]
    def read_list(j, mode):
        ks = j & 1
        b = XA[ks]
        l = [f"ds_read_b128 {vr(b,4)}, v{XC[j]}"]
        if mode == 0:
            l += [f"ds_read_b64_tr_b16 {vr(b+8,2)}, v11 offset:{ks*2048}",
                  f"ds_read_b64_tr_b16 {vr(b+10,2)}, v11 offset:{ks*2048+512}",
                  f"ds_read_b64_tr_b16 {vr(b+12,2)}, v11 offset:{4096+ks*2048}",
                  f"ds_read_b64_tr_b16 {vr(b+14,2)}, v11 offset:{4096+ks*2048+512}",
                  f"ds_read_b128 {vr(b+4,4)}, v{XD[j]}"]
        if mode in (1, 2):
            l += [f"ds_read_b64_tr_b16 {vr(b+8,2)}, v11 offset:{ks*640}",
                  f"ds_read_b64_tr_b16 {vr(b+10,2)}, v11 offset:{ks*640+160}"]
        l += [f"ds_read_b64_tr_b16 {vr(b+16,2)}, v12 offset:{ks*1024}",
              f"ds_read_b64_tr_b16 {vr(b+18,2)}, v12 offset:{ks*1024+256}"]
        return l
    def mfma_list(ks, mode):
        b = XA[ks]
        x0, x1, wg, wu, ws = vr(b,4), vr(b+4,4), vr(b+8,4), vr(b+12,4), vr(b+16,4)
        l = []
        if mode == 0:
            l = [f"{M} v[64:79], {wg}, {x0}, v[64:79]", f"{M} v[80:95], {wu}, {x0}, v[80:95]",
                 f"{M} v[96:111], {wg}, {x1}, v[96:111]", f"{M} v[112:127], {wu}, {x1}, v[112:127]"]
        if mode == 1: l = [f"{M} v[64:79], {wg}, {x0}, v[64:79]"]
        if mode == 2: l = [f"{M} v[64:79], {x0}, {wg}, v[64:79]"]
        l = l + [f"{M} v[128:143], {ws}, {x0}, v[128:143]"]
        if E("HACK16", "0") == "1" and mode == 0:
            import re
            l2 = []
            for m in l:
                b0 = int(re.search(r"v\[(\d+):", m).group(1)); ops = m.split(", ")
                t = f"v_mfma_f32_16x16x32_bf16 {{d}}, {ops[1]}, {ops[2]}, {{d}}"
                l2.append(t.format(d=vr(b0+8*ks,4)) + "\n" + t.format(d=vr(b0+8*ks+4,4)))
            l = l2
        return l
    def half(ml, rl, post):
        n = len(ml)
        if n == 5 and E("P1V", "1") == "1":
            a("s_waitcnt lgkmcnt(2)")
            cuts = [int(x) for x in E("P1CUT", "3,6,8,8").split(",")]
            lo = 0
            for i, m in enumerate(ml):
                if i == 4: a("s_waitcnt lgkmcnt(8)")
                a(m)
                if i < 4:
                    for x in rl[lo:cuts[i]]: a(x)
                    lo = cuts[i]
                if i == 3:
                    for x in post: a(x)
            return
        a("s_waitcnt lgkmcnt(0)")
        per = -(-len(rl) // max(n - 1, 1))
        for i, m in enumerate(ml):
            a(m)
            if n == 1:
                for x in rl + post: a(x)
                continue
            for x in rl[per*i:per*i+per]: a(x)
            if i == n - 2:
                for x in post: a(x)
    for mode, tag in ((0, "full"), (1, "modeK"), (2, "modeV"), (3, "modeQ")):
        a(f"{L}_{tag}:")
        for x in xaddrs(mode == 0) + waddrs(mode): a(x)
        a("s_barrier")
        for x in read_list(0, mode): a(x)
        stamp(a, 1)
        if mode == 0: a(".p2align 6")
        a(f"{L}_{tag}_loop:")
        half(mfma_list(0, mode), read_list(1, mode), waddrs(mode))
        a("s_barrier")
        half(mfma_list(1, mode), read_list(2, mode), [])
        half(mfma_list(0, mode), read_list(3, mode), waddrs(mode) + xaddrs(mode == 0))
        a("s_barrier")
        half(mfma_list(1, mode), read_list(0, mode), ["s_add_u32 s46, s46, 1", "s_cmp_lt_u32 s46, 10"])
        a(f"s_cbranch_scc1 {L}_{tag}_loop")
        stamp(a, 2)
        a(f"""
        s_lshl_b32 s52, s20, 3
        s_lshl_b32 s53, s63, 1
        s_add_u32 s52, s52, s53
        s_add_u32 s52, s52, s64
        v_lshlrev_b32 v2, 4, v1
        """)
        a(f"s_branch {L}_epi{mode}")
    a.c("s52 = global row block of acc set 0 and of the q chain (set 1 is s52 ^ 1)")
    EK = 64
    a(f"""
    {L}_epi1:
    s_mul_i32 s53, s52, 3072
    s_add_u32 s53, s53, {WS_KV}
    s_nop 7
    s_waitcnt lgkmcnt(0)
    """)
    for i in range(4): a(f"v_cvt_pk_bf16_f32 v{20+i}, v{EK+2*i}, v{EK+2*i+1}")
    a(f"buffer_store_dwordx4 v[20:23], v2, s[8:11], s53 offen{SC}")
    a(f"v_cvt_pk_bf16_f32 v24, v{EK+8}, v{EK+9}")
    a(f"v_cvt_pk_bf16_f32 v25, v{EK+10}, v{EK+11}")
    a("v_mov_b32 v26, 0x3f803f80")
    a("v_mov_b32 v27, 0x00003f80")
    a(f"v_mul_f32 v30, v{EK}, v{EK}")
    for i in range(1, 8): a(f"v_fmac_f32 v30, v{EK+i}, v{EK+i}")
    a(f"v_mul_f32 v31, v{EK+8}, v{EK+8}")
    for i in range(9, 12): a(f"v_fmac_f32 v31, v{EK+i}, v{EK+i}")
    a(f"""
    v_cmp_gt_u32 vcc, 32, v1
    s_nop 1
    v_cndmask_b32 v31, 0, v31, vcc
    v_add_f32 v30, v30, v31
    v_mov_b32 v31, v30
    s_nop 1
    v_permlane32_swap_b32 v30, v31
    s_nop 1
    v_add_f32 v30, v30, v31
    """)
    for sh in (1, 2, 4, 8):
        a("s_nop 1")
        a(f"v_max_f32_dpp v30, v30, v30 row_shr:{sh} row_mask:0xf bank_mask:0xf")
    a(f"""
    s_nop 1
    v_max_f32_dpp v30, v30, v30 row_bcast:15 row_mask:0xa bank_mask:0xf
    v_cmp_eq_u32 vcc, 63, v1
    v_and_b32 v30, 0xffff0000, v30
    v_or_b32 v30, 0x3f80, v30
    v_cndmask_b32 v27, v27, v30, vcc
    v_cmp_gt_u32 vcc, 32, v1
    v_lshlrev_b32 v16, 3, v1
    s_nop 0
    v_cndmask_b32 v24, v26, v24, vcc
    v_cndmask_b32 v25, v27, v25, vcc
    buffer_store_dwordx2 v[24:25], v16, s[8:11], s53 offen offset:1024{SC}
    s_branch {L}_kvdone
    {L}_epi2:
    s_mul_i32 s53, s52, 3072
    s_add_u32 s53, s53, {WS_KV+1536}
    v_and_b32 v17, 31, v1
    v_lshrrev_b32 v18, 5, v1
    v_mul_u32_u24 v18, 384, v18
    v_lshl_add_u32 v16, v17, 4, v18
    v_mov_b32 v19, 0x3f803f80
    v_cmp_eq_u32 vcc, 20, v17
    v_cmp_lt_u32 s[54:55], 19, v17
    s_nop 3
    v_cndmask_b32 v19, 0, v19, vcc
    s_waitcnt lgkmcnt(0)
    """)
    for i in range(8): a(f"v_cvt_pk_bf16_f32 v{20+i}, v{EK+2*i}, v{EK+2*i+1}")
    for i in range(8): a(f"v_cndmask_b32 v{20+i}, v{20+i}, v19, s[54:55]")
    a(f"""
    v_cmp_gt_u32 vcc, 24, v17
    s_nop 1
    s_and_b64 exec, exec, vcc
    buffer_store_dwordx4 v[20:23], v16, s[8:11], s53 offen{SC}
    buffer_store_dwordx4 v[24:27], v16, s[8:11], s53 offen offset:768{SC}
    {L}_kvdone:
    s_mov_b64 exec, -1
    s_waitcnt vmcnt(0)
    s_barrier
    s_branch {L}_epi3
    """)
    C0 = -2.0 * 0.7978845608028654 * LOG2E
    C1 = C0 * 0.044715
    a(f"""
    {L}_epi0:
    v_mov_b32 v16, {f32(C0)}
    v_mov_b32 v17, {f32(C1)}
    s_lshl_b32 s54, s21, 12
    s_lshl_b32 s55, s64, 11
    s_add_u32 s54, s54, s55
    s_add_u32 s54, s54, {WS_H}
    s_mul_i32 s53, s52, {108*1024}
    s_add_u32 s53, s53, s54
    s_xor_b32 s55, s52, 1
    s_mul_i32 s55, s55, {108*1024}
    s_add_u32 s54, s54, s55
    s_waitcnt lgkmcnt(0)
    """)
    for j in range(2):
        G, U = 64 + 32*j, 80 + 32*j
        for hf in range(2):
            T = 20
            rs = list(range(8*hf, 8*hf+8))
            for i, r in enumerate(rs): a(f"v_mul_f32 v{T+i}, v{G+r}, v{G+r}")
            for i, r in enumerate(rs): a(f"v_fma_f32 v{T+i}, v{T+i}, v17, v16")
            for i, r in enumerate(rs): a(f"v_mul_f32 v{T+i}, v{G+r}, v{T+i}")
            for i, r in enumerate(rs): a(f"v_exp_f32 v{T+i}, v{T+i}")
            for i, r in enumerate(rs): a(f"v_mul_f32 v{U+r}, v{G+r}, v{U+r}")
            for i, r in enumerate(rs): a(f"v_add_f32 v{T+i}, 1.0, v{T+i}")
            for i, r in enumerate(rs): a(f"v_rcp_f32 v{T+i}, v{T+i}")
            a("s_nop 0")
            for i, r in enumerate(rs): a(f"v_mul_f32 v{T+i}, v{U+r}, v{T+i}")
            O = 28 + 4*(2*j+hf)
            for i in range(4): a(f"v_cvt_pk_bf16_f32 v{O+i}, v{T+2*i}, v{T+2*i+1}")
            a(f"buffer_store_dwordx4 {vr(O,4)}, v2, s[8:11], s{53+j} offen offset:{1024*hf}{SC}")
    a(f"""
    {L}_epi3:
    """)
    if E("ES"): stamp(a, 6)
    a(f"""
    s_nop 7
    v_mov_b32 v144, {f32(QSCALE)}
    s_waitcnt lgkmcnt(0)
    """)
    for i in range(12): a(f"v_mul_f32 v{128+i}, v144, v{128+i}")
    for i in range(6): a(f"v_cvt_pk_bf16_f32 v{QA1+i}, v{128+2*i}, v{129+2*i}")
    a(f"""
    s_mul_i32 s52, s63, 1536
    s_add_u32 s52, s52, {QST}
    v_add_u32 v144, s52, v2
    v_lshl_add_u32 v145, v1, 3, s52
    s_cmp_ge_u32 s22, 4
    s_cbranch_scc1 {L}_gwave
    """)
    a(f"""
    s_setprio {E("APRIO", "1")}
    v_and_b32 v9, 31, v1
    v_lshrrev_b32 v10, 5, v1
    v_add_u32 v3, {KVR}, v2
    v_lshlrev_b32 v4, 3, v1
    v_add_u32 v4, {KVR+1024}, v4
    v_min_u32 v5, 23, v9
    v_mul_u32_u24 v11, 384, v10
    v_lshl_add_u32 v5, v5, 4, v11
    v_add_u32 v5, {KVR+1536}, v5
    v_lshlrev_b32 v146, 2, v1
    v_add_u32 v146, {QST+6144}, v146
    v_add_u32 v6, {CH}, v3
    v_add_u32 v7, {CH}, v4
    v_add_u32 v8, {CH}, v5
    s_mov_b32 s27, {2*CH}
    s_mov_b32 s30, 0
    v_cmp_gt_u32 s[28:29], 32, v1
    v_lshlrev_b32 v60, 3, v9
    v_lshl_add_u32 v60, v10, 8, v60
    s_lshl_b32 s33, s20, 3
    s_lshl_b32 s52, s22, 1
    s_add_u32 s33, s33, s52
    s_mul_i32 s33, s33, 40960
    s_mul_i32 s52, s21, 1280
    s_add_u32 s33, s33, s52
    s_add_u32 s33, s33, {WS_O}
    s_add_u32 s31, s33, 40960
    """)
    a.c("v60 = o store offset, s33/s31 = o image base of block a / b")
    for r in list(range(OA, OA+32)) + list(range(PB, PB+8)) + list(range(KVB[1]+8, KVB[1]+16)):
        a(f"v_mov_b32 v{r}, 0")
    def qnorm(q1, q2, t, extra=()):
        ex = list(extra) + [""] * 2
        a(f"""
        v_cndmask_b32 v{q2}, 0, v{q2}, s[28:29]
        v_cndmask_b32 v{q2+1}, 0, v{q2+1}, s[28:29]
        v_mov_b32 v{t}, 0
        {ex[0]}
        v_dot2_f32_bf16 v{t}, v{q1}, v{q1}, v{t}
        v_dot2_f32_bf16 v{t}, v{q1+1}, v{q1+1}, v{t}
        v_dot2_f32_bf16 v{t}, v{q1+2}, v{q1+2}, v{t}
        {ex[1]}
        v_dot2_f32_bf16 v{t}, v{q1+3}, v{q1+3}, v{t}
        v_dot2_f32_bf16 v{t}, v{q2}, v{q2}, v{t}
        v_dot2_f32_bf16 v{t}, v{q2+1}, v{q2+1}, v{t}
        """)
    qnorm(QA1, QA2, 147)
    if E("ES"): stamp(a, 3)
    a(f"""
    s_barrier
    ds_read_b32 v146, v146
    ds_read_b128 {vr(QB1,4)}, v144
    ds_read_b64 {vr(QB2,2)}, v145 offset:1024
    ds_read_b128 {vr(KVB[0],4)}, v6
    ds_read_b64 {vr(KVB[0]+4,2)}, v7
    ds_read_b128 {vr(KVB[1],4)}, v6 offset:3072
    ds_read_b64 {vr(KVB[1]+4,2)}, v7 offset:3072
    ds_read_b128 {vr(KVB[0]+8,4)}, v8
    ds_read_b128 {vr(KVB[0]+12,4)}, v8 offset:768
    """)
    stamp(a, 4)
    dm = lambda k: f"v_max_f32_dpp v146, v146, v146 {k} bank_mask:0xf"
    a(f"""
    v_mov_b32 v149, v147
    s_waitcnt lgkmcnt(6)
    v_and_b32 v146, 0xffff0000, v146
    v_permlane32_swap_b32 v147, v149
    s_nop 0
    {dm("row_shr:1 row_mask:0xf")}
    v_add_f32 v147, v147, v149
    s_nop 0
    {dm("row_shr:2 row_mask:0xf")}
    """)
    qnorm(QB1, QB2, 148, [dm("row_shr:4 row_mask:0xf"), dm("row_shr:8 row_mask:0xf")])
    a(f"""
    {dm("row_bcast:15 row_mask:0xa")}
    s_nop 1
    v_mov_b32 v150, v148
    {dm("row_bcast:31 row_mask:0xc")}
    s_nop 0
    v_permlane32_swap_b32 v148, v150
    v_readlane_b32 s26, v146, 63
    s_nop 0
    v_add_f32 v148, v148, v150
    v_mul_f32 v147, s26, v147
    v_mul_f32 v148, s26, v148
    v_sqrt_f32 v147, v147
    v_sqrt_f32 v148, v148
    v_mul_f32 v147, {f32(1.02)}, v147
    v_mul_f32 v148, {f32(1.02)}, v148
    """)
    def set_shift(ma, mb):
        for m, q2 in ((ma, QA2), (mb, QB2)):
            split3(a, m, q2+2, q2+3, 149, 150)
            a(f"v_cndmask_b32 v{q2}, v{q2+2}, v{q2}, s[28:29]")
            a(f"v_cndmask_b32 v{q2+1}, v{q2+3}, v{q2+1}, s[28:29]")
    set_shift(147, 148)
    a("s_waitcnt lgkmcnt(0)")
    for x in qk(SA, KVB[0], QA1, QA2): a(x)
    a("s_nop 11")
    a(".p2align 6")
    a(f"{L}_aloop:")
    for t in range(4):
        cur, nxt = KVB[t & 1], KVB[(t + 1) & 1]
        aslot(a, SA, PA, qk(SB, cur, QB1, QB2) + pv(OB, nxt, PB))
        pre = ["s_waitcnt lgkmcnt(0)" if t != 3 else "s_waitcnt vmcnt(0) lgkmcnt(0)"]
        if t == 0 and STAMP: pre.append("s_memtime s[38:39]")
        if t == 0: pre.append("s_barrier")
        if t == 0 and STAMP: pre.append("s_memtime s[36:37]")
        if t == 1 and STAMP: pre += ["s_mov_b32 m0, s30", "s_nop 0", "v_writelane_b32 v61, s36, m0", "v_writelane_b32 v62, s38, m0"]
        if t == 2:
            pre += ["v_add_u32 v6, s27, v3", "v_add_u32 v7, s27, v4"]
        if t == 3:
            pre += ["v_add_u32 v8, s27, v5",
                    f"s_add_u32 s27, s27, {CH}", f"s_cmp_ge_u32 s27, {3*CH}", "s_cselect_b32 s27, 0, s27"]
        ko = ((t + 2) & 3) * 3072
        vo = ((t + 1) & 3) * 3072
        rd = [f"ds_read_b128 {vr(cur,4)}, v6 offset:{ko}",
              f"ds_read_b64 {vr(cur+4,2)}, v7 offset:{ko}",
              f"ds_read_b128 {vr(nxt+8,4)}, v8 offset:{vo}",
              f"ds_read_b128 {vr(nxt+12,4)}, v8 offset:{vo+768}"]
        aslot(a, SB, PB, qk(SA, nxt, QA1, QA2) + pv(OA, cur, PA), pre, rd)
    a(f"""
    s_add_u32 s30, s30, 1
    s_cmp_lt_u32 s30, 16
    s_cbranch_scc1 {L}_aloop
    s_nop 1
    """)
    for x in pv(OB, KVB[1], PB): a(x)
    stamp(a, 5)
    a(f"""
    s_mov_b32 s34, 0
    {L}_aepi:
    s_mov_b32 s35, {f32(2.0**-90)}
    s_waitcnt lgkmcnt(0)
    s_nop 11
    v_mov_b32 v144, v{OA+8}
    v_mov_b32 v145, v{OA+8}
    v_mov_b32 v146, v{OB+8}
    v_mov_b32 v147, v{OB+8}
    s_nop 0
    v_permlane32_swap_b32 v144, v145
    v_permlane32_swap_b32 v146, v147
    s_nop 0
    v_cmp_nle_f32 vcc, s35, v145
    v_cmp_nle_f32 s[36:37], s35, v147
    v_rcp_f32 v145, v145
    v_rcp_f32 v147, v147
    s_or_b64 s[36:37], vcc, s[36:37]
    s_cmp_eq_u32 s34, 0
    s_cselect_b64 s[36:37], s[36:37], 0
    s_cmp_lg_u64 s[36:37], 0
    s_cbranch_scc1 {L}_slow
    """)
    for blk, O in enumerate((OA, OB)):
        R = 145 + 2*blk
        for q in range(3):
            for i in range(4): a(f"v_mul_f32 v{O+4*q+i}, v{R}, v{O+4*q+i}")
            D = 64 + 8*blk + 2*q
            a(f"v_cvt_pk_bf16_f32 v{D}, v{O+4*q}, v{O+4*q+1}")
            a(f"v_cvt_pk_bf16_f32 v{D+1}, v{O+4*q+2}, v{O+4*q+3}")
            if q == 2: a("s_mov_b32 exec_hi, 0")
            a(f"buffer_store_dwordx2 {vr(D,2)}, v60, s[8:11], s{33 if blk == 0 else 31} offen offset:{512*q} sc1")
            if q == 2: a("s_mov_b64 exec, -1")
    if STAMP:
        a(f"""
        s_lshl_b32 s36, s2, 2
        s_add_u32 s36, s36, s22
        s_lshl_b32 s36, s36, 9
        s_add_u32 s36, s36, {0x1900000}
        v_lshlrev_b32 v63, 2, v1
        buffer_store_dword v61, v63, s[8:11], s36 offen
        buffer_store_dword v62, v63, s[8:11], s36 offen offset:256
        """)
    a(f"""
    s_setprio 0
    s_lshl_b32 s36, s20, 5
    s_lshl_b32 s37, s22, 2
    s_add_u32 s36, s36, s37
    s_lshr_b32 s37, s21, 3
    s_add_u32 s36, s36, s37
    s_lshl_b32 s36, s36, 7
    s_add_u32 s36, s36, {WS_F+F3}
    v_mov_b32 v9, 1
    v_mov_b32 v5, 0
    s_waitcnt vmcnt(0)
    s_mov_b64 exec, 1
    buffer_atomic_add v9, v5, s[8:11], s36 offen sc1
    s_mov_b64 exec, -1
    """)
    if not E("ES"): stamp(a, 3)
    a(f"""
    s_branch {L}_p3
    """)
    kb = KVB[0]
    a(f"""
    {L}_slow:
    s_mov_b32 s34, 1
    v_cndmask_b32 v{QA2}, 0, v{QA2}, s[28:29]
    v_cndmask_b32 v{QA2+1}, 0, v{QA2+1}, s[28:29]
    v_cndmask_b32 v{QB2}, 0, v{QB2}, s[28:29]
    v_cndmask_b32 v{QB2+1}, 0, v{QB2+1}, s[28:29]
    v_mov_b32 v147, 0xff800000
    v_mov_b32 v148, 0xff800000
    s_mov_b32 s36, {WS_KV - KVR}
    {L}_slow1:
    buffer_load_dwordx4 {vr(kb,4)}, v3, s[8:11], s36 offen sc1
    buffer_load_dwordx2 {vr(kb+4,2)}, v4, s[8:11], s36 offen sc1
    s_add_u32 s36, s36, 3072
    s_waitcnt vmcnt(0)
    """)
    for x in qk(SA, kb, QA1, QA2) + qk(SB, kb, QB1, QB2): a(x)
    a("s_nop 15")
    for i in range(0, 16, 2):
        a(f"v_max3_f32 v147, v{SA+i}, v{SA+i+1}, v147")
        a(f"v_max3_f32 v148, v{SB+i}, v{SB+i+1}, v148")
    a(f"""
    s_cmp_lt_u32 s36, {WS_KV - KVR + 64*3072}
    s_cbranch_scc1 {L}_slow1
    v_mov_b32 v149, v147
    v_mov_b32 v150, v148
    s_nop 1
    v_permlane32_swap_b32 v147, v149
    v_permlane32_swap_b32 v148, v150
    s_nop 1
    v_max_f32 v147, v147, v149
    v_max_f32 v148, v148, v150
    """)
    set_shift(147, 148)
    for r in range(OA, OA+32): a(f"v_mov_b32 v{r}, 0")
    a(f"""
    s_mov_b32 s36, {WS_KV - KVR}
    {L}_slow2:
    buffer_load_dwordx4 {vr(kb,4)}, v3, s[8:11], s36 offen sc1
    buffer_load_dwordx2 {vr(kb+4,2)}, v4, s[8:11], s36 offen sc1
    buffer_load_dwordx4 {vr(kb+8,4)}, v5, s[8:11], s36 offen sc1
    buffer_load_dwordx4 {vr(kb+12,4)}, v5, s[8:11], s36 offen offset:768 sc1
    s_add_u32 s36, s36, 3072
    s_waitcnt vmcnt(0)
    """)
    for x in qk(SA, kb, QA1, QA2) + qk(SB, kb, QB1, QB2): a(x)
    a("s_nop 15")
    for g in exp_groups(SA, PA) + exp_groups(SB, PB):
        for x in g: a(x)
    a("s_nop 1")
    for x in pv(OA, kb, PA) + pv(OB, kb, PB): a(x)
    a(f"""
    s_cmp_lt_u32 s36, {WS_KV - KVR + 64*3072}
    s_cbranch_scc1 {L}_slow2
    s_nop 7
    s_branch {L}_aepi
    """)

    a(f"""
    {L}_gwave:
    ds_write_b128 v144, {vr(QA1,4)}
    ds_write_b64 v145, {vr(QA2,2)} offset:1024
    s_load_dwordx2 s[6:7], s[0:1], 64
    s_and_b32 s16, s22, 3
    s_cmp_ge_u32 s21, 15
    s_cselect_b32 s33, 1, 0
    s_cselect_b32 s34, 15, 0
    s_sub_u32 s34, s21, s34
    s_lshl_b32 s35, s20, 1
    s_add_u32 s33, s33, s35
    s_mul_i32 s35, s34, 13
    s_lshr_b32 s35, s35, 6
    s_mul_i32 s36, s35, 5
    s_sub_u32 s34, s34, s36
    s_waitcnt lgkmcnt(0)
    """)
    if E("ES"): stamp(a, 3)
    a(f"""
    s_barrier
    s_lshl_b32 s36, s33, 2
    s_add_u32 s36, s36, s16
    s_mul_i32 s36, s36, 108
    s_mul_i32 s37, s35, 36
    s_add_u32 s36, s36, s37
    s_lshl_b32 s36, s36, 10
    s_add_u32 s40, s36, {WS_H}
    s_mul_i32 s41, s35, {576*1280}
    s_mul_i32 s36, s16, {16*1280}
    s_add_u32 s41, s41, s36
    s_lshl_b32 s36, s34, 8
    s_add_u32 s41, s41, s36
    v_lshrrev_b32 v3, 4, v1
    v_lshlrev_b32 v4, 2, v3
    v_and_b32 v5, 15, v1
    v_xor_b32 v4, v4, v5
    s_movk_i32 s36, 1280
    v_mul_u32_u24 v3, s36, v3
    v_lshl_add_u32 v3, v4, 4, v3
    v_add_u32 v4, {5120-1024}, v3
    v_add_u32 v5, {2*(5120-1024)}, v3
    v_add_u32 v13, {3*(5120-1024)}, v3
    s_lshl_b32 s42, s16, 12
    s_add_u32 s43, s42, 16384
    s_mov_b32 s45, 0
    s_mov_b32 s30, 0
    s_mov_b32 s46, 0
    s_cmp_lt_u32 s21, 30
    s_cselect_b32 s47, 9, 0
    s_cselect_b32 s50, {WS_SIZE}, 0
    s_cselect_b32 s54, 2211840, 0
    s_mov_b32 s48, s18
    s_and_b32 s49, s19, 0xffff
    s_mov_b32 s51, 0x20000
    s_mov_b32 s55, 0x20000
    s_mov_b32 m0, s43
    s_mov_b32 s52, s6
    s_and_b32 s53, s7, 0xffff
    """)
    a.c("s33 = row group (128 rows), s34 = col group (128 cols), s35 = k split, s47 = stages of this WG")
    def gw():
        a(f"""
        buffer_load_dwordx4 v3, s[52:55], s41 offen lds
        buffer_load_dwordx4 v4, s[52:55], s41 offen offset:1024 lds
        buffer_load_dwordx4 v5, s[52:55], s41 offen offset:2048 lds
        buffer_load_dwordx4 v13, s[52:55], s41 offen offset:3072 lds
        s_add_u32 s41, s41, {64*1280}
        """)
    def gh():
        a(f"""
        buffer_load_dwordx4 v2, s[48:51], s40 offen{SCL} lds
        buffer_load_dwordx4 v2, s[48:51], s40 offen offset:1024{SCL} lds
        buffer_load_dwordx4 v2, s[48:51], s40 offen offset:2048{SCL} lds
        buffer_load_dwordx4 v2, s[48:51], s40 offen offset:3072{SCL} lds
        s_add_u32 s40, s40, 4096
        """)
    gw()
    a(f"""
    s_and_b32 s36, s16, 1
    s_lshr_b32 s37, s16, 1
    s_lshl_b32 s38, s36, 13
    v_add_u32 v6, s38, v2
    v_lshrrev_b32 v8, 5, v1
    v_bfe_u32 v9, v1, 2, 2
    v_lshl_add_u32 v8, v8, 2, v9
    v_lshlrev_b32 v8, 8, v8
    s_lshl_b32 s38, s37, 1
    v_xor_b32 v9, s38, v9
    v_lshl_add_u32 v8, v9, 6, v8
    v_bfe_u32 v9, v1, 4, 1
    v_lshl_add_u32 v8, v9, 5, v8
    v_and_b32 v9, 3, v1
    v_lshl_add_u32 v8, v9, 3, v8
    v_add_u32 v7, 16384, v8
    v_xor_b32 v8, 64, v7
    """)
    for r in range(64, 128): a(f"v_mov_b32 v{r}, 0")
    a(f"""
    s_mov_b32 m0, s42
    s_barrier
    s_waitcnt vmcnt(0)
    s_barrier
    s_barrier
    s_barrier
    """)
    gh()
    a(f"""
    s_mov_b32 s44, {GSL}
    s_branch {L}_gin
    {L}_gloop:
    s_barrier
    {L}_gin:
    s_add_u32 s46, s46, 1
    s_cmp_ge_u32 s46, s47
    s_cbranch_scc1 {L}_gnod
    s_add_u32 m0, s44, s42
    s_nop 0
    """)
    gh()
    a("s_add_u32 m0, s44, s43")
    a(f"s_add_u32 s44, s44, {GSL}")
    gw()
    a(f"""
    s_cmp_ge_u32 s44, {3*GSL}
    s_cselect_b32 s44, 0, s44
    {L}_gnod:
    s_sub_u32 s36, s30, 1
    s_cmp_ge_u32 s36, s47
    s_cbranch_scc1 {L}_gskip
    v_add_u32 v10, s45, v6
    v_add_u32 v11, s45, v7
    v_add_u32 v12, s45, v8
    s_add_u32 s45, s45, {GSL}
    s_cmp_ge_u32 s45, {3*GSL}
    s_cselect_b32 s45, 0, s45
    """)
    FB = [16, 32]
    def rl(ks):
        b = FB[ks & 1]
        return [f"ds_read_b128 {vr(b,4)}, v10 offset:{ks*1024}",
                f"ds_read_b64_tr_b16 {vr(b+8,2)}, v11 offset:{ks*4096}",
                f"ds_read_b64_tr_b16 {vr(b+10,2)}, v11 offset:{ks*4096+2048}",
                f"ds_read_b64_tr_b16 {vr(b+12,2)}, v12 offset:{ks*4096}",
                f"ds_read_b64_tr_b16 {vr(b+14,2)}, v12 offset:{ks*4096+2048}",
                f"ds_read_b128 {vr(b+4,4)}, v10 offset:{ks*1024+4096}"]
    def ml(ks):
        b = FB[ks & 1]
        x0, x1, w0, w1 = vr(b,4), vr(b+4,4), vr(b+8,4), vr(b+12,4)
        return [f"{M} v[64:79], {w0}, {x0}, v[64:79]", f"{M} v[80:95], {w1}, {x0}, v[80:95]",
                f"{M} v[96:111], {w0}, {x1}, v[96:111]", f"{M} v[112:127], {w1}, {x1}, v[112:127]"]
    for x in rl(0): a(x)
    for ks in range(4):
        a("s_waitcnt lgkmcnt(0)")
        r = rl(ks + 1) if ks < 3 else []
        for i, m in enumerate(ml(ks)):
            a(m)
            for x in r[2*i:2*i+2]: a(x)
    a(f"""
    s_cmp_lg_u32 s30, s47
    s_cbranch_scc1 {L}_gskip
    s_barrier
    s_lshl_b32 s36, s35, 6
    s_lshl_b32 s37, s33, 2
    s_add_u32 s36, s36, s37
    s_and_b32 s37, s16, 1
    s_lshl_b32 s37, s37, 1
    s_add_u32 s36, s36, s37
    s_mul_i32 s36, s36, 40
    s_lshl_b32 s37, s34, 3
    s_add_u32 s36, s36, s37
    s_lshr_b32 s37, s16, 1
    s_lshl_b32 s37, s37, 2
    s_add_u32 s36, s36, s37
    s_lshl_b32 s36, s36, 10
    s_add_u32 s36, s36, {WS_B}
    s_add_u32 s37, s36, 40960
    s_nop 7
    """)
    for u in range(4):
        A = 64 + 16*u
        for qp in range(2):
            O = 16 + 4*((2*u+qp) % 8)
            for i in range(4):
                a(f"v_cvt_pk_bf16_f32 v{O+i}, v{A+8*qp+2*i}, v{A+8*qp+2*i+1}")
            a(f"buffer_store_dwordx4 {vr(O,4)}, v2, s[8:11], s{36 + (u>>1)} offen offset:{(u&1)*2048 + qp*1024} sc1")
    a(f"""
    s_branch {L}_gend2
    {L}_gskip:
    s_add_u32 s30, s30, 1
    s_cmp_ge_u32 s30, 10
    s_cbranch_scc1 {L}_gend
    s_cmp_lt_u32 s46, s47
    s_cbranch_scc1 {L}_gw8
    s_waitcnt vmcnt(0)
    {L}_gw8:
    s_waitcnt vmcnt(8)
    s_branch {L}_gloop
    {L}_gend:
    s_barrier
    {L}_gend2:
    v_mov_b32 v22, {NONCE}
    v_mov_b32 v9, 1
    ds_read_b64 v[20:21], v22
    s_lshl_b32 s36, s20, 5
    s_add_u32 s36, s36, s21
    s_lshl_b32 s36, s36, 7
    s_add_u32 s36, s36, {WS_F+F2}
    v_mov_b32 v5, 0
    s_barrier
    s_waitcnt vmcnt(0)
    s_mov_b64 exec, 1
    ds_add_rtn_u32 v9, v22, v9 offset:32
    s_waitcnt lgkmcnt(0)
    v_readfirstlane_b32 s37, v9
    s_cmp_lg_u32 s37, 3
    s_cbranch_scc1 {L}_gsig2
    buffer_store_dwordx2 v[20:21], v5, s[8:11], s36 offen sc1
    {L}_gsig2:
    s_mov_b64 exec, -1
    s_barrier
    """)

    a(f"""
    {L}_p3:
    s_load_dwordx2 s[4:5], s[0:1], 80
    s_lshl_b32 s17, s20, 3
    s_and_b32 s16, s21, 3
    s_lshl_b32 s16, s16, 1
    s_add_u32 s17, s17, s16
    s_lshr_b32 s16, s21, 2
    s_and_b32 s36, s22, 1
    s_lshr_b32 s39, s22, 1
    s_add_u32 s36, s17, s36
    s_mul_i32 s36, s36, 40
    s_mul_i32 s37, s39, 10
    s_add_u32 s36, s36, s37
    s_lshl_b32 s36, s36, 10
    s_add_u32 s36, s36, {WS_O}
    s_add_u32 s37, s36, 4096
    s_add_u32 s38, s36, 8192
    v_lshrrev_b32 v8, 5, v1
    v_bfe_u32 v9, v1, 2, 2
    v_lshl_add_u32 v8, v8, 2, v9
    v_mul_u32_u24 v8, 192, v8
    v_bfe_u32 v9, v1, 4, 1
    v_lshl_add_u32 v8, v9, 5, v8
    v_and_b32 v9, 3, v1
    v_lshl_add_u32 v8, v9, 3, v8
    s_lshl_b32 s48, s39, 2
    s_mul_i32 s49, s39, 30720
    v_add_u32 v8, s49, v8
    v_lshlrev_b32 v7, 3, v1
    v_and_b32 v6, 31, v1
    s_lshl_b32 s39, s17, 5
    v_add_u32 v6, s39, v6
    v_lshrrev_b32 v4, 3, v6
    v_lshlrev_b32 v4, 7, v4
    v_and_b32 v9, 7, v1
    v_lshl_add_u32 v4, v9, 2, v4
    s_mov_b32 s40, {WS_G}
    s_mul_i32 s41, s16, 10
    s_add_u32 s41, s41, s22
    s_lshr_b32 s42, s41, 1
    s_lshl_b32 s42, s42, 10
    s_and_b32 s43, s41, 1
    s_lshl_b32 s43, s43, 3
    s_add_u32 s42, s42, s43
    s_mul_i32 s43, s17, 40960
    s_add_u32 s42, s42, s43
    s_add_u32 s42, s42, {WS_B}
    v_mov_b32 v22, {NONCE}
    s_lshr_b32 s46, s22, 1
    s_lshl_b32 s45, 1, s46
    """)
    a.c("s17 = first row block of the tile, s16 = column group; final items: quad = wave, both row blocks")
    def bg():
        a("buffer_load_dword v140, v4, s[8:11], s40 offen sc1")
        a("buffer_load_dword v141, v4, s[8:11], s40 offen offset:512 sc1")
        for j in range(2):
            for sk in range(3):
                a(f"s_add_u32 s43, s42, {j*40960 + sk*64*40960}")
                a(f"buffer_load_dwordx2 {vr(128+6*j+2*sk,2)}, v2, s[8:11], s43 offen sc1")
    a(f"""
    s_movk_i32 s43, 1280
    v_mul_lo_u32 v6, v6, s43
    v_lshrrev_b32 v9, 5, v1
    v_lshl_add_u32 v6, v9, 3, v6
    s_lshl_b32 s41, s41, 4
    s_add_u32 s44, s41, 40960
    s_waitcnt lgkmcnt(0)
    """)
    srd(a, 12, 4, 5, 2621440)
    for r in range(64, 112): a(f"v_mov_b32 v{r}, 0")
    WF = [112, 144]
    def wr(ks):
        b = WF[ks & 1]
        return [f"ds_read_b64_tr_b16 {vr(b+4*cb+2*t,2)}, v8 offset:{ks*3072 + t*1536 + 64*cb}" for cb in range(3) for t in range(2)]
    a(f"""
    s_mov_b32 s70, {SPIN}
    s_cmp_lg_u32 s22, 8
    s_cbranch_scc1 {L}_p3w
    s_mov_b64 exec, 0xf
    {L}_p3poll:
    buffer_load_dword v24, v3, s[8:11], s35 offen sc1
    s_sub_u32 s70, s70, 1
    s_cselect_b32 s47, -1, 0
    s_waitcnt vmcnt(0)
    v_cmp_eq_u32 vcc, 8, v24
    s_or_b32 s47, s47, vcc_lo
    s_or_b32 s47, s47, 0xfffffff0
    v_mov_b32 v23, s47
    ds_write_b32 v22, v23 offset:8
    s_sleep {E("PSLEEP", "2")}
    s_cmp_lg_u32 s47, -1
    s_cbranch_scc1 {L}_p3poll
    """)
    stamp(a, 6)
    a(f"""
    s_mov_b64 exec, -1
    {L}_p3w:
    ds_read_b64 v[10:11], v22 offset:8
    s_waitcnt lgkmcnt(0)
    v_readfirstlane_b32 s47, v10
    v_readfirstlane_b32 s46, v11
    s_or_b32 s47, s47, 0x10
    s_and_b32 s47, s47, s45
    s_xor_b32 s47, s47, s45
    s_xor_b32 s46, s46, 2
    s_or_b32 s47, s47, s46
    s_cmp_eq_u32 s47, 0
    s_cbranch_scc1 {L}_p3go
    s_sleep 1
    s_branch {L}_p3w
    {L}_p3go:
    s_cmp_lt_u32 s22, 8
    s_cbranch_scc1 {L}_p3m
    """)
    bg()
    a(f"""
    s_branch {L}_p3r
    {L}_p3m:
    """)
    if not E("ES"): stamp(a, 6)
    OF = 24
    for ks in range(10):
        for sl in range(2):
            a(f"buffer_load_dwordx2 {vr(OF+4*ks+2*sl,2)}, v7, s[8:11], s{36+ks//4} offen offset:{(ks%4)*1024+512*sl}{E('OSC', ' sc1')}")
    for x in wr(0): a(x)
    bg()
    for ks in range(10):
        a(f"s_waitcnt vmcnt({26-2*ks}) lgkmcnt(0)")
        r = wr(ks+1) if ks < 9 else []
        b = WF[ks & 1]
        for cb in range(3):
            a(f"{M} {vr(64+16*cb,16)}, {vr(b+4*cb,4)}, {vr(OF+4*ks,4)}, {vr(64+16*cb,16)}")
            for x in r[2*cb:2*cb+2]: a(x)
    a(f"""
    v_add_u32 v23, s48, v22
    v_mov_b32 v9, 1
    s_mov_b64 exec, 1
    ds_add_u32 v23, v9 offset:16
    s_mov_b64 exec, -1
    s_and_b32 s47, s22, 1
    s_mul_i32 s47, s47, 10240
    s_add_u32 s39, s49, s47
    v_add_u32 v5, s39, v2
    {L}_p3pw:
    ds_read_b32 v9, v23 offset:16
    s_waitcnt lgkmcnt(0)
    v_readfirstlane_b32 s47, v9
    s_cmp_lg_u32 s47, 2
    s_cbranch_scc1 {L}_p3pw
    """)
    for q in range(10):
        a(f"ds_write_b128 v5, {vr(64+4*q,4)} offset:{1024*q}")
    a(f"""
    s_waitcnt lgkmcnt(0)
    {L}_p3r:
    """)
    if STAMP:
        a(f"s_cmp_lt_u32 s22, 4\ns_cbranch_scc1 {L}_st4")
        stamp(a, 4)
        a(f"{L}_st4:")
    a(f"""
    s_lshl_b32 s39, s22, 10
    v_add_u32 v5, s39, v2
    v_add_u32 v7, 61440, v5
    s_barrier
    """)
    for j in range(2):
        for kq in range(4):
            a(f"ds_read_b128 {vr(16+16*j+4*kq,4)}, v{5 if kq < 2 else 7} offset:{j*10240 + (kq%2)*30720}")
    a("s_waitcnt vmcnt(0)")
    for j in range(2):
        a(f"""
        v_sub_f32 v{142+j}, 1.0, v{140+j}
        v_cvt_pk_bf16_f32 v{142+j}, v{142+j}, v{142+j}
        v_lshlrev_b32 v{142+j}, 16, v{142+j}
        """)
        B = 128 + 6*j
        for i in range(4):
            ex = (lambda d, r: f"v_lshlrev_b32 v{d}, 16, v{r}") if i % 2 == 0 else (lambda d, r: f"v_and_b32 v{d}, 0xffff0000, v{r}")
            a(f"""
            {ex(56+4*j+i, B + i//2)}
            {ex(55, B + 2 + i//2)}
            v_add_f32 v{56+4*j+i}, v{56+4*j+i}, v55
            {ex(55, B + 4 + i//2)}
            v_add_f32 v{56+4*j+i}, v{56+4*j+i}, v55
            """)
    a("s_waitcnt lgkmcnt(0)")
    for j in range(2):
        P = 16 + 16*j
        for i in range(4):
            a(f"""
            v_add_f32 v{P+i}, v{P+i}, v{P+4+i}
            v_add_f32 v{P+8+i}, v{P+8+i}, v{P+12+i}
            v_add_f32 v{P+i}, v{P+i}, v{P+8+i}
            v_mul_f32 v{P+i}, v{140+j}, v{P+i}
            v_fmac_f32 v{P+i}, v{142+j}, v{56+4*j+i}
            """)
        a(f"""
        v_cvt_pk_bf16_f32 v{P}, v{P}, v{P+1}
        v_cvt_pk_bf16_f32 v{P+1}, v{P+2}, v{P+3}
        buffer_store_dwordx2 {vr(P,2)}, v6, s[12:15], s{41 if j == 0 else 44} offen
        """)
    stamp_out(a, 7, 0)
    a(f"{L}_end:")
    a("s_endpgm")
    kernel_desc(a, name, 160, 100)
```

```python
from common import *
import math
from k2 import (M, QA1, QA2, QB1, QB2, KVB, SA, SB, OA, OB, PA, PB, split3, exp_groups, pv, CH)
def qk(Sd, kb, q1, q2):
    return [f"{M} {vr(Sd,16)}, {vr(kb,4)}, {vr(q1,4)}, 0",
            f"v_mfma_f32_32x32x8_bf16 {vr(Sd,16)}, {vr(kb+4,2)}, {vr(q2,2)}, {vr(Sd,16)}"]
LOG2E = 1.4426950408889634
QSCALE = LOG2E / math.sqrt(20.0)
E = os.environ.get
XSL = 32768
WB = 3 * XSL
WSL = 10240
QST = WB
KVR = 163840 - 3 * CH
GSL = 32768
NONCE = 122880
BREG = True
F_LDS = 163840
F_BLOCK = 640
SPIN = int(E("SPIN", 1 << 16))
SC = " sc1"
SCL = E('SCL', ' sc1')

_pc = [0]
def poll(a, L, voff, soff):
    _pc[0] += 1
    T = f"{L}_poll{_pc[0]}"
    a(f"""
    s_mov_b32 s70, {SPIN}
    {T}:
    buffer_load_dwordx2 v[24:25], {voff}, s[8:11], {soff} offen sc1
    s_sub_u32 s70, s70, 1
    s_cbranch_scc1 {T}_ok
    s_waitcnt vmcnt(0)
    v_cmp_ne_u64 vcc, v[24:25], v[20:21]
    s_cmp_eq_u64 vcc, 0
    s_cbranch_scc1 {T}_ok
    s_sleep {E("PSLEEP", "2")}
    s_branch {T}
    {T}_ok:
    """)

def flag(a, soff):
    a(f"""
    s_mov_b64 exec, 1
    buffer_store_dwordx2 v[20:21], v5, s[8:11], {soff} offen sc1
    s_mov_b64 exec, -1
    """)

def aslot(a, S, P, mf, pre=(), rd=None):
    g = exp_groups(S, P)
    flat = [x for gg in g for x in gg]
    pos = [int(x) for x in E("MPOS", "0,5,11,17").split(",")]
    for p in pre: a(p)
    k = 0
    for i, x in enumerate(flat):
        while k < 4 and pos[k] == i:
            a(mf[k])
            if rd: a(rd[k])
            k += 1
        a(x)

def gen(a, name):
    kernel_head(a, name)
    L = name
    a(f"""
    s_cmp_ge_u32 s2, 256
    s_cbranch_scc1 {L}_end
    s_load_dwordx8 s[4:11], s[0:1], 0
    s_load_dwordx4 s[12:15], s[0:1], 48
    s_load_dwordx2 s[18:19], s[0:1], 96
    """)
    stamp(a, 0)
    a(f"""
    v_lshrrev_b32 v2, 6, v0
    v_and_b32 v1, 63, v0
    v_readfirstlane_b32 s22, v2
    s_and_b32 s47, s2, 7
    s_lshr_b32 s51, s2, 3
    s_and_b32 s20, s47, 1
    s_lshl_b32 s20, s20, 2
    s_and_b32 s67, s51, 3
    s_add_u32 s20, s20, s67
    s_lshr_b32 s21, s47, 1
    s_lshr_b32 s68, s51, 2
    s_lshl_b32 s52, s68, 2
    s_add_u32 s21, s21, s52
    s_cmp_lt_u32 s22, 8
    s_cbranch_scc1 {L}_comp
    """)
    a.c("s20 = row group (256 rows), s21 = cg = head = column group, s22 = wave; kept for the whole kernel, as is s[18:19]")
    a(f"""
    s_and_b32 s63, s22, 1
    v_lshrrev_b32 v10, 3, v1
    v_lshrrev_b32 v11, 4, v1
    v_and_b32 v12, 7, v1
    v_xor_b32 v12, v12, v11
    v_xor_b32 v11, 4, v12
    s_movk_i32 s54, 1280
    v_mul_u32_u24 v10, s54, v10
    v_lshl_add_u32 v15, v11, 4, v10
    v_lshl_add_u32 v10, v12, 4, v10
    s_mul_i32 s53, s20, {256*1280}
    s_mul_i32 s55, s63, {64*1280}
    s_add_u32 s53, s53, s55
    """)
    for i in range(8):
        a(f"s_add_u32 s55, s53, {i*10240 - 1024*(i&3) + 4096}")
        a(f"v_add_u32 v{2+i}, s55, v{15 if i & 1 else 10}")
    a(f"""
    s_add_u32 s52, s67, s68
    s_and_b32 s52, s52, 3
    s_mul_i32 s52, s52, 5
    s_lshr_b32 s52, s52, 1
    s_lshl_b32 s41, s52, 7
    s_lshl_b32 s48, s63, 13
    s_mov_b32 m0, s48
    s_waitcnt lgkmcnt(0)
    s_sub_u32 s24, s4, 4096
    s_subb_u32 s25, s5, 0
    s_and_b32 s25, s25, 0xffff
    s_mov_b32 s26, {2621440+4096}
    s_mov_b32 s27, 0x20000
    """)
    a.c("x voffsets carry +4096 so that they stay non negative; the SRD base carries -4096")
    def xdma(so):
        a(f"""
        buffer_load_dwordx4 v2, s[24:27], {so} offen lds
        buffer_load_dwordx4 v3, s[24:27], {so} offen offset:1024 lds
        buffer_load_dwordx4 v4, s[24:27], {so} offen offset:2048 lds
        buffer_load_dwordx4 v5, s[24:27], {so} offen offset:3072 lds
        s_add_u32 m0, m0, 4096
        s_nop 0
        buffer_load_dwordx4 v6, s[24:27], {so} offen lds
        buffer_load_dwordx4 v7, s[24:27], {so} offen offset:1024 lds
        buffer_load_dwordx4 v8, s[24:27], {so} offen offset:2048 lds
        buffer_load_dwordx4 v9, s[24:27], {so} offen offset:3072 lds
        """)
    xdma("s41")
    a(f"""
    v_lshrrev_b32 v13, 3, v1
    s_movk_i32 s62, 3456
    v_mul_u32_u24 v13, s62, v13
    v_and_b32 v14, 7, v1
    v_bfe_u32 v15, v1, 4, 1
    v_lshlrev_b32 v15, 2, v15
    v_xor_b32 v14, v14, v15
    v_lshl_add_u32 v13, v14, 4, v13
    s_lshl_b32 s53, s21, 7
    v_add_u32 v10, s53, v13
    v_add_u32 v11, {8*3456-1024}, v10
    v_add_u32 v12, {2*(8*3456-1024)}, v10
    v_add_u32 v13, {3*(8*3456-1024)}, v10
    v_lshrrev_b32 v14, 2, v1
    v_mul_u32_u24 v14, s54, v14
    v_and_b32 v15, 3, v1
    v_lshl_add_u32 v14, v15, 4, v14
    s_mul_i32 s53, s21, 40
    s_mul_i32 s55, s63, {16*1280}
    s_add_u32 s53, s53, s55
    v_add_u32 v14, s53, v14
    v_lshlrev_b32 v15, 4, v1
    s_cmp_eq_u32 s63, 1
    s_cselect_b32 s28, s14, s12
    s_cselect_b32 s29, s15, s13
    s_and_b32 s29, s29, 0xffff
    s_mov_b32 s30, 2211840
    s_mov_b32 s31, 0x20000
    s_mov_b32 s32, s6
    s_and_b32 s33, s7, 0xffff
    s_mov_b32 s34, 819200
    s_mov_b32 s35, 0x20000
    s_cmp_eq_u32 s21, 27
    s_cselect_b32 s36, s8, s10
    s_cselect_b32 s37, s9, s11
    s_and_b32 s37, s37, 0xffff
    s_sub_u32 s53, s21, 27
    s_cmp_lt_u32 s53, 2
    s_cselect_b32 s38, 25600, 0
    s_mov_b32 s39, 0x20000
    s_lshl_b32 s52, s52, 1
    s_mul_i32 s42, s52, {32*3456}
    s_mul_i32 s43, s52, {32*1280}
    s_mul_i32 s40, s52, 1280
    s_lshl_b32 s51, s63, 10
    s_add_u32 s40, s40, s51
    s_lshl_b32 s49, s63, 12
    s_add_u32 s49, s49, {WB}
    s_add_u32 s50, s51, {WB+8192}
    s_add_u32 s56, s51, {WB}
    s_add_u32 s45, s48, 16384
    s_add_u32 s54, s41, 163840
    s_mov_b32 s44, 0
    s_mov_b32 s46, 0
    s_mov_b32 s58, 2
    {"s_mov_b32 s26, 0" if "x" in E("NULLD", "") else ""}
    {"s_mov_b32 s30, 0" if "w" in E("NULLD", "") else ""}
    {"s_mov_b32 s34, 0" if "q" in E("NULLD", "") else ""}
    s_cmp_ge_u32 s21, 27
    s_cbranch_scc1 {L}_ldl_issue
    """)
    a.c("s45/s54 next x half (lds, soffset), s41 k byte offset of the pair, s42 W, s43 wq, s40 wk/wv soffsets, s44 W slot")
    for tag, D in (("ldf", 13), ("ldl", 10)):
        a(f"""
        {L}_{tag}_issue:
        s_mov_b32 m0, s45
        s_add_u32 s46, s46, 1
        """)
        xdma("s54")
        if tag == "ldf":
            a(f"""
            s_add_u32 m0, s44, s49
            s_add_u32 s45, s45, 16384
            buffer_load_dwordx4 v10, s[28:31], s42 offen lds
            buffer_load_dwordx4 v11, s[28:31], s42 offen offset:1024 lds
            buffer_load_dwordx4 v12, s[28:31], s42 offen offset:2048 lds
            buffer_load_dwordx4 v13, s[28:31], s42 offen offset:3072 lds
            """)
        else:
            a(f"""
            s_add_u32 m0, s44, s56
            s_add_u32 s45, s45, 16384
            buffer_load_dwordx4 v15, s[36:39], s40 offen lds
            """)
        a(f"""
        s_add_u32 m0, s44, s50
        s_add_u32 s42, s42, {32*3456}
        buffer_load_dwordx4 v14, s[32:35], s43 offen lds
        s_add_u32 s43, s43, {32*1280}
        s_add_u32 s40, s40, 1280
        s_cmp_eq_u32 s43, 819200
        s_cselect_b32 s42, 0, s42
        s_cselect_b32 s43, 0, s43
        s_cselect_b32 s40, s51, s40
        s_add_u32 s44, s44, {WSL}
        s_cmp_ge_u32 s44, {4*WSL}
        s_cselect_b32 s44, 0, s44
        s_cmp_ge_u32 s45, {WB}
        s_cselect_b32 s45, s48, s45
        s_add_u32 s52, s41, 128
        s_cmp_eq_u32 s52, 1280
        s_cselect_b32 s52, 0, s52
        s_add_u32 s53, s41, 163840
        s_bitcmp1_b32 s46, 0
        s_cselect_b32 s41, s52, s41
        s_cselect_b32 s54, s52, s53
        s_cmp_eq_u32 s46, 19
        s_cselect_b32 s26, 0, s26
        s_cmp_lt_u32 s46, s58
        s_cbranch_scc1 {L}_{tag}_issue
        s_waitcnt vmcnt({D})
        s_barrier
        s_add_u32 s58, s58, 1
        s_cmp_le_u32 s58, 20
        s_cbranch_scc1 {L}_{tag}_issue
        """)
        if tag == "ldf": a(f"s_branch {L}_ld_tail")
    a(f"""
    {L}_ld_tail:
    s_load_dwordx2 s[4:5], s[0:1], 32
    s_load_dwordx2 s[6:7], s[0:1], 88
    v_mov_b32 v5, 0
    s_waitcnt vmcnt(0) lgkmcnt(0)
    s_barrier
    global_load_dwordx2 v[20:21], v5, s[6:7] sc0 sc1
    s_barrier
    """)
    srd(a, 8, 18, 19, WS_SIZE)
    srd(a, 12, 18, 19, WS_KV + 64*3072)
    a(f"""
    v_lshlrev_b32 v2, 4, v1
    v_lshlrev_b32 v3, 7, v1
    s_mov_b32 s70, {SPIN}
    s_branch {L}_l_non2
    {L}_l_non:
    global_load_dwordx2 v[20:21], v5, s[6:7] sc0 sc1
    {L}_l_non2:
    s_sub_u32 s70, s70, 1
    s_cbranch_scc1 {L}_l_non3
    s_waitcnt vmcnt(0)
    v_cmp_ne_u32 vcc, 0, v20
    s_cmp_eq_u64 vcc, 0
    s_cbranch_scc1 {L}_l_non
    {L}_l_non3:
    s_lshl_b32 s33, s20, 5
    s_add_u32 s33, s33, s21
    s_lshl_b32 s34, s33, 7
    s_add_u32 s34, s34, {WS_F}
    s_lshl_b32 s35, s20, 12
    s_add_u32 s35, s35, {WS_F}
    s_sub_u32 s53, s21, 27
    s_cmp_ge_u32 s53, 2
    s_cbranch_scc1 {L}_l_nokv
    s_barrier
    s_cmp_lg_u32 s63, 0
    s_cbranch_scc1 {L}_l_nokv
    s_lshl_b32 s52, s20, 1
    s_add_u32 s52, s52, s53
    s_lshl_b32 s52, s52, 7
    s_add_u32 s52, s52, {WS_F+FQ}
    """)
    flag(a, "s52")
    a(f"""
    {L}_l_nokv:
    s_cmp_lt_u32 s21, 27
    s_cbranch_scc1 {L}_l_now
    s_cmp_eq_u32 s63, 0
    s_cbranch_scc1 {L}_l_now
    s_load_dwordx2 s[16:17], s[0:1], 64
    s_mul_i32 s52, s20, 5
    s_add_u32 s52, s52, s53
    s_mul_i32 s52, s52, {7*8192}
    s_waitcnt lgkmcnt(0)
    s_mov_b32 s56, s16
    s_and_b32 s57, s17, 0xffff
    s_mov_b32 s58, 2211840
    s_mov_b32 s59, 0x20000
    s_mov_b32 s54, 7
    {L}_l_warm:
    buffer_load_dword v31, v3, s[56:59], s52 offen
    s_add_u32 s52, s52, 8192
    s_sub_u32 s54, s54, 1
    s_cmp_lg_u32 s54, 0
    s_cbranch_scc1 {L}_l_warm
    {L}_l_now:
    s_mul_i32 s24, s63, 6144
    s_add_u32 s30, s24, {WS_KV}
    s_add_u32 s31, s30, 4096
    s_add_u32 s24, s24, {KVR}
    s_mov_b32 s25, {CH}
    s_mov_b32 s52, {WS_F+FQ}
    s_mov_b64 exec, 0xffff
    """)
    a.c("s34 = own flag line, s35 = flag lines of this row group; s30/s31 kv source, s24 + s25 kv destination")
    stamp(a, 1)
    poll(a, L, "v3", "s52")
    a("s_mov_b64 exec, -1")
    stamp(a, 2)
    def kv():
        a(f"""
        s_add_u32 m0, s25, s24
        s_add_u32 s25, s25, {CH}
        buffer_load_dwordx4 v2, s[12:15], s30 offen{SCL} lds
        buffer_load_dwordx4 v2, s[12:15], s30 offen offset:1024{SCL} lds
        buffer_load_dwordx4 v2, s[12:15], s30 offen offset:2048{SCL} lds
        buffer_load_dwordx4 v2, s[12:15], s30 offen offset:3072{SCL} lds
        s_add_u32 m0, m0, 4096
        s_add_u32 s30, s30, {CH}
        buffer_load_dwordx4 v2, s[12:15], s31 offen{SCL} lds
        buffer_load_dwordx4 v2, s[12:15], s31 offen offset:1024{SCL} lds
        s_add_u32 s31, s31, {CH}
        s_cmp_ge_u32 s25, {3*CH}
        s_cselect_b32 s25, 0, s25
        """)
    a(f"""
    s_mov_b32 m0, {QST+6144}
    s_mov_b32 s52, {WS_KV+1024+63*8+4}
    v_mul_u32_u24 v6, 3072, v1
    buffer_load_dword v6, s[8:11], s52 offen{SCL} lds
    """)
    kv(); kv()
    a(f"""
    s_lshr_b32 s38, s21, 2
    s_mul_i32 s38, s38, 160
    s_movk_i32 s39, 5462
    s_movk_i32 s40, 1280
    """)
    for i in range(3):
        a(f"""
        v_add_u32 v6, {64*i}, v1
        v_mul_u32_u24 v7, s39, v6
        v_lshrrev_b32 v7, 16, v7
        v_mul_u32_u24 v8, 12, v7
        v_sub_u32 v8, v6, v8
        v_mul_u32_u24 v7, s40, v7
        v_lshl_add_u32 v7, v8, 4, v7
        v_add_u32 v7, s38, v7
        v_subrev_u32 v{10+i}, {1024*i}, v7
        """)
    srd(a, 40, 4, 5, 819200)
    a(f"""
    s_mul_i32 s44, s63, {20*20480}
    s_mul_i32 s45, s63, {20*3072}
    s_waitcnt vmcnt(6)
    """)
    stamp(a, 3)
    a("s_barrier")
    def bar_kv():
        a("s_waitcnt vmcnt(0)")
        a("s_barrier")
        kv()
    bar_kv()
    a(f"""
    s_cmp_eq_u32 s63, 1
    s_cbranch_scc1 {L}_gate
    s_lshl_b32 s52, s2, 6
    v_add_u32 v6, s52, v1
    v_lshlrev_b32 v6, 7, v6
    buffer_load_dword v30, v6, s[40:43], 0 offen
    v_mov_b32 v6, {NONCE}
    ds_write_b64 v6, v[20:21]
    v_mov_b32 v8, 0
    v_mov_b32 v9, 0
    ds_write_b64 v6, v[8:9] offset:8
    ds_write_b64 v6, v[8:9] offset:16
    ds_write_b64 v6, v[8:9] offset:24
    s_waitcnt vmcnt(1) lgkmcnt(0)
    s_barrier
    """)
    a.c("B1 passed: every wave has drained its h stores")
    flag(a, "s34")
    kv()
    a(f"""
    s_waitcnt vmcnt(0)
    s_branch {L}_gate_done
    {L}_gate:
    s_load_dwordx2 s[16:17], s[0:1], 72
    s_load_dwordx2 s[4:5], s[0:1], 0
    v_and_b32 v16, 7, v1
    v_lshlrev_b32 v16, 4, v16
    v_lshrrev_b32 v17, 3, v1
    s_lshl_b32 s53, s33, 3
    v_add_u32 v18, s53, v17
    s_movk_i32 s54, 1280
    v_mul_lo_u32 v17, v18, s54
    v_add_u32 v17, v17, v16
    s_waitcnt lgkmcnt(0)
    """)
    srd(a, 56, 4, 5, 2621440)
    srd(a, 68, 16, 17, 1280)
    for j in range(10):
        a(f"buffer_load_dwordx4 {vr(72+4*j,4)}, v17, s[56:59], 0 offen offset:{128*j}")
    for j in range(10):
        a(f"buffer_load_dwordx4 {vr(32+4*j,4)}, v16, s[68:71], 0 offen offset:{128*j}")
    a(f"""
    v_lshrrev_b32 v19, 3, v1
    v_lshlrev_b32 v19, 2, v19
    v_mov_b32 v27, {f32(-LOG2E)}
    v_mov_b32 v26, 0
    v_mov_b32 v28, 0
    s_waitcnt vmcnt(20)
    s_barrier
    """)
    kv()
    a("s_waitcnt vmcnt(6)")
    for i in range(0, 40, 2):
        a(f"v_dot2_f32_bf16 v26, v{72+i}, v{32+i}, v26")
        a(f"v_dot2_f32_bf16 v28, v{73+i}, v{33+i}, v28")
    a(f"""
    s_nop 3
    v_add_f32 v26, v26, v28
    s_nop 1
    v_add_f32_dpp v26, v26, v26 quad_perm:[1,0,3,2] row_mask:0xf bank_mask:0xf
    s_nop 1
    v_add_f32_dpp v26, v26, v26 quad_perm:[2,3,0,1] row_mask:0xf bank_mask:0xf
    s_nop 1
    v_add_f32_dpp v26, v26, v26 row_half_mirror row_mask:0xf bank_mask:0xf
    v_cvt_pk_bf16_f32 v26, v26, v26
    v_lshlrev_b32 v26, 16, v26
    v_mul_f32 v26, v27, v26
    v_exp_f32 v26, v26
    s_nop 0
    v_add_f32 v26, 1.0, v26
    v_rcp_f32 v26, v26
    s_nop 0
    v_cvt_pk_bf16_f32 v26, v26, v26
    v_lshlrev_b32 v28, 16, v26
    s_lshl_b32 s53, s33, 7
    s_add_u32 s53, s53, {WS_G}
    v_cmp_eq_u32 vcc, 0, v16
    s_nop 1
    s_mov_b64 exec, vcc
    buffer_store_dword v28, v19, s[8:11], s53 offen sc1
    s_mov_b64 exec, -1
    s_waitcnt vmcnt(1)
    {L}_gate_done:
    s_barrier
    """)
    kv()
    a(f"""
    s_cmp_eq_u32 s63, 1
    s_cbranch_scc1 {L}_l_np
    """)
    a("s_mov_b64 exec, 0x7ffffff")
    poll(a, L, "v3", "s35")
    a(f"""
    s_mov_b64 exec, -1
    {L}_l_np:
    s_mov_b32 s46, 3
    {L}_lloop:
    """)
    bar_kv()
    a(f"""
    s_add_u32 s46, s46, 1
    s_cmp_lt_u32 s46, 14
    s_cbranch_scc1 {L}_lloop
    s_add_u32 s34, s34, {F2}
    s_add_u32 s35, s35, {F2}
    """)
    a.c("barrier 13 passed: G waves are done with their ring")
    def wo(n, tag):
        a(f"""
        s_mov_b32 s47, {n}
        {L}_wo{tag}:
        s_mov_b32 m0, s45
        s_add_u32 s45, s45, 3072
        buffer_load_dwordx4 v10, s[40:43], s44 offen lds
        buffer_load_dwordx4 v11, s[40:43], s44 offen offset:1024 lds
        buffer_load_dwordx4 v12, s[40:43], s44 offen offset:2048 lds
        s_add_u32 s44, s44, 20480
        s_sub_u32 s47, s47, 1
        s_cmp_lg_u32 s47, 0
        s_cbranch_scc1 {L}_wo{tag}
        """)
    wo(8, "a")
    a("s_waitcnt vmcnt(24)")
    a("s_barrier")
    a(f"s_cmp_lg_u32 s63, 0\ns_cbranch_scc1 {L}_l_nf2")
    flag(a, "s34")
    a(f"{L}_l_nf2:")
    wo(8, "b")
    a("s_barrier")
    wo(4, "c")
    a(f"s_cmp_eq_u32 s63, 0\ns_cbranch_scc1 {L}_l_np2")
    a("s_mov_b32 exec_hi, 0")
    poll(a, L, "v3", "s35")
    a(f"{L}_l_np2:")
    a(f"""
    s_mov_b64 exec, 1
    v_mov_b32 v22, {NONCE}
    v_mov_b32 v9, 1
    s_waitcnt vmcnt(0)
    ds_add_u32 v22, v9 offset:12
    s_mov_b64 exec, -1
    s_and_b32 s52, s21, 3
    s_lshl_b32 s52, s52, 9
    s_add_u32 s35, s35, s52
    s_add_u32 s35, s35, {F3-F2}
    s_branch {L}_p3
    """)

    a(f"""
    {L}_comp:
    s_and_b32 s63, s22, 3
    s_lshr_b32 s64, s22, 2
    v_and_b32 v13, 31, v1
    v_lshrrev_b32 v14, 5, v1
    v_bfe_u32 v15, v1, 1, 3
    v_xor_b32 v2, v14, v15
    v_lshlrev_b32 v2, 4, v2
    v_lshl_add_u32 v2, v13, 7, v2
    s_lshl_b32 s52, s63, 13
    s_lshl_b32 s53, s64, 12
    s_add_u32 s52, s52, s53
    v_add_u32 v2, s52, v2
    v_xor_b32 v3, 32, v2
    v_xor_b32 v4, 64, v2
    v_xor_b32 v5, 96, v2
    v_bfe_u32 v15, v1, 2, 2
    v_lshlrev_b32 v7, 3, v14
    v_add_u32 v7, v7, v15
    v_mul_u32_u24 v9, 40, v7
    v_lshlrev_b32 v8, 6, v7
    v_lshlrev_b32 v7, 7, v7
    v_lshrrev_b32 v16, 1, v15
    v_xor_b32 v16, s64, v16
    v_lshl_add_u32 v7, v16, 6, v7
    v_bfe_u32 v16, v1, 4, 1
    v_and_b32 v17, 3, v1
    v_lshlrev_b32 v16, 5, v16
    v_lshl_add_u32 v16, v17, 3, v16
    v_add_u32 v7, v7, v16
    v_add_u32 v8, v8, v16
    v_add_u32 v9, v9, v16
    v_add_u32 v7, {WB}, v7
    v_add_u32 v8, {WB+8192}, v8
    v_add_u32 v9, {WB}, v9
    s_mov_b32 s44, 0
    s_mov_b32 s45, 0
    s_mov_b32 s46, 0
    """)
    a.c("v2..v5 x frag addr (row block 2rp+cp) for the 4 k steps of a pair; v7 W, v8 wq slice, v9 wk/wv slice addr; s63=rp s64=cp")
    for r in range(64, 144):
        a(f"v_mov_b32 v{r}, 0")
    a("s_waitcnt lgkmcnt(0)")
    srd(a, 8, 18, 19, WS_SIZE)
    a(f"""
    s_or_b32 s52, s22, s2
    s_cmp_lg_u32 s52, 0
    s_cbranch_scc1 {L}_nonon
    s_load_dwordx2 s[52:53], s[0:1], 88
    s_memrealtime s[54:55]
    v_mov_b32 v148, 0
    s_waitcnt lgkmcnt(0)
    s_or_b32 s54, s54, 1
    v_mov_b32 v144, s54
    v_mov_b32 v145, s55
    s_mov_b64 exec, 1
    global_store_dwordx2 v148, v[144:145], s[52:53] sc0 sc1
    s_mov_b64 exec, -1
    {L}_nonon:
    s_lshr_b32 s52, s21, 4
    s_xor_b32 s53, s22, 1
    s_or_b32 s52, s52, s53
    s_cmp_lg_u32 s52, 0
    s_cbranch_scc1 {L}_noin
    s_lshl_b32 s52, s20, 5
    s_add_u32 s52, s52, s21
    s_lshl_b32 s52, s52, 7
    s_add_u32 s52, s52, {WS_F+F3}
    s_mov_b64 exec, 1
    buffer_store_dword v64, v64, s[8:11], s52 offen sc1
    s_mov_b64 exec, -1
    {L}_noin:
    """)
    if E("CPF", "1") == "1":
        a(f"""
        s_lshr_b32 s52, s2, {3 + int(E("CPFS", "0"))}
        s_xor_b32 s53, s22, 2
        s_or_b32 s52, s52, s53
        s_cmp_lg_u32 s52, 0
        s_cbranch_scc1 {L}_nocpf
        s_getpc_b64 s[52:53]
        {L}_pc:
        s_sub_u32 s52, s52, {L}_pc-{L}
        s_subb_u32 s53, s53, 0
        v_lshlrev_b32 v144, 7, v1
        global_load_dword v145, v144, s[52:53]
        v_add_u32 v144, 8192, v144
        v_cmp_gt_u32 vcc, {L}_end-{L}, v144
        s_nop 1
        s_mov_b64 exec, vcc
        global_load_dword v145, v144, s[52:53]
        s_mov_b64 exec, -1
        {L}_nocpf:
        """)
    a(f"""
    s_cmp_eq_u32 s21, 27
    s_cbranch_scc1 {L}_modeK
    s_cmp_eq_u32 s21, 28
    s_cbranch_scc1 {L}_modeV
    s_cmp_gt_u32 s21, 28
    s_cbranch_scc1 {L}_modeQ
    """)
    XA = [16, 36]
    XC = [56, 57, 58, 59]
    XD = [60, 61, 62, 63]
    def xaddrs(full):
        l = [f"v_add_u32 v{XC[j]}, s45, v{2+j}" for j in range(4)]
        if full: l += [f"v_xor_b32 v{XD[j]}, 4096, v{XC[j]}" for j in range(4)]
        return l + [f"s_add_u32 s45, s45, {XSL}", f"s_cmp_ge_u32 s45, {WB}", "s_cselect_b32 s45, 0, s45"]
    def waddrs(mode):
        l = ["v_add_u32 v12, s44, v8"]
        if mode == 0: l.append("v_add_u32 v11, s44, v7")
        if mode in (1, 2): l.append("v_add_u32 v11, s44, v9")
        return l + [f"s_add_u32 s44, s44, {WSL}", f"s_cmp_ge_u32 s44, {4*WSL}", "s_cselect_b32 s44, 0, s44"]
    def read_list(j, mode):
        ks = j & 1
        b = XA[ks]
        l = [f"ds_read_b128 {vr(b,4)}, v{XC[j]}"]
        if mode == 0:
            l += [f"ds_read_b64_tr_b16 {vr(b+8,2)}, v11 offset:{ks*2048}",
                  f"ds_read_b64_tr_b16 {vr(b+10,2)}, v11 offset:{ks*2048+512}",
                  f"ds_read_b64_tr_b16 {vr(b+12,2)}, v11 offset:{4096+ks*2048}",
                  f"ds_read_b64_tr_b16 {vr(b+14,2)}, v11 offset:{4096+ks*2048+512}",
                  f"ds_read_b128 {vr(b+4,4)}, v{XD[j]}"]
        if mode in (1, 2):
            l += [f"ds_read_b64_tr_b16 {vr(b+8,2)}, v11 offset:{ks*640}",
                  f"ds_read_b64_tr_b16 {vr(b+10,2)}, v11 offset:{ks*640+160}"]
        l += [f"ds_read_b64_tr_b16 {vr(b+16,2)}, v12 offset:{ks*1024}",
              f"ds_read_b64_tr_b16 {vr(b+18,2)}, v12 offset:{ks*1024+256}"]
        return l
    def mfma_list(ks, mode):
        b = XA[ks]
        x0, x1, wg, wu, ws = vr(b,4), vr(b+4,4), vr(b+8,4), vr(b+12,4), vr(b+16,4)
        l = []
        if mode == 0:
            l = [f"{M} v[64:79], {wg}, {x0}, v[64:79]", f"{M} v[80:95], {wu}, {x0}, v[80:95]",
                 f"{M} v[96:111], {wg}, {x1}, v[96:111]", f"{M} v[112:127], {wu}, {x1}, v[112:127]"]
        if mode == 1: l = [f"{M} v[64:79], {wg}, {x0}, v[64:79]"]
        if mode == 2: l = [f"{M} v[64:79], {x0}, {wg}, v[64:79]"]
        l = l + [f"{M} v[128:143], {ws}, {x0}, v[128:143]"]
        if E("HACK16", "0") == "1" and mode == 0:
            import re
            l2 = []
            for m in l:
                b0 = int(re.search(r"v\[(\d+):", m).group(1)); ops = m.split(", ")
                t = f"v_mfma_f32_16x16x32_bf16 {{d}}, {ops[1]}, {ops[2]}, {{d}}"
                l2.append(t.format(d=vr(b0+8*ks,4)) + "\n" + t.format(d=vr(b0+8*ks+4,4)))
            l = l2
        return l
    def half(ml, rl, post):
        n = len(ml)
        if n == 5 and E("P1V", "1") == "1":
            a("s_waitcnt lgkmcnt(2)")
            cuts = [int(x) for x in E("P1CUT", "3,6,8,8").split(",")]
            lo = 0
            for i, m in enumerate(ml):
                if i == 4: a("s_waitcnt lgkmcnt(8)")
                a(m)
                if i < 4:
                    for x in rl[lo:cuts[i]]: a(x)
                    lo = cuts[i]
                if i == 3:
                    for x in post: a(x)
            return
        a("s_waitcnt lgkmcnt(0)")
        per = -(-len(rl) // max(n - 1, 1))
        for i, m in enumerate(ml):
            a(m)
            if n == 1:
                for x in rl + post: a(x)
                continue
            for x in rl[per*i:per*i+per]: a(x)
            if i == n - 2:
                for x in post: a(x)
    for mode, tag in ((0, "full"), (1, "modeK"), (2, "modeV"), (3, "modeQ")):
        a(f"{L}_{tag}:")
        for x in xaddrs(mode == 0) + waddrs(mode): a(x)
        a("s_barrier")
        for x in read_list(0, mode): a(x)
        stamp(a, 1)
        if mode == 0: a(".p2align 6")
        a(f"{L}_{tag}_loop:")
        half(mfma_list(0, mode), read_list(1, mode), waddrs(mode))
        a("s_barrier")
        half(mfma_list(1, mode), read_list(2, mode), [])
        half(mfma_list(0, mode), read_list(3, mode), waddrs(mode) + xaddrs(mode == 0))
        a("s_barrier")
        half(mfma_list(1, mode), read_list(0, mode), ["s_add_u32 s46, s46, 1", "s_cmp_lt_u32 s46, 10"])
        a(f"s_cbranch_scc1 {L}_{tag}_loop")
        stamp(a, 2)
        a(f"""
        s_lshl_b32 s52, s20, 3
        s_lshl_b32 s53, s63, 1
        s_add_u32 s52, s52, s53
        s_add_u32 s52, s52, s64
        v_lshlrev_b32 v2, 4, v1
        """)
        a(f"s_branch {L}_epi{mode}")
    a.c("s52 = global row block of acc set 0 and of the q chain (set 1 is s52 ^ 1)")
    EK = 64
    a(f"""
    {L}_epi1:
    s_mul_i32 s53, s52, 3072
    s_add_u32 s53, s53, {WS_KV}
    s_nop 7
    s_waitcnt lgkmcnt(0)
    """)
    for i in range(4): a(f"v_cvt_pk_bf16_f32 v{20+i}, v{EK+2*i}, v{EK+2*i+1}")
    a(f"buffer_store_dwordx4 v[20:23], v2, s[8:11], s53 offen{SC}")
    a(f"v_cvt_pk_bf16_f32 v24, v{EK+8}, v{EK+9}")
    a(f"v_cvt_pk_bf16_f32 v25, v{EK+10}, v{EK+11}")
    a("v_mov_b32 v26, 0x3f803f80")
    a("v_mov_b32 v27, 0x00003f80")
    a(f"v_mul_f32 v30, v{EK}, v{EK}")
    for i in range(1, 8): a(f"v_fmac_f32 v30, v{EK+i}, v{EK+i}")
    a(f"v_mul_f32 v31, v{EK+8}, v{EK+8}")
    for i in range(9, 12): a(f"v_fmac_f32 v31, v{EK+i}, v{EK+i}")
    a(f"""
    v_cmp_gt_u32 vcc, 32, v1
    s_nop 1
    v_cndmask_b32 v31, 0, v31, vcc
    v_add_f32 v30, v30, v31
    v_mov_b32 v31, v30
    s_nop 1
    v_permlane32_swap_b32 v30, v31
    s_nop 1
    v_add_f32 v30, v30, v31
    """)
    for sh in (1, 2, 4, 8):
        a("s_nop 1")
        a(f"v_max_f32_dpp v30, v30, v30 row_shr:{sh} row_mask:0xf bank_mask:0xf")
    a(f"""
    s_nop 1
    v_max_f32_dpp v30, v30, v30 row_bcast:15 row_mask:0xa bank_mask:0xf
    v_cmp_eq_u32 vcc, 63, v1
    v_and_b32 v30, 0xffff0000, v30
    v_or_b32 v30, 0x3f80, v30
    v_cndmask_b32 v27, v27, v30, vcc
    v_cmp_gt_u32 vcc, 32, v1
    v_lshlrev_b32 v16, 3, v1
    s_nop 0
    v_cndmask_b32 v24, v26, v24, vcc
    v_cndmask_b32 v25, v27, v25, vcc
    buffer_store_dwordx2 v[24:25], v16, s[8:11], s53 offen offset:1024{SC}
    s_branch {L}_kvdone
    {L}_epi2:
    s_mul_i32 s53, s52, 3072
    s_add_u32 s53, s53, {WS_KV+1536}
    v_and_b32 v17, 31, v1
    v_lshrrev_b32 v18, 5, v1
    v_mul_u32_u24 v18, 384, v18
    v_lshl_add_u32 v16, v17, 4, v18
    v_mov_b32 v19, 0x3f803f80
    v_cmp_eq_u32 vcc, 20, v17
    v_cmp_lt_u32 s[54:55], 19, v17
    s_nop 3
    v_cndmask_b32 v19, 0, v19, vcc
    s_waitcnt lgkmcnt(0)
    """)
    for i in range(8): a(f"v_cvt_pk_bf16_f32 v{20+i}, v{EK+2*i}, v{EK+2*i+1}")
    for i in range(8): a(f"v_cndmask_b32 v{20+i}, v{20+i}, v19, s[54:55]")
    a(f"""
    v_cmp_gt_u32 vcc, 24, v17
    s_nop 1
    s_and_b64 exec, exec, vcc
    buffer_store_dwordx4 v[20:23], v16, s[8:11], s53 offen{SC}
    buffer_store_dwordx4 v[24:27], v16, s[8:11], s53 offen offset:768{SC}
    {L}_kvdone:
    s_mov_b64 exec, -1
    s_waitcnt vmcnt(0)
    s_barrier
    s_branch {L}_epi3
    """)
    C0 = -2.0 * 0.7978845608028654 * LOG2E
    C1 = C0 * 0.044715
    a(f"""
    {L}_epi0:
    v_mov_b32 v16, {f32(C0)}
    v_mov_b32 v17, {f32(C1)}
    s_lshl_b32 s54, s21, 12
    s_lshl_b32 s55, s64, 11
    s_add_u32 s54, s54, s55
    s_add_u32 s54, s54, {WS_H}
    s_mul_i32 s53, s52, {108*1024}
    s_add_u32 s53, s53, s54
    s_xor_b32 s55, s52, 1
    s_mul_i32 s55, s55, {108*1024}
    s_add_u32 s54, s54, s55
    s_waitcnt lgkmcnt(0)
    """)
    for j in range(2):
        G, U = 64 + 32*j, 80 + 32*j
        for hf in range(2):
            T = 20
            rs = list(range(8*hf, 8*hf+8))
            for i, r in enumerate(rs): a(f"v_mul_f32 v{T+i}, v{G+r}, v{G+r}")
            for i, r in enumerate(rs): a(f"v_fma_f32 v{T+i}, v{T+i}, v17, v16")
            for i, r in enumerate(rs): a(f"v_mul_f32 v{T+i}, v{G+r}, v{T+i}")
            for i, r in enumerate(rs): a(f"v_exp_f32 v{T+i}, v{T+i}")
            for i, r in enumerate(rs): a(f"v_mul_f32 v{U+r}, v{G+r}, v{U+r}")
            for i, r in enumerate(rs): a(f"v_add_f32 v{T+i}, 1.0, v{T+i}")
            for i, r in enumerate(rs): a(f"v_rcp_f32 v{T+i}, v{T+i}")
            a("s_nop 0")
            for i, r in enumerate(rs): a(f"v_mul_f32 v{T+i}, v{U+r}, v{T+i}")
            O = 28 + 4*(2*j+hf)
            for i in range(4): a(f"v_cvt_pk_bf16_f32 v{O+i}, v{T+2*i}, v{T+2*i+1}")
            a(f"buffer_store_dwordx4 {vr(O,4)}, v2, s[8:11], s{53+j} offen offset:{1024*hf}{SC}")
    a(f"""
    {L}_epi3:
    """)
    if E("ES"): stamp(a, 6)
    a(f"""
    s_nop 7
    v_mov_b32 v144, {f32(QSCALE)}
    s_waitcnt lgkmcnt(0)
    """)
    for i in range(12): a(f"v_mul_f32 v{128+i}, v144, v{128+i}")
    for i in range(6): a(f"v_cvt_pk_bf16_f32 v{QA1+i}, v{128+2*i}, v{129+2*i}")
    a(f"""
    s_mul_i32 s52, s63, 1536
    s_add_u32 s52, s52, {QST}
    v_add_u32 v144, s52, v2
    v_lshl_add_u32 v145, v1, 3, s52
    s_cmp_ge_u32 s22, 4
    s_cbranch_scc1 {L}_gwave
    """)
    a(f"""
    s_setprio {E("APRIO", "1")}
    v_and_b32 v9, 31, v1
    v_lshrrev_b32 v10, 5, v1
    v_add_u32 v3, {KVR}, v2
    v_lshlrev_b32 v4, 3, v1
    v_add_u32 v4, {KVR+1024}, v4
    v_min_u32 v5, 23, v9
    v_mul_u32_u24 v11, 384, v10
    v_lshl_add_u32 v5, v5, 4, v11
    v_add_u32 v5, {KVR+1536}, v5
    v_lshlrev_b32 v146, 2, v1
    v_add_u32 v146, {QST+6144}, v146
    v_add_u32 v6, {CH}, v3
    v_add_u32 v7, {CH}, v4
    v_add_u32 v8, {CH}, v5
    s_mov_b32 s27, {2*CH}
    s_mov_b32 s30, 0
    v_cmp_gt_u32 s[28:29], 32, v1
    v_lshlrev_b32 v60, 3, v9
    v_lshl_add_u32 v60, v10, 8, v60
    s_lshl_b32 s33, s20, 3
    s_lshl_b32 s52, s22, 1
    s_add_u32 s33, s33, s52
    s_mul_i32 s33, s33, 40960
    s_mul_i32 s52, s21, 1280
    s_add_u32 s33, s33, s52
    s_add_u32 s33, s33, {WS_O}
    s_add_u32 s31, s33, 40960
    """)
    a.c("v60 = o store offset, s33/s31 = o image base of block a / b")
    for r in list(range(OA, OA+32)) + list(range(PB, PB+8)) + list(range(KVB[1]+8, KVB[1]+16)):
        a(f"v_mov_b32 v{r}, 0")
    def qnorm(q1, q2, t, extra=()):
        ex = list(extra) + [""] * 2
        a(f"""
        v_cndmask_b32 v{q2}, 0, v{q2}, s[28:29]
        v_cndmask_b32 v{q2+1}, 0, v{q2+1}, s[28:29]
        v_mov_b32 v{t}, 0
        {ex[0]}
        v_dot2_f32_bf16 v{t}, v{q1}, v{q1}, v{t}
        v_dot2_f32_bf16 v{t}, v{q1+1}, v{q1+1}, v{t}
        v_dot2_f32_bf16 v{t}, v{q1+2}, v{q1+2}, v{t}
        {ex[1]}
        v_dot2_f32_bf16 v{t}, v{q1+3}, v{q1+3}, v{t}
        v_dot2_f32_bf16 v{t}, v{q2}, v{q2}, v{t}
        v_dot2_f32_bf16 v{t}, v{q2+1}, v{q2+1}, v{t}
        """)
    qnorm(QA1, QA2, 147)
    if E("ES"): stamp(a, 3)
    a(f"""
    s_barrier
    ds_read_b32 v146, v146
    ds_read_b128 {vr(QB1,4)}, v144
    ds_read_b64 {vr(QB2,2)}, v145 offset:1024
    ds_read_b128 {vr(KVB[0],4)}, v6
    ds_read_b64 {vr(KVB[0]+4,2)}, v7
    ds_read_b128 {vr(KVB[1],4)}, v6 offset:3072
    ds_read_b64 {vr(KVB[1]+4,2)}, v7 offset:3072
    ds_read_b128 {vr(KVB[0]+8,4)}, v8
    ds_read_b128 {vr(KVB[0]+12,4)}, v8 offset:768
    """)
    stamp(a, 4)
    dm = lambda k: f"v_max_f32_dpp v146, v146, v146 {k} bank_mask:0xf"
    a(f"""
    v_mov_b32 v149, v147
    s_waitcnt lgkmcnt(6)
    v_and_b32 v146, 0xffff0000, v146
    v_permlane32_swap_b32 v147, v149
    s_nop 0
    {dm("row_shr:1 row_mask:0xf")}
    v_add_f32 v147, v147, v149
    s_nop 0
    {dm("row_shr:2 row_mask:0xf")}
    """)
    qnorm(QB1, QB2, 148, [dm("row_shr:4 row_mask:0xf"), dm("row_shr:8 row_mask:0xf")])
    a(f"""
    {dm("row_bcast:15 row_mask:0xa")}
    s_nop 1
    v_mov_b32 v150, v148
    {dm("row_bcast:31 row_mask:0xc")}
    s_nop 0
    v_permlane32_swap_b32 v148, v150
    v_readlane_b32 s26, v146, 63
    s_nop 0
    v_add_f32 v148, v148, v150
    v_mul_f32 v147, s26, v147
    v_mul_f32 v148, s26, v148
    v_sqrt_f32 v147, v147
    v_sqrt_f32 v148, v148
    v_mul_f32 v147, {f32(1.02)}, v147
    v_mul_f32 v148, {f32(1.02)}, v148
    """)
    def set_shift(ma, mb):
        for m, q2 in ((ma, QA2), (mb, QB2)):
            split3(a, m, q2+2, q2+3, 149, 150)
            a(f"v_cndmask_b32 v{q2}, v{q2+2}, v{q2}, s[28:29]")
            a(f"v_cndmask_b32 v{q2+1}, v{q2+3}, v{q2+1}, s[28:29]")
    set_shift(147, 148)
    a("s_waitcnt lgkmcnt(0)")
    for x in qk(SA, KVB[0], QA1, QA2): a(x)
    a("s_nop 11")
    a(".p2align 6")
    a(f"{L}_aloop:")
    for t in range(4):
        cur, nxt = KVB[t & 1], KVB[(t + 1) & 1]
        aslot(a, SA, PA, qk(SB, cur, QB1, QB2) + pv(OB, nxt, PB))
        pre = ["s_waitcnt lgkmcnt(0)" if t != 3 else "s_waitcnt vmcnt(0) lgkmcnt(0)"]
        if t == 0 and STAMP: pre.append("s_memtime s[38:39]")
        if t == 0: pre.append("s_barrier")
        if t == 0 and STAMP: pre.append("s_memtime s[36:37]")
        if t == 1 and STAMP: pre += ["s_mov_b32 m0, s30", "s_nop 0", "v_writelane_b32 v61, s36, m0", "v_writelane_b32 v62, s38, m0"]
        if t == 2:
            pre += ["v_add_u32 v6, s27, v3", "v_add_u32 v7, s27, v4"]
        if t == 3:
            pre += ["v_add_u32 v8, s27, v5",
                    f"s_add_u32 s27, s27, {CH}", f"s_cmp_ge_u32 s27, {3*CH}", "s_cselect_b32 s27, 0, s27"]
        ko = ((t + 2) & 3) * 3072
        vo = ((t + 1) & 3) * 3072
        rd = [f"ds_read_b128 {vr(cur,4)}, v6 offset:{ko}",
              f"ds_read_b64 {vr(cur+4,2)}, v7 offset:{ko}",
              f"ds_read_b128 {vr(nxt+8,4)}, v8 offset:{vo}",
              f"ds_read_b128 {vr(nxt+12,4)}, v8 offset:{vo+768}"]
        aslot(a, SB, PB, qk(SA, nxt, QA1, QA2) + pv(OA, cur, PA), pre, rd)
    a(f"""
    s_add_u32 s30, s30, 1
    s_cmp_lt_u32 s30, 16
    s_cbranch_scc1 {L}_aloop
    s_nop 1
    """)
    for x in pv(OB, KVB[1], PB): a(x)
    stamp(a, 5)
    a(f"""
    s_mov_b32 s34, 0
    {L}_aepi:
    s_mov_b32 s35, {f32(2.0**-90)}
    s_waitcnt lgkmcnt(0)
    s_nop 11
    v_mov_b32 v144, v{OA+8}
    v_mov_b32 v145, v{OA+8}
    v_mov_b32 v146, v{OB+8}
    v_mov_b32 v147, v{OB+8}
    s_nop 0
    v_permlane32_swap_b32 v144, v145
    v_permlane32_swap_b32 v146, v147
    s_nop 0
    v_cmp_nle_f32 vcc, s35, v145
    v_cmp_nle_f32 s[36:37], s35, v147
    v_rcp_f32 v145, v145
    v_rcp_f32 v147, v147
    s_or_b64 s[36:37], vcc, s[36:37]
    s_cmp_eq_u32 s34, 0
    s_cselect_b64 s[36:37], s[36:37], 0
    s_cmp_lg_u64 s[36:37], 0
    s_cbranch_scc1 {L}_slow
    """)
    for blk, O in enumerate((OA, OB)):
        R = 145 + 2*blk
        for q in range(3):
            for i in range(4): a(f"v_mul_f32 v{O+4*q+i}, v{R}, v{O+4*q+i}")
            D = 64 + 8*blk + 2*q
            a(f"v_cvt_pk_bf16_f32 v{D}, v{O+4*q}, v{O+4*q+1}")
            a(f"v_cvt_pk_bf16_f32 v{D+1}, v{O+4*q+2}, v{O+4*q+3}")
            if q == 2: a("s_mov_b32 exec_hi, 0")
            a(f"buffer_store_dwordx2 {vr(D,2)}, v60, s[8:11], s{33 if blk == 0 else 31} offen offset:{512*q} sc1")
            if q == 2: a("s_mov_b64 exec, -1")
    if STAMP:
        a(f"""
        s_lshl_b32 s36, s2, 2
        s_add_u32 s36, s36, s22
        s_lshl_b32 s36, s36, 9
        s_add_u32 s36, s36, {0x1900000}
        v_lshlrev_b32 v63, 2, v1
        buffer_store_dword v61, v63, s[8:11], s36 offen
        buffer_store_dword v62, v63, s[8:11], s36 offen offset:256
        """)
    a(f"""
    s_setprio 0
    s_lshl_b32 s36, s20, 5
    s_lshl_b32 s37, s22, 2
    s_add_u32 s36, s36, s37
    s_lshr_b32 s37, s21, 3
    s_add_u32 s36, s36, s37
    s_lshl_b32 s36, s36, 7
    s_add_u32 s36, s36, {WS_F+F3}
    v_mov_b32 v9, 1
    v_mov_b32 v5, 0
    s_waitcnt vmcnt(0)
    s_mov_b64 exec, 1
    buffer_atomic_add v9, v5, s[8:11], s36 offen sc1
    s_mov_b64 exec, -1
    """)
    if not E("ES"): stamp(a, 3)
    a(f"""
    s_branch {L}_p3
    """)
    kb = KVB[0]
    a(f"""
    {L}_slow:
    s_mov_b32 s34, 1
    v_cndmask_b32 v{QA2}, 0, v{QA2}, s[28:29]
    v_cndmask_b32 v{QA2+1}, 0, v{QA2+1}, s[28:29]
    v_cndmask_b32 v{QB2}, 0, v{QB2}, s[28:29]
    v_cndmask_b32 v{QB2+1}, 0, v{QB2+1}, s[28:29]
    v_mov_b32 v147, 0xff800000
    v_mov_b32 v148, 0xff800000
    s_mov_b32 s36, {WS_KV - KVR}
    {L}_slow1:
    buffer_load_dwordx4 {vr(kb,4)}, v3, s[8:11], s36 offen sc1
    buffer_load_dwordx2 {vr(kb+4,2)}, v4, s[8:11], s36 offen sc1
    s_add_u32 s36, s36, 3072
    s_waitcnt vmcnt(0)
    """)
    for x in qk(SA, kb, QA1, QA2) + qk(SB, kb, QB1, QB2): a(x)
    a("s_nop 15")
    for i in range(0, 16, 2):
        a(f"v_max3_f32 v147, v{SA+i}, v{SA+i+1}, v147")
        a(f"v_max3_f32 v148, v{SB+i}, v{SB+i+1}, v148")
    a(f"""
    s_cmp_lt_u32 s36, {WS_KV - KVR + 64*3072}
    s_cbranch_scc1 {L}_slow1
    v_mov_b32 v149, v147
    v_mov_b32 v150, v148
    s_nop 1
    v_permlane32_swap_b32 v147, v149
    v_permlane32_swap_b32 v148, v150
    s_nop 1
    v_max_f32 v147, v147, v149
    v_max_f32 v148, v148, v150
    """)
    set_shift(147, 148)
    for r in range(OA, OA+32): a(f"v_mov_b32 v{r}, 0")
    a(f"""
    s_mov_b32 s36, {WS_KV - KVR}
    {L}_slow2:
    buffer_load_dwordx4 {vr(kb,4)}, v3, s[8:11], s36 offen sc1
    buffer_load_dwordx2 {vr(kb+4,2)}, v4, s[8:11], s36 offen sc1
    buffer_load_dwordx4 {vr(kb+8,4)}, v5, s[8:11], s36 offen sc1
    buffer_load_dwordx4 {vr(kb+12,4)}, v5, s[8:11], s36 offen offset:768 sc1
    s_add_u32 s36, s36, 3072
    s_waitcnt vmcnt(0)
    """)
    for x in qk(SA, kb, QA1, QA2) + qk(SB, kb, QB1, QB2): a(x)
    a("s_nop 15")
    for g in exp_groups(SA, PA) + exp_groups(SB, PB):
        for x in g: a(x)
    a("s_nop 1")
    for x in pv(OA, kb, PA) + pv(OB, kb, PB): a(x)
    a(f"""
    s_cmp_lt_u32 s36, {WS_KV - KVR + 64*3072}
    s_cbranch_scc1 {L}_slow2
    s_nop 7
    s_branch {L}_aepi
    """)

    a(f"""
    {L}_gwave:
    ds_write_b128 v144, {vr(QA1,4)}
    ds_write_b64 v145, {vr(QA2,2)} offset:1024
    s_load_dwordx2 s[6:7], s[0:1], 64
    s_and_b32 s16, s22, 3
    s_cmp_ge_u32 s21, 15
    s_cselect_b32 s33, 1, 0
    s_cselect_b32 s34, 15, 0
    s_sub_u32 s34, s21, s34
    s_lshl_b32 s35, s20, 1
    s_add_u32 s33, s33, s35
    s_mul_i32 s35, s34, 13
    s_lshr_b32 s35, s35, 6
    s_mul_i32 s36, s35, 5
    s_sub_u32 s34, s34, s36
    s_waitcnt lgkmcnt(0)
    """)
    if E("ES"): stamp(a, 3)
    a(f"""
    s_barrier
    s_lshl_b32 s36, s33, 2
    s_add_u32 s36, s36, s16
    s_mul_i32 s36, s36, 108
    s_mul_i32 s37, s35, 36
    s_add_u32 s36, s36, s37
    s_lshl_b32 s36, s36, 10
    s_add_u32 s40, s36, {WS_H}
    s_mul_i32 s41, s35, {576*1280}
    s_mul_i32 s36, s16, {16*1280}
    s_add_u32 s41, s41, s36
    s_lshl_b32 s36, s34, 8
    s_add_u32 s41, s41, s36
    v_lshrrev_b32 v3, 4, v1
    v_lshlrev_b32 v4, 2, v3
    v_and_b32 v5, 15, v1
    v_xor_b32 v4, v4, v5
    s_movk_i32 s36, 1280
    v_mul_u32_u24 v3, s36, v3
    v_lshl_add_u32 v3, v4, 4, v3
    v_add_u32 v4, {5120-1024}, v3
    v_add_u32 v5, {2*(5120-1024)}, v3
    v_add_u32 v13, {3*(5120-1024)}, v3
    s_lshl_b32 s42, s16, 12
    s_add_u32 s43, s42, 16384
    s_mov_b32 s45, 0
    s_mov_b32 s30, 0
    s_mov_b32 s46, 0
    s_cmp_lt_u32 s21, 30
    s_cselect_b32 s47, 9, 0
    s_cselect_b32 s50, {WS_SIZE}, 0
    s_cselect_b32 s54, 2211840, 0
    s_mov_b32 s48, s18
    s_and_b32 s49, s19, 0xffff
    s_mov_b32 s51, 0x20000
    s_mov_b32 s55, 0x20000
    s_mov_b32 m0, s43
    s_mov_b32 s52, s6
    s_and_b32 s53, s7, 0xffff
    """)
    a.c("s33 = row group (128 rows), s34 = col group (128 cols), s35 = k split, s47 = stages of this WG")
    def gw():
        a(f"""
        buffer_load_dwordx4 v3, s[52:55], s41 offen lds
        buffer_load_dwordx4 v4, s[52:55], s41 offen offset:1024 lds
        buffer_load_dwordx4 v5, s[52:55], s41 offen offset:2048 lds
        buffer_load_dwordx4 v13, s[52:55], s41 offen offset:3072 lds
        s_add_u32 s41, s41, {64*1280}
        """)
    def gh():
        a(f"""
        buffer_load_dwordx4 v2, s[48:51], s40 offen{SCL} lds
        buffer_load_dwordx4 v2, s[48:51], s40 offen offset:1024{SCL} lds
        buffer_load_dwordx4 v2, s[48:51], s40 offen offset:2048{SCL} lds
        buffer_load_dwordx4 v2, s[48:51], s40 offen offset:3072{SCL} lds
        s_add_u32 s40, s40, 4096
        """)
    gw()
    a(f"""
    s_and_b32 s36, s16, 1
    s_lshr_b32 s37, s16, 1
    s_lshl_b32 s38, s36, 13
    v_add_u32 v6, s38, v2
    v_lshrrev_b32 v8, 5, v1
    v_bfe_u32 v9, v1, 2, 2
    v_lshl_add_u32 v8, v8, 2, v9
    v_lshlrev_b32 v8, 8, v8
    s_lshl_b32 s38, s37, 1
    v_xor_b32 v9, s38, v9
    v_lshl_add_u32 v8, v9, 6, v8
    v_bfe_u32 v9, v1, 4, 1
    v_lshl_add_u32 v8, v9, 5, v8
    v_and_b32 v9, 3, v1
    v_lshl_add_u32 v8, v9, 3, v8
    v_add_u32 v7, 16384, v8
    v_xor_b32 v8, 64, v7
    """)
    for r in range(64, 128): a(f"v_mov_b32 v{r}, 0")
    a(f"""
    s_mov_b32 m0, s42
    s_barrier
    s_waitcnt vmcnt(0)
    s_barrier
    s_barrier
    s_barrier
    """)
    gh()
    a(f"""
    s_mov_b32 s44, {GSL}
    s_branch {L}_gin
    {L}_gloop:
    s_barrier
    {L}_gin:
    s_add_u32 s46, s46, 1
    s_cmp_ge_u32 s46, s47
    s_cbranch_scc1 {L}_gnod
    s_add_u32 m0, s44, s42
    s_nop 0
    """)
    gh()
    a("s_add_u32 m0, s44, s43")
    a(f"s_add_u32 s44, s44, {GSL}")
    gw()
    a(f"""
    s_cmp_ge_u32 s44, {3*GSL}
    s_cselect_b32 s44, 0, s44
    {L}_gnod:
    s_sub_u32 s36, s30, 1
    s_cmp_ge_u32 s36, s47
    s_cbranch_scc1 {L}_gskip
    v_add_u32 v10, s45, v6
    v_add_u32 v11, s45, v7
    v_add_u32 v12, s45, v8
    s_add_u32 s45, s45, {GSL}
    s_cmp_ge_u32 s45, {3*GSL}
    s_cselect_b32 s45, 0, s45
    """)
    FB = [16, 32]
    def rl(ks):
        b = FB[ks & 1]
        return [f"ds_read_b128 {vr(b,4)}, v10 offset:{ks*1024}",
                f"ds_read_b64_tr_b16 {vr(b+8,2)}, v11 offset:{ks*4096}",
                f"ds_read_b64_tr_b16 {vr(b+10,2)}, v11 offset:{ks*4096+2048}",
                f"ds_read_b64_tr_b16 {vr(b+12,2)}, v12 offset:{ks*4096}",
                f"ds_read_b64_tr_b16 {vr(b+14,2)}, v12 offset:{ks*4096+2048}",
                f"ds_read_b128 {vr(b+4,4)}, v10 offset:{ks*1024+4096}"]
    def ml(ks):
        b = FB[ks & 1]
        x0, x1, w0, w1 = vr(b,4), vr(b+4,4), vr(b+8,4), vr(b+12,4)
        return [f"{M} v[64:79], {w0}, {x0}, v[64:79]", f"{M} v[80:95], {w1}, {x0}, v[80:95]",
                f"{M} v[96:111], {w0}, {x1}, v[96:111]", f"{M} v[112:127], {w1}, {x1}, v[112:127]"]
    for x in rl(0): a(x)
    for ks in range(4):
        a("s_waitcnt lgkmcnt(0)")
        r = rl(ks + 1) if ks < 3 else []
        for i, m in enumerate(ml(ks)):
            a(m)
            for x in r[2*i:2*i+2]: a(x)
    a(f"""
    s_cmp_lg_u32 s30, s47
    s_cbranch_scc1 {L}_gskip
    s_lshl_b32 s36, s35, 6
    s_lshl_b32 s37, s33, 2
    s_add_u32 s36, s36, s37
    s_and_b32 s37, s16, 1
    s_lshl_b32 s37, s37, 1
    s_add_u32 s36, s36, s37
    s_mul_i32 s36, s36, 40
    s_lshl_b32 s37, s34, 3
    s_add_u32 s36, s36, s37
    s_lshr_b32 s37, s16, 1
    s_lshl_b32 s37, s37, 2
    s_add_u32 s36, s36, s37
    s_lshl_b32 s36, s36, 10
    s_add_u32 s36, s36, {WS_B}
    s_add_u32 s37, s36, 40960
    s_nop 7
    """)
    for u in range(4):
        A = 64 + 16*u
        for qp in range(2):
            O = 16 + 4*((2*u+qp) % 8)
            for i in range(4):
                a(f"v_cvt_pk_bf16_f32 v{O+i}, v{A+8*qp+2*i}, v{A+8*qp+2*i+1}")
            a(f"buffer_store_dwordx4 {vr(O,4)}, v2, s[8:11], s{36 + (u>>1)} offen offset:{(u&1)*2048 + qp*1024} sc1")
    a(f"""
    s_branch {L}_gend
    {L}_gskip:
    s_add_u32 s30, s30, 1
    s_cmp_ge_u32 s30, 10
    s_cbranch_scc1 {L}_gend
    s_cmp_lt_u32 s46, s47
    s_cbranch_scc1 {L}_gw8
    s_waitcnt vmcnt(0)
    {L}_gw8:
    s_waitcnt vmcnt(8)
    s_branch {L}_gloop
    {L}_gend:
    s_barrier
    s_waitcnt vmcnt(0)
    s_barrier
    s_barrier
    """)

    a(f"""
    {L}_p3:
    s_load_dwordx2 s[4:5], s[0:1], 80
    s_lshl_b32 s17, s20, 3
    s_and_b32 s16, s21, 3
    s_lshl_b32 s16, s16, 1
    s_add_u32 s17, s17, s16
    s_lshr_b32 s16, s21, 2
    s_and_b32 s36, s22, 1
    s_lshr_b32 s39, s22, 1
    s_add_u32 s36, s17, s36
    s_mul_i32 s36, s36, 40
    s_mul_i32 s37, s39, 10
    s_add_u32 s36, s36, s37
    s_lshl_b32 s36, s36, 10
    s_add_u32 s36, s36, {WS_O}
    s_add_u32 s37, s36, 4096
    s_add_u32 s38, s36, 8192
    v_lshrrev_b32 v8, 5, v1
    v_bfe_u32 v9, v1, 2, 2
    v_lshl_add_u32 v8, v8, 2, v9
    v_mul_u32_u24 v8, 192, v8
    v_bfe_u32 v9, v1, 4, 1
    v_lshl_add_u32 v8, v9, 5, v8
    v_and_b32 v9, 3, v1
    v_lshl_add_u32 v8, v9, 3, v8
    s_lshl_b32 s48, s39, 2
    s_mul_i32 s49, s39, 30720
    v_add_u32 v8, s49, v8
    v_lshlrev_b32 v7, 3, v1
    v_and_b32 v6, 31, v1
    s_lshl_b32 s39, s17, 5
    v_add_u32 v6, s39, v6
    v_lshrrev_b32 v4, 3, v6
    v_lshlrev_b32 v4, 7, v4
    v_and_b32 v9, 7, v1
    v_lshl_add_u32 v4, v9, 2, v4
    s_mov_b32 s40, {WS_G}
    s_mul_i32 s41, s16, 10
    s_add_u32 s41, s41, s22
    s_lshr_b32 s42, s41, 1
    s_lshl_b32 s42, s42, 10
    s_and_b32 s43, s41, 1
    s_lshl_b32 s43, s43, 3
    s_add_u32 s42, s42, s43
    s_mul_i32 s43, s17, 40960
    s_add_u32 s42, s42, s43
    s_add_u32 s42, s42, {WS_B}
    v_mov_b32 v22, {NONCE}
    s_lshr_b32 s46, s22, 1
    s_lshl_b32 s45, 1, s46
    """)
    a.c("s17 = first row block of the tile, s16 = column group; final items: quad = wave, both row blocks")
    def bg():
        a("buffer_load_dword v140, v4, s[8:11], s40 offen sc1")
        a("buffer_load_dword v141, v4, s[8:11], s40 offen offset:512 sc1")
        for j in range(2):
            for sk in range(3):
                a(f"s_add_u32 s43, s42, {j*40960 + sk*64*40960}")
                a(f"buffer_load_dwordx2 {vr(128+6*j+2*sk,2)}, v2, s[8:11], s43 offen sc1")
    a(f"""
    s_movk_i32 s43, 1280
    v_mul_lo_u32 v6, v6, s43
    v_lshrrev_b32 v9, 5, v1
    v_lshl_add_u32 v6, v9, 3, v6
    s_lshl_b32 s41, s41, 4
    s_add_u32 s44, s41, 40960
    s_waitcnt lgkmcnt(0)
    """)
    srd(a, 12, 4, 5, 2621440)
    for r in range(64, 112): a(f"v_mov_b32 v{r}, 0")
    WF = [112, 144]
    def wr(ks):
        b = WF[ks & 1]
        return [f"ds_read_b64_tr_b16 {vr(b+4*cb+2*t,2)}, v8 offset:{ks*3072 + t*1536 + 64*cb}" for cb in range(3) for t in range(2)]
    a(f"""
    s_mov_b32 s70, {SPIN}
    s_cmp_lg_u32 s22, 8
    s_cbranch_scc1 {L}_p3w
    s_mov_b64 exec, 0xf
    {L}_p3poll:
    buffer_load_dword v24, v3, s[8:11], s35 offen sc1
    s_sub_u32 s70, s70, 1
    s_cselect_b32 s47, -1, 0
    s_waitcnt vmcnt(0)
    v_cmp_eq_u32 vcc, 8, v24
    s_or_b32 s47, s47, vcc_lo
    s_or_b32 s47, s47, 0xfffffff0
    v_mov_b32 v23, s47
    ds_write_b32 v22, v23 offset:8
    s_sleep {E("PSLEEP", "2")}
    s_cmp_lg_u32 s47, -1
    s_cbranch_scc1 {L}_p3poll
    """)
    stamp(a, 6)
    a(f"""
    s_mov_b64 exec, -1
    {L}_p3w:
    ds_read_b64 v[10:11], v22 offset:8
    s_waitcnt lgkmcnt(0)
    v_readfirstlane_b32 s47, v10
    v_readfirstlane_b32 s46, v11
    s_or_b32 s47, s47, 0x10
    s_and_b32 s47, s47, s45
    s_xor_b32 s47, s47, s45
    s_xor_b32 s46, s46, 2
    s_or_b32 s47, s47, s46
    s_cmp_eq_u32 s47, 0
    s_cbranch_scc1 {L}_p3go
    s_sleep 1
    s_branch {L}_p3w
    {L}_p3go:
    s_cmp_lt_u32 s22, 8
    s_cbranch_scc1 {L}_p3m
    """)
    bg()
    a(f"""
    s_branch {L}_p3r
    {L}_p3m:
    """)
    if not E("ES"): stamp(a, 6)
    OF = 24
    for ks in range(10):
        for sl in range(2):
            a(f"buffer_load_dwordx2 {vr(OF+4*ks+2*sl,2)}, v7, s[8:11], s{36+ks//4} offen offset:{(ks%4)*1024+512*sl}{E('OSC', ' sc1')}")
    for x in wr(0): a(x)
    bg()
    for ks in range(10):
        a(f"s_waitcnt vmcnt({26-2*ks}) lgkmcnt(0)")
        r = wr(ks+1) if ks < 9 else []
        b = WF[ks & 1]
        for cb in range(3):
            a(f"{M} {vr(64+16*cb,16)}, {vr(b+4*cb,4)}, {vr(OF+4*ks,4)}, {vr(64+16*cb,16)}")
            for x in r[2*cb:2*cb+2]: a(x)
    a(f"""
    v_add_u32 v23, s48, v22
    v_mov_b32 v9, 1
    s_mov_b64 exec, 1
    ds_add_u32 v23, v9 offset:16
    s_mov_b64 exec, -1
    s_and_b32 s47, s22, 1
    s_mul_i32 s47, s47, 10240
    s_add_u32 s39, s49, s47
    v_add_u32 v5, s39, v2
    {L}_p3pw:
    ds_read_b32 v9, v23 offset:16
    s_waitcnt lgkmcnt(0)
    v_readfirstlane_b32 s47, v9
    s_cmp_lg_u32 s47, 2
    s_cbranch_scc1 {L}_p3pw
    """)
    for q in range(10):
        a(f"ds_write_b128 v5, {vr(64+4*q,4)} offset:{1024*q}")
    a(f"""
    s_waitcnt lgkmcnt(0)
    {L}_p3r:
    """)
    if STAMP:
        a(f"s_cmp_lt_u32 s22, 4\ns_cbranch_scc1 {L}_st4")
        stamp(a, 4)
        a(f"{L}_st4:")
    a(f"""
    s_lshl_b32 s39, s22, 10
    v_add_u32 v5, s39, v2
    v_add_u32 v7, 61440, v5
    s_barrier
    """)
    for j in range(2):
        for kq in range(4):
            a(f"ds_read_b128 {vr(16+16*j+4*kq,4)}, v{5 if kq < 2 else 7} offset:{j*10240 + (kq%2)*30720}")
    a("s_waitcnt vmcnt(0)")
    for j in range(2):
        a(f"""
        v_sub_f32 v{142+j}, 1.0, v{140+j}
        v_cvt_pk_bf16_f32 v{142+j}, v{142+j}, v{142+j}
        v_lshlrev_b32 v{142+j}, 16, v{142+j}
        """)
        B = 128 + 6*j
        for i in range(4):
            ex = (lambda d, r: f"v_lshlrev_b32 v{d}, 16, v{r}") if i % 2 == 0 else (lambda d, r: f"v_and_b32 v{d}, 0xffff0000, v{r}")
            a(f"""
            {ex(56+4*j+i, B + i//2)}
            {ex(55, B + 2 + i//2)}
            v_add_f32 v{56+4*j+i}, v{56+4*j+i}, v55
            {ex(55, B + 4 + i//2)}
            v_add_f32 v{56+4*j+i}, v{56+4*j+i}, v55
            """)
    a("s_waitcnt lgkmcnt(0)")
    for j in range(2):
        P = 16 + 16*j
        for i in range(4):
            a(f"""
            v_add_f32 v{P+i}, v{P+i}, v{P+4+i}
            v_add_f32 v{P+8+i}, v{P+8+i}, v{P+12+i}
            v_add_f32 v{P+i}, v{P+i}, v{P+8+i}
            v_mul_f32 v{P+i}, v{140+j}, v{P+i}
            v_fmac_f32 v{P+i}, v{142+j}, v{56+4*j+i}
            """)
        a(f"""
        v_cvt_pk_bf16_f32 v{P}, v{P}, v{P+1}
        v_cvt_pk_bf16_f32 v{P+1}, v{P+2}, v{P+3}
        buffer_store_dwordx2 {vr(P,2)}, v6, s[12:15], s{41 if j == 0 else 44} offen
        """)
    stamp_out(a, 7, 0)
    a(f"{L}_end:")
    a("s_endpgm")
    kernel_desc(a, name, 160, 100)
```

```python
import sys
sys.path.insert(0, 'gen')
from common import *
import fk4 as fused
NAME = "gated_mix__grouped_kv_mqa__geglu_ffn__prompt"
HEAD = open(f'cdna_kernels/{NAME}.s.ref').read().split('; Override')[0]
a = Asm()
hdr = HEAD + f"; @launch grid=(256,1,1) block=({fused.F_BLOCK},1,1) lds={fused.F_LDS}\n"
hdr += '.amdgcn_target "amdgcn-amd-amdhsa--gfx950"\n'
fused.gen(a, NAME + "_kernel")
out = sys.argv[1] if len(sys.argv) > 1 else f'cdna_kernels/{NAME}.s'
open(out, 'w').write(hdr + a.text())
```

```python
from common import *
import math
from k2 import (M, QA1, QA2, QB1, QB2, KVB, SA, SB, OA, OB, PA, PB, split3, exp_groups, pv, CH)
def qk(Sd, kb, q1, q2):
    return [f"{M} {vr(Sd,16)}, {vr(kb,4)}, {vr(q1,4)}, 0",
            f"v_mfma_f32_32x32x8_bf16 {vr(Sd,16)}, {vr(kb+4,2)}, {vr(q2,2)}, {vr(Sd,16)}"]
LOG2E = 1.4426950408889634
QSCALE = LOG2E / math.sqrt(20.0)
E = os.environ.get
XSL = 32768
WB = 3 * XSL
WSL = 10240
QST = WB
KVR = 163840 - 3 * CH
GSL = 32768
NONCE = 122880
BREG = True
F_LDS = 163840
F_BLOCK = 640
SPIN = int(E("SPIN", 1 << 16))
SC = " sc1"
SCL = E('SCL', ' sc1')

_pc = [0]
def poll(a, L, voff, soff):
    _pc[0] += 1
    T = f"{L}_poll{_pc[0]}"
    a(f"""
    s_mov_b32 s70, {SPIN}
    {T}:
    buffer_load_dwordx2 v[24:25], {voff}, s[8:11], {soff} offen sc1
    s_sub_u32 s70, s70, 1
    s_cbranch_scc1 {T}_ok
    s_waitcnt vmcnt(0)
    v_cmp_ne_u64 vcc, v[24:25], v[20:21]
    s_cmp_eq_u64 vcc, 0
    s_cbranch_scc1 {T}_ok
    s_sleep {E("PSLEEP", "2")}
    s_branch {T}
    {T}_ok:
    """)

def flag(a, soff):
    a(f"""
    s_mov_b64 exec, 1
    buffer_store_dwordx2 v[20:21], v5, s[8:11], {soff} offen sc1
    s_mov_b64 exec, -1
    """)

def aslot(a, S, P, mf, pre=(), rd=None):
    g = exp_groups(S, P)
    flat = [x for gg in g for x in gg]
    pos = [int(x) for x in E("MPOS", "0,5,11,17").split(",")]
    for p in pre: a(p)
    k = 0
    for i, x in enumerate(flat):
        while k < 4 and pos[k] == i:
            a(mf[k])
            if rd: a(rd[k])
            k += 1
        a(x)

def gen(a, name):
    kernel_head(a, name)
    L = name
    a(f"""
    s_cmp_ge_u32 s2, 256
    s_cbranch_scc1 {L}_end
    s_load_dwordx8 s[4:11], s[0:1], 0
    s_load_dwordx4 s[12:15], s[0:1], 48
    s_load_dwordx2 s[18:19], s[0:1], 96
    """)
    stamp(a, 0)
    a(f"""
    v_lshrrev_b32 v2, 6, v0
    v_and_b32 v1, 63, v0
    v_readfirstlane_b32 s22, v2
    s_and_b32 s47, s2, 7
    s_lshr_b32 s51, s2, 3
    s_and_b32 s20, s47, 1
    s_lshl_b32 s20, s20, 2
    s_and_b32 s67, s51, 3
    s_add_u32 s20, s20, s67
    s_lshr_b32 s21, s47, 1
    s_lshr_b32 s68, s51, 2
    s_lshl_b32 s52, s68, 2
    s_add_u32 s21, s21, s52
    s_cmp_lt_u32 s22, 8
    s_cbranch_scc1 {L}_comp
    """)
    a.c("s20 = row group (256 rows), s21 = cg = head = column group, s22 = wave; kept for the whole kernel, as is s[18:19]")
    a(f"""
    s_and_b32 s63, s22, 1
    v_lshrrev_b32 v10, 3, v1
    v_lshrrev_b32 v11, 4, v1
    v_and_b32 v12, 7, v1
    v_xor_b32 v12, v12, v11
    v_xor_b32 v11, 4, v12
    s_movk_i32 s54, 1280
    v_mul_u32_u24 v10, s54, v10
    v_lshl_add_u32 v15, v11, 4, v10
    v_lshl_add_u32 v10, v12, 4, v10
    s_mul_i32 s53, s20, {256*1280}
    s_mul_i32 s55, s63, {64*1280}
    s_add_u32 s53, s53, s55
    """)
    for i in range(8):
        a(f"s_add_u32 s55, s53, {i*10240 - 1024*(i&3) + 4096}")
        a(f"v_add_u32 v{2+i}, s55, v{15 if i & 1 else 10}")
    a(f"""
    s_add_u32 s52, s67, s68
    s_and_b32 s52, s52, 3
    s_mul_i32 s52, s52, 5
    s_lshr_b32 s52, s52, 1
    s_lshl_b32 s41, s52, 7
    s_lshl_b32 s48, s63, 13
    s_mov_b32 m0, s48
    s_waitcnt lgkmcnt(0)
    s_sub_u32 s24, s4, 4096
    s_subb_u32 s25, s5, 0
    s_and_b32 s25, s25, 0xffff
    s_mov_b32 s26, {2621440+4096}
    s_mov_b32 s27, 0x20000
    """)
    a.c("x voffsets carry +4096 so that they stay non negative; the SRD base carries -4096")
    def xdma(so):
        a(f"""
        buffer_load_dwordx4 v2, s[24:27], {so} offen lds
        buffer_load_dwordx4 v3, s[24:27], {so} offen offset:1024 lds
        buffer_load_dwordx4 v4, s[24:27], {so} offen offset:2048 lds
        buffer_load_dwordx4 v5, s[24:27], {so} offen offset:3072 lds
        s_add_u32 m0, m0, 4096
        s_nop 0
        buffer_load_dwordx4 v6, s[24:27], {so} offen lds
        buffer_load_dwordx4 v7, s[24:27], {so} offen offset:1024 lds
        buffer_load_dwordx4 v8, s[24:27], {so} offen offset:2048 lds
        buffer_load_dwordx4 v9, s[24:27], {so} offen offset:3072 lds
        """)
    xdma("s41")
    a(f"""
    v_lshrrev_b32 v13, 3, v1
    s_movk_i32 s62, 3456
    v_mul_u32_u24 v13, s62, v13
    v_and_b32 v14, 7, v1
    v_bfe_u32 v15, v1, 4, 1
    v_lshlrev_b32 v15, 2, v15
    v_xor_b32 v14, v14, v15
    v_lshl_add_u32 v13, v14, 4, v13
    s_lshl_b32 s53, s21, 7
    v_add_u32 v10, s53, v13
    v_add_u32 v11, {8*3456-1024}, v10
    v_add_u32 v12, {2*(8*3456-1024)}, v10
    v_add_u32 v13, {3*(8*3456-1024)}, v10
    v_lshrrev_b32 v14, 2, v1
    v_mul_u32_u24 v14, s54, v14
    v_and_b32 v15, 3, v1
    v_lshl_add_u32 v14, v15, 4, v14
    s_mul_i32 s53, s21, 40
    s_mul_i32 s55, s63, {16*1280}
    s_add_u32 s53, s53, s55
    v_add_u32 v14, s53, v14
    v_lshlrev_b32 v15, 4, v1
    s_cmp_eq_u32 s63, 1
    s_cselect_b32 s28, s14, s12
    s_cselect_b32 s29, s15, s13
    s_and_b32 s29, s29, 0xffff
    s_mov_b32 s30, 2211840
    s_mov_b32 s31, 0x20000
    s_mov_b32 s32, s6
    s_and_b32 s33, s7, 0xffff
    s_mov_b32 s34, 819200
    s_mov_b32 s35, 0x20000
    s_cmp_eq_u32 s21, 27
    s_cselect_b32 s36, s8, s10
    s_cselect_b32 s37, s9, s11
    s_and_b32 s37, s37, 0xffff
    s_sub_u32 s53, s21, 27
    s_cmp_lt_u32 s53, 2
    s_cselect_b32 s38, 25600, 0
    s_mov_b32 s39, 0x20000
    s_lshl_b32 s52, s52, 1
    s_mul_i32 s42, s52, {32*3456}
    s_mul_i32 s43, s52, {32*1280}
    s_mul_i32 s40, s52, 1280
    s_lshl_b32 s51, s63, 10
    s_add_u32 s40, s40, s51
    s_lshl_b32 s49, s63, 12
    s_add_u32 s49, s49, {WB}
    s_add_u32 s50, s51, {WB+8192}
    s_add_u32 s56, s51, {WB}
    s_add_u32 s45, s48, 16384
    s_add_u32 s54, s41, 163840
    s_mov_b32 s44, 0
    s_mov_b32 s46, 0
    s_mov_b32 s58, 2
    {"s_mov_b32 s26, 0" if "x" in E("NULLD", "") else ""}
    {"s_mov_b32 s30, 0" if "w" in E("NULLD", "") else ""}
    {"s_mov_b32 s34, 0" if "q" in E("NULLD", "") else ""}
    s_cmp_ge_u32 s21, 27
    s_cbranch_scc1 {L}_ldl_issue
    """)
    a.c("s45/s54 next x half (lds, soffset), s41 k byte offset of the pair, s42 W, s43 wq, s40 wk/wv soffsets, s44 W slot")
    for tag, D in (("ldf", 13), ("ldl", 10)):
        a(f"""
        {L}_{tag}_issue:
        s_mov_b32 m0, s45
        s_add_u32 s46, s46, 1
        """)
        xdma("s54")
        if tag == "ldf":
            a(f"""
            s_add_u32 m0, s44, s49
            s_add_u32 s45, s45, 16384
            buffer_load_dwordx4 v10, s[28:31], s42 offen lds
            buffer_load_dwordx4 v11, s[28:31], s42 offen offset:1024 lds
            buffer_load_dwordx4 v12, s[28:31], s42 offen offset:2048 lds
            buffer_load_dwordx4 v13, s[28:31], s42 offen offset:3072 lds
            """)
        else:
            a(f"""
            s_add_u32 m0, s44, s56
            s_add_u32 s45, s45, 16384
            buffer_load_dwordx4 v15, s[36:39], s40 offen lds
            """)
        a(f"""
        s_add_u32 m0, s44, s50
        s_add_u32 s42, s42, {32*3456}
        buffer_load_dwordx4 v14, s[32:35], s43 offen lds
        s_add_u32 s43, s43, {32*1280}
        s_add_u32 s40, s40, 1280
        s_cmp_eq_u32 s43, 819200
        s_cselect_b32 s42, 0, s42
        s_cselect_b32 s43, 0, s43
        s_cselect_b32 s40, s51, s40
        s_add_u32 s44, s44, {WSL}
        s_cmp_ge_u32 s44, {4*WSL}
        s_cselect_b32 s44, 0, s44
        s_cmp_ge_u32 s45, {WB}
        s_cselect_b32 s45, s48, s45
        s_add_u32 s52, s41, 128
        s_cmp_eq_u32 s52, 1280
        s_cselect_b32 s52, 0, s52
        s_add_u32 s53, s41, 163840
        s_bitcmp1_b32 s46, 0
        s_cselect_b32 s41, s52, s41
        s_cselect_b32 s54, s52, s53
        s_cmp_eq_u32 s46, 19
        s_cselect_b32 s26, 0, s26
        s_cmp_lt_u32 s46, s58
        s_cbranch_scc1 {L}_{tag}_issue
        s_waitcnt vmcnt({D})
        s_barrier
        s_add_u32 s58, s58, 1
        s_cmp_le_u32 s58, 20
        s_cbranch_scc1 {L}_{tag}_issue
        """)
        if tag == "ldf": a(f"s_branch {L}_ld_tail")
    a(f"""
    {L}_ld_tail:
    s_load_dwordx2 s[4:5], s[0:1], 32
    s_load_dwordx2 s[6:7], s[0:1], 88
    v_mov_b32 v5, 0
    s_waitcnt vmcnt(0) lgkmcnt(0)
    s_barrier
    global_load_dwordx2 v[20:21], v5, s[6:7] sc0 sc1
    s_barrier
    """)
    srd(a, 8, 18, 19, WS_SIZE)
    srd(a, 12, 18, 19, WS_KV + 64*3072)
    a(f"""
    v_lshlrev_b32 v2, 4, v1
    v_lshlrev_b32 v3, 7, v1
    s_mov_b32 s70, {SPIN}
    s_branch {L}_l_non2
    {L}_l_non:
    global_load_dwordx2 v[20:21], v5, s[6:7] sc0 sc1
    {L}_l_non2:
    s_sub_u32 s70, s70, 1
    s_cbranch_scc1 {L}_l_non3
    s_waitcnt vmcnt(0)
    v_cmp_ne_u32 vcc, 0, v20
    s_cmp_eq_u64 vcc, 0
    s_cbranch_scc1 {L}_l_non
    {L}_l_non3:
    s_lshl_b32 s33, s20, 5
    s_add_u32 s33, s33, s21
    s_lshl_b32 s34, s33, 7
    s_add_u32 s34, s34, {WS_F}
    s_lshl_b32 s35, s20, 12
    s_add_u32 s35, s35, {WS_F}
    s_sub_u32 s53, s21, 27
    s_cmp_ge_u32 s53, 2
    s_cbranch_scc1 {L}_l_nokv
    s_barrier
    s_cmp_lg_u32 s63, 0
    s_cbranch_scc1 {L}_l_nokv
    s_lshl_b32 s52, s20, 1
    s_add_u32 s52, s52, s53
    s_lshl_b32 s52, s52, 7
    s_add_u32 s52, s52, {WS_F+FQ}
    """)
    flag(a, "s52")
    a(f"""
    {L}_l_nokv:
    s_cmp_lt_u32 s21, 27
    s_cbranch_scc1 {L}_l_now
    s_cmp_eq_u32 s63, 0
    s_cbranch_scc1 {L}_l_now
    s_load_dwordx2 s[16:17], s[0:1], 64
    s_mul_i32 s52, s20, 5
    s_add_u32 s52, s52, s53
    s_mul_i32 s52, s52, {7*8192}
    s_waitcnt lgkmcnt(0)
    s_mov_b32 s56, s16
    s_and_b32 s57, s17, 0xffff
    s_mov_b32 s58, 2211840
    s_mov_b32 s59, 0x20000
    s_mov_b32 s54, 7
    {L}_l_warm:
    buffer_load_dword v31, v3, s[56:59], s52 offen
    s_add_u32 s52, s52, 8192
    s_sub_u32 s54, s54, 1
    s_cmp_lg_u32 s54, 0
    s_cbranch_scc1 {L}_l_warm
    {L}_l_now:
    s_mul_i32 s24, s63, 6144
    s_add_u32 s30, s24, {WS_KV}
    s_add_u32 s31, s30, 4096
    s_add_u32 s24, s24, {KVR}
    s_mov_b32 s25, {CH}
    s_mov_b32 s52, {WS_F+FQ}
    s_mov_b64 exec, 0xffff
    """)
    a.c("s34 = own flag line, s35 = flag lines of this row group; s30/s31 kv source, s24 + s25 kv destination")
    stamp(a, 1)
    poll(a, L, "v3", "s52")
    a("s_mov_b64 exec, -1")
    stamp(a, 2)
    def kv():
        a(f"""
        s_add_u32 m0, s25, s24
        s_add_u32 s25, s25, {CH}
        buffer_load_dwordx4 v2, s[12:15], s30 offen{SCL} lds
        buffer_load_dwordx4 v2, s[12:15], s30 offen offset:1024{SCL} lds
        buffer_load_dwordx4 v2, s[12:15], s30 offen offset:2048{SCL} lds
        buffer_load_dwordx4 v2, s[12:15], s30 offen offset:3072{SCL} lds
        s_add_u32 m0, m0, 4096
        s_add_u32 s30, s30, {CH}
        buffer_load_dwordx4 v2, s[12:15], s31 offen{SCL} lds
        buffer_load_dwordx4 v2, s[12:15], s31 offen offset:1024{SCL} lds
        s_add_u32 s31, s31, {CH}
        s_cmp_ge_u32 s25, {3*CH}
        s_cselect_b32 s25, 0, s25
        """)
    a(f"""
    s_mov_b32 m0, {QST+6144}
    s_mov_b32 s52, {WS_KV+1024+63*8+4}
    v_mul_u32_u24 v6, 3072, v1
    buffer_load_dword v6, s[8:11], s52 offen{SCL} lds
    """)
    kv(); kv()
    a(f"""
    s_lshr_b32 s38, s21, 2
    s_mul_i32 s38, s38, 160
    s_movk_i32 s39, 5462
    s_movk_i32 s40, 1280
    """)
    for i in range(3):
        a(f"""
        v_add_u32 v6, {64*i}, v1
        v_mul_u32_u24 v7, s39, v6
        v_lshrrev_b32 v7, 16, v7
        v_mul_u32_u24 v8, 12, v7
        v_sub_u32 v8, v6, v8
        v_mul_u32_u24 v7, s40, v7
        v_lshl_add_u32 v7, v8, 4, v7
        v_add_u32 v7, s38, v7
        v_subrev_u32 v{10+i}, {1024*i}, v7
        """)
    srd(a, 40, 4, 5, 819200)
    a(f"""
    s_mul_i32 s44, s63, {4*20480}
    s_mul_i32 s45, s63, {4*3072}
    s_add_u32 s44, s44, {32*20480}
    s_add_u32 s45, s45, {32*3072}
    s_waitcnt vmcnt(6)
    """)
    stamp(a, 3)
    a("s_barrier")
    def wo(n, tag):
        a(f"""
        s_mov_b32 s47, {n}
        {L}_wo{tag}:
        s_mov_b32 m0, s45
        s_add_u32 s45, s45, 3072
        buffer_load_dwordx4 v10, s[40:43], s44 offen lds
        buffer_load_dwordx4 v11, s[40:43], s44 offen offset:1024 lds
        buffer_load_dwordx4 v12, s[40:43], s44 offen offset:2048 lds
        s_add_u32 s44, s44, 20480
        s_sub_u32 s47, s47, 1
        s_cmp_lg_u32 s47, 0
        s_cbranch_scc1 {L}_wo{tag}
        """)
    def bar_kv():
        a("s_waitcnt vmcnt(0)")
        a("s_barrier")
        kv()
    bar_kv()
    a(f"""
    s_cmp_eq_u32 s63, 1
    s_cbranch_scc1 {L}_gate
    s_lshl_b32 s52, s2, 6
    v_add_u32 v6, s52, v1
    v_lshlrev_b32 v6, 7, v6
    buffer_load_dword v30, v6, s[40:43], 0 offen
    v_mov_b32 v6, {NONCE}
    ds_write_b64 v6, v[20:21]
    v_mov_b32 v8, 0
    v_mov_b32 v9, 0
    ds_write_b64 v6, v[8:9] offset:8
    ds_write_b64 v6, v[8:9] offset:16
    ds_write_b64 v6, v[8:9] offset:24
    ds_write_b64 v6, v[8:9] offset:32
    s_waitcnt vmcnt(1) lgkmcnt(0)
    s_barrier
    """)
    a.c("B1 passed: every wave has drained its h stores")
    flag(a, "s34")
    kv()
    a(f"""
    s_waitcnt vmcnt(0)
    s_branch {L}_gate_done
    {L}_gate:
    s_load_dwordx2 s[16:17], s[0:1], 72
    s_load_dwordx2 s[4:5], s[0:1], 0
    v_and_b32 v16, 7, v1
    v_lshlrev_b32 v16, 4, v16
    v_lshrrev_b32 v17, 3, v1
    s_lshl_b32 s53, s33, 3
    v_add_u32 v18, s53, v17
    s_movk_i32 s54, 1280
    v_mul_lo_u32 v17, v18, s54
    v_add_u32 v17, v17, v16
    s_waitcnt lgkmcnt(0)
    """)
    srd(a, 56, 4, 5, 2621440)
    srd(a, 68, 16, 17, 1280)
    for j in range(10):
        a(f"buffer_load_dwordx4 {vr(72+4*j,4)}, v17, s[56:59], 0 offen offset:{128*j}")
    for j in range(10):
        a(f"buffer_load_dwordx4 {vr(32+4*j,4)}, v16, s[68:71], 0 offen offset:{128*j}")
    a(f"""
    v_lshrrev_b32 v19, 3, v1
    v_lshlrev_b32 v19, 2, v19
    v_mov_b32 v27, {f32(-LOG2E)}
    v_mov_b32 v26, 0
    v_mov_b32 v28, 0
    s_waitcnt vmcnt(20)
    s_barrier
    """)
    kv()
    a("s_waitcnt vmcnt(6)")
    for i in range(0, 40, 2):
        a(f"v_dot2_f32_bf16 v26, v{72+i}, v{32+i}, v26")
        a(f"v_dot2_f32_bf16 v28, v{73+i}, v{33+i}, v28")
    a(f"""
    s_nop 3
    v_add_f32 v26, v26, v28
    s_nop 1
    v_add_f32_dpp v26, v26, v26 quad_perm:[1,0,3,2] row_mask:0xf bank_mask:0xf
    s_nop 1
    v_add_f32_dpp v26, v26, v26 quad_perm:[2,3,0,1] row_mask:0xf bank_mask:0xf
    s_nop 1
    v_add_f32_dpp v26, v26, v26 row_half_mirror row_mask:0xf bank_mask:0xf
    v_cvt_pk_bf16_f32 v26, v26, v26
    v_lshlrev_b32 v26, 16, v26
    v_mul_f32 v26, v27, v26
    v_exp_f32 v26, v26
    s_nop 0
    v_add_f32 v26, 1.0, v26
    v_rcp_f32 v26, v26
    s_nop 0
    v_cvt_pk_bf16_f32 v26, v26, v26
    v_lshlrev_b32 v28, 16, v26
    s_lshl_b32 s53, s33, 7
    s_add_u32 s53, s53, {WS_G}
    v_cmp_eq_u32 vcc, 0, v16
    s_nop 1
    s_mov_b64 exec, vcc
    buffer_store_dword v28, v19, s[8:11], s53 offen sc1
    s_mov_b64 exec, -1
    s_waitcnt vmcnt(1)
    {L}_gate_done:
    s_barrier
    """)
    kv()
    a(f"""
    s_cmp_eq_u32 s63, 1
    s_cbranch_scc1 {L}_l_np
    """)
    a("s_mov_b64 exec, 0x7ffffff")
    poll(a, L, "v3", "s35")
    a(f"""
    s_mov_b64 exec, -1
    {L}_l_np:
    """)
    bar_kv()
    wo(4, "e")
    a(f"""
    s_mul_i32 s44, s63, {16*20480}
    s_mul_i32 s45, s63, {16*3072}
    s_waitcnt vmcnt(12)
    s_barrier
    """)
    kv()
    a(f"""
    s_mov_b32 s46, 5
    {L}_lloop:
    """)
    bar_kv()
    a(f"""
    s_add_u32 s46, s46, 1
    s_cmp_lt_u32 s46, 14
    s_cbranch_scc1 {L}_lloop
    s_add_u32 s34, s34, {F2}
    s_add_u32 s35, s35, {F2}
    """)
    a.c("barrier 13 passed: G waves are done with their ring")
    W0, W1 = [int(x) for x in E("WOS", "5,8").split(",")]
    wo(W0, "a")
    a(f"s_waitcnt vmcnt({3*W0})")
    a("s_barrier")
    wo(W1, "b")
    a("s_barrier")
    wo(16 - W0 - W1, "c")
    a(f"s_cmp_eq_u32 s63, 0\ns_cbranch_scc1 {L}_l_np2")
    a("s_mov_b32 exec_hi, 0")
    poll(a, L, "v3", "s35")
    a(f"{L}_l_np2:")
    a(f"""
    s_mov_b64 exec, 1
    v_mov_b32 v22, {NONCE}
    v_mov_b32 v9, 1
    s_waitcnt vmcnt(0)
    ds_add_u32 v22, v9 offset:12
    s_mov_b64 exec, -1
    s_and_b32 s52, s21, 3
    s_lshl_b32 s52, s52, 9
    s_add_u32 s35, s35, s52
    s_add_u32 s35, s35, {F3-F2}
    s_branch {L}_p3
    """)

    a(f"""
    {L}_comp:
    s_and_b32 s63, s22, 3
    s_lshr_b32 s64, s22, 2
    v_and_b32 v13, 31, v1
    v_lshrrev_b32 v14, 5, v1
    v_bfe_u32 v15, v1, 1, 3
    v_xor_b32 v2, v14, v15
    v_lshlrev_b32 v2, 4, v2
    v_lshl_add_u32 v2, v13, 7, v2
    s_lshl_b32 s52, s63, 13
    s_lshl_b32 s53, s64, 12
    s_add_u32 s52, s52, s53
    v_add_u32 v2, s52, v2
    v_xor_b32 v3, 32, v2
    v_xor_b32 v4, 64, v2
    v_xor_b32 v5, 96, v2
    v_bfe_u32 v15, v1, 2, 2
    v_lshlrev_b32 v7, 3, v14
    v_add_u32 v7, v7, v15
    v_mul_u32_u24 v9, 40, v7
    v_lshlrev_b32 v8, 6, v7
    v_lshlrev_b32 v7, 7, v7
    v_lshrrev_b32 v16, 1, v15
    v_xor_b32 v16, s64, v16
    v_lshl_add_u32 v7, v16, 6, v7
    v_bfe_u32 v16, v1, 4, 1
    v_and_b32 v17, 3, v1
    v_lshlrev_b32 v16, 5, v16
    v_lshl_add_u32 v16, v17, 3, v16
    v_add_u32 v7, v7, v16
    v_add_u32 v8, v8, v16
    v_add_u32 v9, v9, v16
    v_add_u32 v7, {WB}, v7
    v_add_u32 v8, {WB+8192}, v8
    v_add_u32 v9, {WB}, v9
    s_mov_b32 s44, 0
    s_mov_b32 s45, 0
    s_mov_b32 s46, 0
    """)
    a.c("v2..v5 x frag addr (row block 2rp+cp) for the 4 k steps of a pair; v7 W, v8 wq slice, v9 wk/wv slice addr; s63=rp s64=cp")
    for r in range(64, 144):
        a(f"v_mov_b32 v{r}, 0")
    a("s_waitcnt lgkmcnt(0)")
    srd(a, 8, 18, 19, WS_SIZE)
    a(f"""
    s_or_b32 s52, s22, s2
    s_cmp_lg_u32 s52, 0
    s_cbranch_scc1 {L}_nonon
    s_load_dwordx2 s[52:53], s[0:1], 88
    s_memrealtime s[54:55]
    v_mov_b32 v148, 0
    s_waitcnt lgkmcnt(0)
    s_or_b32 s54, s54, 1
    v_mov_b32 v144, s54
    v_mov_b32 v145, s55
    s_mov_b64 exec, 1
    global_store_dwordx2 v148, v[144:145], s[52:53] sc0 sc1
    s_mov_b64 exec, -1
    {L}_nonon:
    s_lshr_b32 s52, s21, 4
    s_xor_b32 s53, s22, 1
    s_or_b32 s52, s52, s53
    s_cmp_lg_u32 s52, 0
    s_cbranch_scc1 {L}_noin
    s_lshl_b32 s52, s20, 5
    s_add_u32 s52, s52, s21
    s_lshl_b32 s52, s52, 7
    s_add_u32 s52, s52, {WS_F+F3}
    s_mov_b64 exec, 1
    buffer_store_dword v64, v64, s[8:11], s52 offen sc1
    s_mov_b64 exec, -1
    {L}_noin:
    """)
    if E("CPF", "1") == "1":
        a(f"""
        s_lshr_b32 s52, s2, {3 + int(E("CPFS", "0"))}
        s_xor_b32 s53, s22, 2
        s_or_b32 s52, s52, s53
        s_cmp_lg_u32 s52, 0
        s_cbranch_scc1 {L}_nocpf
        s_getpc_b64 s[52:53]
        {L}_pc:
        s_sub_u32 s52, s52, {L}_pc-{L}
        s_subb_u32 s53, s53, 0
        v_lshlrev_b32 v144, 7, v1
        global_load_dword v145, v144, s[52:53]
        v_add_u32 v144, 8192, v144
        v_cmp_gt_u32 vcc, {L}_end-{L}, v144
        s_nop 1
        s_mov_b64 exec, vcc
        global_load_dword v145, v144, s[52:53]
        s_mov_b64 exec, -1
        {L}_nocpf:
        """)
    a(f"""
    s_cmp_eq_u32 s21, 27
    s_cbranch_scc1 {L}_modeK
    s_cmp_eq_u32 s21, 28
    s_cbranch_scc1 {L}_modeV
    s_cmp_gt_u32 s21, 28
    s_cbranch_scc1 {L}_modeQ
    """)
    XA = [16, 36]
    XC = [56, 57, 58, 59]
    XD = [60, 61, 62, 63]
    def xaddrs(full):
        l = [f"v_add_u32 v{XC[j]}, s45, v{2+j}" for j in range(4)]
        if full: l += [f"v_xor_b32 v{XD[j]}, 4096, v{XC[j]}" for j in range(4)]
        return l + [f"s_add_u32 s45, s45, {XSL}", f"s_cmp_ge_u32 s45, {WB}", "s_cselect_b32 s45, 0, s45"]
    def waddrs(mode):
        l = ["v_add_u32 v12, s44, v8"]
        if mode == 0: l.append("v_add_u32 v11, s44, v7")
        if mode in (1, 2): l.append("v_add_u32 v11, s44, v9")
        return l + [f"s_add_u32 s44, s44, {WSL}", f"s_cmp_ge_u32 s44, {4*WSL}", "s_cselect_b32 s44, 0, s44"]
    def read_list(j, mode):
        ks = j & 1
        b = XA[ks]
        l = [f"ds_read_b128 {vr(b,4)}, v{XC[j]}"]
        if mode == 0:
            l += [f"ds_read_b64_tr_b16 {vr(b+8,2)}, v11 offset:{ks*2048}",
                  f"ds_read_b64_tr_b16 {vr(b+10,2)}, v11 offset:{ks*2048+512}",
                  f"ds_read_b64_tr_b16 {vr(b+12,2)}, v11 offset:{4096+ks*2048}",
                  f"ds_read_b64_tr_b16 {vr(b+14,2)}, v11 offset:{4096+ks*2048+512}",
                  f"ds_read_b128 {vr(b+4,4)}, v{XD[j]}"]
        if mode in (1, 2):
            l += [f"ds_read_b64_tr_b16 {vr(b+8,2)}, v11 offset:{ks*640}",
                  f"ds_read_b64_tr_b16 {vr(b+10,2)}, v11 offset:{ks*640+160}"]
        l += [f"ds_read_b64_tr_b16 {vr(b+16,2)}, v12 offset:{ks*1024}",
              f"ds_read_b64_tr_b16 {vr(b+18,2)}, v12 offset:{ks*1024+256}"]
        return l
    def mfma_list(ks, mode):
        b = XA[ks]
        x0, x1, wg, wu, ws = vr(b,4), vr(b+4,4), vr(b+8,4), vr(b+12,4), vr(b+16,4)
        l = []
        if mode == 0:
            l = [f"{M} v[64:79], {wg}, {x0}, v[64:79]", f"{M} v[80:95], {wu}, {x0}, v[80:95]",
                 f"{M} v[96:111], {wg}, {x1}, v[96:111]", f"{M} v[112:127], {wu}, {x1}, v[112:127]"]
        if mode == 1: l = [f"{M} v[64:79], {wg}, {x0}, v[64:79]"]
        if mode == 2: l = [f"{M} v[64:79], {x0}, {wg}, v[64:79]"]
        l = l + [f"{M} v[128:143], {ws}, {x0}, v[128:143]"]
        if E("HACK16", "0") == "1" and mode == 0:
            import re
            l2 = []
            for m in l:
                b0 = int(re.search(r"v\[(\d+):", m).group(1)); ops = m.split(", ")
                t = f"v_mfma_f32_16x16x32_bf16 {{d}}, {ops[1]}, {ops[2]}, {{d}}"
                l2.append(t.format(d=vr(b0+8*ks,4)) + "\n" + t.format(d=vr(b0+8*ks+4,4)))
            l = l2
        return l
    def half(ml, rl, post):
        n = len(ml)
        if n == 5 and E("P1V", "1") == "1":
            a("s_waitcnt lgkmcnt(2)")
            cuts = [int(x) for x in E("P1CUT", "3,6,8,8").split(",")]
            lo = 0
            for i, m in enumerate(ml):
                if i == 4: a("s_waitcnt lgkmcnt(8)")
                a(m)
                if i < 4:
                    for x in rl[lo:cuts[i]]: a(x)
                    lo = cuts[i]
                if i == 3:
                    for x in post: a(x)
            return
        a("s_waitcnt lgkmcnt(0)")
        per = -(-len(rl) // max(n - 1, 1))
        for i, m in enumerate(ml):
            a(m)
            if n == 1:
                for x in rl + post: a(x)
                continue
            for x in rl[per*i:per*i+per]: a(x)
            if i == n - 2:
                for x in post: a(x)
    for mode, tag in ((0, "full"), (1, "modeK"), (2, "modeV"), (3, "modeQ")):
        a(f"{L}_{tag}:")
        for x in xaddrs(mode == 0) + waddrs(mode): a(x)
        a("s_barrier")
        for x in read_list(0, mode): a(x)
        stamp(a, 1)
        if mode == 0: a(".p2align 6")
        a(f"{L}_{tag}_loop:")
        half(mfma_list(0, mode), read_list(1, mode), waddrs(mode))
        a("s_barrier")
        half(mfma_list(1, mode), read_list(2, mode), [])
        half(mfma_list(0, mode), read_list(3, mode), waddrs(mode) + xaddrs(mode == 0))
        a("s_barrier")
        half(mfma_list(1, mode), read_list(0, mode), ["s_add_u32 s46, s46, 1", "s_cmp_lt_u32 s46, 10"])
        a(f"s_cbranch_scc1 {L}_{tag}_loop")
        stamp(a, 2)
        a(f"""
        s_lshl_b32 s52, s20, 3
        s_lshl_b32 s53, s63, 1
        s_add_u32 s52, s52, s53
        s_add_u32 s52, s52, s64
        v_lshlrev_b32 v2, 4, v1
        """)
        a(f"s_branch {L}_epi{mode}")
    a.c("s52 = global row block of acc set 0 and of the q chain (set 1 is s52 ^ 1)")
    EK = 64
    a(f"""
    {L}_epi1:
    s_mul_i32 s53, s52, 3072
    s_add_u32 s53, s53, {WS_KV}
    s_nop 7
    s_waitcnt lgkmcnt(0)
    """)
    for i in range(4): a(f"v_cvt_pk_bf16_f32 v{20+i}, v{EK+2*i}, v{EK+2*i+1}")
    a(f"buffer_store_dwordx4 v[20:23], v2, s[8:11], s53 offen{SC}")
    a(f"v_cvt_pk_bf16_f32 v24, v{EK+8}, v{EK+9}")
    a(f"v_cvt_pk_bf16_f32 v25, v{EK+10}, v{EK+11}")
    a("v_mov_b32 v26, 0x3f803f80")
    a("v_mov_b32 v27, 0x00003f80")
    a(f"v_mul_f32 v30, v{EK}, v{EK}")
    for i in range(1, 8): a(f"v_fmac_f32 v30, v{EK+i}, v{EK+i}")
    a(f"v_mul_f32 v31, v{EK+8}, v{EK+8}")
    for i in range(9, 12): a(f"v_fmac_f32 v31, v{EK+i}, v{EK+i}")
    a(f"""
    v_cmp_gt_u32 vcc, 32, v1
    s_nop 1
    v_cndmask_b32 v31, 0, v31, vcc
    v_add_f32 v30, v30, v31
    v_mov_b32 v31, v30
    s_nop 1
    v_permlane32_swap_b32 v30, v31
    s_nop 1
    v_add_f32 v30, v30, v31
    """)
    for sh in (1, 2, 4, 8):
        a("s_nop 1")
        a(f"v_max_f32_dpp v30, v30, v30 row_shr:{sh} row_mask:0xf bank_mask:0xf")
    a(f"""
    s_nop 1
    v_max_f32_dpp v30, v30, v30 row_bcast:15 row_mask:0xa bank_mask:0xf
    v_cmp_eq_u32 vcc, 63, v1
    v_and_b32 v30, 0xffff0000, v30
    v_or_b32 v30, 0x3f80, v30
    v_cndmask_b32 v27, v27, v30, vcc
    v_cmp_gt_u32 vcc, 32, v1
    v_lshlrev_b32 v16, 3, v1
    s_nop 0
    v_cndmask_b32 v24, v26, v24, vcc
    v_cndmask_b32 v25, v27, v25, vcc
    buffer_store_dwordx2 v[24:25], v16, s[8:11], s53 offen offset:1024{SC}
    s_branch {L}_kvdone
    {L}_epi2:
    s_mul_i32 s53, s52, 3072
    s_add_u32 s53, s53, {WS_KV+1536}
    v_and_b32 v17, 31, v1
    v_lshrrev_b32 v18, 5, v1
    v_mul_u32_u24 v18, 384, v18
    v_lshl_add_u32 v16, v17, 4, v18
    v_mov_b32 v19, 0x3f803f80
    v_cmp_eq_u32 vcc, 20, v17
    v_cmp_lt_u32 s[54:55], 19, v17
    s_nop 3
    v_cndmask_b32 v19, 0, v19, vcc
    s_waitcnt lgkmcnt(0)
    """)
    for i in range(8): a(f"v_cvt_pk_bf16_f32 v{20+i}, v{EK+2*i}, v{EK+2*i+1}")
    for i in range(8): a(f"v_cndmask_b32 v{20+i}, v{20+i}, v19, s[54:55]")
    a(f"""
    v_cmp_gt_u32 vcc, 24, v17
    s_nop 1
    s_and_b64 exec, exec, vcc
    buffer_store_dwordx4 v[20:23], v16, s[8:11], s53 offen{SC}
    buffer_store_dwordx4 v[24:27], v16, s[8:11], s53 offen offset:768{SC}
    {L}_kvdone:
    s_mov_b64 exec, -1
    s_waitcnt vmcnt(0)
    s_barrier
    s_branch {L}_epi3
    """)
    C0 = -2.0 * 0.7978845608028654 * LOG2E
    C1 = C0 * 0.044715
    a(f"""
    {L}_epi0:
    v_mov_b32 v16, {f32(C0)}
    v_mov_b32 v17, {f32(C1)}
    s_lshl_b32 s54, s21, 12
    s_lshl_b32 s55, s64, 11
    s_add_u32 s54, s54, s55
    s_add_u32 s54, s54, {WS_H}
    s_mul_i32 s53, s52, {108*1024}
    s_add_u32 s53, s53, s54
    s_xor_b32 s55, s52, 1
    s_mul_i32 s55, s55, {108*1024}
    s_add_u32 s54, s54, s55
    s_waitcnt lgkmcnt(0)
    """)
    for j in range(2):
        G, U = 64 + 32*j, 80 + 32*j
        for hf in range(2):
            T = 20
            rs = list(range(8*hf, 8*hf+8))
            for i, r in enumerate(rs): a(f"v_mul_f32 v{T+i}, v{G+r}, v{G+r}")
            for i, r in enumerate(rs): a(f"v_fma_f32 v{T+i}, v{T+i}, v17, v16")
            for i, r in enumerate(rs): a(f"v_mul_f32 v{T+i}, v{G+r}, v{T+i}")
            for i, r in enumerate(rs): a(f"v_exp_f32 v{T+i}, v{T+i}")
            for i, r in enumerate(rs): a(f"v_mul_f32 v{U+r}, v{G+r}, v{U+r}")
            for i, r in enumerate(rs): a(f"v_add_f32 v{T+i}, 1.0, v{T+i}")
            for i, r in enumerate(rs): a(f"v_rcp_f32 v{T+i}, v{T+i}")
            a("s_nop 0")
            for i, r in enumerate(rs): a(f"v_mul_f32 v{T+i}, v{U+r}, v{T+i}")
            O = 28 + 4*(2*j+hf)
            for i in range(4): a(f"v_cvt_pk_bf16_f32 v{O+i}, v{T+2*i}, v{T+2*i+1}")
            a(f"buffer_store_dwordx4 {vr(O,4)}, v2, s[8:11], s{53+j} offen offset:{1024*hf}{SC}")
    a(f"""
    {L}_epi3:
    """)
    if E("ES"): stamp(a, 6)
    a(f"""
    s_nop 7
    v_mov_b32 v144, {f32(QSCALE)}
    s_waitcnt lgkmcnt(0)
    """)
    for i in range(12): a(f"v_mul_f32 v{128+i}, v144, v{128+i}")
    for i in range(6): a(f"v_cvt_pk_bf16_f32 v{QA1+i}, v{128+2*i}, v{129+2*i}")
    a(f"""
    s_mul_i32 s52, s63, 1536
    s_add_u32 s52, s52, {QST}
    v_add_u32 v144, s52, v2
    v_lshl_add_u32 v145, v1, 3, s52
    s_cmp_ge_u32 s22, 4
    s_cbranch_scc1 {L}_gwave
    """)
    a(f"""
    s_setprio {E("APRIO", "1")}
    v_and_b32 v9, 31, v1
    v_lshrrev_b32 v10, 5, v1
    v_add_u32 v3, {KVR}, v2
    v_lshlrev_b32 v4, 3, v1
    v_add_u32 v4, {KVR+1024}, v4
    v_min_u32 v5, 23, v9
    v_mul_u32_u24 v11, 384, v10
    v_lshl_add_u32 v5, v5, 4, v11
    v_add_u32 v5, {KVR+1536}, v5
    v_lshlrev_b32 v146, 2, v1
    v_add_u32 v146, {QST+6144}, v146
    v_add_u32 v6, {CH}, v3
    v_add_u32 v7, {CH}, v4
    v_add_u32 v8, {CH}, v5
    s_mov_b32 s27, {2*CH}
    s_mov_b32 s30, 0
    v_cmp_gt_u32 s[28:29], 32, v1
    v_lshlrev_b32 v60, 3, v9
    v_lshl_add_u32 v60, v10, 8, v60
    s_lshl_b32 s33, s20, 3
    s_lshl_b32 s52, s22, 1
    s_add_u32 s33, s33, s52
    s_mul_i32 s33, s33, 40960
    s_mul_i32 s52, s21, 1280
    s_add_u32 s33, s33, s52
    s_add_u32 s33, s33, {WS_O}
    s_add_u32 s31, s33, 40960
    """)
    a.c("v60 = o store offset, s33/s31 = o image base of block a / b")
    for r in list(range(OA, OA+32)) + list(range(PB, PB+8)) + list(range(KVB[1]+8, KVB[1]+16)):
        a(f"v_mov_b32 v{r}, 0")
    def qnorm(q1, q2, t, extra=()):
        ex = list(extra) + [""] * 2
        a(f"""
        v_cndmask_b32 v{q2}, 0, v{q2}, s[28:29]
        v_cndmask_b32 v{q2+1}, 0, v{q2+1}, s[28:29]
        v_mov_b32 v{t}, 0
        {ex[0]}
        v_dot2_f32_bf16 v{t}, v{q1}, v{q1}, v{t}
        v_dot2_f32_bf16 v{t}, v{q1+1}, v{q1+1}, v{t}
        v_dot2_f32_bf16 v{t}, v{q1+2}, v{q1+2}, v{t}
        {ex[1]}
        v_dot2_f32_bf16 v{t}, v{q1+3}, v{q1+3}, v{t}
        v_dot2_f32_bf16 v{t}, v{q2}, v{q2}, v{t}
        v_dot2_f32_bf16 v{t}, v{q2+1}, v{q2+1}, v{t}
        """)
    qnorm(QA1, QA2, 147)
    if E("ES"): stamp(a, 3)
    a(f"""
    s_barrier
    ds_read_b32 v146, v146
    ds_read_b128 {vr(QB1,4)}, v144
    ds_read_b64 {vr(QB2,2)}, v145 offset:1024
    ds_read_b128 {vr(KVB[0],4)}, v6
    ds_read_b64 {vr(KVB[0]+4,2)}, v7
    ds_read_b128 {vr(KVB[1],4)}, v6 offset:3072
    ds_read_b64 {vr(KVB[1]+4,2)}, v7 offset:3072
    ds_read_b128 {vr(KVB[0]+8,4)}, v8
    ds_read_b128 {vr(KVB[0]+12,4)}, v8 offset:768
    """)
    stamp(a, 4)
    dm = lambda k: f"v_max_f32_dpp v146, v146, v146 {k} bank_mask:0xf"
    a(f"""
    v_mov_b32 v149, v147
    s_waitcnt lgkmcnt(6)
    v_and_b32 v146, 0xffff0000, v146
    v_permlane32_swap_b32 v147, v149
    s_nop 0
    {dm("row_shr:1 row_mask:0xf")}
    v_add_f32 v147, v147, v149
    s_nop 0
    {dm("row_shr:2 row_mask:0xf")}
    """)
    qnorm(QB1, QB2, 148, [dm("row_shr:4 row_mask:0xf"), dm("row_shr:8 row_mask:0xf")])
    a(f"""
    {dm("row_bcast:15 row_mask:0xa")}
    s_nop 1
    v_mov_b32 v150, v148
    {dm("row_bcast:31 row_mask:0xc")}
    s_nop 0
    v_permlane32_swap_b32 v148, v150
    v_readlane_b32 s26, v146, 63
    s_nop 0
    v_add_f32 v148, v148, v150
    v_mul_f32 v147, s26, v147
    v_mul_f32 v148, s26, v148
    v_sqrt_f32 v147, v147
    v_sqrt_f32 v148, v148
    v_mul_f32 v147, {f32(1.02)}, v147
    v_mul_f32 v148, {f32(1.02)}, v148
    """)
    def set_shift(ma, mb):
        for m, q2 in ((ma, QA2), (mb, QB2)):
            split3(a, m, q2+2, q2+3, 149, 150)
            a(f"v_cndmask_b32 v{q2}, v{q2+2}, v{q2}, s[28:29]")
            a(f"v_cndmask_b32 v{q2+1}, v{q2+3}, v{q2+1}, s[28:29]")
    set_shift(147, 148)
    a("s_waitcnt lgkmcnt(0)")
    for x in qk(SA, KVB[0], QA1, QA2): a(x)
    a("s_nop 11")
    a(".p2align 6")
    a(f"{L}_aloop:")
    for t in range(4):
        cur, nxt = KVB[t & 1], KVB[(t + 1) & 1]
        aslot(a, SA, PA, qk(SB, cur, QB1, QB2) + pv(OB, nxt, PB))
        pre = ["s_waitcnt lgkmcnt(0)" if t != 3 else "s_waitcnt vmcnt(0) lgkmcnt(0)"]
        if t == 0 and STAMP: pre.append("s_memtime s[38:39]")
        if t == 0: pre.append("s_barrier")
        if t == 0 and STAMP: pre.append("s_memtime s[36:37]")
        if t == 1 and STAMP: pre += ["s_mov_b32 m0, s30", "s_nop 0", "v_writelane_b32 v61, s36, m0", "v_writelane_b32 v62, s38, m0"]
        if t == 2:
            pre += ["v_add_u32 v6, s27, v3", "v_add_u32 v7, s27, v4"]
        if t == 3:
            pre += ["v_add_u32 v8, s27, v5",
                    f"s_add_u32 s27, s27, {CH}", f"s_cmp_ge_u32 s27, {3*CH}", "s_cselect_b32 s27, 0, s27"]
        ko = ((t + 2) & 3) * 3072
        vo = ((t + 1) & 3) * 3072
        rd = [f"ds_read_b128 {vr(cur,4)}, v6 offset:{ko}",
              f"ds_read_b64 {vr(cur+4,2)}, v7 offset:{ko}",
              f"ds_read_b128 {vr(nxt+8,4)}, v8 offset:{vo}",
              f"ds_read_b128 {vr(nxt+12,4)}, v8 offset:{vo+768}"]
        aslot(a, SB, PB, qk(SA, nxt, QA1, QA2) + pv(OA, cur, PA), pre, rd)
    a(f"""
    s_add_u32 s30, s30, 1
    s_cmp_lt_u32 s30, 16
    s_cbranch_scc1 {L}_aloop
    s_nop 1
    """)
    for x in pv(OB, KVB[1], PB): a(x)
    stamp(a, 5)
    a(f"""
    s_mov_b32 s34, 0
    {L}_aepi:
    s_mov_b32 s35, {f32(2.0**-90)}
    s_waitcnt lgkmcnt(0)
    s_nop 11
    v_mov_b32 v144, v{OA+8}
    v_mov_b32 v145, v{OA+8}
    v_mov_b32 v146, v{OB+8}
    v_mov_b32 v147, v{OB+8}
    s_nop 0
    v_permlane32_swap_b32 v144, v145
    v_permlane32_swap_b32 v146, v147
    s_nop 0
    v_cmp_nle_f32 vcc, s35, v145
    v_cmp_nle_f32 s[36:37], s35, v147
    v_rcp_f32 v145, v145
    v_rcp_f32 v147, v147
    s_or_b64 s[36:37], vcc, s[36:37]
    s_cmp_eq_u32 s34, 0
    s_cselect_b64 s[36:37], s[36:37], 0
    s_cmp_lg_u64 s[36:37], 0
    s_cbranch_scc1 {L}_slow
    """)
    for blk, O in enumerate((OA, OB)):
        R = 145 + 2*blk
        for q in range(3):
            for i in range(4): a(f"v_mul_f32 v{O+4*q+i}, v{R}, v{O+4*q+i}")
            D = 64 + 8*blk + 2*q
            a(f"v_cvt_pk_bf16_f32 v{D}, v{O+4*q}, v{O+4*q+1}")
            a(f"v_cvt_pk_bf16_f32 v{D+1}, v{O+4*q+2}, v{O+4*q+3}")
            if q == 2: a("s_mov_b32 exec_hi, 0")
            a(f"buffer_store_dwordx2 {vr(D,2)}, v60, s[8:11], s{33 if blk == 0 else 31} offen offset:{512*q} sc1")
            if q == 2: a("s_mov_b64 exec, -1")
    if STAMP:
        a(f"""
        s_lshl_b32 s36, s2, 2
        s_add_u32 s36, s36, s22
        s_lshl_b32 s36, s36, 9
        s_add_u32 s36, s36, {0x1900000}
        v_lshlrev_b32 v63, 2, v1
        buffer_store_dword v61, v63, s[8:11], s36 offen
        buffer_store_dword v62, v63, s[8:11], s36 offen offset:256
        """)
    a(f"""
    s_setprio 0
    s_lshl_b32 s36, s20, 5
    s_lshl_b32 s37, s22, 2
    s_add_u32 s36, s36, s37
    s_lshr_b32 s37, s21, 3
    s_add_u32 s36, s36, s37
    s_lshl_b32 s36, s36, 7
    s_add_u32 s36, s36, {WS_F+F3}
    v_mov_b32 v9, 1
    v_mov_b32 v5, 0
    s_waitcnt vmcnt(0)
    s_mov_b64 exec, 1
    buffer_atomic_add v9, v5, s[8:11], s36 offen sc1
    s_mov_b64 exec, -1
    """)
    if not E("ES"): stamp(a, 3)
    a(f"""
    s_branch {L}_p3
    """)
    kb = KVB[0]
    a(f"""
    {L}_slow:
    s_mov_b32 s34, 1
    v_cndmask_b32 v{QA2}, 0, v{QA2}, s[28:29]
    v_cndmask_b32 v{QA2+1}, 0, v{QA2+1}, s[28:29]
    v_cndmask_b32 v{QB2}, 0, v{QB2}, s[28:29]
    v_cndmask_b32 v{QB2+1}, 0, v{QB2+1}, s[28:29]
    v_mov_b32 v147, 0xff800000
    v_mov_b32 v148, 0xff800000
    s_mov_b32 s36, {WS_KV - KVR}
    {L}_slow1:
    buffer_load_dwordx4 {vr(kb,4)}, v3, s[8:11], s36 offen sc1
    buffer_load_dwordx2 {vr(kb+4,2)}, v4, s[8:11], s36 offen sc1
    s_add_u32 s36, s36, 3072
    s_waitcnt vmcnt(0)
    """)
    for x in qk(SA, kb, QA1, QA2) + qk(SB, kb, QB1, QB2): a(x)
    a("s_nop 15")
    for i in range(0, 16, 2):
        a(f"v_max3_f32 v147, v{SA+i}, v{SA+i+1}, v147")
        a(f"v_max3_f32 v148, v{SB+i}, v{SB+i+1}, v148")
    a(f"""
    s_cmp_lt_u32 s36, {WS_KV - KVR + 64*3072}
    s_cbranch_scc1 {L}_slow1
    v_mov_b32 v149, v147
    v_mov_b32 v150, v148
    s_nop 1
    v_permlane32_swap_b32 v147, v149
    v_permlane32_swap_b32 v148, v150
    s_nop 1
    v_max_f32 v147, v147, v149
    v_max_f32 v148, v148, v150
    """)
    set_shift(147, 148)
    for r in range(OA, OA+32): a(f"v_mov_b32 v{r}, 0")
    a(f"""
    s_mov_b32 s36, {WS_KV - KVR}
    {L}_slow2:
    buffer_load_dwordx4 {vr(kb,4)}, v3, s[8:11], s36 offen sc1
    buffer_load_dwordx2 {vr(kb+4,2)}, v4, s[8:11], s36 offen sc1
    buffer_load_dwordx4 {vr(kb+8,4)}, v5, s[8:11], s36 offen sc1
    buffer_load_dwordx4 {vr(kb+12,4)}, v5, s[8:11], s36 offen offset:768 sc1
    s_add_u32 s36, s36, 3072
    s_waitcnt vmcnt(0)
    """)
    for x in qk(SA, kb, QA1, QA2) + qk(SB, kb, QB1, QB2): a(x)
    a("s_nop 15")
    for g in exp_groups(SA, PA) + exp_groups(SB, PB):
        for x in g: a(x)
    a("s_nop 1")
    for x in pv(OA, kb, PA) + pv(OB, kb, PB): a(x)
    a(f"""
    s_cmp_lt_u32 s36, {WS_KV - KVR + 64*3072}
    s_cbranch_scc1 {L}_slow2
    s_nop 7
    s_branch {L}_aepi
    """)

    a(f"""
    {L}_gwave:
    ds_write_b128 v144, {vr(QA1,4)}
    ds_write_b64 v145, {vr(QA2,2)} offset:1024
    s_load_dwordx2 s[6:7], s[0:1], 64
    s_and_b32 s16, s22, 3
    s_and_b32 s57, s21, 3
    s_lshl_b32 s57, s57, 3
    s_lshr_b32 s34, s21, 2
    s_add_u32 s57, s57, s34
    s_cmp_ge_u32 s57, 15
    s_cselect_b32 s33, 1, 0
    s_cselect_b32 s34, 15, 0
    s_sub_u32 s34, s57, s34
    s_lshl_b32 s35, s20, 1
    s_add_u32 s33, s33, s35
    s_mul_i32 s35, s34, 13
    s_lshr_b32 s35, s35, 6
    s_mul_i32 s36, s35, 5
    s_sub_u32 s34, s34, s36
    s_waitcnt lgkmcnt(0)
    """)
    if E("ES"): stamp(a, 3)
    a(f"""
    s_barrier
    s_lshl_b32 s36, s33, 2
    s_add_u32 s36, s36, s16
    s_mul_i32 s36, s36, 108
    s_mul_i32 s37, s35, 36
    s_add_u32 s36, s36, s37
    s_lshl_b32 s36, s36, 10
    s_add_u32 s40, s36, {WS_H}
    s_mul_i32 s41, s35, {576*1280}
    s_mul_i32 s36, s16, {16*1280}
    s_add_u32 s41, s41, s36
    s_lshl_b32 s36, s34, 8
    s_add_u32 s41, s41, s36
    v_lshrrev_b32 v3, 4, v1
    v_lshlrev_b32 v4, 2, v3
    v_and_b32 v5, 15, v1
    v_xor_b32 v4, v4, v5
    s_movk_i32 s36, 1280
    v_mul_u32_u24 v3, s36, v3
    v_lshl_add_u32 v3, v4, 4, v3
    v_add_u32 v4, {5120-1024}, v3
    v_add_u32 v5, {2*(5120-1024)}, v3
    v_add_u32 v13, {3*(5120-1024)}, v3
    s_lshl_b32 s42, s16, 12
    s_add_u32 s43, s42, 16384
    s_mov_b32 s45, 0
    s_mov_b32 s30, 0
    s_mov_b32 s46, 0
    s_cmp_lt_u32 s57, 30
    s_cselect_b32 s47, 9, 0
    s_cselect_b32 s50, {WS_SIZE}, 0
    s_cselect_b32 s54, 2211840, 0
    s_mov_b32 s48, s18
    s_and_b32 s49, s19, 0xffff
    s_mov_b32 s51, 0x20000
    s_mov_b32 s55, 0x20000
    s_mov_b32 m0, s43
    s_mov_b32 s52, s6
    s_and_b32 s53, s7, 0xffff
    """)
    a.c("s33 = row group (128 rows), s34 = col group (128 cols), s35 = k split, s47 = stages of this WG")
    def gw():
        a(f"""
        buffer_load_dwordx4 v3, s[52:55], s41 offen lds
        buffer_load_dwordx4 v4, s[52:55], s41 offen offset:1024 lds
        buffer_load_dwordx4 v5, s[52:55], s41 offen offset:2048 lds
        buffer_load_dwordx4 v13, s[52:55], s41 offen offset:3072 lds
        s_add_u32 s41, s41, {64*1280}
        """)
    def gh():
        a(f"""
        buffer_load_dwordx4 v2, s[48:51], s40 offen{SCL} lds
        buffer_load_dwordx4 v2, s[48:51], s40 offen offset:1024{SCL} lds
        buffer_load_dwordx4 v2, s[48:51], s40 offen offset:2048{SCL} lds
        buffer_load_dwordx4 v2, s[48:51], s40 offen offset:3072{SCL} lds
        s_add_u32 s40, s40, 4096
        """)
    gw()
    a(f"""
    s_and_b32 s36, s16, 1
    s_lshr_b32 s37, s16, 1
    s_lshl_b32 s38, s36, 13
    v_add_u32 v6, s38, v2
    v_lshrrev_b32 v8, 5, v1
    v_bfe_u32 v9, v1, 2, 2
    v_lshl_add_u32 v8, v8, 2, v9
    v_lshlrev_b32 v8, 8, v8
    s_lshl_b32 s38, s37, 1
    v_xor_b32 v9, s38, v9
    v_lshl_add_u32 v8, v9, 6, v8
    v_bfe_u32 v9, v1, 4, 1
    v_lshl_add_u32 v8, v9, 5, v8
    v_and_b32 v9, 3, v1
    v_lshl_add_u32 v8, v9, 3, v8
    v_add_u32 v7, 16384, v8
    v_xor_b32 v8, 64, v7
    """)
    for r in range(64, 128): a(f"v_mov_b32 v{r}, 0")
    a(f"""
    s_mov_b32 m0, s42
    s_barrier
    s_waitcnt vmcnt(0)
    s_barrier
    s_barrier
    s_barrier
    """)
    gh()
    a(f"""
    s_mov_b32 s44, {GSL}
    s_branch {L}_gin
    {L}_gloop:
    s_barrier
    {L}_gin:
    s_add_u32 s46, s46, 1
    s_cmp_ge_u32 s46, s47
    s_cbranch_scc1 {L}_gnod
    s_add_u32 m0, s44, s42
    s_nop 0
    """)
    gh()
    a("s_add_u32 m0, s44, s43")
    a(f"s_add_u32 s44, s44, {GSL}")
    gw()
    a(f"""
    s_cmp_ge_u32 s44, {3*GSL}
    s_cselect_b32 s44, 0, s44
    {L}_gnod:
    s_sub_u32 s36, s30, 1
    s_cmp_ge_u32 s36, s47
    s_cbranch_scc1 {L}_gskip
    v_add_u32 v10, s45, v6
    v_add_u32 v11, s45, v7
    v_add_u32 v12, s45, v8
    s_add_u32 s45, s45, {GSL}
    s_cmp_ge_u32 s45, {3*GSL}
    s_cselect_b32 s45, 0, s45
    """)
    FB = [16, 32]
    def rl(ks):
        b = FB[ks & 1]
        return [f"ds_read_b128 {vr(b,4)}, v10 offset:{ks*1024}",
                f"ds_read_b64_tr_b16 {vr(b+8,2)}, v11 offset:{ks*4096}",
                f"ds_read_b64_tr_b16 {vr(b+10,2)}, v11 offset:{ks*4096+2048}",
                f"ds_read_b64_tr_b16 {vr(b+12,2)}, v12 offset:{ks*4096}",
                f"ds_read_b64_tr_b16 {vr(b+14,2)}, v12 offset:{ks*4096+2048}",
                f"ds_read_b128 {vr(b+4,4)}, v10 offset:{ks*1024+4096}"]
    def ml(ks):
        b = FB[ks & 1]
        x0, x1, w0, w1 = vr(b,4), vr(b+4,4), vr(b+8,4), vr(b+12,4)
        return [f"{M} v[64:79], {w0}, {x0}, v[64:79]", f"{M} v[80:95], {w1}, {x0}, v[80:95]",
                f"{M} v[96:111], {w0}, {x1}, v[96:111]", f"{M} v[112:127], {w1}, {x1}, v[112:127]"]
    for x in rl(0): a(x)
    for ks in range(4):
        a("s_waitcnt lgkmcnt(0)")
        r = rl(ks + 1) if ks < 3 else []
        for i, m in enumerate(ml(ks)):
            a(m)
            for x in r[2*i:2*i+2]: a(x)
    a(f"""
    s_cmp_lg_u32 s30, s47
    s_cbranch_scc1 {L}_gskip
    s_barrier
    s_lshl_b32 s36, s35, 6
    s_lshl_b32 s37, s33, 2
    s_add_u32 s36, s36, s37
    s_and_b32 s37, s16, 1
    s_lshl_b32 s37, s37, 1
    s_add_u32 s36, s36, s37
    s_mul_i32 s36, s36, 40
    s_lshl_b32 s37, s34, 3
    s_add_u32 s36, s36, s37
    s_lshr_b32 s37, s16, 1
    s_lshl_b32 s37, s37, 2
    s_add_u32 s36, s36, s37
    s_lshl_b32 s36, s36, 10
    s_add_u32 s36, s36, {WS_B}
    s_add_u32 s37, s36, 40960
    s_nop 7
    """)
    for u in range(4):
        A = 64 + 16*u
        for qp in range(2):
            O = 16 + 4*((2*u+qp) % 8)
            for i in range(4):
                a(f"v_cvt_pk_bf16_f32 v{O+i}, v{A+8*qp+2*i}, v{A+8*qp+2*i+1}")
            a(f"buffer_store_dwordx4 {vr(O,4)}, v2, s[8:11], s{36 + (u>>1)} offen offset:{(u&1)*2048 + qp*1024} sc1")
    a(f"""
    s_branch {L}_gend2
    {L}_gskip:
    s_add_u32 s30, s30, 1
    s_cmp_ge_u32 s30, 10
    s_cbranch_scc1 {L}_gend
    s_cmp_lt_u32 s46, s47
    s_cbranch_scc1 {L}_gw8
    s_waitcnt vmcnt(0)
    {L}_gw8:
    s_waitcnt vmcnt(8)
    s_branch {L}_gloop
    {L}_gend:
    s_barrier
    {L}_gend2:
    v_mov_b32 v22, {NONCE}
    v_mov_b32 v9, 1
    ds_read_b64 v[20:21], v22
    s_lshl_b32 s36, s20, 5
    s_add_u32 s36, s36, s21
    s_lshl_b32 s36, s36, 7
    s_add_u32 s36, s36, {WS_F+F2}
    v_mov_b32 v5, 0
    s_barrier
    s_waitcnt vmcnt(0)
    s_mov_b64 exec, 1
    ds_add_rtn_u32 v9, v22, v9 offset:32
    s_waitcnt lgkmcnt(0)
    v_readfirstlane_b32 s37, v9
    s_cmp_lg_u32 s37, 3
    s_cbranch_scc1 {L}_gsig2
    buffer_store_dwordx2 v[20:21], v5, s[8:11], s36 offen sc1
    {L}_gsig2:
    s_mov_b64 exec, -1
    s_barrier
    """)

    a(f"""
    {L}_p3:
    s_load_dwordx2 s[4:5], s[0:1], 80
    s_lshl_b32 s17, s20, 3
    s_and_b32 s16, s21, 3
    s_lshl_b32 s16, s16, 1
    s_add_u32 s17, s17, s16
    s_lshr_b32 s16, s21, 2
    s_and_b32 s36, s22, 1
    s_lshr_b32 s39, s22, 1
    s_add_u32 s36, s17, s36
    s_mul_i32 s36, s36, 40
    s_mul_i32 s37, s39, 10
    s_add_u32 s36, s36, s37
    s_lshl_b32 s36, s36, 10
    s_add_u32 s36, s36, {WS_O}
    s_add_u32 s37, s36, 4096
    s_add_u32 s38, s36, 8192
    v_lshrrev_b32 v8, 5, v1
    v_bfe_u32 v9, v1, 2, 2
    v_lshl_add_u32 v8, v8, 2, v9
    v_mul_u32_u24 v8, 192, v8
    v_bfe_u32 v9, v1, 4, 1
    v_lshl_add_u32 v8, v9, 5, v8
    v_and_b32 v9, 3, v1
    v_lshl_add_u32 v8, v9, 3, v8
    s_lshl_b32 s48, s39, 2
    s_mul_i32 s49, s39, 30720
    v_add_u32 v8, s49, v8
    v_lshlrev_b32 v7, 3, v1
    v_and_b32 v6, 31, v1
    s_lshl_b32 s39, s17, 5
    v_add_u32 v6, s39, v6
    v_lshrrev_b32 v4, 3, v6
    v_lshlrev_b32 v4, 7, v4
    v_and_b32 v9, 7, v1
    v_lshl_add_u32 v4, v9, 2, v4
    s_mov_b32 s40, {WS_G}
    s_mul_i32 s41, s16, 10
    s_add_u32 s41, s41, s22
    s_lshr_b32 s42, s41, 1
    s_lshl_b32 s42, s42, 10
    s_and_b32 s43, s41, 1
    s_lshl_b32 s43, s43, 3
    s_add_u32 s42, s42, s43
    s_mul_i32 s43, s17, 40960
    s_add_u32 s42, s42, s43
    s_add_u32 s42, s42, {WS_B}
    v_mov_b32 v22, {NONCE}
    s_lshr_b32 s46, s22, 1
    s_lshl_b32 s45, 1, s46
    """)
    a.c("s17 = first row block of the tile, s16 = column group; final items: quad = wave, both row blocks")
    def bg():
        a("buffer_load_dword v140, v4, s[8:11], s40 offen sc1")
        a("buffer_load_dword v141, v4, s[8:11], s40 offen offset:512 sc1")
        for j in range(2):
            for sk in range(3):
                a(f"s_add_u32 s43, s42, {j*40960 + sk*64*40960}")
                a(f"buffer_load_dwordx2 {vr(128+6*j+2*sk,2)}, v2, s[8:11], s43 offen sc1")
    a(f"""
    s_movk_i32 s43, 1280
    v_mul_lo_u32 v6, v6, s43
    v_lshrrev_b32 v9, 5, v1
    v_lshl_add_u32 v6, v9, 3, v6
    s_lshl_b32 s41, s41, 4
    s_add_u32 s44, s41, 40960
    s_waitcnt lgkmcnt(0)
    """)
    srd(a, 12, 4, 5, 2621440)
    for r in range(64, 112): a(f"v_mov_b32 v{r}, 0")
    WF = [112, 144]
    def wr(ks):
        b = WF[ks & 1]
        return [f"ds_read_b64_tr_b16 {vr(b+4*cb+2*t,2)}, v8 offset:{ks*3072 + t*1536 + 64*cb}" for cb in range(3) for t in range(2)]
    a(f"""
    s_mov_b32 s70, {SPIN}
    s_cmp_lg_u32 s22, 8
    s_cbranch_scc1 {L}_p3w
    s_mov_b64 exec, 0xf
    {L}_p3poll:
    buffer_load_dword v24, v3, s[8:11], s35 offen sc1
    s_sub_u32 s70, s70, 1
    s_cselect_b32 s47, -1, 0
    s_waitcnt vmcnt(0)
    v_cmp_eq_u32 vcc, 8, v24
    s_or_b32 s47, s47, vcc_lo
    s_or_b32 s47, s47, 0xfffffff0
    v_mov_b32 v23, s47
    ds_write_b32 v22, v23 offset:8
    s_sleep {E("PSLEEP", "2")}
    s_cmp_lg_u32 s47, -1
    s_cbranch_scc1 {L}_p3poll
    """)
    stamp(a, 6)
    a(f"""
    s_mov_b64 exec, -1
    {L}_p3w:
    ds_read_b64 v[10:11], v22 offset:8
    s_waitcnt lgkmcnt(0)
    v_readfirstlane_b32 s47, v10
    v_readfirstlane_b32 s46, v11
    s_or_b32 s47, s47, 0x10
    s_and_b32 s47, s47, s45
    s_xor_b32 s47, s47, s45
    s_xor_b32 s46, s46, 2
    s_or_b32 s47, s47, s46
    s_cmp_eq_u32 s47, 0
    s_cbranch_scc1 {L}_p3go
    s_sleep 1
    s_branch {L}_p3w
    {L}_p3go:
    s_cmp_lt_u32 s22, 8
    s_cbranch_scc1 {L}_p3m
    """)
    bg()
    a(f"""
    s_branch {L}_p3r
    {L}_p3m:
    """)
    if not E("ES"): stamp(a, 6)
    OF = 24
    for ks in range(10):
        for sl in range(2):
            a(f"buffer_load_dwordx2 {vr(OF+4*ks+2*sl,2)}, v7, s[8:11], s{36+ks//4} offen offset:{(ks%4)*1024+512*sl}{E('OSC', ' sc1')}")
    for x in wr(0): a(x)
    bg()
    for ks in range(10):
        a(f"s_waitcnt vmcnt({26-2*ks}) lgkmcnt(0)")
        r = wr(ks+1) if ks < 9 else []
        b = WF[ks & 1]
        for cb in range(3):
            a(f"{M} {vr(64+16*cb,16)}, {vr(b+4*cb,4)}, {vr(OF+4*ks,4)}, {vr(64+16*cb,16)}")
            for x in r[2*cb:2*cb+2]: a(x)
    a(f"""
    v_add_u32 v23, s48, v22
    v_mov_b32 v9, 1
    s_mov_b64 exec, 1
    ds_add_u32 v23, v9 offset:16
    s_mov_b64 exec, -1
    s_and_b32 s47, s22, 1
    s_mul_i32 s47, s47, 10240
    s_add_u32 s39, s49, s47
    v_add_u32 v5, s39, v2
    {L}_p3pw:
    ds_read_b32 v9, v23 offset:16
    s_waitcnt lgkmcnt(0)
    v_readfirstlane_b32 s47, v9
    s_cmp_lg_u32 s47, 2
    s_cbranch_scc1 {L}_p3pw
    """)
    for q in range(10):
        a(f"ds_write_b128 v5, {vr(64+4*q,4)} offset:{1024*q}")
    a(f"""
    s_waitcnt lgkmcnt(0)
    {L}_p3r:
    """)
    if STAMP:
        a(f"s_cmp_lt_u32 s22, 4\ns_cbranch_scc1 {L}_st4")
        stamp(a, 4)
        a(f"{L}_st4:")
    a(f"""
    s_lshl_b32 s39, s22, 10
    v_add_u32 v5, s39, v2
    v_add_u32 v7, 61440, v5
    s_barrier
    """)
    for j in range(2):
        for kq in range(4):
            a(f"ds_read_b128 {vr(16+16*j+4*kq,4)}, v{5 if kq < 2 else 7} offset:{j*10240 + (kq%2)*30720}")
    a("s_waitcnt vmcnt(0)")
    for j in range(2):
        a(f"""
        v_sub_f32 v{142+j}, 1.0, v{140+j}
        v_cvt_pk_bf16_f32 v{142+j}, v{142+j}, v{142+j}
        v_lshlrev_b32 v{142+j}, 16, v{142+j}
        """)
        B = 128 + 6*j
        for i in range(4):
            ex = (lambda d, r: f"v_lshlrev_b32 v{d}, 16, v{r}") if i % 2 == 0 else (lambda d, r: f"v_and_b32 v{d}, 0xffff0000, v{r}")
            a(f"""
            {ex(56+4*j+i, B + i//2)}
            {ex(55, B + 2 + i//2)}
            v_add_f32 v{56+4*j+i}, v{56+4*j+i}, v55
            {ex(55, B + 4 + i//2)}
            v_add_f32 v{56+4*j+i}, v{56+4*j+i}, v55
            """)
    a("s_waitcnt lgkmcnt(0)")
    for j in range(2):
        P = 16 + 16*j
        for i in range(4):
            a(f"""
            v_add_f32 v{P+i}, v{P+i}, v{P+4+i}
            v_add_f32 v{P+8+i}, v{P+8+i}, v{P+12+i}
            v_add_f32 v{P+i}, v{P+i}, v{P+8+i}
            v_mul_f32 v{P+i}, v{140+j}, v{P+i}
            v_fmac_f32 v{P+i}, v{142+j}, v{56+4*j+i}
            """)
        a(f"""
        v_cvt_pk_bf16_f32 v{P}, v{P}, v{P+1}
        v_cvt_pk_bf16_f32 v{P+1}, v{P+2}, v{P+3}
        buffer_store_dwordx2 {vr(P,2)}, v6, s[12:15], s{41 if j == 0 else 44} offen
        """)
    stamp_out(a, 7, 0)
    a(f"{L}_end:")
    a("s_endpgm")
    kernel_desc(a, name, 160, 100)
```

```python
from common import *
import math
from k2 import (M, QA1, QA2, QB1, QB2, KVB, SA, SB, OA, OB, PA, PB, split3, exp_groups, pv, CH)
def qk(Sd, kb, q1, q2):
    return [f"{M} {vr(Sd,16)}, {vr(kb,4)}, {vr(q1,4)}, 0",
            f"v_mfma_f32_32x32x8_bf16 {vr(Sd,16)}, {vr(kb+4,2)}, {vr(q2,2)}, {vr(Sd,16)}"]
LOG2E = 1.4426950408889634
QSCALE = LOG2E / math.sqrt(20.0)
E = os.environ.get
XSL = 32768
WB = 3 * XSL
WSL = 10240
QST = WB
KVR = 163840 - 3 * CH
GSL = 32768
NONCE = 122880
BREG = True
F_LDS = 163840
F_BLOCK = 640
SPIN = int(E("SPIN", 1 << 16))
SC = " sc1"
SCL = E('SCL', ' sc1')

_pc = [0]
def poll(a, L, voff, soff):
    _pc[0] += 1
    T = f"{L}_poll{_pc[0]}"
    a(f"""
    s_mov_b32 s70, {SPIN}
    {T}:
    buffer_load_dwordx2 v[24:25], {voff}, s[8:11], {soff} offen sc1
    s_sub_u32 s70, s70, 1
    s_cbranch_scc1 {T}_ok
    s_waitcnt vmcnt(0)
    v_cmp_ne_u64 vcc, v[24:25], v[20:21]
    s_cmp_eq_u64 vcc, 0
    s_cbranch_scc1 {T}_ok
    s_sleep {E("PSLEEP", "2")}
    s_branch {T}
    {T}_ok:
    """)

def flag(a, soff):
    a(f"""
    s_mov_b64 exec, 1
    buffer_store_dwordx2 v[20:21], v5, s[8:11], {soff} offen sc1
    s_mov_b64 exec, -1
    """)

def aslot(a, S, P, mf, pre=(), rd=None):
    g = exp_groups(S, P)
    flat = [x for gg in g for x in gg]
    pos = [int(x) for x in E("MPOS", "0,5,11,17").split(",")]
    for p in pre: a(p)
    k = 0
    for i, x in enumerate(flat):
        while k < 4 and pos[k] == i:
            a(mf[k])
            if rd: a(rd[k])
            k += 1
        a(x)

def gen(a, name):
    kernel_head(a, name)
    L = name
    a(f"""
    s_cmp_ge_u32 s2, 256
    s_cbranch_scc1 {L}_end
    s_load_dwordx8 s[4:11], s[0:1], 0
    s_load_dwordx4 s[12:15], s[0:1], 48
    s_load_dwordx2 s[18:19], s[0:1], 96
    """)
    stamp(a, 0)
    a(f"""
    v_lshrrev_b32 v2, 6, v0
    v_and_b32 v1, 63, v0
    v_readfirstlane_b32 s22, v2
    s_and_b32 s47, s2, 7
    s_lshr_b32 s51, s2, 3
    s_and_b32 s20, s47, 1
    s_lshl_b32 s20, s20, 2
    s_and_b32 s67, s51, 3
    s_add_u32 s20, s20, s67
    s_lshr_b32 s21, s47, 1
    s_lshl_b32 s21, s21, 3
    s_lshr_b32 s68, s51, 2
    s_add_u32 s21, s21, s68
    s_cmp_lt_u32 s22, 8
    s_cbranch_scc1 {L}_comp
    """)
    a.c("s20 = row group (256 rows), s21 = cg = head = column group, s22 = wave; kept for the whole kernel, as is s[18:19]")
    a(f"""
    s_and_b32 s63, s22, 1
    v_lshrrev_b32 v10, 3, v1
    v_lshrrev_b32 v11, 4, v1
    v_and_b32 v12, 7, v1
    v_xor_b32 v12, v12, v11
    v_xor_b32 v11, 4, v12
    s_movk_i32 s54, 1280
    v_mul_u32_u24 v10, s54, v10
    v_lshl_add_u32 v15, v11, 4, v10
    v_lshl_add_u32 v10, v12, 4, v10
    s_mul_i32 s53, s20, {256*1280}
    s_mul_i32 s55, s63, {64*1280}
    s_add_u32 s53, s53, s55
    """)
    for i in range(8):
        a(f"s_add_u32 s55, s53, {i*10240 - 1024*(i&3) + 4096}")
        a(f"v_add_u32 v{2+i}, s55, v{15 if i & 1 else 10}")
    a(f"""
    s_add_u32 s52, s67, s68
    s_and_b32 s52, s52, 3
    s_mul_i32 s52, s52, 5
    s_lshr_b32 s52, s52, 1
    s_lshl_b32 s41, s52, 7
    s_lshl_b32 s48, s63, 13
    s_mov_b32 m0, s48
    s_waitcnt lgkmcnt(0)
    s_sub_u32 s24, s4, 4096
    s_subb_u32 s25, s5, 0
    s_and_b32 s25, s25, 0xffff
    s_mov_b32 s26, {2621440+4096}
    s_mov_b32 s27, 0x20000
    """)
    a.c("x voffsets carry +4096 so that they stay non negative; the SRD base carries -4096")
    def xdma(so):
        a(f"""
        buffer_load_dwordx4 v2, s[24:27], {so} offen lds
        buffer_load_dwordx4 v3, s[24:27], {so} offen offset:1024 lds
        buffer_load_dwordx4 v4, s[24:27], {so} offen offset:2048 lds
        buffer_load_dwordx4 v5, s[24:27], {so} offen offset:3072 lds
        s_add_u32 m0, m0, 4096
        s_nop 0
        buffer_load_dwordx4 v6, s[24:27], {so} offen lds
        buffer_load_dwordx4 v7, s[24:27], {so} offen offset:1024 lds
        buffer_load_dwordx4 v8, s[24:27], {so} offen offset:2048 lds
        buffer_load_dwordx4 v9, s[24:27], {so} offen offset:3072 lds
        """)
    xdma("s41")
    a(f"""
    v_lshrrev_b32 v13, 3, v1
    s_movk_i32 s62, 3456
    v_mul_u32_u24 v13, s62, v13
    v_and_b32 v14, 7, v1
    v_bfe_u32 v15, v1, 4, 1
    v_lshlrev_b32 v15, 2, v15
    v_xor_b32 v14, v14, v15
    v_lshl_add_u32 v13, v14, 4, v13
    s_lshl_b32 s53, s21, 7
    v_add_u32 v10, s53, v13
    v_add_u32 v11, {8*3456-1024}, v10
    v_add_u32 v12, {2*(8*3456-1024)}, v10
    v_add_u32 v13, {3*(8*3456-1024)}, v10
    v_lshrrev_b32 v14, 2, v1
    v_mul_u32_u24 v14, s54, v14
    v_and_b32 v15, 3, v1
    v_lshl_add_u32 v14, v15, 4, v14
    s_mul_i32 s53, s21, 40
    s_mul_i32 s55, s63, {16*1280}
    s_add_u32 s53, s53, s55
    v_add_u32 v14, s53, v14
    v_lshlrev_b32 v15, 4, v1
    s_cmp_eq_u32 s63, 1
    s_cselect_b32 s28, s14, s12
    s_cselect_b32 s29, s15, s13
    s_and_b32 s29, s29, 0xffff
    s_mov_b32 s30, 2211840
    s_mov_b32 s31, 0x20000
    s_mov_b32 s32, s6
    s_and_b32 s33, s7, 0xffff
    s_mov_b32 s34, 819200
    s_mov_b32 s35, 0x20000
    s_cmp_eq_u32 s21, 27
    s_cselect_b32 s36, s8, s10
    s_cselect_b32 s37, s9, s11
    s_and_b32 s37, s37, 0xffff
    s_sub_u32 s53, s21, 27
    s_cmp_lt_u32 s53, 2
    s_cselect_b32 s38, 25600, 0
    s_mov_b32 s39, 0x20000
    s_lshl_b32 s52, s52, 1
    s_mul_i32 s42, s52, {32*3456}
    s_mul_i32 s43, s52, {32*1280}
    s_mul_i32 s40, s52, 1280
    s_lshl_b32 s51, s63, 10
    s_add_u32 s40, s40, s51
    s_lshl_b32 s49, s63, 12
    s_add_u32 s49, s49, {WB}
    s_add_u32 s50, s51, {WB+8192}
    s_add_u32 s56, s51, {WB}
    s_add_u32 s45, s48, 16384
    s_add_u32 s54, s41, 163840
    s_mov_b32 s44, 0
    s_mov_b32 s46, 0
    s_mov_b32 s58, 2
    {"s_mov_b32 s26, 0" if "x" in E("NULLD", "") else ""}
    {"s_mov_b32 s30, 0" if "w" in E("NULLD", "") else ""}
    {"s_mov_b32 s34, 0" if "q" in E("NULLD", "") else ""}
    s_cmp_ge_u32 s21, 27
    s_cbranch_scc1 {L}_ldl_issue
    """)
    a.c("s45/s54 next x half (lds, soffset), s41 k byte offset of the pair, s42 W, s43 wq, s40 wk/wv soffsets, s44 W slot")
    for tag, D in (("ldf", 13), ("ldl", 10)):
        a(f"""
        {L}_{tag}_issue:
        s_mov_b32 m0, s45
        s_add_u32 s46, s46, 1
        """)
        xdma("s54")
        if tag == "ldf":
            a(f"""
            s_add_u32 m0, s44, s49
            s_add_u32 s45, s45, 16384
            buffer_load_dwordx4 v10, s[28:31], s42 offen lds
            buffer_load_dwordx4 v11, s[28:31], s42 offen offset:1024 lds
            buffer_load_dwordx4 v12, s[28:31], s42 offen offset:2048 lds
            buffer_load_dwordx4 v13, s[28:31], s42 offen offset:3072 lds
            """)
        else:
            a(f"""
            s_add_u32 m0, s44, s56
            s_add_u32 s45, s45, 16384
            buffer_load_dwordx4 v15, s[36:39], s40 offen lds
            """)
        a(f"""
        s_add_u32 m0, s44, s50
        s_add_u32 s42, s42, {32*3456}
        buffer_load_dwordx4 v14, s[32:35], s43 offen lds
        s_add_u32 s43, s43, {32*1280}
        s_add_u32 s40, s40, 1280
        s_cmp_eq_u32 s43, 819200
        s_cselect_b32 s42, 0, s42
        s_cselect_b32 s43, 0, s43
        s_cselect_b32 s40, s51, s40
        s_add_u32 s44, s44, {WSL}
        s_cmp_ge_u32 s44, {4*WSL}
        s_cselect_b32 s44, 0, s44
        s_cmp_ge_u32 s45, {WB}
        s_cselect_b32 s45, s48, s45
        s_add_u32 s52, s41, 128
        s_cmp_eq_u32 s52, 1280
        s_cselect_b32 s52, 0, s52
        s_add_u32 s53, s41, 163840
        s_bitcmp1_b32 s46, 0
        s_cselect_b32 s41, s52, s41
        s_cselect_b32 s54, s52, s53
        s_cmp_eq_u32 s46, 19
        s_cselect_b32 s26, 0, s26
        s_cmp_lt_u32 s46, s58
        s_cbranch_scc1 {L}_{tag}_issue
        s_waitcnt vmcnt({D})
        s_barrier
        s_add_u32 s58, s58, 1
        s_cmp_le_u32 s58, 20
        s_cbranch_scc1 {L}_{tag}_issue
        """)
        if tag == "ldf": a(f"s_branch {L}_ld_tail")
    a(f"""
    {L}_ld_tail:
    s_load_dwordx2 s[4:5], s[0:1], 32
    s_load_dwordx2 s[6:7], s[0:1], 88
    v_mov_b32 v5, 0
    s_waitcnt vmcnt(0) lgkmcnt(0)
    s_barrier
    global_load_dwordx2 v[20:21], v5, s[6:7] sc0 sc1
    s_barrier
    """)
    srd(a, 8, 18, 19, WS_SIZE)
    srd(a, 12, 18, 19, WS_KV + 64*3072)
    a(f"""
    v_lshlrev_b32 v2, 4, v1
    v_lshlrev_b32 v3, 7, v1
    s_mov_b32 s70, {SPIN}
    s_branch {L}_l_non2
    {L}_l_non:
    global_load_dwordx2 v[20:21], v5, s[6:7] sc0 sc1
    {L}_l_non2:
    s_sub_u32 s70, s70, 1
    s_cbranch_scc1 {L}_l_non3
    s_waitcnt vmcnt(0)
    v_cmp_ne_u32 vcc, 0, v20
    s_cmp_eq_u64 vcc, 0
    s_cbranch_scc1 {L}_l_non
    {L}_l_non3:
    s_lshl_b32 s33, s20, 5
    s_add_u32 s33, s33, s21
    s_lshl_b32 s34, s33, 7
    s_add_u32 s34, s34, {WS_F}
    s_lshl_b32 s35, s20, 12
    s_add_u32 s35, s35, {WS_F}
    s_sub_u32 s53, s21, 27
    s_cmp_ge_u32 s53, 2
    s_cbranch_scc1 {L}_l_nokv
    s_barrier
    s_cmp_lg_u32 s63, 0
    s_cbranch_scc1 {L}_l_nokv
    s_lshl_b32 s52, s20, 1
    s_add_u32 s52, s52, s53
    s_lshl_b32 s52, s52, 7
    s_add_u32 s52, s52, {WS_F+FQ}
    """)
    flag(a, "s52")
    a(f"""
    {L}_l_nokv:
    s_cmp_lt_u32 s21, 27
    s_cbranch_scc1 {L}_l_now
    s_cmp_eq_u32 s63, 0
    s_cbranch_scc1 {L}_l_now
    s_load_dwordx2 s[16:17], s[0:1], 64
    s_mul_i32 s52, s20, 5
    s_add_u32 s52, s52, s53
    s_mul_i32 s52, s52, {7*8192}
    s_waitcnt lgkmcnt(0)
    s_mov_b32 s56, s16
    s_and_b32 s57, s17, 0xffff
    s_mov_b32 s58, 2211840
    s_mov_b32 s59, 0x20000
    s_mov_b32 s54, 7
    {L}_l_warm:
    buffer_load_dword v31, v3, s[56:59], s52 offen
    s_add_u32 s52, s52, 8192
    s_sub_u32 s54, s54, 1
    s_cmp_lg_u32 s54, 0
    s_cbranch_scc1 {L}_l_warm
    {L}_l_now:
    s_mul_i32 s24, s63, 6144
    s_add_u32 s30, s24, {WS_KV}
    s_add_u32 s31, s30, 4096
    s_add_u32 s24, s24, {KVR}
    s_mov_b32 s25, {CH}
    s_mov_b32 s52, {WS_F+FQ}
    s_mov_b64 exec, 0xffff
    """)
    a.c("s34 = own flag line, s35 = flag lines of this row group; s30/s31 kv source, s24 + s25 kv destination")
    stamp(a, 1)
    poll(a, L, "v3", "s52")
    a("s_mov_b64 exec, -1")
    stamp(a, 2)
    def kv():
        a(f"""
        s_add_u32 m0, s25, s24
        s_add_u32 s25, s25, {CH}
        buffer_load_dwordx4 v2, s[12:15], s30 offen{SCL} lds
        buffer_load_dwordx4 v2, s[12:15], s30 offen offset:1024{SCL} lds
        buffer_load_dwordx4 v2, s[12:15], s30 offen offset:2048{SCL} lds
        buffer_load_dwordx4 v2, s[12:15], s30 offen offset:3072{SCL} lds
        s_add_u32 m0, m0, 4096
        s_add_u32 s30, s30, {CH}
        buffer_load_dwordx4 v2, s[12:15], s31 offen{SCL} lds
        buffer_load_dwordx4 v2, s[12:15], s31 offen offset:1024{SCL} lds
        s_add_u32 s31, s31, {CH}
        s_cmp_ge_u32 s25, {3*CH}
        s_cselect_b32 s25, 0, s25
        """)
    a(f"""
    s_mov_b32 m0, {QST+6144}
    s_mov_b32 s52, {WS_KV+1024+63*8+4}
    v_mul_u32_u24 v6, 3072, v1
    buffer_load_dword v6, s[8:11], s52 offen{SCL} lds
    """)
    kv(); kv()
    a(f"""
    s_and_b32 s38, s21, 7
    s_mul_i32 s38, s38, 160
    s_movk_i32 s39, 5462
    s_movk_i32 s40, 1280
    """)
    for i in range(3):
        a(f"""
        v_add_u32 v6, {64*i}, v1
        v_mul_u32_u24 v7, s39, v6
        v_lshrrev_b32 v7, 16, v7
        v_mul_u32_u24 v8, 12, v7
        v_sub_u32 v8, v6, v8
        v_mul_u32_u24 v7, s40, v7
        v_lshl_add_u32 v7, v8, 4, v7
        v_add_u32 v7, s38, v7
        v_subrev_u32 v{10+i}, {1024*i}, v7
        """)
    srd(a, 40, 4, 5, 819200)
    a(f"""
    s_mul_i32 s44, s63, {20*20480}
    s_mul_i32 s45, s63, {20*3072}
    s_waitcnt vmcnt(6)
    """)
    stamp(a, 3)
    a("s_barrier")
    def bar_kv():
        a("s_waitcnt vmcnt(0)")
        a("s_barrier")
        kv()
    bar_kv()
    a(f"""
    s_cmp_eq_u32 s63, 1
    s_cbranch_scc1 {L}_gate
    s_lshl_b32 s52, s2, 6
    v_add_u32 v6, s52, v1
    v_lshlrev_b32 v6, 7, v6
    buffer_load_dword v30, v6, s[40:43], 0 offen
    v_mov_b32 v6, {NONCE}
    ds_write_b64 v6, v[20:21]
    v_mov_b32 v8, 0
    v_mov_b32 v9, 0
    ds_write_b64 v6, v[8:9] offset:8
    ds_write_b64 v6, v[8:9] offset:16
    ds_write_b64 v6, v[8:9] offset:24
    s_waitcnt vmcnt(1) lgkmcnt(0)
    s_barrier
    """)
    a.c("B1 passed: every wave has drained its h stores")
    flag(a, "s34")
    kv()
    a(f"""
    s_waitcnt vmcnt(0)
    s_branch {L}_gate_done
    {L}_gate:
    s_load_dwordx2 s[16:17], s[0:1], 72
    s_load_dwordx2 s[4:5], s[0:1], 0
    v_and_b32 v16, 7, v1
    v_lshlrev_b32 v16, 4, v16
    v_lshrrev_b32 v17, 3, v1
    s_lshl_b32 s53, s33, 3
    v_add_u32 v18, s53, v17
    s_movk_i32 s54, 1280
    v_mul_lo_u32 v17, v18, s54
    v_add_u32 v17, v17, v16
    s_waitcnt lgkmcnt(0)
    """)
    srd(a, 56, 4, 5, 2621440)
    srd(a, 68, 16, 17, 1280)
    for j in range(10):
        a(f"buffer_load_dwordx4 {vr(72+4*j,4)}, v17, s[56:59], 0 offen offset:{128*j}")
    for j in range(10):
        a(f"buffer_load_dwordx4 {vr(32+4*j,4)}, v16, s[68:71], 0 offen offset:{128*j}")
    a(f"""
    v_lshrrev_b32 v19, 3, v1
    v_lshlrev_b32 v19, 2, v19
    v_mov_b32 v27, {f32(-LOG2E)}
    v_mov_b32 v26, 0
    v_mov_b32 v28, 0
    s_waitcnt vmcnt(20)
    s_barrier
    """)
    kv()
    a("s_waitcnt vmcnt(6)")
    for i in range(0, 40, 2):
        a(f"v_dot2_f32_bf16 v26, v{72+i}, v{32+i}, v26")
        a(f"v_dot2_f32_bf16 v28, v{73+i}, v{33+i}, v28")
    a(f"""
    s_nop 3
    v_add_f32 v26, v26, v28
    s_nop 1
    v_add_f32_dpp v26, v26, v26 quad_perm:[1,0,3,2] row_mask:0xf bank_mask:0xf
    s_nop 1
    v_add_f32_dpp v26, v26, v26 quad_perm:[2,3,0,1] row_mask:0xf bank_mask:0xf
    s_nop 1
    v_add_f32_dpp v26, v26, v26 row_half_mirror row_mask:0xf bank_mask:0xf
    v_cvt_pk_bf16_f32 v26, v26, v26
    v_lshlrev_b32 v26, 16, v26
    v_mul_f32 v26, v27, v26
    v_exp_f32 v26, v26
    s_nop 0
    v_add_f32 v26, 1.0, v26
    v_rcp_f32 v26, v26
    s_nop 0
    v_cvt_pk_bf16_f32 v26, v26, v26
    v_lshlrev_b32 v28, 16, v26
    s_lshl_b32 s53, s33, 7
    s_add_u32 s53, s53, {WS_G}
    v_cmp_eq_u32 vcc, 0, v16
    s_nop 1
    s_mov_b64 exec, vcc
    buffer_store_dword v28, v19, s[8:11], s53 offen sc1
    s_mov_b64 exec, -1
    s_waitcnt vmcnt(1)
    {L}_gate_done:
    s_barrier
    """)
    kv()
    a(f"""
    s_cmp_eq_u32 s63, 1
    s_cbranch_scc1 {L}_l_np
    """)
    a("s_mov_b64 exec, 0x7ffffff")
    poll(a, L, "v3", "s35")
    a(f"""
    s_mov_b64 exec, -1
    {L}_l_np:
    s_mov_b32 s46, 3
    {L}_lloop:
    """)
    bar_kv()
    a(f"""
    s_add_u32 s46, s46, 1
    s_cmp_lt_u32 s46, 14
    s_cbranch_scc1 {L}_lloop
    s_add_u32 s34, s34, {F2}
    s_add_u32 s35, s35, {F2}
    """)
    a.c("barrier 13 passed: G waves are done with their ring")
    def wo(n, tag):
        a(f"""
        s_mov_b32 s47, {n}
        {L}_wo{tag}:
        s_mov_b32 m0, s45
        s_add_u32 s45, s45, 3072
        buffer_load_dwordx4 v10, s[40:43], s44 offen lds
        buffer_load_dwordx4 v11, s[40:43], s44 offen offset:1024 lds
        buffer_load_dwordx4 v12, s[40:43], s44 offen offset:2048 lds
        s_add_u32 s44, s44, 20480
        s_sub_u32 s47, s47, 1
        s_cmp_lg_u32 s47, 0
        s_cbranch_scc1 {L}_wo{tag}
        """)
    wo(8, "a")
    a("s_waitcnt vmcnt(24)")
    a("s_barrier")
    a(f"s_cmp_lg_u32 s63, 0\ns_cbranch_scc1 {L}_l_nf2")
    flag(a, "s34")
    a(f"{L}_l_nf2:")
    wo(8, "b")
    a("s_barrier")
    wo(4, "c")
    a(f"s_cmp_eq_u32 s63, 0\ns_cbranch_scc1 {L}_l_np2")
    a("s_mov_b32 exec_hi, 0")
    poll(a, L, "v3", "s35")
    a(f"{L}_l_np2:")
    a(f"""
    s_mov_b64 exec, 1
    v_mov_b32 v22, {NONCE}
    v_mov_b32 v9, 1
    s_waitcnt vmcnt(0)
    ds_add_u32 v22, v9 offset:12
    s_mov_b64 exec, -1
    s_lshr_b32 s52, s21, 3
    s_lshl_b32 s52, s52, 9
    s_add_u32 s35, s35, s52
    s_add_u32 s35, s35, {F3-F2}
    s_branch {L}_p3
    """)

    a(f"""
    {L}_comp:
    s_and_b32 s63, s22, 3
    s_lshr_b32 s64, s22, 2
    v_and_b32 v13, 31, v1
    v_lshrrev_b32 v14, 5, v1
    v_bfe_u32 v15, v1, 1, 3
    v_xor_b32 v2, v14, v15
    v_lshlrev_b32 v2, 4, v2
    v_lshl_add_u32 v2, v13, 7, v2
    s_lshl_b32 s52, s63, 13
    s_lshl_b32 s53, s64, 12
    s_add_u32 s52, s52, s53
    v_add_u32 v2, s52, v2
    v_xor_b32 v3, 32, v2
    v_xor_b32 v4, 64, v2
    v_xor_b32 v5, 96, v2
    v_bfe_u32 v15, v1, 2, 2
    v_lshlrev_b32 v7, 3, v14
    v_add_u32 v7, v7, v15
    v_mul_u32_u24 v9, 40, v7
    v_lshlrev_b32 v8, 6, v7
    v_lshlrev_b32 v7, 7, v7
    v_lshrrev_b32 v16, 1, v15
    v_xor_b32 v16, s64, v16
    v_lshl_add_u32 v7, v16, 6, v7
    v_bfe_u32 v16, v1, 4, 1
    v_and_b32 v17, 3, v1
    v_lshlrev_b32 v16, 5, v16
    v_lshl_add_u32 v16, v17, 3, v16
    v_add_u32 v7, v7, v16
    v_add_u32 v8, v8, v16
    v_add_u32 v9, v9, v16
    v_add_u32 v7, {WB}, v7
    v_add_u32 v8, {WB+8192}, v8
    v_add_u32 v9, {WB}, v9
    s_mov_b32 s44, 0
    s_mov_b32 s45, 0
    s_mov_b32 s46, 0
    """)
    a.c("v2..v5 x frag addr (row block 2rp+cp) for the 4 k steps of a pair; v7 W, v8 wq slice, v9 wk/wv slice addr; s63=rp s64=cp")
    for r in range(64, 144):
        a(f"v_mov_b32 v{r}, 0")
    a("s_waitcnt lgkmcnt(0)")
    srd(a, 8, 18, 19, WS_SIZE)
    a(f"""
    s_or_b32 s52, s22, s2
    s_cmp_lg_u32 s52, 0
    s_cbranch_scc1 {L}_nonon
    s_load_dwordx2 s[52:53], s[0:1], 88
    s_memrealtime s[54:55]
    v_mov_b32 v148, 0
    s_waitcnt lgkmcnt(0)
    s_or_b32 s54, s54, 1
    v_mov_b32 v144, s54
    v_mov_b32 v145, s55
    s_mov_b64 exec, 1
    global_store_dwordx2 v148, v[144:145], s[52:53] sc0 sc1
    s_mov_b64 exec, -1
    {L}_nonon:
    s_lshr_b32 s52, s21, 4
    s_xor_b32 s53, s22, 1
    s_or_b32 s52, s52, s53
    s_cmp_lg_u32 s52, 0
    s_cbranch_scc1 {L}_noin
    s_lshl_b32 s52, s20, 5
    s_add_u32 s52, s52, s21
    s_lshl_b32 s52, s52, 7
    s_add_u32 s52, s52, {WS_F+F3}
    s_mov_b64 exec, 1
    buffer_store_dword v64, v64, s[8:11], s52 offen sc1
    s_mov_b64 exec, -1
    {L}_noin:
    """)
    if E("CPF", "1") == "1":
        a(f"""
        s_lshr_b32 s52, s2, {3 + int(E("CPFS", "0"))}
        s_xor_b32 s53, s22, 2
        s_or_b32 s52, s52, s53
        s_cmp_lg_u32 s52, 0
        s_cbranch_scc1 {L}_nocpf
        s_getpc_b64 s[52:53]
        {L}_pc:
        s_sub_u32 s52, s52, {L}_pc-{L}
        s_subb_u32 s53, s53, 0
        v_lshlrev_b32 v144, 7, v1
        global_load_dword v145, v144, s[52:53]
        v_add_u32 v144, 8192, v144
        v_cmp_gt_u32 vcc, {L}_end-{L}, v144
        s_nop 1
        s_mov_b64 exec, vcc
        global_load_dword v145, v144, s[52:53]
        s_mov_b64 exec, -1
        {L}_nocpf:
        """)
    a(f"""
    s_cmp_eq_u32 s21, 27
    s_cbranch_scc1 {L}_modeK
    s_cmp_eq_u32 s21, 28
    s_cbranch_scc1 {L}_modeV
    s_cmp_gt_u32 s21, 28
    s_cbranch_scc1 {L}_modeQ
    """)
    XA = [16, 36]
    XC = [56, 57, 58, 59]
    XD = [60, 61, 62, 63]
    def xaddrs(full):
        l = [f"v_add_u32 v{XC[j]}, s45, v{2+j}" for j in range(4)]
        if full: l += [f"v_xor_b32 v{XD[j]}, 4096, v{XC[j]}" for j in range(4)]
        return l + [f"s_add_u32 s45, s45, {XSL}", f"s_cmp_ge_u32 s45, {WB}", "s_cselect_b32 s45, 0, s45"]
    def waddrs(mode):
        l = ["v_add_u32 v12, s44, v8"]
        if mode == 0: l.append("v_add_u32 v11, s44, v7")
        if mode in (1, 2): l.append("v_add_u32 v11, s44, v9")
        return l + [f"s_add_u32 s44, s44, {WSL}", f"s_cmp_ge_u32 s44, {4*WSL}", "s_cselect_b32 s44, 0, s44"]
    def read_list(j, mode):
        ks = j & 1
        b = XA[ks]
        l = [f"ds_read_b128 {vr(b,4)}, v{XC[j]}"]
        if mode == 0:
            l += [f"ds_read_b64_tr_b16 {vr(b+8,2)}, v11 offset:{ks*2048}",
                  f"ds_read_b64_tr_b16 {vr(b+10,2)}, v11 offset:{ks*2048+512}",
                  f"ds_read_b64_tr_b16 {vr(b+12,2)}, v11 offset:{4096+ks*2048}",
                  f"ds_read_b64_tr_b16 {vr(b+14,2)}, v11 offset:{4096+ks*2048+512}",
                  f"ds_read_b128 {vr(b+4,4)}, v{XD[j]}"]
        if mode in (1, 2):
            l += [f"ds_read_b64_tr_b16 {vr(b+8,2)}, v11 offset:{ks*640}",
                  f"ds_read_b64_tr_b16 {vr(b+10,2)}, v11 offset:{ks*640+160}"]
        l += [f"ds_read_b64_tr_b16 {vr(b+16,2)}, v12 offset:{ks*1024}",
              f"ds_read_b64_tr_b16 {vr(b+18,2)}, v12 offset:{ks*1024+256}"]
        return l
    def mfma_list(ks, mode):
        b = XA[ks]
        x0, x1, wg, wu, ws = vr(b,4), vr(b+4,4), vr(b+8,4), vr(b+12,4), vr(b+16,4)
        l = []
        if mode == 0:
            l = [f"{M} v[64:79], {wg}, {x0}, v[64:79]", f"{M} v[80:95], {wu}, {x0}, v[80:95]",
                 f"{M} v[96:111], {wg}, {x1}, v[96:111]", f"{M} v[112:127], {wu}, {x1}, v[112:127]"]
        if mode == 1: l = [f"{M} v[64:79], {wg}, {x0}, v[64:79]"]
        if mode == 2: l = [f"{M} v[64:79], {x0}, {wg}, v[64:79]"]
        l = l + [f"{M} v[128:143], {ws}, {x0}, v[128:143]"]
        if E("HACK16", "0") == "1" and mode == 0:
            import re
            l2 = []
            for m in l:
                b0 = int(re.search(r"v\[(\d+):", m).group(1)); ops = m.split(", ")
                t = f"v_mfma_f32_16x16x32_bf16 {{d}}, {ops[1]}, {ops[2]}, {{d}}"
                l2.append(t.format(d=vr(b0+8*ks,4)) + "\n" + t.format(d=vr(b0+8*ks+4,4)))
            l = l2
        return l
    def half(ml, rl, post):
        n = len(ml)
        if n == 5 and E("P1V", "1") == "1":
            a("s_waitcnt lgkmcnt(2)")
            cuts = [int(x) for x in E("P1CUT", "3,6,8,8").split(",")]
            lo = 0
            for i, m in enumerate(ml):
                if i == 4: a("s_waitcnt lgkmcnt(8)")
                a(m)
                if i < 4:
                    for x in rl[lo:cuts[i]]: a(x)
                    lo = cuts[i]
                if i == 3:
                    for x in post: a(x)
            return
        a("s_waitcnt lgkmcnt(0)")
        per = -(-len(rl) // max(n - 1, 1))
        for i, m in enumerate(ml):
            a(m)
            if n == 1:
                for x in rl + post: a(x)
                continue
            for x in rl[per*i:per*i+per]: a(x)
            if i == n - 2:
                for x in post: a(x)
    for mode, tag in ((0, "full"), (1, "modeK"), (2, "modeV"), (3, "modeQ")):
        a(f"{L}_{tag}:")
        for x in xaddrs(mode == 0) + waddrs(mode): a(x)
        a("s_barrier")
        for x in read_list(0, mode): a(x)
        stamp(a, 1)
        if mode == 0: a(".p2align 6")
        a(f"{L}_{tag}_loop:")
        half(mfma_list(0, mode), read_list(1, mode), waddrs(mode))
        a("s_barrier")
        half(mfma_list(1, mode), read_list(2, mode), [])
        half(mfma_list(0, mode), read_list(3, mode), waddrs(mode) + xaddrs(mode == 0))
        a("s_barrier")
        half(mfma_list(1, mode), read_list(0, mode), ["s_add_u32 s46, s46, 1", "s_cmp_lt_u32 s46, 10"])
        a(f"s_cbranch_scc1 {L}_{tag}_loop")
        stamp(a, 2)
        a(f"""
        s_lshl_b32 s52, s20, 3
        s_lshl_b32 s53, s63, 1
        s_add_u32 s52, s52, s53
        s_add_u32 s52, s52, s64
        v_lshlrev_b32 v2, 4, v1
        """)
        a(f"s_branch {L}_epi{mode}")
    a.c("s52 = global row block of acc set 0 and of the q chain (set 1 is s52 ^ 1)")
    EK = 64
    a(f"""
    {L}_epi1:
    s_mul_i32 s53, s52, 3072
    s_add_u32 s53, s53, {WS_KV}
    s_nop 7
    s_waitcnt lgkmcnt(0)
    """)
    for i in range(4): a(f"v_cvt_pk_bf16_f32 v{20+i}, v{EK+2*i}, v{EK+2*i+1}")
    a(f"buffer_store_dwordx4 v[20:23], v2, s[8:11], s53 offen{SC}")
    a(f"v_cvt_pk_bf16_f32 v24, v{EK+8}, v{EK+9}")
    a(f"v_cvt_pk_bf16_f32 v25, v{EK+10}, v{EK+11}")
    a("v_mov_b32 v26, 0x3f803f80")
    a("v_mov_b32 v27, 0x00003f80")
    a(f"v_mul_f32 v30, v{EK}, v{EK}")
    for i in range(1, 8): a(f"v_fmac_f32 v30, v{EK+i}, v{EK+i}")
    a(f"v_mul_f32 v31, v{EK+8}, v{EK+8}")
    for i in range(9, 12): a(f"v_fmac_f32 v31, v{EK+i}, v{EK+i}")
    a(f"""
    v_cmp_gt_u32 vcc, 32, v1
    s_nop 1
    v_cndmask_b32 v31, 0, v31, vcc
    v_add_f32 v30, v30, v31
    v_mov_b32 v31, v30
    s_nop 1
    v_permlane32_swap_b32 v30, v31
    s_nop 1
    v_add_f32 v30, v30, v31
    """)
    for sh in (1, 2, 4, 8):
        a("s_nop 1")
        a(f"v_max_f32_dpp v30, v30, v30 row_shr:{sh} row_mask:0xf bank_mask:0xf")
    a(f"""
    s_nop 1
    v_max_f32_dpp v30, v30, v30 row_bcast:15 row_mask:0xa bank_mask:0xf
    v_cmp_eq_u32 vcc, 63, v1
    v_and_b32 v30, 0xffff0000, v30
    v_or_b32 v30, 0x3f80, v30
    v_cndmask_b32 v27, v27, v30, vcc
    v_cmp_gt_u32 vcc, 32, v1
    v_lshlrev_b32 v16, 3, v1
    s_nop 0
    v_cndmask_b32 v24, v26, v24, vcc
    v_cndmask_b32 v25, v27, v25, vcc
    buffer_store_dwordx2 v[24:25], v16, s[8:11], s53 offen offset:1024{SC}
    s_branch {L}_kvdone
    {L}_epi2:
    s_mul_i32 s53, s52, 3072
    s_add_u32 s53, s53, {WS_KV+1536}
    v_and_b32 v17, 31, v1
    v_lshrrev_b32 v18, 5, v1
    v_mul_u32_u24 v18, 384, v18
    v_lshl_add_u32 v16, v17, 4, v18
    v_mov_b32 v19, 0x3f803f80
    v_cmp_eq_u32 vcc, 20, v17
    v_cmp_lt_u32 s[54:55], 19, v17
    s_nop 3
    v_cndmask_b32 v19, 0, v19, vcc
    s_waitcnt lgkmcnt(0)
    """)
    for i in range(8): a(f"v_cvt_pk_bf16_f32 v{20+i}, v{EK+2*i}, v{EK+2*i+1}")
    for i in range(8): a(f"v_cndmask_b32 v{20+i}, v{20+i}, v19, s[54:55]")
    a(f"""
    v_cmp_gt_u32 vcc, 24, v17
    s_nop 1
    s_and_b64 exec, exec, vcc
    buffer_store_dwordx4 v[20:23], v16, s[8:11], s53 offen{SC}
    buffer_store_dwordx4 v[24:27], v16, s[8:11], s53 offen offset:768{SC}
    {L}_kvdone:
    s_mov_b64 exec, -1
    s_waitcnt vmcnt(0)
    s_barrier
    s_branch {L}_epi3
    """)
    C0 = -2.0 * 0.7978845608028654 * LOG2E
    C1 = C0 * 0.044715
    a(f"""
    {L}_epi0:
    v_mov_b32 v16, {f32(C0)}
    v_mov_b32 v17, {f32(C1)}
    s_lshl_b32 s54, s21, 12
    s_lshl_b32 s55, s64, 11
    s_add_u32 s54, s54, s55
    s_add_u32 s54, s54, {WS_H}
    s_mul_i32 s53, s52, {108*1024}
    s_add_u32 s53, s53, s54
    s_xor_b32 s55, s52, 1
    s_mul_i32 s55, s55, {108*1024}
    s_add_u32 s54, s54, s55
    s_waitcnt lgkmcnt(0)
    """)
    for j in range(2):
        G, U = 64 + 32*j, 80 + 32*j
        for hf in range(2):
            T = 20
            rs = list(range(8*hf, 8*hf+8))
            for i, r in enumerate(rs): a(f"v_mul_f32 v{T+i}, v{G+r}, v{G+r}")
            for i, r in enumerate(rs): a(f"v_fma_f32 v{T+i}, v{T+i}, v17, v16")
            for i, r in enumerate(rs): a(f"v_mul_f32 v{T+i}, v{G+r}, v{T+i}")
            for i, r in enumerate(rs): a(f"v_exp_f32 v{T+i}, v{T+i}")
            for i, r in enumerate(rs): a(f"v_mul_f32 v{U+r}, v{G+r}, v{U+r}")
            for i, r in enumerate(rs): a(f"v_add_f32 v{T+i}, 1.0, v{T+i}")
            for i, r in enumerate(rs): a(f"v_rcp_f32 v{T+i}, v{T+i}")
            a("s_nop 0")
            for i, r in enumerate(rs): a(f"v_mul_f32 v{T+i}, v{U+r}, v{T+i}")
            O = 28 + 4*(2*j+hf)
            for i in range(4): a(f"v_cvt_pk_bf16_f32 v{O+i}, v{T+2*i}, v{T+2*i+1}")
            a(f"buffer_store_dwordx4 {vr(O,4)}, v2, s[8:11], s{53+j} offen offset:{1024*hf}{SC}")
    a(f"""
    {L}_epi3:
    """)
    if E("ES"): stamp(a, 6)
    a(f"""
    s_nop 7
    v_mov_b32 v144, {f32(QSCALE)}
    s_waitcnt lgkmcnt(0)
    """)
    for i in range(12): a(f"v_mul_f32 v{128+i}, v144, v{128+i}")
    for i in range(6): a(f"v_cvt_pk_bf16_f32 v{QA1+i}, v{128+2*i}, v{129+2*i}")
    a(f"""
    s_mul_i32 s52, s63, 1536
    s_add_u32 s52, s52, {QST}
    v_add_u32 v144, s52, v2
    v_lshl_add_u32 v145, v1, 3, s52
    s_cmp_ge_u32 s22, 4
    s_cbranch_scc1 {L}_gwave
    """)
    a(f"""
    s_setprio {E("APRIO", "1")}
    v_and_b32 v9, 31, v1
    v_lshrrev_b32 v10, 5, v1
    v_add_u32 v3, {KVR}, v2
    v_lshlrev_b32 v4, 3, v1
    v_add_u32 v4, {KVR+1024}, v4
    v_min_u32 v5, 23, v9
    v_mul_u32_u24 v11, 384, v10
    v_lshl_add_u32 v5, v5, 4, v11
    v_add_u32 v5, {KVR+1536}, v5
    v_lshlrev_b32 v146, 2, v1
    v_add_u32 v146, {QST+6144}, v146
    v_add_u32 v6, {CH}, v3
    v_add_u32 v7, {CH}, v4
    v_add_u32 v8, {CH}, v5
    s_mov_b32 s27, {2*CH}
    s_mov_b32 s30, 0
    v_cmp_gt_u32 s[28:29], 32, v1
    v_lshlrev_b32 v60, 3, v9
    v_lshl_add_u32 v60, v10, 8, v60
    s_lshl_b32 s33, s20, 3
    s_lshl_b32 s52, s22, 1
    s_add_u32 s33, s33, s52
    s_mul_i32 s33, s33, 40960
    s_mul_i32 s52, s21, 1280
    s_add_u32 s33, s33, s52
    s_add_u32 s33, s33, {WS_O}
    s_add_u32 s31, s33, 40960
    """)
    a.c("v60 = o store offset, s33/s31 = o image base of block a / b")
    for r in list(range(OA, OA+32)) + list(range(PB, PB+8)) + list(range(KVB[1]+8, KVB[1]+16)):
        a(f"v_mov_b32 v{r}, 0")
    def qnorm(q1, q2, t, extra=()):
        ex = list(extra) + [""] * 2
        a(f"""
        v_cndmask_b32 v{q2}, 0, v{q2}, s[28:29]
        v_cndmask_b32 v{q2+1}, 0, v{q2+1}, s[28:29]
        v_mov_b32 v{t}, 0
        {ex[0]}
        v_dot2_f32_bf16 v{t}, v{q1}, v{q1}, v{t}
        v_dot2_f32_bf16 v{t}, v{q1+1}, v{q1+1}, v{t}
        v_dot2_f32_bf16 v{t}, v{q1+2}, v{q1+2}, v{t}
        {ex[1]}
        v_dot2_f32_bf16 v{t}, v{q1+3}, v{q1+3}, v{t}
        v_dot2_f32_bf16 v{t}, v{q2}, v{q2}, v{t}
        v_dot2_f32_bf16 v{t}, v{q2+1}, v{q2+1}, v{t}
        """)
    qnorm(QA1, QA2, 147)
    if E("ES"): stamp(a, 3)
    a(f"""
    s_barrier
    ds_read_b32 v146, v146
    ds_read_b128 {vr(QB1,4)}, v144
    ds_read_b64 {vr(QB2,2)}, v145 offset:1024
    ds_read_b128 {vr(KVB[0],4)}, v6
    ds_read_b64 {vr(KVB[0]+4,2)}, v7
    ds_read_b128 {vr(KVB[1],4)}, v6 offset:3072
    ds_read_b64 {vr(KVB[1]+4,2)}, v7 offset:3072
    ds_read_b128 {vr(KVB[0]+8,4)}, v8
    ds_read_b128 {vr(KVB[0]+12,4)}, v8 offset:768
    """)
    stamp(a, 4)
    dm = lambda k: f"v_max_f32_dpp v146, v146, v146 {k} bank_mask:0xf"
    a(f"""
    v_mov_b32 v149, v147
    s_waitcnt lgkmcnt(6)
    v_and_b32 v146, 0xffff0000, v146
    v_permlane32_swap_b32 v147, v149
    s_nop 0
    {dm("row_shr:1 row_mask:0xf")}
    v_add_f32 v147, v147, v149
    s_nop 0
    {dm("row_shr:2 row_mask:0xf")}
    """)
    qnorm(QB1, QB2, 148, [dm("row_shr:4 row_mask:0xf"), dm("row_shr:8 row_mask:0xf")])
    a(f"""
    {dm("row_bcast:15 row_mask:0xa")}
    s_nop 1
    v_mov_b32 v150, v148
    {dm("row_bcast:31 row_mask:0xc")}
    s_nop 0
    v_permlane32_swap_b32 v148, v150
    v_readlane_b32 s26, v146, 63
    s_nop 0
    v_add_f32 v148, v148, v150
    v_mul_f32 v147, s26, v147
    v_mul_f32 v148, s26, v148
    v_sqrt_f32 v147, v147
    v_sqrt_f32 v148, v148
    v_mul_f32 v147, {f32(1.02)}, v147
    v_mul_f32 v148, {f32(1.02)}, v148
    """)
    def set_shift(ma, mb):
        for m, q2 in ((ma, QA2), (mb, QB2)):
            split3(a, m, q2+2, q2+3, 149, 150)
            a(f"v_cndmask_b32 v{q2}, v{q2+2}, v{q2}, s[28:29]")
            a(f"v_cndmask_b32 v{q2+1}, v{q2+3}, v{q2+1}, s[28:29]")
    set_shift(147, 148)
    a("s_waitcnt lgkmcnt(0)")
    for x in qk(SA, KVB[0], QA1, QA2): a(x)
    a("s_nop 11")
    a(".p2align 6")
    a(f"{L}_aloop:")
    for t in range(4):
        cur, nxt = KVB[t & 1], KVB[(t + 1) & 1]
        aslot(a, SA, PA, qk(SB, cur, QB1, QB2) + pv(OB, nxt, PB))
        pre = ["s_waitcnt lgkmcnt(0)" if t != 3 else "s_waitcnt vmcnt(0) lgkmcnt(0)"]
        if t == 0 and STAMP: pre.append("s_memtime s[38:39]")
        if t == 0: pre.append("s_barrier")
        if t == 0 and STAMP: pre.append("s_memtime s[36:37]")
        if t == 1 and STAMP: pre += ["s_mov_b32 m0, s30", "s_nop 0", "v_writelane_b32 v61, s36, m0", "v_writelane_b32 v62, s38, m0"]
        if t == 2:
            pre += ["v_add_u32 v6, s27, v3", "v_add_u32 v7, s27, v4"]
        if t == 3:
            pre += ["v_add_u32 v8, s27, v5",
                    f"s_add_u32 s27, s27, {CH}", f"s_cmp_ge_u32 s27, {3*CH}", "s_cselect_b32 s27, 0, s27"]
        ko = ((t + 2) & 3) * 3072
        vo = ((t + 1) & 3) * 3072
        rd = [f"ds_read_b128 {vr(cur,4)}, v6 offset:{ko}",
              f"ds_read_b64 {vr(cur+4,2)}, v7 offset:{ko}",
              f"ds_read_b128 {vr(nxt+8,4)}, v8 offset:{vo}",
              f"ds_read_b128 {vr(nxt+12,4)}, v8 offset:{vo+768}"]
        aslot(a, SB, PB, qk(SA, nxt, QA1, QA2) + pv(OA, cur, PA), pre, rd)
    a(f"""
    s_add_u32 s30, s30, 1
    s_cmp_lt_u32 s30, 16
    s_cbranch_scc1 {L}_aloop
    s_nop 1
    """)
    for x in pv(OB, KVB[1], PB): a(x)
    stamp(a, 5)
    a(f"""
    s_mov_b32 s34, 0
    {L}_aepi:
    s_mov_b32 s35, {f32(2.0**-90)}
    s_waitcnt lgkmcnt(0)
    s_nop 11
    v_mov_b32 v144, v{OA+8}
    v_mov_b32 v145, v{OA+8}
    v_mov_b32 v146, v{OB+8}
    v_mov_b32 v147, v{OB+8}
    s_nop 0
    v_permlane32_swap_b32 v144, v145
    v_permlane32_swap_b32 v146, v147
    s_nop 0
    v_cmp_nle_f32 vcc, s35, v145
    v_cmp_nle_f32 s[36:37], s35, v147
    v_rcp_f32 v145, v145
    v_rcp_f32 v147, v147
    s_or_b64 s[36:37], vcc, s[36:37]
    s_cmp_eq_u32 s34, 0
    s_cselect_b64 s[36:37], s[36:37], 0
    s_cmp_lg_u64 s[36:37], 0
    s_cbranch_scc1 {L}_slow
    """)
    for blk, O in enumerate((OA, OB)):
        R = 145 + 2*blk
        for q in range(3):
            for i in range(4): a(f"v_mul_f32 v{O+4*q+i}, v{R}, v{O+4*q+i}")
            D = 64 + 8*blk + 2*q
            a(f"v_cvt_pk_bf16_f32 v{D}, v{O+4*q}, v{O+4*q+1}")
            a(f"v_cvt_pk_bf16_f32 v{D+1}, v{O+4*q+2}, v{O+4*q+3}")
            if q == 2: a("s_mov_b32 exec_hi, 0")
            a(f"buffer_store_dwordx2 {vr(D,2)}, v60, s[8:11], s{33 if blk == 0 else 31} offen offset:{512*q} sc1")
            if q == 2: a("s_mov_b64 exec, -1")
    if STAMP:
        a(f"""
        s_lshl_b32 s36, s2, 2
        s_add_u32 s36, s36, s22
        s_lshl_b32 s36, s36, 9
        s_add_u32 s36, s36, {0x1900000}
        v_lshlrev_b32 v63, 2, v1
        buffer_store_dword v61, v63, s[8:11], s36 offen
        buffer_store_dword v62, v63, s[8:11], s36 offen offset:256
        """)
    a(f"""
    s_setprio 0
    s_lshl_b32 s36, s20, 5
    s_lshl_b32 s37, s22, 2
    s_add_u32 s36, s36, s37
    s_lshr_b32 s37, s21, 3
    s_add_u32 s36, s36, s37
    s_lshl_b32 s36, s36, 7
    s_add_u32 s36, s36, {WS_F+F3}
    v_mov_b32 v9, 1
    v_mov_b32 v5, 0
    s_waitcnt vmcnt(0)
    s_mov_b64 exec, 1
    buffer_atomic_add v9, v5, s[8:11], s36 offen sc1
    s_mov_b64 exec, -1
    """)
    if not E("ES"): stamp(a, 3)
    a(f"""
    s_branch {L}_p3
    """)
    kb = KVB[0]
    a(f"""
    {L}_slow:
    s_mov_b32 s34, 1
    v_cndmask_b32 v{QA2}, 0, v{QA2}, s[28:29]
    v_cndmask_b32 v{QA2+1}, 0, v{QA2+1}, s[28:29]
    v_cndmask_b32 v{QB2}, 0, v{QB2}, s[28:29]
    v_cndmask_b32 v{QB2+1}, 0, v{QB2+1}, s[28:29]
    v_mov_b32 v147, 0xff800000
    v_mov_b32 v148, 0xff800000
    s_mov_b32 s36, {WS_KV - KVR}
    {L}_slow1:
    buffer_load_dwordx4 {vr(kb,4)}, v3, s[8:11], s36 offen sc1
    buffer_load_dwordx2 {vr(kb+4,2)}, v4, s[8:11], s36 offen sc1
    s_add_u32 s36, s36, 3072
    s_waitcnt vmcnt(0)
    """)
    for x in qk(SA, kb, QA1, QA2) + qk(SB, kb, QB1, QB2): a(x)
    a("s_nop 15")
    for i in range(0, 16, 2):
        a(f"v_max3_f32 v147, v{SA+i}, v{SA+i+1}, v147")
        a(f"v_max3_f32 v148, v{SB+i}, v{SB+i+1}, v148")
    a(f"""
    s_cmp_lt_u32 s36, {WS_KV - KVR + 64*3072}
    s_cbranch_scc1 {L}_slow1
    v_mov_b32 v149, v147
    v_mov_b32 v150, v148
    s_nop 1
    v_permlane32_swap_b32 v147, v149
    v_permlane32_swap_b32 v148, v150
    s_nop 1
    v_max_f32 v147, v147, v149
    v_max_f32 v148, v148, v150
    """)
    set_shift(147, 148)
    for r in range(OA, OA+32): a(f"v_mov_b32 v{r}, 0")
    a(f"""
    s_mov_b32 s36, {WS_KV - KVR}
    {L}_slow2:
    buffer_load_dwordx4 {vr(kb,4)}, v3, s[8:11], s36 offen sc1
    buffer_load_dwordx2 {vr(kb+4,2)}, v4, s[8:11], s36 offen sc1
    buffer_load_dwordx4 {vr(kb+8,4)}, v5, s[8:11], s36 offen sc1
    buffer_load_dwordx4 {vr(kb+12,4)}, v5, s[8:11], s36 offen offset:768 sc1
    s_add_u32 s36, s36, 3072
    s_waitcnt vmcnt(0)
    """)
    for x in qk(SA, kb, QA1, QA2) + qk(SB, kb, QB1, QB2): a(x)
    a("s_nop 15")
    for g in exp_groups(SA, PA) + exp_groups(SB, PB):
        for x in g: a(x)
    a("s_nop 1")
    for x in pv(OA, kb, PA) + pv(OB, kb, PB): a(x)
    a(f"""
    s_cmp_lt_u32 s36, {WS_KV - KVR + 64*3072}
    s_cbranch_scc1 {L}_slow2
    s_nop 7
    s_branch {L}_aepi
    """)

    a(f"""
    {L}_gwave:
    ds_write_b128 v144, {vr(QA1,4)}
    ds_write_b64 v145, {vr(QA2,2)} offset:1024
    s_load_dwordx2 s[6:7], s[0:1], 64
    s_and_b32 s16, s22, 3
    s_cmp_ge_u32 s21, 15
    s_cselect_b32 s33, 1, 0
    s_cselect_b32 s34, 15, 0
    s_sub_u32 s34, s21, s34
    s_lshl_b32 s35, s20, 1
    s_add_u32 s33, s33, s35
    s_mul_i32 s35, s34, 13
    s_lshr_b32 s35, s35, 6
    s_mul_i32 s36, s35, 5
    s_sub_u32 s34, s34, s36
    s_waitcnt lgkmcnt(0)
    """)
    if E("ES"): stamp(a, 3)
    a(f"""
    s_barrier
    s_lshl_b32 s36, s33, 2
    s_add_u32 s36, s36, s16
    s_mul_i32 s36, s36, 108
    s_mul_i32 s37, s35, 36
    s_add_u32 s36, s36, s37
    s_lshl_b32 s36, s36, 10
    s_add_u32 s40, s36, {WS_H}
    s_mul_i32 s41, s35, {576*1280}
    s_mul_i32 s36, s16, {16*1280}
    s_add_u32 s41, s41, s36
    s_lshl_b32 s36, s34, 8
    s_add_u32 s41, s41, s36
    v_lshrrev_b32 v3, 4, v1
    v_lshlrev_b32 v4, 2, v3
    v_and_b32 v5, 15, v1
    v_xor_b32 v4, v4, v5
    s_movk_i32 s36, 1280
    v_mul_u32_u24 v3, s36, v3
    v_lshl_add_u32 v3, v4, 4, v3
    v_add_u32 v4, {5120-1024}, v3
    v_add_u32 v5, {2*(5120-1024)}, v3
    v_add_u32 v13, {3*(5120-1024)}, v3
    s_lshl_b32 s42, s16, 12
    s_add_u32 s43, s42, 16384
    s_mov_b32 s45, 0
    s_mov_b32 s30, 0
    s_mov_b32 s46, 0
    s_cmp_lt_u32 s21, 30
    s_cselect_b32 s47, 9, 0
    s_cselect_b32 s50, {WS_SIZE}, 0
    s_cselect_b32 s54, 2211840, 0
    s_mov_b32 s48, s18
    s_and_b32 s49, s19, 0xffff
    s_mov_b32 s51, 0x20000
    s_mov_b32 s55, 0x20000
    s_mov_b32 m0, s43
    s_mov_b32 s52, s6
    s_and_b32 s53, s7, 0xffff
    """)
    a.c("s33 = row group (128 rows), s34 = col group (128 cols), s35 = k split, s47 = stages of this WG")
    def gw():
        a(f"""
        buffer_load_dwordx4 v3, s[52:55], s41 offen lds
        buffer_load_dwordx4 v4, s[52:55], s41 offen offset:1024 lds
        buffer_load_dwordx4 v5, s[52:55], s41 offen offset:2048 lds
        buffer_load_dwordx4 v13, s[52:55], s41 offen offset:3072 lds
        s_add_u32 s41, s41, {64*1280}
        """)
    def gh():
        a(f"""
        buffer_load_dwordx4 v2, s[48:51], s40 offen{SCL} lds
        buffer_load_dwordx4 v2, s[48:51], s40 offen offset:1024{SCL} lds
        buffer_load_dwordx4 v2, s[48:51], s40 offen offset:2048{SCL} lds
        buffer_load_dwordx4 v2, s[48:51], s40 offen offset:3072{SCL} lds
        s_add_u32 s40, s40, 4096
        """)
    gw()
    a(f"""
    s_and_b32 s36, s16, 1
    s_lshr_b32 s37, s16, 1
    s_lshl_b32 s38, s36, 13
    v_add_u32 v6, s38, v2
    v_lshrrev_b32 v8, 5, v1
    v_bfe_u32 v9, v1, 2, 2
    v_lshl_add_u32 v8, v8, 2, v9
    v_lshlrev_b32 v8, 8, v8
    s_lshl_b32 s38, s37, 1
    v_xor_b32 v9, s38, v9
    v_lshl_add_u32 v8, v9, 6, v8
    v_bfe_u32 v9, v1, 4, 1
    v_lshl_add_u32 v8, v9, 5, v8
    v_and_b32 v9, 3, v1
    v_lshl_add_u32 v8, v9, 3, v8
    v_add_u32 v7, 16384, v8
    v_xor_b32 v8, 64, v7
    """)
    for r in range(64, 128): a(f"v_mov_b32 v{r}, 0")
    a(f"""
    s_mov_b32 m0, s42
    s_barrier
    s_waitcnt vmcnt(0)
    s_barrier
    s_barrier
    s_barrier
    """)
    gh()
    a(f"""
    s_mov_b32 s44, {GSL}
    s_branch {L}_gin
    {L}_gloop:
    s_barrier
    {L}_gin:
    s_add_u32 s46, s46, 1
    s_cmp_ge_u32 s46, s47
    s_cbranch_scc1 {L}_gnod
    s_add_u32 m0, s44, s42
    s_nop 0
    """)
    gh()
    a("s_add_u32 m0, s44, s43")
    a(f"s_add_u32 s44, s44, {GSL}")
    gw()
    a(f"""
    s_cmp_ge_u32 s44, {3*GSL}
    s_cselect_b32 s44, 0, s44
    {L}_gnod:
    s_sub_u32 s36, s30, 1
    s_cmp_ge_u32 s36, s47
    s_cbranch_scc1 {L}_gskip
    v_add_u32 v10, s45, v6
    v_add_u32 v11, s45, v7
    v_add_u32 v12, s45, v8
    s_add_u32 s45, s45, {GSL}
    s_cmp_ge_u32 s45, {3*GSL}
    s_cselect_b32 s45, 0, s45
    """)
    FB = [16, 32]
    def rl(ks):
        b = FB[ks & 1]
        return [f"ds_read_b128 {vr(b,4)}, v10 offset:{ks*1024}",
                f"ds_read_b64_tr_b16 {vr(b+8,2)}, v11 offset:{ks*4096}",
                f"ds_read_b64_tr_b16 {vr(b+10,2)}, v11 offset:{ks*4096+2048}",
                f"ds_read_b64_tr_b16 {vr(b+12,2)}, v12 offset:{ks*4096}",
                f"ds_read_b64_tr_b16 {vr(b+14,2)}, v12 offset:{ks*4096+2048}",
                f"ds_read_b128 {vr(b+4,4)}, v10 offset:{ks*1024+4096}"]
    def ml(ks):
        b = FB[ks & 1]
        x0, x1, w0, w1 = vr(b,4), vr(b+4,4), vr(b+8,4), vr(b+12,4)
        return [f"{M} v[64:79], {w0}, {x0}, v[64:79]", f"{M} v[80:95], {w1}, {x0}, v[80:95]",
                f"{M} v[96:111], {w0}, {x1}, v[96:111]", f"{M} v[112:127], {w1}, {x1}, v[112:127]"]
    for x in rl(0): a(x)
    for ks in range(4):
        a("s_waitcnt lgkmcnt(0)")
        r = rl(ks + 1) if ks < 3 else []
        for i, m in enumerate(ml(ks)):
            a(m)
            for x in r[2*i:2*i+2]: a(x)
    a(f"""
    s_cmp_lg_u32 s30, s47
    s_cbranch_scc1 {L}_gskip
    s_lshl_b32 s36, s35, 6
    s_lshl_b32 s37, s33, 2
    s_add_u32 s36, s36, s37
    s_and_b32 s37, s16, 1
    s_lshl_b32 s37, s37, 1
    s_add_u32 s36, s36, s37
    s_mul_i32 s36, s36, 40
    s_lshl_b32 s37, s34, 3
    s_add_u32 s36, s36, s37
    s_lshr_b32 s37, s16, 1
    s_lshl_b32 s37, s37, 2
    s_add_u32 s36, s36, s37
    s_lshl_b32 s36, s36, 10
    s_add_u32 s36, s36, {WS_B}
    s_add_u32 s37, s36, 40960
    s_nop 7
    """)
    for u in range(4):
        A = 64 + 16*u
        for qp in range(2):
            O = 16 + 4*((2*u+qp) % 8)
            for i in range(4):
                a(f"v_cvt_pk_bf16_f32 v{O+i}, v{A+8*qp+2*i}, v{A+8*qp+2*i+1}")
            a(f"buffer_store_dwordx4 {vr(O,4)}, v2, s[8:11], s{36 + (u>>1)} offen offset:{(u&1)*2048 + qp*1024} sc1")
    a(f"""
    s_branch {L}_gend
    {L}_gskip:
    s_add_u32 s30, s30, 1
    s_cmp_ge_u32 s30, 10
    s_cbranch_scc1 {L}_gend
    s_cmp_lt_u32 s46, s47
    s_cbranch_scc1 {L}_gw8
    s_waitcnt vmcnt(0)
    {L}_gw8:
    s_waitcnt vmcnt(8)
    s_branch {L}_gloop
    {L}_gend:
    s_barrier
    s_waitcnt vmcnt(0)
    s_barrier
    s_barrier
    """)

    a(f"""
    {L}_p3:
    s_load_dwordx2 s[4:5], s[0:1], 80
    s_lshl_b32 s17, s20, 3
    s_lshr_b32 s16, s21, 3
    s_lshl_b32 s16, s16, 1
    s_add_u32 s17, s17, s16
    s_and_b32 s16, s21, 7
    s_and_b32 s36, s22, 1
    s_lshr_b32 s39, s22, 1
    s_add_u32 s36, s17, s36
    s_mul_i32 s36, s36, 40
    s_mul_i32 s37, s39, 10
    s_add_u32 s36, s36, s37
    s_lshl_b32 s36, s36, 10
    s_add_u32 s36, s36, {WS_O}
    s_add_u32 s37, s36, 4096
    s_add_u32 s38, s36, 8192
    v_lshrrev_b32 v8, 5, v1
    v_bfe_u32 v9, v1, 2, 2
    v_lshl_add_u32 v8, v8, 2, v9
    v_mul_u32_u24 v8, 192, v8
    v_bfe_u32 v9, v1, 4, 1
    v_lshl_add_u32 v8, v9, 5, v8
    v_and_b32 v9, 3, v1
    v_lshl_add_u32 v8, v9, 3, v8
    s_lshl_b32 s48, s39, 2
    s_mul_i32 s49, s39, 30720
    v_add_u32 v8, s49, v8
    v_lshlrev_b32 v7, 3, v1
    v_and_b32 v6, 31, v1
    s_lshl_b32 s39, s17, 5
    v_add_u32 v6, s39, v6
    v_lshrrev_b32 v4, 3, v6
    v_lshlrev_b32 v4, 7, v4
    v_and_b32 v9, 7, v1
    v_lshl_add_u32 v4, v9, 2, v4
    s_mov_b32 s40, {WS_G}
    s_mul_i32 s41, s16, 10
    s_add_u32 s41, s41, s22
    s_lshr_b32 s42, s41, 1
    s_lshl_b32 s42, s42, 10
    s_and_b32 s43, s41, 1
    s_lshl_b32 s43, s43, 3
    s_add_u32 s42, s42, s43
    s_mul_i32 s43, s17, 40960
    s_add_u32 s42, s42, s43
    s_add_u32 s42, s42, {WS_B}
    v_mov_b32 v22, {NONCE}
    s_lshr_b32 s46, s22, 1
    s_lshl_b32 s45, 1, s46
    """)
    a.c("s17 = first row block of the tile, s16 = column group; final items: quad = wave, both row blocks")
    def bg():
        a("buffer_load_dword v140, v4, s[8:11], s40 offen sc1")
        a("buffer_load_dword v141, v4, s[8:11], s40 offen offset:512 sc1")
        for j in range(2):
            for sk in range(3):
                a(f"s_add_u32 s43, s42, {j*40960 + sk*64*40960}")
                a(f"buffer_load_dwordx2 {vr(128+6*j+2*sk,2)}, v2, s[8:11], s43 offen sc1")
    a(f"""
    s_movk_i32 s43, 1280
    v_mul_lo_u32 v6, v6, s43
    v_lshrrev_b32 v9, 5, v1
    v_lshl_add_u32 v6, v9, 3, v6
    s_lshl_b32 s41, s41, 4
    s_add_u32 s44, s41, 40960
    s_waitcnt lgkmcnt(0)
    """)
    srd(a, 12, 4, 5, 2621440)
    for r in range(64, 112): a(f"v_mov_b32 v{r}, 0")
    WF = [112, 144]
    def wr(ks):
        b = WF[ks & 1]
        return [f"ds_read_b64_tr_b16 {vr(b+4*cb+2*t,2)}, v8 offset:{ks*3072 + t*1536 + 64*cb}" for cb in range(3) for t in range(2)]
    a(f"""
    s_mov_b32 s70, {SPIN}
    s_cmp_lg_u32 s22, 8
    s_cbranch_scc1 {L}_p3w
    s_mov_b64 exec, 0xf
    {L}_p3poll:
    buffer_load_dword v24, v3, s[8:11], s35 offen sc1
    s_sub_u32 s70, s70, 1
    s_cselect_b32 s47, -1, 0
    s_waitcnt vmcnt(0)
    v_cmp_eq_u32 vcc, 8, v24
    s_or_b32 s47, s47, vcc_lo
    s_or_b32 s47, s47, 0xfffffff0
    v_mov_b32 v23, s47
    ds_write_b32 v22, v23 offset:8
    s_sleep {E("PSLEEP", "2")}
    s_cmp_lg_u32 s47, -1
    s_cbranch_scc1 {L}_p3poll
    """)
    stamp(a, 6)
    a(f"""
    s_mov_b64 exec, -1
    {L}_p3w:
    ds_read_b64 v[10:11], v22 offset:8
    s_waitcnt lgkmcnt(0)
    v_readfirstlane_b32 s47, v10
    v_readfirstlane_b32 s46, v11
    s_or_b32 s47, s47, 0x10
    s_and_b32 s47, s47, s45
    s_xor_b32 s47, s47, s45
    s_xor_b32 s46, s46, 2
    s_or_b32 s47, s47, s46
    s_cmp_eq_u32 s47, 0
    s_cbranch_scc1 {L}_p3go
    s_sleep 1
    s_branch {L}_p3w
    {L}_p3go:
    s_cmp_lt_u32 s22, 8
    s_cbranch_scc1 {L}_p3m
    """)
    bg()
    a(f"""
    s_branch {L}_p3r
    {L}_p3m:
    """)
    if not E("ES"): stamp(a, 6)
    OF = 24
    for ks in range(10):
        for sl in range(2):
            a(f"buffer_load_dwordx2 {vr(OF+4*ks+2*sl,2)}, v7, s[8:11], s{36+ks//4} offen offset:{(ks%4)*1024+512*sl}{E('OSC', ' sc1')}")
    for x in wr(0): a(x)
    bg()
    for ks in range(10):
        a(f"s_waitcnt vmcnt({26-2*ks}) lgkmcnt(0)")
        r = wr(ks+1) if ks < 9 else []
        b = WF[ks & 1]
        for cb in range(3):
            a(f"{M} {vr(64+16*cb,16)}, {vr(b+4*cb,4)}, {vr(OF+4*ks,4)}, {vr(64+16*cb,16)}")
            for x in r[2*cb:2*cb+2]: a(x)
    a(f"""
    v_add_u32 v23, s48, v22
    v_mov_b32 v9, 1
    s_mov_b64 exec, 1
    ds_add_u32 v23, v9 offset:16
    s_mov_b64 exec, -1
    s_and_b32 s47, s22, 1
    s_mul_i32 s47, s47, 10240
    s_add_u32 s39, s49, s47
    v_add_u32 v5, s39, v2
    {L}_p3pw:
    ds_read_b32 v9, v23 offset:16
    s_waitcnt lgkmcnt(0)
    v_readfirstlane_b32 s47, v9
    s_cmp_lg_u32 s47, 2
    s_cbranch_scc1 {L}_p3pw
    """)
    for q in range(10):
        a(f"ds_write_b128 v5, {vr(64+4*q,4)} offset:{1024*q}")
    a(f"""
    s_waitcnt lgkmcnt(0)
    {L}_p3r:
    """)
    if STAMP:
        a(f"s_cmp_lt_u32 s22, 4\ns_cbranch_scc1 {L}_st4")
        stamp(a, 4)
        a(f"{L}_st4:")
    a(f"""
    s_lshl_b32 s39, s22, 10
    v_add_u32 v5, s39, v2
    v_add_u32 v7, 61440, v5
    s_barrier
    """)
    for j in range(2):
        for kq in range(4):
            a(f"ds_read_b128 {vr(16+16*j+4*kq,4)}, v{5 if kq < 2 else 7} offset:{j*10240 + (kq%2)*30720}")
    a("s_waitcnt vmcnt(0)")
    for j in range(2):
        a(f"""
        v_sub_f32 v{142+j}, 1.0, v{140+j}
        v_cvt_pk_bf16_f32 v{142+j}, v{142+j}, v{142+j}
        v_lshlrev_b32 v{142+j}, 16, v{142+j}
        """)
        B = 128 + 6*j
        for i in range(4):
            ex = (lambda d, r: f"v_lshlrev_b32 v{d}, 16, v{r}") if i % 2 == 0 else (lambda d, r: f"v_and_b32 v{d}, 0xffff0000, v{r}")
            a(f"""
            {ex(56+4*j+i, B + i//2)}
            {ex(55, B + 2 + i//2)}
            v_add_f32 v{56+4*j+i}, v{56+4*j+i}, v55
            {ex(55, B + 4 + i//2)}
            v_add_f32 v{56+4*j+i}, v{56+4*j+i}, v55
            """)
    a("s_waitcnt lgkmcnt(0)")
    for j in range(2):
        P = 16 + 16*j
        for i in range(4):
            a(f"""
            v_add_f32 v{P+i}, v{P+i}, v{P+4+i}
            v_add_f32 v{P+8+i}, v{P+8+i}, v{P+12+i}
            v_add_f32 v{P+i}, v{P+i}, v{P+8+i}
            v_mul_f32 v{P+i}, v{140+j}, v{P+i}
            v_fmac_f32 v{P+i}, v{142+j}, v{56+4*j+i}
            """)
        a(f"""
        v_cvt_pk_bf16_f32 v{P}, v{P}, v{P+1}
        v_cvt_pk_bf16_f32 v{P+1}, v{P+2}, v{P+3}
        buffer_store_dwordx2 {vr(P,2)}, v6, s[12:15], s{41 if j == 0 else 44} offen
        """)
    stamp_out(a, 7, 0)
    a(f"{L}_end:")
    a("s_endpgm")
    kernel_desc(a, name, 160, 100)
```

```python
import sys
sys.path.insert(0, 'gen')
from common import *
import fk5 as fused
NAME = "gated_mix__grouped_kv_mqa__geglu_ffn__prompt"
HEAD = open(f'cdna_kernels/{NAME}.s.ref').read().split('; Override')[0]
a = Asm()
hdr = HEAD + f"; @launch grid=(256,1,1) block=({fused.F_BLOCK},1,1) lds={fused.F_LDS}\n"
hdr += '.amdgcn_target "amdgcn-amd-amdhsa--gfx950"\n'
fused.gen(a, NAME + "_kernel")
out = sys.argv[1] if len(sys.argv) > 1 else f'cdna_kernels/{NAME}.s'
open(out, 'w').write(hdr + a.text())
```

```python
from common import *
import math
from k2 import (M, QA1, QA2, QB1, QB2, KVB, SA, SB, OA, OB, PA, PB, split3, exp_groups, pv, CH)
def qk(Sd, kb, q1, q2):
    return [f"{M} {vr(Sd,16)}, {vr(kb,4)}, {vr(q1,4)}, 0",
            f"v_mfma_f32_32x32x8_bf16 {vr(Sd,16)}, {vr(kb+4,2)}, {vr(q2,2)}, {vr(Sd,16)}"]
LOG2E = 1.4426950408889634
QSCALE = LOG2E / math.sqrt(20.0)
E = os.environ.get
XSL = 32768
WB = 3 * XSL
WSL = 10240
QST = WB
KVR = 163840 - 3 * CH
GSL = 32768
NONCE = 122880
BREG = True
F_LDS = 163840
F_BLOCK = 640
SPIN = int(E("SPIN", 1 << 16))
SC = " sc1"
SCL = E('SCL', ' sc1')

_pc = [0]
def poll(a, L, voff, soff):
    _pc[0] += 1
    T = f"{L}_poll{_pc[0]}"
    a(f"""
    s_mov_b32 s70, {SPIN}
    {T}:
    buffer_load_dwordx2 v[24:25], {voff}, s[8:11], {soff} offen sc1
    s_sub_u32 s70, s70, 1
    s_cbranch_scc1 {T}_ok
    s_waitcnt vmcnt(0)
    v_cmp_ne_u64 vcc, v[24:25], v[20:21]
    s_cmp_eq_u64 vcc, 0
    s_cbranch_scc1 {T}_ok
    s_sleep {E("PSLEEP", "2")}
    s_branch {T}
    {T}_ok:
    """)

def flag(a, soff):
    a(f"""
    s_mov_b64 exec, 1
    buffer_store_dwordx2 v[20:21], v5, s[8:11], {soff} offen sc1
    s_mov_b64 exec, -1
    """)

def aslot(a, S, P, mf, pre=(), rd=None):
    g = exp_groups(S, P)
    flat = [x for gg in g for x in gg]
    pos = [int(x) for x in E("MPOS", "0,5,11,17").split(",")]
    for p in pre: a(p)
    k = 0
    for i, x in enumerate(flat):
        while k < 4 and pos[k] == i:
            a(mf[k])
            if rd: a(rd[k])
            k += 1
        a(x)

def gen(a, name):
    kernel_head(a, name)
    L = name
    a(f"""
    s_cmp_ge_u32 s2, 256
    s_cbranch_scc1 {L}_end
    s_load_dwordx8 s[4:11], s[0:1], 0
    s_load_dwordx4 s[12:15], s[0:1], 48
    s_load_dwordx2 s[18:19], s[0:1], 96
    """)
    stamp(a, 0)
    a(f"""
    v_lshrrev_b32 v2, 6, v0
    v_and_b32 v1, 63, v0
    v_readfirstlane_b32 s22, v2
    s_and_b32 s47, s2, 7
    s_lshr_b32 s51, s2, 3
    s_and_b32 s20, s47, 1
    s_lshl_b32 s20, s20, 2
    s_and_b32 s67, s51, 3
    s_add_u32 s20, s20, s67
    s_lshr_b32 s21, s47, 1
    s_lshr_b32 s68, s51, 2
    s_lshl_b32 s52, s68, 2
    s_add_u32 s21, s21, s52
    s_cmp_lt_u32 s22, 8
    s_cbranch_scc1 {L}_comp
    """)
    a.c("s20 = row group (256 rows), s21 = cg = head = column group, s22 = wave; kept for the whole kernel, as is s[18:19]")
    a(f"""
    s_and_b32 s63, s22, 1
    v_lshrrev_b32 v10, 3, v1
    v_lshrrev_b32 v11, 4, v1
    v_and_b32 v12, 7, v1
    v_xor_b32 v12, v12, v11
    v_xor_b32 v11, 4, v12
    s_movk_i32 s54, 1280
    v_mul_u32_u24 v10, s54, v10
    v_lshl_add_u32 v15, v11, 4, v10
    v_lshl_add_u32 v10, v12, 4, v10
    s_mul_i32 s53, s20, {256*1280}
    s_mul_i32 s55, s63, {64*1280}
    s_add_u32 s53, s53, s55
    """)
    for i in range(8):
        a(f"s_add_u32 s55, s53, {i*10240 - 1024*(i&3) + 4096}")
        a(f"v_add_u32 v{2+i}, s55, v{15 if i & 1 else 10}")
    a(f"""
    s_add_u32 s52, s67, s68
    s_and_b32 s52, s52, {E("RA", "3")}
    s_mul_i32 s52, s52, {E("RM", "5")}
    s_lshr_b32 s52, s52, 1
    s_lshl_b32 s41, s52, 7
    s_lshl_b32 s48, s63, 13
    s_mov_b32 m0, s48
    v_lshrrev_b32 v13, 3, v1
    s_movk_i32 s62, 3456
    v_mul_u32_u24 v13, s62, v13
    v_and_b32 v14, 7, v1
    v_bfe_u32 v15, v1, 4, 1
    v_lshlrev_b32 v15, 2, v15
    v_xor_b32 v14, v14, v15
    v_lshl_add_u32 v13, v14, 4, v13
    s_lshl_b32 s53, s21, 7
    v_add_u32 v10, s53, v13
    v_add_u32 v11, {8*3456-1024}, v10
    v_add_u32 v12, {2*(8*3456-1024)}, v10
    v_add_u32 v13, {3*(8*3456-1024)}, v10
    v_lshrrev_b32 v14, 2, v1
    v_mul_u32_u24 v14, s54, v14
    v_and_b32 v15, 3, v1
    v_lshl_add_u32 v14, v15, 4, v14
    s_mul_i32 s53, s21, 40
    s_mul_i32 s55, s63, {16*1280}
    s_add_u32 s53, s53, s55
    v_add_u32 v14, s53, v14
    v_lshlrev_b32 v15, 4, v1
    s_mov_b32 s26, {2621440+4096}
    s_mov_b32 s27, 0x20000
    s_mov_b32 s30, 2211840
    s_mov_b32 s31, 0x20000
    s_mov_b32 s34, 819200
    s_mov_b32 s35, 0x20000
    s_sub_u32 s53, s21, 27
    s_cmp_lt_u32 s53, 2
    s_cselect_b32 s38, 25600, 0
    s_mov_b32 s39, 0x20000
    s_lshl_b32 s52, s52, 1
    s_mul_i32 s42, s52, {32*3456}
    s_mul_i32 s43, s52, {32*1280}
    s_mul_i32 s40, s52, 1280
    s_lshl_b32 s51, s63, 10
    s_add_u32 s40, s40, s51
    s_lshl_b32 s49, s63, 12
    s_add_u32 s49, s49, {WB}
    s_add_u32 s50, s51, {WB+8192}
    s_add_u32 s56, s51, {WB}
    s_add_u32 s45, s48, 16384
    s_add_u32 s54, s41, 163840
    s_mov_b32 s44, 0
    s_mov_b32 s46, 0
    s_mov_b32 s58, 2
    s_waitcnt lgkmcnt(0)
    s_sub_u32 s24, s4, 4096
    s_subb_u32 s25, s5, 0
    s_and_b32 s25, s25, 0xffff
    """)
    a.c("x voffsets carry +4096 so that they stay non negative; the SRD base carries -4096")
    def xdma(so):
        a(f"""
        buffer_load_dwordx4 v2, s[24:27], {so} offen lds
        buffer_load_dwordx4 v3, s[24:27], {so} offen offset:1024 lds
        buffer_load_dwordx4 v4, s[24:27], {so} offen offset:2048 lds
        buffer_load_dwordx4 v5, s[24:27], {so} offen offset:3072 lds
        s_add_u32 m0, m0, 4096
        s_nop 0
        buffer_load_dwordx4 v6, s[24:27], {so} offen lds
        buffer_load_dwordx4 v7, s[24:27], {so} offen offset:1024 lds
        buffer_load_dwordx4 v8, s[24:27], {so} offen offset:2048 lds
        buffer_load_dwordx4 v9, s[24:27], {so} offen offset:3072 lds
        """)
    xdma("s41")
    a(f"""
    s_cmp_eq_u32 s63, 1
    s_cselect_b32 s28, s14, s12
    s_cselect_b32 s29, s15, s13
    s_and_b32 s29, s29, 0xffff
    s_mov_b32 s32, s6
    s_and_b32 s33, s7, 0xffff
    s_cmp_eq_u32 s21, 27
    s_cselect_b32 s36, s8, s10
    s_cselect_b32 s37, s9, s11
    s_and_b32 s37, s37, 0xffff
    s_cmp_ge_u32 s21, 27
    s_cbranch_scc1 {L}_ldl_issue
    """)
    a.c("s45/s54 next x half (lds, soffset), s41 k byte offset of the pair, s42 W, s43 wq, s40 wk/wv soffsets, s44 W slot")
    for tag, D in (("ldf", 13), ("ldl", 10)):
        a(f"""
        {L}_{tag}_issue:
        s_mov_b32 m0, s45
        s_add_u32 s46, s46, 1
        """)
        xdma("s54")
        if tag == "ldf":
            a(f"""
            s_add_u32 m0, s44, s49
            s_add_u32 s45, s45, 16384
            buffer_load_dwordx4 v10, s[28:31], s42 offen lds
            buffer_load_dwordx4 v11, s[28:31], s42 offen offset:1024 lds
            buffer_load_dwordx4 v12, s[28:31], s42 offen offset:2048 lds
            buffer_load_dwordx4 v13, s[28:31], s42 offen offset:3072 lds
            """)
        else:
            a(f"""
            s_add_u32 m0, s44, s56
            s_add_u32 s45, s45, 16384
            buffer_load_dwordx4 v15, s[36:39], s40 offen lds
            """)
        a(f"""
        s_add_u32 m0, s44, s50
        s_add_u32 s42, s42, {32*3456}
        buffer_load_dwordx4 v14, s[32:35], s43 offen lds
        s_add_u32 s43, s43, {32*1280}
        s_add_u32 s40, s40, 1280
        s_cmp_eq_u32 s43, 819200
        s_cselect_b32 s42, 0, s42
        s_cselect_b32 s43, 0, s43
        s_cselect_b32 s40, s51, s40
        s_add_u32 s44, s44, {WSL}
        s_cmp_ge_u32 s44, {4*WSL}
        s_cselect_b32 s44, 0, s44
        s_cmp_ge_u32 s45, {WB}
        s_cselect_b32 s45, s48, s45
        s_add_u32 s52, s41, 128
        s_cmp_eq_u32 s52, 1280
        s_cselect_b32 s52, 0, s52
        s_add_u32 s53, s41, 163840
        s_bitcmp1_b32 s46, 0
        s_cselect_b32 s41, s52, s41
        s_cselect_b32 s54, s52, s53
        s_cmp_eq_u32 s46, 19
        s_cselect_b32 s26, 0, s26
        s_cmp_lt_u32 s46, s58
        s_cbranch_scc1 {L}_{tag}_issue
        s_waitcnt vmcnt({D})
        s_barrier
        s_add_u32 s58, s58, 1
        s_cmp_le_u32 s58, 20
        s_cbranch_scc1 {L}_{tag}_issue
        """)
        if tag == "ldf": a(f"s_branch {L}_ld_tail")
    a(f"""
    {L}_ld_tail:
    s_load_dwordx2 s[4:5], s[0:1], 32
    s_load_dwordx2 s[6:7], s[0:1], 88
    v_mov_b32 v5, 0
    s_waitcnt vmcnt(0) lgkmcnt(0)
    s_barrier
    global_load_dwordx2 v[20:21], v5, s[6:7] sc0 sc1
    s_barrier
    """)
    srd(a, 8, 18, 19, WS_SIZE)
    srd(a, 12, 18, 19, WS_KV + 64*3072)
    a(f"""
    v_lshlrev_b32 v2, 4, v1
    v_lshlrev_b32 v3, 7, v1
    s_mov_b32 s70, {SPIN}
    s_branch {L}_l_non2
    {L}_l_non:
    global_load_dwordx2 v[20:21], v5, s[6:7] sc0 sc1
    {L}_l_non2:
    s_sub_u32 s70, s70, 1
    s_cbranch_scc1 {L}_l_non3
    s_waitcnt vmcnt(0)
    v_cmp_ne_u32 vcc, 0, v20
    s_cmp_eq_u64 vcc, 0
    s_cbranch_scc1 {L}_l_non
    {L}_l_non3:
    s_lshl_b32 s33, s20, 5
    s_add_u32 s33, s33, s21
    s_lshl_b32 s34, s33, 7
    s_add_u32 s34, s34, {WS_F}
    s_lshl_b32 s35, s20, 12
    s_add_u32 s35, s35, {WS_F}
    s_sub_u32 s53, s21, 27
    s_cmp_ge_u32 s53, 2
    s_cbranch_scc1 {L}_l_nokv
    s_barrier
    s_cmp_lg_u32 s63, 0
    s_cbranch_scc1 {L}_l_nokv
    s_lshl_b32 s52, s20, 1
    s_add_u32 s52, s52, s53
    s_lshl_b32 s52, s52, 7
    s_add_u32 s52, s52, {WS_F+FQ}
    """)
    flag(a, "s52")
    a(f"""
    {L}_l_nokv:
    s_cmp_lt_u32 s21, 27
    s_cbranch_scc1 {L}_l_now
    s_cmp_eq_u32 s63, 0
    s_cbranch_scc1 {L}_l_now
    s_load_dwordx2 s[16:17], s[0:1], 64
    s_mul_i32 s52, s20, 5
    s_add_u32 s52, s52, s53
    s_mul_i32 s52, s52, {7*8192}
    s_waitcnt lgkmcnt(0)
    s_mov_b32 s56, s16
    s_and_b32 s57, s17, 0xffff
    s_mov_b32 s58, 2211840
    s_mov_b32 s59, 0x20000
    s_mov_b32 s54, 7
    {L}_l_warm:
    buffer_load_dword v31, v3, s[56:59], s52 offen
    s_add_u32 s52, s52, 8192
    s_sub_u32 s54, s54, 1
    s_cmp_lg_u32 s54, 0
    s_cbranch_scc1 {L}_l_warm
    {L}_l_now:
    s_mul_i32 s24, s63, 6144
    s_add_u32 s30, s24, {WS_KV}
    s_add_u32 s31, s30, 4096
    s_add_u32 s24, s24, {KVR}
    s_mov_b32 s25, {CH}
    s_mov_b32 s52, {WS_F+FQ}
    s_mov_b64 exec, 0xffff
    """)
    a.c("s34 = own flag line, s35 = flag lines of this row group; s30/s31 kv source, s24 + s25 kv destination")
    stamp(a, 1)
    poll(a, L, "v3", "s52")
    a("s_mov_b64 exec, -1")
    stamp(a, 2)
    def kv():
        a(f"""
        s_add_u32 m0, s25, s24
        s_add_u32 s25, s25, {CH}
        buffer_load_dwordx4 v2, s[12:15], s30 offen{SCL} lds
        buffer_load_dwordx4 v2, s[12:15], s30 offen offset:1024{SCL} lds
        buffer_load_dwordx4 v2, s[12:15], s30 offen offset:2048{SCL} lds
        buffer_load_dwordx4 v2, s[12:15], s30 offen offset:3072{SCL} lds
        s_add_u32 m0, m0, 4096
        s_add_u32 s30, s30, {CH}
        buffer_load_dwordx4 v2, s[12:15], s31 offen{SCL} lds
        buffer_load_dwordx4 v2, s[12:15], s31 offen offset:1024{SCL} lds
        s_add_u32 s31, s31, {CH}
        s_cmp_ge_u32 s25, {3*CH}
        s_cselect_b32 s25, 0, s25
        """)
    a(f"""
    s_mov_b32 m0, {QST+6144}
    s_mov_b32 s52, {WS_KV+1024+63*8+4}
    v_mul_u32_u24 v6, 3072, v1
    buffer_load_dword v6, s[8:11], s52 offen{SCL} lds
    """)
    kv(); kv()
    a(f"""
    s_lshr_b32 s38, s21, 2
    s_mul_i32 s38, s38, 160
    s_movk_i32 s39, 5462
    s_movk_i32 s40, 1280
    """)
    for i in range(3):
        a(f"""
        v_add_u32 v6, {64*i}, v1
        v_mul_u32_u24 v7, s39, v6
        v_lshrrev_b32 v7, 16, v7
        v_mul_u32_u24 v8, 12, v7
        v_sub_u32 v8, v6, v8
        v_mul_u32_u24 v7, s40, v7
        v_lshl_add_u32 v7, v8, 4, v7
        v_add_u32 v7, s38, v7
        v_subrev_u32 v{10+i}, {1024*i}, v7
        """)
    srd(a, 40, 4, 5, 819200)
    a(f"""
    s_mul_i32 s44, s63, {20*20480}
    s_mul_i32 s45, s63, {20*3072}
    s_waitcnt vmcnt(6)
    """)
    stamp(a, 3)
    a("s_barrier")
    def bar_kv():
        a("s_waitcnt vmcnt(0)")
        a("s_barrier")
        kv()
    bar_kv()
    a(f"""
    s_cmp_eq_u32 s63, 1
    s_cbranch_scc1 {L}_gate
    s_lshl_b32 s52, s2, 6
    v_add_u32 v6, s52, v1
    v_lshlrev_b32 v6, 7, v6
    buffer_load_dword v30, v6, s[40:43], 0 offen
    v_mov_b32 v6, {NONCE}
    ds_write_b64 v6, v[20:21]
    v_mov_b32 v8, 0
    v_mov_b32 v9, 0
    ds_write_b64 v6, v[8:9] offset:8
    ds_write_b64 v6, v[8:9] offset:16
    ds_write_b64 v6, v[8:9] offset:24
    s_waitcnt vmcnt(1) lgkmcnt(0)
    s_barrier
    """)
    a.c("B1 passed: every wave has drained its h stores")
    flag(a, "s34")
    kv()
    a(f"""
    s_waitcnt vmcnt(0)
    s_branch {L}_gate_done
    {L}_gate:
    s_load_dwordx2 s[16:17], s[0:1], 72
    s_load_dwordx2 s[4:5], s[0:1], 0
    v_and_b32 v16, 7, v1
    v_lshlrev_b32 v16, 4, v16
    v_lshrrev_b32 v17, 3, v1
    s_lshl_b32 s53, s33, 3
    v_add_u32 v18, s53, v17
    s_movk_i32 s54, 1280
    v_mul_lo_u32 v17, v18, s54
    v_add_u32 v17, v17, v16
    s_waitcnt lgkmcnt(0)
    """)
    srd(a, 56, 4, 5, 2621440)
    srd(a, 68, 16, 17, 1280)
    for j in range(10):
        a(f"buffer_load_dwordx4 {vr(72+4*j,4)}, v17, s[56:59], 0 offen offset:{128*j}")
    for j in range(10):
        a(f"buffer_load_dwordx4 {vr(32+4*j,4)}, v16, s[68:71], 0 offen offset:{128*j}")
    a(f"""
    v_lshrrev_b32 v19, 3, v1
    v_lshlrev_b32 v19, 2, v19
    v_mov_b32 v27, {f32(-LOG2E)}
    v_mov_b32 v26, 0
    v_mov_b32 v28, 0
    s_waitcnt vmcnt(20)
    s_barrier
    """)
    kv()
    a("s_waitcnt vmcnt(6)")
    for i in range(0, 40, 2):
        a(f"v_dot2_f32_bf16 v26, v{72+i}, v{32+i}, v26")
        a(f"v_dot2_f32_bf16 v28, v{73+i}, v{33+i}, v28")
    a(f"""
    s_nop 3
    v_add_f32 v26, v26, v28
    s_nop 1
    v_add_f32_dpp v26, v26, v26 quad_perm:[1,0,3,2] row_mask:0xf bank_mask:0xf
    s_nop 1
    v_add_f32_dpp v26, v26, v26 quad_perm:[2,3,0,1] row_mask:0xf bank_mask:0xf
    s_nop 1
    v_add_f32_dpp v26, v26, v26 row_half_mirror row_mask:0xf bank_mask:0xf
    v_cvt_pk_bf16_f32 v26, v26, v26
    v_lshlrev_b32 v26, 16, v26
    v_mul_f32 v26, v27, v26
    v_exp_f32 v26, v26
    s_nop 0
    v_add_f32 v26, 1.0, v26
    v_rcp_f32 v26, v26
    s_nop 0
    v_cvt_pk_bf16_f32 v26, v26, v26
    v_lshlrev_b32 v28, 16, v26
    s_lshl_b32 s53, s33, 7
    s_add_u32 s53, s53, {WS_G}
    v_cmp_eq_u32 vcc, 0, v16
    s_nop 1
    s_mov_b64 exec, vcc
    buffer_store_dword v28, v19, s[8:11], s53 offen sc1
    s_mov_b64 exec, -1
    s_waitcnt vmcnt(1)
    {L}_gate_done:
    s_barrier
    """)
    kv()
    a(f"""
    s_cmp_eq_u32 s63, 1
    s_cbranch_scc1 {L}_l_np
    """)
    a("s_mov_b64 exec, 0x7ffffff")
    poll(a, L, "v3", "s35")
    a(f"""
    s_mov_b64 exec, -1
    {L}_l_np:
    s_mov_b32 s46, 3
    {L}_lloop:
    """)
    bar_kv()
    a(f"""
    s_add_u32 s46, s46, 1
    s_cmp_lt_u32 s46, 14
    s_cbranch_scc1 {L}_lloop
    s_add_u32 s34, s34, {F2}
    s_add_u32 s35, s35, {F2}
    """)
    a.c("barrier 13 passed: G waves are done with their ring")
    def wo(n, tag):
        a(f"""
        s_mov_b32 s47, {n}
        {L}_wo{tag}:
        s_mov_b32 m0, s45
        s_add_u32 s45, s45, 3072
        buffer_load_dwordx4 v10, s[40:43], s44 offen lds
        buffer_load_dwordx4 v11, s[40:43], s44 offen offset:1024 lds
        buffer_load_dwordx4 v12, s[40:43], s44 offen offset:2048 lds
        s_add_u32 s44, s44, 20480
        s_sub_u32 s47, s47, 1
        s_cmp_lg_u32 s47, 0
        s_cbranch_scc1 {L}_wo{tag}
        """)
    wo(8, "a")
    a("s_waitcnt vmcnt(24)")
    a("s_barrier")
    a(f"s_cmp_lg_u32 s63, 0\ns_cbranch_scc1 {L}_l_nf2")
    flag(a, "s34")
    a(f"{L}_l_nf2:")
    wo(8, "b")
    a("s_barrier")
    wo(4, "c")
    a(f"s_cmp_eq_u32 s63, 0\ns_cbranch_scc1 {L}_l_np2")
    a("s_mov_b32 exec_hi, 0")
    poll(a, L, "v3", "s35")
    a(f"{L}_l_np2:")
    a(f"""
    s_mov_b64 exec, 1
    v_mov_b32 v22, {NONCE}
    v_mov_b32 v9, 1
    s_waitcnt vmcnt(0)
    ds_add_u32 v22, v9 offset:12
    s_mov_b64 exec, -1
    s_and_b32 s52, s21, 3
    s_lshl_b32 s52, s52, 9
    s_add_u32 s35, s35, s52
    s_add_u32 s35, s35, {F3-F2}
    s_branch {L}_p3
    """)

    a(f"""
    {L}_comp:
    s_and_b32 s63, s22, 3
    s_lshr_b32 s64, s22, 2
    v_and_b32 v13, 31, v1
    v_lshrrev_b32 v14, 5, v1
    v_bfe_u32 v15, v1, 1, 3
    v_xor_b32 v2, v14, v15
    v_lshlrev_b32 v2, 4, v2
    v_lshl_add_u32 v2, v13, 7, v2
    s_lshl_b32 s52, s63, 13
    s_lshl_b32 s53, s64, 12
    s_add_u32 s52, s52, s53
    v_add_u32 v2, s52, v2
    v_xor_b32 v3, 32, v2
    v_xor_b32 v4, 64, v2
    v_xor_b32 v5, 96, v2
    v_bfe_u32 v15, v1, 2, 2
    v_lshlrev_b32 v7, 3, v14
    v_add_u32 v7, v7, v15
    v_mul_u32_u24 v9, 40, v7
    v_lshlrev_b32 v8, 6, v7
    v_lshlrev_b32 v7, 7, v7
    v_lshrrev_b32 v16, 1, v15
    v_xor_b32 v16, s64, v16
    v_lshl_add_u32 v7, v16, 6, v7
    v_bfe_u32 v16, v1, 4, 1
    v_and_b32 v17, 3, v1
    v_lshlrev_b32 v16, 5, v16
    v_lshl_add_u32 v16, v17, 3, v16
    v_add_u32 v7, v7, v16
    v_add_u32 v8, v8, v16
    v_add_u32 v9, v9, v16
    v_add_u32 v7, {WB}, v7
    v_add_u32 v8, {WB+8192}, v8
    v_add_u32 v9, {WB}, v9
    s_mov_b32 s44, 0
    s_mov_b32 s45, 0
    s_mov_b32 s46, 0
    """)
    a.c("v2..v5 x frag addr (row block 2rp+cp) for the 4 k steps of a pair; v7 W, v8 wq slice, v9 wk/wv slice addr; s63=rp s64=cp")
    for r in range(64, 144, 2):
        a(f"v_mov_b64 v[{r}:{r+1}], 0")
    a("s_waitcnt lgkmcnt(0)")
    srd(a, 8, 18, 19, WS_SIZE)
    a(f"""
    s_or_b32 s52, s22, s2
    s_cmp_lg_u32 s52, 0
    s_cbranch_scc1 {L}_nonon
    s_load_dwordx2 s[52:53], s[0:1], 88
    s_memrealtime s[54:55]
    v_mov_b32 v148, 0
    s_waitcnt lgkmcnt(0)
    s_or_b32 s54, s54, 1
    v_mov_b32 v144, s54
    v_mov_b32 v145, s55
    s_mov_b64 exec, 1
    global_store_dwordx2 v148, v[144:145], s[52:53] sc0 sc1
    s_mov_b64 exec, -1
    {L}_nonon:
    s_lshr_b32 s52, s21, 4
    s_xor_b32 s53, s22, 1
    s_or_b32 s52, s52, s53
    s_cmp_lg_u32 s52, 0
    s_cbranch_scc1 {L}_noin
    s_lshl_b32 s52, s20, 5
    s_add_u32 s52, s52, s21
    s_lshl_b32 s52, s52, 7
    s_add_u32 s52, s52, {WS_F+F3}
    s_mov_b64 exec, 1
    buffer_store_dword v64, v64, s[8:11], s52 offen sc1
    s_mov_b64 exec, -1
    {L}_noin:
    """)
    if E("CPF", "0") == "1":
        a(f"""
        s_lshr_b32 s52, s2, {3 + int(E("CPFS", "0"))}
        s_xor_b32 s53, s22, 2
        s_or_b32 s52, s52, s53
        s_cmp_lg_u32 s52, 0
        s_cbranch_scc1 {L}_nocpf
        s_getpc_b64 s[52:53]
        {L}_pc:
        s_sub_u32 s52, s52, {L}_pc-{L}
        s_subb_u32 s53, s53, 0
        v_lshlrev_b32 v144, 7, v1
        global_load_dword v145, v144, s[52:53]
        v_add_u32 v144, 8192, v144
        v_cmp_gt_u32 vcc, {L}_end-{L}, v144
        s_nop 1
        s_mov_b64 exec, vcc
        global_load_dword v145, v144, s[52:53]
        s_mov_b64 exec, -1
        {L}_nocpf:
        """)
    a(f"""
    s_cmp_eq_u32 s21, 27
    s_cbranch_scc1 {L}_modeK
    s_cmp_eq_u32 s21, 28
    s_cbranch_scc1 {L}_modeV
    s_cmp_gt_u32 s21, 28
    s_cbranch_scc1 {L}_modeQ
    """)
    XA = [16, 36]
    XC = [56, 57, 58, 59]
    XD = [60, 61, 62, 63]
    def xaddrs(full):
        l = [f"v_add_u32 v{XC[j]}, s45, v{2+j}" for j in range(4)]
        if full: l += [f"v_xor_b32 v{XD[j]}, 4096, v{XC[j]}" for j in range(4)]
        return l + [f"s_add_u32 s45, s45, {XSL}", f"s_cmp_ge_u32 s45, {WB}", "s_cselect_b32 s45, 0, s45"]
    def waddrs(mode):
        l = ["v_add_u32 v12, s44, v8"]
        if mode == 0: l.append("v_add_u32 v11, s44, v7")
        if mode in (1, 2): l.append("v_add_u32 v11, s44, v9")
        return l + [f"s_add_u32 s44, s44, {WSL}", f"s_cmp_ge_u32 s44, {4*WSL}", "s_cselect_b32 s44, 0, s44"]
    def read_list(j, mode):
        ks = j & 1
        b = XA[ks]
        l = [f"ds_read_b128 {vr(b,4)}, v{XC[j]}"]
        if mode == 0:
            l += [f"ds_read_b64_tr_b16 {vr(b+8,2)}, v11 offset:{ks*2048}",
                  f"ds_read_b64_tr_b16 {vr(b+10,2)}, v11 offset:{ks*2048+512}",
                  f"ds_read_b64_tr_b16 {vr(b+12,2)}, v11 offset:{4096+ks*2048}",
                  f"ds_read_b64_tr_b16 {vr(b+14,2)}, v11 offset:{4096+ks*2048+512}",
                  f"ds_read_b128 {vr(b+4,4)}, v{XD[j]}"]
        if mode in (1, 2):
            l += [f"ds_read_b64_tr_b16 {vr(b+8,2)}, v11 offset:{ks*640}",
                  f"ds_read_b64_tr_b16 {vr(b+10,2)}, v11 offset:{ks*640+160}"]
        l += [f"ds_read_b64_tr_b16 {vr(b+16,2)}, v12 offset:{ks*1024}",
              f"ds_read_b64_tr_b16 {vr(b+18,2)}, v12 offset:{ks*1024+256}"]
        return l
    def mfma_list(ks, mode):
        b = XA[ks]
        x0, x1, wg, wu, ws = vr(b,4), vr(b+4,4), vr(b+8,4), vr(b+12,4), vr(b+16,4)
        l = []
        if mode == 0:
            l = [f"{M} v[64:79], {wg}, {x0}, v[64:79]", f"{M} v[80:95], {wu}, {x0}, v[80:95]",
                 f"{M} v[96:111], {wg}, {x1}, v[96:111]", f"{M} v[112:127], {wu}, {x1}, v[112:127]"]
        if mode == 1: l = [f"{M} v[64:79], {wg}, {x0}, v[64:79]"]
        if mode == 2: l = [f"{M} v[64:79], {x0}, {wg}, v[64:79]"]
        l = l + [f"{M} v[128:143], {ws}, {x0}, v[128:143]"]
        if E("HACK16", "0") == "1" and mode == 0:
            import re
            l2 = []
            for m in l:
                b0 = int(re.search(r"v\[(\d+):", m).group(1)); ops = m.split(", ")
                t = f"v_mfma_f32_16x16x32_bf16 {{d}}, {ops[1]}, {ops[2]}, {{d}}"
                l2.append(t.format(d=vr(b0+8*ks,4)) + "\n" + t.format(d=vr(b0+8*ks+4,4)))
            l = l2
        return l
    def half(ml, rl, post):
        n = len(ml)
        if n == 5 and E("P1V", "1") == "1":
            a("s_waitcnt lgkmcnt(2)")
            cuts = [int(x) for x in E("P1CUT", "3,6,8,8").split(",")]
            lo = 0
            for i, m in enumerate(ml):
                if i == 4: a("s_waitcnt lgkmcnt(8)")
                a(m)
                if i < 4:
                    for x in rl[lo:cuts[i]]: a(x)
                    lo = cuts[i]
                if i == 3:
                    for x in post: a(x)
            return
        a("s_waitcnt lgkmcnt(0)")
        per = -(-len(rl) // max(n - 1, 1))
        for i, m in enumerate(ml):
            a(m)
            if n == 1:
                for x in rl + post: a(x)
                continue
            for x in rl[per*i:per*i+per]: a(x)
            if i == n - 2:
                for x in post: a(x)
    for mode, tag in ((0, "full"), (1, "modeK"), (2, "modeV"), (3, "modeQ")):
        a(f"{L}_{tag}:")
        for x in xaddrs(mode == 0) + waddrs(mode): a(x)
        a("s_barrier")
        for x in read_list(0, mode): a(x)
        stamp(a, 1)
        if mode == 0: a(".p2align 6")
        a(f"{L}_{tag}_loop:")
        half(mfma_list(0, mode), read_list(1, mode), waddrs(mode))
        a("s_barrier")
        half(mfma_list(1, mode), read_list(2, mode), [])
        half(mfma_list(0, mode), read_list(3, mode), waddrs(mode) + xaddrs(mode == 0))
        a("s_barrier")
        half(mfma_list(1, mode), read_list(0, mode), ["s_add_u32 s46, s46, 1", "s_cmp_lt_u32 s46, 10"])
        a(f"s_cbranch_scc1 {L}_{tag}_loop")
        stamp(a, 2)
        a(f"""
        s_lshl_b32 s52, s20, 3
        s_lshl_b32 s53, s63, 1
        s_add_u32 s52, s52, s53
        s_add_u32 s52, s52, s64
        v_lshlrev_b32 v2, 4, v1
        """)
        a(f"s_branch {L}_epi{mode}")
    a.c("s52 = global row block of acc set 0 and of the q chain (set 1 is s52 ^ 1)")
    EK = 64
    a(f"""
    {L}_epi1:
    s_mul_i32 s53, s52, 3072
    s_add_u32 s53, s53, {WS_KV}
    s_nop 7
    s_waitcnt lgkmcnt(0)
    """)
    for i in range(4): a(f"v_cvt_pk_bf16_f32 v{20+i}, v{EK+2*i}, v{EK+2*i+1}")
    a(f"buffer_store_dwordx4 v[20:23], v2, s[8:11], s53 offen{SC}")
    a(f"v_cvt_pk_bf16_f32 v24, v{EK+8}, v{EK+9}")
    a(f"v_cvt_pk_bf16_f32 v25, v{EK+10}, v{EK+11}")
    a("v_mov_b32 v26, 0x3f803f80")
    a("v_mov_b32 v27, 0x00003f80")
    a(f"v_mul_f32 v30, v{EK}, v{EK}")
    for i in range(1, 8): a(f"v_fmac_f32 v30, v{EK+i}, v{EK+i}")
    a(f"v_mul_f32 v31, v{EK+8}, v{EK+8}")
    for i in range(9, 12): a(f"v_fmac_f32 v31, v{EK+i}, v{EK+i}")
    a(f"""
    v_cmp_gt_u32 vcc, 32, v1
    s_nop 1
    v_cndmask_b32 v31, 0, v31, vcc
    v_add_f32 v30, v30, v31
    v_mov_b32 v31, v30
    s_nop 1
    v_permlane32_swap_b32 v30, v31
    s_nop 1
    v_add_f32 v30, v30, v31
    """)
    for sh in (1, 2, 4, 8):
        a("s_nop 1")
        a(f"v_max_f32_dpp v30, v30, v30 row_shr:{sh} row_mask:0xf bank_mask:0xf")
    a(f"""
    s_nop 1
    v_max_f32_dpp v30, v30, v30 row_bcast:15 row_mask:0xa bank_mask:0xf
    v_cmp_eq_u32 vcc, 63, v1
    v_and_b32 v30, 0xffff0000, v30
    v_or_b32 v30, 0x3f80, v30
    v_cndmask_b32 v27, v27, v30, vcc
    v_cmp_gt_u32 vcc, 32, v1
    v_lshlrev_b32 v16, 3, v1
    s_nop 0
    v_cndmask_b32 v24, v26, v24, vcc
    v_cndmask_b32 v25, v27, v25, vcc
    buffer_store_dwordx2 v[24:25], v16, s[8:11], s53 offen offset:1024{SC}
    s_branch {L}_kvdone
    {L}_epi2:
    s_mul_i32 s53, s52, 3072
    s_add_u32 s53, s53, {WS_KV+1536}
    v_and_b32 v17, 31, v1
    v_lshrrev_b32 v18, 5, v1
    v_mul_u32_u24 v18, 384, v18
    v_lshl_add_u32 v16, v17, 4, v18
    v_mov_b32 v19, 0x3f803f80
    v_cmp_eq_u32 vcc, 20, v17
    v_cmp_lt_u32 s[54:55], 19, v17
    s_nop 3
    v_cndmask_b32 v19, 0, v19, vcc
    s_waitcnt lgkmcnt(0)
    """)
    for i in range(8): a(f"v_cvt_pk_bf16_f32 v{20+i}, v{EK+2*i}, v{EK+2*i+1}")
    for i in range(8): a(f"v_cndmask_b32 v{20+i}, v{20+i}, v19, s[54:55]")
    a(f"""
    v_cmp_gt_u32 vcc, 24, v17
    s_nop 1
    s_and_b64 exec, exec, vcc
    buffer_store_dwordx4 v[20:23], v16, s[8:11], s53 offen{SC}
    buffer_store_dwordx4 v[24:27], v16, s[8:11], s53 offen offset:768{SC}
    {L}_kvdone:
    s_mov_b64 exec, -1
    s_waitcnt vmcnt(0)
    s_barrier
    s_branch {L}_epi3
    """)
    C0 = -2.0 * 0.7978845608028654 * LOG2E
    C1 = C0 * 0.044715
    a(f"""
    {L}_epi0:
    v_mov_b32 v16, {f32(C0)}
    v_mov_b32 v17, {f32(C1)}
    s_lshl_b32 s54, s21, 12
    s_lshl_b32 s55, s64, 11
    s_add_u32 s54, s54, s55
    s_add_u32 s54, s54, {WS_H}
    s_mul_i32 s53, s52, {108*1024}
    s_add_u32 s53, s53, s54
    s_xor_b32 s55, s52, 1
    s_mul_i32 s55, s55, {108*1024}
    s_add_u32 s54, s54, s55
    s_waitcnt lgkmcnt(0)
    """)
    for j in range(2):
        G, U = 64 + 32*j, 80 + 32*j
        for hf in range(2):
            T = 20
            rs = list(range(8*hf, 8*hf+8))
            for i, r in enumerate(rs): a(f"v_mul_f32 v{T+i}, v{G+r}, v{G+r}")
            for i, r in enumerate(rs): a(f"v_fma_f32 v{T+i}, v{T+i}, v17, v16")
            for i, r in enumerate(rs): a(f"v_mul_f32 v{T+i}, v{G+r}, v{T+i}")
            for i, r in enumerate(rs): a(f"v_exp_f32 v{T+i}, v{T+i}")
            for i, r in enumerate(rs): a(f"v_mul_f32 v{U+r}, v{G+r}, v{U+r}")
            for i, r in enumerate(rs): a(f"v_add_f32 v{T+i}, 1.0, v{T+i}")
            for i, r in enumerate(rs): a(f"v_rcp_f32 v{T+i}, v{T+i}")
            a("s_nop 0")
            for i, r in enumerate(rs): a(f"v_mul_f32 v{T+i}, v{U+r}, v{T+i}")
            O = 28 + 4*(2*j+hf)
            for i in range(4): a(f"v_cvt_pk_bf16_f32 v{O+i}, v{T+2*i}, v{T+2*i+1}")
            a(f"buffer_store_dwordx4 {vr(O,4)}, v2, s[8:11], s{53+j} offen offset:{1024*hf}{SC}")
    a(f"""
    {L}_epi3:
    """)
    if E("ES"): stamp(a, 6)
    a(f"""
    s_nop 7
    v_mov_b32 v144, {f32(QSCALE)}
    s_waitcnt lgkmcnt(0)
    """)
    for i in range(12): a(f"v_mul_f32 v{128+i}, v144, v{128+i}")
    for i in range(6): a(f"v_cvt_pk_bf16_f32 v{QA1+i}, v{128+2*i}, v{129+2*i}")
    a(f"""
    s_mul_i32 s52, s63, 1536
    s_add_u32 s52, s52, {QST}
    v_add_u32 v144, s52, v2
    v_lshl_add_u32 v145, v1, 3, s52
    s_cmp_ge_u32 s22, 4
    s_cbranch_scc1 {L}_gwave
    """)
    a(f"""
    s_setprio {E("APRIO", "1")}
    v_and_b32 v9, 31, v1
    v_lshrrev_b32 v10, 5, v1
    v_add_u32 v3, {KVR}, v2
    v_lshlrev_b32 v4, 3, v1
    v_add_u32 v4, {KVR+1024}, v4
    v_min_u32 v5, 23, v9
    v_mul_u32_u24 v11, 384, v10
    v_lshl_add_u32 v5, v5, 4, v11
    v_add_u32 v5, {KVR+1536}, v5
    v_lshlrev_b32 v146, 2, v1
    v_add_u32 v146, {QST+6144}, v146
    v_add_u32 v6, {CH}, v3
    v_add_u32 v7, {CH}, v4
    v_add_u32 v8, {CH}, v5
    s_mov_b32 s27, {2*CH}
    s_mov_b32 s30, 0
    v_cmp_gt_u32 s[28:29], 32, v1
    v_lshlrev_b32 v60, 3, v9
    v_lshl_add_u32 v60, v10, 8, v60
    s_lshl_b32 s33, s20, 3
    s_lshl_b32 s52, s22, 1
    s_add_u32 s33, s33, s52
    s_mul_i32 s33, s33, 40960
    s_mul_i32 s52, s21, 1280
    s_add_u32 s33, s33, s52
    s_add_u32 s33, s33, {WS_O}
    s_add_u32 s31, s33, 40960
    """)
    a.c("v60 = o store offset, s33/s31 = o image base of block a / b")
    for r in list(range(OA, OA+32, 2)) + list(range(PB, PB+8, 2)) + list(range(KVB[1]+8, KVB[1]+16, 2)):
        a(f"v_mov_b64 v[{r}:{r+1}], 0")
    def qnorm(q1, q2, t, extra=()):
        ex = list(extra) + [""] * 2
        a(f"""
        v_cndmask_b32 v{q2}, 0, v{q2}, s[28:29]
        v_cndmask_b32 v{q2+1}, 0, v{q2+1}, s[28:29]
        v_mov_b32 v{t}, 0
        {ex[0]}
        v_dot2_f32_bf16 v{t}, v{q1}, v{q1}, v{t}
        v_dot2_f32_bf16 v{t}, v{q1+1}, v{q1+1}, v{t}
        v_dot2_f32_bf16 v{t}, v{q1+2}, v{q1+2}, v{t}
        {ex[1]}
        v_dot2_f32_bf16 v{t}, v{q1+3}, v{q1+3}, v{t}
        v_dot2_f32_bf16 v{t}, v{q2}, v{q2}, v{t}
        v_dot2_f32_bf16 v{t}, v{q2+1}, v{q2+1}, v{t}
        """)
    qnorm(QA1, QA2, 147)
    if E("ES"): stamp(a, 3)
    a(f"""
    s_barrier
    ds_read_b32 v146, v146
    ds_read_b128 {vr(QB1,4)}, v144
    ds_read_b64 {vr(QB2,2)}, v145 offset:1024
    ds_read_b128 {vr(KVB[0],4)}, v6
    ds_read_b64 {vr(KVB[0]+4,2)}, v7
    ds_read_b128 {vr(KVB[1],4)}, v6 offset:3072
    ds_read_b64 {vr(KVB[1]+4,2)}, v7 offset:3072
    ds_read_b128 {vr(KVB[0]+8,4)}, v8
    ds_read_b128 {vr(KVB[0]+12,4)}, v8 offset:768
    """)
    stamp(a, 4)
    dm = lambda k: f"v_max_f32_dpp v146, v146, v146 {k} bank_mask:0xf"
    a(f"""
    v_mov_b32 v149, v147
    s_waitcnt lgkmcnt(6)
    v_and_b32 v146, 0xffff0000, v146
    v_permlane32_swap_b32 v147, v149
    s_nop 0
    {dm("row_shr:1 row_mask:0xf")}
    v_add_f32 v147, v147, v149
    s_nop 0
    {dm("row_shr:2 row_mask:0xf")}
    """)
    qnorm(QB1, QB2, 148, [dm("row_shr:4 row_mask:0xf"), dm("row_shr:8 row_mask:0xf")])
    a(f"""
    {dm("row_bcast:15 row_mask:0xa")}
    s_nop 1
    v_mov_b32 v150, v148
    {dm("row_bcast:31 row_mask:0xc")}
    s_nop 0
    v_permlane32_swap_b32 v148, v150
    v_readlane_b32 s26, v146, 63
    s_nop 0
    v_add_f32 v148, v148, v150
    v_mul_f32 v147, s26, v147
    v_mul_f32 v148, s26, v148
    v_sqrt_f32 v147, v147
    v_sqrt_f32 v148, v148
    v_mul_f32 v147, {f32(1.02)}, v147
    v_mul_f32 v148, {f32(1.02)}, v148
    """)
    def set_shift(ma, mb):
        for m, q2 in ((ma, QA2), (mb, QB2)):
            split3(a, m, q2+2, q2+3, 149, 150)
            a(f"v_cndmask_b32 v{q2}, v{q2+2}, v{q2}, s[28:29]")
            a(f"v_cndmask_b32 v{q2+1}, v{q2+3}, v{q2+1}, s[28:29]")
    set_shift(147, 148)
    a("s_waitcnt lgkmcnt(0)")
    for x in qk(SA, KVB[0], QA1, QA2): a(x)
    a("s_nop 11")
    a(".p2align 6")
    a(f"{L}_aloop:")
    for t in range(4):
        cur, nxt = KVB[t & 1], KVB[(t + 1) & 1]
        aslot(a, SA, PA, qk(SB, cur, QB1, QB2) + pv(OB, nxt, PB))
        pre = ["s_waitcnt lgkmcnt(0)" if t != 3 else "s_waitcnt vmcnt(0) lgkmcnt(0)"]
        if t == 0 and STAMP: pre.append("s_memtime s[38:39]")
        if t == 0: pre.append("s_barrier")
        if t == 0 and STAMP: pre.append("s_memtime s[36:37]")
        if t == 1 and STAMP: pre += ["s_mov_b32 m0, s30", "s_nop 0", "v_writelane_b32 v61, s36, m0", "v_writelane_b32 v62, s38, m0"]
        if t == 2:
            pre += ["v_add_u32 v6, s27, v3", "v_add_u32 v7, s27, v4"]
        if t == 3:
            pre += ["v_add_u32 v8, s27, v5",
                    f"s_add_u32 s27, s27, {CH}", f"s_cmp_ge_u32 s27, {3*CH}", "s_cselect_b32 s27, 0, s27"]
        ko = ((t + 2) & 3) * 3072
        vo = ((t + 1) & 3) * 3072
        rd = [f"ds_read_b128 {vr(cur,4)}, v6 offset:{ko}",
              f"ds_read_b64 {vr(cur+4,2)}, v7 offset:{ko}",
              f"ds_read_b128 {vr(nxt+8,4)}, v8 offset:{vo}",
              f"ds_read_b128 {vr(nxt+12,4)}, v8 offset:{vo+768}"]
        aslot(a, SB, PB, qk(SA, nxt, QA1, QA2) + pv(OA, cur, PA), pre, rd)
    a(f"""
    s_add_u32 s30, s30, 1
    s_cmp_lt_u32 s30, 16
    s_cbranch_scc1 {L}_aloop
    s_nop 1
    """)
    for x in pv(OB, KVB[1], PB): a(x)
    stamp(a, 5)
    a(f"""
    s_mov_b32 s34, 0
    {L}_aepi:
    s_mov_b32 s35, {f32(2.0**-90)}
    s_waitcnt lgkmcnt(0)
    s_nop 11
    v_mov_b32 v144, v{OA+8}
    v_mov_b32 v145, v{OA+8}
    v_mov_b32 v146, v{OB+8}
    v_mov_b32 v147, v{OB+8}
    s_nop 0
    v_permlane32_swap_b32 v144, v145
    v_permlane32_swap_b32 v146, v147
    s_nop 0
    v_cmp_nle_f32 vcc, s35, v145
    v_cmp_nle_f32 s[36:37], s35, v147
    v_rcp_f32 v145, v145
    v_rcp_f32 v147, v147
    s_or_b64 s[36:37], vcc, s[36:37]
    s_cmp_eq_u32 s34, 0
    s_cselect_b64 s[36:37], s[36:37], 0
    s_cmp_lg_u64 s[36:37], 0
    s_cbranch_scc1 {L}_slow
    """)
    for blk, O in enumerate((OA, OB)):
        R = 145 + 2*blk
        for q in range(3):
            for i in range(4): a(f"v_mul_f32 v{O+4*q+i}, v{R}, v{O+4*q+i}")
            D = 64 + 8*blk + 2*q
            a(f"v_cvt_pk_bf16_f32 v{D}, v{O+4*q}, v{O+4*q+1}")
            a(f"v_cvt_pk_bf16_f32 v{D+1}, v{O+4*q+2}, v{O+4*q+3}")
            if q == 2: a("s_mov_b32 exec_hi, 0")
            a(f"buffer_store_dwordx2 {vr(D,2)}, v60, s[8:11], s{33 if blk == 0 else 31} offen offset:{512*q} sc1")
            if q == 2: a("s_mov_b64 exec, -1")
    if STAMP:
        a(f"""
        s_lshl_b32 s36, s2, 2
        s_add_u32 s36, s36, s22
        s_lshl_b32 s36, s36, 9
        s_add_u32 s36, s36, {0x1900000}
        v_lshlrev_b32 v63, 2, v1
        buffer_store_dword v61, v63, s[8:11], s36 offen
        buffer_store_dword v62, v63, s[8:11], s36 offen offset:256
        """)
    a(f"""
    s_setprio 0
    s_lshl_b32 s36, s20, 5
    s_lshl_b32 s37, s22, 2
    s_add_u32 s36, s36, s37
    s_lshr_b32 s37, s21, 3
    s_add_u32 s36, s36, s37
    s_lshl_b32 s36, s36, 7
    s_add_u32 s36, s36, {WS_F+F3}
    v_mov_b32 v9, 1
    v_mov_b32 v5, 0
    s_waitcnt vmcnt(0)
    s_mov_b64 exec, 1
    buffer_atomic_add v9, v5, s[8:11], s36 offen sc1
    s_mov_b64 exec, -1
    """)
    if not E("ES"): stamp(a, 3)
    a(f"""
    s_branch {L}_p3
    """)
    kb = KVB[0]
    a(f"""
    {L}_slow:
    s_mov_b32 s34, 1
    v_cndmask_b32 v{QA2}, 0, v{QA2}, s[28:29]
    v_cndmask_b32 v{QA2+1}, 0, v{QA2+1}, s[28:29]
    v_cndmask_b32 v{QB2}, 0, v{QB2}, s[28:29]
    v_cndmask_b32 v{QB2+1}, 0, v{QB2+1}, s[28:29]
    v_mov_b32 v147, 0xff800000
    v_mov_b32 v148, 0xff800000
    s_mov_b32 s36, {WS_KV - KVR}
    {L}_slow1:
    buffer_load_dwordx4 {vr(kb,4)}, v3, s[8:11], s36 offen sc1
    buffer_load_dwordx2 {vr(kb+4,2)}, v4, s[8:11], s36 offen sc1
    s_add_u32 s36, s36, 3072
    s_waitcnt vmcnt(0)
    """)
    for x in qk(SA, kb, QA1, QA2) + qk(SB, kb, QB1, QB2): a(x)
    a("s_nop 15")
    for i in range(0, 16, 2):
        a(f"v_max3_f32 v147, v{SA+i}, v{SA+i+1}, v147")
        a(f"v_max3_f32 v148, v{SB+i}, v{SB+i+1}, v148")
    a(f"""
    s_cmp_lt_u32 s36, {WS_KV - KVR + 64*3072}
    s_cbranch_scc1 {L}_slow1
    v_mov_b32 v149, v147
    v_mov_b32 v150, v148
    s_nop 1
    v_permlane32_swap_b32 v147, v149
    v_permlane32_swap_b32 v148, v150
    s_nop 1
    v_max_f32 v147, v147, v149
    v_max_f32 v148, v148, v150
    """)
    set_shift(147, 148)
    for r in range(OA, OA+32): a(f"v_mov_b32 v{r}, 0")
    a(f"""
    s_mov_b32 s36, {WS_KV - KVR}
    {L}_slow2:
    buffer_load_dwordx4 {vr(kb,4)}, v3, s[8:11], s36 offen sc1
    buffer_load_dwordx2 {vr(kb+4,2)}, v4, s[8:11], s36 offen sc1
    buffer_load_dwordx4 {vr(kb+8,4)}, v5, s[8:11], s36 offen sc1
    buffer_load_dwordx4 {vr(kb+12,4)}, v5, s[8:11], s36 offen offset:768 sc1
    s_add_u32 s36, s36, 3072
    s_waitcnt vmcnt(0)
    """)
    for x in qk(SA, kb, QA1, QA2) + qk(SB, kb, QB1, QB2): a(x)
    a("s_nop 15")
    for g in exp_groups(SA, PA) + exp_groups(SB, PB):
        for x in g: a(x)
    a("s_nop 1")
    for x in pv(OA, kb, PA) + pv(OB, kb, PB): a(x)
    a(f"""
    s_cmp_lt_u32 s36, {WS_KV - KVR + 64*3072}
    s_cbranch_scc1 {L}_slow2
    s_nop 7
    s_branch {L}_aepi
    """)

    a(f"""
    {L}_gwave:
    ds_write_b128 v144, {vr(QA1,4)}
    ds_write_b64 v145, {vr(QA2,2)} offset:1024
    s_load_dwordx2 s[6:7], s[0:1], 64
    s_and_b32 s16, s22, 3
    s_and_b32 s57, s21, 3
    s_lshl_b32 s57, s57, 3
    s_lshr_b32 s34, s21, 2
    s_add_u32 s57, s57, s34
    s_cmp_ge_u32 s57, 15
    s_cselect_b32 s33, 1, 0
    s_cselect_b32 s34, 15, 0
    s_sub_u32 s34, s57, s34
    s_lshl_b32 s35, s20, 1
    s_add_u32 s33, s33, s35
    s_mul_i32 s35, s34, 13
    s_lshr_b32 s35, s35, 6
    s_mul_i32 s36, s35, 5
    s_sub_u32 s34, s34, s36
    s_waitcnt lgkmcnt(0)
    """)
    if E("ES"): stamp(a, 3)
    a(f"""
    s_barrier
    s_lshl_b32 s36, s33, 2
    s_add_u32 s36, s36, s16
    s_mul_i32 s36, s36, 108
    s_mul_i32 s37, s35, 36
    s_add_u32 s36, s36, s37
    s_lshl_b32 s36, s36, 10
    s_add_u32 s40, s36, {WS_H}
    s_mul_i32 s41, s35, {576*1280}
    s_mul_i32 s36, s16, {16*1280}
    s_add_u32 s41, s41, s36
    s_lshl_b32 s36, s34, 8
    s_add_u32 s41, s41, s36
    v_lshrrev_b32 v3, 4, v1
    v_lshlrev_b32 v4, 2, v3
    v_and_b32 v5, 15, v1
    v_xor_b32 v4, v4, v5
    s_movk_i32 s36, 1280
    v_mul_u32_u24 v3, s36, v3
    v_lshl_add_u32 v3, v4, 4, v3
    v_add_u32 v4, {5120-1024}, v3
    v_add_u32 v5, {2*(5120-1024)}, v3
    v_add_u32 v13, {3*(5120-1024)}, v3
    s_lshl_b32 s42, s16, 12
    s_add_u32 s43, s42, 16384
    s_mov_b32 s45, 0
    s_mov_b32 s30, 0
    s_mov_b32 s46, 0
    s_cmp_lt_u32 s57, 30
    s_cselect_b32 s47, 9, 0
    s_cselect_b32 s50, {WS_SIZE}, 0
    s_cselect_b32 s54, 2211840, 0
    s_mov_b32 s48, s18
    s_and_b32 s49, s19, 0xffff
    s_mov_b32 s51, 0x20000
    s_mov_b32 s55, 0x20000
    s_mov_b32 m0, s43
    s_mov_b32 s52, s6
    s_and_b32 s53, s7, 0xffff
    """)
    a.c("s33 = row group (128 rows), s34 = col group (128 cols), s35 = k split, s47 = stages of this WG")
    def gw():
        a(f"""
        buffer_load_dwordx4 v3, s[52:55], s41 offen lds
        buffer_load_dwordx4 v4, s[52:55], s41 offen offset:1024 lds
        buffer_load_dwordx4 v5, s[52:55], s41 offen offset:2048 lds
        buffer_load_dwordx4 v13, s[52:55], s41 offen offset:3072 lds
        s_add_u32 s41, s41, {64*1280}
        """)
    def gh():
        a(f"""
        buffer_load_dwordx4 v2, s[48:51], s40 offen{SCL} lds
        buffer_load_dwordx4 v2, s[48:51], s40 offen offset:1024{SCL} lds
        buffer_load_dwordx4 v2, s[48:51], s40 offen offset:2048{SCL} lds
        buffer_load_dwordx4 v2, s[48:51], s40 offen offset:3072{SCL} lds
        s_add_u32 s40, s40, 4096
        """)
    gw()
    a(f"""
    s_and_b32 s36, s16, 1
    s_lshr_b32 s37, s16, 1
    s_lshl_b32 s38, s36, 13
    v_add_u32 v6, s38, v2
    v_lshrrev_b32 v8, 5, v1
    v_bfe_u32 v9, v1, 2, 2
    v_lshl_add_u32 v8, v8, 2, v9
    v_lshlrev_b32 v8, 8, v8
    s_lshl_b32 s38, s37, 1
    v_xor_b32 v9, s38, v9
    v_lshl_add_u32 v8, v9, 6, v8
    v_bfe_u32 v9, v1, 4, 1
    v_lshl_add_u32 v8, v9, 5, v8
    v_and_b32 v9, 3, v1
    v_lshl_add_u32 v8, v9, 3, v8
    v_add_u32 v7, 16384, v8
    v_xor_b32 v8, 64, v7
    """)
    for r in range(64, 128, 2): a(f"v_mov_b64 v[{r}:{r+1}], 0")
    a(f"""
    s_mov_b32 m0, s42
    s_barrier
    s_waitcnt vmcnt(0)
    s_barrier
    s_barrier
    s_barrier
    """)
    gh()
    a(f"""
    s_mov_b32 s44, {GSL}
    s_branch {L}_gin
    {L}_gloop:
    s_barrier
    {L}_gin:
    s_add_u32 s46, s46, 1
    s_cmp_ge_u32 s46, s47
    s_cbranch_scc1 {L}_gnod
    s_add_u32 m0, s44, s42
    s_nop 0
    """)
    gh()
    a("s_add_u32 m0, s44, s43")
    a(f"s_add_u32 s44, s44, {GSL}")
    gw()
    a(f"""
    s_cmp_ge_u32 s44, {3*GSL}
    s_cselect_b32 s44, 0, s44
    {L}_gnod:
    s_sub_u32 s36, s30, 1
    s_cmp_ge_u32 s36, s47
    s_cbranch_scc1 {L}_gskip
    v_add_u32 v10, s45, v6
    v_add_u32 v11, s45, v7
    v_add_u32 v12, s45, v8
    s_add_u32 s45, s45, {GSL}
    s_cmp_ge_u32 s45, {3*GSL}
    s_cselect_b32 s45, 0, s45
    """)
    FB = [16, 32]
    def rl(ks):
        b = FB[ks & 1]
        return [f"ds_read_b128 {vr(b,4)}, v10 offset:{ks*1024}",
                f"ds_read_b64_tr_b16 {vr(b+8,2)}, v11 offset:{ks*4096}",
                f"ds_read_b64_tr_b16 {vr(b+10,2)}, v11 offset:{ks*4096+2048}",
                f"ds_read_b64_tr_b16 {vr(b+12,2)}, v12 offset:{ks*4096}",
                f"ds_read_b64_tr_b16 {vr(b+14,2)}, v12 offset:{ks*4096+2048}",
                f"ds_read_b128 {vr(b+4,4)}, v10 offset:{ks*1024+4096}"]
    def ml(ks):
        b = FB[ks & 1]
        x0, x1, w0, w1 = vr(b,4), vr(b+4,4), vr(b+8,4), vr(b+12,4)
        return [f"{M} v[64:79], {w0}, {x0}, v[64:79]", f"{M} v[80:95], {w1}, {x0}, v[80:95]",
                f"{M} v[96:111], {w0}, {x1}, v[96:111]", f"{M} v[112:127], {w1}, {x1}, v[112:127]"]
    for x in rl(0): a(x)
    for ks in range(4):
        a("s_waitcnt lgkmcnt(0)")
        r = rl(ks + 1) if ks < 3 else []
        for i, m in enumerate(ml(ks)):
            a(m)
            for x in r[2*i:2*i+2]: a(x)
    a(f"""
    s_cmp_lg_u32 s30, s47
    s_cbranch_scc1 {L}_gskip
    s_lshl_b32 s36, s35, 6
    s_lshl_b32 s37, s33, 2
    s_add_u32 s36, s36, s37
    s_and_b32 s37, s16, 1
    s_lshl_b32 s37, s37, 1
    s_add_u32 s36, s36, s37
    s_mul_i32 s36, s36, 40
    s_lshl_b32 s37, s34, 3
    s_add_u32 s36, s36, s37
    s_lshr_b32 s37, s16, 1
    s_lshl_b32 s37, s37, 2
    s_add_u32 s36, s36, s37
    s_lshl_b32 s36, s36, 10
    s_add_u32 s36, s36, {WS_B}
    s_add_u32 s37, s36, 40960
    s_nop 7
    """)
    for u in range(4):
        A = 64 + 16*u
        for qp in range(2):
            O = 16 + 4*((2*u+qp) % 8)
            for i in range(4):
                a(f"v_cvt_pk_bf16_f32 v{O+i}, v{A+8*qp+2*i}, v{A+8*qp+2*i+1}")
            a(f"buffer_store_dwordx4 {vr(O,4)}, v2, s[8:11], s{36 + (u>>1)} offen offset:{(u&1)*2048 + qp*1024} sc1")
    a(f"""
    s_branch {L}_gend
    {L}_gskip:
    s_add_u32 s30, s30, 1
    s_cmp_ge_u32 s30, 10
    s_cbranch_scc1 {L}_gend
    s_cmp_lt_u32 s46, s47
    s_cbranch_scc1 {L}_gw8
    s_waitcnt vmcnt(0)
    {L}_gw8:
    s_waitcnt vmcnt(8)
    s_branch {L}_gloop
    {L}_gend:
    s_barrier
    s_waitcnt vmcnt(0)
    s_barrier
    s_barrier
    """)

    a(f"""
    {L}_p3:
    s_load_dwordx2 s[4:5], s[0:1], 80
    s_lshl_b32 s17, s20, 3
    s_and_b32 s16, s21, 3
    s_lshl_b32 s16, s16, 1
    s_add_u32 s17, s17, s16
    s_lshr_b32 s16, s21, 2
    s_and_b32 s36, s22, 1
    s_lshr_b32 s39, s22, 1
    s_add_u32 s36, s17, s36
    s_mul_i32 s36, s36, 40
    s_mul_i32 s37, s39, 10
    s_add_u32 s36, s36, s37
    s_lshl_b32 s36, s36, 10
    s_add_u32 s36, s36, {WS_O}
    s_add_u32 s37, s36, 4096
    s_add_u32 s38, s36, 8192
    v_lshrrev_b32 v8, 5, v1
    v_bfe_u32 v9, v1, 2, 2
    v_lshl_add_u32 v8, v8, 2, v9
    v_mul_u32_u24 v8, 192, v8
    v_bfe_u32 v9, v1, 4, 1
    v_lshl_add_u32 v8, v9, 5, v8
    v_and_b32 v9, 3, v1
    v_lshl_add_u32 v8, v9, 3, v8
    s_lshl_b32 s48, s39, 2
    s_mul_i32 s49, s39, 30720
    v_add_u32 v8, s49, v8
    v_lshlrev_b32 v7, 3, v1
    v_and_b32 v6, 31, v1
    s_lshl_b32 s39, s17, 5
    v_add_u32 v6, s39, v6
    v_lshrrev_b32 v4, 3, v6
    v_lshlrev_b32 v4, 7, v4
    v_and_b32 v9, 7, v1
    v_lshl_add_u32 v4, v9, 2, v4
    s_mov_b32 s40, {WS_G}
    s_mul_i32 s41, s16, 10
    s_add_u32 s41, s41, s22
    s_lshr_b32 s42, s41, 1
    s_lshl_b32 s42, s42, 10
    s_and_b32 s43, s41, 1
    s_lshl_b32 s43, s43, 3
    s_add_u32 s42, s42, s43
    s_mul_i32 s43, s17, 40960
    s_add_u32 s42, s42, s43
    s_add_u32 s42, s42, {WS_B}
    v_mov_b32 v22, {NONCE}
    s_lshr_b32 s46, s22, 1
    s_lshl_b32 s45, 1, s46
    """)
    a.c("s17 = first row block of the tile, s16 = column group; final items: quad = wave, both row blocks")
    def bg():
        a("buffer_load_dword v140, v4, s[8:11], s40 offen sc1")
        a("buffer_load_dword v141, v4, s[8:11], s40 offen offset:512 sc1")
        for j in range(2):
            for sk in range(3):
                a(f"s_add_u32 s43, s42, {j*40960 + sk*64*40960}")
                a(f"buffer_load_dwordx2 {vr(128+6*j+2*sk,2)}, v2, s[8:11], s43 offen sc1")
    a(f"""
    s_movk_i32 s43, 1280
    v_mul_lo_u32 v6, v6, s43
    v_lshrrev_b32 v9, 5, v1
    v_lshl_add_u32 v6, v9, 3, v6
    s_lshl_b32 s41, s41, 4
    s_add_u32 s44, s41, 40960
    s_waitcnt lgkmcnt(0)
    """)
    srd(a, 12, 4, 5, 2621440)
    for r in range(64, 112, 2): a(f"v_mov_b64 v[{r}:{r+1}], 0")
    WF = [112, 144]
    def wr(ks):
        b = WF[ks & 1]
        return [f"ds_read_b64_tr_b16 {vr(b+4*cb+2*t,2)}, v8 offset:{ks*3072 + t*1536 + 64*cb}" for cb in range(3) for t in range(2)]
    a(f"""
    s_mov_b32 s70, {SPIN}
    s_cmp_lg_u32 s22, 8
    s_cbranch_scc1 {L}_p3w
    s_mov_b64 exec, 0xf
    {L}_p3poll:
    buffer_load_dword v24, v3, s[8:11], s35 offen sc1
    s_sub_u32 s70, s70, 1
    s_cselect_b32 s47, -1, 0
    s_waitcnt vmcnt(0)
    v_cmp_eq_u32 vcc, 8, v24
    s_or_b32 s47, s47, vcc_lo
    s_or_b32 s47, s47, 0xfffffff0
    v_mov_b32 v23, s47
    ds_write_b32 v22, v23 offset:8
    s_sleep {E("PSLEEP", "2")}
    s_cmp_lg_u32 s47, -1
    s_cbranch_scc1 {L}_p3poll
    """)
    stamp(a, 6)
    a(f"""
    s_mov_b64 exec, -1
    {L}_p3w:
    ds_read_b64 v[10:11], v22 offset:8
    s_waitcnt lgkmcnt(0)
    v_readfirstlane_b32 s47, v10
    v_readfirstlane_b32 s46, v11
    s_or_b32 s47, s47, 0x10
    s_and_b32 s47, s47, s45
    s_xor_b32 s47, s47, s45
    s_xor_b32 s46, s46, 2
    s_or_b32 s47, s47, s46
    s_cmp_eq_u32 s47, 0
    s_cbranch_scc1 {L}_p3go
    s_sleep 1
    s_branch {L}_p3w
    {L}_p3go:
    s_cmp_lt_u32 s22, 8
    s_cbranch_scc1 {L}_p3m
    """)
    bg()
    a(f"""
    s_branch {L}_p3r
    {L}_p3m:
    """)
    if not E("ES"): stamp(a, 6)
    OF = 24
    for ks in range(10):
        for sl in range(2):
            a(f"buffer_load_dwordx2 {vr(OF+4*ks+2*sl,2)}, v7, s[8:11], s{36+ks//4} offen offset:{(ks%4)*1024+512*sl}{E('OSC', ' sc1')}")
    for x in wr(0): a(x)
    bg()
    for ks in range(10):
        a(f"s_waitcnt vmcnt({26-2*ks}) lgkmcnt(0)")
        r = wr(ks+1) if ks < 9 else []
        b = WF[ks & 1]
        for cb in range(3):
            a(f"{M} {vr(64+16*cb,16)}, {vr(b+4*cb,4)}, {vr(OF+4*ks,4)}, {vr(64+16*cb,16)}")
            for x in r[2*cb:2*cb+2]: a(x)
    a(f"""
    v_add_u32 v23, s48, v22
    v_mov_b32 v9, 1
    s_mov_b64 exec, 1
    ds_add_u32 v23, v9 offset:16
    s_mov_b64 exec, -1
    s_and_b32 s47, s22, 1
    s_mul_i32 s47, s47, 10240
    s_add_u32 s39, s49, s47
    v_add_u32 v5, s39, v2
    {L}_p3pw:
    ds_read_b32 v9, v23 offset:16
    s_waitcnt lgkmcnt(0)
    v_readfirstlane_b32 s47, v9
    s_cmp_lg_u32 s47, 2
    s_cbranch_scc1 {L}_p3pw
    """)
    for q in range(10):
        a(f"ds_write_b128 v5, {vr(64+4*q,4)} offset:{1024*q}")
    a(f"""
    s_waitcnt lgkmcnt(0)
    {L}_p3r:
    """)
    if STAMP:
        a(f"s_cmp_lt_u32 s22, 4\ns_cbranch_scc1 {L}_st4")
        stamp(a, 4)
        a(f"{L}_st4:")
    a(f"""
    s_lshl_b32 s39, s22, 10
    v_add_u32 v5, s39, v2
    v_add_u32 v7, 61440, v5
    s_barrier
    """)
    for j in range(2):
        for kq in range(4):
            a(f"ds_read_b128 {vr(16+16*j+4*kq,4)}, v{5 if kq < 2 else 7} offset:{j*10240 + (kq%2)*30720}")
    a("s_waitcnt vmcnt(0)")
    for j in range(2):
        a(f"""
        v_sub_f32 v{142+j}, 1.0, v{140+j}
        v_cvt_pk_bf16_f32 v{142+j}, v{142+j}, v{142+j}
        v_lshlrev_b32 v{142+j}, 16, v{142+j}
        """)
        B = 128 + 6*j
        for i in range(4):
            ex = (lambda d, r: f"v_lshlrev_b32 v{d}, 16, v{r}") if i % 2 == 0 else (lambda d, r: f"v_and_b32 v{d}, 0xffff0000, v{r}")
            a(f"""
            {ex(56+4*j+i, B + i//2)}
            {ex(55, B + 2 + i//2)}
            v_add_f32 v{56+4*j+i}, v{56+4*j+i}, v55
            {ex(55, B + 4 + i//2)}
            v_add_f32 v{56+4*j+i}, v{56+4*j+i}, v55
            """)
    a("s_waitcnt lgkmcnt(0)")
    for j in range(2):
        P = 16 + 16*j
        for i in range(4):
            a(f"""
            v_add_f32 v{P+i}, v{P+i}, v{P+4+i}
            v_add_f32 v{P+8+i}, v{P+8+i}, v{P+12+i}
            v_add_f32 v{P+i}, v{P+i}, v{P+8+i}
            v_mul_f32 v{P+i}, v{140+j}, v{P+i}
            v_fmac_f32 v{P+i}, v{142+j}, v{56+4*j+i}
            """)
        a(f"""
        v_cvt_pk_bf16_f32 v{P}, v{P}, v{P+1}
        v_cvt_pk_bf16_f32 v{P+1}, v{P+2}, v{P+3}
        buffer_store_dwordx2 {vr(P,2)}, v6, s[12:15], s{41 if j == 0 else 44} offen
        """)
    stamp_out(a, 7, 0)
    a(f"{L}_end:")
    a("s_endpgm")
    kernel_desc(a, name, 160, 100)
```

```python
from common import *
import math
from k2 import (M, QA1, QA2, QB1, QB2, KVB, SA, SB, OA, OB, PA, PB, split3, exp_groups, pv, CH)
def qk(Sd, kb, q1, q2):
    return [f"{M} {vr(Sd,16)}, {vr(kb,4)}, {vr(q1,4)}, 0",
            f"v_mfma_f32_32x32x8_bf16 {vr(Sd,16)}, {vr(kb+4,2)}, {vr(q2,2)}, {vr(Sd,16)}"]
LOG2E = 1.4426950408889634
QSCALE = LOG2E / math.sqrt(20.0)
E = os.environ.get
XSL = 32768
WB = 3 * XSL
WSL = 10240
QST = WB
KVR = 163840 - 3 * CH
GSL = 32768
NONCE = 122880
BREG = True
F_LDS = 163840
F_BLOCK = 640
SPIN = int(E("SPIN", 1 << 16))
SC = " sc1"
SCL = E('SCL', ' sc1')

_pc = [0]
def poll(a, L, voff, soff):
    _pc[0] += 1
    T = f"{L}_poll{_pc[0]}"
    a(f"""
    s_mov_b32 s70, {SPIN}
    {T}:
    buffer_load_dwordx2 v[24:25], {voff}, s[8:11], {soff} offen sc1
    s_sub_u32 s70, s70, 1
    s_cbranch_scc1 {T}_ok
    s_waitcnt vmcnt(0)
    v_cmp_ne_u64 vcc, v[24:25], v[20:21]
    s_cmp_eq_u64 vcc, 0
    s_cbranch_scc1 {T}_ok
    s_sleep {E("PSLEEP", "2")}
    s_branch {T}
    {T}_ok:
    """)

def flag(a, soff):
    a(f"""
    s_mov_b64 exec, 1
    buffer_store_dwordx2 v[20:21], v5, s[8:11], {soff} offen sc1
    s_mov_b64 exec, -1
    """)

def aslot(a, S, P, mf, pre=(), rd=None):
    g = exp_groups(S, P)
    flat = [x for gg in g for x in gg]
    pos = [int(x) for x in E("MPOS", "0,5,11,17").split(",")]
    for p in pre: a(p)
    k = 0
    for i, x in enumerate(flat):
        while k < 4 and pos[k] == i:
            a(mf[k])
            if rd: a(rd[k])
            k += 1
        a(x)

def gen(a, name):
    kernel_head(a, name)
    L = name
    a(f"""
    s_cmp_ge_u32 s2, 256
    s_cbranch_scc1 {L}_end
    s_load_dwordx8 s[4:11], s[0:1], 0
    s_load_dwordx4 s[12:15], s[0:1], 48
    s_load_dwordx2 s[18:19], s[0:1], 96
    """)
    stamp(a, 0)
    a(f"""
    v_lshrrev_b32 v2, 6, v0
    v_and_b32 v1, 63, v0
    v_readfirstlane_b32 s22, v2
    s_and_b32 s47, s2, 7
    s_lshr_b32 s51, s2, 3
    s_and_b32 s20, s47, 1
    s_lshl_b32 s20, s20, 2
    s_and_b32 s67, s51, 3
    s_add_u32 s20, s20, s67
    s_lshr_b32 s21, s47, 1
    s_lshr_b32 s68, s51, 2
    s_lshl_b32 s52, s68, 2
    s_add_u32 s21, s21, s52
    s_cmp_lt_u32 s22, 8
    s_cbranch_scc1 {L}_comp
    """)
    a.c("s20 = row group (256 rows), s21 = cg = head = column group, s22 = wave; kept for the whole kernel, as is s[18:19]")
    a(f"""
    s_and_b32 s63, s22, 1
    v_lshrrev_b32 v10, 3, v1
    v_lshrrev_b32 v11, 4, v1
    v_and_b32 v12, 7, v1
    v_xor_b32 v12, v12, v11
    v_xor_b32 v11, 4, v12
    s_movk_i32 s54, 1280
    v_mul_u32_u24 v10, s54, v10
    v_lshl_add_u32 v15, v11, 4, v10
    v_lshl_add_u32 v10, v12, 4, v10
    s_mul_i32 s53, s20, {256*1280}
    s_mul_i32 s55, s63, {64*1280}
    s_add_u32 s53, s53, s55
    """)
    for i in range(8):
        a(f"s_add_u32 s55, s53, {i*10240 - 1024*(i&3) + 4096}")
        a(f"v_add_u32 v{2+i}, s55, v{15 if i & 1 else 10}")
    a(f"""
    s_add_u32 s52, s67, s68
    s_and_b32 s52, s52, 3
    """)
    ORD = E("ORD", "lat4")
    def order(t):
        if ORD == "lat4": return [(n + (5*t >> 1)) % 10 for n in range(10)]
        if ORD == "lat2": return [(n + 5*(t & 1)) % 10 for n in range(10)]
        if ORD == "b2": return [n ^ (t & 1) for n in range(10)]
        if ORD == "b4": return [(n & ~3) | ((n + t) & 3) if n < 8 else 8 + ((n + t) & 1) for n in range(10)]
        if ORD == "b5": return [5*(n // 5) + ((n % 5) + [0, 1, 2, 4][t]) % 5 for n in range(10)]
        if ORD == "b3": return [3*(n // 3) + ((n % 3) + t) % 3 if n < 9 else 9 for n in range(10)]
        if ORD == "none": return list(range(10))
    for t in range(4):
        tab = sum(p << (4*n) for n, p in enumerate(order(t)))
        if t == 0:
            a(f"s_mov_b32 s60, {tab & 0xffffffff}\ns_mov_b32 s61, {tab >> 32}")
        else:
            a(f"s_cmp_eq_u32 s52, {t}\ns_cselect_b32 s60, {tab & 0xffffffff}, s60\ns_cselect_b32 s61, {tab >> 32}, s61")
    a(f"""
    s_and_b32 s52, s60, 15
    s_lshl_b32 s41, s52, 7
    s_lshl_b32 s48, s63, 13
    s_mov_b32 m0, s48
    v_lshrrev_b32 v13, 3, v1
    s_movk_i32 s62, 3456
    v_mul_u32_u24 v13, s62, v13
    v_and_b32 v14, 7, v1
    v_bfe_u32 v15, v1, 4, 1
    v_lshlrev_b32 v15, 2, v15
    v_xor_b32 v14, v14, v15
    v_lshl_add_u32 v13, v14, 4, v13
    s_lshl_b32 s53, s21, 7
    v_add_u32 v10, s53, v13
    v_add_u32 v11, {8*3456-1024}, v10
    v_add_u32 v12, {2*(8*3456-1024)}, v10
    v_add_u32 v13, {3*(8*3456-1024)}, v10
    v_lshrrev_b32 v14, 2, v1
    v_mul_u32_u24 v14, s54, v14
    v_and_b32 v15, 3, v1
    v_lshl_add_u32 v14, v15, 4, v14
    s_mul_i32 s53, s21, 40
    s_mul_i32 s55, s63, {16*1280}
    s_add_u32 s53, s53, s55
    v_add_u32 v14, s53, v14
    v_lshlrev_b32 v15, 4, v1
    s_mov_b32 s26, {2621440+4096}
    s_mov_b32 s27, 0x20000
    s_mov_b32 s30, 2211840
    s_mov_b32 s31, 0x20000
    s_mov_b32 s34, 819200
    s_mov_b32 s35, 0x20000
    s_sub_u32 s53, s21, 27
    s_cmp_lt_u32 s53, 2
    s_cselect_b32 s38, 25600, 0
    s_mov_b32 s39, 0x20000
    s_lshl_b32 s52, s52, 1
    s_mul_i32 s42, s52, {32*3456}
    s_mul_i32 s43, s52, {32*1280}
    s_mul_i32 s40, s52, 1280
    s_lshl_b32 s51, s63, 10
    s_add_u32 s40, s40, s51
    s_lshl_b32 s49, s63, 12
    s_add_u32 s49, s49, {WB}
    s_add_u32 s50, s51, {WB+8192}
    s_add_u32 s56, s51, {WB}
    s_add_u32 s45, s48, 16384
    s_add_u32 s54, s41, 163840
    s_mov_b32 s44, 0
    s_mov_b32 s46, 0
    s_mov_b32 s58, 2
    s_waitcnt lgkmcnt(0)
    s_sub_u32 s24, s4, 4096
    s_subb_u32 s25, s5, 0
    s_and_b32 s25, s25, 0xffff
    """)
    a.c("x voffsets carry +4096 so that they stay non negative; the SRD base carries -4096")
    def xdma(so):
        a(f"""
        buffer_load_dwordx4 v2, s[24:27], {so} offen lds
        buffer_load_dwordx4 v3, s[24:27], {so} offen offset:1024 lds
        buffer_load_dwordx4 v4, s[24:27], {so} offen offset:2048 lds
        buffer_load_dwordx4 v5, s[24:27], {so} offen offset:3072 lds
        s_add_u32 m0, m0, 4096
        s_nop 0
        buffer_load_dwordx4 v6, s[24:27], {so} offen lds
        buffer_load_dwordx4 v7, s[24:27], {so} offen offset:1024 lds
        buffer_load_dwordx4 v8, s[24:27], {so} offen offset:2048 lds
        buffer_load_dwordx4 v9, s[24:27], {so} offen offset:3072 lds
        """)
    xdma("s41")
    a(f"""
    s_cmp_eq_u32 s63, 1
    s_cselect_b32 s28, s14, s12
    s_cselect_b32 s29, s15, s13
    s_and_b32 s29, s29, 0xffff
    s_mov_b32 s32, s6
    s_and_b32 s33, s7, 0xffff
    s_cmp_eq_u32 s21, 27
    s_cselect_b32 s36, s8, s10
    s_cselect_b32 s37, s9, s11
    s_and_b32 s37, s37, 0xffff
    s_cmp_ge_u32 s21, 27
    s_cbranch_scc1 {L}_ldl_issue
    """)
    a.c("s45/s54 next x half (lds, soffset), s41 k byte offset of the pair, s42 W, s43 wq, s40 wk/wv soffsets, s44 W slot")
    for tag, D in (("ldf", 13), ("ldl", 10)):
        a(f"""
        {L}_{tag}_issue:
        s_mov_b32 m0, s45
        s_add_u32 s46, s46, 1
        """)
        xdma("s54")
        if tag == "ldf":
            a(f"""
            s_add_u32 m0, s44, s49
            s_add_u32 s45, s45, 16384
            buffer_load_dwordx4 v10, s[28:31], s42 offen lds
            buffer_load_dwordx4 v11, s[28:31], s42 offen offset:1024 lds
            buffer_load_dwordx4 v12, s[28:31], s42 offen offset:2048 lds
            buffer_load_dwordx4 v13, s[28:31], s42 offen offset:3072 lds
            """)
        else:
            a(f"""
            s_add_u32 m0, s44, s56
            s_add_u32 s45, s45, 16384
            buffer_load_dwordx4 v15, s[36:39], s40 offen lds
            """)
        a(f"""
        s_add_u32 m0, s44, s50
        s_lshr_b32 s52, s46, 1
        buffer_load_dwordx4 v14, s[32:35], s43 offen lds
        s_lshl_b32 s52, s52, 2
        s_lshr_b64 s[64:65], s[60:61], s52
        s_and_b32 s52, s64, 15
        s_lshl_b32 s52, s52, 1
        s_and_b32 s53, s46, 1
        s_add_u32 s52, s52, s53
        s_mul_i32 s42, s52, {32*3456}
        s_mul_i32 s43, s52, {32*1280}
        s_mul_i32 s40, s52, 1280
        s_add_u32 s40, s40, s51
        s_lshl_b32 s52, s53, 2
        s_lshr_b32 s52, s64, s52
        s_and_b32 s52, s52, 15
        s_lshl_b32 s54, s52, 7
        s_cmp_eq_u32 s53, 0
        s_cselect_b32 s52, 163840, 0
        s_add_u32 s54, s54, s52
        s_add_u32 s44, s44, {WSL}
        s_cmp_ge_u32 s44, {4*WSL}
        s_cselect_b32 s44, 0, s44
        s_cmp_ge_u32 s45, {WB}
        s_cselect_b32 s45, s48, s45
        s_cmp_eq_u32 s46, 19
        s_cselect_b32 s26, 0, s26
        s_cmp_lt_u32 s46, s58
        s_cbranch_scc1 {L}_{tag}_issue
        s_waitcnt vmcnt({D})
        s_barrier
        s_add_u32 s58, s58, 1
        s_cmp_le_u32 s58, 20
        s_cbranch_scc1 {L}_{tag}_issue
        """)
        if tag == "ldf": a(f"s_branch {L}_ld_tail")
    a(f"""
    {L}_ld_tail:
    s_load_dwordx2 s[4:5], s[0:1], 32
    s_load_dwordx2 s[6:7], s[0:1], 88
    v_mov_b32 v5, 0
    s_waitcnt vmcnt(0) lgkmcnt(0)
    s_barrier
    global_load_dwordx2 v[20:21], v5, s[6:7] sc0 sc1
    s_barrier
    """)
    srd(a, 8, 18, 19, WS_SIZE)
    srd(a, 12, 18, 19, WS_KV + 64*3072)
    a(f"""
    v_lshlrev_b32 v2, 4, v1
    v_lshlrev_b32 v3, 7, v1
    s_mov_b32 s70, {SPIN}
    s_branch {L}_l_non2
    {L}_l_non:
    global_load_dwordx2 v[20:21], v5, s[6:7] sc0 sc1
    {L}_l_non2:
    s_sub_u32 s70, s70, 1
    s_cbranch_scc1 {L}_l_non3
    s_waitcnt vmcnt(0)
    v_cmp_ne_u32 vcc, 0, v20
    s_cmp_eq_u64 vcc, 0
    s_cbranch_scc1 {L}_l_non
    {L}_l_non3:
    s_lshl_b32 s33, s20, 5
    s_add_u32 s33, s33, s21
    s_lshl_b32 s34, s33, 7
    s_add_u32 s34, s34, {WS_F}
    s_lshl_b32 s35, s20, 12
    s_add_u32 s35, s35, {WS_F}
    s_sub_u32 s53, s21, 27
    s_cmp_ge_u32 s53, 2
    s_cbranch_scc1 {L}_l_nokv
    s_barrier
    s_cmp_lg_u32 s63, 0
    s_cbranch_scc1 {L}_l_nokv
    s_lshl_b32 s52, s20, 1
    s_add_u32 s52, s52, s53
    s_lshl_b32 s52, s52, 7
    s_add_u32 s52, s52, {WS_F+FQ}
    """)
    flag(a, "s52")
    a(f"""
    {L}_l_nokv:
    s_cmp_lt_u32 s21, 27
    s_cbranch_scc1 {L}_l_now
    s_cmp_eq_u32 s63, 0
    s_cbranch_scc1 {L}_l_now
    s_load_dwordx2 s[16:17], s[0:1], 64
    s_mul_i32 s52, s20, 5
    s_add_u32 s52, s52, s53
    s_mul_i32 s52, s52, {7*8192}
    s_waitcnt lgkmcnt(0)
    s_mov_b32 s56, s16
    s_and_b32 s57, s17, 0xffff
    s_mov_b32 s58, 2211840
    s_mov_b32 s59, 0x20000
    s_mov_b32 s54, 7
    {L}_l_warm:
    buffer_load_dword v31, v3, s[56:59], s52 offen
    s_add_u32 s52, s52, 8192
    s_sub_u32 s54, s54, 1
    s_cmp_lg_u32 s54, 0
    s_cbranch_scc1 {L}_l_warm
    {L}_l_now:
    s_mul_i32 s24, s63, 6144
    s_add_u32 s30, s24, {WS_KV}
    s_add_u32 s31, s30, 4096
    s_add_u32 s24, s24, {KVR}
    s_mov_b32 s25, {CH}
    s_mov_b32 s52, {WS_F+FQ}
    s_mov_b64 exec, 0xffff
    """)
    a.c("s34 = own flag line, s35 = flag lines of this row group; s30/s31 kv source, s24 + s25 kv destination")
    stamp(a, 1)
    poll(a, L, "v3", "s52")
    a("s_mov_b64 exec, -1")
    stamp(a, 2)
    def kv():
        a(f"""
        s_add_u32 m0, s25, s24
        s_add_u32 s25, s25, {CH}
        buffer_load_dwordx4 v2, s[12:15], s30 offen{SCL} lds
        buffer_load_dwordx4 v2, s[12:15], s30 offen offset:1024{SCL} lds
        buffer_load_dwordx4 v2, s[12:15], s30 offen offset:2048{SCL} lds
        buffer_load_dwordx4 v2, s[12:15], s30 offen offset:3072{SCL} lds
        s_add_u32 m0, m0, 4096
        s_add_u32 s30, s30, {CH}
        buffer_load_dwordx4 v2, s[12:15], s31 offen{SCL} lds
        buffer_load_dwordx4 v2, s[12:15], s31 offen offset:1024{SCL} lds
        s_add_u32 s31, s31, {CH}
        s_cmp_ge_u32 s25, {3*CH}
        s_cselect_b32 s25, 0, s25
        """)
    a(f"""
    s_mov_b32 m0, {QST+6144}
    s_mov_b32 s52, {WS_KV+1024+63*8+4}
    v_mul_u32_u24 v6, 3072, v1
    buffer_load_dword v6, s[8:11], s52 offen{SCL} lds
    """)
    kv(); kv()
    a(f"""
    s_lshr_b32 s38, s21, 2
    s_mul_i32 s38, s38, 160
    s_movk_i32 s39, 5462
    s_movk_i32 s40, 1280
    """)
    for i in range(3):
        a(f"""
        v_add_u32 v6, {64*i}, v1
        v_mul_u32_u24 v7, s39, v6
        v_lshrrev_b32 v7, 16, v7
        v_mul_u32_u24 v8, 12, v7
        v_sub_u32 v8, v6, v8
        v_mul_u32_u24 v7, s40, v7
        v_lshl_add_u32 v7, v8, 4, v7
        v_add_u32 v7, s38, v7
        v_subrev_u32 v{10+i}, {1024*i}, v7
        """)
    srd(a, 40, 4, 5, 819200)
    a(f"""
    s_mul_i32 s44, s63, {20*20480}
    s_mul_i32 s45, s63, {20*3072}
    s_waitcnt vmcnt(6)
    """)
    stamp(a, 3)
    a("s_barrier")
    def bar_kv():
        a("s_waitcnt vmcnt(0)")
        a("s_barrier")
        kv()
    bar_kv()
    a(f"""
    s_cmp_eq_u32 s63, 1
    s_cbranch_scc1 {L}_gate
    s_lshl_b32 s52, s2, 6
    v_add_u32 v6, s52, v1
    v_lshlrev_b32 v6, 7, v6
    buffer_load_dword v30, v6, s[40:43], 0 offen
    v_mov_b32 v6, {NONCE}
    ds_write_b64 v6, v[20:21]
    v_mov_b32 v8, 0
    v_mov_b32 v9, 0
    ds_write_b64 v6, v[8:9] offset:8
    ds_write_b64 v6, v[8:9] offset:16
    ds_write_b64 v6, v[8:9] offset:24
    s_waitcnt vmcnt(1) lgkmcnt(0)
    s_barrier
    """)
    a.c("B1 passed: every wave has drained its h stores")
    flag(a, "s34")
    kv()
    a(f"""
    s_waitcnt vmcnt(0)
    s_branch {L}_gate_done
    {L}_gate:
    s_load_dwordx2 s[16:17], s[0:1], 72
    s_load_dwordx2 s[4:5], s[0:1], 0
    v_and_b32 v16, 7, v1
    v_lshlrev_b32 v16, 4, v16
    v_lshrrev_b32 v17, 3, v1
    s_lshl_b32 s53, s33, 3
    v_add_u32 v18, s53, v17
    s_movk_i32 s54, 1280
    v_mul_lo_u32 v17, v18, s54
    v_add_u32 v17, v17, v16
    s_waitcnt lgkmcnt(0)
    """)
    srd(a, 56, 4, 5, 2621440)
    srd(a, 68, 16, 17, 1280)
    for j in range(10):
        a(f"buffer_load_dwordx4 {vr(72+4*j,4)}, v17, s[56:59], 0 offen offset:{128*j}")
    for j in range(10):
        a(f"buffer_load_dwordx4 {vr(32+4*j,4)}, v16, s[68:71], 0 offen offset:{128*j}")
    a(f"""
    v_lshrrev_b32 v19, 3, v1
    v_lshlrev_b32 v19, 2, v19
    v_mov_b32 v27, {f32(-LOG2E)}
    v_mov_b32 v26, 0
    v_mov_b32 v28, 0
    s_waitcnt vmcnt(20)
    s_barrier
    """)
    kv()
    a("s_waitcnt vmcnt(6)")
    for i in range(0, 40, 2):
        a(f"v_dot2_f32_bf16 v26, v{72+i}, v{32+i}, v26")
        a(f"v_dot2_f32_bf16 v28, v{73+i}, v{33+i}, v28")
    a(f"""
    s_nop 3
    v_add_f32 v26, v26, v28
    s_nop 1
    v_add_f32_dpp v26, v26, v26 quad_perm:[1,0,3,2] row_mask:0xf bank_mask:0xf
    s_nop 1
    v_add_f32_dpp v26, v26, v26 quad_perm:[2,3,0,1] row_mask:0xf bank_mask:0xf
    s_nop 1
    v_add_f32_dpp v26, v26, v26 row_half_mirror row_mask:0xf bank_mask:0xf
    v_cvt_pk_bf16_f32 v26, v26, v26
    v_lshlrev_b32 v26, 16, v26
    v_mul_f32 v26, v27, v26
    v_exp_f32 v26, v26
    s_nop 0
    v_add_f32 v26, 1.0, v26
    v_rcp_f32 v26, v26
    s_nop 0
    v_cvt_pk_bf16_f32 v26, v26, v26
    v_lshlrev_b32 v28, 16, v26
    s_lshl_b32 s53, s33, 7
    s_add_u32 s53, s53, {WS_G}
    v_cmp_eq_u32 vcc, 0, v16
    s_nop 1
    s_mov_b64 exec, vcc
    buffer_store_dword v28, v19, s[8:11], s53 offen sc1
    s_mov_b64 exec, -1
    s_waitcnt vmcnt(1)
    {L}_gate_done:
    s_barrier
    """)
    kv()
    a(f"""
    s_cmp_eq_u32 s63, 1
    s_cbranch_scc1 {L}_l_np
    """)
    a("s_mov_b64 exec, 0x7ffffff")
    poll(a, L, "v3", "s35")
    a(f"""
    s_mov_b64 exec, -1
    {L}_l_np:
    s_mov_b32 s46, 3
    {L}_lloop:
    """)
    bar_kv()
    a(f"""
    s_add_u32 s46, s46, 1
    s_cmp_lt_u32 s46, 14
    s_cbranch_scc1 {L}_lloop
    s_add_u32 s34, s34, {F2}
    s_add_u32 s35, s35, {F2}
    """)
    a.c("barrier 13 passed: G waves are done with their ring")
    def wo(n, tag):
        a(f"""
        s_mov_b32 s47, {n}
        {L}_wo{tag}:
        s_mov_b32 m0, s45
        s_add_u32 s45, s45, 3072
        buffer_load_dwordx4 v10, s[40:43], s44 offen lds
        buffer_load_dwordx4 v11, s[40:43], s44 offen offset:1024 lds
        buffer_load_dwordx4 v12, s[40:43], s44 offen offset:2048 lds
        s_add_u32 s44, s44, 20480
        s_sub_u32 s47, s47, 1
        s_cmp_lg_u32 s47, 0
        s_cbranch_scc1 {L}_wo{tag}
        """)
    wo(8, "a")
    a("s_waitcnt vmcnt(24)")
    a("s_barrier")
    a(f"s_cmp_lg_u32 s63, 0\ns_cbranch_scc1 {L}_l_nf2")
    flag(a, "s34")
    a(f"{L}_l_nf2:")
    wo(8, "b")
    a("s_barrier")
    wo(4, "c")
    a(f"s_cmp_eq_u32 s63, 0\ns_cbranch_scc1 {L}_l_np2")
    a("s_mov_b32 exec_hi, 0")
    poll(a, L, "v3", "s35")
    a(f"{L}_l_np2:")
    a(f"""
    s_mov_b64 exec, 1
    v_mov_b32 v22, {NONCE}
    v_mov_b32 v9, 1
    s_waitcnt vmcnt(0)
    ds_add_u32 v22, v9 offset:12
    s_mov_b64 exec, -1
    s_and_b32 s52, s21, 3
    s_lshl_b32 s52, s52, 9
    s_add_u32 s35, s35, s52
    s_add_u32 s35, s35, {F3-F2}
    s_branch {L}_p3
    """)

    a(f"""
    {L}_comp:
    s_and_b32 s63, s22, 3
    s_lshr_b32 s64, s22, 2
    v_and_b32 v13, 31, v1
    v_lshrrev_b32 v14, 5, v1
    v_bfe_u32 v15, v1, 1, 3
    v_xor_b32 v2, v14, v15
    v_lshlrev_b32 v2, 4, v2
    v_lshl_add_u32 v2, v13, 7, v2
    s_lshl_b32 s52, s63, 13
    s_lshl_b32 s53, s64, 12
    s_add_u32 s52, s52, s53
    v_add_u32 v2, s52, v2
    v_xor_b32 v3, 32, v2
    v_xor_b32 v4, 64, v2
    v_xor_b32 v5, 96, v2
    v_bfe_u32 v15, v1, 2, 2
    v_lshlrev_b32 v7, 3, v14
    v_add_u32 v7, v7, v15
    v_mul_u32_u24 v9, 40, v7
    v_lshlrev_b32 v8, 6, v7
    v_lshlrev_b32 v7, 7, v7
    v_lshrrev_b32 v16, 1, v15
    v_xor_b32 v16, s64, v16
    v_lshl_add_u32 v7, v16, 6, v7
    v_bfe_u32 v16, v1, 4, 1
    v_and_b32 v17, 3, v1
    v_lshlrev_b32 v16, 5, v16
    v_lshl_add_u32 v16, v17, 3, v16
    v_add_u32 v7, v7, v16
    v_add_u32 v8, v8, v16
    v_add_u32 v9, v9, v16
    v_add_u32 v7, {WB}, v7
    v_add_u32 v8, {WB+8192}, v8
    v_add_u32 v9, {WB}, v9
    s_mov_b32 s44, 0
    s_mov_b32 s45, 0
    s_mov_b32 s46, 0
    """)
    a.c("v2..v5 x frag addr (row block 2rp+cp) for the 4 k steps of a pair; v7 W, v8 wq slice, v9 wk/wv slice addr; s63=rp s64=cp")
    for r in range(64, 144, 2):
        a(f"v_mov_b64 v[{r}:{r+1}], 0")
    a("s_waitcnt lgkmcnt(0)")
    srd(a, 8, 18, 19, WS_SIZE)
    a(f"""
    s_or_b32 s52, s22, s2
    s_cmp_lg_u32 s52, 0
    s_cbranch_scc1 {L}_nonon
    s_load_dwordx2 s[52:53], s[0:1], 88
    s_memrealtime s[54:55]
    v_mov_b32 v148, 0
    s_waitcnt lgkmcnt(0)
    s_or_b32 s54, s54, 1
    v_mov_b32 v144, s54
    v_mov_b32 v145, s55
    s_mov_b64 exec, 1
    global_store_dwordx2 v148, v[144:145], s[52:53] sc0 sc1
    s_mov_b64 exec, -1
    {L}_nonon:
    s_lshr_b32 s52, s21, 4
    s_xor_b32 s53, s22, 1
    s_or_b32 s52, s52, s53
    s_cmp_lg_u32 s52, 0
    s_cbranch_scc1 {L}_noin
    s_lshl_b32 s52, s20, 5
    s_add_u32 s52, s52, s21
    s_lshl_b32 s52, s52, 7
    s_add_u32 s52, s52, {WS_F+F3}
    s_mov_b64 exec, 1
    buffer_store_dword v64, v64, s[8:11], s52 offen sc1
    s_mov_b64 exec, -1
    {L}_noin:
    """)
    if E("CPF", "0") == "1":
        a(f"""
        s_lshr_b32 s52, s2, {3 + int(E("CPFS", "0"))}
        s_xor_b32 s53, s22, 2
        s_or_b32 s52, s52, s53
        s_cmp_lg_u32 s52, 0
        s_cbranch_scc1 {L}_nocpf
        s_getpc_b64 s[52:53]
        {L}_pc:
        s_sub_u32 s52, s52, {L}_pc-{L}
        s_subb_u32 s53, s53, 0
        v_lshlrev_b32 v144, 7, v1
        global_load_dword v145, v144, s[52:53]
        v_add_u32 v144, 8192, v144
        v_cmp_gt_u32 vcc, {L}_end-{L}, v144
        s_nop 1
        s_mov_b64 exec, vcc
        global_load_dword v145, v144, s[52:53]
        s_mov_b64 exec, -1
        {L}_nocpf:
        """)
    a(f"""
    s_cmp_eq_u32 s21, 27
    s_cbranch_scc1 {L}_modeK
    s_cmp_eq_u32 s21, 28
    s_cbranch_scc1 {L}_modeV
    s_cmp_gt_u32 s21, 28
    s_cbranch_scc1 {L}_modeQ
    """)
    XA = [16, 36]
    XC = [56, 57, 58, 59]
    XD = [60, 61, 62, 63]
    def xaddrs(full):
        l = [f"v_add_u32 v{XC[j]}, s45, v{2+j}" for j in range(4)]
        if full: l += [f"v_xor_b32 v{XD[j]}, 4096, v{XC[j]}" for j in range(4)]
        return l + [f"s_add_u32 s45, s45, {XSL}", f"s_cmp_ge_u32 s45, {WB}", "s_cselect_b32 s45, 0, s45"]
    def waddrs(mode):
        l = ["v_add_u32 v12, s44, v8"]
        if mode == 0: l.append("v_add_u32 v11, s44, v7")
        if mode in (1, 2): l.append("v_add_u32 v11, s44, v9")
        return l + [f"s_add_u32 s44, s44, {WSL}", f"s_cmp_ge_u32 s44, {4*WSL}", "s_cselect_b32 s44, 0, s44"]
    def read_list(j, mode):
        ks = j & 1
        b = XA[ks]
        l = [f"ds_read_b128 {vr(b,4)}, v{XC[j]}"]
        if mode == 0:
            l += [f"ds_read_b64_tr_b16 {vr(b+8,2)}, v11 offset:{ks*2048}",
                  f"ds_read_b64_tr_b16 {vr(b+10,2)}, v11 offset:{ks*2048+512}",
                  f"ds_read_b64_tr_b16 {vr(b+12,2)}, v11 offset:{4096+ks*2048}",
                  f"ds_read_b64_tr_b16 {vr(b+14,2)}, v11 offset:{4096+ks*2048+512}",
                  f"ds_read_b128 {vr(b+4,4)}, v{XD[j]}"]
        if mode in (1, 2):
            l += [f"ds_read_b64_tr_b16 {vr(b+8,2)}, v11 offset:{ks*640}",
                  f"ds_read_b64_tr_b16 {vr(b+10,2)}, v11 offset:{ks*640+160}"]
        l += [f"ds_read_b64_tr_b16 {vr(b+16,2)}, v12 offset:{ks*1024}",
              f"ds_read_b64_tr_b16 {vr(b+18,2)}, v12 offset:{ks*1024+256}"]
        return l
    def mfma_list(ks, mode):
        b = XA[ks]
        x0, x1, wg, wu, ws = vr(b,4), vr(b+4,4), vr(b+8,4), vr(b+12,4), vr(b+16,4)
        l = []
        if mode == 0:
            l = [f"{M} v[64:79], {wg}, {x0}, v[64:79]", f"{M} v[80:95], {wu}, {x0}, v[80:95]",
                 f"{M} v[96:111], {wg}, {x1}, v[96:111]", f"{M} v[112:127], {wu}, {x1}, v[112:127]"]
        if mode == 1: l = [f"{M} v[64:79], {wg}, {x0}, v[64:79]"]
        if mode == 2: l = [f"{M} v[64:79], {x0}, {wg}, v[64:79]"]
        l = l + [f"{M} v[128:143], {ws}, {x0}, v[128:143]"]
        if E("HACK16", "0") == "1" and mode == 0:
            import re
            l2 = []
            for m in l:
                b0 = int(re.search(r"v\[(\d+):", m).group(1)); ops = m.split(", ")
                t = f"v_mfma_f32_16x16x32_bf16 {{d}}, {ops[1]}, {ops[2]}, {{d}}"
                l2.append(t.format(d=vr(b0+8*ks,4)) + "\n" + t.format(d=vr(b0+8*ks+4,4)))
            l = l2
        return l
    def half(ml, rl, post):
        n = len(ml)
        if n == 5 and E("P1V", "1") == "1":
            a("s_waitcnt lgkmcnt(2)")
            cuts = [int(x) for x in E("P1CUT", "3,6,8,8").split(",")]
            lo = 0
            for i, m in enumerate(ml):
                if i == 4: a("s_waitcnt lgkmcnt(8)")
                a(m)
                if i < 4:
                    for x in rl[lo:cuts[i]]: a(x)
                    lo = cuts[i]
                if i == 3:
                    for x in post: a(x)
            return
        a("s_waitcnt lgkmcnt(0)")
        per = -(-len(rl) // max(n - 1, 1))
        for i, m in enumerate(ml):
            a(m)
            if n == 1:
                for x in rl + post: a(x)
                continue
            for x in rl[per*i:per*i+per]: a(x)
            if i == n - 2:
                for x in post: a(x)
    for mode, tag in ((0, "full"), (1, "modeK"), (2, "modeV"), (3, "modeQ")):
        a(f"{L}_{tag}:")
        for x in xaddrs(mode == 0) + waddrs(mode): a(x)
        a("s_barrier")
        for x in read_list(0, mode): a(x)
        stamp(a, 1)
        if mode == 0: a(".p2align 6")
        a(f"{L}_{tag}_loop:")
        half(mfma_list(0, mode), read_list(1, mode), waddrs(mode))
        a("s_barrier")
        half(mfma_list(1, mode), read_list(2, mode), [])
        half(mfma_list(0, mode), read_list(3, mode), waddrs(mode) + xaddrs(mode == 0))
        a("s_barrier")
        half(mfma_list(1, mode), read_list(0, mode), ["s_add_u32 s46, s46, 1", "s_cmp_lt_u32 s46, 10"])
        a(f"s_cbranch_scc1 {L}_{tag}_loop")
        stamp(a, 2)
        a(f"""
        s_lshl_b32 s52, s20, 3
        s_lshl_b32 s53, s63, 1
        s_add_u32 s52, s52, s53
        s_add_u32 s52, s52, s64
        v_lshlrev_b32 v2, 4, v1
        """)
        a(f"s_branch {L}_epi{mode}")
    a.c("s52 = global row block of acc set 0 and of the q chain (set 1 is s52 ^ 1)")
    EK = 64
    a(f"""
    {L}_epi1:
    s_mul_i32 s53, s52, 3072
    s_add_u32 s53, s53, {WS_KV}
    s_nop 7
    s_waitcnt lgkmcnt(0)
    """)
    for i in range(4): a(f"v_cvt_pk_bf16_f32 v{20+i}, v{EK+2*i}, v{EK+2*i+1}")
    a(f"buffer_store_dwordx4 v[20:23], v2, s[8:11], s53 offen{SC}")
    a(f"v_cvt_pk_bf16_f32 v24, v{EK+8}, v{EK+9}")
    a(f"v_cvt_pk_bf16_f32 v25, v{EK+10}, v{EK+11}")
    a("v_mov_b32 v26, 0x3f803f80")
    a("v_mov_b32 v27, 0x00003f80")
    a(f"v_mul_f32 v30, v{EK}, v{EK}")
    for i in range(1, 8): a(f"v_fmac_f32 v30, v{EK+i}, v{EK+i}")
    a(f"v_mul_f32 v31, v{EK+8}, v{EK+8}")
    for i in range(9, 12): a(f"v_fmac_f32 v31, v{EK+i}, v{EK+i}")
    a(f"""
    v_cmp_gt_u32 vcc, 32, v1
    s_nop 1
    v_cndmask_b32 v31, 0, v31, vcc
    v_add_f32 v30, v30, v31
    v_mov_b32 v31, v30
    s_nop 1
    v_permlane32_swap_b32 v30, v31
    s_nop 1
    v_add_f32 v30, v30, v31
    """)
    for sh in (1, 2, 4, 8):
        a("s_nop 1")
        a(f"v_max_f32_dpp v30, v30, v30 row_shr:{sh} row_mask:0xf bank_mask:0xf")
    a(f"""
    s_nop 1
    v_max_f32_dpp v30, v30, v30 row_bcast:15 row_mask:0xa bank_mask:0xf
    v_cmp_eq_u32 vcc, 63, v1
    v_and_b32 v30, 0xffff0000, v30
    v_or_b32 v30, 0x3f80, v30
    v_cndmask_b32 v27, v27, v30, vcc
    v_cmp_gt_u32 vcc, 32, v1
    v_lshlrev_b32 v16, 3, v1
    s_nop 0
    v_cndmask_b32 v24, v26, v24, vcc
    v_cndmask_b32 v25, v27, v25, vcc
    buffer_store_dwordx2 v[24:25], v16, s[8:11], s53 offen offset:1024{SC}
    s_branch {L}_kvdone
    {L}_epi2:
    s_mul_i32 s53, s52, 3072
    s_add_u32 s53, s53, {WS_KV+1536}
    v_and_b32 v17, 31, v1
    v_lshrrev_b32 v18, 5, v1
    v_mul_u32_u24 v18, 384, v18
    v_lshl_add_u32 v16, v17, 4, v18
    v_mov_b32 v19, 0x3f803f80
    v_cmp_eq_u32 vcc, 20, v17
    v_cmp_lt_u32 s[54:55], 19, v17
    s_nop 3
    v_cndmask_b32 v19, 0, v19, vcc
    s_waitcnt lgkmcnt(0)
    """)
    for i in range(8): a(f"v_cvt_pk_bf16_f32 v{20+i}, v{EK+2*i}, v{EK+2*i+1}")
    for i in range(8): a(f"v_cndmask_b32 v{20+i}, v{20+i}, v19, s[54:55]")
    a(f"""
    v_cmp_gt_u32 vcc, 24, v17
    s_nop 1
    s_and_b64 exec, exec, vcc
    buffer_store_dwordx4 v[20:23], v16, s[8:11], s53 offen{SC}
    buffer_store_dwordx4 v[24:27], v16, s[8:11], s53 offen offset:768{SC}
    {L}_kvdone:
    s_mov_b64 exec, -1
    s_waitcnt vmcnt(0)
    s_barrier
    s_branch {L}_epi3
    """)
    C0 = -2.0 * 0.7978845608028654 * LOG2E
    C1 = C0 * 0.044715
    a(f"""
    {L}_epi0:
    v_mov_b32 v16, {f32(C0)}
    v_mov_b32 v17, {f32(C1)}
    s_lshl_b32 s54, s21, 12
    s_lshl_b32 s55, s64, 11
    s_add_u32 s54, s54, s55
    s_add_u32 s54, s54, {WS_H}
    s_mul_i32 s53, s52, {108*1024}
    s_add_u32 s53, s53, s54
    s_xor_b32 s55, s52, 1
    s_mul_i32 s55, s55, {108*1024}
    s_add_u32 s54, s54, s55
    s_waitcnt lgkmcnt(0)
    """)
    for j in range(2):
        G, U = 64 + 32*j, 80 + 32*j
        for hf in range(2):
            T = 20
            rs = list(range(8*hf, 8*hf+8))
            for i, r in enumerate(rs): a(f"v_mul_f32 v{T+i}, v{G+r}, v{G+r}")
            for i, r in enumerate(rs): a(f"v_fma_f32 v{T+i}, v{T+i}, v17, v16")
            for i, r in enumerate(rs): a(f"v_mul_f32 v{T+i}, v{G+r}, v{T+i}")
            for i, r in enumerate(rs): a(f"v_exp_f32 v{T+i}, v{T+i}")
            for i, r in enumerate(rs): a(f"v_mul_f32 v{U+r}, v{G+r}, v{U+r}")
            for i, r in enumerate(rs): a(f"v_add_f32 v{T+i}, 1.0, v{T+i}")
            for i, r in enumerate(rs): a(f"v_rcp_f32 v{T+i}, v{T+i}")
            a("s_nop 0")
            for i, r in enumerate(rs): a(f"v_mul_f32 v{T+i}, v{U+r}, v{T+i}")
            O = 28 + 4*(2*j+hf)
            for i in range(4): a(f"v_cvt_pk_bf16_f32 v{O+i}, v{T+2*i}, v{T+2*i+1}")
            a(f"buffer_store_dwordx4 {vr(O,4)}, v2, s[8:11], s{53+j} offen offset:{1024*hf}{SC}")
    a(f"""
    {L}_epi3:
    """)
    if E("ES"): stamp(a, 6)
    a(f"""
    s_nop 7
    v_mov_b32 v144, {f32(QSCALE)}
    s_waitcnt lgkmcnt(0)
    """)
    for i in range(12): a(f"v_mul_f32 v{128+i}, v144, v{128+i}")
    for i in range(6): a(f"v_cvt_pk_bf16_f32 v{QA1+i}, v{128+2*i}, v{129+2*i}")
    a(f"""
    s_mul_i32 s52, s63, 1536
    s_add_u32 s52, s52, {QST}
    v_add_u32 v144, s52, v2
    v_lshl_add_u32 v145, v1, 3, s52
    s_cmp_ge_u32 s22, 4
    s_cbranch_scc1 {L}_gwave
    """)
    a(f"""
    s_setprio {E("APRIO", "1")}
    v_and_b32 v9, 31, v1
    v_lshrrev_b32 v10, 5, v1
    v_add_u32 v3, {KVR}, v2
    v_lshlrev_b32 v4, 3, v1
    v_add_u32 v4, {KVR+1024}, v4
    v_min_u32 v5, 23, v9
    v_mul_u32_u24 v11, 384, v10
    v_lshl_add_u32 v5, v5, 4, v11
    v_add_u32 v5, {KVR+1536}, v5
    v_lshlrev_b32 v146, 2, v1
    v_add_u32 v146, {QST+6144}, v146
    v_add_u32 v6, {CH}, v3
    v_add_u32 v7, {CH}, v4
    v_add_u32 v8, {CH}, v5
    s_mov_b32 s27, {2*CH}
    s_mov_b32 s30, 0
    v_cmp_gt_u32 s[28:29], 32, v1
    v_lshlrev_b32 v60, 3, v9
    v_lshl_add_u32 v60, v10, 8, v60
    s_lshl_b32 s33, s20, 3
    s_lshl_b32 s52, s22, 1
    s_add_u32 s33, s33, s52
    s_mul_i32 s33, s33, 40960
    s_mul_i32 s52, s21, 1280
    s_add_u32 s33, s33, s52
    s_add_u32 s33, s33, {WS_O}
    s_add_u32 s31, s33, 40960
    """)
    a.c("v60 = o store offset, s33/s31 = o image base of block a / b")
    for r in list(range(OA, OA+32, 2)) + list(range(PB, PB+8, 2)) + list(range(KVB[1]+8, KVB[1]+16, 2)):
        a(f"v_mov_b64 v[{r}:{r+1}], 0")
    def qnorm(q1, q2, t, extra=()):
        ex = list(extra) + [""] * 2
        a(f"""
        v_cndmask_b32 v{q2}, 0, v{q2}, s[28:29]
        v_cndmask_b32 v{q2+1}, 0, v{q2+1}, s[28:29]
        v_mov_b32 v{t}, 0
        {ex[0]}
        v_dot2_f32_bf16 v{t}, v{q1}, v{q1}, v{t}
        v_dot2_f32_bf16 v{t}, v{q1+1}, v{q1+1}, v{t}
        v_dot2_f32_bf16 v{t}, v{q1+2}, v{q1+2}, v{t}
        {ex[1]}
        v_dot2_f32_bf16 v{t}, v{q1+3}, v{q1+3}, v{t}
        v_dot2_f32_bf16 v{t}, v{q2}, v{q2}, v{t}
        v_dot2_f32_bf16 v{t}, v{q2+1}, v{q2+1}, v{t}
        """)
    qnorm(QA1, QA2, 147)
    if E("ES"): stamp(a, 3)
    a(f"""
    s_barrier
    ds_read_b32 v146, v146
    ds_read_b128 {vr(QB1,4)}, v144
    ds_read_b64 {vr(QB2,2)}, v145 offset:1024
    ds_read_b128 {vr(KVB[0],4)}, v6
    ds_read_b64 {vr(KVB[0]+4,2)}, v7
    ds_read_b128 {vr(KVB[1],4)}, v6 offset:3072
    ds_read_b64 {vr(KVB[1]+4,2)}, v7 offset:3072
    ds_read_b128 {vr(KVB[0]+8,4)}, v8
    ds_read_b128 {vr(KVB[0]+12,4)}, v8 offset:768
    """)
    stamp(a, 4)
    dm = lambda k: f"v_max_f32_dpp v146, v146, v146 {k} bank_mask:0xf"
    a(f"""
    v_mov_b32 v149, v147
    s_waitcnt lgkmcnt(6)
    v_and_b32 v146, 0xffff0000, v146
    v_permlane32_swap_b32 v147, v149
    s_nop 0
    {dm("row_shr:1 row_mask:0xf")}
    v_add_f32 v147, v147, v149
    s_nop 0
    {dm("row_shr:2 row_mask:0xf")}
    """)
    qnorm(QB1, QB2, 148, [dm("row_shr:4 row_mask:0xf"), dm("row_shr:8 row_mask:0xf")])
    a(f"""
    {dm("row_bcast:15 row_mask:0xa")}
    s_nop 1
    v_mov_b32 v150, v148
    {dm("row_bcast:31 row_mask:0xc")}
    s_nop 0
    v_permlane32_swap_b32 v148, v150
    v_readlane_b32 s26, v146, 63
    s_nop 0
    v_add_f32 v148, v148, v150
    v_mul_f32 v147, s26, v147
    v_mul_f32 v148, s26, v148
    v_sqrt_f32 v147, v147
    v_sqrt_f32 v148, v148
    v_mul_f32 v147, {f32(1.02)}, v147
    v_mul_f32 v148, {f32(1.02)}, v148
    """)
    def set_shift(ma, mb):
        for m, q2 in ((ma, QA2), (mb, QB2)):
            split3(a, m, q2+2, q2+3, 149, 150)
            a(f"v_cndmask_b32 v{q2}, v{q2+2}, v{q2}, s[28:29]")
            a(f"v_cndmask_b32 v{q2+1}, v{q2+3}, v{q2+1}, s[28:29]")
    set_shift(147, 148)
    a("s_waitcnt lgkmcnt(0)")
    for x in qk(SA, KVB[0], QA1, QA2): a(x)
    a("s_nop 11")
    a(".p2align 6")
    a(f"{L}_aloop:")
    for t in range(4):
        cur, nxt = KVB[t & 1], KVB[(t + 1) & 1]
        aslot(a, SA, PA, qk(SB, cur, QB1, QB2) + pv(OB, nxt, PB))
        pre = ["s_waitcnt lgkmcnt(0)" if t != 3 else "s_waitcnt vmcnt(0) lgkmcnt(0)"]
        if t == 0 and STAMP: pre.append("s_memtime s[38:39]")
        if t == 0: pre.append("s_barrier")
        if t == 0 and STAMP: pre.append("s_memtime s[36:37]")
        if t == 1 and STAMP: pre += ["s_mov_b32 m0, s30", "s_nop 0", "v_writelane_b32 v61, s36, m0", "v_writelane_b32 v62, s38, m0"]
        if t == 2:
            pre += ["v_add_u32 v6, s27, v3", "v_add_u32 v7, s27, v4"]
        if t == 3:
            pre += ["v_add_u32 v8, s27, v5",
                    f"s_add_u32 s27, s27, {CH}", f"s_cmp_ge_u32 s27, {3*CH}", "s_cselect_b32 s27, 0, s27"]
        ko = ((t + 2) & 3) * 3072
        vo = ((t + 1) & 3) * 3072
        rd = [f"ds_read_b128 {vr(cur,4)}, v6 offset:{ko}",
              f"ds_read_b64 {vr(cur+4,2)}, v7 offset:{ko}",
              f"ds_read_b128 {vr(nxt+8,4)}, v8 offset:{vo}",
              f"ds_read_b128 {vr(nxt+12,4)}, v8 offset:{vo+768}"]
        aslot(a, SB, PB, qk(SA, nxt, QA1, QA2) + pv(OA, cur, PA), pre, rd)
    a(f"""
    s_add_u32 s30, s30, 1
    s_cmp_lt_u32 s30, 16
    s_cbranch_scc1 {L}_aloop
    s_nop 1
    """)
    for x in pv(OB, KVB[1], PB): a(x)
    stamp(a, 5)
    a(f"""
    s_mov_b32 s34, 0
    {L}_aepi:
    s_mov_b32 s35, {f32(2.0**-90)}
    s_waitcnt lgkmcnt(0)
    s_nop 11
    v_mov_b32 v144, v{OA+8}
    v_mov_b32 v145, v{OA+8}
    v_mov_b32 v146, v{OB+8}
    v_mov_b32 v147, v{OB+8}
    s_nop 0
    v_permlane32_swap_b32 v144, v145
    v_permlane32_swap_b32 v146, v147
    s_nop 0
    v_cmp_nle_f32 vcc, s35, v145
    v_cmp_nle_f32 s[36:37], s35, v147
    v_rcp_f32 v145, v145
    v_rcp_f32 v147, v147
    s_or_b64 s[36:37], vcc, s[36:37]
    s_cmp_eq_u32 s34, 0
    s_cselect_b64 s[36:37], s[36:37], 0
    s_cmp_lg_u64 s[36:37], 0
    s_cbranch_scc1 {L}_slow
    """)
    for blk, O in enumerate((OA, OB)):
        R = 145 + 2*blk
        for q in range(3):
            for i in range(4): a(f"v_mul_f32 v{O+4*q+i}, v{R}, v{O+4*q+i}")
            D = 64 + 8*blk + 2*q
            a(f"v_cvt_pk_bf16_f32 v{D}, v{O+4*q}, v{O+4*q+1}")
            a(f"v_cvt_pk_bf16_f32 v{D+1}, v{O+4*q+2}, v{O+4*q+3}")
            if q == 2: a("s_mov_b32 exec_hi, 0")
            a(f"buffer_store_dwordx2 {vr(D,2)}, v60, s[8:11], s{33 if blk == 0 else 31} offen offset:{512*q} sc1")
            if q == 2: a("s_mov_b64 exec, -1")
    if STAMP:
        a(f"""
        s_lshl_b32 s36, s2, 2
        s_add_u32 s36, s36, s22
        s_lshl_b32 s36, s36, 9
        s_add_u32 s36, s36, {0x1900000}
        v_lshlrev_b32 v63, 2, v1
        buffer_store_dword v61, v63, s[8:11], s36 offen
        buffer_store_dword v62, v63, s[8:11], s36 offen offset:256
        """)
    a(f"""
    s_setprio 0
    s_lshl_b32 s36, s20, 5
    s_lshl_b32 s37, s22, 2
    s_add_u32 s36, s36, s37
    s_lshr_b32 s37, s21, 3
    s_add_u32 s36, s36, s37
    s_lshl_b32 s36, s36, 7
    s_add_u32 s36, s36, {WS_F+F3}
    v_mov_b32 v9, 1
    v_mov_b32 v5, 0
    s_waitcnt vmcnt(0)
    s_mov_b64 exec, 1
    buffer_atomic_add v9, v5, s[8:11], s36 offen sc1
    s_mov_b64 exec, -1
    """)
    if not E("ES"): stamp(a, 3)
    a(f"""
    s_branch {L}_p3
    """)
    kb = KVB[0]
    a(f"""
    {L}_slow:
    s_mov_b32 s34, 1
    v_cndmask_b32 v{QA2}, 0, v{QA2}, s[28:29]
    v_cndmask_b32 v{QA2+1}, 0, v{QA2+1}, s[28:29]
    v_cndmask_b32 v{QB2}, 0, v{QB2}, s[28:29]
    v_cndmask_b32 v{QB2+1}, 0, v{QB2+1}, s[28:29]
    v_mov_b32 v147, 0xff800000
    v_mov_b32 v148, 0xff800000
    s_mov_b32 s36, {WS_KV - KVR}
    {L}_slow1:
    buffer_load_dwordx4 {vr(kb,4)}, v3, s[8:11], s36 offen sc1
    buffer_load_dwordx2 {vr(kb+4,2)}, v4, s[8:11], s36 offen sc1
    s_add_u32 s36, s36, 3072
    s_waitcnt vmcnt(0)
    """)
    for x in qk(SA, kb, QA1, QA2) + qk(SB, kb, QB1, QB2): a(x)
    a("s_nop 15")
    for i in range(0, 16, 2):
        a(f"v_max3_f32 v147, v{SA+i}, v{SA+i+1}, v147")
        a(f"v_max3_f32 v148, v{SB+i}, v{SB+i+1}, v148")
    a(f"""
    s_cmp_lt_u32 s36, {WS_KV - KVR + 64*3072}
    s_cbranch_scc1 {L}_slow1
    v_mov_b32 v149, v147
    v_mov_b32 v150, v148
    s_nop 1
    v_permlane32_swap_b32 v147, v149
    v_permlane32_swap_b32 v148, v150
    s_nop 1
    v_max_f32 v147, v147, v149
    v_max_f32 v148, v148, v150
    """)
    set_shift(147, 148)
    for r in range(OA, OA+32): a(f"v_mov_b32 v{r}, 0")
    a(f"""
    s_mov_b32 s36, {WS_KV - KVR}
    {L}_slow2:
    buffer_load_dwordx4 {vr(kb,4)}, v3, s[8:11], s36 offen sc1
    buffer_load_dwordx2 {vr(kb+4,2)}, v4, s[8:11], s36 offen sc1
    buffer_load_dwordx4 {vr(kb+8,4)}, v5, s[8:11], s36 offen sc1
    buffer_load_dwordx4 {vr(kb+12,4)}, v5, s[8:11], s36 offen offset:768 sc1
    s_add_u32 s36, s36, 3072
    s_waitcnt vmcnt(0)
    """)
    for x in qk(SA, kb, QA1, QA2) + qk(SB, kb, QB1, QB2): a(x)
    a("s_nop 15")
    for g in exp_groups(SA, PA) + exp_groups(SB, PB):
        for x in g: a(x)
    a("s_nop 1")
    for x in pv(OA, kb, PA) + pv(OB, kb, PB): a(x)
    a(f"""
    s_cmp_lt_u32 s36, {WS_KV - KVR + 64*3072}
    s_cbranch_scc1 {L}_slow2
    s_nop 7
    s_branch {L}_aepi
    """)

    a(f"""
    {L}_gwave:
    ds_write_b128 v144, {vr(QA1,4)}
    ds_write_b64 v145, {vr(QA2,2)} offset:1024
    s_load_dwordx2 s[6:7], s[0:1], 64
    s_and_b32 s16, s22, 3
    s_and_b32 s57, s21, 3
    s_lshl_b32 s57, s57, 3
    s_lshr_b32 s34, s21, 2
    s_add_u32 s57, s57, s34
    s_cmp_ge_u32 s57, 15
    s_cselect_b32 s33, 1, 0
    s_cselect_b32 s34, 15, 0
    s_sub_u32 s34, s57, s34
    s_lshl_b32 s35, s20, 1
    s_add_u32 s33, s33, s35
    s_mul_i32 s35, s34, 13
    s_lshr_b32 s35, s35, 6
    s_mul_i32 s36, s35, 5
    s_sub_u32 s34, s34, s36
    s_waitcnt lgkmcnt(0)
    """)
    if E("ES"): stamp(a, 3)
    a(f"""
    s_barrier
    s_lshl_b32 s36, s33, 2
    s_add_u32 s36, s36, s16
    s_mul_i32 s36, s36, 108
    s_mul_i32 s37, s35, 36
    s_add_u32 s36, s36, s37
    s_lshl_b32 s36, s36, 10
    s_add_u32 s40, s36, {WS_H}
    s_mul_i32 s41, s35, {576*1280}
    s_mul_i32 s36, s16, {16*1280}
    s_add_u32 s41, s41, s36
    s_lshl_b32 s36, s34, 8
    s_add_u32 s41, s41, s36
    v_lshrrev_b32 v3, 4, v1
    v_lshlrev_b32 v4, 2, v3
    v_and_b32 v5, 15, v1
    v_xor_b32 v4, v4, v5
    s_movk_i32 s36, 1280
    v_mul_u32_u24 v3, s36, v3
    v_lshl_add_u32 v3, v4, 4, v3
    v_add_u32 v4, {5120-1024}, v3
    v_add_u32 v5, {2*(5120-1024)}, v3
    v_add_u32 v13, {3*(5120-1024)}, v3
    s_lshl_b32 s42, s16, 12
    s_add_u32 s43, s42, 16384
    s_mov_b32 s45, 0
    s_mov_b32 s30, 0
    s_mov_b32 s46, 0
    s_cmp_lt_u32 s57, 30
    s_cselect_b32 s47, 9, 0
    s_cselect_b32 s50, {WS_SIZE}, 0
    s_cselect_b32 s54, 2211840, 0
    s_mov_b32 s48, s18
    s_and_b32 s49, s19, 0xffff
    s_mov_b32 s51, 0x20000
    s_mov_b32 s55, 0x20000
    s_mov_b32 m0, s43
    s_mov_b32 s52, s6
    s_and_b32 s53, s7, 0xffff
    """)
    a.c("s33 = row group (128 rows), s34 = col group (128 cols), s35 = k split, s47 = stages of this WG")
    def gw():
        a(f"""
        buffer_load_dwordx4 v3, s[52:55], s41 offen lds
        buffer_load_dwordx4 v4, s[52:55], s41 offen offset:1024 lds
        buffer_load_dwordx4 v5, s[52:55], s41 offen offset:2048 lds
        buffer_load_dwordx4 v13, s[52:55], s41 offen offset:3072 lds
        s_add_u32 s41, s41, {64*1280}
        """)
    def gh():
        a(f"""
        buffer_load_dwordx4 v2, s[48:51], s40 offen{SCL} lds
        buffer_load_dwordx4 v2, s[48:51], s40 offen offset:1024{SCL} lds
        buffer_load_dwordx4 v2, s[48:51], s40 offen offset:2048{SCL} lds
        buffer_load_dwordx4 v2, s[48:51], s40 offen offset:3072{SCL} lds
        s_add_u32 s40, s40, 4096
        """)
    gw()
    a(f"""
    s_and_b32 s36, s16, 1
    s_lshr_b32 s37, s16, 1
    s_lshl_b32 s38, s36, 13
    v_add_u32 v6, s38, v2
    v_lshrrev_b32 v8, 5, v1
    v_bfe_u32 v9, v1, 2, 2
    v_lshl_add_u32 v8, v8, 2, v9
    v_lshlrev_b32 v8, 8, v8
    s_lshl_b32 s38, s37, 1
    v_xor_b32 v9, s38, v9
    v_lshl_add_u32 v8, v9, 6, v8
    v_bfe_u32 v9, v1, 4, 1
    v_lshl_add_u32 v8, v9, 5, v8
    v_and_b32 v9, 3, v1
    v_lshl_add_u32 v8, v9, 3, v8
    v_add_u32 v7, 16384, v8
    v_xor_b32 v8, 64, v7
    """)
    for r in range(64, 128, 2): a(f"v_mov_b64 v[{r}:{r+1}], 0")
    a(f"""
    s_mov_b32 m0, s42
    s_barrier
    s_waitcnt vmcnt(0)
    s_barrier
    s_barrier
    s_barrier
    """)
    gh()
    a(f"""
    s_mov_b32 s44, {GSL}
    s_branch {L}_gin
    {L}_gloop:
    s_barrier
    {L}_gin:
    s_add_u32 s46, s46, 1
    s_cmp_ge_u32 s46, s47
    s_cbranch_scc1 {L}_gnod
    s_add_u32 m0, s44, s42
    s_nop 0
    """)
    gh()
    a("s_add_u32 m0, s44, s43")
    a(f"s_add_u32 s44, s44, {GSL}")
    gw()
    a(f"""
    s_cmp_ge_u32 s44, {3*GSL}
    s_cselect_b32 s44, 0, s44
    {L}_gnod:
    s_sub_u32 s36, s30, 1
    s_cmp_ge_u32 s36, s47
    s_cbranch_scc1 {L}_gskip
    v_add_u32 v10, s45, v6
    v_add_u32 v11, s45, v7
    v_add_u32 v12, s45, v8
    s_add_u32 s45, s45, {GSL}
    s_cmp_ge_u32 s45, {3*GSL}
    s_cselect_b32 s45, 0, s45
    """)
    FB = [16, 32]
    def rl(ks):
        b = FB[ks & 1]
        return [f"ds_read_b128 {vr(b,4)}, v10 offset:{ks*1024}",
                f"ds_read_b64_tr_b16 {vr(b+8,2)}, v11 offset:{ks*4096}",
                f"ds_read_b64_tr_b16 {vr(b+10,2)}, v11 offset:{ks*4096+2048}",
                f"ds_read_b64_tr_b16 {vr(b+12,2)}, v12 offset:{ks*4096}",
                f"ds_read_b64_tr_b16 {vr(b+14,2)}, v12 offset:{ks*4096+2048}",
                f"ds_read_b128 {vr(b+4,4)}, v10 offset:{ks*1024+4096}"]
    def ml(ks):
        b = FB[ks & 1]
        x0, x1, w0, w1 = vr(b,4), vr(b+4,4), vr(b+8,4), vr(b+12,4)
        return [f"{M} v[64:79], {w0}, {x0}, v[64:79]", f"{M} v[80:95], {w1}, {x0}, v[80:95]",
                f"{M} v[96:111], {w0}, {x1}, v[96:111]", f"{M} v[112:127], {w1}, {x1}, v[112:127]"]
    for x in rl(0): a(x)
    for ks in range(4):
        a("s_waitcnt lgkmcnt(0)")
        r = rl(ks + 1) if ks < 3 else []
        for i, m in enumerate(ml(ks)):
            a(m)
            for x in r[2*i:2*i+2]: a(x)
    a(f"""
    s_cmp_lg_u32 s30, s47
    s_cbranch_scc1 {L}_gskip
    s_lshl_b32 s36, s35, 6
    s_lshl_b32 s37, s33, 2
    s_add_u32 s36, s36, s37
    s_and_b32 s37, s16, 1
    s_lshl_b32 s37, s37, 1
    s_add_u32 s36, s36, s37
    s_mul_i32 s36, s36, 40
    s_lshl_b32 s37, s34, 3
    s_add_u32 s36, s36, s37
    s_lshr_b32 s37, s16, 1
    s_lshl_b32 s37, s37, 2
    s_add_u32 s36, s36, s37
    s_lshl_b32 s36, s36, 10
    s_add_u32 s36, s36, {WS_B}
    s_add_u32 s37, s36, 40960
    s_nop 7
    """)
    for u in range(4):
        A = 64 + 16*u
        for qp in range(2):
            O = 16 + 4*((2*u+qp) % 8)
            for i in range(4):
                a(f"v_cvt_pk_bf16_f32 v{O+i}, v{A+8*qp+2*i}, v{A+8*qp+2*i+1}")
            a(f"buffer_store_dwordx4 {vr(O,4)}, v2, s[8:11], s{36 + (u>>1)} offen offset:{(u&1)*2048 + qp*1024} sc1")
    a(f"""
    s_branch {L}_gend
    {L}_gskip:
    s_add_u32 s30, s30, 1
    s_cmp_ge_u32 s30, 10
    s_cbranch_scc1 {L}_gend
    s_cmp_lt_u32 s46, s47
    s_cbranch_scc1 {L}_gw8
    s_waitcnt vmcnt(0)
    {L}_gw8:
    s_waitcnt vmcnt(8)
    s_branch {L}_gloop
    {L}_gend:
    s_barrier
    s_waitcnt vmcnt(0)
    s_barrier
    s_barrier
    """)

    a(f"""
    {L}_p3:
    s_load_dwordx2 s[4:5], s[0:1], 80
    s_lshl_b32 s17, s20, 3
    s_and_b32 s16, s21, 3
    s_lshl_b32 s16, s16, 1
    s_add_u32 s17, s17, s16
    s_lshr_b32 s16, s21, 2
    s_and_b32 s36, s22, 1
    s_lshr_b32 s39, s22, 1
    s_add_u32 s36, s17, s36
    s_mul_i32 s36, s36, 40
    s_mul_i32 s37, s39, 10
    s_add_u32 s36, s36, s37
    s_lshl_b32 s36, s36, 10
    s_add_u32 s36, s36, {WS_O}
    s_add_u32 s37, s36, 4096
    s_add_u32 s38, s36, 8192
    v_lshrrev_b32 v8, 5, v1
    v_bfe_u32 v9, v1, 2, 2
    v_lshl_add_u32 v8, v8, 2, v9
    v_mul_u32_u24 v8, 192, v8
    v_bfe_u32 v9, v1, 4, 1
    v_lshl_add_u32 v8, v9, 5, v8
    v_and_b32 v9, 3, v1
    v_lshl_add_u32 v8, v9, 3, v8
    s_lshl_b32 s48, s39, 2
    s_mul_i32 s49, s39, 30720
    v_add_u32 v8, s49, v8
    v_lshlrev_b32 v7, 3, v1
    v_and_b32 v6, 31, v1
    s_lshl_b32 s39, s17, 5
    v_add_u32 v6, s39, v6
    v_lshrrev_b32 v4, 3, v6
    v_lshlrev_b32 v4, 7, v4
    v_and_b32 v9, 7, v1
    v_lshl_add_u32 v4, v9, 2, v4
    s_mov_b32 s40, {WS_G}
    s_mul_i32 s41, s16, 10
    s_add_u32 s41, s41, s22
    s_lshr_b32 s42, s41, 1
    s_lshl_b32 s42, s42, 10
    s_and_b32 s43, s41, 1
    s_lshl_b32 s43, s43, 3
    s_add_u32 s42, s42, s43
    s_mul_i32 s43, s17, 40960
    s_add_u32 s42, s42, s43
    s_add_u32 s42, s42, {WS_B}
    v_mov_b32 v22, {NONCE}
    s_lshr_b32 s46, s22, 1
    s_lshl_b32 s45, 1, s46
    """)
    a.c("s17 = first row block of the tile, s16 = column group; final items: quad = wave, both row blocks")
    def bg():
        a("buffer_load_dword v140, v4, s[8:11], s40 offen sc1")
        a("buffer_load_dword v141, v4, s[8:11], s40 offen offset:512 sc1")
        for j in range(2):
            for sk in range(3):
                a(f"s_add_u32 s43, s42, {j*40960 + sk*64*40960}")
                a(f"buffer_load_dwordx2 {vr(128+6*j+2*sk,2)}, v2, s[8:11], s43 offen sc1")
    a(f"""
    s_movk_i32 s43, 1280
    v_mul_lo_u32 v6, v6, s43
    v_lshrrev_b32 v9, 5, v1
    v_lshl_add_u32 v6, v9, 3, v6
    s_lshl_b32 s41, s41, 4
    s_add_u32 s44, s41, 40960
    s_waitcnt lgkmcnt(0)
    """)
    srd(a, 12, 4, 5, 2621440)
    for r in range(64, 112, 2): a(f"v_mov_b64 v[{r}:{r+1}], 0")
    WF = [112, 144]
    def wr(ks):
        b = WF[ks & 1]
        return [f"ds_read_b64_tr_b16 {vr(b+4*cb+2*t,2)}, v8 offset:{ks*3072 + t*1536 + 64*cb}" for cb in range(3) for t in range(2)]
    a(f"""
    s_mov_b32 s70, {SPIN}
    s_cmp_lg_u32 s22, 8
    s_cbranch_scc1 {L}_p3w
    s_mov_b64 exec, 0xf
    {L}_p3poll:
    buffer_load_dword v24, v3, s[8:11], s35 offen sc1
    s_sub_u32 s70, s70, 1
    s_cselect_b32 s47, -1, 0
    s_waitcnt vmcnt(0)
    v_cmp_eq_u32 vcc, 8, v24
    s_or_b32 s47, s47, vcc_lo
    s_or_b32 s47, s47, 0xfffffff0
    v_mov_b32 v23, s47
    ds_write_b32 v22, v23 offset:8
    s_sleep {E("PSLEEP", "2")}
    s_cmp_lg_u32 s47, -1
    s_cbranch_scc1 {L}_p3poll
    """)
    stamp(a, 6)
    a(f"""
    s_mov_b64 exec, -1
    {L}_p3w:
    ds_read_b64 v[10:11], v22 offset:8
    s_waitcnt lgkmcnt(0)
    v_readfirstlane_b32 s47, v10
    v_readfirstlane_b32 s46, v11
    s_or_b32 s47, s47, 0x10
    s_and_b32 s47, s47, s45
    s_xor_b32 s47, s47, s45
    s_xor_b32 s46, s46, 2
    s_or_b32 s47, s47, s46
    s_cmp_eq_u32 s47, 0
    s_cbranch_scc1 {L}_p3go
    s_sleep 1
    s_branch {L}_p3w
    {L}_p3go:
    s_cmp_lt_u32 s22, 8
    s_cbranch_scc1 {L}_p3m
    """)
    bg()
    a(f"""
    s_branch {L}_p3r
    {L}_p3m:
    """)
    if not E("ES"): stamp(a, 6)
    OF = 24
    for ks in range(10):
        for sl in range(2):
            a(f"buffer_load_dwordx2 {vr(OF+4*ks+2*sl,2)}, v7, s[8:11], s{36+ks//4} offen offset:{(ks%4)*1024+512*sl}{E('OSC', ' sc1')}")
    for x in wr(0): a(x)
    bg()
    for ks in range(10):
        a(f"s_waitcnt vmcnt({26-2*ks}) lgkmcnt(0)")
        r = wr(ks+1) if ks < 9 else []
        b = WF[ks & 1]
        for cb in range(3):
            a(f"{M} {vr(64+16*cb,16)}, {vr(b+4*cb,4)}, {vr(OF+4*ks,4)}, {vr(64+16*cb,16)}")
            for x in r[2*cb:2*cb+2]: a(x)
    a(f"""
    v_add_u32 v23, s48, v22
    v_mov_b32 v9, 1
    s_mov_b64 exec, 1
    ds_add_u32 v23, v9 offset:16
    s_mov_b64 exec, -1
    s_and_b32 s47, s22, 1
    s_mul_i32 s47, s47, 10240
    s_add_u32 s39, s49, s47
    v_add_u32 v5, s39, v2
    {L}_p3pw:
    ds_read_b32 v9, v23 offset:16
    s_waitcnt lgkmcnt(0)
    v_readfirstlane_b32 s47, v9
    s_cmp_lg_u32 s47, 2
    s_cbranch_scc1 {L}_p3pw
    """)
    for q in range(10):
        a(f"ds_write_b128 v5, {vr(64+4*q,4)} offset:{1024*q}")
    a(f"""
    s_waitcnt lgkmcnt(0)
    {L}_p3r:
    """)
    if STAMP:
        a(f"s_cmp_lt_u32 s22, 4\ns_cbranch_scc1 {L}_st4")
        stamp(a, 4)
        a(f"{L}_st4:")
    a(f"""
    s_lshl_b32 s39, s22, 10
    v_add_u32 v5, s39, v2
    v_add_u32 v7, 61440, v5
    s_barrier
    """)
    for j in range(2):
        for kq in range(4):
            a(f"ds_read_b128 {vr(16+16*j+4*kq,4)}, v{5 if kq < 2 else 7} offset:{j*10240 + (kq%2)*30720}")
    a("s_waitcnt vmcnt(0)")
    for j in range(2):
        a(f"""
        v_sub_f32 v{142+j}, 1.0, v{140+j}
        v_cvt_pk_bf16_f32 v{142+j}, v{142+j}, v{142+j}
        v_lshlrev_b32 v{142+j}, 16, v{142+j}
        """)
        B = 128 + 6*j
        for i in range(4):
            ex = (lambda d, r: f"v_lshlrev_b32 v{d}, 16, v{r}") if i % 2 == 0 else (lambda d, r: f"v_and_b32 v{d}, 0xffff0000, v{r}")
            a(f"""
            {ex(56+4*j+i, B + i//2)}
            {ex(55, B + 2 + i//2)}
            v_add_f32 v{56+4*j+i}, v{56+4*j+i}, v55
            {ex(55, B + 4 + i//2)}
            v_add_f32 v{56+4*j+i}, v{56+4*j+i}, v55
            """)
    a("s_waitcnt lgkmcnt(0)")
    for j in range(2):
        P = 16 + 16*j
        for i in range(4):
            a(f"""
            v_add_f32 v{P+i}, v{P+i}, v{P+4+i}
            v_add_f32 v{P+8+i}, v{P+8+i}, v{P+12+i}
            v_add_f32 v{P+i}, v{P+i}, v{P+8+i}
            v_mul_f32 v{P+i}, v{140+j}, v{P+i}
            v_fmac_f32 v{P+i}, v{142+j}, v{56+4*j+i}
            """)
        a(f"""
        v_cvt_pk_bf16_f32 v{P}, v{P}, v{P+1}
        v_cvt_pk_bf16_f32 v{P+1}, v{P+2}, v{P+3}
        buffer_store_dwordx2 {vr(P,2)}, v6, s[12:15], s{41 if j == 0 else 44} offen
        """)
    stamp_out(a, 7, 0)
    a(f"{L}_end:")
    a("s_endpgm")
    kernel_desc(a, name, 160, 100)
```

```python
from common import *
import math
from k2 import (M, QA1, QA2, QB1, QB2, KVB, SA, SB, OA, OB, PA, PB, split3, exp_groups, pv, CH)
def qk(Sd, kb, q1, q2):
    return [f"{M} {vr(Sd,16)}, {vr(kb,4)}, {vr(q1,4)}, 0",
            f"v_mfma_f32_32x32x8_bf16 {vr(Sd,16)}, {vr(kb+4,2)}, {vr(q2,2)}, {vr(Sd,16)}"]
LOG2E = 1.4426950408889634
QSCALE = LOG2E / math.sqrt(20.0)
E = os.environ.get
XSL = 32768
WB = 3 * XSL
WSL = 10240
QST = WB
KVR = 163840 - 3 * CH
GSL = 32768
NONCE = 122880
BREG = True
F_LDS = 163840
F_BLOCK = 640
SPIN = int(E("SPIN", 1 << 16))
SC = " sc1"
SCL = E('SCL', ' sc1')

_pc = [0]
def poll(a, L, voff, soff):
    _pc[0] += 1
    T = f"{L}_poll{_pc[0]}"
    a(f"""
    s_mov_b32 s70, {SPIN}
    {T}:
    buffer_load_dwordx2 v[24:25], {voff}, s[8:11], {soff} offen sc1
    s_sub_u32 s70, s70, 1
    s_cbranch_scc1 {T}_ok
    s_waitcnt vmcnt(0)
    v_cmp_ne_u64 vcc, v[24:25], v[20:21]
    s_cmp_eq_u64 vcc, 0
    s_cbranch_scc1 {T}_ok
    s_sleep {E("PSLEEP", "2")}
    s_branch {T}
    {T}_ok:
    """)

def flag(a, soff):
    a(f"""
    s_mov_b64 exec, 1
    buffer_store_dwordx2 v[20:21], v5, s[8:11], {soff} offen sc1
    s_mov_b64 exec, -1
    """)

def aslot(a, S, P, mf, pre=(), rd=None):
    g = exp_groups(S, P)
    flat = [x for gg in g for x in gg]
    pos = [int(x) for x in E("MPOS", "0,5,11,17").split(",")]
    for p in pre: a(p)
    k = 0
    for i, x in enumerate(flat):
        while k < 4 and pos[k] == i:
            a(mf[k])
            if rd: a(rd[k])
            k += 1
        a(x)

def gen(a, name):
    kernel_head(a, name)
    L = name
    a(f"""
    s_cmp_ge_u32 s2, 256
    s_cbranch_scc1 {L}_end
    s_load_dwordx8 s[4:11], s[0:1], 0
    s_load_dwordx4 s[12:15], s[0:1], 48
    s_load_dwordx2 s[18:19], s[0:1], 96
    """)
    stamp(a, 0)
    a(f"""
    v_lshrrev_b32 v2, 6, v0
    v_and_b32 v1, 63, v0
    v_readfirstlane_b32 s22, v2
    s_and_b32 s47, s2, 7
    s_lshr_b32 s51, s2, 3
    s_and_b32 s20, s47, 1
    s_lshl_b32 s20, s20, 2
    s_and_b32 s67, s51, 3
    s_add_u32 s20, s20, s67
    s_lshr_b32 s21, s47, 1
    s_lshr_b32 s68, s51, 2
    s_lshl_b32 s52, s68, 2
    s_add_u32 s21, s21, s52
    s_cmp_lt_u32 s22, 8
    s_cbranch_scc1 {L}_comp
    """)
    a.c("s20 = row group (256 rows), s21 = cg = head = column group, s22 = wave; kept for the whole kernel, as is s[18:19]")
    a(f"""
    s_and_b32 s63, s22, 1
    v_lshrrev_b32 v10, 3, v1
    v_lshrrev_b32 v11, 4, v1
    v_and_b32 v12, 7, v1
    v_xor_b32 v12, v12, v11
    v_xor_b32 v11, 4, v12
    s_movk_i32 s54, 1280
    v_mul_u32_u24 v10, s54, v10
    v_lshl_add_u32 v15, v11, 4, v10
    v_lshl_add_u32 v10, v12, 4, v10
    s_mul_i32 s53, s20, {256*1280}
    s_mul_i32 s55, s63, {64*1280}
    s_add_u32 s53, s53, s55
    """)
    for i in range(8):
        a(f"s_add_u32 s55, s53, {i*10240 - 1024*(i&3) + 4096}")
        a(f"v_add_u32 v{2+i}, s55, v{15 if i & 1 else 10}")
    a(f"""
    s_add_u32 s52, s67, s68
    s_and_b32 s52, s52, 3
    """)
    ORD = E("ORD", "b3")
    def order(t):
        if ORD == "lat4": return [(n + (5*t >> 1)) % 10 for n in range(10)]
        if ORD == "lat2": return [(n + 5*(t & 1)) % 10 for n in range(10)]
        if ORD == "b2": return [n ^ (t & 1) for n in range(10)]
        if ORD == "b4": return [(n & ~3) | ((n + t) & 3) if n < 8 else 8 + ((n + t) & 1) for n in range(10)]
        if ORD == "b5": return [5*(n // 5) + ((n % 5) + [0, 1, 2, 4][t]) % 5 for n in range(10)]
        if ORD == "b3": return [3*(n // 3) + ((n % 3) + t) % 3 if n < 9 else 9 for n in range(10)]
        if ORD == "h1": return [((n ^ (t & 1)) + 4*(t >> 1)) % 10 for n in range(10)]
        if ORD == "h2": return [(n + 2*(t>>1)) % 4 ^ (t & 1) if n < 4 else 4 + 3*((n-4)//3) + ((n-4) % 3 + t) % 3 for n in range(10)]
        if ORD == "h3": return [n ^ (t & 1) if n < 2 else (2 + (n - 2 + t) % 4 if n < 6 else 6 + (n - 6 + t) % 4) for n in range(10)]
        if ORD == "h4": return [0 if n == 0 else 1 + 3*((n-1)//3) + ((n-1) % 3 + t) % 3 for n in range(10)]
        if ORD == "none": return list(range(10))
    for t in range(4):
        tab = sum(p << (4*n) for n, p in enumerate(order(t)))
        if t == 0:
            a(f"s_mov_b32 s60, {tab & 0xffffffff}\ns_mov_b32 s61, {tab >> 32}")
        else:
            a(f"s_cmp_eq_u32 s52, {t}\ns_cselect_b32 s60, {tab & 0xffffffff}, s60\ns_cselect_b32 s61, {tab >> 32}, s61")
    a(f"""
    s_and_b32 s52, s60, 15
    s_lshl_b32 s41, s52, 7
    s_lshl_b32 s48, s63, 13
    s_mov_b32 m0, s48
    v_lshrrev_b32 v13, 3, v1
    s_movk_i32 s62, 3456
    v_mul_u32_u24 v13, s62, v13
    v_and_b32 v14, 7, v1
    v_bfe_u32 v15, v1, 4, 1
    v_lshlrev_b32 v15, 2, v15
    v_xor_b32 v14, v14, v15
    v_lshl_add_u32 v13, v14, 4, v13
    s_lshl_b32 s53, s21, 7
    v_add_u32 v10, s53, v13
    v_add_u32 v11, {8*3456-1024}, v10
    v_add_u32 v12, {2*(8*3456-1024)}, v10
    v_add_u32 v13, {3*(8*3456-1024)}, v10
    v_lshrrev_b32 v14, 2, v1
    v_mul_u32_u24 v14, s54, v14
    v_and_b32 v15, 3, v1
    v_lshl_add_u32 v14, v15, 4, v14
    s_mul_i32 s53, s21, 40
    s_mul_i32 s55, s63, {16*1280}
    s_add_u32 s53, s53, s55
    v_add_u32 v14, s53, v14
    v_lshlrev_b32 v15, 4, v1
    s_mov_b32 s26, {2621440+4096}
    s_mov_b32 s27, 0x20000
    s_mov_b32 s30, 2211840
    s_mov_b32 s31, 0x20000
    s_mov_b32 s34, 819200
    s_mov_b32 s35, 0x20000
    s_sub_u32 s53, s21, 27
    s_cmp_lt_u32 s53, 2
    s_cselect_b32 s38, 25600, 0
    s_mov_b32 s39, 0x20000
    s_lshl_b32 s52, s52, 1
    s_mul_i32 s42, s52, {32*3456}
    s_mul_i32 s43, s52, {32*1280}
    s_mul_i32 s40, s52, 1280
    s_lshl_b32 s51, s63, 10
    s_add_u32 s40, s40, s51
    s_lshl_b32 s49, s63, 12
    s_add_u32 s49, s49, {WB}
    s_add_u32 s50, s51, {WB+8192}
    s_add_u32 s56, s51, {WB}
    s_add_u32 s45, s48, 16384
    s_add_u32 s54, s41, 163840
    s_mov_b32 s44, 0
    s_mov_b32 s46, 0
    s_mov_b32 s58, 2
    s_waitcnt lgkmcnt(0)
    s_sub_u32 s24, s4, 4096
    s_subb_u32 s25, s5, 0
    s_and_b32 s25, s25, 0xffff
    """)
    a.c("x voffsets carry +4096 so that they stay non negative; the SRD base carries -4096")
    def xdma(so):
        a(f"""
        buffer_load_dwordx4 v2, s[24:27], {so} offen lds
        buffer_load_dwordx4 v3, s[24:27], {so} offen offset:1024 lds
        buffer_load_dwordx4 v4, s[24:27], {so} offen offset:2048 lds
        buffer_load_dwordx4 v5, s[24:27], {so} offen offset:3072 lds
        s_add_u32 m0, m0, 4096
        s_nop 0
        buffer_load_dwordx4 v6, s[24:27], {so} offen lds
        buffer_load_dwordx4 v7, s[24:27], {so} offen offset:1024 lds
        buffer_load_dwordx4 v8, s[24:27], {so} offen offset:2048 lds
        buffer_load_dwordx4 v9, s[24:27], {so} offen offset:3072 lds
        """)
    xdma("s41")
    a(f"""
    s_cmp_eq_u32 s63, 1
    s_cselect_b32 s28, s14, s12
    s_cselect_b32 s29, s15, s13
    s_and_b32 s29, s29, 0xffff
    s_mov_b32 s32, s6
    s_and_b32 s33, s7, 0xffff
    s_cmp_eq_u32 s21, 27
    s_cselect_b32 s36, s8, s10
    s_cselect_b32 s37, s9, s11
    s_and_b32 s37, s37, 0xffff
    s_cmp_ge_u32 s21, 27
    s_cbranch_scc1 {L}_ldl_issue
    """)
    a.c("s45/s54 next x half (lds, soffset), s41 k byte offset of the pair, s42 W, s43 wq, s40 wk/wv soffsets, s44 W slot")
    for tag, D in (("ldf", 13), ("ldl", 10)):
        a(f"""
        {L}_{tag}_issue:
        s_mov_b32 m0, s45
        s_add_u32 s46, s46, 1
        """)
        xdma("s54")
        if tag == "ldf":
            a(f"""
            s_add_u32 m0, s44, s49
            s_add_u32 s45, s45, 16384
            buffer_load_dwordx4 v10, s[28:31], s42 offen lds
            buffer_load_dwordx4 v11, s[28:31], s42 offen offset:1024 lds
            buffer_load_dwordx4 v12, s[28:31], s42 offen offset:2048 lds
            buffer_load_dwordx4 v13, s[28:31], s42 offen offset:3072 lds
            """)
        else:
            a(f"""
            s_add_u32 m0, s44, s56
            s_add_u32 s45, s45, 16384
            buffer_load_dwordx4 v15, s[36:39], s40 offen lds
            """)
        a(f"""
        s_add_u32 m0, s44, s50
        s_lshr_b32 s52, s46, 1
        buffer_load_dwordx4 v14, s[32:35], s43 offen lds
        s_lshl_b32 s52, s52, 2
        s_lshr_b64 s[64:65], s[60:61], s52
        s_and_b32 s52, s64, 15
        s_lshl_b32 s52, s52, 1
        s_and_b32 s53, s46, 1
        s_add_u32 s52, s52, s53
        s_mul_i32 s42, s52, {32*3456}
        s_mul_i32 s43, s52, {32*1280}
        s_mul_i32 s40, s52, 1280
        s_add_u32 s40, s40, s51
        s_lshl_b32 s52, s53, 2
        s_lshr_b32 s52, s64, s52
        s_and_b32 s52, s52, 15
        s_lshl_b32 s54, s52, 7
        s_cmp_eq_u32 s53, 0
        s_cselect_b32 s52, 163840, 0
        s_add_u32 s54, s54, s52
        s_add_u32 s44, s44, {WSL}
        s_cmp_ge_u32 s44, {4*WSL}
        s_cselect_b32 s44, 0, s44
        s_cmp_ge_u32 s45, {WB}
        s_cselect_b32 s45, s48, s45
        s_cmp_eq_u32 s46, 19
        s_cselect_b32 s26, 0, s26
        s_cmp_lt_u32 s46, s58
        s_cbranch_scc1 {L}_{tag}_issue
        s_waitcnt vmcnt({D})
        s_barrier
        s_add_u32 s58, s58, 1
        s_cmp_le_u32 s58, 20
        s_cbranch_scc1 {L}_{tag}_issue
        """)
        if tag == "ldf": a(f"s_branch {L}_ld_tail")
    a(f"""
    {L}_ld_tail:
    s_load_dwordx2 s[4:5], s[0:1], 32
    s_load_dwordx2 s[6:7], s[0:1], 88
    v_mov_b32 v5, 0
    s_waitcnt vmcnt(0) lgkmcnt(0)
    s_barrier
    global_load_dwordx2 v[20:21], v5, s[6:7] sc0 sc1
    s_barrier
    """)
    srd(a, 8, 18, 19, WS_SIZE)
    srd(a, 12, 18, 19, WS_KV + 64*3072)
    a(f"""
    v_lshlrev_b32 v2, 4, v1
    v_lshlrev_b32 v3, 7, v1
    s_mov_b32 s70, {SPIN}
    s_branch {L}_l_non2
    {L}_l_non:
    global_load_dwordx2 v[20:21], v5, s[6:7] sc0 sc1
    {L}_l_non2:
    s_sub_u32 s70, s70, 1
    s_cbranch_scc1 {L}_l_non3
    s_waitcnt vmcnt(0)
    v_cmp_ne_u32 vcc, 0, v20
    s_cmp_eq_u64 vcc, 0
    s_cbranch_scc1 {L}_l_non
    {L}_l_non3:
    s_lshl_b32 s33, s20, 5
    s_add_u32 s33, s33, s21
    s_lshl_b32 s34, s33, 7
    s_add_u32 s34, s34, {WS_F}
    s_lshl_b32 s35, s20, 12
    s_add_u32 s35, s35, {WS_F}
    s_sub_u32 s53, s21, 27
    s_cmp_ge_u32 s53, 2
    s_cbranch_scc1 {L}_l_nokv
    s_barrier
    s_cmp_lg_u32 s63, 0
    s_cbranch_scc1 {L}_l_nokv
    s_lshl_b32 s52, s20, 1
    s_add_u32 s52, s52, s53
    s_lshl_b32 s52, s52, 7
    s_add_u32 s52, s52, {WS_F+FQ}
    """)
    flag(a, "s52")
    a(f"""
    {L}_l_nokv:
    s_cmp_lt_u32 s21, 27
    s_cbranch_scc1 {L}_l_now
    s_cmp_eq_u32 s63, 0
    s_cbranch_scc1 {L}_l_now
    s_load_dwordx2 s[16:17], s[0:1], 64
    s_mul_i32 s52, s20, 5
    s_add_u32 s52, s52, s53
    s_mul_i32 s52, s52, {7*8192}
    s_waitcnt lgkmcnt(0)
    s_mov_b32 s56, s16
    s_and_b32 s57, s17, 0xffff
    s_mov_b32 s58, 2211840
    s_mov_b32 s59, 0x20000
    s_mov_b32 s54, 7
    {L}_l_warm:
    buffer_load_dword v31, v3, s[56:59], s52 offen
    s_add_u32 s52, s52, 8192
    s_sub_u32 s54, s54, 1
    s_cmp_lg_u32 s54, 0
    s_cbranch_scc1 {L}_l_warm
    {L}_l_now:
    s_mul_i32 s24, s63, 6144
    s_add_u32 s30, s24, {WS_KV}
    s_add_u32 s31, s30, 4096
    s_add_u32 s24, s24, {KVR}
    s_mov_b32 s25, {CH}
    s_mov_b32 s52, {WS_F+FQ}
    s_mov_b64 exec, 0xffff
    """)
    a.c("s34 = own flag line, s35 = flag lines of this row group; s30/s31 kv source, s24 + s25 kv destination")
    stamp(a, 1)
    poll(a, L, "v3", "s52")
    a("s_mov_b64 exec, -1")
    stamp(a, 2)
    def kv():
        a(f"""
        s_add_u32 m0, s25, s24
        s_add_u32 s25, s25, {CH}
        buffer_load_dwordx4 v2, s[12:15], s30 offen{SCL} lds
        buffer_load_dwordx4 v2, s[12:15], s30 offen offset:1024{SCL} lds
        buffer_load_dwordx4 v2, s[12:15], s30 offen offset:2048{SCL} lds
        buffer_load_dwordx4 v2, s[12:15], s30 offen offset:3072{SCL} lds
        s_add_u32 m0, m0, 4096
        s_add_u32 s30, s30, {CH}
        buffer_load_dwordx4 v2, s[12:15], s31 offen{SCL} lds
        buffer_load_dwordx4 v2, s[12:15], s31 offen offset:1024{SCL} lds
        s_add_u32 s31, s31, {CH}
        s_cmp_ge_u32 s25, {3*CH}
        s_cselect_b32 s25, 0, s25
        """)
    a(f"""
    s_mov_b32 m0, {QST+6144}
    s_mov_b32 s52, {WS_KV+1024+63*8+4}
    v_mul_u32_u24 v6, 3072, v1
    buffer_load_dword v6, s[8:11], s52 offen{SCL} lds
    """)
    kv(); kv()
    a(f"""
    s_lshr_b32 s38, s21, 2
    s_mul_i32 s38, s38, 160
    s_movk_i32 s39, 5462
    s_movk_i32 s40, 1280
    """)
    for i in range(3):
        a(f"""
        v_add_u32 v6, {64*i}, v1
        v_mul_u32_u24 v7, s39, v6
        v_lshrrev_b32 v7, 16, v7
        v_mul_u32_u24 v8, 12, v7
        v_sub_u32 v8, v6, v8
        v_mul_u32_u24 v7, s40, v7
        v_lshl_add_u32 v7, v8, 4, v7
        v_add_u32 v7, s38, v7
        v_subrev_u32 v{10+i}, {1024*i}, v7
        """)
    srd(a, 40, 4, 5, 819200)
    a(f"""
    s_mul_i32 s44, s63, {20*20480}
    s_mul_i32 s45, s63, {20*3072}
    s_waitcnt vmcnt(6)
    """)
    stamp(a, 3)
    a("s_barrier")
    def bar_kv():
        a("s_waitcnt vmcnt(0)")
        a("s_barrier")
        kv()
    bar_kv()
    a(f"""
    s_cmp_eq_u32 s63, 1
    s_cbranch_scc1 {L}_gate
    s_lshl_b32 s52, s2, 6
    v_add_u32 v6, s52, v1
    v_lshlrev_b32 v6, 7, v6
    buffer_load_dword v30, v6, s[40:43], 0 offen
    v_mov_b32 v6, {NONCE}
    ds_write_b64 v6, v[20:21]
    v_mov_b32 v8, 0
    v_mov_b32 v9, 0
    ds_write_b64 v6, v[8:9] offset:8
    ds_write_b64 v6, v[8:9] offset:16
    ds_write_b64 v6, v[8:9] offset:24
    s_waitcnt vmcnt(1) lgkmcnt(0)
    s_barrier
    """)
    a.c("B1 passed: every wave has drained its h stores")
    flag(a, "s34")
    kv()
    a(f"""
    s_waitcnt vmcnt(0)
    s_branch {L}_gate_done
    {L}_gate:
    s_load_dwordx2 s[16:17], s[0:1], 72
    s_load_dwordx2 s[4:5], s[0:1], 0
    v_and_b32 v16, 7, v1
    v_lshlrev_b32 v16, 4, v16
    v_lshrrev_b32 v17, 3, v1
    s_lshl_b32 s53, s33, 3
    v_add_u32 v18, s53, v17
    s_movk_i32 s54, 1280
    v_mul_lo_u32 v17, v18, s54
    v_add_u32 v17, v17, v16
    s_waitcnt lgkmcnt(0)
    """)
    srd(a, 56, 4, 5, 2621440)
    srd(a, 68, 16, 17, 1280)
    for j in range(10):
        a(f"buffer_load_dwordx4 {vr(72+4*j,4)}, v17, s[56:59], 0 offen offset:{128*j}")
    for j in range(10):
        a(f"buffer_load_dwordx4 {vr(32+4*j,4)}, v16, s[68:71], 0 offen offset:{128*j}")
    a(f"""
    v_lshrrev_b32 v19, 3, v1
    v_lshlrev_b32 v19, 2, v19
    v_mov_b32 v27, {f32(-LOG2E)}
    v_mov_b32 v26, 0
    v_mov_b32 v28, 0
    s_waitcnt vmcnt(20)
    s_barrier
    """)
    kv()
    a("s_waitcnt vmcnt(6)")
    for i in range(0, 40, 2):
        a(f"v_dot2_f32_bf16 v26, v{72+i}, v{32+i}, v26")
        a(f"v_dot2_f32_bf16 v28, v{73+i}, v{33+i}, v28")
    a(f"""
    s_nop 3
    v_add_f32 v26, v26, v28
    s_nop 1
    v_add_f32_dpp v26, v26, v26 quad_perm:[1,0,3,2] row_mask:0xf bank_mask:0xf
    s_nop 1
    v_add_f32_dpp v26, v26, v26 quad_perm:[2,3,0,1] row_mask:0xf bank_mask:0xf
    s_nop 1
    v_add_f32_dpp v26, v26, v26 row_half_mirror row_mask:0xf bank_mask:0xf
    v_cvt_pk_bf16_f32 v26, v26, v26
    v_lshlrev_b32 v26, 16, v26
    v_mul_f32 v26, v27, v26
    v_exp_f32 v26, v26
    s_nop 0
    v_add_f32 v26, 1.0, v26
    v_rcp_f32 v26, v26
    s_nop 0
    v_cvt_pk_bf16_f32 v26, v26, v26
    v_lshlrev_b32 v28, 16, v26
    s_lshl_b32 s53, s33, 7
    s_add_u32 s53, s53, {WS_G}
    v_cmp_eq_u32 vcc, 0, v16
    s_nop 1
    s_mov_b64 exec, vcc
    buffer_store_dword v28, v19, s[8:11], s53 offen sc1
    s_mov_b64 exec, -1
    s_waitcnt vmcnt(1)
    {L}_gate_done:
    s_barrier
    """)
    kv()
    a(f"""
    s_cmp_eq_u32 s63, 1
    s_cbranch_scc1 {L}_l_np
    """)
    a("s_mov_b64 exec, 0x7ffffff")
    poll(a, L, "v3", "s35")
    a(f"""
    s_mov_b64 exec, -1
    {L}_l_np:
    s_mov_b32 s46, 3
    {L}_lloop:
    """)
    bar_kv()
    a(f"""
    s_add_u32 s46, s46, 1
    s_cmp_lt_u32 s46, 14
    s_cbranch_scc1 {L}_lloop
    s_add_u32 s34, s34, {F2}
    s_add_u32 s35, s35, {F2}
    """)
    a.c("barrier 13 passed: G waves are done with their ring")
    def wo(n, tag):
        a(f"""
        s_mov_b32 s47, {n}
        {L}_wo{tag}:
        s_mov_b32 m0, s45
        s_add_u32 s45, s45, 3072
        buffer_load_dwordx4 v10, s[40:43], s44 offen lds
        buffer_load_dwordx4 v11, s[40:43], s44 offen offset:1024 lds
        buffer_load_dwordx4 v12, s[40:43], s44 offen offset:2048 lds
        s_add_u32 s44, s44, 20480
        s_sub_u32 s47, s47, 1
        s_cmp_lg_u32 s47, 0
        s_cbranch_scc1 {L}_wo{tag}
        """)
    wo(8, "a")
    a("s_waitcnt vmcnt(24)")
    a("s_barrier")
    a(f"s_cmp_lg_u32 s63, 0\ns_cbranch_scc1 {L}_l_nf2")
    flag(a, "s34")
    a(f"{L}_l_nf2:")
    wo(8, "b")
    a("s_barrier")
    wo(4, "c")
    a(f"s_cmp_eq_u32 s63, 0\ns_cbranch_scc1 {L}_l_np2")
    a("s_mov_b32 exec_hi, 0")
    poll(a, L, "v3", "s35")
    a(f"{L}_l_np2:")
    a(f"""
    s_mov_b64 exec, 1
    v_mov_b32 v22, {NONCE}
    v_mov_b32 v9, 1
    s_waitcnt vmcnt(0)
    ds_add_u32 v22, v9 offset:12
    s_mov_b64 exec, -1
    s_and_b32 s52, s21, 3
    s_lshl_b32 s52, s52, 9
    s_add_u32 s35, s35, s52
    s_add_u32 s35, s35, {F3-F2}
    s_branch {L}_p3
    """)

    a(f"""
    {L}_comp:
    s_and_b32 s63, s22, 3
    s_lshr_b32 s64, s22, 2
    v_and_b32 v13, 31, v1
    v_lshrrev_b32 v14, 5, v1
    v_bfe_u32 v15, v1, 1, 3
    v_xor_b32 v2, v14, v15
    v_lshlrev_b32 v2, 4, v2
    v_lshl_add_u32 v2, v13, 7, v2
    s_lshl_b32 s52, s63, 13
    s_lshl_b32 s53, s64, 12
    s_add_u32 s52, s52, s53
    v_add_u32 v2, s52, v2
    v_xor_b32 v3, 32, v2
    v_xor_b32 v4, 64, v2
    v_xor_b32 v5, 96, v2
    v_bfe_u32 v15, v1, 2, 2
    v_lshlrev_b32 v7, 3, v14
    v_add_u32 v7, v7, v15
    v_mul_u32_u24 v9, 40, v7
    v_lshlrev_b32 v8, 6, v7
    v_lshlrev_b32 v7, 7, v7
    v_lshrrev_b32 v16, 1, v15
    v_xor_b32 v16, s64, v16
    v_lshl_add_u32 v7, v16, 6, v7
    v_bfe_u32 v16, v1, 4, 1
    v_and_b32 v17, 3, v1
    v_lshlrev_b32 v16, 5, v16
    v_lshl_add_u32 v16, v17, 3, v16
    v_add_u32 v7, v7, v16
    v_add_u32 v8, v8, v16
    v_add_u32 v9, v9, v16
    v_add_u32 v7, {WB}, v7
    v_add_u32 v8, {WB+8192}, v8
    v_add_u32 v9, {WB}, v9
    s_mov_b32 s44, 0
    s_mov_b32 s45, 0
    s_mov_b32 s46, 0
    """)
    a.c("v2..v5 x frag addr (row block 2rp+cp) for the 4 k steps of a pair; v7 W, v8 wq slice, v9 wk/wv slice addr; s63=rp s64=cp")
    for r in range(64, 144, 2):
        a(f"v_mov_b64 v[{r}:{r+1}], 0")
    a("s_waitcnt lgkmcnt(0)")
    srd(a, 8, 18, 19, WS_SIZE)
    a(f"""
    s_or_b32 s52, s22, s2
    s_cmp_lg_u32 s52, 0
    s_cbranch_scc1 {L}_nonon
    s_load_dwordx2 s[52:53], s[0:1], 88
    s_memrealtime s[54:55]
    v_mov_b32 v148, 0
    s_waitcnt lgkmcnt(0)
    s_or_b32 s54, s54, 1
    v_mov_b32 v144, s54
    v_mov_b32 v145, s55
    s_mov_b64 exec, 1
    global_store_dwordx2 v148, v[144:145], s[52:53] sc0 sc1
    s_mov_b64 exec, -1
    {L}_nonon:
    s_lshr_b32 s52, s21, 4
    s_xor_b32 s53, s22, 1
    s_or_b32 s52, s52, s53
    s_cmp_lg_u32 s52, 0
    s_cbranch_scc1 {L}_noin
    s_lshl_b32 s52, s20, 5
    s_add_u32 s52, s52, s21
    s_lshl_b32 s52, s52, 7
    s_add_u32 s52, s52, {WS_F+F3}
    s_mov_b64 exec, 1
    buffer_store_dword v64, v64, s[8:11], s52 offen sc1
    s_mov_b64 exec, -1
    {L}_noin:
    """)
    if E("CPF", "0") == "1":
        a(f"""
        s_lshr_b32 s52, s2, {3 + int(E("CPFS", "0"))}
        s_xor_b32 s53, s22, 2
        s_or_b32 s52, s52, s53
        s_cmp_lg_u32 s52, 0
        s_cbranch_scc1 {L}_nocpf
        s_getpc_b64 s[52:53]
        {L}_pc:
        s_sub_u32 s52, s52, {L}_pc-{L}
        s_subb_u32 s53, s53, 0
        v_lshlrev_b32 v144, 7, v1
        global_load_dword v145, v144, s[52:53]
        v_add_u32 v144, 8192, v144
        v_cmp_gt_u32 vcc, {L}_end-{L}, v144
        s_nop 1
        s_mov_b64 exec, vcc
        global_load_dword v145, v144, s[52:53]
        s_mov_b64 exec, -1
        {L}_nocpf:
        """)
    a(f"""
    s_cmp_eq_u32 s21, 27
    s_cbranch_scc1 {L}_modeK
    s_cmp_eq_u32 s21, 28
    s_cbranch_scc1 {L}_modeV
    s_cmp_gt_u32 s21, 28
    s_cbranch_scc1 {L}_modeQ
    """)
    XA = [16, 36]
    XC = [56, 57, 58, 59]
    XD = [60, 61, 62, 63]
    def xaddrs(full):
        l = [f"v_add_u32 v{XC[j]}, s45, v{2+j}" for j in range(4)]
        if full: l += [f"v_xor_b32 v{XD[j]}, 4096, v{XC[j]}" for j in range(4)]
        return l + [f"s_add_u32 s45, s45, {XSL}", f"s_cmp_ge_u32 s45, {WB}", "s_cselect_b32 s45, 0, s45"]
    def waddrs(mode):
        l = ["v_add_u32 v12, s44, v8"]
        if mode == 0: l.append("v_add_u32 v11, s44, v7")
        if mode in (1, 2): l.append("v_add_u32 v11, s44, v9")
        return l + [f"s_add_u32 s44, s44, {WSL}", f"s_cmp_ge_u32 s44, {4*WSL}", "s_cselect_b32 s44, 0, s44"]
    def read_list(j, mode):
        ks = j & 1
        b = XA[ks]
        l = [f"ds_read_b128 {vr(b,4)}, v{XC[j]}"]
        if mode == 0:
            l += [f"ds_read_b64_tr_b16 {vr(b+8,2)}, v11 offset:{ks*2048}",
                  f"ds_read_b64_tr_b16 {vr(b+10,2)}, v11 offset:{ks*2048+512}",
                  f"ds_read_b64_tr_b16 {vr(b+12,2)}, v11 offset:{4096+ks*2048}",
                  f"ds_read_b64_tr_b16 {vr(b+14,2)}, v11 offset:{4096+ks*2048+512}",
                  f"ds_read_b128 {vr(b+4,4)}, v{XD[j]}"]
        if mode in (1, 2):
            l += [f"ds_read_b64_tr_b16 {vr(b+8,2)}, v11 offset:{ks*640}",
                  f"ds_read_b64_tr_b16 {vr(b+10,2)}, v11 offset:{ks*640+160}"]
        l += [f"ds_read_b64_tr_b16 {vr(b+16,2)}, v12 offset:{ks*1024}",
              f"ds_read_b64_tr_b16 {vr(b+18,2)}, v12 offset:{ks*1024+256}"]
        return l
    def mfma_list(ks, mode):
        b = XA[ks]
        x0, x1, wg, wu, ws = vr(b,4), vr(b+4,4), vr(b+8,4), vr(b+12,4), vr(b+16,4)
        l = []
        if mode == 0:
            l = [f"{M} v[64:79], {wg}, {x0}, v[64:79]", f"{M} v[80:95], {wu}, {x0}, v[80:95]",
                 f"{M} v[96:111], {wg}, {x1}, v[96:111]", f"{M} v[112:127], {wu}, {x1}, v[112:127]"]
        if mode == 1: l = [f"{M} v[64:79], {wg}, {x0}, v[64:79]"]
        if mode == 2: l = [f"{M} v[64:79], {x0}, {wg}, v[64:79]"]
        l = l + [f"{M} v[128:143], {ws}, {x0}, v[128:143]"]
        if E("HACK16", "0") == "1" and mode == 0:
            import re
            l2 = []
            for m in l:
                b0 = int(re.search(r"v\[(\d+):", m).group(1)); ops = m.split(", ")
                t = f"v_mfma_f32_16x16x32_bf16 {{d}}, {ops[1]}, {ops[2]}, {{d}}"
                l2.append(t.format(d=vr(b0+8*ks,4)) + "\n" + t.format(d=vr(b0+8*ks+4,4)))
            l = l2
        return l
    def half(ml, rl, post):
        n = len(ml)
        if n == 5 and E("P1V", "1") == "1":
            a("s_waitcnt lgkmcnt(2)")
            cuts = [int(x) for x in E("P1CUT", "3,6,8,8").split(",")]
            lo = 0
            for i, m in enumerate(ml):
                if i == 4: a("s_waitcnt lgkmcnt(8)")
                a(m)
                if i < 4:
                    for x in rl[lo:cuts[i]]: a(x)
                    lo = cuts[i]
                if i == 3:
                    for x in post: a(x)
            return
        a("s_waitcnt lgkmcnt(0)")
        per = -(-len(rl) // max(n - 1, 1))
        for i, m in enumerate(ml):
            a(m)
            if n == 1:
                for x in rl + post: a(x)
                continue
            for x in rl[per*i:per*i+per]: a(x)
            if i == n - 2:
                for x in post: a(x)
    for mode, tag in ((0, "full"), (1, "modeK"), (2, "modeV"), (3, "modeQ")):
        a(f"{L}_{tag}:")
        for x in xaddrs(mode == 0) + waddrs(mode): a(x)
        a("s_barrier")
        for x in read_list(0, mode): a(x)
        stamp(a, 1)
        if mode == 0: a(".p2align 6")
        a(f"{L}_{tag}_loop:")
        half(mfma_list(0, mode), read_list(1, mode), waddrs(mode))
        a("s_barrier")
        half(mfma_list(1, mode), read_list(2, mode), [])
        half(mfma_list(0, mode), read_list(3, mode), waddrs(mode) + xaddrs(mode == 0))
        a("s_barrier")
        half(mfma_list(1, mode), read_list(0, mode), ["s_add_u32 s46, s46, 1", "s_cmp_lt_u32 s46, 10"])
        a(f"s_cbranch_scc1 {L}_{tag}_loop")
        stamp(a, 2)
        a(f"""
        s_lshl_b32 s52, s20, 3
        s_lshl_b32 s53, s63, 1
        s_add_u32 s52, s52, s53
        s_add_u32 s52, s52, s64
        v_lshlrev_b32 v2, 4, v1
        """)
        a(f"s_branch {L}_epi{mode}")
    a.c("s52 = global row block of acc set 0 and of the q chain (set 1 is s52 ^ 1)")
    EK = 64
    a(f"""
    {L}_epi1:
    s_mul_i32 s53, s52, 3072
    s_add_u32 s53, s53, {WS_KV}
    s_nop 7
    s_waitcnt lgkmcnt(0)
    """)
    for i in range(4): a(f"v_cvt_pk_bf16_f32 v{20+i}, v{EK+2*i}, v{EK+2*i+1}")
    a(f"buffer_store_dwordx4 v[20:23], v2, s[8:11], s53 offen{SC}")
    a(f"v_cvt_pk_bf16_f32 v24, v{EK+8}, v{EK+9}")
    a(f"v_cvt_pk_bf16_f32 v25, v{EK+10}, v{EK+11}")
    a("v_mov_b32 v26, 0x3f803f80")
    a("v_mov_b32 v27, 0x00003f80")
    a(f"v_mul_f32 v30, v{EK}, v{EK}")
    for i in range(1, 8): a(f"v_fmac_f32 v30, v{EK+i}, v{EK+i}")
    a(f"v_mul_f32 v31, v{EK+8}, v{EK+8}")
    for i in range(9, 12): a(f"v_fmac_f32 v31, v{EK+i}, v{EK+i}")
    a(f"""
    v_cmp_gt_u32 vcc, 32, v1
    s_nop 1
    v_cndmask_b32 v31, 0, v31, vcc
    v_add_f32 v30, v30, v31
    v_mov_b32 v31, v30
    s_nop 1
    v_permlane32_swap_b32 v30, v31
    s_nop 1
    v_add_f32 v30, v30, v31
    """)
    for sh in (1, 2, 4, 8):
        a("s_nop 1")
        a(f"v_max_f32_dpp v30, v30, v30 row_shr:{sh} row_mask:0xf bank_mask:0xf")
    a(f"""
    s_nop 1
    v_max_f32_dpp v30, v30, v30 row_bcast:15 row_mask:0xa bank_mask:0xf
    v_cmp_eq_u32 vcc, 63, v1
    v_and_b32 v30, 0xffff0000, v30
    v_or_b32 v30, 0x3f80, v30
    v_cndmask_b32 v27, v27, v30, vcc
    v_cmp_gt_u32 vcc, 32, v1
    v_lshlrev_b32 v16, 3, v1
    s_nop 0
    v_cndmask_b32 v24, v26, v24, vcc
    v_cndmask_b32 v25, v27, v25, vcc
    buffer_store_dwordx2 v[24:25], v16, s[8:11], s53 offen offset:1024{SC}
    s_branch {L}_kvdone
    {L}_epi2:
    s_mul_i32 s53, s52, 3072
    s_add_u32 s53, s53, {WS_KV+1536}
    v_and_b32 v17, 31, v1
    v_lshrrev_b32 v18, 5, v1
    v_mul_u32_u24 v18, 384, v18
    v_lshl_add_u32 v16, v17, 4, v18
    v_mov_b32 v19, 0x3f803f80
    v_cmp_eq_u32 vcc, 20, v17
    v_cmp_lt_u32 s[54:55], 19, v17
    s_nop 3
    v_cndmask_b32 v19, 0, v19, vcc
    s_waitcnt lgkmcnt(0)
    """)
    for i in range(8): a(f"v_cvt_pk_bf16_f32 v{20+i}, v{EK+2*i}, v{EK+2*i+1}")
    for i in range(8): a(f"v_cndmask_b32 v{20+i}, v{20+i}, v19, s[54:55]")
    a(f"""
    v_cmp_gt_u32 vcc, 24, v17
    s_nop 1
    s_and_b64 exec, exec, vcc
    buffer_store_dwordx4 v[20:23], v16, s[8:11], s53 offen{SC}
    buffer_store_dwordx4 v[24:27], v16, s[8:11], s53 offen offset:768{SC}
    {L}_kvdone:
    s_mov_b64 exec, -1
    s_waitcnt vmcnt(0)
    s_barrier
    s_branch {L}_epi3
    """)
    C0 = -2.0 * 0.7978845608028654 * LOG2E
    C1 = C0 * 0.044715
    a(f"""
    {L}_epi0:
    v_mov_b32 v16, {f32(C0)}
    v_mov_b32 v17, {f32(C1)}
    s_lshl_b32 s54, s21, 12
    s_lshl_b32 s55, s64, 11
    s_add_u32 s54, s54, s55
    s_add_u32 s54, s54, {WS_H}
    s_mul_i32 s53, s52, {108*1024}
    s_add_u32 s53, s53, s54
    s_xor_b32 s55, s52, 1
    s_mul_i32 s55, s55, {108*1024}
    s_add_u32 s54, s54, s55
    s_waitcnt lgkmcnt(0)
    """)
    for j in range(2):
        G, U = 64 + 32*j, 80 + 32*j
        for hf in range(2):
            T = 20
            rs = list(range(8*hf, 8*hf+8))
            for i, r in enumerate(rs): a(f"v_mul_f32 v{T+i}, v{G+r}, v{G+r}")
            for i, r in enumerate(rs): a(f"v_fma_f32 v{T+i}, v{T+i}, v17, v16")
            for i, r in enumerate(rs): a(f"v_mul_f32 v{T+i}, v{G+r}, v{T+i}")
            for i, r in enumerate(rs): a(f"v_exp_f32 v{T+i}, v{T+i}")
            for i, r in enumerate(rs): a(f"v_mul_f32 v{U+r}, v{G+r}, v{U+r}")
            for i, r in enumerate(rs): a(f"v_add_f32 v{T+i}, 1.0, v{T+i}")
            for i, r in enumerate(rs): a(f"v_rcp_f32 v{T+i}, v{T+i}")
            a("s_nop 0")
            for i, r in enumerate(rs): a(f"v_mul_f32 v{T+i}, v{U+r}, v{T+i}")
            O = 28 + 4*(2*j+hf)
            for i in range(4): a(f"v_cvt_pk_bf16_f32 v{O+i}, v{T+2*i}, v{T+2*i+1}")
            a(f"buffer_store_dwordx4 {vr(O,4)}, v2, s[8:11], s{53+j} offen offset:{1024*hf}{SC}")
    a(f"""
    {L}_epi3:
    """)
    if E("ES"): stamp(a, 6)
    a(f"""
    s_nop 7
    v_mov_b32 v144, {f32(QSCALE)}
    s_waitcnt lgkmcnt(0)
    """)
    for i in range(12): a(f"v_mul_f32 v{128+i}, v144, v{128+i}")
    for i in range(6): a(f"v_cvt_pk_bf16_f32 v{QA1+i}, v{128+2*i}, v{129+2*i}")
    a(f"""
    s_mul_i32 s52, s63, 1536
    s_add_u32 s52, s52, {QST}
    v_add_u32 v144, s52, v2
    v_lshl_add_u32 v145, v1, 3, s52
    s_cmp_ge_u32 s22, 4
    s_cbranch_scc1 {L}_gwave
    """)
    a(f"""
    s_setprio {E("APRIO", "1")}
    v_and_b32 v9, 31, v1
    v_lshrrev_b32 v10, 5, v1
    v_add_u32 v3, {KVR}, v2
    v_lshlrev_b32 v4, 3, v1
    v_add_u32 v4, {KVR+1024}, v4
    v_min_u32 v5, 23, v9
    v_mul_u32_u24 v11, 384, v10
    v_lshl_add_u32 v5, v5, 4, v11
    v_add_u32 v5, {KVR+1536}, v5
    v_lshlrev_b32 v146, 2, v1
    v_add_u32 v146, {QST+6144}, v146
    v_add_u32 v6, {CH}, v3
    v_add_u32 v7, {CH}, v4
    v_add_u32 v8, {CH}, v5
    s_mov_b32 s27, {2*CH}
    s_mov_b32 s30, 0
    v_cmp_gt_u32 s[28:29], 32, v1
    v_lshlrev_b32 v60, 3, v9
    v_lshl_add_u32 v60, v10, 8, v60
    s_lshl_b32 s33, s20, 3
    s_lshl_b32 s52, s22, 1
    s_add_u32 s33, s33, s52
    s_mul_i32 s33, s33, 40960
    s_mul_i32 s52, s21, 1280
    s_add_u32 s33, s33, s52
    s_add_u32 s33, s33, {WS_O}
    s_add_u32 s31, s33, 40960
    """)
    a.c("v60 = o store offset, s33/s31 = o image base of block a / b")
    for r in list(range(OA, OA+32, 2)) + list(range(PB, PB+8, 2)) + list(range(KVB[1]+8, KVB[1]+16, 2)):
        a(f"v_mov_b64 v[{r}:{r+1}], 0")
    def qnorm(q1, q2, t, extra=()):
        ex = list(extra) + [""] * 2
        a(f"""
        v_cndmask_b32 v{q2}, 0, v{q2}, s[28:29]
        v_cndmask_b32 v{q2+1}, 0, v{q2+1}, s[28:29]
        v_mov_b32 v{t}, 0
        {ex[0]}
        v_dot2_f32_bf16 v{t}, v{q1}, v{q1}, v{t}
        v_dot2_f32_bf16 v{t}, v{q1+1}, v{q1+1}, v{t}
        v_dot2_f32_bf16 v{t}, v{q1+2}, v{q1+2}, v{t}
        {ex[1]}
        v_dot2_f32_bf16 v{t}, v{q1+3}, v{q1+3}, v{t}
        v_dot2_f32_bf16 v{t}, v{q2}, v{q2}, v{t}
        v_dot2_f32_bf16 v{t}, v{q2+1}, v{q2+1}, v{t}
        """)
    qnorm(QA1, QA2, 147)
    if E("ES"): stamp(a, 3)
    a(f"""
    s_barrier
    ds_read_b32 v146, v146
    ds_read_b128 {vr(QB1,4)}, v144
    ds_read_b64 {vr(QB2,2)}, v145 offset:1024
    ds_read_b128 {vr(KVB[0],4)}, v6
    ds_read_b64 {vr(KVB[0]+4,2)}, v7
    ds_read_b128 {vr(KVB[1],4)}, v6 offset:3072
    ds_read_b64 {vr(KVB[1]+4,2)}, v7 offset:3072
    ds_read_b128 {vr(KVB[0]+8,4)}, v8
    ds_read_b128 {vr(KVB[0]+12,4)}, v8 offset:768
    """)
    stamp(a, 4)
    dm = lambda k: f"v_max_f32_dpp v146, v146, v146 {k} bank_mask:0xf"
    a(f"""
    v_mov_b32 v149, v147
    s_waitcnt lgkmcnt(6)
    v_and_b32 v146, 0xffff0000, v146
    v_permlane32_swap_b32 v147, v149
    s_nop 0
    {dm("row_shr:1 row_mask:0xf")}
    v_add_f32 v147, v147, v149
    s_nop 0
    {dm("row_shr:2 row_mask:0xf")}
    """)
    qnorm(QB1, QB2, 148, [dm("row_shr:4 row_mask:0xf"), dm("row_shr:8 row_mask:0xf")])
    a(f"""
    {dm("row_bcast:15 row_mask:0xa")}
    s_nop 1
    v_mov_b32 v150, v148
    {dm("row_bcast:31 row_mask:0xc")}
    s_nop 0
    v_permlane32_swap_b32 v148, v150
    v_readlane_b32 s26, v146, 63
    s_nop 0
    v_add_f32 v148, v148, v150
    v_mul_f32 v147, s26, v147
    v_mul_f32 v148, s26, v148
    v_sqrt_f32 v147, v147
    v_sqrt_f32 v148, v148
    v_mul_f32 v147, {f32(1.02)}, v147
    v_mul_f32 v148, {f32(1.02)}, v148
    """)
    def set_shift(ma, mb):
        for m, q2 in ((ma, QA2), (mb, QB2)):
            split3(a, m, q2+2, q2+3, 149, 150)
            a(f"v_cndmask_b32 v{q2}, v{q2+2}, v{q2}, s[28:29]")
            a(f"v_cndmask_b32 v{q2+1}, v{q2+3}, v{q2+1}, s[28:29]")
    set_shift(147, 148)
    a("s_waitcnt lgkmcnt(0)")
    for x in qk(SA, KVB[0], QA1, QA2): a(x)
    a("s_nop 11")
    a(".p2align 6")
    a(f"{L}_aloop:")
    for t in range(4):
        cur, nxt = KVB[t & 1], KVB[(t + 1) & 1]
        aslot(a, SA, PA, qk(SB, cur, QB1, QB2) + pv(OB, nxt, PB))
        pre = ["s_waitcnt lgkmcnt(0)" if t != 3 else "s_waitcnt vmcnt(0) lgkmcnt(0)"]
        if t == 0 and STAMP: pre.append("s_memtime s[38:39]")
        if t == 0: pre.append("s_barrier")
        if t == 0 and STAMP: pre.append("s_memtime s[36:37]")
        if t == 1 and STAMP: pre += ["s_mov_b32 m0, s30", "s_nop 0", "v_writelane_b32 v61, s36, m0", "v_writelane_b32 v62, s38, m0"]
        if t == 2:
            pre += ["v_add_u32 v6, s27, v3", "v_add_u32 v7, s27, v4"]
        if t == 3:
            pre += ["v_add_u32 v8, s27, v5",
                    f"s_add_u32 s27, s27, {CH}", f"s_cmp_ge_u32 s27, {3*CH}", "s_cselect_b32 s27, 0, s27"]
        ko = ((t + 2) & 3) * 3072
        vo = ((t + 1) & 3) * 3072
        rd = [f"ds_read_b128 {vr(cur,4)}, v6 offset:{ko}",
              f"ds_read_b64 {vr(cur+4,2)}, v7 offset:{ko}",
              f"ds_read_b128 {vr(nxt+8,4)}, v8 offset:{vo}",
              f"ds_read_b128 {vr(nxt+12,4)}, v8 offset:{vo+768}"]
        aslot(a, SB, PB, qk(SA, nxt, QA1, QA2) + pv(OA, cur, PA), pre, rd)
    a(f"""
    s_add_u32 s30, s30, 1
    s_cmp_lt_u32 s30, 16
    s_cbranch_scc1 {L}_aloop
    s_nop 1
    """)
    for x in pv(OB, KVB[1], PB): a(x)
    stamp(a, 5)
    a(f"""
    s_mov_b32 s34, 0
    {L}_aepi:
    s_mov_b32 s35, {f32(2.0**-90)}
    s_waitcnt lgkmcnt(0)
    s_nop 11
    v_mov_b32 v144, v{OA+8}
    v_mov_b32 v145, v{OA+8}
    v_mov_b32 v146, v{OB+8}
    v_mov_b32 v147, v{OB+8}
    s_nop 0
    v_permlane32_swap_b32 v144, v145
    v_permlane32_swap_b32 v146, v147
    s_nop 0
    v_cmp_nle_f32 vcc, s35, v145
    v_cmp_nle_f32 s[36:37], s35, v147
    v_rcp_f32 v145, v145
    v_rcp_f32 v147, v147
    s_or_b64 s[36:37], vcc, s[36:37]
    s_cmp_eq_u32 s34, 0
    s_cselect_b64 s[36:37], s[36:37], 0
    s_cmp_lg_u64 s[36:37], 0
    s_cbranch_scc1 {L}_slow
    """)
    for blk, O in enumerate((OA, OB)):
        R = 145 + 2*blk
        for q in range(3):
            for i in range(4): a(f"v_mul_f32 v{O+4*q+i}, v{R}, v{O+4*q+i}")
            D = 64 + 8*blk + 2*q
            a(f"v_cvt_pk_bf16_f32 v{D}, v{O+4*q}, v{O+4*q+1}")
            a(f"v_cvt_pk_bf16_f32 v{D+1}, v{O+4*q+2}, v{O+4*q+3}")
            if q == 2: a("s_mov_b32 exec_hi, 0")
            a(f"buffer_store_dwordx2 {vr(D,2)}, v60, s[8:11], s{33 if blk == 0 else 31} offen offset:{512*q} sc1")
            if q == 2: a("s_mov_b64 exec, -1")
    if STAMP:
        a(f"""
        s_lshl_b32 s36, s2, 2
        s_add_u32 s36, s36, s22
        s_lshl_b32 s36, s36, 9
        s_add_u32 s36, s36, {0x1900000}
        v_lshlrev_b32 v63, 2, v1
        buffer_store_dword v61, v63, s[8:11], s36 offen
        buffer_store_dword v62, v63, s[8:11], s36 offen offset:256
        """)
    a(f"""
    s_setprio 0
    s_lshl_b32 s36, s20, 5
    s_lshl_b32 s37, s22, 2
    s_add_u32 s36, s36, s37
    s_lshr_b32 s37, s21, 3
    s_add_u32 s36, s36, s37
    s_lshl_b32 s36, s36, 7
    s_add_u32 s36, s36, {WS_F+F3}
    v_mov_b32 v9, 1
    v_mov_b32 v5, 0
    s_waitcnt vmcnt(0)
    s_mov_b64 exec, 1
    buffer_atomic_add v9, v5, s[8:11], s36 offen sc1
    s_mov_b64 exec, -1
    """)
    if not E("ES"): stamp(a, 3)
    a(f"""
    s_branch {L}_p3
    """)
    kb = KVB[0]
    a(f"""
    {L}_slow:
    s_mov_b32 s34, 1
    v_cndmask_b32 v{QA2}, 0, v{QA2}, s[28:29]
    v_cndmask_b32 v{QA2+1}, 0, v{QA2+1}, s[28:29]
    v_cndmask_b32 v{QB2}, 0, v{QB2}, s[28:29]
    v_cndmask_b32 v{QB2+1}, 0, v{QB2+1}, s[28:29]
    v_mov_b32 v147, 0xff800000
    v_mov_b32 v148, 0xff800000
    s_mov_b32 s36, {WS_KV - KVR}
    {L}_slow1:
    buffer_load_dwordx4 {vr(kb,4)}, v3, s[8:11], s36 offen sc1
    buffer_load_dwordx2 {vr(kb+4,2)}, v4, s[8:11], s36 offen sc1
    s_add_u32 s36, s36, 3072
    s_waitcnt vmcnt(0)
    """)
    for x in qk(SA, kb, QA1, QA2) + qk(SB, kb, QB1, QB2): a(x)
    a("s_nop 15")
    for i in range(0, 16, 2):
        a(f"v_max3_f32 v147, v{SA+i}, v{SA+i+1}, v147")
        a(f"v_max3_f32 v148, v{SB+i}, v{SB+i+1}, v148")
    a(f"""
    s_cmp_lt_u32 s36, {WS_KV - KVR + 64*3072}
    s_cbranch_scc1 {L}_slow1
    v_mov_b32 v149, v147
    v_mov_b32 v150, v148
    s_nop 1
    v_permlane32_swap_b32 v147, v149
    v_permlane32_swap_b32 v148, v150
    s_nop 1
    v_max_f32 v147, v147, v149
    v_max_f32 v148, v148, v150
    """)
    set_shift(147, 148)
    for r in range(OA, OA+32): a(f"v_mov_b32 v{r}, 0")
    a(f"""
    s_mov_b32 s36, {WS_KV - KVR}
    {L}_slow2:
    buffer_load_dwordx4 {vr(kb,4)}, v3, s[8:11], s36 offen sc1
    buffer_load_dwordx2 {vr(kb+4,2)}, v4, s[8:11], s36 offen sc1
    buffer_load_dwordx4 {vr(kb+8,4)}, v5, s[8:11], s36 offen sc1
    buffer_load_dwordx4 {vr(kb+12,4)}, v5, s[8:11], s36 offen offset:768 sc1
    s_add_u32 s36, s36, 3072
    s_waitcnt vmcnt(0)
    """)
    for x in qk(SA, kb, QA1, QA2) + qk(SB, kb, QB1, QB2): a(x)
    a("s_nop 15")
    for g in exp_groups(SA, PA) + exp_groups(SB, PB):
        for x in g: a(x)
    a("s_nop 1")
    for x in pv(OA, kb, PA) + pv(OB, kb, PB): a(x)
    a(f"""
    s_cmp_lt_u32 s36, {WS_KV - KVR + 64*3072}
    s_cbranch_scc1 {L}_slow2
    s_nop 7
    s_branch {L}_aepi
    """)

    a(f"""
    {L}_gwave:
    ds_write_b128 v144, {vr(QA1,4)}
    ds_write_b64 v145, {vr(QA2,2)} offset:1024
    s_load_dwordx2 s[6:7], s[0:1], 64
    s_and_b32 s16, s22, 3
    s_and_b32 s57, s21, 3
    s_lshl_b32 s57, s57, 3
    s_lshr_b32 s34, s21, 2
    s_add_u32 s57, s57, s34
    s_cmp_ge_u32 s57, 15
    s_cselect_b32 s33, 1, 0
    s_cselect_b32 s34, 15, 0
    s_sub_u32 s34, s57, s34
    s_lshl_b32 s35, s20, 1
    s_add_u32 s33, s33, s35
    s_mul_i32 s35, s34, 13
    s_lshr_b32 s35, s35, 6
    s_mul_i32 s36, s35, 5
    s_sub_u32 s34, s34, s36
    s_waitcnt lgkmcnt(0)
    """)
    if E("ES"): stamp(a, 3)
    a(f"""
    s_barrier
    s_lshl_b32 s36, s33, 2
    s_add_u32 s36, s36, s16
    s_mul_i32 s36, s36, 108
    s_mul_i32 s37, s35, 36
    s_add_u32 s36, s36, s37
    s_lshl_b32 s36, s36, 10
    s_add_u32 s40, s36, {WS_H}
    s_mul_i32 s41, s35, {576*1280}
    s_mul_i32 s36, s16, {16*1280}
    s_add_u32 s41, s41, s36
    s_lshl_b32 s36, s34, 8
    s_add_u32 s41, s41, s36
    v_lshrrev_b32 v3, 4, v1
    v_lshlrev_b32 v4, 2, v3
    v_and_b32 v5, 15, v1
    v_xor_b32 v4, v4, v5
    s_movk_i32 s36, 1280
    v_mul_u32_u24 v3, s36, v3
    v_lshl_add_u32 v3, v4, 4, v3
    v_add_u32 v4, {5120-1024}, v3
    v_add_u32 v5, {2*(5120-1024)}, v3
    v_add_u32 v13, {3*(5120-1024)}, v3
    s_lshl_b32 s42, s16, 12
    s_add_u32 s43, s42, 16384
    s_mov_b32 s45, 0
    s_mov_b32 s30, 0
    s_mov_b32 s46, 0
    s_cmp_lt_u32 s57, 30
    s_cselect_b32 s47, 9, 0
    s_cselect_b32 s50, {WS_SIZE}, 0
    s_cselect_b32 s54, 2211840, 0
    s_mov_b32 s48, s18
    s_and_b32 s49, s19, 0xffff
    s_mov_b32 s51, 0x20000
    s_mov_b32 s55, 0x20000
    s_mov_b32 m0, s43
    s_mov_b32 s52, s6
    s_and_b32 s53, s7, 0xffff
    """)
    a.c("s33 = row group (128 rows), s34 = col group (128 cols), s35 = k split, s47 = stages of this WG")
    def gw():
        a(f"""
        buffer_load_dwordx4 v3, s[52:55], s41 offen lds
        buffer_load_dwordx4 v4, s[52:55], s41 offen offset:1024 lds
        buffer_load_dwordx4 v5, s[52:55], s41 offen offset:2048 lds
        buffer_load_dwordx4 v13, s[52:55], s41 offen offset:3072 lds
        s_add_u32 s41, s41, {64*1280}
        """)
    def gh():
        a(f"""
        buffer_load_dwordx4 v2, s[48:51], s40 offen{SCL} lds
        buffer_load_dwordx4 v2, s[48:51], s40 offen offset:1024{SCL} lds
        buffer_load_dwordx4 v2, s[48:51], s40 offen offset:2048{SCL} lds
        buffer_load_dwordx4 v2, s[48:51], s40 offen offset:3072{SCL} lds
        s_add_u32 s40, s40, 4096
        """)
    gw()
    a(f"""
    s_and_b32 s36, s16, 1
    s_lshr_b32 s37, s16, 1
    s_lshl_b32 s38, s36, 13
    v_add_u32 v6, s38, v2
    v_lshrrev_b32 v8, 5, v1
    v_bfe_u32 v9, v1, 2, 2
    v_lshl_add_u32 v8, v8, 2, v9
    v_lshlrev_b32 v8, 8, v8
    s_lshl_b32 s38, s37, 1
    v_xor_b32 v9, s38, v9
    v_lshl_add_u32 v8, v9, 6, v8
    v_bfe_u32 v9, v1, 4, 1
    v_lshl_add_u32 v8, v9, 5, v8
    v_and_b32 v9, 3, v1
    v_lshl_add_u32 v8, v9, 3, v8
    v_add_u32 v7, 16384, v8
    v_xor_b32 v8, 64, v7
    """)
    for r in range(64, 128, 2): a(f"v_mov_b64 v[{r}:{r+1}], 0")
    a(f"""
    s_mov_b32 m0, s42
    s_barrier
    s_waitcnt vmcnt(0)
    s_barrier
    s_barrier
    s_barrier
    """)
    gh()
    a(f"""
    s_mov_b32 s44, {GSL}
    s_branch {L}_gin
    {L}_gloop:
    s_barrier
    {L}_gin:
    s_add_u32 s46, s46, 1
    s_cmp_ge_u32 s46, s47
    s_cbranch_scc1 {L}_gnod
    s_add_u32 m0, s44, s42
    s_nop 0
    """)
    gh()
    a("s_add_u32 m0, s44, s43")
    a(f"s_add_u32 s44, s44, {GSL}")
    gw()
    a(f"""
    s_cmp_ge_u32 s44, {3*GSL}
    s_cselect_b32 s44, 0, s44
    {L}_gnod:
    s_sub_u32 s36, s30, 1
    s_cmp_ge_u32 s36, s47
    s_cbranch_scc1 {L}_gskip
    v_add_u32 v10, s45, v6
    v_add_u32 v11, s45, v7
    v_add_u32 v12, s45, v8
    s_add_u32 s45, s45, {GSL}
    s_cmp_ge_u32 s45, {3*GSL}
    s_cselect_b32 s45, 0, s45
    """)
    FB = [16, 32]
    def rl(ks):
        b = FB[ks & 1]
        return [f"ds_read_b128 {vr(b,4)}, v10 offset:{ks*1024}",
                f"ds_read_b64_tr_b16 {vr(b+8,2)}, v11 offset:{ks*4096}",
                f"ds_read_b64_tr_b16 {vr(b+10,2)}, v11 offset:{ks*4096+2048}",
                f"ds_read_b64_tr_b16 {vr(b+12,2)}, v12 offset:{ks*4096}",
                f"ds_read_b64_tr_b16 {vr(b+14,2)}, v12 offset:{ks*4096+2048}",
                f"ds_read_b128 {vr(b+4,4)}, v10 offset:{ks*1024+4096}"]
    def ml(ks):
        b = FB[ks & 1]
        x0, x1, w0, w1 = vr(b,4), vr(b+4,4), vr(b+8,4), vr(b+12,4)
        return [f"{M} v[64:79], {w0}, {x0}, v[64:79]", f"{M} v[80:95], {w1}, {x0}, v[80:95]",
                f"{M} v[96:111], {w0}, {x1}, v[96:111]", f"{M} v[112:127], {w1}, {x1}, v[112:127]"]
    for x in rl(0): a(x)
    for ks in range(4):
        a("s_waitcnt lgkmcnt(0)")
        r = rl(ks + 1) if ks < 3 else []
        for i, m in enumerate(ml(ks)):
            a(m)
            for x in r[2*i:2*i+2]: a(x)
    a(f"""
    s_cmp_lg_u32 s30, s47
    s_cbranch_scc1 {L}_gskip
    s_lshl_b32 s36, s35, 6
    s_lshl_b32 s37, s33, 2
    s_add_u32 s36, s36, s37
    s_and_b32 s37, s16, 1
    s_lshl_b32 s37, s37, 1
    s_add_u32 s36, s36, s37
    s_mul_i32 s36, s36, 40
    s_lshl_b32 s37, s34, 3
    s_add_u32 s36, s36, s37
    s_lshr_b32 s37, s16, 1
    s_lshl_b32 s37, s37, 2
    s_add_u32 s36, s36, s37
    s_lshl_b32 s36, s36, 10
    s_add_u32 s36, s36, {WS_B}
    s_add_u32 s37, s36, 40960
    s_nop 7
    """)
    for u in range(4):
        A = 64 + 16*u
        for qp in range(2):
            O = 16 + 4*((2*u+qp) % 8)
            for i in range(4):
                a(f"v_cvt_pk_bf16_f32 v{O+i}, v{A+8*qp+2*i}, v{A+8*qp+2*i+1}")
            a(f"buffer_store_dwordx4 {vr(O,4)}, v2, s[8:11], s{36 + (u>>1)} offen offset:{(u&1)*2048 + qp*1024} sc1")
    a(f"""
    s_branch {L}_gend
    {L}_gskip:
    s_add_u32 s30, s30, 1
    s_cmp_ge_u32 s30, 10
    s_cbranch_scc1 {L}_gend
    s_cmp_lt_u32 s46, s47
    s_cbranch_scc1 {L}_gw8
    s_waitcnt vmcnt(0)
    {L}_gw8:
    s_waitcnt vmcnt(8)
    s_branch {L}_gloop
    {L}_gend:
    s_barrier
    s_waitcnt vmcnt(0)
    s_barrier
    s_barrier
    """)

    a(f"""
    {L}_p3:
    s_load_dwordx2 s[4:5], s[0:1], 80
    s_lshl_b32 s17, s20, 3
    s_and_b32 s16, s21, 3
    s_lshl_b32 s16, s16, 1
    s_add_u32 s17, s17, s16
    s_lshr_b32 s16, s21, 2
    s_and_b32 s36, s22, 1
    s_lshr_b32 s39, s22, 1
    s_add_u32 s36, s17, s36
    s_mul_i32 s36, s36, 40
    s_mul_i32 s37, s39, 10
    s_add_u32 s36, s36, s37
    s_lshl_b32 s36, s36, 10
    s_add_u32 s36, s36, {WS_O}
    s_add_u32 s37, s36, 4096
    s_add_u32 s38, s36, 8192
    v_lshrrev_b32 v8, 5, v1
    v_bfe_u32 v9, v1, 2, 2
    v_lshl_add_u32 v8, v8, 2, v9
    v_mul_u32_u24 v8, 192, v8
    v_bfe_u32 v9, v1, 4, 1
    v_lshl_add_u32 v8, v9, 5, v8
    v_and_b32 v9, 3, v1
    v_lshl_add_u32 v8, v9, 3, v8
    s_lshl_b32 s48, s39, 2
    s_mul_i32 s49, s39, 30720
    v_add_u32 v8, s49, v8
    v_lshlrev_b32 v7, 3, v1
    v_and_b32 v6, 31, v1
    s_lshl_b32 s39, s17, 5
    v_add_u32 v6, s39, v6
    v_lshrrev_b32 v4, 3, v6
    v_lshlrev_b32 v4, 7, v4
    v_and_b32 v9, 7, v1
    v_lshl_add_u32 v4, v9, 2, v4
    s_mov_b32 s40, {WS_G}
    s_mul_i32 s41, s16, 10
    s_add_u32 s41, s41, s22
    s_lshr_b32 s42, s41, 1
    s_lshl_b32 s42, s42, 10
    s_and_b32 s43, s41, 1
    s_lshl_b32 s43, s43, 3
    s_add_u32 s42, s42, s43
    s_mul_i32 s43, s17, 40960
    s_add_u32 s42, s42, s43
    s_add_u32 s42, s42, {WS_B}
    v_mov_b32 v22, {NONCE}
    s_lshr_b32 s46, s22, 1
    s_lshl_b32 s45, 1, s46
    """)
    a.c("s17 = first row block of the tile, s16 = column group; final items: quad = wave, both row blocks")
    def bg():
        a("buffer_load_dword v140, v4, s[8:11], s40 offen sc1")
        a("buffer_load_dword v141, v4, s[8:11], s40 offen offset:512 sc1")
        for j in range(2):
            for sk in range(3):
                a(f"s_add_u32 s43, s42, {j*40960 + sk*64*40960}")
                a(f"buffer_load_dwordx2 {vr(128+6*j+2*sk,2)}, v2, s[8:11], s43 offen sc1")
    a(f"""
    s_movk_i32 s43, 1280
    v_mul_lo_u32 v6, v6, s43
    v_lshrrev_b32 v9, 5, v1
    v_lshl_add_u32 v6, v9, 3, v6
    s_lshl_b32 s41, s41, 4
    s_add_u32 s44, s41, 40960
    s_waitcnt lgkmcnt(0)
    """)
    srd(a, 12, 4, 5, 2621440)
    for r in range(64, 112, 2): a(f"v_mov_b64 v[{r}:{r+1}], 0")
    WF = [112, 144]
    def wr(ks):
        b = WF[ks & 1]
        return [f"ds_read_b64_tr_b16 {vr(b+4*cb+2*t,2)}, v8 offset:{ks*3072 + t*1536 + 64*cb}" for cb in range(3) for t in range(2)]
    a(f"""
    s_mov_b32 s70, {SPIN}
    s_cmp_lg_u32 s22, 8
    s_cbranch_scc1 {L}_p3w
    s_mov_b64 exec, 0xf
    {L}_p3poll:
    buffer_load_dword v24, v3, s[8:11], s35 offen sc1
    s_sub_u32 s70, s70, 1
    s_cselect_b32 s47, -1, 0
    s_waitcnt vmcnt(0)
    v_cmp_eq_u32 vcc, 8, v24
    s_or_b32 s47, s47, vcc_lo
    s_or_b32 s47, s47, 0xfffffff0
    v_mov_b32 v23, s47
    ds_write_b32 v22, v23 offset:8
    s_sleep {E("PSLEEP", "2")}
    s_cmp_lg_u32 s47, -1
    s_cbranch_scc1 {L}_p3poll
    """)
    stamp(a, 6)
    a(f"""
    s_mov_b64 exec, -1
    {L}_p3w:
    ds_read_b64 v[10:11], v22 offset:8
    s_waitcnt lgkmcnt(0)
    v_readfirstlane_b32 s47, v10
    v_readfirstlane_b32 s46, v11
    s_or_b32 s47, s47, 0x10
    s_and_b32 s47, s47, s45
    s_xor_b32 s47, s47, s45
    s_xor_b32 s46, s46, 2
    s_or_b32 s47, s47, s46
    s_cmp_eq_u32 s47, 0
    s_cbranch_scc1 {L}_p3go
    s_sleep 1
    s_branch {L}_p3w
    {L}_p3go:
    s_cmp_lt_u32 s22, 8
    s_cbranch_scc1 {L}_p3m
    """)
    bg()
    a(f"""
    s_branch {L}_p3r
    {L}_p3m:
    """)
    if not E("ES"): stamp(a, 6)
    OF = 24
    for ks in range(10):
        for sl in range(2):
            a(f"buffer_load_dwordx2 {vr(OF+4*ks+2*sl,2)}, v7, s[8:11], s{36+ks//4} offen offset:{(ks%4)*1024+512*sl}{E('OSC', ' sc1')}")
    for x in wr(0): a(x)
    bg()
    for ks in range(10):
        a(f"s_waitcnt vmcnt({26-2*ks}) lgkmcnt(0)")
        r = wr(ks+1) if ks < 9 else []
        b = WF[ks & 1]
        for cb in range(3):
            a(f"{M} {vr(64+16*cb,16)}, {vr(b+4*cb,4)}, {vr(OF+4*ks,4)}, {vr(64+16*cb,16)}")
            for x in r[2*cb:2*cb+2]: a(x)
    a(f"""
    v_add_u32 v23, s48, v22
    v_mov_b32 v9, 1
    s_mov_b64 exec, 1
    ds_add_u32 v23, v9 offset:16
    s_mov_b64 exec, -1
    s_and_b32 s47, s22, 1
    s_mul_i32 s47, s47, 10240
    s_add_u32 s39, s49, s47
    v_add_u32 v5, s39, v2
    {L}_p3pw:
    ds_read_b32 v9, v23 offset:16
    s_waitcnt lgkmcnt(0)
    v_readfirstlane_b32 s47, v9
    s_cmp_lg_u32 s47, 2
    s_cbranch_scc1 {L}_p3pw
    """)
    for q in range(10):
        a(f"ds_write_b128 v5, {vr(64+4*q,4)} offset:{1024*q}")
    a(f"""
    s_waitcnt lgkmcnt(0)
    {L}_p3r:
    """)
    if STAMP:
        a(f"s_cmp_lt_u32 s22, 4\ns_cbranch_scc1 {L}_st4")
        stamp(a, 4)
        a(f"{L}_st4:")
    a(f"""
    s_lshl_b32 s39, s22, 10
    v_add_u32 v5, s39, v2
    v_add_u32 v7, 61440, v5
    s_barrier
    """)
    for j in range(2):
        for kq in range(4):
            a(f"ds_read_b128 {vr(16+16*j+4*kq,4)}, v{5 if kq < 2 else 7} offset:{j*10240 + (kq%2)*30720}")
    a("s_waitcnt vmcnt(0)")
    for j in range(2):
        a(f"""
        v_sub_f32 v{142+j}, 1.0, v{140+j}
        v_cvt_pk_bf16_f32 v{142+j}, v{142+j}, v{142+j}
        v_lshlrev_b32 v{142+j}, 16, v{142+j}
        """)
        B = 128 + 6*j
        for i in range(4):
            ex = (lambda d, r: f"v_lshlrev_b32 v{d}, 16, v{r}") if i % 2 == 0 else (lambda d, r: f"v_and_b32 v{d}, 0xffff0000, v{r}")
            a(f"""
            {ex(56+4*j+i, B + i//2)}
            {ex(55, B + 2 + i//2)}
            v_add_f32 v{56+4*j+i}, v{56+4*j+i}, v55
            {ex(55, B + 4 + i//2)}
            v_add_f32 v{56+4*j+i}, v{56+4*j+i}, v55
            """)
    a("s_waitcnt lgkmcnt(0)")
    for j in range(2):
        P = 16 + 16*j
        for i in range(4):
            a(f"""
            v_add_f32 v{P+i}, v{P+i}, v{P+4+i}
            v_add_f32 v{P+8+i}, v{P+8+i}, v{P+12+i}
            v_add_f32 v{P+i}, v{P+i}, v{P+8+i}
            v_mul_f32 v{P+i}, v{140+j}, v{P+i}
            v_fmac_f32 v{P+i}, v{142+j}, v{56+4*j+i}
            """)
        a(f"""
        v_cvt_pk_bf16_f32 v{P}, v{P}, v{P+1}
        v_cvt_pk_bf16_f32 v{P+1}, v{P+2}, v{P+3}
        buffer_store_dwordx2 {vr(P,2)}, v6, s[12:15], s{41 if j == 0 else 44} offen{E('OUTM', '')}
        """)
    stamp_out(a, 7, 0)
    a(f"{L}_end:")
    a("s_endpgm")
    kernel_desc(a, name, 160, 100)
```

```python
from common import *
import math
from k2 import (M, QA1, QA2, QB1, QB2, KVB, SA, SB, OA, OB, PA, PB, split3, exp_groups, pv, CH)
def qk(Sd, kb, q1, q2):
    return [f"{M} {vr(Sd,16)}, {vr(kb,4)}, {vr(q1,4)}, 0",
            f"v_mfma_f32_32x32x8_bf16 {vr(Sd,16)}, {vr(kb+4,2)}, {vr(q2,2)}, {vr(Sd,16)}"]
LOG2E = 1.4426950408889634
QSCALE = LOG2E / math.sqrt(20.0)
E = os.environ.get
XSL = 32768
WB = 3 * XSL
WSL = 10240
QST = WB
KVR = 163840 - 3 * CH
GSL = 32768
NONCE = 122880
BREG = True
F_LDS = 163840
F_BLOCK = 640
SPIN = int(E("SPIN", 1 << 16))
SC = " sc1"
SCL = E('SCL', ' sc1')

_pc = [0]
def poll(a, L, voff, soff):
    _pc[0] += 1
    T = f"{L}_poll{_pc[0]}"
    a(f"""
    s_mov_b32 s70, {SPIN}
    {T}:
    buffer_load_dwordx2 v[24:25], {voff}, s[8:11], {soff} offen sc1
    s_sub_u32 s70, s70, 1
    s_cbranch_scc1 {T}_ok
    s_waitcnt vmcnt(0)
    v_cmp_ne_u64 vcc, v[24:25], v[20:21]
    s_cmp_eq_u64 vcc, 0
    s_cbranch_scc1 {T}_ok
    s_sleep {E("PSLEEP", "2")}
    s_branch {T}
    {T}_ok:
    """)

def flag(a, soff):
    a(f"""
    s_mov_b64 exec, 1
    buffer_store_dwordx2 v[20:21], v5, s[8:11], {soff} offen sc1
    s_mov_b64 exec, -1
    """)

def aslot(a, S, P, mf, pre=(), rd=None):
    g = exp_groups(S, P)
    flat = [x for gg in g for x in gg]
    pos = [int(x) for x in E("MPOS", "0,5,11,17").split(",")]
    for p in pre: a(p)
    k = 0
    for i, x in enumerate(flat):
        while k < 4 and pos[k] == i:
            a(mf[k])
            if rd: a(rd[k])
            k += 1
        a(x)

def gen(a, name):
    kernel_head(a, name)
    L = name
    a(f"""
    s_cmp_ge_u32 s2, 256
    s_cbranch_scc1 {L}_end
    s_load_dwordx8 s[4:11], s[0:1], 0
    s_load_dwordx4 s[12:15], s[0:1], 48
    s_load_dwordx2 s[18:19], s[0:1], 96
    """)
    stamp(a, 0)
    a(f"""
    v_lshrrev_b32 v2, 6, v0
    v_and_b32 v1, 63, v0
    v_readfirstlane_b32 s22, v2
    s_and_b32 s47, s2, 7
    s_lshr_b32 s51, s2, 3
    s_and_b32 s20, s47, 1
    s_lshl_b32 s20, s20, 2
    s_and_b32 s67, s51, 3
    s_add_u32 s20, s20, s67
    s_lshr_b32 s21, s47, 1
    s_lshr_b32 s68, s51, 2
    s_lshl_b32 s52, s68, 2
    s_add_u32 s21, s21, s52
    s_cmp_lt_u32 s22, 8
    s_cbranch_scc1 {L}_comp
    """)
    a.c("s20 = row group (256 rows), s21 = cg = head = column group, s22 = wave; kept for the whole kernel, as is s[18:19]")
    a(f"""
    s_and_b32 s63, s22, 1
    v_lshrrev_b32 v10, 3, v1
    v_lshrrev_b32 v11, 4, v1
    v_and_b32 v12, 7, v1
    v_xor_b32 v12, v12, v11
    v_xor_b32 v11, 4, v12
    s_movk_i32 s54, 1280
    v_mul_u32_u24 v10, s54, v10
    v_lshl_add_u32 v15, v11, 4, v10
    v_lshl_add_u32 v10, v12, 4, v10
    s_mul_i32 s53, s20, {256*1280}
    s_mul_i32 s55, s63, {64*1280}
    s_add_u32 s53, s53, s55
    """)
    for i in range(8):
        a(f"s_add_u32 s55, s53, {i*10240 - 1024*(i&3) + 4096}")
        a(f"v_add_u32 v{2+i}, s55, v{15 if i & 1 else 10}")
    a(f"""
    s_add_u32 s52, s67, s68
    s_and_b32 s52, s52, 3
    """)
    ORD = E("ORD", "b3")
    def order(t):
        if ORD == "lat4": return [(n + (5*t >> 1)) % 10 for n in range(10)]
        if ORD == "lat2": return [(n + 5*(t & 1)) % 10 for n in range(10)]
        if ORD == "b2": return [n ^ (t & 1) for n in range(10)]
        if ORD == "b4": return [(n & ~3) | ((n + t) & 3) if n < 8 else 8 + ((n + t) & 1) for n in range(10)]
        if ORD == "b5": return [5*(n // 5) + ((n % 5) + [0, 1, 2, 4][t]) % 5 for n in range(10)]
        if ORD == "b3": return [3*(n // 3) + ((n % 3) + t) % 3 if n < 9 else 9 for n in range(10)]
        if ORD == "h1": return [((n ^ (t & 1)) + 4*(t >> 1)) % 10 for n in range(10)]
        if ORD == "h2": return [(n + 2*(t>>1)) % 4 ^ (t & 1) if n < 4 else 4 + 3*((n-4)//3) + ((n-4) % 3 + t) % 3 for n in range(10)]
        if ORD == "h3": return [n ^ (t & 1) if n < 2 else (2 + (n - 2 + t) % 4 if n < 6 else 6 + (n - 6 + t) % 4) for n in range(10)]
        if ORD == "h4": return [0 if n == 0 else 1 + 3*((n-1)//3) + ((n-1) % 3 + t) % 3 for n in range(10)]
        if ORD == "none": return list(range(10))
    for t in range(4):
        tab = sum(p << (4*n) for n, p in enumerate(order(t)))
        if t == 0:
            a(f"s_mov_b32 s60, {tab & 0xffffffff}\ns_mov_b32 s61, {tab >> 32}")
        else:
            a(f"s_cmp_eq_u32 s52, {t}\ns_cselect_b32 s60, {tab & 0xffffffff}, s60\ns_cselect_b32 s61, {tab >> 32}, s61")
    a(f"""
    s_and_b32 s52, s60, 15
    s_lshl_b32 s41, s52, 7
    s_lshl_b32 s48, s63, 13
    s_mov_b32 m0, s48
    v_lshrrev_b32 v13, 3, v1
    s_movk_i32 s62, 3456
    v_mul_u32_u24 v13, s62, v13
    v_and_b32 v14, 7, v1
    v_bfe_u32 v15, v1, 4, 1
    v_lshlrev_b32 v15, 2, v15
    v_xor_b32 v14, v14, v15
    v_lshl_add_u32 v13, v14, 4, v13
    s_lshl_b32 s53, s21, 7
    v_add_u32 v10, s53, v13
    v_add_u32 v11, {8*3456-1024}, v10
    v_add_u32 v12, {2*(8*3456-1024)}, v10
    v_add_u32 v13, {3*(8*3456-1024)}, v10
    v_lshrrev_b32 v14, 2, v1
    v_mul_u32_u24 v14, s54, v14
    v_and_b32 v15, 3, v1
    v_lshl_add_u32 v14, v15, 4, v14
    s_mul_i32 s53, s21, 40
    s_mul_i32 s55, s63, {16*1280}
    s_add_u32 s53, s53, s55
    v_add_u32 v14, s53, v14
    v_cmp_eq_u32 vcc, 3, v15
    v_mov_b32 v15, 0x7f000000
    s_nop 0
    v_cndmask_b32 v14, v14, v15, vcc
    v_lshlrev_b32 v15, 4, v1
    s_mov_b32 s26, {2621440+4096}
    s_mov_b32 s27, 0x20000
    s_mov_b32 s30, 2211840
    s_mov_b32 s31, 0x20000
    s_mov_b32 s34, 819200
    s_mov_b32 s35, 0x20000
    s_sub_u32 s53, s21, 27
    s_cmp_lt_u32 s53, 2
    s_cselect_b32 s38, 25600, 0
    s_mov_b32 s39, 0x20000
    s_lshl_b32 s52, s52, 1
    s_mul_i32 s42, s52, {32*3456}
    s_mul_i32 s43, s52, {32*1280}
    s_mul_i32 s40, s52, 1280
    s_lshl_b32 s51, s63, 10
    s_add_u32 s40, s40, s51
    s_lshl_b32 s49, s63, 12
    s_add_u32 s49, s49, {WB}
    s_add_u32 s50, s51, {WB+8192}
    s_add_u32 s56, s51, {WB}
    s_add_u32 s45, s48, 16384
    s_add_u32 s54, s41, 163840
    s_mov_b32 s44, 0
    s_mov_b32 s46, 0
    s_mov_b32 s58, 2
    s_waitcnt lgkmcnt(0)
    s_sub_u32 s24, s4, 4096
    s_subb_u32 s25, s5, 0
    s_and_b32 s25, s25, 0xffff
    """)
    a.c("x voffsets carry +4096 so that they stay non negative; the SRD base carries -4096")
    def xdma(so):
        a(f"""
        buffer_load_dwordx4 v2, s[24:27], {so} offen lds
        buffer_load_dwordx4 v3, s[24:27], {so} offen offset:1024 lds
        buffer_load_dwordx4 v4, s[24:27], {so} offen offset:2048 lds
        buffer_load_dwordx4 v5, s[24:27], {so} offen offset:3072 lds
        s_add_u32 m0, m0, 4096
        s_nop 0
        buffer_load_dwordx4 v6, s[24:27], {so} offen lds
        buffer_load_dwordx4 v7, s[24:27], {so} offen offset:1024 lds
        buffer_load_dwordx4 v8, s[24:27], {so} offen offset:2048 lds
        buffer_load_dwordx4 v9, s[24:27], {so} offen offset:3072 lds
        """)
    xdma("s41")
    a(f"""
    s_cmp_eq_u32 s63, 1
    s_cselect_b32 s28, s14, s12
    s_cselect_b32 s29, s15, s13
    s_and_b32 s29, s29, 0xffff
    s_mov_b32 s32, s6
    s_and_b32 s33, s7, 0xffff
    s_cmp_eq_u32 s21, 27
    s_cselect_b32 s36, s8, s10
    s_cselect_b32 s37, s9, s11
    s_and_b32 s37, s37, 0xffff
    s_cmp_ge_u32 s21, 27
    s_cbranch_scc1 {L}_ldl_issue
    """)
    a.c("s45/s54 next x half (lds, soffset), s41 k byte offset of the pair, s42 W, s43 wq, s40 wk/wv soffsets, s44 W slot")
    for tag, D in (("ldf", 13), ("ldl", 10)):
        a(f"""
        {L}_{tag}_issue:
        s_mov_b32 m0, s45
        s_add_u32 s46, s46, 1
        """)
        xdma("s54")
        if tag == "ldf":
            a(f"""
            s_add_u32 m0, s44, s49
            s_add_u32 s45, s45, 16384
            buffer_load_dwordx4 v10, s[28:31], s42 offen lds
            buffer_load_dwordx4 v11, s[28:31], s42 offen offset:1024 lds
            buffer_load_dwordx4 v12, s[28:31], s42 offen offset:2048 lds
            buffer_load_dwordx4 v13, s[28:31], s42 offen offset:3072 lds
            """)
        else:
            a(f"""
            s_add_u32 m0, s44, s56
            s_add_u32 s45, s45, 16384
            buffer_load_dwordx4 v15, s[36:39], s40 offen lds
            """)
        a(f"""
        s_add_u32 m0, s44, s50
        s_lshr_b32 s52, s46, 1
        buffer_load_dwordx4 v14, s[32:35], s43 offen lds
        s_lshl_b32 s52, s52, 2
        s_lshr_b64 s[64:65], s[60:61], s52
        s_and_b32 s52, s64, 15
        s_lshl_b32 s52, s52, 1
        s_and_b32 s53, s46, 1
        s_add_u32 s52, s52, s53
        s_mul_i32 s42, s52, {32*3456}
        s_mul_i32 s43, s52, {32*1280}
        s_mul_i32 s40, s52, 1280
        s_add_u32 s40, s40, s51
        s_lshl_b32 s52, s53, 2
        s_lshr_b32 s52, s64, s52
        s_and_b32 s52, s52, 15
        s_lshl_b32 s54, s52, 7
        s_cmp_eq_u32 s53, 0
        s_cselect_b32 s52, 163840, 0
        s_add_u32 s54, s54, s52
        s_add_u32 s44, s44, {WSL}
        s_cmp_ge_u32 s44, {4*WSL}
        s_cselect_b32 s44, 0, s44
        s_cmp_ge_u32 s45, {WB}
        s_cselect_b32 s45, s48, s45
        s_cmp_eq_u32 s46, 19
        s_cselect_b32 s26, 0, s26
        s_cmp_lt_u32 s46, s58
        s_cbranch_scc1 {L}_{tag}_issue
        s_waitcnt vmcnt({D})
        s_barrier
        s_add_u32 s58, s58, 1
        s_cmp_le_u32 s58, 20
        s_cbranch_scc1 {L}_{tag}_issue
        """)
        if tag == "ldf": a(f"s_branch {L}_ld_tail")
    a(f"""
    {L}_ld_tail:
    s_load_dwordx2 s[4:5], s[0:1], 32
    s_load_dwordx2 s[6:7], s[0:1], 88
    v_mov_b32 v5, 0
    s_waitcnt vmcnt(0) lgkmcnt(0)
    s_barrier
    global_load_dwordx2 v[20:21], v5, s[6:7] sc0 sc1
    s_barrier
    """)
    srd(a, 8, 18, 19, WS_SIZE)
    srd(a, 12, 18, 19, WS_KV + 64*3072)
    a(f"""
    v_lshlrev_b32 v2, 4, v1
    v_lshlrev_b32 v3, 7, v1
    s_mov_b32 s70, {SPIN}
    s_branch {L}_l_non2
    {L}_l_non:
    global_load_dwordx2 v[20:21], v5, s[6:7] sc0 sc1
    {L}_l_non2:
    s_sub_u32 s70, s70, 1
    s_cbranch_scc1 {L}_l_non3
    s_waitcnt vmcnt(0)
    v_cmp_ne_u32 vcc, 0, v20
    s_cmp_eq_u64 vcc, 0
    s_cbranch_scc1 {L}_l_non
    {L}_l_non3:
    s_lshl_b32 s33, s20, 5
    s_add_u32 s33, s33, s21
    s_lshl_b32 s34, s33, 7
    s_add_u32 s34, s34, {WS_F}
    s_lshl_b32 s35, s20, 12
    s_add_u32 s35, s35, {WS_F}
    s_sub_u32 s53, s21, 27
    s_cmp_ge_u32 s53, 2
    s_cbranch_scc1 {L}_l_nokv
    s_barrier
    s_cmp_lg_u32 s63, 0
    s_cbranch_scc1 {L}_l_nokv
    s_lshl_b32 s52, s20, 1
    s_add_u32 s52, s52, s53
    s_lshl_b32 s52, s52, 7
    s_add_u32 s52, s52, {WS_F+FQ}
    """)
    flag(a, "s52")
    a(f"""
    {L}_l_nokv:
    s_cmp_lt_u32 s21, 27
    s_cbranch_scc1 {L}_l_now
    s_cmp_eq_u32 s63, 0
    s_cbranch_scc1 {L}_l_now
    s_load_dwordx2 s[16:17], s[0:1], 64
    s_mul_i32 s52, s20, 5
    s_add_u32 s52, s52, s53
    s_mul_i32 s52, s52, {7*8192}
    s_waitcnt lgkmcnt(0)
    s_mov_b32 s56, s16
    s_and_b32 s57, s17, 0xffff
    s_mov_b32 s58, 2211840
    s_mov_b32 s59, 0x20000
    s_mov_b32 s54, 7
    {L}_l_warm:
    buffer_load_dword v31, v3, s[56:59], s52 offen
    s_add_u32 s52, s52, 8192
    s_sub_u32 s54, s54, 1
    s_cmp_lg_u32 s54, 0
    s_cbranch_scc1 {L}_l_warm
    {L}_l_now:
    s_mul_i32 s24, s63, 6144
    s_add_u32 s30, s24, {WS_KV}
    s_add_u32 s31, s30, 4096
    s_add_u32 s24, s24, {KVR}
    s_mov_b32 s25, {CH}
    s_mov_b32 s52, {WS_F+FQ}
    s_mov_b64 exec, 0xffff
    """)
    a.c("s34 = own flag line, s35 = flag lines of this row group; s30/s31 kv source, s24 + s25 kv destination")
    stamp(a, 1)
    poll(a, L, "v3", "s52")
    a("s_mov_b64 exec, -1")
    stamp(a, 2)
    def kv():
        a(f"""
        s_add_u32 m0, s25, s24
        s_add_u32 s25, s25, {CH}
        buffer_load_dwordx4 v2, s[12:15], s30 offen{SCL} lds
        buffer_load_dwordx4 v2, s[12:15], s30 offen offset:1024{SCL} lds
        buffer_load_dwordx4 v2, s[12:15], s30 offen offset:2048{SCL} lds
        buffer_load_dwordx4 v2, s[12:15], s30 offen offset:3072{SCL} lds
        s_add_u32 m0, m0, 4096
        s_add_u32 s30, s30, {CH}
        buffer_load_dwordx4 v2, s[12:15], s31 offen{SCL} lds
        buffer_load_dwordx4 v2, s[12:15], s31 offen offset:1024{SCL} lds
        s_add_u32 s31, s31, {CH}
        s_cmp_ge_u32 s25, {3*CH}
        s_cselect_b32 s25, 0, s25
        """)
    a(f"""
    s_mov_b32 m0, {QST+6144}
    s_mov_b32 s52, {WS_KV+1024+63*8+4}
    v_mul_u32_u24 v6, 3072, v1
    buffer_load_dword v6, s[8:11], s52 offen{SCL} lds
    """)
    kv(); kv()
    a(f"""
    s_lshr_b32 s38, s21, 2
    s_mul_i32 s38, s38, 160
    s_movk_i32 s39, 5462
    s_movk_i32 s40, 1280
    """)
    for i in range(3):
        a(f"""
        v_add_u32 v6, {64*i}, v1
        v_mul_u32_u24 v7, s39, v6
        v_lshrrev_b32 v7, 16, v7
        v_mul_u32_u24 v8, 12, v7
        v_sub_u32 v8, v6, v8
        v_mul_u32_u24 v7, s40, v7
        v_lshl_add_u32 v7, v8, 4, v7
        v_add_u32 v7, s38, v7
        v_subrev_u32 v{10+i}, {1024*i}, v7
        """)
    srd(a, 40, 4, 5, 819200)
    a(f"""
    s_mul_i32 s44, s63, {20*20480}
    s_mul_i32 s45, s63, {20*3072}
    s_waitcnt vmcnt(6)
    """)
    stamp(a, 3)
    a("s_barrier")
    def bar_kv():
        a("s_waitcnt vmcnt(0)")
        a("s_barrier")
        kv()
    bar_kv()
    a(f"""
    s_cmp_eq_u32 s63, 1
    s_cbranch_scc1 {L}_gate
    s_lshl_b32 s52, s2, 6
    v_add_u32 v6, s52, v1
    v_lshlrev_b32 v6, 7, v6
    buffer_load_dword v30, v6, s[40:43], 0 offen
    v_mov_b32 v6, {NONCE}
    ds_write_b64 v6, v[20:21]
    v_mov_b32 v8, 0
    v_mov_b32 v9, 0
    ds_write_b64 v6, v[8:9] offset:8
    ds_write_b64 v6, v[8:9] offset:16
    ds_write_b64 v6, v[8:9] offset:24
    s_waitcnt vmcnt(1) lgkmcnt(0)
    s_barrier
    """)
    a.c("B1 passed: every wave has drained its h stores")
    flag(a, "s34")
    kv()
    a(f"""
    s_waitcnt vmcnt(0)
    s_branch {L}_gate_done
    {L}_gate:
    s_load_dwordx2 s[16:17], s[0:1], 72
    s_load_dwordx2 s[4:5], s[0:1], 0
    v_and_b32 v16, 7, v1
    v_lshlrev_b32 v16, 4, v16
    v_lshrrev_b32 v17, 3, v1
    s_lshl_b32 s53, s33, 3
    v_add_u32 v18, s53, v17
    s_movk_i32 s54, 1280
    v_mul_lo_u32 v17, v18, s54
    v_add_u32 v17, v17, v16
    s_waitcnt lgkmcnt(0)
    """)
    srd(a, 56, 4, 5, 2621440)
    srd(a, 68, 16, 17, 1280)
    for j in range(10):
        a(f"buffer_load_dwordx4 {vr(72+4*j,4)}, v17, s[56:59], 0 offen offset:{128*j}")
    for j in range(10):
        a(f"buffer_load_dwordx4 {vr(32+4*j,4)}, v16, s[68:71], 0 offen offset:{128*j}")
    a(f"""
    v_lshrrev_b32 v19, 3, v1
    v_lshlrev_b32 v19, 2, v19
    v_mov_b32 v27, {f32(-LOG2E)}
    v_mov_b32 v26, 0
    v_mov_b32 v28, 0
    s_waitcnt vmcnt(20)
    s_barrier
    """)
    kv()
    a("s_waitcnt vmcnt(6)")
    for i in range(0, 40, 2):
        a(f"v_dot2_f32_bf16 v26, v{72+i}, v{32+i}, v26")
        a(f"v_dot2_f32_bf16 v28, v{73+i}, v{33+i}, v28")
    a(f"""
    s_nop 3
    v_add_f32 v26, v26, v28
    s_nop 1
    v_add_f32_dpp v26, v26, v26 quad_perm:[1,0,3,2] row_mask:0xf bank_mask:0xf
    s_nop 1
    v_add_f32_dpp v26, v26, v26 quad_perm:[2,3,0,1] row_mask:0xf bank_mask:0xf
    s_nop 1
    v_add_f32_dpp v26, v26, v26 row_half_mirror row_mask:0xf bank_mask:0xf
    v_cvt_pk_bf16_f32 v26, v26, v26
    v_lshlrev_b32 v26, 16, v26
    v_mul_f32 v26, v27, v26
    v_exp_f32 v26, v26
    s_nop 0
    v_add_f32 v26, 1.0, v26
    v_rcp_f32 v26, v26
    s_nop 0
    v_cvt_pk_bf16_f32 v26, v26, v26
    v_lshlrev_b32 v28, 16, v26
    s_lshl_b32 s53, s33, 7
    s_add_u32 s53, s53, {WS_G}
    v_cmp_eq_u32 vcc, 0, v16
    s_nop 1
    s_mov_b64 exec, vcc
    buffer_store_dword v28, v19, s[8:11], s53 offen sc1
    s_mov_b64 exec, -1
    s_waitcnt vmcnt(1)
    {L}_gate_done:
    s_barrier
    """)
    kv()
    a(f"""
    s_cmp_eq_u32 s63, 1
    s_cbranch_scc1 {L}_l_np
    """)
    a("s_mov_b64 exec, 0x7ffffff")
    poll(a, L, "v3", "s35")
    a(f"""
    s_mov_b64 exec, -1
    {L}_l_np:
    s_mov_b32 s46, 3
    {L}_lloop:
    """)
    bar_kv()
    a(f"""
    s_add_u32 s46, s46, 1
    s_cmp_lt_u32 s46, 14
    s_cbranch_scc1 {L}_lloop
    s_add_u32 s34, s34, {F2}
    s_add_u32 s35, s35, {F2}
    """)
    a.c("barrier 13 passed: G waves are done with their ring")
    def wo(n, tag):
        a(f"""
        s_mov_b32 s47, {n}
        {L}_wo{tag}:
        s_mov_b32 m0, s45
        s_add_u32 s45, s45, 3072
        buffer_load_dwordx4 v10, s[40:43], s44 offen lds
        buffer_load_dwordx4 v11, s[40:43], s44 offen offset:1024 lds
        buffer_load_dwordx4 v12, s[40:43], s44 offen offset:2048 lds
        s_add_u32 s44, s44, 20480
        s_sub_u32 s47, s47, 1
        s_cmp_lg_u32 s47, 0
        s_cbranch_scc1 {L}_wo{tag}
        """)
    wo(8, "a")
    a("s_waitcnt vmcnt(24)")
    a("s_barrier")
    a(f"s_cmp_lg_u32 s63, 0\ns_cbranch_scc1 {L}_l_nf2")
    flag(a, "s34")
    a(f"{L}_l_nf2:")
    wo(8, "b")
    a("s_barrier")
    wo(4, "c")
    a(f"s_cmp_eq_u32 s63, 0\ns_cbranch_scc1 {L}_l_np2")
    a("s_mov_b32 exec_hi, 0")
    poll(a, L, "v3", "s35")
    a(f"{L}_l_np2:")
    a(f"""
    s_mov_b64 exec, 1
    v_mov_b32 v22, {NONCE}
    v_mov_b32 v9, 1
    s_waitcnt vmcnt(0)
    ds_add_u32 v22, v9 offset:12
    s_mov_b64 exec, -1
    s_and_b32 s52, s21, 3
    s_lshl_b32 s52, s52, 9
    s_add_u32 s35, s35, s52
    s_add_u32 s35, s35, {F3-F2}
    s_branch {L}_p3
    """)

    a(f"""
    {L}_comp:
    s_and_b32 s63, s22, 3
    s_lshr_b32 s64, s22, 2
    v_and_b32 v13, 31, v1
    v_lshrrev_b32 v14, 5, v1
    v_bfe_u32 v15, v1, 1, 3
    v_xor_b32 v2, v14, v15
    v_lshlrev_b32 v2, 4, v2
    v_lshl_add_u32 v2, v13, 7, v2
    s_lshl_b32 s52, s63, 13
    s_lshl_b32 s53, s64, 12
    s_add_u32 s52, s52, s53
    v_add_u32 v2, s52, v2
    v_xor_b32 v3, 32, v2
    v_xor_b32 v4, 64, v2
    v_xor_b32 v5, 96, v2
    v_bfe_u32 v15, v1, 2, 2
    v_lshlrev_b32 v7, 3, v14
    v_add_u32 v7, v7, v15
    v_mul_u32_u24 v9, 40, v7
    v_lshlrev_b32 v8, 6, v7
    v_lshlrev_b32 v7, 7, v7
    v_lshrrev_b32 v16, 1, v15
    v_xor_b32 v16, s64, v16
    v_lshl_add_u32 v7, v16, 6, v7
    v_bfe_u32 v16, v1, 4, 1
    v_and_b32 v17, 3, v1
    v_lshlrev_b32 v16, 5, v16
    v_lshl_add_u32 v16, v17, 3, v16
    v_add_u32 v7, v7, v16
    v_add_u32 v9, v9, v16
    v_cmp_eq_u32 vcc, 40, v16
    s_nop 1
    v_cndmask_b32 v16, v16, 48, vcc
    v_add_u32 v8, v8, v16
    v_add_u32 v7, {WB}, v7
    v_add_u32 v8, {WB+8192}, v8
    v_add_u32 v9, {WB}, v9
    s_mov_b32 s44, 0
    s_mov_b32 s45, 0
    s_mov_b32 s46, 0
    """)
    a.c("v2..v5 x frag addr (row block 2rp+cp) for the 4 k steps of a pair; v7 W, v8 wq slice, v9 wk/wv slice addr; s63=rp s64=cp")
    for r in range(64, 144, 2):
        a(f"v_mov_b64 v[{r}:{r+1}], 0")
    a("s_waitcnt lgkmcnt(0)")
    srd(a, 8, 18, 19, WS_SIZE)
    a(f"""
    s_or_b32 s52, s22, s2
    s_cmp_lg_u32 s52, 0
    s_cbranch_scc1 {L}_nonon
    s_load_dwordx2 s[52:53], s[0:1], 88
    s_memrealtime s[54:55]
    v_mov_b32 v148, 0
    s_waitcnt lgkmcnt(0)
    s_or_b32 s54, s54, 1
    v_mov_b32 v144, s54
    v_mov_b32 v145, s55
    s_mov_b64 exec, 1
    global_store_dwordx2 v148, v[144:145], s[52:53] sc0 sc1
    s_mov_b64 exec, -1
    {L}_nonon:
    s_lshr_b32 s52, s21, 4
    s_xor_b32 s53, s22, 1
    s_or_b32 s52, s52, s53
    s_cmp_lg_u32 s52, 0
    s_cbranch_scc1 {L}_noin
    s_lshl_b32 s52, s20, 5
    s_add_u32 s52, s52, s21
    s_lshl_b32 s52, s52, 7
    s_add_u32 s52, s52, {WS_F+F3}
    s_mov_b64 exec, 1
    buffer_store_dword v64, v64, s[8:11], s52 offen sc1
    s_mov_b64 exec, -1
    {L}_noin:
    """)
    if E("CPF", "0") == "1":
        a(f"""
        s_lshr_b32 s52, s2, {3 + int(E("CPFS", "0"))}
        s_xor_b32 s53, s22, 2
        s_or_b32 s52, s52, s53
        s_cmp_lg_u32 s52, 0
        s_cbranch_scc1 {L}_nocpf
        s_getpc_b64 s[52:53]
        {L}_pc:
        s_sub_u32 s52, s52, {L}_pc-{L}
        s_subb_u32 s53, s53, 0
        v_lshlrev_b32 v144, 7, v1
        global_load_dword v145, v144, s[52:53]
        v_add_u32 v144, 8192, v144
        v_cmp_gt_u32 vcc, {L}_end-{L}, v144
        s_nop 1
        s_mov_b64 exec, vcc
        global_load_dword v145, v144, s[52:53]
        s_mov_b64 exec, -1
        {L}_nocpf:
        """)
    a(f"""
    s_cmp_eq_u32 s21, 27
    s_cbranch_scc1 {L}_modeK
    s_cmp_eq_u32 s21, 28
    s_cbranch_scc1 {L}_modeV
    s_cmp_gt_u32 s21, 28
    s_cbranch_scc1 {L}_modeQ
    """)
    XA = [16, 36]
    XC = [56, 57, 58, 59]
    XD = [60, 61, 62, 63]
    def xaddrs(full):
        l = [f"v_add_u32 v{XC[j]}, s45, v{2+j}" for j in range(4)]
        if full: l += [f"v_xor_b32 v{XD[j]}, 4096, v{XC[j]}" for j in range(4)]
        return l + [f"s_add_u32 s45, s45, {XSL}", f"s_cmp_ge_u32 s45, {WB}", "s_cselect_b32 s45, 0, s45"]
    def waddrs(mode):
        l = ["v_add_u32 v12, s44, v8"]
        if mode == 0: l.append("v_add_u32 v11, s44, v7")
        if mode in (1, 2): l.append("v_add_u32 v11, s44, v9")
        return l + [f"s_add_u32 s44, s44, {WSL}", f"s_cmp_ge_u32 s44, {4*WSL}", "s_cselect_b32 s44, 0, s44"]
    def read_list(j, mode):
        ks = j & 1
        b = XA[ks]
        l = [f"ds_read_b128 {vr(b,4)}, v{XC[j]}"]
        if mode == 0:
            l += [f"ds_read_b64_tr_b16 {vr(b+8,2)}, v11 offset:{ks*2048}",
                  f"ds_read_b64_tr_b16 {vr(b+10,2)}, v11 offset:{ks*2048+512}",
                  f"ds_read_b64_tr_b16 {vr(b+12,2)}, v11 offset:{4096+ks*2048}",
                  f"ds_read_b64_tr_b16 {vr(b+14,2)}, v11 offset:{4096+ks*2048+512}",
                  f"ds_read_b128 {vr(b+4,4)}, v{XD[j]}"]
        if mode in (1, 2):
            l += [f"ds_read_b64_tr_b16 {vr(b+8,2)}, v11 offset:{ks*640}",
                  f"ds_read_b64_tr_b16 {vr(b+10,2)}, v11 offset:{ks*640+160}"]
        l += [f"ds_read_b64_tr_b16 {vr(b+16,2)}, v12 offset:{ks*1024}",
              f"ds_read_b64_tr_b16 {vr(b+18,2)}, v12 offset:{ks*1024+256}"]
        return l
    def mfma_list(ks, mode):
        b = XA[ks]
        x0, x1, wg, wu, ws = vr(b,4), vr(b+4,4), vr(b+8,4), vr(b+12,4), vr(b+16,4)
        l = []
        if mode == 0:
            l = [f"{M} v[64:79], {wg}, {x0}, v[64:79]", f"{M} v[80:95], {wu}, {x0}, v[80:95]",
                 f"{M} v[96:111], {wg}, {x1}, v[96:111]", f"{M} v[112:127], {wu}, {x1}, v[112:127]"]
        if mode == 1: l = [f"{M} v[64:79], {wg}, {x0}, v[64:79]"]
        if mode == 2: l = [f"{M} v[64:79], {x0}, {wg}, v[64:79]"]
        l = l + [f"{M} v[128:143], {ws}, {x0}, v[128:143]"]
        if E("HACK16", "0") == "1" and mode == 0:
            import re
            l2 = []
            for m in l:
                b0 = int(re.search(r"v\[(\d+):", m).group(1)); ops = m.split(", ")
                t = f"v_mfma_f32_16x16x32_bf16 {{d}}, {ops[1]}, {ops[2]}, {{d}}"
                l2.append(t.format(d=vr(b0+8*ks,4)) + "\n" + t.format(d=vr(b0+8*ks+4,4)))
            l = l2
        return l
    def half(ml, rl, post):
        n = len(ml)
        if n == 5 and E("P1V", "1") == "1":
            a("s_waitcnt lgkmcnt(2)")
            cuts = [int(x) for x in E("P1CUT", "3,6,8,8").split(",")]
            lo = 0
            for i, m in enumerate(ml):
                if i == 4: a("s_waitcnt lgkmcnt(8)")
                a(m)
                if i < 4:
                    for x in rl[lo:cuts[i]]: a(x)
                    lo = cuts[i]
                if i == 3:
                    for x in post: a(x)
            return
        a("s_waitcnt lgkmcnt(0)")
        per = -(-len(rl) // max(n - 1, 1))
        for i, m in enumerate(ml):
            a(m)
            if n == 1:
                for x in rl + post: a(x)
                continue
            for x in rl[per*i:per*i+per]: a(x)
            if i == n - 2:
                for x in post: a(x)
    for mode, tag in ((0, "full"), (1, "modeK"), (2, "modeV"), (3, "modeQ")):
        a(f"{L}_{tag}:")
        for x in xaddrs(mode == 0) + waddrs(mode): a(x)
        a("s_barrier")
        for x in read_list(0, mode): a(x)
        stamp(a, 1)
        if mode == 0: a(".p2align 6")
        a(f"{L}_{tag}_loop:")
        half(mfma_list(0, mode), read_list(1, mode), waddrs(mode))
        a("s_barrier")
        half(mfma_list(1, mode), read_list(2, mode), [])
        half(mfma_list(0, mode), read_list(3, mode), waddrs(mode) + xaddrs(mode == 0))
        a("s_barrier")
        half(mfma_list(1, mode), read_list(0, mode), ["s_add_u32 s46, s46, 1", "s_cmp_lt_u32 s46, 10"])
        a(f"s_cbranch_scc1 {L}_{tag}_loop")
        stamp(a, 2)
        a(f"""
        s_lshl_b32 s52, s20, 3
        s_lshl_b32 s53, s63, 1
        s_add_u32 s52, s52, s53
        s_add_u32 s52, s52, s64
        v_lshlrev_b32 v2, 4, v1
        """)
        a(f"s_branch {L}_epi{mode}")
    a.c("s52 = global row block of acc set 0 and of the q chain (set 1 is s52 ^ 1)")
    EK = 64
    a(f"""
    {L}_epi1:
    s_mul_i32 s53, s52, 3072
    s_add_u32 s53, s53, {WS_KV}
    s_nop 7
    s_waitcnt lgkmcnt(0)
    """)
    for i in range(4): a(f"v_cvt_pk_bf16_f32 v{20+i}, v{EK+2*i}, v{EK+2*i+1}")
    a(f"buffer_store_dwordx4 v[20:23], v2, s[8:11], s53 offen{SC}")
    a(f"v_cvt_pk_bf16_f32 v24, v{EK+8}, v{EK+9}")
    a(f"v_cvt_pk_bf16_f32 v25, v{EK+10}, v{EK+11}")
    a("v_mov_b32 v26, 0x3f803f80")
    a("v_mov_b32 v27, 0x00003f80")
    a(f"v_mul_f32 v30, v{EK}, v{EK}")
    for i in range(1, 8): a(f"v_fmac_f32 v30, v{EK+i}, v{EK+i}")
    a(f"v_mul_f32 v31, v{EK+8}, v{EK+8}")
    for i in range(9, 12): a(f"v_fmac_f32 v31, v{EK+i}, v{EK+i}")
    a(f"""
    v_cmp_gt_u32 vcc, 32, v1
    s_nop 1
    v_cndmask_b32 v31, 0, v31, vcc
    v_add_f32 v30, v30, v31
    v_mov_b32 v31, v30
    s_nop 1
    v_permlane32_swap_b32 v30, v31
    s_nop 1
    v_add_f32 v30, v30, v31
    """)
    for sh in (1, 2, 4, 8):
        a("s_nop 1")
        a(f"v_max_f32_dpp v30, v30, v30 row_shr:{sh} row_mask:0xf bank_mask:0xf")
    a(f"""
    s_nop 1
    v_max_f32_dpp v30, v30, v30 row_bcast:15 row_mask:0xa bank_mask:0xf
    v_cmp_eq_u32 vcc, 63, v1
    v_and_b32 v30, 0xffff0000, v30
    v_or_b32 v30, 0x3f80, v30
    v_cndmask_b32 v27, v27, v30, vcc
    v_cmp_gt_u32 vcc, 32, v1
    v_lshlrev_b32 v16, 3, v1
    s_nop 0
    v_cndmask_b32 v24, v26, v24, vcc
    v_cndmask_b32 v25, v27, v25, vcc
    buffer_store_dwordx2 v[24:25], v16, s[8:11], s53 offen offset:1024{SC}
    s_branch {L}_kvdone
    {L}_epi2:
    s_mul_i32 s53, s52, 3072
    s_add_u32 s53, s53, {WS_KV+1536}
    v_and_b32 v17, 31, v1
    v_lshrrev_b32 v18, 5, v1
    v_mul_u32_u24 v18, 384, v18
    v_lshl_add_u32 v16, v17, 4, v18
    v_mov_b32 v19, 0x3f803f80
    v_cmp_eq_u32 vcc, 20, v17
    v_cmp_lt_u32 s[54:55], 19, v17
    s_nop 3
    v_cndmask_b32 v19, 0, v19, vcc
    s_waitcnt lgkmcnt(0)
    """)
    for i in range(8): a(f"v_cvt_pk_bf16_f32 v{20+i}, v{EK+2*i}, v{EK+2*i+1}")
    for i in range(8): a(f"v_cndmask_b32 v{20+i}, v{20+i}, v19, s[54:55]")
    a(f"""
    v_cmp_gt_u32 vcc, 24, v17
    s_nop 1
    s_and_b64 exec, exec, vcc
    buffer_store_dwordx4 v[20:23], v16, s[8:11], s53 offen{SC}
    buffer_store_dwordx4 v[24:27], v16, s[8:11], s53 offen offset:768{SC}
    {L}_kvdone:
    s_mov_b64 exec, -1
    s_waitcnt vmcnt(0)
    s_barrier
    s_branch {L}_epi3
    """)
    C0 = -2.0 * 0.7978845608028654 * LOG2E
    C1 = C0 * 0.044715
    a(f"""
    {L}_epi0:
    v_mov_b32 v16, {f32(C0)}
    v_mov_b32 v17, {f32(C1)}
    s_lshl_b32 s54, s21, 12
    s_lshl_b32 s55, s64, 11
    s_add_u32 s54, s54, s55
    s_add_u32 s54, s54, {WS_H}
    s_mul_i32 s53, s52, {108*1024}
    s_add_u32 s53, s53, s54
    s_xor_b32 s55, s52, 1
    s_mul_i32 s55, s55, {108*1024}
    s_add_u32 s54, s54, s55
    s_waitcnt lgkmcnt(0)
    """)
    for j in range(2):
        G, U = 64 + 32*j, 80 + 32*j
        for hf in range(2):
            T = 20
            rs = list(range(8*hf, 8*hf+8))
            for i, r in enumerate(rs): a(f"v_mul_f32 v{T+i}, v{G+r}, v{G+r}")
            for i, r in enumerate(rs): a(f"v_fma_f32 v{T+i}, v{T+i}, v17, v16")
            for i, r in enumerate(rs): a(f"v_mul_f32 v{T+i}, v{G+r}, v{T+i}")
            for i, r in enumerate(rs): a(f"v_exp_f32 v{T+i}, v{T+i}")
            for i, r in enumerate(rs): a(f"v_mul_f32 v{U+r}, v{G+r}, v{U+r}")
            for i, r in enumerate(rs): a(f"v_add_f32 v{T+i}, 1.0, v{T+i}")
            for i, r in enumerate(rs): a(f"v_rcp_f32 v{T+i}, v{T+i}")
            a("s_nop 0")
            for i, r in enumerate(rs): a(f"v_mul_f32 v{T+i}, v{U+r}, v{T+i}")
            O = 28 + 4*(2*j+hf)
            for i in range(4): a(f"v_cvt_pk_bf16_f32 v{O+i}, v{T+2*i}, v{T+2*i+1}")
            a(f"buffer_store_dwordx4 {vr(O,4)}, v2, s[8:11], s{53+j} offen offset:{1024*hf}{SC}")
    a(f"""
    {L}_epi3:
    """)
    if E("ES"): stamp(a, 6)
    a(f"""
    s_nop 7
    v_mov_b32 v144, {f32(QSCALE)}
    s_waitcnt lgkmcnt(0)
    """)
    for i in range(12): a(f"v_mul_f32 v{128+i}, v144, v{128+i}")
    for i in range(6): a(f"v_cvt_pk_bf16_f32 v{QA1+i}, v{128+2*i}, v{129+2*i}")
    a(f"""
    s_mul_i32 s52, s63, 1536
    s_add_u32 s52, s52, {QST}
    v_add_u32 v144, s52, v2
    v_lshl_add_u32 v145, v1, 3, s52
    s_cmp_ge_u32 s22, 4
    s_cbranch_scc1 {L}_gwave
    """)
    a(f"""
    s_setprio {E("APRIO", "1")}
    v_and_b32 v9, 31, v1
    v_lshrrev_b32 v10, 5, v1
    v_add_u32 v3, {KVR}, v2
    v_lshlrev_b32 v4, 3, v1
    v_add_u32 v4, {KVR+1024}, v4
    v_min_u32 v5, 23, v9
    v_mul_u32_u24 v11, 384, v10
    v_lshl_add_u32 v5, v5, 4, v11
    v_add_u32 v5, {KVR+1536}, v5
    v_lshlrev_b32 v146, 2, v1
    v_add_u32 v146, {QST+6144}, v146
    v_add_u32 v6, {CH}, v3
    v_add_u32 v7, {CH}, v4
    v_add_u32 v8, {CH}, v5
    s_mov_b32 s27, {2*CH}
    s_mov_b32 s30, 0
    v_cmp_gt_u32 s[28:29], 32, v1
    v_lshlrev_b32 v60, 3, v9
    v_lshl_add_u32 v60, v10, 8, v60
    s_lshl_b32 s33, s20, 3
    s_lshl_b32 s52, s22, 1
    s_add_u32 s33, s33, s52
    s_mul_i32 s33, s33, 40960
    s_mul_i32 s52, s21, 1280
    s_add_u32 s33, s33, s52
    s_add_u32 s33, s33, {WS_O}
    s_add_u32 s31, s33, 40960
    """)
    a.c("v60 = o store offset, s33/s31 = o image base of block a / b")
    for r in list(range(OA, OA+32, 2)) + list(range(PB, PB+8, 2)) + list(range(KVB[1]+8, KVB[1]+16, 2)):
        a(f"v_mov_b64 v[{r}:{r+1}], 0")
    def qnorm(q1, q2, t, extra=()):
        ex = list(extra) + [""] * 2
        a(f"""
        v_cndmask_b32 v{q2}, 0, v{q2}, s[28:29]
        v_cndmask_b32 v{q2+1}, 0, v{q2+1}, s[28:29]
        v_mov_b32 v{t}, 0
        {ex[0]}
        v_dot2_f32_bf16 v{t}, v{q1}, v{q1}, v{t}
        v_dot2_f32_bf16 v{t}, v{q1+1}, v{q1+1}, v{t}
        v_dot2_f32_bf16 v{t}, v{q1+2}, v{q1+2}, v{t}
        {ex[1]}
        v_dot2_f32_bf16 v{t}, v{q1+3}, v{q1+3}, v{t}
        v_dot2_f32_bf16 v{t}, v{q2}, v{q2}, v{t}
        v_dot2_f32_bf16 v{t}, v{q2+1}, v{q2+1}, v{t}
        """)
    qnorm(QA1, QA2, 147)
    if E("ES"): stamp(a, 3)
    a(f"""
    s_barrier
    ds_read_b32 v146, v146
    ds_read_b128 {vr(QB1,4)}, v144
    ds_read_b64 {vr(QB2,2)}, v145 offset:1024
    ds_read_b128 {vr(KVB[0],4)}, v6
    ds_read_b64 {vr(KVB[0]+4,2)}, v7
    ds_read_b128 {vr(KVB[1],4)}, v6 offset:3072
    ds_read_b64 {vr(KVB[1]+4,2)}, v7 offset:3072
    ds_read_b128 {vr(KVB[0]+8,4)}, v8
    ds_read_b128 {vr(KVB[0]+12,4)}, v8 offset:768
    """)
    stamp(a, 4)
    dm = lambda k: f"v_max_f32_dpp v146, v146, v146 {k} bank_mask:0xf"
    a(f"""
    v_mov_b32 v149, v147
    s_waitcnt lgkmcnt(6)
    v_and_b32 v146, 0xffff0000, v146
    v_permlane32_swap_b32 v147, v149
    s_nop 0
    {dm("row_shr:1 row_mask:0xf")}
    v_add_f32 v147, v147, v149
    s_nop 0
    {dm("row_shr:2 row_mask:0xf")}
    """)
    qnorm(QB1, QB2, 148, [dm("row_shr:4 row_mask:0xf"), dm("row_shr:8 row_mask:0xf")])
    a(f"""
    {dm("row_bcast:15 row_mask:0xa")}
    s_nop 1
    v_mov_b32 v150, v148
    {dm("row_bcast:31 row_mask:0xc")}
    s_nop 0
    v_permlane32_swap_b32 v148, v150
    v_readlane_b32 s26, v146, 63
    s_nop 0
    v_add_f32 v148, v148, v150
    v_mul_f32 v147, s26, v147
    v_mul_f32 v148, s26, v148
    v_sqrt_f32 v147, v147
    v_sqrt_f32 v148, v148
    v_mul_f32 v147, {f32(1.02)}, v147
    v_mul_f32 v148, {f32(1.02)}, v148
    """)
    def set_shift(ma, mb):
        for m, q2 in ((ma, QA2), (mb, QB2)):
            split3(a, m, q2+2, q2+3, 149, 150)
            a(f"v_cndmask_b32 v{q2}, v{q2+2}, v{q2}, s[28:29]")
            a(f"v_cndmask_b32 v{q2+1}, v{q2+3}, v{q2+1}, s[28:29]")
    set_shift(147, 148)
    a("s_waitcnt lgkmcnt(0)")
    for x in qk(SA, KVB[0], QA1, QA2): a(x)
    a("s_nop 11")
    a(".p2align 6")
    a(f"{L}_aloop:")
    for t in range(4):
        cur, nxt = KVB[t & 1], KVB[(t + 1) & 1]
        aslot(a, SA, PA, qk(SB, cur, QB1, QB2) + pv(OB, nxt, PB))
        pre = ["s_waitcnt lgkmcnt(0)" if t != 3 else "s_waitcnt vmcnt(0) lgkmcnt(0)"]
        if t == 0 and STAMP: pre.append("s_memtime s[38:39]")
        if t == 0: pre.append("s_barrier")
        if t == 0 and STAMP: pre.append("s_memtime s[36:37]")
        if t == 1 and STAMP: pre += ["s_mov_b32 m0, s30", "s_nop 0", "v_writelane_b32 v61, s36, m0", "v_writelane_b32 v62, s38, m0"]
        if t == 2:
            pre += ["v_add_u32 v6, s27, v3", "v_add_u32 v7, s27, v4"]
        if t == 3:
            pre += ["v_add_u32 v8, s27, v5",
                    f"s_add_u32 s27, s27, {CH}", f"s_cmp_ge_u32 s27, {3*CH}", "s_cselect_b32 s27, 0, s27"]
        ko = ((t + 2) & 3) * 3072
        vo = ((t + 1) & 3) * 3072
        rd = [f"ds_read_b128 {vr(cur,4)}, v6 offset:{ko}",
              f"ds_read_b64 {vr(cur+4,2)}, v7 offset:{ko}",
              f"ds_read_b128 {vr(nxt+8,4)}, v8 offset:{vo}",
              f"ds_read_b128 {vr(nxt+12,4)}, v8 offset:{vo+768}"]
        aslot(a, SB, PB, qk(SA, nxt, QA1, QA2) + pv(OA, cur, PA), pre, rd)
    a(f"""
    s_add_u32 s30, s30, 1
    s_cmp_lt_u32 s30, 16
    s_cbranch_scc1 {L}_aloop
    s_nop 1
    """)
    for x in pv(OB, KVB[1], PB): a(x)
    stamp(a, 5)
    a(f"""
    s_mov_b32 s34, 0
    {L}_aepi:
    s_mov_b32 s35, {f32(2.0**-90)}
    s_waitcnt lgkmcnt(0)
    s_nop 11
    v_mov_b32 v144, v{OA+8}
    v_mov_b32 v145, v{OA+8}
    v_mov_b32 v146, v{OB+8}
    v_mov_b32 v147, v{OB+8}
    s_nop 0
    v_permlane32_swap_b32 v144, v145
    v_permlane32_swap_b32 v146, v147
    s_nop 0
    v_cmp_nle_f32 vcc, s35, v145
    v_cmp_nle_f32 s[36:37], s35, v147
    v_rcp_f32 v145, v145
    v_rcp_f32 v147, v147
    s_or_b64 s[36:37], vcc, s[36:37]
    s_cmp_eq_u32 s34, 0
    s_cselect_b64 s[36:37], s[36:37], 0
    s_cmp_lg_u64 s[36:37], 0
    s_cbranch_scc1 {L}_slow
    """)
    for blk, O in enumerate((OA, OB)):
        R = 145 + 2*blk
        for q in range(3):
            for i in range(4): a(f"v_mul_f32 v{O+4*q+i}, v{R}, v{O+4*q+i}")
            D = 64 + 8*blk + 2*q
            a(f"v_cvt_pk_bf16_f32 v{D}, v{O+4*q}, v{O+4*q+1}")
            a(f"v_cvt_pk_bf16_f32 v{D+1}, v{O+4*q+2}, v{O+4*q+3}")
            if q == 2: a("s_mov_b32 exec_hi, 0")
            a(f"buffer_store_dwordx2 {vr(D,2)}, v60, s[8:11], s{33 if blk == 0 else 31} offen offset:{512*q} sc1")
            if q == 2: a("s_mov_b64 exec, -1")
    if STAMP:
        a(f"""
        s_lshl_b32 s36, s2, 2
        s_add_u32 s36, s36, s22
        s_lshl_b32 s36, s36, 9
        s_add_u32 s36, s36, {0x1900000}
        v_lshlrev_b32 v63, 2, v1
        buffer_store_dword v61, v63, s[8:11], s36 offen
        buffer_store_dword v62, v63, s[8:11], s36 offen offset:256
        """)
    a(f"""
    s_setprio 0
    s_lshl_b32 s36, s20, 5
    s_lshl_b32 s37, s22, 2
    s_add_u32 s36, s36, s37
    s_lshr_b32 s37, s21, 3
    s_add_u32 s36, s36, s37
    s_lshl_b32 s36, s36, 7
    s_add_u32 s36, s36, {WS_F+F3}
    v_mov_b32 v9, 1
    v_mov_b32 v5, 0
    s_waitcnt vmcnt(0)
    s_mov_b64 exec, 1
    buffer_atomic_add v9, v5, s[8:11], s36 offen sc1
    s_mov_b64 exec, -1
    """)
    if not E("ES"): stamp(a, 3)
    a(f"""
    s_branch {L}_p3
    """)
    kb = KVB[0]
    a(f"""
    {L}_slow:
    s_mov_b32 s34, 1
    v_cndmask_b32 v{QA2}, 0, v{QA2}, s[28:29]
    v_cndmask_b32 v{QA2+1}, 0, v{QA2+1}, s[28:29]
    v_cndmask_b32 v{QB2}, 0, v{QB2}, s[28:29]
    v_cndmask_b32 v{QB2+1}, 0, v{QB2+1}, s[28:29]
    v_mov_b32 v147, 0xff800000
    v_mov_b32 v148, 0xff800000
    s_mov_b32 s36, {WS_KV - KVR}
    {L}_slow1:
    buffer_load_dwordx4 {vr(kb,4)}, v3, s[8:11], s36 offen sc1
    buffer_load_dwordx2 {vr(kb+4,2)}, v4, s[8:11], s36 offen sc1
    s_add_u32 s36, s36, 3072
    s_waitcnt vmcnt(0)
    """)
    for x in qk(SA, kb, QA1, QA2) + qk(SB, kb, QB1, QB2): a(x)
    a("s_nop 15")
    for i in range(0, 16, 2):
        a(f"v_max3_f32 v147, v{SA+i}, v{SA+i+1}, v147")
        a(f"v_max3_f32 v148, v{SB+i}, v{SB+i+1}, v148")
    a(f"""
    s_cmp_lt_u32 s36, {WS_KV - KVR + 64*3072}
    s_cbranch_scc1 {L}_slow1
    v_mov_b32 v149, v147
    v_mov_b32 v150, v148
    s_nop 1
    v_permlane32_swap_b32 v147, v149
    v_permlane32_swap_b32 v148, v150
    s_nop 1
    v_max_f32 v147, v147, v149
    v_max_f32 v148, v148, v150
    """)
    set_shift(147, 148)
    for r in range(OA, OA+32): a(f"v_mov_b32 v{r}, 0")
    a(f"""
    s_mov_b32 s36, {WS_KV - KVR}
    {L}_slow2:
    buffer_load_dwordx4 {vr(kb,4)}, v3, s[8:11], s36 offen sc1
    buffer_load_dwordx2 {vr(kb+4,2)}, v4, s[8:11], s36 offen sc1
    buffer_load_dwordx4 {vr(kb+8,4)}, v5, s[8:11], s36 offen sc1
    buffer_load_dwordx4 {vr(kb+12,4)}, v5, s[8:11], s36 offen offset:768 sc1
    s_add_u32 s36, s36, 3072
    s_waitcnt vmcnt(0)
    """)
    for x in qk(SA, kb, QA1, QA2) + qk(SB, kb, QB1, QB2): a(x)
    a("s_nop 15")
    for g in exp_groups(SA, PA) + exp_groups(SB, PB):
        for x in g: a(x)
    a("s_nop 1")
    for x in pv(OA, kb, PA) + pv(OB, kb, PB): a(x)
    a(f"""
    s_cmp_lt_u32 s36, {WS_KV - KVR + 64*3072}
    s_cbranch_scc1 {L}_slow2
    s_nop 7
    s_branch {L}_aepi
    """)

    a(f"""
    {L}_gwave:
    ds_write_b128 v144, {vr(QA1,4)}
    ds_write_b64 v145, {vr(QA2,2)} offset:1024
    s_load_dwordx2 s[6:7], s[0:1], 64
    s_and_b32 s16, s22, 3
    s_and_b32 s57, s21, 3
    s_lshl_b32 s57, s57, 3
    s_lshr_b32 s34, s21, 2
    s_add_u32 s57, s57, s34
    s_cmp_ge_u32 s57, 15
    s_cselect_b32 s33, 1, 0
    s_cselect_b32 s34, 15, 0
    s_sub_u32 s34, s57, s34
    s_lshl_b32 s35, s20, 1
    s_add_u32 s33, s33, s35
    s_mul_i32 s35, s34, 13
    s_lshr_b32 s35, s35, 6
    s_mul_i32 s36, s35, 5
    s_sub_u32 s34, s34, s36
    s_waitcnt lgkmcnt(0)
    """)
    if E("ES"): stamp(a, 3)
    a(f"""
    s_barrier
    s_lshl_b32 s36, s33, 2
    s_add_u32 s36, s36, s16
    s_mul_i32 s36, s36, 108
    s_mul_i32 s37, s35, 36
    s_add_u32 s36, s36, s37
    s_lshl_b32 s36, s36, 10
    s_add_u32 s40, s36, {WS_H}
    s_mul_i32 s41, s35, {576*1280}
    s_mul_i32 s36, s16, {16*1280}
    s_add_u32 s41, s41, s36
    s_lshl_b32 s36, s34, 8
    s_add_u32 s41, s41, s36
    v_lshrrev_b32 v3, 4, v1
    v_lshlrev_b32 v4, 2, v3
    v_and_b32 v5, 15, v1
    v_xor_b32 v4, v4, v5
    s_movk_i32 s36, 1280
    v_mul_u32_u24 v3, s36, v3
    v_lshl_add_u32 v3, v4, 4, v3
    v_add_u32 v4, {5120-1024}, v3
    v_add_u32 v5, {2*(5120-1024)}, v3
    v_add_u32 v13, {3*(5120-1024)}, v3
    s_lshl_b32 s42, s16, 12
    s_add_u32 s43, s42, 16384
    s_mov_b32 s45, 0
    s_mov_b32 s30, 0
    s_mov_b32 s46, 0
    s_cmp_lt_u32 s57, 30
    s_cselect_b32 s47, 9, 0
    s_cselect_b32 s50, {WS_SIZE}, 0
    s_cselect_b32 s54, 2211840, 0
    s_mov_b32 s48, s18
    s_and_b32 s49, s19, 0xffff
    s_mov_b32 s51, 0x20000
    s_mov_b32 s55, 0x20000
    s_mov_b32 m0, s43
    s_mov_b32 s52, s6
    s_and_b32 s53, s7, 0xffff
    """)
    a.c("s33 = row group (128 rows), s34 = col group (128 cols), s35 = k split, s47 = stages of this WG")
    def gw():
        a(f"""
        buffer_load_dwordx4 v3, s[52:55], s41 offen lds
        buffer_load_dwordx4 v4, s[52:55], s41 offen offset:1024 lds
        buffer_load_dwordx4 v5, s[52:55], s41 offen offset:2048 lds
        buffer_load_dwordx4 v13, s[52:55], s41 offen offset:3072 lds
        s_add_u32 s41, s41, {64*1280}
        """)
    def gh():
        a(f"""
        buffer_load_dwordx4 v2, s[48:51], s40 offen{SCL} lds
        buffer_load_dwordx4 v2, s[48:51], s40 offen offset:1024{SCL} lds
        buffer_load_dwordx4 v2, s[48:51], s40 offen offset:2048{SCL} lds
        buffer_load_dwordx4 v2, s[48:51], s40 offen offset:3072{SCL} lds
        s_add_u32 s40, s40, 4096
        """)
    gw()
    a(f"""
    s_and_b32 s36, s16, 1
    s_lshr_b32 s37, s16, 1
    s_lshl_b32 s38, s36, 13
    v_add_u32 v6, s38, v2
    v_lshrrev_b32 v8, 5, v1
    v_bfe_u32 v9, v1, 2, 2
    v_lshl_add_u32 v8, v8, 2, v9
    v_lshlrev_b32 v8, 8, v8
    s_lshl_b32 s38, s37, 1
    v_xor_b32 v9, s38, v9
    v_lshl_add_u32 v8, v9, 6, v8
    v_bfe_u32 v9, v1, 4, 1
    v_lshl_add_u32 v8, v9, 5, v8
    v_and_b32 v9, 3, v1
    v_lshl_add_u32 v8, v9, 3, v8
    v_add_u32 v7, 16384, v8
    v_xor_b32 v8, 64, v7
    """)
    for r in range(64, 128, 2): a(f"v_mov_b64 v[{r}:{r+1}], 0")
    a(f"""
    s_mov_b32 m0, s42
    s_barrier
    s_waitcnt vmcnt(0)
    s_barrier
    s_barrier
    s_barrier
    """)
    gh()
    a(f"""
    s_mov_b32 s44, {GSL}
    s_branch {L}_gin
    {L}_gloop:
    s_barrier
    {L}_gin:
    s_add_u32 s46, s46, 1
    s_cmp_ge_u32 s46, s47
    s_cbranch_scc1 {L}_gnod
    s_add_u32 m0, s44, s42
    s_nop 0
    """)
    gh()
    a("s_add_u32 m0, s44, s43")
    a(f"s_add_u32 s44, s44, {GSL}")
    gw()
    a(f"""
    s_cmp_ge_u32 s44, {3*GSL}
    s_cselect_b32 s44, 0, s44
    {L}_gnod:
    s_sub_u32 s36, s30, 1
    s_cmp_ge_u32 s36, s47
    s_cbranch_scc1 {L}_gskip
    v_add_u32 v10, s45, v6
    v_add_u32 v11, s45, v7
    v_add_u32 v12, s45, v8
    s_add_u32 s45, s45, {GSL}
    s_cmp_ge_u32 s45, {3*GSL}
    s_cselect_b32 s45, 0, s45
    """)
    FB = [16, 32]
    def rl(ks):
        b = FB[ks & 1]
        return [f"ds_read_b128 {vr(b,4)}, v10 offset:{ks*1024}",
                f"ds_read_b64_tr_b16 {vr(b+8,2)}, v11 offset:{ks*4096}",
                f"ds_read_b64_tr_b16 {vr(b+10,2)}, v11 offset:{ks*4096+2048}",
                f"ds_read_b64_tr_b16 {vr(b+12,2)}, v12 offset:{ks*4096}",
                f"ds_read_b64_tr_b16 {vr(b+14,2)}, v12 offset:{ks*4096+2048}",
                f"ds_read_b128 {vr(b+4,4)}, v10 offset:{ks*1024+4096}"]
    def ml(ks):
        b = FB[ks & 1]
        x0, x1, w0, w1 = vr(b,4), vr(b+4,4), vr(b+8,4), vr(b+12,4)
        return [f"{M} v[64:79], {w0}, {x0}, v[64:79]", f"{M} v[80:95], {w1}, {x0}, v[80:95]",
                f"{M} v[96:111], {w0}, {x1}, v[96:111]", f"{M} v[112:127], {w1}, {x1}, v[112:127]"]
    for x in rl(0): a(x)
    for ks in range(4):
        a("s_waitcnt lgkmcnt(0)")
        r = rl(ks + 1) if ks < 3 else []
        for i, m in enumerate(ml(ks)):
            a(m)
            for x in r[2*i:2*i+2]: a(x)
    a(f"""
    s_cmp_lg_u32 s30, s47
    s_cbranch_scc1 {L}_gskip
    s_lshl_b32 s36, s35, 6
    s_lshl_b32 s37, s33, 2
    s_add_u32 s36, s36, s37
    s_and_b32 s37, s16, 1
    s_lshl_b32 s37, s37, 1
    s_add_u32 s36, s36, s37
    s_mul_i32 s36, s36, 40
    s_lshl_b32 s37, s34, 3
    s_add_u32 s36, s36, s37
    s_lshr_b32 s37, s16, 1
    s_lshl_b32 s37, s37, 2
    s_add_u32 s36, s36, s37
    s_lshl_b32 s36, s36, 10
    s_add_u32 s36, s36, {WS_B}
    s_add_u32 s37, s36, 40960
    s_nop 7
    """)
    for u in range(4):
        A = 64 + 16*u
        for qp in range(2):
            O = 16 + 4*((2*u+qp) % 8)
            for i in range(4):
                a(f"v_cvt_pk_bf16_f32 v{O+i}, v{A+8*qp+2*i}, v{A+8*qp+2*i+1}")
            a(f"buffer_store_dwordx4 {vr(O,4)}, v2, s[8:11], s{36 + (u>>1)} offen offset:{(u&1)*2048 + qp*1024} sc1")
    a(f"""
    s_branch {L}_gend
    {L}_gskip:
    s_add_u32 s30, s30, 1
    s_cmp_ge_u32 s30, 10
    s_cbranch_scc1 {L}_gend
    s_cmp_lt_u32 s46, s47
    s_cbranch_scc1 {L}_gw8
    s_waitcnt vmcnt(0)
    {L}_gw8:
    s_waitcnt vmcnt(8)
    s_branch {L}_gloop
    {L}_gend:
    s_barrier
    s_waitcnt vmcnt(0)
    s_barrier
    s_barrier
    """)

    a(f"""
    {L}_p3:
    s_load_dwordx2 s[4:5], s[0:1], 80
    s_lshl_b32 s17, s20, 3
    s_and_b32 s16, s21, 3
    s_lshl_b32 s16, s16, 1
    s_add_u32 s17, s17, s16
    s_lshr_b32 s16, s21, 2
    s_and_b32 s36, s22, 1
    s_lshr_b32 s39, s22, 1
    s_add_u32 s36, s17, s36
    s_mul_i32 s36, s36, 40
    s_mul_i32 s37, s39, 10
    s_add_u32 s36, s36, s37
    s_lshl_b32 s36, s36, 10
    s_add_u32 s36, s36, {WS_O}
    s_add_u32 s37, s36, 4096
    s_add_u32 s38, s36, 8192
    v_lshrrev_b32 v8, 5, v1
    v_bfe_u32 v9, v1, 2, 2
    v_lshl_add_u32 v8, v8, 2, v9
    v_mul_u32_u24 v8, 192, v8
    v_bfe_u32 v9, v1, 4, 1
    v_lshl_add_u32 v8, v9, 5, v8
    v_and_b32 v9, 3, v1
    v_lshl_add_u32 v8, v9, 3, v8
    s_lshl_b32 s48, s39, 2
    s_mul_i32 s49, s39, 30720
    v_add_u32 v8, s49, v8
    v_lshlrev_b32 v7, 3, v1
    v_and_b32 v6, 31, v1
    s_lshl_b32 s39, s17, 5
    v_add_u32 v6, s39, v6
    v_lshrrev_b32 v4, 3, v6
    v_lshlrev_b32 v4, 7, v4
    v_and_b32 v9, 7, v1
    v_lshl_add_u32 v4, v9, 2, v4
    s_mov_b32 s40, {WS_G}
    s_mul_i32 s41, s16, 10
    s_add_u32 s41, s41, s22
    s_lshr_b32 s42, s41, 1
    s_lshl_b32 s42, s42, 10
    s_and_b32 s43, s41, 1
    s_lshl_b32 s43, s43, 3
    s_add_u32 s42, s42, s43
    s_mul_i32 s43, s17, 40960
    s_add_u32 s42, s42, s43
    s_add_u32 s42, s42, {WS_B}
    v_mov_b32 v22, {NONCE}
    s_lshr_b32 s46, s22, 1
    s_lshl_b32 s45, 1, s46
    """)
    a.c("s17 = first row block of the tile, s16 = column group; final items: quad = wave, both row blocks")
    def bg():
        a("buffer_load_dword v140, v4, s[8:11], s40 offen sc1")
        a("buffer_load_dword v141, v4, s[8:11], s40 offen offset:512 sc1")
        for j in range(2):
            for sk in range(3):
                a(f"s_add_u32 s43, s42, {j*40960 + sk*64*40960}")
                a(f"buffer_load_dwordx2 {vr(128+6*j+2*sk,2)}, v2, s[8:11], s43 offen sc1")
    a(f"""
    s_movk_i32 s43, 1280
    v_mul_lo_u32 v6, v6, s43
    v_lshrrev_b32 v9, 5, v1
    v_lshl_add_u32 v6, v9, 3, v6
    s_lshl_b32 s41, s41, 4
    s_add_u32 s44, s41, 40960
    s_waitcnt lgkmcnt(0)
    """)
    srd(a, 12, 4, 5, 2621440)
    for r in range(64, 112, 2): a(f"v_mov_b64 v[{r}:{r+1}], 0")
    WF = [112, 144]
    def wr(ks):
        b = WF[ks & 1]
        return [f"ds_read_b64_tr_b16 {vr(b+4*cb+2*t,2)}, v8 offset:{ks*3072 + t*1536 + 64*cb}" for cb in range(3) for t in range(2)]
    a(f"""
    s_mov_b32 s70, {SPIN}
    s_cmp_lg_u32 s22, 8
    s_cbranch_scc1 {L}_p3w1
    s_mov_b64 exec, 0xf
    {L}_p3poll:
    buffer_load_dword v24, v3, s[8:11], s35 offen sc1
    s_sub_u32 s70, s70, 1
    s_cselect_b32 s47, -1, 0
    s_waitcnt vmcnt(0)
    v_cmp_eq_u32 vcc, 8, v24
    s_or_b32 s47, s47, vcc_lo
    s_or_b32 s47, s47, 0xfffffff0
    v_mov_b32 v23, s47
    ds_write_b32 v22, v23 offset:8
    s_sleep {E("PSLEEP", "2")}
    s_cmp_lg_u32 s47, -1
    s_cbranch_scc1 {L}_p3poll
    """)
    stamp(a, 6)
    a(f"""
    s_mov_b64 exec, -1
    {L}_p3w1:
    ds_read_b32 v10, v22 offset:12
    s_waitcnt lgkmcnt(0)
    v_readfirstlane_b32 s46, v10
    s_cmp_eq_u32 s46, 2
    s_cbranch_scc1 {L}_p3rdy
    s_sleep 1
    s_branch {L}_p3w1
    {L}_p3rdy:
    """)
    bg()
    for x in wr(0): a(x)
    a("s_waitcnt vmcnt(0)")
    for j in range(2):
        a(f"""
        v_sub_f32 v142, 1.0, v{140+j}
        v_cvt_pk_bf16_f32 v142, v142, v142
        v_lshlrev_b32 v142, 16, v142
        """)
        B = 128 + 6*j
        for i in range(4):
            ex = (lambda d, r: f"v_lshlrev_b32 v{d}, 16, v{r}") if i % 2 == 0 else (lambda d, r: f"v_and_b32 v{d}, 0xffff0000, v{r}")
            a(f"""
            {ex(12+4*j+i, B + i//2)}
            {ex(143, B + 2 + i//2)}
            v_add_f32 v{12+4*j+i}, v{12+4*j+i}, v143
            {ex(143, B + 4 + i//2)}
            v_add_f32 v{12+4*j+i}, v{12+4*j+i}, v143
            v_mul_f32 v{12+4*j+i}, v142, v{12+4*j+i}
            """)
    a(f"""
    s_cmp_ge_u32 s22, 8
    s_cbranch_scc1 {L}_p3r
    {L}_p3w:
    ds_read_b32 v10, v22 offset:8
    s_waitcnt lgkmcnt(0)
    v_readfirstlane_b32 s47, v10
    s_and_b32 s47, s47, s45
    s_cmp_eq_u32 s47, s45
    s_cbranch_scc1 {L}_p3m
    s_sleep 1
    s_branch {L}_p3w
    {L}_p3m:
    """)
    if not E("ES"): stamp(a, 6)
    OF = 24
    for ks in range(10):
        for sl in range(2):
            a(f"buffer_load_dwordx2 {vr(OF+4*ks+2*sl,2)}, v7, s[8:11], s{36+ks//4} offen offset:{(ks%4)*1024+512*sl}{E('OSC', ' sc1')}")
    for ks in range(10):
        a(f"s_waitcnt vmcnt({18-2*ks}) lgkmcnt(0)")
        r = wr(ks+1) if ks < 9 else []
        b = WF[ks & 1]
        for cb in range(3):
            a(f"{M} {vr(64+16*cb,16)}, {vr(b+4*cb,4)}, {vr(OF+4*ks,4)}, {vr(64+16*cb,16)}")
            for x in r[2*cb:2*cb+2]: a(x)
    a(f"""
    v_add_u32 v23, s48, v22
    v_mov_b32 v9, 1
    s_mov_b64 exec, 1
    ds_add_u32 v23, v9 offset:16
    s_mov_b64 exec, -1
    s_and_b32 s47, s22, 1
    s_mul_i32 s47, s47, 10240
    s_add_u32 s39, s49, s47
    v_add_u32 v5, s39, v2
    {L}_p3pw:
    ds_read_b32 v9, v23 offset:16
    s_waitcnt lgkmcnt(0)
    v_readfirstlane_b32 s47, v9
    s_cmp_lg_u32 s47, 2
    s_cbranch_scc1 {L}_p3pw
    """)
    for q in range(10):
        a(f"ds_write_b128 v5, {vr(64+4*q,4)} offset:{1024*q}")
    a(f"""
    s_waitcnt lgkmcnt(0)
    {L}_p3r:
    """)
    if STAMP:
        a(f"s_cmp_lt_u32 s22, 4\ns_cbranch_scc1 {L}_st4")
        stamp(a, 4)
        a(f"{L}_st4:")
    a(f"""
    s_lshl_b32 s39, s22, 10
    v_add_u32 v5, s39, v2
    v_add_u32 v7, 61440, v5
    s_barrier
    """)
    for j in range(2):
        for kq in range(4):
            a(f"ds_read_b128 {vr(24+16*j+4*kq,4)}, v{5 if kq < 2 else 7} offset:{j*10240 + (kq%2)*30720}")
    for j in range(2):
        P = 24 + 16*j
        a(f"s_waitcnt lgkmcnt({4 - 4*j})")
        for i in range(4):
            a(f"""
            v_add_f32 v{P+i}, v{P+i}, v{P+4+i}
            v_add_f32 v{P+8+i}, v{P+8+i}, v{P+12+i}
            v_add_f32 v{P+i}, v{P+i}, v{P+8+i}
            v_fma_f32 v{P+i}, v{140+j}, v{P+i}, v{12+4*j+i}
            """)
        a(f"""
        v_cvt_pk_bf16_f32 v{P}, v{P}, v{P+1}
        v_cvt_pk_bf16_f32 v{P+1}, v{P+2}, v{P+3}
        buffer_store_dwordx2 {vr(P,2)}, v6, s[12:15], s{41 if j == 0 else 44} offen
        """)
    stamp_out(a, 7, 0)
    a(f"{L}_end:")
    a("s_endpgm")
    kernel_desc(a, name, 160, 100)
```

```python
class Asm:
    def __init__(self):
        self.lines = []
    def __call__(self, s=""):
        for l in s.split("\n"):
            l = l.strip()
            if not l:
                continue
            if l.endswith(":") or l.startswith("."):
                self.lines.append(l)
            else:
                self.lines.append("    " + l)
    def c(self, s):
        self.lines.append("    ; " + s)
    def text(self):
        return "\n".join(self.lines) + "\n"

def vr(b, n):
    return f"v[{b}:{b+n-1}]" if n > 1 else f"v{b}"
def sr(b, n):
    return f"s[{b}:{b+n-1}]" if n > 1 else f"s{b}"

import struct
def f32(x):
    return "0x%08x" % struct.unpack("<I", struct.pack("<f", x))[0]

WS_Q    = 0x0000000
WS_KV   = 0x0300000
WS_KMAX = 0x0340000
WS_G    = 0x0380000
WS_H    = 0x0400000
WS_O    = 0x0C00000
WS_O2   = 0x1A00000
WS_B    = 0x1000000
WS_F    = 0x0340000
FQ, F2, F3 = 0x8000, 0x10000, 0x18000
WS_SIZE = 0x2000000

def srd(a, d, lo, hi, size):
    a(f"s_mov_b32 s{d}, s{lo}")
    a(f"s_and_b32 s{d+1}, s{hi}, 0xffff")
    if isinstance(size, int):
        a(f"s_mov_b32 s{d+2}, {size}")
    else:
        a(f"s_mov_b32 s{d+2}, {size}")
    a(f"s_mov_b32 s{d+3}, 0x20000")

def kernel_head(a, name):
    a(".text")
    a(f".globl {name}")
    a(".p2align 8")
    a(f".type {name},@function")
    a(f"{name}:")

def kernel_desc(a, name, nv, ns, acc=None):
    acc = acc if acc is not None else ((nv + 3) // 4) * 4
    a('.section .rodata,"a"')
    a(".p2align 6")
    a(f".amdhsa_kernel {name}")
    a.lines.append(f"  .amdhsa_next_free_vgpr {nv}")
    a.lines.append(f"  .amdhsa_next_free_sgpr {ns}")
    a.lines.append(f"  .amdhsa_accum_offset {acc}")
    a.lines.append("  .amdhsa_group_segment_fixed_size 0")
    a.lines.append("  .amdhsa_kernarg_size 104")
    a.lines.append("  .amdhsa_user_sgpr_count 2")
    a.lines.append("  .amdhsa_user_sgpr_kernarg_segment_ptr 1")
    a.lines.append("  .amdhsa_system_sgpr_workgroup_id_x 1")
    a(".end_amdhsa_kernel")

import os
STAMP = os.environ.get("STAMP", "0") == "1"
TM = "s_memrealtime" if os.environ.get("RT", "0") == "1" else "s_memtime"
def stamp(a, i):
    if STAMP:
        a(f"{TM} s[{84+2*i}:{85+2*i}]")
        if i == 0: a("s_memrealtime s[76:77]")
def stamp_out(a, n, label):
    if not STAMP: return
    a("s_mov_b64 exec, -1")
    a(f"{TM} s[{84+2*n}:{85+2*n}]")
    a("s_memrealtime s[78:79]")
    a("s_load_dwordx2 s[80:81], s[0:1], 96")
    a("v_lshrrev_b32 v2, 6, v0")
    a("s_nop 0")
    a("v_readfirstlane_b32 s82, v2")
    a("s_waitcnt lgkmcnt(0)")
    a("s_lshl_b32 s83, s2, 4")
    a("s_add_u32 s83, s83, s82")
    a("s_lshl_b32 s83, s83, 6")
    a(f"s_add_u32 s83, s83, {0x1800000 + label*0x40000}")
    a("v_mov_b32 v2, s83")
    for i in range(n+1):
        a(f"v_mov_b32 v3, s{84+2*i}")
        a(f"global_store_dword v2, v3, s[80:81] offset:{4*i}")
    a("v_mov_b32 v3, s76")
    a("global_store_dword v2, v3, s[80:81] offset:56")
    a("v_mov_b32 v3, s78")
    a("global_store_dword v2, v3, s[80:81] offset:60")
    if os.environ.get("DBG"):
        a("s_load_dwordx2 s[80:81], s[0:1], 88")
        a("s_waitcnt lgkmcnt(0)")
        a("s_mov_b64 exec, 1")
        a("v_mov_b32 v2, 0")
        a("s_not_b32 s83, s84")
        a("v_mov_b32 v3, s83")
        a("global_atomic_umax v2, v3, s[80:81] offset:16 sc1")
        a(f"v_mov_b32 v3, s{84+2*n}")
        a("global_atomic_umax v2, v3, s[80:81] offset:20 sc1")
        a("s_lshl_b32 s83, s2, 4")
        a("s_or_b32 s83, s83, s82")
        a("s_cmp_lg_u32 s83, 40*16")
        a("s_cbranch_scc1 dbg_skip")
        for i in range(8):
            a(f"v_mov_b32 v3, s{84+2*i}")
            a(f"global_store_dword v2, v3, s[80:81] offset:{32+4*i}")
        a("dbg_skip:")
```

```python
from common import *
import math
from k2 import (M, QA1, QA2, QB1, QB2, KVB, SA, SB, OA, OB, PA, PB, split3, exp_groups, pv, CH)
def qk(Sd, kb, q1, q2):
    return [f"{M} {vr(Sd,16)}, {vr(kb,4)}, {vr(q1,4)}, 0",
            f"v_mfma_f32_32x32x8_bf16 {vr(Sd,16)}, {vr(kb+4,2)}, {vr(q2,2)}, {vr(Sd,16)}"]
LOG2E = 1.4426950408889634
QSCALE = LOG2E / math.sqrt(20.0)
E = os.environ.get
XSL = 32768
WB = 3 * XSL
WSL = 10240
QST = WB
KVR = 163840 - 3 * CH
GSL = 32768
NONCE = 122880
BREG = True
F_LDS = 163840
F_BLOCK = 640
SPIN = int(E("SPIN", 1 << 16))
SC = " sc1"
SCL = E('SCL', ' sc1')

_pc = [0]
def poll(a, L, voff, soff):
    _pc[0] += 1
    T = f"{L}_poll{_pc[0]}"
    a(f"""
    s_mov_b32 s70, {SPIN}
    {T}:
    buffer_load_dwordx2 v[24:25], {voff}, s[8:11], {soff} offen sc1
    s_sub_u32 s70, s70, 1
    s_cbranch_scc1 {T}_ok
    s_waitcnt vmcnt(0)
    v_cmp_ne_u64 vcc, v[24:25], v[20:21]
    s_cmp_eq_u64 vcc, 0
    s_cbranch_scc1 {T}_ok
    s_sleep {E("PSLEEP", "2")}
    s_branch {T}
    {T}_ok:
    """)

def flag(a, soff):
    a(f"""
    s_mov_b64 exec, 1
    buffer_store_dwordx2 v[20:21], v5, s[8:11], {soff} offen sc1
    s_mov_b64 exec, -1
    """)

def aslot(a, S, P, mf, pre=(), rd=None):
    g = exp_groups(S, P)
    flat = [x for gg in g for x in gg]
    pos = [int(x) for x in E("MPOS", "0,5,11,17").split(",")]
    for p in pre: a(p)
    k = 0
    for i, x in enumerate(flat):
        while k < 4 and pos[k] == i:
            a(mf[k])
            if rd: a(rd[k])
            k += 1
        a(x)

def gen(a, name):
    kernel_head(a, name)
    L = name
    a(f"""
    s_cmp_ge_u32 s2, 256
    s_cbranch_scc1 {L}_end
    s_load_dwordx8 s[4:11], s[0:1], 0
    s_load_dwordx4 s[12:15], s[0:1], 48
    s_load_dwordx2 s[18:19], s[0:1], 96
    """)
    stamp(a, 0)
    a(f"""
    v_lshrrev_b32 v2, 6, v0
    v_and_b32 v1, 63, v0
    v_readfirstlane_b32 s22, v2
    s_and_b32 s47, s2, 7
    s_lshr_b32 s51, s2, 3
    s_and_b32 s20, s47, 1
    s_lshl_b32 s20, s20, 2
    s_and_b32 s67, s51, 3
    s_add_u32 s20, s20, s67
    s_lshr_b32 s21, s47, 1
    s_lshr_b32 s68, s51, 2
    s_lshl_b32 s52, s68, 2
    s_add_u32 s21, s21, s52
    s_cmp_lt_u32 s22, 8
    s_cbranch_scc1 {L}_comp
    """)
    a.c("s20 = row group (256 rows), s21 = cg = head = column group, s22 = wave; kept for the whole kernel, as is s[18:19]")
    a(f"""
    s_and_b32 s63, s22, 1
    v_lshrrev_b32 v10, 3, v1
    v_lshrrev_b32 v11, 4, v1
    v_and_b32 v12, 7, v1
    v_xor_b32 v12, v12, v11
    v_xor_b32 v11, 4, v12
    s_movk_i32 s54, 1280
    v_mul_u32_u24 v10, s54, v10
    v_lshl_add_u32 v15, v11, 4, v10
    v_lshl_add_u32 v10, v12, 4, v10
    s_mul_i32 s53, s20, {256*1280}
    s_mul_i32 s55, s63, {64*1280}
    s_add_u32 s53, s53, s55
    """)
    for i in range(8):
        a(f"s_add_u32 s55, s53, {i*10240 - 1024*(i&3) + 4096}")
        a(f"v_add_u32 v{2+i}, s55, v{15 if i & 1 else 10}")
    a(f"""
    s_add_u32 s52, s67, s68
    s_and_b32 s52, s52, 3
    """)
    ORD = E("ORD", "b3")
    def order(t):
        if ORD == "lat4": return [(n + (5*t >> 1)) % 10 for n in range(10)]
        if ORD == "lat2": return [(n + 5*(t & 1)) % 10 for n in range(10)]
        if ORD == "b2": return [n ^ (t & 1) for n in range(10)]
        if ORD == "b4": return [(n & ~3) | ((n + t) & 3) if n < 8 else 8 + ((n + t) & 1) for n in range(10)]
        if ORD == "b5": return [5*(n // 5) + ((n % 5) + [0, 1, 2, 4][t]) % 5 for n in range(10)]
        if ORD == "b3": return [3*(n // 3) + ((n % 3) + t) % 3 if n < 9 else 9 for n in range(10)]
        if ORD == "h1": return [((n ^ (t & 1)) + 4*(t >> 1)) % 10 for n in range(10)]
        if ORD == "h2": return [(n + 2*(t>>1)) % 4 ^ (t & 1) if n < 4 else 4 + 3*((n-4)//3) + ((n-4) % 3 + t) % 3 for n in range(10)]
        if ORD == "h3": return [n ^ (t & 1) if n < 2 else (2 + (n - 2 + t) % 4 if n < 6 else 6 + (n - 6 + t) % 4) for n in range(10)]
        if ORD == "h4": return [0 if n == 0 else 1 + 3*((n-1)//3) + ((n-1) % 3 + t) % 3 for n in range(10)]
        if ORD == "none": return list(range(10))
    for t in range(4):
        tab = sum(p << (4*n) for n, p in enumerate(order(t)))
        if t == 0:
            a(f"s_mov_b32 s60, {tab & 0xffffffff}\ns_mov_b32 s61, {tab >> 32}")
        else:
            a(f"s_cmp_eq_u32 s52, {t}\ns_cselect_b32 s60, {tab & 0xffffffff}, s60\ns_cselect_b32 s61, {tab >> 32}, s61")
    a(f"""
    s_and_b32 s52, s60, 15
    s_lshl_b32 s41, s52, 7
    s_lshl_b32 s48, s63, 13
    s_mov_b32 m0, s48
    v_lshrrev_b32 v13, 3, v1
    s_movk_i32 s62, 3456
    v_mul_u32_u24 v13, s62, v13
    v_and_b32 v14, 7, v1
    v_bfe_u32 v15, v1, 4, 1
    v_lshlrev_b32 v15, 2, v15
    v_xor_b32 v14, v14, v15
    v_lshl_add_u32 v13, v14, 4, v13
    s_lshl_b32 s53, s21, 7
    v_add_u32 v10, s53, v13
    v_add_u32 v11, {8*3456-1024}, v10
    v_add_u32 v12, {2*(8*3456-1024)}, v10
    v_add_u32 v13, {3*(8*3456-1024)}, v10
    v_lshrrev_b32 v14, 2, v1
    v_mul_u32_u24 v14, s54, v14
    v_and_b32 v15, 3, v1
    v_lshl_add_u32 v14, v15, 4, v14
    s_mul_i32 s53, s21, 40
    s_mul_i32 s55, s63, {16*1280}
    s_add_u32 s53, s53, s55
    v_add_u32 v14, s53, v14
    v_cmp_eq_u32 vcc, 3, v15
    v_mov_b32 v15, 0x7f000000
    s_nop 0
    v_cndmask_b32 v14, v14, v15, vcc
    v_lshlrev_b32 v15, 4, v1
    s_mov_b32 s26, {2621440+4096}
    s_mov_b32 s27, 0x20000
    s_mov_b32 s30, 2211840
    s_mov_b32 s31, 0x20000
    s_mov_b32 s34, 819200
    s_mov_b32 s35, 0x20000
    s_sub_u32 s53, s21, 27
    s_cmp_lt_u32 s53, 2
    s_cselect_b32 s38, 25600, 0
    s_mov_b32 s39, 0x20000
    s_lshl_b32 s52, s52, 1
    s_mul_i32 s42, s52, {32*3456}
    s_mul_i32 s43, s52, {32*1280}
    s_mul_i32 s40, s52, 1280
    s_lshl_b32 s51, s63, 10
    s_add_u32 s40, s40, s51
    s_lshl_b32 s49, s63, 12
    s_add_u32 s49, s49, {WB}
    s_add_u32 s50, s51, {WB+8192}
    s_add_u32 s56, s51, {WB}
    s_add_u32 s45, s48, 16384
    s_add_u32 s54, s41, 163840
    s_mov_b32 s44, 0
    s_mov_b32 s46, 0
    s_mov_b32 s58, 2
    s_waitcnt lgkmcnt(0)
    s_sub_u32 s24, s4, 4096
    s_subb_u32 s25, s5, 0
    s_and_b32 s25, s25, 0xffff
    """)
    a.c("x voffsets carry +4096 so that they stay non negative; the SRD base carries -4096")
    def xdma(so):
        a(f"""
        buffer_load_dwordx4 v2, s[24:27], {so} offen lds
        buffer_load_dwordx4 v3, s[24:27], {so} offen offset:1024 lds
        buffer_load_dwordx4 v4, s[24:27], {so} offen offset:2048 lds
        buffer_load_dwordx4 v5, s[24:27], {so} offen offset:3072 lds
        s_add_u32 m0, m0, 4096
        s_nop 0
        buffer_load_dwordx4 v6, s[24:27], {so} offen lds
        buffer_load_dwordx4 v7, s[24:27], {so} offen offset:1024 lds
        buffer_load_dwordx4 v8, s[24:27], {so} offen offset:2048 lds
        buffer_load_dwordx4 v9, s[24:27], {so} offen offset:3072 lds
        """)
    xdma("s41")
    a(f"""
    s_cmp_eq_u32 s63, 1
    s_cselect_b32 s28, s14, s12
    s_cselect_b32 s29, s15, s13
    s_and_b32 s29, s29, 0xffff
    s_mov_b32 s32, s6
    s_and_b32 s33, s7, 0xffff
    s_cmp_eq_u32 s21, 27
    s_cselect_b32 s36, s8, s10
    s_cselect_b32 s37, s9, s11
    s_and_b32 s37, s37, 0xffff
    s_cmp_ge_u32 s21, 27
    s_cbranch_scc1 {L}_ldl_issue
    """)
    a.c("s45/s54 next x half (lds, soffset), s41 k byte offset of the pair, s42 W, s43 wq, s40 wk/wv soffsets, s44 W slot")
    for tag, D in (("ldf", 13), ("ldl", 10)):
        a(f"""
        {L}_{tag}_issue:
        s_mov_b32 m0, s45
        s_add_u32 s46, s46, 1
        """)
        xdma("s54")
        if tag == "ldf":
            a(f"""
            s_add_u32 m0, s44, s49
            s_add_u32 s45, s45, 16384
            buffer_load_dwordx4 v10, s[28:31], s42 offen lds
            buffer_load_dwordx4 v11, s[28:31], s42 offen offset:1024 lds
            buffer_load_dwordx4 v12, s[28:31], s42 offen offset:2048 lds
            buffer_load_dwordx4 v13, s[28:31], s42 offen offset:3072 lds
            """)
        else:
            a(f"""
            s_add_u32 m0, s44, s56
            s_add_u32 s45, s45, 16384
            buffer_load_dwordx4 v15, s[36:39], s40 offen lds
            """)
        a(f"""
        s_add_u32 m0, s44, s50
        s_lshr_b32 s52, s46, 1
        buffer_load_dwordx4 v14, s[32:35], s43 offen lds
        s_lshl_b32 s52, s52, 2
        s_lshr_b64 s[64:65], s[60:61], s52
        s_and_b32 s52, s64, 15
        s_lshl_b32 s52, s52, 1
        s_and_b32 s53, s46, 1
        s_add_u32 s52, s52, s53
        s_mul_i32 s42, s52, {32*3456}
        s_mul_i32 s43, s52, {32*1280}
        s_mul_i32 s40, s52, 1280
        s_add_u32 s40, s40, s51
        s_lshl_b32 s52, s53, 2
        s_lshr_b32 s52, s64, s52
        s_and_b32 s52, s52, 15
        s_lshl_b32 s54, s52, 7
        s_cmp_eq_u32 s53, 0
        s_cselect_b32 s52, 163840, 0
        s_add_u32 s54, s54, s52
        s_add_u32 s44, s44, {WSL}
        s_cmp_ge_u32 s44, {4*WSL}
        s_cselect_b32 s44, 0, s44
        s_cmp_ge_u32 s45, {WB}
        s_cselect_b32 s45, s48, s45
        s_cmp_eq_u32 s46, 19
        s_cselect_b32 s26, 0, s26
        s_cmp_lt_u32 s46, s58
        s_cbranch_scc1 {L}_{tag}_issue
        s_waitcnt vmcnt({D})
        s_barrier
        s_add_u32 s58, s58, 1
        s_cmp_le_u32 s58, 20
        s_cbranch_scc1 {L}_{tag}_issue
        """)
        if tag == "ldf": a(f"s_branch {L}_ld_tail")
    a(f"""
    {L}_ld_tail:
    s_load_dwordx2 s[4:5], s[0:1], 32
    s_load_dwordx2 s[6:7], s[0:1], 88
    v_mov_b32 v5, 0
    s_waitcnt vmcnt(0) lgkmcnt(0)
    s_barrier
    global_load_dwordx2 v[20:21], v5, s[6:7] sc0 sc1
    s_barrier
    """)
    srd(a, 8, 18, 19, WS_SIZE)
    srd(a, 12, 18, 19, WS_KV + 64*3072)
    a(f"""
    v_lshlrev_b32 v2, 4, v1
    v_lshlrev_b32 v3, 7, v1
    s_mov_b32 s70, {SPIN}
    s_branch {L}_l_non2
    {L}_l_non:
    global_load_dwordx2 v[20:21], v5, s[6:7] sc0 sc1
    {L}_l_non2:
    s_sub_u32 s70, s70, 1
    s_cbranch_scc1 {L}_l_non3
    s_waitcnt vmcnt(0)
    v_cmp_ne_u32 vcc, 0, v20
    s_cmp_eq_u64 vcc, 0
    s_cbranch_scc1 {L}_l_non
    {L}_l_non3:
    s_lshl_b32 s33, s20, 5
    s_add_u32 s33, s33, s21
    s_lshl_b32 s34, s33, 7
    s_add_u32 s34, s34, {WS_F}
    s_lshl_b32 s35, s20, 12
    s_add_u32 s35, s35, {WS_F}
    s_sub_u32 s53, s21, 27
    s_cmp_ge_u32 s53, 2
    s_cbranch_scc1 {L}_l_nokv
    s_barrier
    s_cmp_lg_u32 s63, 0
    s_cbranch_scc1 {L}_l_nokv
    s_lshl_b32 s52, s20, 1
    s_add_u32 s52, s52, s53
    s_lshl_b32 s52, s52, 7
    s_add_u32 s52, s52, {WS_F+FQ}
    """)
    flag(a, "s52")
    a(f"""
    {L}_l_nokv:
    s_cmp_lt_u32 s21, 27
    s_cbranch_scc1 {L}_l_now
    s_cmp_eq_u32 s63, 0
    s_cbranch_scc1 {L}_l_now
    s_load_dwordx2 s[16:17], s[0:1], 64
    s_mul_i32 s52, s20, 5
    s_add_u32 s52, s52, s53
    s_mul_i32 s52, s52, {7*8192}
    s_waitcnt lgkmcnt(0)
    s_mov_b32 s56, s16
    s_and_b32 s57, s17, 0xffff
    s_mov_b32 s58, 2211840
    s_mov_b32 s59, 0x20000
    s_mov_b32 s54, 7
    {L}_l_warm:
    buffer_load_dword v31, v3, s[56:59], s52 offen
    s_add_u32 s52, s52, 8192
    s_sub_u32 s54, s54, 1
    s_cmp_lg_u32 s54, 0
    s_cbranch_scc1 {L}_l_warm
    {L}_l_now:
    s_mul_i32 s24, s63, 6144
    s_add_u32 s30, s24, {WS_KV}
    s_add_u32 s31, s30, 4096
    s_add_u32 s24, s24, {KVR}
    s_mov_b32 s25, {CH}
    s_mov_b32 s52, {WS_F+FQ}
    s_mov_b64 exec, 0xffff
    """)
    a.c("s34 = own flag line, s35 = flag lines of this row group; s30/s31 kv source, s24 + s25 kv destination")
    stamp(a, 1)
    poll(a, L, "v3", "s52")
    a("s_mov_b64 exec, -1")
    stamp(a, 2)
    def kv():
        a(f"""
        s_add_u32 m0, s25, s24
        s_add_u32 s25, s25, {CH}
        buffer_load_dwordx4 v2, s[12:15], s30 offen{SCL} lds
        buffer_load_dwordx4 v2, s[12:15], s30 offen offset:1024{SCL} lds
        buffer_load_dwordx4 v2, s[12:15], s30 offen offset:2048{SCL} lds
        buffer_load_dwordx4 v2, s[12:15], s30 offen offset:3072{SCL} lds
        s_add_u32 m0, m0, 4096
        s_add_u32 s30, s30, {CH}
        buffer_load_dwordx4 v2, s[12:15], s31 offen{SCL} lds
        buffer_load_dwordx4 v2, s[12:15], s31 offen offset:1024{SCL} lds
        s_add_u32 s31, s31, {CH}
        s_cmp_ge_u32 s25, {3*CH}
        s_cselect_b32 s25, 0, s25
        """)
    a(f"""
    s_mov_b32 m0, {QST+6144}
    s_mov_b32 s52, {WS_KV+1024+63*8+4}
    v_mul_u32_u24 v6, 3072, v1
    buffer_load_dword v6, s[8:11], s52 offen{SCL} lds
    """)
    kv(); kv()
    a(f"""
    s_lshr_b32 s38, s21, 2
    s_mul_i32 s38, s38, 160
    s_movk_i32 s39, 5462
    s_movk_i32 s40, 1280
    """)
    for i in range(3):
        a(f"""
        v_add_u32 v6, {64*i}, v1
        v_mul_u32_u24 v7, s39, v6
        v_lshrrev_b32 v7, 16, v7
        v_mul_u32_u24 v8, 12, v7
        v_sub_u32 v8, v6, v8
        v_mul_u32_u24 v7, s40, v7
        v_lshl_add_u32 v7, v8, 4, v7
        v_add_u32 v7, s38, v7
        v_subrev_u32 v{10+i}, {1024*i}, v7
        """)
    srd(a, 40, 4, 5, 819200)
    a(f"""
    s_mul_i32 s44, s63, {20*20480}
    s_mul_i32 s45, s63, {20*3072}
    s_waitcnt vmcnt(6)
    """)
    stamp(a, 3)
    a("s_barrier")
    def bar_kv():
        a("s_waitcnt vmcnt(0)")
        a("s_barrier")
        kv()
    bar_kv()
    a(f"""
    s_cmp_eq_u32 s63, 1
    s_cbranch_scc1 {L}_gate
    s_lshl_b32 s52, s2, 6
    v_add_u32 v6, s52, v1
    v_lshlrev_b32 v6, 7, v6
    buffer_load_dword v30, v6, s[40:43], 0 offen
    v_mov_b32 v6, {NONCE}
    ds_write_b64 v6, v[20:21]
    v_mov_b32 v8, 0
    v_mov_b32 v9, 0
    ds_write_b64 v6, v[8:9] offset:8
    ds_write_b64 v6, v[8:9] offset:16
    ds_write_b64 v6, v[8:9] offset:24
    s_waitcnt vmcnt(1) lgkmcnt(0)
    s_barrier
    """)
    a.c("B1 passed: every wave has drained its h stores")
    flag(a, "s34")
    kv()
    a(f"""
    s_waitcnt vmcnt(0)
    s_branch {L}_gate_done
    {L}_gate:
    s_load_dwordx2 s[16:17], s[0:1], 72
    s_load_dwordx2 s[4:5], s[0:1], 0
    v_and_b32 v16, 7, v1
    v_lshlrev_b32 v16, 4, v16
    v_lshrrev_b32 v17, 3, v1
    s_lshl_b32 s53, s33, 3
    v_add_u32 v18, s53, v17
    s_movk_i32 s54, 1280
    v_mul_lo_u32 v17, v18, s54
    v_add_u32 v17, v17, v16
    s_waitcnt lgkmcnt(0)
    """)
    srd(a, 56, 4, 5, 2621440)
    srd(a, 68, 16, 17, 1280)
    for j in range(10):
        a(f"buffer_load_dwordx4 {vr(72+4*j,4)}, v17, s[56:59], 0 offen offset:{128*j}")
    for j in range(10):
        a(f"buffer_load_dwordx4 {vr(32+4*j,4)}, v16, s[68:71], 0 offen offset:{128*j}")
    a(f"""
    v_lshrrev_b32 v19, 3, v1
    v_lshlrev_b32 v19, 2, v19
    v_mov_b32 v27, {f32(-LOG2E)}
    v_mov_b32 v26, 0
    v_mov_b32 v28, 0
    s_waitcnt vmcnt(20)
    s_barrier
    """)
    kv()
    a("s_waitcnt vmcnt(6)")
    for i in range(0, 40, 2):
        a(f"v_dot2_f32_bf16 v26, v{72+i}, v{32+i}, v26")
        a(f"v_dot2_f32_bf16 v28, v{73+i}, v{33+i}, v28")
    a(f"""
    s_nop 3
    v_add_f32 v26, v26, v28
    s_nop 1
    v_add_f32_dpp v26, v26, v26 quad_perm:[1,0,3,2] row_mask:0xf bank_mask:0xf
    s_nop 1
    v_add_f32_dpp v26, v26, v26 quad_perm:[2,3,0,1] row_mask:0xf bank_mask:0xf
    s_nop 1
    v_add_f32_dpp v26, v26, v26 row_half_mirror row_mask:0xf bank_mask:0xf
    v_cvt_pk_bf16_f32 v26, v26, v26
    v_lshlrev_b32 v26, 16, v26
    v_mul_f32 v26, v27, v26
    v_exp_f32 v26, v26
    s_nop 0
    v_add_f32 v26, 1.0, v26
    v_rcp_f32 v26, v26
    s_nop 0
    v_cvt_pk_bf16_f32 v26, v26, v26
    v_lshlrev_b32 v28, 16, v26
    s_lshl_b32 s53, s33, 7
    s_add_u32 s53, s53, {WS_G}
    v_cmp_eq_u32 vcc, 0, v16
    s_nop 1
    s_mov_b64 exec, vcc
    buffer_store_dword v28, v19, s[8:11], s53 offen sc1
    s_mov_b64 exec, -1
    s_waitcnt vmcnt(1)
    {L}_gate_done:
    s_barrier
    """)
    kv()
    a(f"""
    s_cmp_eq_u32 s63, 1
    s_cbranch_scc1 {L}_l_np
    """)
    a("s_mov_b64 exec, 0x7ffffff")
    poll(a, L, "v3", "s35")
    a(f"""
    s_mov_b64 exec, -1
    {L}_l_np:
    s_mov_b32 s46, 3
    {L}_lloop:
    """)
    bar_kv()
    a(f"""
    s_add_u32 s46, s46, 1
    s_cmp_lt_u32 s46, 14
    s_cbranch_scc1 {L}_lloop
    s_add_u32 s34, s34, {F2}
    s_add_u32 s35, s35, {F2}
    """)
    a.c("barrier 13 passed: G waves are done with their ring")
    def wo(n, tag):
        a(f"""
        s_mov_b32 s47, {n}
        {L}_wo{tag}:
        s_mov_b32 m0, s45
        s_add_u32 s45, s45, 3072
        buffer_load_dwordx4 v10, s[40:43], s44 offen lds
        buffer_load_dwordx4 v11, s[40:43], s44 offen offset:1024 lds
        buffer_load_dwordx4 v12, s[40:43], s44 offen offset:2048 lds
        s_add_u32 s44, s44, 20480
        s_sub_u32 s47, s47, 1
        s_cmp_lg_u32 s47, 0
        s_cbranch_scc1 {L}_wo{tag}
        """)
    wo(8, "a")
    a("s_waitcnt vmcnt(24)")
    a("s_barrier")
    a(f"s_cmp_lg_u32 s63, 0\ns_cbranch_scc1 {L}_l_nf2")
    flag(a, "s34")
    a(f"{L}_l_nf2:")
    wo(8, "b")
    a("s_barrier")
    wo(4, "c")
    a(f"s_cmp_eq_u32 s63, 0\ns_cbranch_scc1 {L}_l_np2")
    a("s_mov_b32 exec_hi, 0")
    poll(a, L, "v3", "s35")
    a(f"{L}_l_np2:")
    a(f"""
    s_mov_b64 exec, 1
    v_mov_b32 v22, {NONCE}
    v_mov_b32 v9, 1
    s_waitcnt vmcnt(0)
    ds_add_u32 v22, v9 offset:12
    s_mov_b64 exec, -1
    s_and_b32 s52, s21, 3
    s_lshl_b32 s52, s52, 9
    s_add_u32 s35, s35, s52
    s_add_u32 s35, s35, {F3-F2}
    s_branch {L}_p3
    """)

    a(f"""
    {L}_comp:
    s_and_b32 s63, s22, 3
    s_lshr_b32 s64, s22, 2
    v_and_b32 v13, 31, v1
    v_lshrrev_b32 v14, 5, v1
    v_bfe_u32 v15, v1, 1, 3
    v_xor_b32 v2, v14, v15
    v_lshlrev_b32 v2, 4, v2
    v_lshl_add_u32 v2, v13, 7, v2
    s_lshl_b32 s52, s63, 13
    s_lshl_b32 s53, s64, 12
    s_add_u32 s52, s52, s53
    v_add_u32 v2, s52, v2
    v_xor_b32 v3, 32, v2
    v_xor_b32 v4, 64, v2
    v_xor_b32 v5, 96, v2
    v_bfe_u32 v15, v1, 2, 2
    v_lshlrev_b32 v7, 3, v14
    v_add_u32 v7, v7, v15
    v_mul_u32_u24 v9, 40, v7
    v_lshlrev_b32 v8, 6, v7
    v_lshlrev_b32 v7, 7, v7
    v_lshrrev_b32 v16, 1, v15
    v_xor_b32 v16, s64, v16
    v_lshl_add_u32 v7, v16, 6, v7
    v_bfe_u32 v16, v1, 4, 1
    v_and_b32 v17, 3, v1
    v_lshlrev_b32 v16, 5, v16
    v_lshl_add_u32 v16, v17, 3, v16
    v_add_u32 v7, v7, v16
    v_add_u32 v9, v9, v16
    v_cmp_eq_u32 vcc, 40, v16
    s_nop 1
    v_cndmask_b32 v16, v16, 48, vcc
    v_add_u32 v8, v8, v16
    v_add_u32 v7, {WB}, v7
    v_add_u32 v8, {WB+8192}, v8
    v_add_u32 v9, {WB}, v9
    s_mov_b32 s44, 0
    s_mov_b32 s45, 0
    s_mov_b32 s46, 0
    """)
    a.c("v2..v5 x frag addr (row block 2rp+cp) for the 4 k steps of a pair; v7 W, v8 wq slice, v9 wk/wv slice addr; s63=rp s64=cp")
    for r in range(64, 144, 2):
        a(f"v_mov_b64 v[{r}:{r+1}], 0")
    a("s_waitcnt lgkmcnt(0)")
    srd(a, 8, 18, 19, WS_SIZE)
    a(f"""
    s_or_b32 s52, s22, s2
    s_cmp_lg_u32 s52, 0
    s_cbranch_scc1 {L}_nonon
    s_load_dwordx2 s[52:53], s[0:1], 88
    s_memrealtime s[54:55]
    v_mov_b32 v148, 0
    s_waitcnt lgkmcnt(0)
    s_or_b32 s54, s54, 1
    v_mov_b32 v144, s54
    v_mov_b32 v145, s55
    s_mov_b64 exec, 1
    global_store_dwordx2 v148, v[144:145], s[52:53] sc0 sc1
    s_mov_b64 exec, -1
    {L}_nonon:
    s_lshr_b32 s52, s21, 4
    s_xor_b32 s53, s22, 1
    s_or_b32 s52, s52, s53
    s_cmp_lg_u32 s52, 0
    s_cbranch_scc1 {L}_noin
    s_lshl_b32 s52, s20, 5
    s_add_u32 s52, s52, s21
    s_lshl_b32 s52, s52, 7
    s_add_u32 s52, s52, {WS_F+F3}
    s_mov_b64 exec, 1
    buffer_store_dword v64, v64, s[8:11], s52 offen sc1
    s_mov_b64 exec, -1
    {L}_noin:
    """)
    if E("CPF", "0") == "1":
        a(f"""
        s_lshr_b32 s52, s2, {3 + int(E("CPFS", "0"))}
        s_xor_b32 s53, s22, 2
        s_or_b32 s52, s52, s53
        s_cmp_lg_u32 s52, 0
        s_cbranch_scc1 {L}_nocpf
        s_getpc_b64 s[52:53]
        {L}_pc:
        s_sub_u32 s52, s52, {L}_pc-{L}
        s_subb_u32 s53, s53, 0
        v_lshlrev_b32 v144, 7, v1
        global_load_dword v145, v144, s[52:53]
        v_add_u32 v144, 8192, v144
        v_cmp_gt_u32 vcc, {L}_end-{L}, v144
        s_nop 1
        s_mov_b64 exec, vcc
        global_load_dword v145, v144, s[52:53]
        s_mov_b64 exec, -1
        {L}_nocpf:
        """)
    a(f"""
    s_cmp_eq_u32 s21, 27
    s_cbranch_scc1 {L}_modeK
    s_cmp_eq_u32 s21, 28
    s_cbranch_scc1 {L}_modeV
    s_cmp_gt_u32 s21, 28
    s_cbranch_scc1 {L}_modeQ
    """)
    XA = [16, 36]
    XC = [56, 57, 58, 59]
    XD = [60, 61, 62, 63]
    def xaddrs(full):
        l = [f"v_add_u32 v{XC[j]}, s45, v{2+j}" for j in range(4)]
        if full: l += [f"v_xor_b32 v{XD[j]}, 4096, v{XC[j]}" for j in range(4)]
        return l + [f"s_add_u32 s45, s45, {XSL}", f"s_cmp_ge_u32 s45, {WB}", "s_cselect_b32 s45, 0, s45"]
    def waddrs(mode):
        l = ["v_add_u32 v12, s44, v8"]
        if mode == 0: l.append("v_add_u32 v11, s44, v7")
        if mode in (1, 2): l.append("v_add_u32 v11, s44, v9")
        return l + [f"s_add_u32 s44, s44, {WSL}", f"s_cmp_ge_u32 s44, {4*WSL}", "s_cselect_b32 s44, 0, s44"]
    def read_list(j, mode):
        ks = j & 1
        b = XA[ks]
        l = [f"ds_read_b128 {vr(b,4)}, v{XC[j]}"]
        if mode == 0:
            l += [f"ds_read_b64_tr_b16 {vr(b+8,2)}, v11 offset:{ks*2048}",
                  f"ds_read_b64_tr_b16 {vr(b+10,2)}, v11 offset:{ks*2048+512}",
                  f"ds_read_b64_tr_b16 {vr(b+12,2)}, v11 offset:{4096+ks*2048}",
                  f"ds_read_b64_tr_b16 {vr(b+14,2)}, v11 offset:{4096+ks*2048+512}",
                  f"ds_read_b128 {vr(b+4,4)}, v{XD[j]}"]
        if mode in (1, 2):
            l += [f"ds_read_b64_tr_b16 {vr(b+8,2)}, v11 offset:{ks*640}",
                  f"ds_read_b64_tr_b16 {vr(b+10,2)}, v11 offset:{ks*640+160}"]
        l += [f"ds_read_b64_tr_b16 {vr(b+16,2)}, v12 offset:{ks*1024}",
              f"ds_read_b64_tr_b16 {vr(b+18,2)}, v12 offset:{ks*1024+256}"]
        return l
    def mfma_list(ks, mode):
        b = XA[ks]
        x0, x1, wg, wu, ws = vr(b,4), vr(b+4,4), vr(b+8,4), vr(b+12,4), vr(b+16,4)
        l = []
        if mode == 0:
            l = [f"{M} v[64:79], {wg}, {x0}, v[64:79]", f"{M} v[80:95], {wu}, {x0}, v[80:95]",
                 f"{M} v[96:111], {wg}, {x1}, v[96:111]", f"{M} v[112:127], {wu}, {x1}, v[112:127]"]
        if mode == 1: l = [f"{M} v[64:79], {wg}, {x0}, v[64:79]"]
        if mode == 2: l = [f"{M} v[64:79], {x0}, {wg}, v[64:79]"]
        l = l + [f"{M} v[128:143], {ws}, {x0}, v[128:143]"]
        if E("HACK16", "0") == "1" and mode == 0:
            import re
            l2 = []
            for m in l:
                b0 = int(re.search(r"v\[(\d+):", m).group(1)); ops = m.split(", ")
                t = f"v_mfma_f32_16x16x32_bf16 {{d}}, {ops[1]}, {ops[2]}, {{d}}"
                l2.append(t.format(d=vr(b0+8*ks,4)) + "\n" + t.format(d=vr(b0+8*ks+4,4)))
            l = l2
        return l
    def half(ml, rl, post):
        n = len(ml)
        if n == 5 and E("P1V", "1") == "1":
            a("s_waitcnt lgkmcnt(2)")
            cuts = [int(x) for x in E("P1CUT", "3,6,8,8").split(",")]
            lo = 0
            for i, m in enumerate(ml):
                if i == 4: a("s_waitcnt lgkmcnt(8)")
                a(m)
                if i < 4:
                    for x in rl[lo:cuts[i]]: a(x)
                    lo = cuts[i]
                if i == 3:
                    for x in post: a(x)
            return
        a("s_waitcnt lgkmcnt(0)")
        per = -(-len(rl) // max(n - 1, 1))
        for i, m in enumerate(ml):
            a(m)
            if n == 1:
                for x in rl + post: a(x)
                continue
            for x in rl[per*i:per*i+per]: a(x)
            if i == n - 2:
                for x in post: a(x)
    for mode, tag in ((0, "full"), (1, "modeK"), (2, "modeV"), (3, "modeQ")):
        a(f"{L}_{tag}:")
        for x in xaddrs(mode == 0) + waddrs(mode): a(x)
        a("s_barrier")
        for x in read_list(0, mode): a(x)
        stamp(a, 1)
        if mode == 0: a(".p2align 6")
        a(f"{L}_{tag}_loop:")
        half(mfma_list(0, mode), read_list(1, mode), waddrs(mode))
        a("s_barrier")
        half(mfma_list(1, mode), read_list(2, mode), [])
        half(mfma_list(0, mode), read_list(3, mode), waddrs(mode) + xaddrs(mode == 0))
        a("s_barrier")
        half(mfma_list(1, mode), read_list(0, mode), ["s_add_u32 s46, s46, 1", "s_cmp_lt_u32 s46, 10"])
        a(f"s_cbranch_scc1 {L}_{tag}_loop")
        stamp(a, 2)
        a(f"""
        s_lshl_b32 s52, s20, 3
        s_lshl_b32 s53, s63, 1
        s_add_u32 s52, s52, s53
        s_add_u32 s52, s52, s64
        v_lshlrev_b32 v2, 4, v1
        """)
        a(f"s_branch {L}_epi{mode}")
    a.c("s52 = global row block of acc set 0 and of the q chain (set 1 is s52 ^ 1)")
    EK = 64
    a(f"""
    {L}_epi1:
    s_mul_i32 s53, s52, 3072
    s_add_u32 s53, s53, {WS_KV}
    s_nop 7
    s_waitcnt lgkmcnt(0)
    """)
    for i in range(4): a(f"v_cvt_pk_bf16_f32 v{20+i}, v{EK+2*i}, v{EK+2*i+1}")
    a(f"buffer_store_dwordx4 v[20:23], v2, s[8:11], s53 offen{SC}")
    a(f"v_cvt_pk_bf16_f32 v24, v{EK+8}, v{EK+9}")
    a(f"v_cvt_pk_bf16_f32 v25, v{EK+10}, v{EK+11}")
    a("v_mov_b32 v26, 0x3f803f80")
    a("v_mov_b32 v27, 0x00003f80")
    a(f"v_mul_f32 v30, v{EK}, v{EK}")
    for i in range(1, 8): a(f"v_fmac_f32 v30, v{EK+i}, v{EK+i}")
    a(f"v_mul_f32 v31, v{EK+8}, v{EK+8}")
    for i in range(9, 12): a(f"v_fmac_f32 v31, v{EK+i}, v{EK+i}")
    a(f"""
    v_cmp_gt_u32 vcc, 32, v1
    s_nop 1
    v_cndmask_b32 v31, 0, v31, vcc
    v_add_f32 v30, v30, v31
    v_mov_b32 v31, v30
    s_nop 1
    v_permlane32_swap_b32 v30, v31
    s_nop 1
    v_add_f32 v30, v30, v31
    """)
    for sh in (1, 2, 4, 8):
        a("s_nop 1")
        a(f"v_max_f32_dpp v30, v30, v30 row_shr:{sh} row_mask:0xf bank_mask:0xf")
    a(f"""
    s_nop 1
    v_max_f32_dpp v30, v30, v30 row_bcast:15 row_mask:0xa bank_mask:0xf
    v_cmp_eq_u32 vcc, 63, v1
    v_and_b32 v30, 0xffff0000, v30
    v_or_b32 v30, 0x3f80, v30
    v_cndmask_b32 v27, v27, v30, vcc
    v_cmp_gt_u32 vcc, 32, v1
    v_lshlrev_b32 v16, 3, v1
    s_nop 0
    v_cndmask_b32 v24, v26, v24, vcc
    v_cndmask_b32 v25, v27, v25, vcc
    buffer_store_dwordx2 v[24:25], v16, s[8:11], s53 offen offset:1024{SC}
    s_branch {L}_kvdone
    {L}_epi2:
    s_mul_i32 s53, s52, 3072
    s_add_u32 s53, s53, {WS_KV+1536}
    v_and_b32 v17, 31, v1
    v_lshrrev_b32 v18, 5, v1
    v_mul_u32_u24 v18, 384, v18
    v_lshl_add_u32 v16, v17, 4, v18
    v_mov_b32 v19, 0x3f803f80
    v_cmp_eq_u32 vcc, 20, v17
    v_cmp_lt_u32 s[54:55], 19, v17
    s_nop 3
    v_cndmask_b32 v19, 0, v19, vcc
    s_waitcnt lgkmcnt(0)
    """)
    for i in range(8): a(f"v_cvt_pk_bf16_f32 v{20+i}, v{EK+2*i}, v{EK+2*i+1}")
    for i in range(8): a(f"v_cndmask_b32 v{20+i}, v{20+i}, v19, s[54:55]")
    a(f"""
    v_cmp_gt_u32 vcc, 24, v17
    s_nop 1
    s_and_b64 exec, exec, vcc
    buffer_store_dwordx4 v[20:23], v16, s[8:11], s53 offen{SC}
    buffer_store_dwordx4 v[24:27], v16, s[8:11], s53 offen offset:768{SC}
    {L}_kvdone:
    s_mov_b64 exec, -1
    s_waitcnt vmcnt(0)
    s_barrier
    s_branch {L}_epi3
    """)
    C0 = -2.0 * 0.7978845608028654 * LOG2E
    C1 = C0 * 0.044715
    a(f"""
    {L}_epi0:
    v_mov_b32 v16, {f32(C0)}
    v_mov_b32 v17, {f32(C1)}
    s_lshl_b32 s54, s21, 12
    s_lshl_b32 s55, s64, 11
    s_add_u32 s54, s54, s55
    s_add_u32 s54, s54, {WS_H}
    s_mul_i32 s53, s52, {108*1024}
    s_add_u32 s53, s53, s54
    s_xor_b32 s55, s52, 1
    s_mul_i32 s55, s55, {108*1024}
    s_add_u32 s54, s54, s55
    s_waitcnt lgkmcnt(0)
    """)
    for j in range(2):
        G, U = 64 + 32*j, 80 + 32*j
        for hf in range(2):
            T = 20
            rs = list(range(8*hf, 8*hf+8))
            for i, r in enumerate(rs): a(f"v_mul_f32 v{T+i}, v{G+r}, v{G+r}")
            for i, r in enumerate(rs): a(f"v_fma_f32 v{T+i}, v{T+i}, v17, v16")
            for i, r in enumerate(rs): a(f"v_mul_f32 v{T+i}, v{G+r}, v{T+i}")
            for i, r in enumerate(rs): a(f"v_exp_f32 v{T+i}, v{T+i}")
            for i, r in enumerate(rs): a(f"v_mul_f32 v{U+r}, v{G+r}, v{U+r}")
            for i, r in enumerate(rs): a(f"v_add_f32 v{T+i}, 1.0, v{T+i}")
            for i, r in enumerate(rs): a(f"v_rcp_f32 v{T+i}, v{T+i}")
            a("s_nop 0")
            for i, r in enumerate(rs): a(f"v_mul_f32 v{T+i}, v{U+r}, v{T+i}")
            O = 28 + 4*(2*j+hf)
            for i in range(4): a(f"v_cvt_pk_bf16_f32 v{O+i}, v{T+2*i}, v{T+2*i+1}")
            a(f"buffer_store_dwordx4 {vr(O,4)}, v2, s[8:11], s{53+j} offen offset:{1024*hf}{SC}")
    a(f"""
    {L}_epi3:
    """)
    if E("ES"): stamp(a, 6)
    a(f"""
    s_nop 7
    v_mov_b32 v144, {f32(QSCALE)}
    s_waitcnt lgkmcnt(0)
    """)
    for i in range(12): a(f"v_mul_f32 v{128+i}, v144, v{128+i}")
    for i in range(6): a(f"v_cvt_pk_bf16_f32 v{QA1+i}, v{128+2*i}, v{129+2*i}")
    a(f"""
    s_mul_i32 s52, s63, 1536
    s_add_u32 s52, s52, {QST}
    v_add_u32 v144, s52, v2
    v_lshl_add_u32 v145, v1, 3, s52
    s_cmp_ge_u32 s22, 4
    s_cbranch_scc1 {L}_gwave
    """)
    a(f"""
    s_setprio {E("APRIO", "1")}
    v_and_b32 v9, 31, v1
    v_lshrrev_b32 v10, 5, v1
    v_add_u32 v3, {KVR}, v2
    v_lshlrev_b32 v4, 3, v1
    v_add_u32 v4, {KVR+1024}, v4
    v_min_u32 v5, 23, v9
    v_mul_u32_u24 v11, 384, v10
    v_lshl_add_u32 v5, v5, 4, v11
    v_add_u32 v5, {KVR+1536}, v5
    v_lshlrev_b32 v146, 2, v1
    v_add_u32 v146, {QST+6144}, v146
    s_mov_b32 s27, 0
    s_mov_b32 s30, 0
    v_cmp_gt_u32 s[28:29], 32, v1
    v_lshlrev_b32 v60, 3, v9
    v_lshl_add_u32 v60, v10, 8, v60
    s_lshl_b32 s33, s20, 3
    s_lshl_b32 s52, s22, 1
    s_add_u32 s33, s33, s52
    s_mul_i32 s33, s33, 40960
    s_mul_i32 s52, s21, 1280
    s_add_u32 s33, s33, s52
    s_add_u32 s33, s33, {WS_O}
    s_add_u32 s31, s33, 40960
    """)
    a.c("v60 = o store offset, s33/s31 = o image base of block a / b")
    for r in list(range(OA, OA+32, 2)) + list(range(PB, PB+8, 2)) + list(range(KVB[1]+8, KVB[1]+16, 2)):
        a(f"v_mov_b64 v[{r}:{r+1}], 0")
    def qnorm(q1, q2, t, extra=()):
        ex = list(extra) + [""] * 2
        a(f"""
        v_cndmask_b32 v{q2}, 0, v{q2}, s[28:29]
        v_cndmask_b32 v{q2+1}, 0, v{q2+1}, s[28:29]
        v_mov_b32 v{t}, 0
        {ex[0]}
        v_dot2_f32_bf16 v{t}, v{q1}, v{q1}, v{t}
        v_dot2_f32_bf16 v{t}, v{q1+1}, v{q1+1}, v{t}
        v_dot2_f32_bf16 v{t}, v{q1+2}, v{q1+2}, v{t}
        {ex[1]}
        v_dot2_f32_bf16 v{t}, v{q1+3}, v{q1+3}, v{t}
        v_dot2_f32_bf16 v{t}, v{q2}, v{q2}, v{t}
        v_dot2_f32_bf16 v{t}, v{q2+1}, v{q2+1}, v{t}
        """)
    qnorm(QA1, QA2, 147)
    if E("ES"): stamp(a, 3)
    a(f"""
    s_barrier
    ds_read_b32 v146, v146
    ds_read_b128 {vr(QB1,4)}, v144
    ds_read_b64 {vr(QB2,2)}, v145 offset:1024
    ds_read_b128 {vr(KVB[0],4)}, v3 offset:{CH}
    ds_read_b64 {vr(KVB[0]+4,2)}, v4 offset:{CH}
    ds_read_b128 {vr(KVB[1],4)}, v3 offset:{CH+3072}
    ds_read_b64 {vr(KVB[1]+4,2)}, v4 offset:{CH+3072}
    ds_read_b128 {vr(KVB[0]+8,4)}, v5 offset:{CH}
    ds_read_b128 {vr(KVB[0]+12,4)}, v5 offset:{CH+768}
    """)
    stamp(a, 4)
    dm = lambda k: f"v_max_f32_dpp v146, v146, v146 {k} bank_mask:0xf"
    a(f"""
    v_mov_b32 v149, v147
    s_waitcnt lgkmcnt(6)
    v_and_b32 v146, 0xffff0000, v146
    v_permlane32_swap_b32 v147, v149
    s_nop 0
    {dm("row_shr:1 row_mask:0xf")}
    v_add_f32 v147, v147, v149
    s_nop 0
    {dm("row_shr:2 row_mask:0xf")}
    """)
    qnorm(QB1, QB2, 148, [dm("row_shr:4 row_mask:0xf"), dm("row_shr:8 row_mask:0xf")])
    a(f"""
    {dm("row_bcast:15 row_mask:0xa")}
    s_nop 1
    v_mov_b32 v150, v148
    {dm("row_bcast:31 row_mask:0xc")}
    s_nop 0
    v_permlane32_swap_b32 v148, v150
    v_readlane_b32 s26, v146, 63
    s_nop 0
    v_add_f32 v148, v148, v150
    v_mul_f32 v147, s26, v147
    v_mul_f32 v148, s26, v148
    v_sqrt_f32 v147, v147
    v_sqrt_f32 v148, v148
    v_mul_f32 v147, {f32(1.02)}, v147
    v_mul_f32 v148, {f32(1.02)}, v148
    """)
    def set_shift(ma, mb):
        for m, q2 in ((ma, QA2), (mb, QB2)):
            split3(a, m, q2+2, q2+3, 149, 150)
            a(f"v_cndmask_b32 v{q2}, v{q2+2}, v{q2}, s[28:29]")
            a(f"v_cndmask_b32 v{q2+1}, v{q2+3}, v{q2+1}, s[28:29]")
    set_shift(147, 148)
    a("s_waitcnt lgkmcnt(0)")
    for x in qk(SA, KVB[0], QA1, QA2): a(x)
    a("s_nop 11")
    a(".p2align 6")
    a(f"{L}_aloop:")
    for c in range(3):
        sl_cur, sl_nxt = ((c + 1) % 3) * CH, ((c + 2) % 3) * CH
        for t in range(4):
            cur, nxt = KVB[t & 1], KVB[(t + 1) & 1]
            aslot(a, SA, PA, qk(SB, cur, QB1, QB2) + pv(OB, nxt, PB))
            pre = ["s_waitcnt lgkmcnt(0)" if (t, c) != (3, 0) else "s_waitcnt vmcnt(0) lgkmcnt(0)"]
            if t == 0 and STAMP: pre.append("s_memtime s[38:39]")
            if t == 0: pre.append("s_barrier")
            if t == 0 and STAMP: pre.append("s_memtime s[36:37]")
            if t == 1 and STAMP: pre += ["s_mov_b32 m0, s27", "s_add_u32 s27, s27, 1", "v_writelane_b32 v61, s36, m0", "v_writelane_b32 v62, s38, m0"]
            ko = ((t + 2) & 3) * 3072 + (sl_cur if t < 2 else sl_nxt)
            vo = ((t + 1) & 3) * 3072 + (sl_cur if t < 3 else sl_nxt)
            rd = [f"ds_read_b128 {vr(cur,4)}, v3 offset:{ko}",
                  f"ds_read_b64 {vr(cur+4,2)}, v4 offset:{ko}",
                  f"ds_read_b128 {vr(nxt+8,4)}, v5 offset:{vo}",
                  f"ds_read_b128 {vr(nxt+12,4)}, v5 offset:{vo+768}"]
            if (t, c) == (3, 0): rd[3] += "\ns_cmp_eq_u32 s30, 5"
            if (t, c) == (3, 2): rd[3] += "\ns_add_u32 s30, s30, 1"
            aslot(a, SB, PB, qk(SA, nxt, QA1, QA2) + pv(OA, cur, PA), pre, rd)
        if c == 0: a(f"s_cbranch_scc1 {L}_adone")
    a(f"""
    s_branch {L}_aloop
    {L}_adone:
    s_nop 1
    """)
    for x in pv(OB, KVB[1], PB): a(x)
    stamp(a, 5)
    a(f"""
    s_mov_b32 s34, 0
    {L}_aepi:
    s_mov_b32 s35, {f32(2.0**-90)}
    s_waitcnt lgkmcnt(0)
    s_nop 11
    v_mov_b32 v144, v{OA+8}
    v_mov_b32 v145, v{OA+8}
    v_mov_b32 v146, v{OB+8}
    v_mov_b32 v147, v{OB+8}
    s_nop 0
    v_permlane32_swap_b32 v144, v145
    v_permlane32_swap_b32 v146, v147
    s_nop 0
    v_cmp_nle_f32 vcc, s35, v145
    v_cmp_nle_f32 s[36:37], s35, v147
    v_rcp_f32 v145, v145
    v_rcp_f32 v147, v147
    s_or_b64 s[36:37], vcc, s[36:37]
    s_cmp_eq_u32 s34, 0
    s_cselect_b64 s[36:37], s[36:37], 0
    s_cmp_lg_u64 s[36:37], 0
    s_cbranch_scc1 {L}_slow
    """)
    for blk, O in enumerate((OA, OB)):
        R = 145 + 2*blk
        for q in range(3):
            for i in range(4): a(f"v_mul_f32 v{O+4*q+i}, v{R}, v{O+4*q+i}")
            D = 64 + 8*blk + 2*q
            a(f"v_cvt_pk_bf16_f32 v{D}, v{O+4*q}, v{O+4*q+1}")
            a(f"v_cvt_pk_bf16_f32 v{D+1}, v{O+4*q+2}, v{O+4*q+3}")
            if q == 2: a("s_mov_b32 exec_hi, 0")
            a(f"buffer_store_dwordx2 {vr(D,2)}, v60, s[8:11], s{33 if blk == 0 else 31} offen offset:{512*q} sc1")
            if q == 2: a("s_mov_b64 exec, -1")
    if STAMP:
        a(f"""
        s_lshl_b32 s36, s2, 2
        s_add_u32 s36, s36, s22
        s_lshl_b32 s36, s36, 9
        s_add_u32 s36, s36, {0x1900000}
        v_lshlrev_b32 v63, 2, v1
        buffer_store_dword v61, v63, s[8:11], s36 offen
        buffer_store_dword v62, v63, s[8:11], s36 offen offset:256
        """)
    a(f"""
    s_setprio 0
    s_lshl_b32 s36, s20, 5
    s_lshl_b32 s37, s22, 2
    s_add_u32 s36, s36, s37
    s_lshr_b32 s37, s21, 3
    s_add_u32 s36, s36, s37
    s_lshl_b32 s36, s36, 7
    s_add_u32 s36, s36, {WS_F+F3}
    v_mov_b32 v9, 1
    v_mov_b32 v5, 0
    s_waitcnt vmcnt(0)
    s_mov_b64 exec, 1
    buffer_atomic_add v9, v5, s[8:11], s36 offen sc1
    s_mov_b64 exec, -1
    """)
    if not E("ES"): stamp(a, 3)
    a(f"""
    s_branch {L}_p3
    """)
    kb = KVB[0]
    a(f"""
    {L}_slow:
    s_mov_b32 s34, 1
    v_cndmask_b32 v{QA2}, 0, v{QA2}, s[28:29]
    v_cndmask_b32 v{QA2+1}, 0, v{QA2+1}, s[28:29]
    v_cndmask_b32 v{QB2}, 0, v{QB2}, s[28:29]
    v_cndmask_b32 v{QB2+1}, 0, v{QB2+1}, s[28:29]
    v_mov_b32 v147, 0xff800000
    v_mov_b32 v148, 0xff800000
    s_mov_b32 s36, {WS_KV - KVR}
    {L}_slow1:
    buffer_load_dwordx4 {vr(kb,4)}, v3, s[8:11], s36 offen sc1
    buffer_load_dwordx2 {vr(kb+4,2)}, v4, s[8:11], s36 offen sc1
    s_add_u32 s36, s36, 3072
    s_waitcnt vmcnt(0)
    """)
    for x in qk(SA, kb, QA1, QA2) + qk(SB, kb, QB1, QB2): a(x)
    a("s_nop 15")
    for i in range(0, 16, 2):
        a(f"v_max3_f32 v147, v{SA+i}, v{SA+i+1}, v147")
        a(f"v_max3_f32 v148, v{SB+i}, v{SB+i+1}, v148")
    a(f"""
    s_cmp_lt_u32 s36, {WS_KV - KVR + 64*3072}
    s_cbranch_scc1 {L}_slow1
    v_mov_b32 v149, v147
    v_mov_b32 v150, v148
    s_nop 1
    v_permlane32_swap_b32 v147, v149
    v_permlane32_swap_b32 v148, v150
    s_nop 1
    v_max_f32 v147, v147, v149
    v_max_f32 v148, v148, v150
    """)
    set_shift(147, 148)
    for r in range(OA, OA+32): a(f"v_mov_b32 v{r}, 0")
    a(f"""
    s_mov_b32 s36, {WS_KV - KVR}
    {L}_slow2:
    buffer_load_dwordx4 {vr(kb,4)}, v3, s[8:11], s36 offen sc1
    buffer_load_dwordx2 {vr(kb+4,2)}, v4, s[8:11], s36 offen sc1
    buffer_load_dwordx4 {vr(kb+8,4)}, v5, s[8:11], s36 offen sc1
    buffer_load_dwordx4 {vr(kb+12,4)}, v5, s[8:11], s36 offen offset:768 sc1
    s_add_u32 s36, s36, 3072
    s_waitcnt vmcnt(0)
    """)
    for x in qk(SA, kb, QA1, QA2) + qk(SB, kb, QB1, QB2): a(x)
    a("s_nop 15")
    for g in exp_groups(SA, PA) + exp_groups(SB, PB):
        for x in g: a(x)
    a("s_nop 1")
    for x in pv(OA, kb, PA) + pv(OB, kb, PB): a(x)
    a(f"""
    s_cmp_lt_u32 s36, {WS_KV - KVR + 64*3072}
    s_cbranch_scc1 {L}_slow2
    s_nop 7
    s_branch {L}_aepi
    """)

    a(f"""
    {L}_gwave:
    ds_write_b128 v144, {vr(QA1,4)}
    ds_write_b64 v145, {vr(QA2,2)} offset:1024
    s_load_dwordx2 s[6:7], s[0:1], 64
    s_and_b32 s16, s22, 3
    s_and_b32 s57, s21, 3
    s_lshl_b32 s57, s57, 3
    s_lshr_b32 s34, s21, 2
    s_add_u32 s57, s57, s34
    s_cmp_ge_u32 s57, 15
    s_cselect_b32 s33, 1, 0
    s_cselect_b32 s34, 15, 0
    s_sub_u32 s34, s57, s34
    s_lshl_b32 s35, s20, 1
    s_add_u32 s33, s33, s35
    s_mul_i32 s35, s34, 13
    s_lshr_b32 s35, s35, 6
    s_mul_i32 s36, s35, 5
    s_sub_u32 s34, s34, s36
    s_waitcnt lgkmcnt(0)
    """)
    if E("ES"): stamp(a, 3)
    a(f"""
    s_barrier
    s_lshl_b32 s36, s33, 2
    s_add_u32 s36, s36, s16
    s_mul_i32 s36, s36, 108
    s_mul_i32 s37, s35, 36
    s_add_u32 s36, s36, s37
    s_lshl_b32 s36, s36, 10
    s_add_u32 s40, s36, {WS_H}
    s_mul_i32 s41, s35, {576*1280}
    s_mul_i32 s36, s16, {16*1280}
    s_add_u32 s41, s41, s36
    s_lshl_b32 s36, s34, 8
    s_add_u32 s41, s41, s36
    v_lshrrev_b32 v3, 4, v1
    v_lshlrev_b32 v4, 2, v3
    v_and_b32 v5, 15, v1
    v_xor_b32 v4, v4, v5
    s_movk_i32 s36, 1280
    v_mul_u32_u24 v3, s36, v3
    v_lshl_add_u32 v3, v4, 4, v3
    v_add_u32 v4, {5120-1024}, v3
    v_add_u32 v5, {2*(5120-1024)}, v3
    v_add_u32 v13, {3*(5120-1024)}, v3
    s_lshl_b32 s42, s16, 12
    s_add_u32 s43, s42, 16384
    s_mov_b32 s45, 0
    s_mov_b32 s30, 0
    s_mov_b32 s46, 0
    s_cmp_lt_u32 s57, 30
    s_cselect_b32 s47, 9, 0
    s_cselect_b32 s50, {WS_SIZE}, 0
    s_cselect_b32 s54, 2211840, 0
    s_mov_b32 s48, s18
    s_and_b32 s49, s19, 0xffff
    s_mov_b32 s51, 0x20000
    s_mov_b32 s55, 0x20000
    s_mov_b32 m0, s43
    s_mov_b32 s52, s6
    s_and_b32 s53, s7, 0xffff
    """)
    a.c("s33 = row group (128 rows), s34 = col group (128 cols), s35 = k split, s47 = stages of this WG")
    def gw():
        a(f"""
        buffer_load_dwordx4 v3, s[52:55], s41 offen lds
        buffer_load_dwordx4 v4, s[52:55], s41 offen offset:1024 lds
        buffer_load_dwordx4 v5, s[52:55], s41 offen offset:2048 lds
        buffer_load_dwordx4 v13, s[52:55], s41 offen offset:3072 lds
        s_add_u32 s41, s41, {64*1280}
        """)
    def gh():
        a(f"""
        buffer_load_dwordx4 v2, s[48:51], s40 offen{SCL} lds
        buffer_load_dwordx4 v2, s[48:51], s40 offen offset:1024{SCL} lds
        buffer_load_dwordx4 v2, s[48:51], s40 offen offset:2048{SCL} lds
        buffer_load_dwordx4 v2, s[48:51], s40 offen offset:3072{SCL} lds
        s_add_u32 s40, s40, 4096
        """)
    gw()
    a(f"""
    s_and_b32 s36, s16, 1
    s_lshr_b32 s37, s16, 1
    s_lshl_b32 s38, s36, 13
    v_add_u32 v6, s38, v2
    v_lshrrev_b32 v8, 5, v1
    v_bfe_u32 v9, v1, 2, 2
    v_lshl_add_u32 v8, v8, 2, v9
    v_lshlrev_b32 v8, 8, v8
    s_lshl_b32 s38, s37, 1
    v_xor_b32 v9, s38, v9
    v_lshl_add_u32 v8, v9, 6, v8
    v_bfe_u32 v9, v1, 4, 1
    v_lshl_add_u32 v8, v9, 5, v8
    v_and_b32 v9, 3, v1
    v_lshl_add_u32 v8, v9, 3, v8
    v_add_u32 v7, 16384, v8
    v_xor_b32 v8, 64, v7
    """)
    for r in range(64, 128, 2): a(f"v_mov_b64 v[{r}:{r+1}], 0")
    a(f"""
    s_mov_b32 m0, s42
    s_barrier
    s_waitcnt vmcnt(0)
    s_barrier
    s_barrier
    s_barrier
    """)
    gh()
    a(f"""
    s_mov_b32 s44, {GSL}
    s_branch {L}_gin
    {L}_gloop:
    s_barrier
    {L}_gin:
    s_add_u32 s46, s46, 1
    s_cmp_ge_u32 s46, s47
    s_cbranch_scc1 {L}_gnod
    s_add_u32 m0, s44, s42
    s_nop 0
    """)
    gh()
    a("s_add_u32 m0, s44, s43")
    a(f"s_add_u32 s44, s44, {GSL}")
    gw()
    a(f"""
    s_cmp_ge_u32 s44, {3*GSL}
    s_cselect_b32 s44, 0, s44
    {L}_gnod:
    s_sub_u32 s36, s30, 1
    s_cmp_ge_u32 s36, s47
    s_cbranch_scc1 {L}_gskip
    v_add_u32 v10, s45, v6
    v_add_u32 v11, s45, v7
    v_add_u32 v12, s45, v8
    s_add_u32 s45, s45, {GSL}
    s_cmp_ge_u32 s45, {3*GSL}
    s_cselect_b32 s45, 0, s45
    """)
    FB = [16, 32]
    def rl(ks):
        b = FB[ks & 1]
        return [f"ds_read_b128 {vr(b,4)}, v10 offset:{ks*1024}",
                f"ds_read_b64_tr_b16 {vr(b+8,2)}, v11 offset:{ks*4096}",
                f"ds_read_b64_tr_b16 {vr(b+10,2)}, v11 offset:{ks*4096+2048}",
                f"ds_read_b64_tr_b16 {vr(b+12,2)}, v12 offset:{ks*4096}",
                f"ds_read_b64_tr_b16 {vr(b+14,2)}, v12 offset:{ks*4096+2048}",
                f"ds_read_b128 {vr(b+4,4)}, v10 offset:{ks*1024+4096}"]
    def ml(ks):
        b = FB[ks & 1]
        x0, x1, w0, w1 = vr(b,4), vr(b+4,4), vr(b+8,4), vr(b+12,4)
        return [f"{M} v[64:79], {w0}, {x0}, v[64:79]", f"{M} v[80:95], {w1}, {x0}, v[80:95]",
                f"{M} v[96:111], {w0}, {x1}, v[96:111]", f"{M} v[112:127], {w1}, {x1}, v[112:127]"]
    for x in rl(0): a(x)
    for ks in range(4):
        a("s_waitcnt lgkmcnt(0)")
        r = rl(ks + 1) if ks < 3 else []
        for i, m in enumerate(ml(ks)):
            a(m)
            for x in r[2*i:2*i+2]: a(x)
    a(f"""
    s_cmp_lg_u32 s30, s47
    s_cbranch_scc1 {L}_gskip
    s_lshl_b32 s36, s35, 6
    s_lshl_b32 s37, s33, 2
    s_add_u32 s36, s36, s37
    s_and_b32 s37, s16, 1
    s_lshl_b32 s37, s37, 1
    s_add_u32 s36, s36, s37
    s_mul_i32 s36, s36, 40
    s_lshl_b32 s37, s34, 3
    s_add_u32 s36, s36, s37
    s_lshr_b32 s37, s16, 1
    s_lshl_b32 s37, s37, 2
    s_add_u32 s36, s36, s37
    s_lshl_b32 s36, s36, 10
    s_add_u32 s36, s36, {WS_B}
    s_add_u32 s37, s36, 40960
    s_nop 7
    """)
    for u in range(4):
        A = 64 + 16*u
        for qp in range(2):
            O = 16 + 4*((2*u+qp) % 8)
            for i in range(4):
                a(f"v_cvt_pk_bf16_f32 v{O+i}, v{A+8*qp+2*i}, v{A+8*qp+2*i+1}")
            a(f"buffer_store_dwordx4 {vr(O,4)}, v2, s[8:11], s{36 + (u>>1)} offen offset:{(u&1)*2048 + qp*1024} sc1")
    a(f"""
    s_branch {L}_gend
    {L}_gskip:
    s_add_u32 s30, s30, 1
    s_cmp_ge_u32 s30, 10
    s_cbranch_scc1 {L}_gend
    s_cmp_lt_u32 s46, s47
    s_cbranch_scc1 {L}_gw8
    s_waitcnt vmcnt(0)
    {L}_gw8:
    s_waitcnt vmcnt(8)
    s_branch {L}_gloop
    {L}_gend:
    s_barrier
    s_waitcnt vmcnt(0)
    s_barrier
    s_barrier
    """)

    a(f"""
    {L}_p3:
    s_load_dwordx2 s[4:5], s[0:1], 80
    s_lshl_b32 s17, s20, 3
    s_and_b32 s16, s21, 3
    s_lshl_b32 s16, s16, 1
    s_add_u32 s17, s17, s16
    s_lshr_b32 s16, s21, 2
    s_and_b32 s36, s22, 1
    s_lshr_b32 s39, s22, 1
    s_add_u32 s36, s17, s36
    s_mul_i32 s36, s36, 40
    s_mul_i32 s37, s39, 10
    s_add_u32 s36, s36, s37
    s_lshl_b32 s36, s36, 10
    s_add_u32 s36, s36, {WS_O}
    s_add_u32 s37, s36, 4096
    s_add_u32 s38, s36, 8192
    v_lshrrev_b32 v8, 5, v1
    v_bfe_u32 v9, v1, 2, 2
    v_lshl_add_u32 v8, v8, 2, v9
    v_mul_u32_u24 v8, 192, v8
    v_bfe_u32 v9, v1, 4, 1
    v_lshl_add_u32 v8, v9, 5, v8
    v_and_b32 v9, 3, v1
    v_lshl_add_u32 v8, v9, 3, v8
    s_lshl_b32 s48, s39, 2
    s_mul_i32 s49, s39, 30720
    v_add_u32 v8, s49, v8
    v_lshlrev_b32 v7, 3, v1
    v_and_b32 v6, 31, v1
    s_lshl_b32 s39, s17, 5
    v_add_u32 v6, s39, v6
    v_lshrrev_b32 v4, 3, v6
    v_lshlrev_b32 v4, 7, v4
    v_and_b32 v9, 7, v1
    v_lshl_add_u32 v4, v9, 2, v4
    s_mov_b32 s40, {WS_G}
    s_mul_i32 s41, s16, 10
    s_add_u32 s41, s41, s22
    s_lshr_b32 s42, s41, 1
    s_lshl_b32 s42, s42, 10
    s_and_b32 s43, s41, 1
    s_lshl_b32 s43, s43, 3
    s_add_u32 s42, s42, s43
    s_mul_i32 s43, s17, 40960
    s_add_u32 s42, s42, s43
    s_add_u32 s42, s42, {WS_B}
    v_mov_b32 v22, {NONCE}
    s_lshr_b32 s46, s22, 1
    s_lshl_b32 s45, 1, s46
    """)
    a.c("s17 = first row block of the tile, s16 = column group; final items: quad = wave, both row blocks")
    def bg():
        a("buffer_load_dword v140, v4, s[8:11], s40 offen sc1")
        a("buffer_load_dword v141, v4, s[8:11], s40 offen offset:512 sc1")
        for j in range(2):
            for sk in range(3):
                a(f"s_add_u32 s43, s42, {j*40960 + sk*64*40960}")
                a(f"buffer_load_dwordx2 {vr(128+6*j+2*sk,2)}, v2, s[8:11], s43 offen sc1")
    a(f"""
    s_movk_i32 s43, 1280
    v_mul_lo_u32 v6, v6, s43
    v_lshrrev_b32 v9, 5, v1
    v_lshl_add_u32 v6, v9, 3, v6
    s_lshl_b32 s41, s41, 4
    s_add_u32 s44, s41, 40960
    s_waitcnt lgkmcnt(0)
    """)
    srd(a, 12, 4, 5, 2621440)
    for r in range(64, 112, 2): a(f"v_mov_b64 v[{r}:{r+1}], 0")
    WF = [112, 144]
    def wr(ks):
        b = WF[ks & 1]
        return [f"ds_read_b64_tr_b16 {vr(b+4*cb+2*t,2)}, v8 offset:{ks*3072 + t*1536 + 64*cb}" for cb in range(3) for t in range(2)]
    a(f"""
    s_mov_b32 s70, {SPIN}
    s_cmp_lg_u32 s22, 8
    s_cbranch_scc1 {L}_p3w1
    s_mov_b64 exec, 0xf
    {L}_p3poll:
    buffer_load_dword v24, v3, s[8:11], s35 offen sc1
    s_sub_u32 s70, s70, 1
    s_cselect_b32 s47, -1, 0
    s_waitcnt vmcnt(0)
    v_cmp_eq_u32 vcc, 8, v24
    s_or_b32 s47, s47, vcc_lo
    s_or_b32 s47, s47, 0xfffffff0
    v_mov_b32 v23, s47
    ds_write_b32 v22, v23 offset:8
    s_sleep {E("PSLEEP", "2")}
    s_cmp_lg_u32 s47, -1
    s_cbranch_scc1 {L}_p3poll
    """)
    stamp(a, 6)
    a(f"""
    s_mov_b64 exec, -1
    {L}_p3w1:
    ds_read_b32 v10, v22 offset:12
    s_waitcnt lgkmcnt(0)
    v_readfirstlane_b32 s46, v10
    s_cmp_eq_u32 s46, 2
    s_cbranch_scc1 {L}_p3rdy
    s_sleep 1
    s_branch {L}_p3w1
    {L}_p3rdy:
    """)
    bg()
    for x in wr(0): a(x)
    a("s_waitcnt vmcnt(0)")
    for j in range(2):
        a(f"""
        v_sub_f32 v142, 1.0, v{140+j}
        v_cvt_pk_bf16_f32 v142, v142, v142
        v_lshlrev_b32 v142, 16, v142
        """)
        B = 128 + 6*j
        for i in range(4):
            ex = (lambda d, r: f"v_lshlrev_b32 v{d}, 16, v{r}") if i % 2 == 0 else (lambda d, r: f"v_and_b32 v{d}, 0xffff0000, v{r}")
            a(f"""
            {ex(12+4*j+i, B + i//2)}
            {ex(143, B + 2 + i//2)}
            v_add_f32 v{12+4*j+i}, v{12+4*j+i}, v143
            {ex(143, B + 4 + i//2)}
            v_add_f32 v{12+4*j+i}, v{12+4*j+i}, v143
            v_mul_f32 v{12+4*j+i}, v142, v{12+4*j+i}
            """)
    a(f"""
    s_cmp_ge_u32 s22, 8
    s_cbranch_scc1 {L}_p3r
    {L}_p3w:
    ds_read_b32 v10, v22 offset:8
    s_waitcnt lgkmcnt(0)
    v_readfirstlane_b32 s47, v10
    s_and_b32 s47, s47, s45
    s_cmp_eq_u32 s47, s45
    s_cbranch_scc1 {L}_p3m
    s_sleep 1
    s_branch {L}_p3w
    {L}_p3m:
    """)
    if not E("ES"): stamp(a, 6)
    OF = 24
    for ks in range(10):
        for sl in range(2):
            a(f"buffer_load_dwordx2 {vr(OF+4*ks+2*sl,2)}, v7, s[8:11], s{36+ks//4} offen offset:{(ks%4)*1024+512*sl}{E('OSC', ' sc1')}")
    for ks in range(10):
        a(f"s_waitcnt vmcnt({18-2*ks}) lgkmcnt(0)")
        r = wr(ks+1) if ks < 9 else []
        b = WF[ks & 1]
        for cb in range(3):
            a(f"{M} {vr(64+16*cb,16)}, {vr(b+4*cb,4)}, {vr(OF+4*ks,4)}, {vr(64+16*cb,16)}")
            for x in r[2*cb:2*cb+2]: a(x)
    a(f"""
    v_add_u32 v23, s48, v22
    v_mov_b32 v9, 1
    s_mov_b64 exec, 1
    ds_add_u32 v23, v9 offset:16
    s_mov_b64 exec, -1
    s_and_b32 s47, s22, 1
    s_mul_i32 s47, s47, 10240
    s_add_u32 s39, s49, s47
    v_add_u32 v5, s39, v2
    {L}_p3pw:
    ds_read_b32 v9, v23 offset:16
    s_waitcnt lgkmcnt(0)
    v_readfirstlane_b32 s47, v9
    s_cmp_lg_u32 s47, 2
    s_cbranch_scc1 {L}_p3pw
    """)
    for q in range(10):
        a(f"ds_write_b128 v5, {vr(64+4*q,4)} offset:{1024*q}")
    a(f"""
    s_waitcnt lgkmcnt(0)
    {L}_p3r:
    """)
    if STAMP:
        a(f"s_cmp_lt_u32 s22, 4\ns_cbranch_scc1 {L}_st4")
        stamp(a, 4)
        a(f"{L}_st4:")
    a(f"""
    s_lshl_b32 s39, s22, 10
    v_add_u32 v5, s39, v2
    v_add_u32 v7, 61440, v5
    s_barrier
    """)
    for j in range(2):
        for kq in range(4):
            a(f"ds_read_b128 {vr(24+16*j+4*kq,4)}, v{5 if kq < 2 else 7} offset:{j*10240 + (kq%2)*30720}")
    for j in range(2):
        P = 24 + 16*j
        a(f"s_waitcnt lgkmcnt({4 - 4*j})")
        for i in range(4):
            a(f"""
            v_add_f32 v{P+i}, v{P+i}, v{P+4+i}
            v_add_f32 v{P+8+i}, v{P+8+i}, v{P+12+i}
            v_add_f32 v{P+i}, v{P+i}, v{P+8+i}
            v_fma_f32 v{P+i}, v{140+j}, v{P+i}, v{12+4*j+i}
            """)
        a(f"""
        v_cvt_pk_bf16_f32 v{P}, v{P}, v{P+1}
        v_cvt_pk_bf16_f32 v{P+1}, v{P+2}, v{P+3}
        buffer_store_dwordx2 {vr(P,2)}, v6, s[12:15], s{41 if j == 0 else 44} offen
        """)
    stamp_out(a, 7, 0)
    a(f"{L}_end:")
    a("s_endpgm")
    kernel_desc(a, name, 160, 100)
```

```python
from common import *
import math
from k2 import (M, QA1, QA2, QB1, QB2, KVB, SA, SB, OA, OB, PA, PB, split3, exp_groups, pv, CH)
def qk(Sd, kb, q1, q2):
    return [f"{M} {vr(Sd,16)}, {vr(kb,4)}, {vr(q1,4)}, 0",
            f"v_mfma_f32_32x32x8_bf16 {vr(Sd,16)}, {vr(kb+4,2)}, {vr(q2,2)}, {vr(Sd,16)}"]
LOG2E = 1.4426950408889634
QSCALE = LOG2E / math.sqrt(20.0)
E = os.environ.get
XSL = 32768
WB = 3 * XSL
WSL = 10240
QST = WB
KVR = 163840 - 3 * CH
GSL = 32768
NONCE = 122880
KMX = XSL
BREG = True
F_LDS = 163840
F_BLOCK = 640
SPIN = int(E("SPIN", 1 << 16))
SC = " sc1"
SCL = E('SCL', ' sc1')

_pc = [0]
def poll(a, L, voff, soff):
    _pc[0] += 1
    T = f"{L}_poll{_pc[0]}"
    a(f"""
    s_mov_b32 s70, {SPIN}
    {T}:
    buffer_load_dwordx2 v[24:25], {voff}, s[8:11], {soff} offen sc1
    s_sub_u32 s70, s70, 1
    s_cbranch_scc1 {T}_ok
    s_waitcnt vmcnt(0)
    v_cmp_ne_u64 vcc, v[24:25], v[20:21]
    s_cmp_eq_u64 vcc, 0
    s_cbranch_scc1 {T}_ok
    s_sleep {E("PSLEEP", "2")}
    s_branch {T}
    {T}_ok:
    """)

def flag(a, soff):
    a(f"""
    s_mov_b64 exec, 1
    buffer_store_dwordx2 v[20:21], v5, s[8:11], {soff} offen sc1
    s_mov_b64 exec, -1
    """)

def aslot(a, S, P, mf, pre=(), rd=None):
    g = exp_groups(S, P)
    flat = [x for gg in g for x in gg]
    pos = [int(x) for x in E("MPOS", "0,5,11,17").split(",")]
    for p in pre: a(p)
    k = 0
    for i, x in enumerate(flat):
        while k < 4 and pos[k] == i:
            a(mf[k])
            if rd: a(rd[k])
            k += 1
        a(x)

def gen(a, name):
    kernel_head(a, name)
    L = name
    a(f"""
    s_cmp_ge_u32 s2, 256
    s_cbranch_scc1 {L}_end
    s_load_dwordx8 s[4:11], s[0:1], 0
    s_load_dwordx4 s[12:15], s[0:1], 48
    s_load_dwordx2 s[18:19], s[0:1], 96
    """)
    stamp(a, 0)
    a(f"""
    v_lshrrev_b32 v2, 6, v0
    v_and_b32 v1, 63, v0
    v_readfirstlane_b32 s22, v2
    s_and_b32 s47, s2, 7
    s_lshr_b32 s51, s2, 3
    s_and_b32 s20, s47, 1
    s_lshl_b32 s20, s20, 2
    s_and_b32 s67, s51, 3
    s_add_u32 s20, s20, s67
    s_lshr_b32 s21, s47, 1
    s_lshr_b32 s68, s51, 2
    s_lshl_b32 s52, s68, 2
    s_add_u32 s21, s21, s52
    s_cmp_lt_u32 s22, 8
    s_cbranch_scc1 {L}_comp
    """)
    a.c("s20 = row group (256 rows), s21 = cg = head = column group, s22 = wave; kept for the whole kernel, as is s[18:19]")
    a(f"""
    s_setprio {E("LPRIO", "3")}
    s_load_dwordx2 s[72:73], s[0:1], 88
    s_load_dwordx2 s[74:75], s[0:1], 32
    s_and_b32 s63, s22, 1
    v_mov_b32 v16, 0
    v_lshlrev_b32 v17, 7, v1
    v_lshrrev_b32 v10, 3, v1
    v_lshrrev_b32 v11, 4, v1
    v_and_b32 v12, 7, v1
    v_xor_b32 v12, v12, v11
    v_xor_b32 v11, 4, v12
    s_movk_i32 s54, 1280
    v_mul_u32_u24 v10, s54, v10
    v_lshl_add_u32 v15, v11, 4, v10
    v_lshl_add_u32 v10, v12, 4, v10
    s_mul_i32 s53, s20, {256*1280}
    s_mul_i32 s55, s63, {64*1280}
    s_add_u32 s53, s53, s55
    """)
    for i in range(8):
        a(f"s_add_u32 s55, s53, {i*10240 - 1024*(i&3) + 4096}")
        a(f"v_add_u32 v{2+i}, s55, v{15 if i & 1 else 10}")
    a(f"""
    s_add_u32 s52, s67, s68
    s_and_b32 s52, s52, 3
    """)
    ORD = E("ORD", "b3")
    def order(t):
        if ORD == "lat4": return [(n + (5*t >> 1)) % 10 for n in range(10)]
        if ORD == "lat2": return [(n + 5*(t & 1)) % 10 for n in range(10)]
        if ORD == "b2": return [n ^ (t & 1) for n in range(10)]
        if ORD == "b4": return [(n & ~3) | ((n + t) & 3) if n < 8 else 8 + ((n + t) & 1) for n in range(10)]
        if ORD == "b5": return [5*(n // 5) + ((n % 5) + [0, 1, 2, 4][t]) % 5 for n in range(10)]
        if ORD == "b3": return [3*(n // 3) + ((n % 3) + t) % 3 if n < 9 else 9 for n in range(10)]
        if ORD == "h1": return [((n ^ (t & 1)) + 4*(t >> 1)) % 10 for n in range(10)]
        if ORD == "h2": return [(n + 2*(t>>1)) % 4 ^ (t & 1) if n < 4 else 4 + 3*((n-4)//3) + ((n-4) % 3 + t) % 3 for n in range(10)]
        if ORD == "h3": return [n ^ (t & 1) if n < 2 else (2 + (n - 2 + t) % 4 if n < 6 else 6 + (n - 6 + t) % 4) for n in range(10)]
        if ORD == "h4": return [0 if n == 0 else 1 + 3*((n-1)//3) + ((n-1) % 3 + t) % 3 for n in range(10)]
        if ORD == "none": return list(range(10))
    for t in range(4):
        tab = sum(p << (4*n) for n, p in enumerate(order(t)))
        if t == 0:
            a(f"s_mov_b32 s60, {tab & 0xffffffff}\ns_mov_b32 s61, {tab >> 32}")
        else:
            a(f"s_cmp_eq_u32 s52, {t}\ns_cselect_b32 s60, {tab & 0xffffffff}, s60\ns_cselect_b32 s61, {tab >> 32}, s61")
    a(f"""
    s_and_b32 s52, s60, 15
    s_lshl_b32 s41, s52, 7
    s_lshl_b32 s48, s63, 13
    s_mov_b32 m0, s48
    v_lshrrev_b32 v13, 3, v1
    s_movk_i32 s62, 3456
    v_mul_u32_u24 v13, s62, v13
    v_and_b32 v14, 7, v1
    v_bfe_u32 v15, v1, 4, 1
    v_lshlrev_b32 v15, 2, v15
    v_xor_b32 v14, v14, v15
    v_lshl_add_u32 v13, v14, 4, v13
    s_lshl_b32 s53, s21, 7
    v_add_u32 v10, s53, v13
    v_add_u32 v11, {8*3456-1024}, v10
    v_add_u32 v12, {2*(8*3456-1024)}, v10
    v_add_u32 v13, {3*(8*3456-1024)}, v10
    v_lshrrev_b32 v14, 2, v1
    v_mul_u32_u24 v14, s54, v14
    v_and_b32 v15, 3, v1
    v_lshl_add_u32 v14, v15, 4, v14
    s_mul_i32 s53, s21, 40
    s_mul_i32 s55, s63, {16*1280}
    s_add_u32 s53, s53, s55
    v_add_u32 v14, s53, v14
    v_cmp_eq_u32 vcc, 3, v15
    v_mov_b32 v15, 0x7f000000
    s_nop 0
    v_cndmask_b32 v14, v14, v15, vcc
    v_lshlrev_b32 v15, 4, v1
    s_mov_b32 s26, {2621440+4096}
    s_mov_b32 s27, 0x20000
    s_mov_b32 s30, 2211840
    s_mov_b32 s31, 0x20000
    s_mov_b32 s34, 819200
    s_mov_b32 s35, 0x20000
    s_sub_u32 s53, s21, 27
    s_cmp_lt_u32 s53, 2
    s_cselect_b32 s38, 25600, 0
    s_mov_b32 s39, 0x20000
    s_lshl_b32 s52, s52, 1
    s_mul_i32 s42, s52, {32*3456}
    s_mul_i32 s43, s52, {32*1280}
    s_mul_i32 s40, s52, 1280
    s_lshl_b32 s51, s63, 10
    s_add_u32 s40, s40, s51
    s_lshl_b32 s49, s63, 12
    s_add_u32 s49, s49, {WB}
    s_add_u32 s50, s51, {WB+8192}
    s_add_u32 s56, s51, {WB}
    s_add_u32 s45, s48, 16384
    s_add_u32 s54, s41, 163840
    s_mov_b32 s44, 0
    s_mov_b32 s46, 0
    s_mov_b32 s58, 2
    s_waitcnt lgkmcnt(0)
    s_sub_u32 s24, s4, 4096
    s_subb_u32 s25, s5, 0
    s_and_b32 s25, s25, 0xffff
    """)
    a.c("x voffsets carry +4096 so that they stay non negative; the SRD base carries -4096")
    def xdma(so):
        a(f"""
        buffer_load_dwordx4 v2, s[24:27], {so} offen lds
        buffer_load_dwordx4 v3, s[24:27], {so} offen offset:1024 lds
        buffer_load_dwordx4 v4, s[24:27], {so} offen offset:2048 lds
        buffer_load_dwordx4 v5, s[24:27], {so} offen offset:3072 lds
        s_add_u32 m0, m0, 4096
        s_nop 0
        buffer_load_dwordx4 v6, s[24:27], {so} offen lds
        buffer_load_dwordx4 v7, s[24:27], {so} offen offset:1024 lds
        buffer_load_dwordx4 v8, s[24:27], {so} offen offset:2048 lds
        buffer_load_dwordx4 v9, s[24:27], {so} offen offset:3072 lds
        """)
    xdma("s41")
    a(f"""
    s_cmp_eq_u32 s63, 1
    s_cselect_b32 s28, s14, s12
    s_cselect_b32 s29, s15, s13
    s_and_b32 s29, s29, 0xffff
    s_mov_b32 s32, s6
    s_and_b32 s33, s7, 0xffff
    s_cmp_eq_u32 s21, 27
    s_cselect_b32 s36, s8, s10
    s_cselect_b32 s37, s9, s11
    s_and_b32 s37, s37, 0xffff
    s_mov_b32 s8, s18
    s_and_b32 s9, s19, 0xffff
    s_mov_b32 s10, {WS_SIZE}
    s_mov_b32 s11, 0x20000
    s_mov_b32 s12, s18
    s_and_b32 s13, s19, 0xffff
    s_mov_b32 s14, {WS_KV + 64*3072}
    s_mov_b32 s15, 0x20000
    s_mov_b32 s69, {WS_F+FQ}
    s_cmp_ge_u32 s21, 27
    s_cbranch_scc1 {L}_ldl_issue
    """)
    a.c("s45/s54 next x half (lds, soffset), s41 k byte offset of the pair, s42 W, s43 wq, s40 wk/wv soffsets, s44 W slot")
    for tag, D in (("ldf", 13), ("ldl", 10)):
        a(f"""
        {L}_{tag}_issue:
        s_mov_b32 m0, s45
        s_add_u32 s46, s46, 1
        """)
        xdma("s54")
        if tag == "ldf":
            a(f"""
            s_add_u32 m0, s44, s49
            s_add_u32 s45, s45, 16384
            buffer_load_dwordx4 v10, s[28:31], s42 offen lds
            buffer_load_dwordx4 v11, s[28:31], s42 offen offset:1024 lds
            buffer_load_dwordx4 v12, s[28:31], s42 offen offset:2048 lds
            buffer_load_dwordx4 v13, s[28:31], s42 offen offset:3072 lds
            """)
        else:
            a(f"""
            s_add_u32 m0, s44, s56
            s_add_u32 s45, s45, 16384
            buffer_load_dwordx4 v15, s[36:39], s40 offen lds
            """)
        a(f"""
        s_add_u32 m0, s44, s50
        s_lshr_b32 s52, s46, 1
        buffer_load_dwordx4 v14, s[32:35], s43 offen lds
        s_lshl_b32 s52, s52, 2
        s_lshr_b64 s[64:65], s[60:61], s52
        s_and_b32 s52, s64, 15
        s_lshl_b32 s52, s52, 1
        s_and_b32 s53, s46, 1
        s_add_u32 s52, s52, s53
        s_mul_i32 s42, s52, {32*3456}
        s_mul_i32 s43, s52, {32*1280}
        s_mul_i32 s40, s52, 1280
        s_add_u32 s40, s40, s51
        s_lshl_b32 s52, s53, 2
        s_lshr_b32 s52, s64, s52
        s_and_b32 s52, s52, 15
        s_lshl_b32 s54, s52, 7
        s_cmp_eq_u32 s53, 0
        s_cselect_b32 s52, 163840, 0
        s_add_u32 s54, s54, s52
        s_add_u32 s44, s44, {WSL}
        s_cmp_ge_u32 s44, {4*WSL}
        s_cselect_b32 s44, 0, s44
        s_cmp_ge_u32 s45, {WB}
        s_cselect_b32 s45, s48, s45
        s_cmp_eq_u32 s46, 19
        s_cselect_b32 s26, 0, s26
        """)
        if tag == "ldf":
            a(f"""
            s_cmp_lg_u32 s46, 12
            s_cbranch_scc1 {L}_ld_e1
            global_load_dwordx2 v[20:21], v16, s[72:73] sc0 sc1
            {L}_ld_e1:
            s_cmp_lg_u32 s46, {E("KVE", "19")}
            s_cbranch_scc1 {L}_ld_e2
            s_mov_b64 exec, 0xffff
            buffer_load_dwordx2 v[24:25], v17, s[8:11], s69 offen sc1
            s_mov_b64 exec, -1
            {L}_ld_e2:
            """)
        a(f"""
        s_cmp_lt_u32 s46, s58
        s_cbranch_scc1 {L}_{tag}_issue
        s_waitcnt vmcnt({D})
        s_barrier
        s_add_u32 s58, s58, 1
        s_cmp_le_u32 s58, 20
        s_cbranch_scc1 {L}_{tag}_issue
        """)
        if tag == "ldf": a(f"s_branch {L}_ld_tailf")
    def kv():
        a(f"""
        s_add_u32 m0, s25, s24
        s_add_u32 s25, s25, {CH}
        buffer_load_dwordx4 v2, s[12:15], s30 offen{SCL} lds
        buffer_load_dwordx4 v2, s[12:15], s30 offen offset:1024{SCL} lds
        buffer_load_dwordx4 v2, s[12:15], s30 offen offset:2048{SCL} lds
        buffer_load_dwordx4 v2, s[12:15], s30 offen offset:3072{SCL} lds
        s_add_u32 m0, m0, 4096
        s_add_u32 s30, s30, {CH}
        buffer_load_dwordx4 v2, s[12:15], s31 offen{SCL} lds
        buffer_load_dwordx4 v2, s[12:15], s31 offen offset:1024{SCL} lds
        s_add_u32 s31, s31, {CH}
        s_cmp_ge_u32 s25, {3*CH}
        s_cselect_b32 s25, 0, s25
        """)
    def common():
        a(f"""
        v_mov_b32 v5, 0
        v_lshlrev_b32 v2, 4, v1
        v_lshlrev_b32 v3, 7, v1
        s_lshl_b32 s33, s20, 5
        s_add_u32 s33, s33, s21
        s_lshl_b32 s34, s33, 7
        s_add_u32 s34, s34, {WS_F}
        s_lshl_b32 s35, s20, 12
        s_add_u32 s35, s35, {WS_F}
        s_mul_i32 s24, s63, 6144
        s_add_u32 s30, s24, {WS_KV}
        s_add_u32 s31, s30, 4096
        s_add_u32 s24, s24, {KVR}
        s_mov_b32 s25, {CH}
        """)
    def first_kv():
        a(f"""
        s_mov_b32 m0, {KMX}
        s_mov_b32 s52, {WS_KV+1024+63*8+4}
        v_mul_u32_u24 v6, 3072, v1
        buffer_load_dword v6, s[8:11], s52 offen{SCL} lds
        """)
        kv(); kv()
    a.c("s34 = own flag line, s35 = flag lines of this row group; s30/s31 kv source, s24 + s25 kv destination")
    a(f"""
    s_branch {L}_ld_tail
    {L}_ld_tailf:
    s_mov_b64 exec, 0xffff
    v_cmp_ne_u64 vcc, v[24:25], v[20:21]
    v_cmp_eq_u32 s[52:53], 0, v20
    s_mov_b64 exec, -1
    s_or_b64 s[52:53], s[52:53], vcc
    s_cmp_lg_u64 s[52:53], 0
    s_cbranch_scc1 {L}_ld_tail
    """)
    common()
    stamp(a, 1); stamp(a, 2)
    first_kv()
    a(f"""
    s_waitcnt vmcnt(13)
    s_barrier
    s_barrier
    s_branch {L}_l_kvok
    {L}_ld_tail:
    s_waitcnt vmcnt(0)
    s_barrier
    global_load_dwordx2 v[20:21], v16, s[72:73] sc0 sc1
    s_barrier
    """)
    common()
    a(f"""
    s_mov_b32 s70, {SPIN}
    s_branch {L}_l_non2
    {L}_l_non:
    global_load_dwordx2 v[20:21], v16, s[72:73] sc0 sc1
    {L}_l_non2:
    s_sub_u32 s70, s70, 1
    s_cbranch_scc1 {L}_l_non3
    s_waitcnt vmcnt(0)
    v_cmp_ne_u32 vcc, 0, v20
    s_cmp_eq_u64 vcc, 0
    s_cbranch_scc1 {L}_l_non
    {L}_l_non3:
    s_sub_u32 s53, s21, 27
    s_cmp_ge_u32 s53, 2
    s_cbranch_scc1 {L}_l_nokv
    s_barrier
    s_cmp_lg_u32 s63, 0
    s_cbranch_scc1 {L}_l_nokv
    s_lshl_b32 s52, s20, 1
    s_add_u32 s52, s52, s53
    s_lshl_b32 s52, s52, 7
    s_add_u32 s52, s52, {WS_F+FQ}
    """)
    flag(a, "s52")
    a(f"""
    {L}_l_nokv:
    s_cmp_lt_u32 s21, 27
    s_cbranch_scc1 {L}_l_now
    s_cmp_eq_u32 s63, 0
    s_cbranch_scc1 {L}_l_now
    s_load_dwordx2 s[16:17], s[0:1], 64
    s_mul_i32 s52, s20, 5
    s_add_u32 s52, s52, s53
    s_mul_i32 s52, s52, {7*8192}
    s_waitcnt lgkmcnt(0)
    s_mov_b32 s56, s16
    s_and_b32 s57, s17, 0xffff
    s_mov_b32 s58, 2211840
    s_mov_b32 s59, 0x20000
    s_mov_b32 s54, 7
    {L}_l_warm:
    buffer_load_dword v31, v3, s[56:59], s52 offen
    s_add_u32 s52, s52, 8192
    s_sub_u32 s54, s54, 1
    s_cmp_lg_u32 s54, 0
    s_cbranch_scc1 {L}_l_warm
    {L}_l_now:
    s_mov_b64 exec, 0xffff
    """)
    stamp(a, 1)
    poll(a, L, "v3", "s69")
    a("s_mov_b64 exec, -1")
    stamp(a, 2)
    first_kv()
    a(f"{L}_l_kvok:")
    a("s_setprio 0")
    a(f"""
    s_lshr_b32 s38, s21, 2
    s_mul_i32 s38, s38, 160
    s_movk_i32 s39, 5462
    s_movk_i32 s40, 1280
    """)
    for i in range(3):
        a(f"""
        v_add_u32 v6, {64*i}, v1
        v_mul_u32_u24 v7, s39, v6
        v_lshrrev_b32 v7, 16, v7
        v_mul_u32_u24 v8, 12, v7
        v_sub_u32 v8, v6, v8
        v_mul_u32_u24 v7, s40, v7
        v_lshl_add_u32 v7, v8, 4, v7
        v_add_u32 v7, s38, v7
        v_subrev_u32 v{10+i}, {1024*i}, v7
        """)
    srd(a, 40, 74, 75, 819200)
    a(f"""
    s_mul_i32 s44, s63, {20*20480}
    s_mul_i32 s45, s63, {20*3072}
    s_waitcnt vmcnt(6)
    """)
    stamp(a, 3)
    a("s_barrier")
    def bar_kv():
        a("s_waitcnt vmcnt(0)")
        a("s_barrier")
        kv()
    bar_kv()
    a(f"""
    s_cmp_eq_u32 s63, 1
    s_cbranch_scc1 {L}_gate
    s_lshl_b32 s52, s2, 6
    v_add_u32 v6, s52, v1
    v_lshlrev_b32 v6, 7, v6
    buffer_load_dword v30, v6, s[40:43], 0 offen
    v_mov_b32 v6, {NONCE}
    ds_write_b64 v6, v[20:21]
    v_mov_b32 v8, 0
    v_mov_b32 v9, 0
    ds_write_b64 v6, v[8:9] offset:8
    ds_write_b64 v6, v[8:9] offset:16
    ds_write_b64 v6, v[8:9] offset:24
    s_waitcnt vmcnt(1) lgkmcnt(0)
    s_barrier
    """)
    a.c("B1 passed: every wave has drained its h stores")
    flag(a, "s34")
    kv()
    a(f"""
    s_waitcnt vmcnt(0)
    s_branch {L}_gate_done
    {L}_gate:
    s_load_dwordx2 s[16:17], s[0:1], 72
    s_load_dwordx2 s[4:5], s[0:1], 0
    v_and_b32 v16, 7, v1
    v_lshlrev_b32 v16, 4, v16
    v_lshrrev_b32 v17, 3, v1
    s_lshl_b32 s53, s33, 3
    v_add_u32 v18, s53, v17
    s_movk_i32 s54, 1280
    v_mul_lo_u32 v17, v18, s54
    v_add_u32 v17, v17, v16
    s_waitcnt lgkmcnt(0)
    """)
    srd(a, 56, 4, 5, 2621440)
    srd(a, 68, 16, 17, 1280)
    for j in range(10):
        a(f"buffer_load_dwordx4 {vr(72+4*j,4)}, v17, s[56:59], 0 offen offset:{128*j}")
    for j in range(10):
        a(f"buffer_load_dwordx4 {vr(32+4*j,4)}, v16, s[68:71], 0 offen offset:{128*j}")
    a(f"""
    v_lshrrev_b32 v19, 3, v1
    v_lshlrev_b32 v19, 2, v19
    v_mov_b32 v27, {f32(-LOG2E)}
    v_mov_b32 v26, 0
    v_mov_b32 v28, 0
    s_waitcnt vmcnt(20)
    s_barrier
    """)
    kv()
    a("s_waitcnt vmcnt(6)")
    for i in range(0, 40, 2):
        a(f"v_dot2_f32_bf16 v26, v{72+i}, v{32+i}, v26")
        a(f"v_dot2_f32_bf16 v28, v{73+i}, v{33+i}, v28")
    a(f"""
    s_nop 3
    v_add_f32 v26, v26, v28
    s_nop 1
    v_add_f32_dpp v26, v26, v26 quad_perm:[1,0,3,2] row_mask:0xf bank_mask:0xf
    s_nop 1
    v_add_f32_dpp v26, v26, v26 quad_perm:[2,3,0,1] row_mask:0xf bank_mask:0xf
    s_nop 1
    v_add_f32_dpp v26, v26, v26 row_half_mirror row_mask:0xf bank_mask:0xf
    v_cvt_pk_bf16_f32 v26, v26, v26
    v_lshlrev_b32 v26, 16, v26
    v_mul_f32 v26, v27, v26
    v_exp_f32 v26, v26
    s_nop 0
    v_add_f32 v26, 1.0, v26
    v_rcp_f32 v26, v26
    s_nop 0
    v_cvt_pk_bf16_f32 v26, v26, v26
    v_lshlrev_b32 v28, 16, v26
    s_lshl_b32 s53, s33, 7
    s_add_u32 s53, s53, {WS_G}
    v_cmp_eq_u32 vcc, 0, v16
    s_nop 1
    s_mov_b64 exec, vcc
    buffer_store_dword v28, v19, s[8:11], s53 offen sc1
    s_mov_b64 exec, -1
    s_waitcnt vmcnt(1)
    {L}_gate_done:
    s_barrier
    """)
    kv()
    a(f"""
    s_cmp_eq_u32 s63, 1
    s_cbranch_scc1 {L}_l_np
    """)
    a("s_mov_b64 exec, 0x7ffffff")
    poll(a, L, "v3", "s35")
    a(f"""
    s_mov_b64 exec, -1
    {L}_l_np:
    s_mov_b32 s46, 3
    {L}_lloop:
    """)
    bar_kv()
    a(f"""
    s_add_u32 s46, s46, 1
    s_cmp_lt_u32 s46, 14
    s_cbranch_scc1 {L}_lloop
    s_setprio 0
    s_add_u32 s34, s34, {F2}
    s_add_u32 s35, s35, {F2}
    """)
    a.c("barrier 13 passed: G waves are done with their ring")
    def wo(n, tag):
        a(f"""
        s_mov_b32 s47, {n}
        {L}_wo{tag}:
        s_mov_b32 m0, s45
        s_add_u32 s45, s45, 3072
        buffer_load_dwordx4 v10, s[40:43], s44 offen lds
        buffer_load_dwordx4 v11, s[40:43], s44 offen offset:1024 lds
        buffer_load_dwordx4 v12, s[40:43], s44 offen offset:2048 lds
        s_add_u32 s44, s44, 20480
        s_sub_u32 s47, s47, 1
        s_cmp_lg_u32 s47, 0
        s_cbranch_scc1 {L}_wo{tag}
        """)
    wo(8, "a")
    a("s_waitcnt vmcnt(24)")
    a("s_barrier")
    a(f"s_cmp_lg_u32 s63, 0\ns_cbranch_scc1 {L}_l_nf2")
    flag(a, "s34")
    a(f"{L}_l_nf2:")
    wo(8, "b")
    a("s_barrier")
    wo(4, "c")
    a(f"s_cmp_eq_u32 s63, 0\ns_cbranch_scc1 {L}_l_np2")
    a("s_mov_b32 exec_hi, 0")
    poll(a, L, "v3", "s35")
    a(f"{L}_l_np2:")
    a(f"""
    s_mov_b64 exec, 1
    v_mov_b32 v22, {NONCE}
    v_mov_b32 v9, 1
    s_waitcnt vmcnt(0)
    ds_add_u32 v22, v9 offset:12
    s_mov_b64 exec, -1
    s_and_b32 s52, s21, 3
    s_lshl_b32 s52, s52, 9
    s_add_u32 s35, s35, s52
    s_add_u32 s35, s35, {F3-F2}
    s_branch {L}_p3
    """)

    a(f"""
    {L}_comp:
    s_and_b32 s63, s22, 3
    s_lshr_b32 s64, s22, 2
    v_and_b32 v13, 31, v1
    v_lshrrev_b32 v14, 5, v1
    v_bfe_u32 v15, v1, 1, 3
    v_xor_b32 v2, v14, v15
    v_lshlrev_b32 v2, 4, v2
    v_lshl_add_u32 v2, v13, 7, v2
    s_lshl_b32 s52, s63, 13
    s_lshl_b32 s53, s64, 12
    s_add_u32 s52, s52, s53
    v_add_u32 v2, s52, v2
    v_xor_b32 v3, 32, v2
    v_xor_b32 v4, 64, v2
    v_xor_b32 v5, 96, v2
    v_bfe_u32 v15, v1, 2, 2
    v_lshlrev_b32 v7, 3, v14
    v_add_u32 v7, v7, v15
    v_mul_u32_u24 v9, 40, v7
    v_lshlrev_b32 v8, 6, v7
    v_lshlrev_b32 v7, 7, v7
    v_lshrrev_b32 v16, 1, v15
    v_xor_b32 v16, s64, v16
    v_lshl_add_u32 v7, v16, 6, v7
    v_bfe_u32 v16, v1, 4, 1
    v_and_b32 v17, 3, v1
    v_lshlrev_b32 v16, 5, v16
    v_lshl_add_u32 v16, v17, 3, v16
    v_add_u32 v7, v7, v16
    v_add_u32 v9, v9, v16
    v_cmp_eq_u32 vcc, 40, v16
    s_nop 1
    v_cndmask_b32 v16, v16, 48, vcc
    v_add_u32 v8, v8, v16
    v_add_u32 v7, {WB}, v7
    v_add_u32 v8, {WB+8192}, v8
    v_add_u32 v9, {WB}, v9
    s_mov_b32 s44, 0
    s_mov_b32 s45, 0
    s_mov_b32 s46, 0
    """)
    a.c("v2..v5 x frag addr (row block 2rp+cp) for the 4 k steps of a pair; v7 W, v8 wq slice, v9 wk/wv slice addr; s63=rp s64=cp")
    for r in range(64, 144, 2):
        a(f"v_mov_b64 v[{r}:{r+1}], 0")
    a("s_waitcnt lgkmcnt(0)")
    srd(a, 8, 18, 19, WS_SIZE)
    a(f"""
    s_or_b32 s52, s22, s2
    s_cmp_lg_u32 s52, 0
    s_cbranch_scc1 {L}_nonon
    s_load_dwordx2 s[52:53], s[0:1], 88
    s_memrealtime s[54:55]
    v_mov_b32 v148, 0
    s_waitcnt lgkmcnt(0)
    s_or_b32 s54, s54, 1
    v_mov_b32 v144, s54
    v_mov_b32 v145, s55
    s_mov_b64 exec, 1
    global_store_dwordx2 v148, v[144:145], s[52:53] sc0 sc1
    s_mov_b64 exec, -1
    {L}_nonon:
    s_lshr_b32 s52, s21, 4
    s_xor_b32 s53, s22, 1
    s_or_b32 s52, s52, s53
    s_cmp_lg_u32 s52, 0
    s_cbranch_scc1 {L}_noin
    s_lshl_b32 s52, s20, 5
    s_add_u32 s52, s52, s21
    s_lshl_b32 s52, s52, 7
    s_add_u32 s52, s52, {WS_F+F3}
    s_mov_b64 exec, 1
    buffer_store_dword v64, v64, s[8:11], s52 offen sc1
    s_mov_b64 exec, -1
    {L}_noin:
    """)
    if E("CPF", "0") == "1":
        a(f"""
        s_lshr_b32 s52, s2, {3 + int(E("CPFS", "0"))}
        s_xor_b32 s53, s22, 2
        s_or_b32 s52, s52, s53
        s_cmp_lg_u32 s52, 0
        s_cbranch_scc1 {L}_nocpf
        s_getpc_b64 s[52:53]
        {L}_pc:
        s_sub_u32 s52, s52, {L}_pc-{L}
        s_subb_u32 s53, s53, 0
        v_lshlrev_b32 v144, 7, v1
        global_load_dword v145, v144, s[52:53]
        v_add_u32 v144, 8192, v144
        v_cmp_gt_u32 vcc, {L}_end-{L}, v144
        s_nop 1
        s_mov_b64 exec, vcc
        global_load_dword v145, v144, s[52:53]
        s_mov_b64 exec, -1
        {L}_nocpf:
        """)
    a(f"""
    s_cmp_eq_u32 s21, 27
    s_cbranch_scc1 {L}_modeK
    s_cmp_eq_u32 s21, 28
    s_cbranch_scc1 {L}_modeV
    s_cmp_gt_u32 s21, 28
    s_cbranch_scc1 {L}_modeQ
    """)
    XA = [16, 36]
    XC = [56, 57, 58, 59]
    XD = [60, 61, 62, 63]
    def xaddrs(full):
        l = [f"v_add_u32 v{XC[j]}, s45, v{2+j}" for j in range(4)]
        if full: l += [f"v_xor_b32 v{XD[j]}, 4096, v{XC[j]}" for j in range(4)]
        return l + [f"s_add_u32 s45, s45, {XSL}", f"s_cmp_ge_u32 s45, {WB}", "s_cselect_b32 s45, 0, s45"]
    def waddrs(mode):
        l = ["v_add_u32 v12, s44, v8"]
        if mode == 0: l.append("v_add_u32 v11, s44, v7")
        if mode in (1, 2): l.append("v_add_u32 v11, s44, v9")
        return l + [f"s_add_u32 s44, s44, {WSL}", f"s_cmp_ge_u32 s44, {4*WSL}", "s_cselect_b32 s44, 0, s44"]
    def read_list(j, mode):
        ks = j & 1
        b = XA[ks]
        l = [f"ds_read_b128 {vr(b,4)}, v{XC[j]}"]
        if mode == 0:
            l += [f"ds_read_b64_tr_b16 {vr(b+8,2)}, v11 offset:{ks*2048}",
                  f"ds_read_b64_tr_b16 {vr(b+10,2)}, v11 offset:{ks*2048+512}",
                  f"ds_read_b64_tr_b16 {vr(b+12,2)}, v11 offset:{4096+ks*2048}",
                  f"ds_read_b64_tr_b16 {vr(b+14,2)}, v11 offset:{4096+ks*2048+512}",
                  f"ds_read_b128 {vr(b+4,4)}, v{XD[j]}"]
        if mode in (1, 2):
            l += [f"ds_read_b64_tr_b16 {vr(b+8,2)}, v11 offset:{ks*640}",
                  f"ds_read_b64_tr_b16 {vr(b+10,2)}, v11 offset:{ks*640+160}"]
        l += [f"ds_read_b64_tr_b16 {vr(b+16,2)}, v12 offset:{ks*1024}",
              f"ds_read_b64_tr_b16 {vr(b+18,2)}, v12 offset:{ks*1024+256}"]
        return l
    def mfma_list(ks, mode):
        b = XA[ks]
        x0, x1, wg, wu, ws = vr(b,4), vr(b+4,4), vr(b+8,4), vr(b+12,4), vr(b+16,4)
        l = []
        if mode == 0:
            l = [f"{M} v[64:79], {wg}, {x0}, v[64:79]", f"{M} v[80:95], {wu}, {x0}, v[80:95]",
                 f"{M} v[96:111], {wg}, {x1}, v[96:111]", f"{M} v[112:127], {wu}, {x1}, v[112:127]"]
        if mode == 1: l = [f"{M} v[64:79], {wg}, {x0}, v[64:79]"]
        if mode == 2: l = [f"{M} v[64:79], {x0}, {wg}, v[64:79]"]
        l = l + [f"{M} v[128:143], {ws}, {x0}, v[128:143]"]
        if E("HACK16", "0") == "1" and mode == 0:
            import re
            l2 = []
            for m in l:
                b0 = int(re.search(r"v\[(\d+):", m).group(1)); ops = m.split(", ")
                t = f"v_mfma_f32_16x16x32_bf16 {{d}}, {ops[1]}, {ops[2]}, {{d}}"
                l2.append(t.format(d=vr(b0+8*ks,4)) + "\n" + t.format(d=vr(b0+8*ks+4,4)))
            l = l2
        return l
    def half(ml, rl, post):
        n = len(ml)
        if n == 5 and E("P1V", "1") == "1":
            a("s_waitcnt lgkmcnt(2)")
            if E("P1PRIO"): a("s_setprio 1")
            if E("P1ORD"): ml = [ml[0], ml[1], ml[3], ml[2], ml[4]]
            cuts = [int(x) for x in E("P1CUT", "3,6,8,8").split(",")]
            lo = 0
            for i, m in enumerate(ml):
                if i == 4: a("s_waitcnt lgkmcnt(8)")
                a(m)
                if i < 4:
                    for x in rl[lo:cuts[i]]: a(x)
                    lo = cuts[i]
                if i == 3:
                    for x in post: a(x)
            if E("P1PRIO"): a("s_setprio 0")
            return
        a("s_waitcnt lgkmcnt(0)")
        per = -(-len(rl) // max(n - 1, 1))
        for i, m in enumerate(ml):
            a(m)
            if n == 1:
                for x in rl + post: a(x)
                continue
            for x in rl[per*i:per*i+per]: a(x)
            if i == n - 2:
                for x in post: a(x)
    for mode, tag in ((0, "full"), (1, "modeK"), (2, "modeV"), (3, "modeQ")):
        a(f"{L}_{tag}:")
        for x in xaddrs(mode == 0) + waddrs(mode): a(x)
        a("s_barrier")
        for x in read_list(0, mode): a(x)
        stamp(a, 1)
        if mode == 0: a(".p2align 6")
        a(f"{L}_{tag}_loop:")
        half(mfma_list(0, mode), read_list(1, mode), waddrs(mode))
        a("s_barrier")
        half(mfma_list(1, mode), read_list(2, mode), [])
        half(mfma_list(0, mode), read_list(3, mode), waddrs(mode) + xaddrs(mode == 0))
        a("s_barrier")
        half(mfma_list(1, mode), read_list(0, mode), ["s_add_u32 s46, s46, 1", "s_cmp_lt_u32 s46, 10"])
        a(f"s_cbranch_scc1 {L}_{tag}_loop")
        stamp(a, 2)
        a(f"""
        s_lshl_b32 s52, s20, 3
        s_lshl_b32 s53, s63, 1
        s_add_u32 s52, s52, s53
        s_add_u32 s52, s52, s64
        v_lshlrev_b32 v2, 4, v1
        """)
        a(f"s_branch {L}_epi{mode}")
    a.c("s52 = global row block of acc set 0 and of the q chain (set 1 is s52 ^ 1)")
    EK = 64
    a(f"""
    {L}_epi1:
    s_mul_i32 s53, s52, 3072
    s_add_u32 s53, s53, {WS_KV}
    s_nop 7
    s_waitcnt lgkmcnt(0)
    """)
    for i in range(4): a(f"v_cvt_pk_bf16_f32 v{20+i}, v{EK+2*i}, v{EK+2*i+1}")
    a(f"buffer_store_dwordx4 v[20:23], v2, s[8:11], s53 offen{SC}")
    a(f"v_cvt_pk_bf16_f32 v24, v{EK+8}, v{EK+9}")
    a(f"v_cvt_pk_bf16_f32 v25, v{EK+10}, v{EK+11}")
    a("v_mov_b32 v26, 0x3f803f80")
    a("v_mov_b32 v27, 0x00003f80")
    a(f"v_mul_f32 v30, v{EK}, v{EK}")
    for i in range(1, 8): a(f"v_fmac_f32 v30, v{EK+i}, v{EK+i}")
    a(f"v_mul_f32 v31, v{EK+8}, v{EK+8}")
    for i in range(9, 12): a(f"v_fmac_f32 v31, v{EK+i}, v{EK+i}")
    a(f"""
    v_cmp_gt_u32 vcc, 32, v1
    s_nop 1
    v_cndmask_b32 v31, 0, v31, vcc
    v_add_f32 v30, v30, v31
    v_mov_b32 v31, v30
    s_nop 1
    v_permlane32_swap_b32 v30, v31
    s_nop 1
    v_add_f32 v30, v30, v31
    """)
    for sh in (1, 2, 4, 8):
        a("s_nop 1")
        a(f"v_max_f32_dpp v30, v30, v30 row_shr:{sh} row_mask:0xf bank_mask:0xf")
    a(f"""
    s_nop 1
    v_max_f32_dpp v30, v30, v30 row_bcast:15 row_mask:0xa bank_mask:0xf
    v_cmp_eq_u32 vcc, 63, v1
    v_and_b32 v30, 0xffff0000, v30
    v_or_b32 v30, 0x3f80, v30
    v_cndmask_b32 v27, v27, v30, vcc
    v_cmp_gt_u32 vcc, 32, v1
    v_lshlrev_b32 v16, 3, v1
    s_nop 0
    v_cndmask_b32 v24, v26, v24, vcc
    v_cndmask_b32 v25, v27, v25, vcc
    buffer_store_dwordx2 v[24:25], v16, s[8:11], s53 offen offset:1024{SC}
    s_branch {L}_kvdone
    {L}_epi2:
    s_mul_i32 s53, s52, 3072
    s_add_u32 s53, s53, {WS_KV+1536}
    v_and_b32 v17, 31, v1
    v_lshrrev_b32 v18, 5, v1
    v_mul_u32_u24 v18, 384, v18
    v_lshl_add_u32 v16, v17, 4, v18
    v_mov_b32 v19, 0x3f803f80
    v_cmp_eq_u32 vcc, 20, v17
    v_cmp_lt_u32 s[54:55], 19, v17
    s_nop 3
    v_cndmask_b32 v19, 0, v19, vcc
    s_waitcnt lgkmcnt(0)
    """)
    for i in range(8): a(f"v_cvt_pk_bf16_f32 v{20+i}, v{EK+2*i}, v{EK+2*i+1}")
    for i in range(8): a(f"v_cndmask_b32 v{20+i}, v{20+i}, v19, s[54:55]")
    a(f"""
    v_cmp_gt_u32 vcc, 24, v17
    s_nop 1
    s_and_b64 exec, exec, vcc
    buffer_store_dwordx4 v[20:23], v16, s[8:11], s53 offen{SC}
    buffer_store_dwordx4 v[24:27], v16, s[8:11], s53 offen offset:768{SC}
    {L}_kvdone:
    s_mov_b64 exec, -1
    s_waitcnt vmcnt(0)
    s_barrier
    s_branch {L}_epi3
    """)
    C0 = -2.0 * 0.7978845608028654 * LOG2E
    C1 = C0 * 0.044715
    a(f"""
    {L}_epi0:
    v_mov_b32 v16, {f32(C0)}
    v_mov_b32 v17, {f32(C0)}
    v_mov_b32 v18, {f32(C1)}
    v_mov_b32 v19, {f32(C1)}
    v_mov_b32 v44, 1.0
    v_mov_b32 v45, 1.0
    s_lshl_b32 s54, s21, 12
    s_lshl_b32 s55, s64, 11
    s_add_u32 s54, s54, s55
    s_add_u32 s54, s54, {WS_H}
    s_mul_i32 s53, s52, {108*1024}
    s_add_u32 s53, s53, s54
    s_xor_b32 s55, s52, 1
    s_mul_i32 s55, s55, {108*1024}
    s_add_u32 s54, s54, s55
    s_waitcnt lgkmcnt(0)
    """)
    for j in range(2):
        G, U = 64 + 32*j, 80 + 32*j
        for hf in range(2):
            T = 20
            p2 = lambda r: f"v[{r}:{r+1}]"
            rs = list(range(8*hf, 8*hf+8, 2))
            for i, r in enumerate(rs): a(f"v_pk_mul_f32 {p2(T+2*i)}, {p2(G+r)}, {p2(G+r)}")
            for i, r in enumerate(rs): a(f"v_pk_fma_f32 {p2(T+2*i)}, {p2(T+2*i)}, v[18:19], v[16:17]")
            for i, r in enumerate(rs): a(f"v_pk_mul_f32 {p2(T+2*i)}, {p2(G+r)}, {p2(T+2*i)}")
            for i in range(8): a(f"v_exp_f32 v{T+i}, v{T+i}")
            for i, r in enumerate(rs): a(f"v_pk_mul_f32 {p2(U+r)}, {p2(G+r)}, {p2(U+r)}")
            for i, r in enumerate(rs): a(f"v_pk_add_f32 {p2(T+2*i)}, {p2(T+2*i)}, v[44:45]")
            for i in range(8): a(f"v_rcp_f32 v{T+i}, v{T+i}")
            a("s_nop 0")
            for i, r in enumerate(rs): a(f"v_pk_mul_f32 {p2(T+2*i)}, {p2(U+r)}, {p2(T+2*i)}")
            O = 28 + 4*(2*j+hf)
            for i in range(4): a(f"v_cvt_pk_bf16_f32 v{O+i}, v{T+2*i}, v{T+2*i+1}")
            a(f"buffer_store_dwordx4 {vr(O,4)}, v2, s[8:11], s{53+j} offen offset:{1024*hf}{SC}")
    a(f"""
    {L}_epi3:
    """)
    if E("ES"): stamp(a, 6)
    a(f"""
    s_nop 7
    v_mov_b32 v144, {f32(QSCALE)}
    v_mov_b32 v145, {f32(QSCALE)}
    s_waitcnt lgkmcnt(0)
    """)
    for i in range(0, 12, 2): a(f"v_pk_mul_f32 v[{128+i}:{129+i}], v[144:145], v[{128+i}:{129+i}]")
    for i in range(6): a(f"v_cvt_pk_bf16_f32 v{QA1+i}, v{128+2*i}, v{129+2*i}")
    a(f"""
    s_mul_i32 s52, s63, 1536
    s_add_u32 s52, s52, {QST}
    v_add_u32 v144, s52, v2
    v_lshl_add_u32 v145, v1, 3, s52
    s_cmp_ge_u32 s22, 4
    s_cbranch_scc1 {L}_gwave
    """)
    a(f"""
    s_setprio {E("APRIO", "1")}
    v_and_b32 v9, 31, v1
    v_lshrrev_b32 v10, 5, v1
    v_add_u32 v3, {KVR}, v2
    v_lshlrev_b32 v4, 3, v1
    v_add_u32 v4, {KVR+1024}, v4
    v_min_u32 v5, 23, v9
    v_mul_u32_u24 v11, 384, v10
    v_lshl_add_u32 v5, v5, 4, v11
    v_add_u32 v5, {KVR+1536}, v5
    v_lshlrev_b32 v146, 2, v1
    v_add_u32 v146, {KMX}, v146
    s_mov_b32 s27, 0
    s_mov_b32 s30, 0
    v_cmp_gt_u32 s[28:29], 32, v1
    v_lshlrev_b32 v60, 3, v9
    v_lshl_add_u32 v60, v10, 8, v60
    s_lshl_b32 s33, s20, 3
    s_lshl_b32 s52, s22, 1
    s_add_u32 s33, s33, s52
    s_mul_i32 s33, s33, 40960
    s_mul_i32 s52, s21, 1280
    s_add_u32 s33, s33, s52
    s_add_u32 s33, s33, {WS_O}
    s_add_u32 s31, s33, 40960
    """)
    a.c("v60 = o store offset, s33/s31 = o image base of block a / b")
    for r in list(range(OA, OA+32, 2)) + list(range(PB, PB+8, 2)) + list(range(KVB[1]+8, KVB[1]+16, 2)):
        a(f"v_mov_b64 v[{r}:{r+1}], 0")
    def qnorm(q1, q2, t, extra=()):
        ex = list(extra) + [""] * 2
        a(f"""
        v_cndmask_b32 v{q2}, 0, v{q2}, s[28:29]
        v_cndmask_b32 v{q2+1}, 0, v{q2+1}, s[28:29]
        v_mov_b32 v{t}, 0
        {ex[0]}
        v_dot2_f32_bf16 v{t}, v{q1}, v{q1}, v{t}
        v_dot2_f32_bf16 v{t}, v{q1+1}, v{q1+1}, v{t}
        v_dot2_f32_bf16 v{t}, v{q1+2}, v{q1+2}, v{t}
        {ex[1]}
        v_dot2_f32_bf16 v{t}, v{q1+3}, v{q1+3}, v{t}
        v_dot2_f32_bf16 v{t}, v{q2}, v{q2}, v{t}
        v_dot2_f32_bf16 v{t}, v{q2+1}, v{q2+1}, v{t}
        """)
    qnorm(QA1, QA2, 147)
    if E("ES"): stamp(a, 3)
    a(f"""
    s_barrier
    ds_read_b32 v146, v146
    ds_read_b128 {vr(QB1,4)}, v144
    ds_read_b64 {vr(QB2,2)}, v145 offset:1024
    ds_read_b128 {vr(KVB[0],4)}, v3 offset:{CH}
    ds_read_b64 {vr(KVB[0]+4,2)}, v4 offset:{CH}
    ds_read_b128 {vr(KVB[1],4)}, v3 offset:{CH+3072}
    ds_read_b64 {vr(KVB[1]+4,2)}, v4 offset:{CH+3072}
    ds_read_b128 {vr(KVB[0]+8,4)}, v5 offset:{CH}
    ds_read_b128 {vr(KVB[0]+12,4)}, v5 offset:{CH+768}
    """)
    stamp(a, 4)
    dm = lambda k: f"v_max_f32_dpp v146, v146, v146 {k} bank_mask:0xf"
    a(f"""
    v_mov_b32 v149, v147
    s_waitcnt lgkmcnt(6)
    v_and_b32 v146, 0xffff0000, v146
    v_permlane32_swap_b32 v147, v149
    s_nop 0
    {dm("row_shr:1 row_mask:0xf")}
    v_add_f32 v147, v147, v149
    s_nop 0
    {dm("row_shr:2 row_mask:0xf")}
    """)
    qnorm(QB1, QB2, 148, [dm("row_shr:4 row_mask:0xf"), dm("row_shr:8 row_mask:0xf")])
    a(f"""
    {dm("row_bcast:15 row_mask:0xa")}
    s_nop 1
    v_mov_b32 v150, v148
    {dm("row_bcast:31 row_mask:0xc")}
    s_nop 0
    v_permlane32_swap_b32 v148, v150
    v_readlane_b32 s26, v146, 63
    s_nop 0
    v_add_f32 v148, v148, v150
    v_mul_f32 v147, s26, v147
    v_mul_f32 v148, s26, v148
    v_sqrt_f32 v147, v147
    v_sqrt_f32 v148, v148
    v_mul_f32 v147, {f32(1.02)}, v147
    v_mul_f32 v148, {f32(1.02)}, v148
    """)
    def set_shift(ma, mb):
        for m, q2 in ((ma, QA2), (mb, QB2)):
            split3(a, m, q2+2, q2+3, 149, 150)
            a(f"v_cndmask_b32 v{q2}, v{q2+2}, v{q2}, s[28:29]")
            a(f"v_cndmask_b32 v{q2+1}, v{q2+3}, v{q2+1}, s[28:29]")
    set_shift(147, 148)
    a("s_waitcnt lgkmcnt(0)")
    for x in qk(SA, KVB[0], QA1, QA2): a(x)
    a("s_nop 11")
    a(".p2align 6")
    a(f"{L}_aloop:")
    for c in range(3):
        sl_cur, sl_nxt = ((c + 1) % 3) * CH, ((c + 2) % 3) * CH
        for t in range(4):
            cur, nxt = KVB[t & 1], KVB[(t + 1) & 1]
            aslot(a, SA, PA, qk(SB, cur, QB1, QB2) + pv(OB, nxt, PB))
            pre = ["s_waitcnt lgkmcnt(0)" if (t, c) != (3, 0) else "s_waitcnt vmcnt(0) lgkmcnt(0)"]
            if t == 0 and STAMP: pre.append("s_memtime s[38:39]")
            if t == 0: pre.append("s_barrier")
            if t == 0 and STAMP: pre.append("s_memtime s[36:37]")
            if t == 1 and STAMP: pre += ["s_mov_b32 m0, s27", "s_add_u32 s27, s27, 1", "v_writelane_b32 v61, s36, m0", "v_writelane_b32 v62, s38, m0"]
            ko = ((t + 2) & 3) * 3072 + (sl_cur if t < 2 else sl_nxt)
            vo = ((t + 1) & 3) * 3072 + (sl_cur if t < 3 else sl_nxt)
            rd = [f"ds_read_b128 {vr(cur,4)}, v3 offset:{ko}",
                  f"ds_read_b64 {vr(cur+4,2)}, v4 offset:{ko}",
                  f"ds_read_b128 {vr(nxt+8,4)}, v5 offset:{vo}",
                  f"ds_read_b128 {vr(nxt+12,4)}, v5 offset:{vo+768}"]
            if (t, c) == (3, 0): rd[3] += "\ns_cmp_eq_u32 s30, 5"
            if (t, c) == (3, 2): rd[3] += "\ns_add_u32 s30, s30, 1"
            aslot(a, SB, PB, qk(SA, nxt, QA1, QA2) + pv(OA, cur, PA), pre, rd)
        if c == 0: a(f"s_cbranch_scc1 {L}_adone")
    a(f"""
    s_branch {L}_aloop
    {L}_adone:
    s_nop 1
    """)
    for x in pv(OB, KVB[1], PB): a(x)
    stamp(a, 5)
    a(f"""
    s_mov_b32 s34, 0
    {L}_aepi:
    s_mov_b32 s35, {f32(2.0**-90)}
    s_waitcnt lgkmcnt(0)
    s_nop 11
    v_mov_b32 v144, v{OA+8}
    v_mov_b32 v145, v{OA+8}
    v_mov_b32 v146, v{OB+8}
    v_mov_b32 v147, v{OB+8}
    s_nop 0
    v_permlane32_swap_b32 v144, v145
    v_permlane32_swap_b32 v146, v147
    s_nop 0
    v_cmp_nle_f32 vcc, s35, v145
    v_cmp_nle_f32 s[36:37], s35, v147
    v_rcp_f32 v145, v145
    v_rcp_f32 v147, v147
    s_or_b64 s[36:37], vcc, s[36:37]
    s_cmp_eq_u32 s34, 0
    s_cselect_b64 s[36:37], s[36:37], 0
    s_cmp_lg_u64 s[36:37], 0
    s_cbranch_scc1 {L}_slow
    """)
    for blk, O in enumerate((OA, OB)):
        R = 145 + 2*blk
        for q in range(3):
            for i in range(4): a(f"v_mul_f32 v{O+4*q+i}, v{R}, v{O+4*q+i}")
            D = 64 + 8*blk + 2*q
            a(f"v_cvt_pk_bf16_f32 v{D}, v{O+4*q}, v{O+4*q+1}")
            a(f"v_cvt_pk_bf16_f32 v{D+1}, v{O+4*q+2}, v{O+4*q+3}")
            if q == 2: a("s_mov_b32 exec_hi, 0")
            a(f"buffer_store_dwordx2 {vr(D,2)}, v60, s[8:11], s{33 if blk == 0 else 31} offen offset:{512*q} sc1")
            if q == 2: a("s_mov_b64 exec, -1")
    if STAMP:
        a(f"""
        s_lshl_b32 s36, s2, 2
        s_add_u32 s36, s36, s22
        s_lshl_b32 s36, s36, 9
        s_add_u32 s36, s36, {0x1900000}
        v_lshlrev_b32 v63, 2, v1
        buffer_store_dword v61, v63, s[8:11], s36 offen
        buffer_store_dword v62, v63, s[8:11], s36 offen offset:256
        """)
    a(f"""
    s_setprio 0
    s_lshl_b32 s36, s20, 5
    s_lshl_b32 s37, s22, 2
    s_add_u32 s36, s36, s37
    s_lshr_b32 s37, s21, 3
    s_add_u32 s36, s36, s37
    s_lshl_b32 s36, s36, 7
    s_add_u32 s36, s36, {WS_F+F3}
    v_mov_b32 v9, 1
    v_mov_b32 v5, 0
    s_waitcnt vmcnt(0)
    s_mov_b64 exec, 1
    buffer_atomic_add v9, v5, s[8:11], s36 offen sc1
    s_mov_b64 exec, -1
    """)
    if not E("ES"): stamp(a, 3)
    a(f"""
    s_branch {L}_p3
    """)
    kb = KVB[0]
    a(f"""
    {L}_slow:
    s_mov_b32 s34, 1
    v_cndmask_b32 v{QA2}, 0, v{QA2}, s[28:29]
    v_cndmask_b32 v{QA2+1}, 0, v{QA2+1}, s[28:29]
    v_cndmask_b32 v{QB2}, 0, v{QB2}, s[28:29]
    v_cndmask_b32 v{QB2+1}, 0, v{QB2+1}, s[28:29]
    v_mov_b32 v147, 0xff800000
    v_mov_b32 v148, 0xff800000
    s_mov_b32 s36, {WS_KV - KVR}
    {L}_slow1:
    buffer_load_dwordx4 {vr(kb,4)}, v3, s[8:11], s36 offen sc1
    buffer_load_dwordx2 {vr(kb+4,2)}, v4, s[8:11], s36 offen sc1
    s_add_u32 s36, s36, 3072
    s_waitcnt vmcnt(0)
    """)
    for x in qk(SA, kb, QA1, QA2) + qk(SB, kb, QB1, QB2): a(x)
    a("s_nop 15")
    for i in range(0, 16, 2):
        a(f"v_max3_f32 v147, v{SA+i}, v{SA+i+1}, v147")
        a(f"v_max3_f32 v148, v{SB+i}, v{SB+i+1}, v148")
    a(f"""
    s_cmp_lt_u32 s36, {WS_KV - KVR + 64*3072}
    s_cbranch_scc1 {L}_slow1
    v_mov_b32 v149, v147
    v_mov_b32 v150, v148
    s_nop 1
    v_permlane32_swap_b32 v147, v149
    v_permlane32_swap_b32 v148, v150
    s_nop 1
    v_max_f32 v147, v147, v149
    v_max_f32 v148, v148, v150
    """)
    set_shift(147, 148)
    for r in range(OA, OA+32): a(f"v_mov_b32 v{r}, 0")
    a(f"""
    s_mov_b32 s36, {WS_KV - KVR}
    {L}_slow2:
    buffer_load_dwordx4 {vr(kb,4)}, v3, s[8:11], s36 offen sc1
    buffer_load_dwordx2 {vr(kb+4,2)}, v4, s[8:11], s36 offen sc1
    buffer_load_dwordx4 {vr(kb+8,4)}, v5, s[8:11], s36 offen sc1
    buffer_load_dwordx4 {vr(kb+12,4)}, v5, s[8:11], s36 offen offset:768 sc1
    s_add_u32 s36, s36, 3072
    s_waitcnt vmcnt(0)
    """)
    for x in qk(SA, kb, QA1, QA2) + qk(SB, kb, QB1, QB2): a(x)
    a("s_nop 15")
    for g in exp_groups(SA, PA) + exp_groups(SB, PB):
        for x in g: a(x)
    a("s_nop 1")
    for x in pv(OA, kb, PA) + pv(OB, kb, PB): a(x)
    a(f"""
    s_cmp_lt_u32 s36, {WS_KV - KVR + 64*3072}
    s_cbranch_scc1 {L}_slow2
    s_nop 7
    s_branch {L}_aepi
    """)

    a(f"""
    {L}_gwave:
    ds_write_b128 v144, {vr(QA1,4)}
    ds_write_b64 v145, {vr(QA2,2)} offset:1024
    s_load_dwordx2 s[6:7], s[0:1], 64
    s_and_b32 s16, s22, 3
    s_and_b32 s57, s21, 3
    s_lshl_b32 s57, s57, 3
    s_lshr_b32 s34, s21, 2
    s_add_u32 s57, s57, s34
    s_cmp_ge_u32 s57, 15
    s_cselect_b32 s33, 1, 0
    s_cselect_b32 s34, 15, 0
    s_sub_u32 s34, s57, s34
    s_lshl_b32 s35, s20, 1
    s_add_u32 s33, s33, s35
    s_mul_i32 s35, s34, 13
    s_lshr_b32 s35, s35, 6
    s_mul_i32 s36, s35, 5
    s_sub_u32 s34, s34, s36
    s_waitcnt lgkmcnt(0)
    """)
    if E("ES"): stamp(a, 3)
    a(f"""
    s_barrier
    s_lshl_b32 s36, s33, 2
    s_add_u32 s36, s36, s16
    s_mul_i32 s36, s36, 108
    s_mul_i32 s37, s35, 36
    s_add_u32 s36, s36, s37
    s_lshl_b32 s36, s36, 10
    s_add_u32 s40, s36, {WS_H}
    s_mul_i32 s41, s35, {576*1280}
    s_mul_i32 s36, s16, {16*1280}
    s_add_u32 s41, s41, s36
    s_lshl_b32 s36, s34, 8
    s_add_u32 s41, s41, s36
    v_lshrrev_b32 v3, 4, v1
    v_lshlrev_b32 v4, 2, v3
    v_and_b32 v5, 15, v1
    v_xor_b32 v4, v4, v5
    s_movk_i32 s36, 1280
    v_mul_u32_u24 v3, s36, v3
    v_lshl_add_u32 v3, v4, 4, v3
    v_add_u32 v4, {5120-1024}, v3
    v_add_u32 v5, {2*(5120-1024)}, v3
    v_add_u32 v13, {3*(5120-1024)}, v3
    s_lshl_b32 s42, s16, 12
    s_add_u32 s43, s42, 16384
    s_mov_b32 s45, 0
    s_mov_b32 s30, 0
    s_mov_b32 s46, 0
    s_cmp_lt_u32 s57, 30
    s_cselect_b32 s47, 9, 0
    s_cselect_b32 s50, {WS_SIZE}, 0
    s_cselect_b32 s54, 2211840, 0
    s_mov_b32 s48, s18
    s_and_b32 s49, s19, 0xffff
    s_mov_b32 s51, 0x20000
    s_mov_b32 s55, 0x20000
    s_mov_b32 m0, s43
    s_mov_b32 s52, s6
    s_and_b32 s53, s7, 0xffff
    """)
    a.c("s33 = row group (128 rows), s34 = col group (128 cols), s35 = k split, s47 = stages of this WG")
    def gw():
        a(f"""
        buffer_load_dwordx4 v3, s[52:55], s41 offen lds
        buffer_load_dwordx4 v4, s[52:55], s41 offen offset:1024 lds
        buffer_load_dwordx4 v5, s[52:55], s41 offen offset:2048 lds
        buffer_load_dwordx4 v13, s[52:55], s41 offen offset:3072 lds
        s_add_u32 s41, s41, {64*1280}
        """)
    def gh():
        a(f"""
        buffer_load_dwordx4 v2, s[48:51], s40 offen{SCL} lds
        buffer_load_dwordx4 v2, s[48:51], s40 offen offset:1024{SCL} lds
        buffer_load_dwordx4 v2, s[48:51], s40 offen offset:2048{SCL} lds
        buffer_load_dwordx4 v2, s[48:51], s40 offen offset:3072{SCL} lds
        s_add_u32 s40, s40, 4096
        """)
    gw()
    a(f"""
    s_and_b32 s36, s16, 1
    s_lshr_b32 s37, s16, 1
    s_lshl_b32 s38, s36, 13
    v_add_u32 v6, s38, v2
    v_lshrrev_b32 v8, 5, v1
    v_bfe_u32 v9, v1, 2, 2
    v_lshl_add_u32 v8, v8, 2, v9
    v_lshlrev_b32 v8, 8, v8
    s_lshl_b32 s38, s37, 1
    v_xor_b32 v9, s38, v9
    v_lshl_add_u32 v8, v9, 6, v8
    v_bfe_u32 v9, v1, 4, 1
    v_lshl_add_u32 v8, v9, 5, v8
    v_and_b32 v9, 3, v1
    v_lshl_add_u32 v8, v9, 3, v8
    v_add_u32 v7, 16384, v8
    v_xor_b32 v8, 64, v7
    """)
    for r in range(64, 128, 2): a(f"v_mov_b64 v[{r}:{r+1}], 0")
    a(f"""
    s_mov_b32 m0, s42
    s_barrier
    s_waitcnt vmcnt(0)
    s_barrier
    s_barrier
    s_barrier
    """)
    gh()
    a(f"""
    s_mov_b32 s44, {GSL}
    s_branch {L}_gin
    {L}_gloop:
    s_barrier
    {L}_gin:
    s_add_u32 s46, s46, 1
    s_cmp_ge_u32 s46, s47
    s_cbranch_scc1 {L}_gnod
    s_add_u32 m0, s44, s42
    s_nop 0
    """)
    gh()
    a("s_add_u32 m0, s44, s43")
    a(f"s_add_u32 s44, s44, {GSL}")
    gw()
    a(f"""
    s_cmp_ge_u32 s44, {3*GSL}
    s_cselect_b32 s44, 0, s44
    {L}_gnod:
    s_sub_u32 s36, s30, 1
    s_cmp_ge_u32 s36, s47
    s_cbranch_scc1 {L}_gskip
    v_add_u32 v10, s45, v6
    v_add_u32 v11, s45, v7
    v_add_u32 v12, s45, v8
    s_add_u32 s45, s45, {GSL}
    s_cmp_ge_u32 s45, {3*GSL}
    s_cselect_b32 s45, 0, s45
    """)
    FB = [16, 32]
    def rl(ks):
        b = FB[ks & 1]
        return [f"ds_read_b128 {vr(b,4)}, v10 offset:{ks*1024}",
                f"ds_read_b64_tr_b16 {vr(b+8,2)}, v11 offset:{ks*4096}",
                f"ds_read_b64_tr_b16 {vr(b+10,2)}, v11 offset:{ks*4096+2048}",
                f"ds_read_b64_tr_b16 {vr(b+12,2)}, v12 offset:{ks*4096}",
                f"ds_read_b64_tr_b16 {vr(b+14,2)}, v12 offset:{ks*4096+2048}",
                f"ds_read_b128 {vr(b+4,4)}, v10 offset:{ks*1024+4096}"]
    def ml(ks):
        b = FB[ks & 1]
        x0, x1, w0, w1 = vr(b,4), vr(b+4,4), vr(b+8,4), vr(b+12,4)
        return [f"{M} v[64:79], {w0}, {x0}, v[64:79]", f"{M} v[80:95], {w1}, {x0}, v[80:95]",
                f"{M} v[96:111], {w0}, {x1}, v[96:111]", f"{M} v[112:127], {w1}, {x1}, v[112:127]"]
    for x in rl(0): a(x)
    for ks in range(4):
        a("s_waitcnt lgkmcnt(0)")
        r = rl(ks + 1) if ks < 3 else []
        for i, m in enumerate(ml(ks)):
            a(m)
            for x in r[2*i:2*i+2]: a(x)
    a(f"""
    s_cmp_lg_u32 s30, s47
    s_cbranch_scc1 {L}_gskip
    s_lshl_b32 s36, s35, 6
    s_lshl_b32 s37, s33, 2
    s_add_u32 s36, s36, s37
    s_and_b32 s37, s16, 1
    s_lshl_b32 s37, s37, 1
    s_add_u32 s36, s36, s37
    s_mul_i32 s36, s36, 40
    s_lshl_b32 s37, s34, 3
    s_add_u32 s36, s36, s37
    s_lshr_b32 s37, s16, 1
    s_lshl_b32 s37, s37, 2
    s_add_u32 s36, s36, s37
    s_lshl_b32 s36, s36, 10
    s_add_u32 s36, s36, {WS_B}
    s_add_u32 s37, s36, 40960
    s_nop 7
    """)
    for u in range(4):
        A = 64 + 16*u
        for qp in range(2):
            O = 16 + 4*((2*u+qp) % 8)
            for i in range(4):
                a(f"v_cvt_pk_bf16_f32 v{O+i}, v{A+8*qp+2*i}, v{A+8*qp+2*i+1}")
            a(f"buffer_store_dwordx4 {vr(O,4)}, v2, s[8:11], s{36 + (u>>1)} offen offset:{(u&1)*2048 + qp*1024} sc1")
    a(f"""
    s_branch {L}_gend
    {L}_gskip:
    s_add_u32 s30, s30, 1
    s_cmp_ge_u32 s30, 10
    s_cbranch_scc1 {L}_gend
    s_cmp_lt_u32 s46, s47
    s_cbranch_scc1 {L}_gw8
    s_waitcnt vmcnt(0)
    {L}_gw8:
    s_waitcnt vmcnt(8)
    s_branch {L}_gloop
    {L}_gend:
    s_barrier
    s_waitcnt vmcnt(0)
    s_barrier
    s_barrier
    """)

    a(f"""
    {L}_p3:
    s_load_dwordx2 s[4:5], s[0:1], 80
    s_lshl_b32 s17, s20, 3
    s_and_b32 s16, s21, 3
    s_lshl_b32 s16, s16, 1
    s_add_u32 s17, s17, s16
    s_lshr_b32 s16, s21, 2
    s_and_b32 s36, s22, 1
    s_lshr_b32 s39, s22, 1
    s_add_u32 s36, s17, s36
    s_mul_i32 s36, s36, 40
    s_mul_i32 s37, s39, 10
    s_add_u32 s36, s36, s37
    s_lshl_b32 s36, s36, 10
    s_add_u32 s36, s36, {WS_O}
    s_add_u32 s37, s36, 4096
    s_add_u32 s38, s36, 8192
    v_lshrrev_b32 v8, 5, v1
    v_bfe_u32 v9, v1, 2, 2
    v_lshl_add_u32 v8, v8, 2, v9
    v_mul_u32_u24 v8, 192, v8
    v_bfe_u32 v9, v1, 4, 1
    v_lshl_add_u32 v8, v9, 5, v8
    v_and_b32 v9, 3, v1
    v_lshl_add_u32 v8, v9, 3, v8
    s_lshl_b32 s48, s39, 2
    s_mul_i32 s49, s39, 30720
    v_add_u32 v8, s49, v8
    v_lshlrev_b32 v7, 3, v1
    v_and_b32 v6, 31, v1
    s_lshl_b32 s39, s17, 5
    v_add_u32 v6, s39, v6
    v_lshrrev_b32 v4, 3, v6
    v_lshlrev_b32 v4, 7, v4
    v_and_b32 v9, 7, v1
    v_lshl_add_u32 v4, v9, 2, v4
    s_mov_b32 s40, {WS_G}
    s_mul_i32 s41, s16, 10
    s_add_u32 s41, s41, s22
    s_lshr_b32 s42, s41, 1
    s_lshl_b32 s42, s42, 10
    s_and_b32 s43, s41, 1
    s_lshl_b32 s43, s43, 3
    s_add_u32 s42, s42, s43
    s_mul_i32 s43, s17, 40960
    s_add_u32 s42, s42, s43
    s_add_u32 s42, s42, {WS_B}
    v_mov_b32 v22, {NONCE}
    s_lshr_b32 s46, s22, 1
    s_lshl_b32 s45, 1, s46
    """)
    a.c("s17 = first row block of the tile, s16 = column group; final items: quad = wave, both row blocks")
    def bg():
        a("buffer_load_dword v140, v4, s[8:11], s40 offen sc1")
        a("buffer_load_dword v141, v4, s[8:11], s40 offen offset:512 sc1")
        for j in range(2):
            for sk in range(3):
                a(f"s_add_u32 s43, s42, {j*40960 + sk*64*40960}")
                a(f"buffer_load_dwordx2 {vr(128+6*j+2*sk,2)}, v2, s[8:11], s43 offen sc1")
    a(f"""
    s_movk_i32 s43, 1280
    v_mul_lo_u32 v6, v6, s43
    v_lshrrev_b32 v9, 5, v1
    v_lshl_add_u32 v6, v9, 3, v6
    s_lshl_b32 s41, s41, 4
    s_add_u32 s44, s41, 40960
    s_waitcnt lgkmcnt(0)
    """)
    srd(a, 12, 4, 5, 2621440)
    for r in range(64, 112, 2): a(f"v_mov_b64 v[{r}:{r+1}], 0")
    WF = [112, 144]
    def wr(ks):
        b = WF[ks & 1]
        return [f"ds_read_b64_tr_b16 {vr(b+4*cb+2*t,2)}, v8 offset:{ks*3072 + t*1536 + 64*cb}" for cb in range(3) for t in range(2)]
    a(f"""
    s_mov_b32 s70, {SPIN}
    s_cmp_lg_u32 s22, 8
    s_cbranch_scc1 {L}_p3w1
    s_mov_b64 exec, 0xf
    {L}_p3poll:
    buffer_load_dword v24, v3, s[8:11], s35 offen sc1
    s_sub_u32 s70, s70, 1
    s_cselect_b32 s47, -1, 0
    s_waitcnt vmcnt(0)
    v_cmp_eq_u32 vcc, 8, v24
    s_or_b32 s47, s47, vcc_lo
    s_or_b32 s47, s47, 0xfffffff0
    v_mov_b32 v23, s47
    ds_write_b32 v22, v23 offset:8
    s_sleep {E("PSLEEP", "2")}
    s_cmp_lg_u32 s47, -1
    s_cbranch_scc1 {L}_p3poll
    """)
    stamp(a, 6)
    a(f"""
    s_mov_b64 exec, -1
    {L}_p3w1:
    ds_read_b32 v10, v22 offset:12
    s_waitcnt lgkmcnt(0)
    v_readfirstlane_b32 s46, v10
    s_cmp_eq_u32 s46, 2
    s_cbranch_scc1 {L}_p3rdy
    s_sleep 1
    s_branch {L}_p3w1
    {L}_p3rdy:
    """)
    bg()
    for x in wr(0): a(x)
    a("s_waitcnt vmcnt(0)")
    for j in range(2):
        a(f"""
        v_sub_f32 v142, 1.0, v{140+j}
        v_cvt_pk_bf16_f32 v142, v142, v142
        v_lshlrev_b32 v142, 16, v142
        """)
        B = 128 + 6*j
        for i in range(4):
            ex = (lambda d, r: f"v_lshlrev_b32 v{d}, 16, v{r}") if i % 2 == 0 else (lambda d, r: f"v_and_b32 v{d}, 0xffff0000, v{r}")
            a(f"""
            {ex(12+4*j+i, B + i//2)}
            {ex(143, B + 2 + i//2)}
            v_add_f32 v{12+4*j+i}, v{12+4*j+i}, v143
            {ex(143, B + 4 + i//2)}
            v_add_f32 v{12+4*j+i}, v{12+4*j+i}, v143
            v_mul_f32 v{12+4*j+i}, v142, v{12+4*j+i}
            """)
    a(f"""
    s_cmp_ge_u32 s22, 8
    s_cbranch_scc1 {L}_p3r
    {L}_p3w:
    ds_read_b32 v10, v22 offset:8
    s_waitcnt lgkmcnt(0)
    v_readfirstlane_b32 s47, v10
    s_and_b32 s47, s47, s45
    s_cmp_eq_u32 s47, s45
    s_cbranch_scc1 {L}_p3m
    s_sleep 1
    s_branch {L}_p3w
    {L}_p3m:
    """)
    if not E("ES"): stamp(a, 6)
    OF = 24
    for ks in range(10):
        for sl in range(2):
            a(f"buffer_load_dwordx2 {vr(OF+4*ks+2*sl,2)}, v7, s[8:11], s{36+ks//4} offen offset:{(ks%4)*1024+512*sl}{E('OSC', ' sc1')}")
    for ks in range(10):
        a(f"s_waitcnt vmcnt({18-2*ks}) lgkmcnt(0)")
        r = wr(ks+1) if ks < 9 else []
        b = WF[ks & 1]
        for cb in range(3):
            a(f"{M} {vr(64+16*cb,16)}, {vr(b+4*cb,4)}, {vr(OF+4*ks,4)}, {vr(64+16*cb,16)}")
            for x in r[2*cb:2*cb+2]: a(x)
    a(f"""
    v_add_u32 v23, s48, v22
    v_mov_b32 v9, 1
    s_mov_b64 exec, 1
    ds_add_u32 v23, v9 offset:16
    s_mov_b64 exec, -1
    s_and_b32 s47, s22, 1
    s_mul_i32 s47, s47, 10240
    s_add_u32 s39, s49, s47
    v_add_u32 v5, s39, v2
    {L}_p3pw:
    ds_read_b32 v9, v23 offset:16
    s_waitcnt lgkmcnt(0)
    v_readfirstlane_b32 s47, v9
    s_cmp_lg_u32 s47, 2
    s_cbranch_scc1 {L}_p3pw
    """)
    for q in range(10):
        a(f"ds_write_b128 v5, {vr(64+4*q,4)} offset:{1024*q}")
    a(f"""
    s_waitcnt lgkmcnt(0)
    {L}_p3r:
    """)
    if STAMP:
        a(f"s_cmp_lt_u32 s22, 4\ns_cbranch_scc1 {L}_st4")
        stamp(a, 4)
        a(f"{L}_st4:")
    a(f"""
    s_lshl_b32 s39, s22, 10
    v_add_u32 v5, s39, v2
    v_add_u32 v7, 61440, v5
    s_barrier
    """)
    for j in range(2):
        for kq in range(4):
            a(f"ds_read_b128 {vr(24+16*j+4*kq,4)}, v{5 if kq < 2 else 7} offset:{j*10240 + (kq%2)*30720}")
    for j in range(2):
        P = 24 + 16*j
        a(f"s_waitcnt lgkmcnt({4 - 4*j})")
        for i in range(4):
            a(f"""
            v_add_f32 v{P+i}, v{P+i}, v{P+4+i}
            v_add_f32 v{P+8+i}, v{P+8+i}, v{P+12+i}
            v_add_f32 v{P+i}, v{P+i}, v{P+8+i}
            v_fma_f32 v{P+i}, v{140+j}, v{P+i}, v{12+4*j+i}
            """)
        a(f"""
        v_cvt_pk_bf16_f32 v{P}, v{P}, v{P+1}
        v_cvt_pk_bf16_f32 v{P+1}, v{P+2}, v{P+3}
        buffer_store_dwordx2 {vr(P,2)}, v6, s[12:15], s{41 if j == 0 else 44} offen
        """)
    stamp_out(a, 7, 0)
    a(f"{L}_end:")
    a("s_endpgm")
    kernel_desc(a, name, 160, 100)
```

```python
from common import *
import math
from k2 import (M, QA1, QA2, QB1, QB2, KVB, SA, SB, OA, OB, PA, PB, split3, exp_groups, pv, CH)
def qk(Sd, kb, q1, q2):
    return [f"{M} {vr(Sd,16)}, {vr(kb,4)}, {vr(q1,4)}, 0",
            f"v_mfma_f32_32x32x8_bf16 {vr(Sd,16)}, {vr(kb+4,2)}, {vr(q2,2)}, {vr(Sd,16)}"]
LOG2E = 1.4426950408889634
QSCALE = LOG2E / math.sqrt(20.0)
E = os.environ.get
XSL = 32768
WB = 3 * XSL
WSL = 10240
QST = WB
KVR = 163840 - 3 * CH
GSL = 32768
NONCE = 122880
KMX = XSL
BREG = True
F_LDS = 163840
F_BLOCK = 640
SPIN = int(E("SPIN", 1 << 16))
SC = " sc1"
SCL = E('SCL', ' sc1')

_pc = [0]
def poll(a, L, voff, soff):
    _pc[0] += 1
    T = f"{L}_poll{_pc[0]}"
    a(f"""
    s_mov_b32 s70, {SPIN}
    {T}:
    buffer_load_dwordx2 v[24:25], {voff}, s[8:11], {soff} offen sc1
    s_sub_u32 s70, s70, 1
    s_cbranch_scc1 {T}_ok
    s_waitcnt vmcnt(0)
    v_cmp_ne_u64 vcc, v[24:25], v[20:21]
    s_cmp_eq_u64 vcc, 0
    s_cbranch_scc1 {T}_ok
    s_sleep {E("PSLEEP", "2")}
    s_branch {T}
    {T}_ok:
    """)

def flag(a, soff):
    a(f"""
    s_mov_b64 exec, 1
    buffer_store_dwordx2 v[20:21], v5, s[8:11], {soff} offen sc1
    s_mov_b64 exec, -1
    """)

def aslot(a, S, P, mf, pre=(), rd=None):
    g = exp_groups(S, P)
    flat = [x for gg in g for x in gg]
    pos = [int(x) for x in E("MPOS", "0,5,11,17").split(",")]
    for p in pre: a(p)
    k = 0
    for i, x in enumerate(flat):
        while k < 4 and pos[k] == i:
            a(mf[k])
            if rd: a(rd[k])
            k += 1
        a(x)

def gen(a, name):
    kernel_head(a, name)
    L = name
    a(f"""
    s_cmp_ge_u32 s2, 256
    s_cbranch_scc1 {L}_end
    s_load_dwordx8 s[4:11], s[0:1], 0
    s_load_dwordx4 s[12:15], s[0:1], 48
    s_load_dwordx2 s[18:19], s[0:1], 96
    """)
    stamp(a, 0)
    a(f"""
    v_lshrrev_b32 v2, 6, v0
    v_and_b32 v1, 63, v0
    v_readfirstlane_b32 s22, v2
    s_and_b32 s47, s2, 7
    s_lshr_b32 s51, s2, 3
    s_and_b32 s20, s47, 1
    s_lshl_b32 s20, s20, 2
    s_and_b32 s67, s51, 3
    s_add_u32 s20, s20, s67
    s_lshr_b32 s21, s47, 1
    s_lshr_b32 s68, s51, 2
    s_lshl_b32 s52, s68, 2
    s_add_u32 s21, s21, s52
    s_cmp_lt_u32 s22, 8
    s_cbranch_scc1 {L}_comp
    """)
    a.c("s20 = row group (256 rows), s21 = cg = head = column group, s22 = wave; kept for the whole kernel, as is s[18:19]")
    a(f"""
    s_setprio {E("LPRIO", "3")}
    s_load_dwordx2 s[72:73], s[0:1], 88
    s_load_dwordx2 s[74:75], s[0:1], 32
    s_and_b32 s63, s22, 1
    v_mov_b32 v16, 0
    v_lshlrev_b32 v17, 7, v1
    v_lshrrev_b32 v10, 3, v1
    v_lshrrev_b32 v11, 4, v1
    v_and_b32 v12, 7, v1
    v_xor_b32 v12, v12, v11
    v_xor_b32 v11, 4, v12
    s_movk_i32 s54, 1280
    v_mul_u32_u24 v10, s54, v10
    v_lshl_add_u32 v15, v11, 4, v10
    v_lshl_add_u32 v10, v12, 4, v10
    s_mul_i32 s53, s20, {256*1280}
    s_mul_i32 s55, s63, {64*1280}
    s_add_u32 s53, s53, s55
    """)
    for i in range(8):
        a(f"s_add_u32 s55, s53, {i*10240 - 1024*(i&3) + 4096}")
        a(f"v_add_u32 v{2+i}, s55, v{15 if i & 1 else 10}")
    a(f"""
    s_add_u32 s52, s67, s68
    s_and_b32 s52, s52, 3
    """)
    ORD = E("ORD", "b3")
    def order(t):
        if ORD == "lat4": return [(n + (5*t >> 1)) % 10 for n in range(10)]
        if ORD == "lat2": return [(n + 5*(t & 1)) % 10 for n in range(10)]
        if ORD == "b2": return [n ^ (t & 1) for n in range(10)]
        if ORD == "b4": return [(n & ~3) | ((n + t) & 3) if n < 8 else 8 + ((n + t) & 1) for n in range(10)]
        if ORD == "b5": return [5*(n // 5) + ((n % 5) + [0, 1, 2, 4][t]) % 5 for n in range(10)]
        if ORD == "b3": return [3*(n // 3) + ((n % 3) + t) % 3 if n < 9 else 9 for n in range(10)]
        if ORD == "h1": return [((n ^ (t & 1)) + 4*(t >> 1)) % 10 for n in range(10)]
        if ORD == "h2": return [(n + 2*(t>>1)) % 4 ^ (t & 1) if n < 4 else 4 + 3*((n-4)//3) + ((n-4) % 3 + t) % 3 for n in range(10)]
        if ORD == "h3": return [n ^ (t & 1) if n < 2 else (2 + (n - 2 + t) % 4 if n < 6 else 6 + (n - 6 + t) % 4) for n in range(10)]
        if ORD == "h4": return [0 if n == 0 else 1 + 3*((n-1)//3) + ((n-1) % 3 + t) % 3 for n in range(10)]
        if ORD == "none": return list(range(10))
    for t in range(4):
        tab = sum(p << (4*n) for n, p in enumerate(order(t)))
        if t == 0:
            a(f"s_mov_b32 s60, {tab & 0xffffffff}\ns_mov_b32 s61, {tab >> 32}")
        else:
            a(f"s_cmp_eq_u32 s52, {t}\ns_cselect_b32 s60, {tab & 0xffffffff}, s60\ns_cselect_b32 s61, {tab >> 32}, s61")
    a(f"""
    s_and_b32 s52, s60, 15
    s_lshl_b32 s41, s52, 7
    s_lshl_b32 s48, s63, 13
    s_mov_b32 m0, s48
    v_lshrrev_b32 v13, 3, v1
    s_movk_i32 s62, 3456
    v_mul_u32_u24 v13, s62, v13
    v_and_b32 v14, 7, v1
    v_bfe_u32 v15, v1, 4, 1
    v_lshlrev_b32 v15, 2, v15
    v_xor_b32 v14, v14, v15
    v_lshl_add_u32 v13, v14, 4, v13
    s_and_b32 s53, s21, 3
    s_mul_i32 s53, s53, 7
    s_add_u32 s53, s53, s68
    s_lshl_b32 s53, s53, 7
    v_add_u32 v10, s53, v13
    v_add_u32 v11, {8*3456-1024}, v10
    v_add_u32 v12, {2*(8*3456-1024)}, v10
    v_add_u32 v13, {3*(8*3456-1024)}, v10
    v_lshrrev_b32 v14, 2, v1
    v_mul_u32_u24 v14, s54, v14
    v_and_b32 v15, 3, v1
    v_lshl_add_u32 v14, v15, 4, v14
    s_mul_i32 s53, s21, 40
    s_mul_i32 s55, s63, {16*1280}
    s_add_u32 s53, s53, s55
    v_add_u32 v14, s53, v14
    v_cmp_eq_u32 vcc, 3, v15
    v_mov_b32 v15, 0x7f000000
    s_nop 0
    v_cndmask_b32 v14, v14, v15, vcc
    v_lshlrev_b32 v15, 4, v1
    s_mov_b32 s26, {2621440+4096}
    s_mov_b32 s27, 0x20000
    s_mov_b32 s30, 2211840
    s_mov_b32 s31, 0x20000
    s_mov_b32 s34, 819200
    s_mov_b32 s35, 0x20000
    s_sub_u32 s53, s21, 27
    s_cmp_lt_u32 s53, 2
    s_cselect_b32 s38, 25600, 0
    s_mov_b32 s39, 0x20000
    s_lshl_b32 s52, s52, 1
    s_mul_i32 s42, s52, {32*3456}
    s_mul_i32 s43, s52, {32*1280}
    s_mul_i32 s40, s52, 1280
    s_lshl_b32 s51, s63, 10
    s_add_u32 s40, s40, s51
    s_lshl_b32 s49, s63, 12
    s_add_u32 s49, s49, {WB}
    s_add_u32 s50, s51, {WB+8192}
    s_add_u32 s56, s51, {WB}
    s_add_u32 s45, s48, 16384
    s_add_u32 s54, s41, 163840
    s_mov_b32 s44, 0
    s_mov_b32 s46, 0
    s_mov_b32 s58, 2
    s_waitcnt lgkmcnt(0)
    s_sub_u32 s24, s4, 4096
    s_subb_u32 s25, s5, 0
    s_and_b32 s25, s25, 0xffff
    """)
    a.c("x voffsets carry +4096 so that they stay non negative; the SRD base carries -4096")
    def xdma(so):
        a(f"""
        buffer_load_dwordx4 v2, s[24:27], {so} offen lds
        buffer_load_dwordx4 v3, s[24:27], {so} offen offset:1024 lds
        buffer_load_dwordx4 v4, s[24:27], {so} offen offset:2048 lds
        buffer_load_dwordx4 v5, s[24:27], {so} offen offset:3072 lds
        s_add_u32 m0, m0, 4096
        s_nop 0
        buffer_load_dwordx4 v6, s[24:27], {so} offen lds
        buffer_load_dwordx4 v7, s[24:27], {so} offen offset:1024 lds
        buffer_load_dwordx4 v8, s[24:27], {so} offen offset:2048 lds
        buffer_load_dwordx4 v9, s[24:27], {so} offen offset:3072 lds
        """)
    xdma("s41")
    a(f"""
    s_cmp_eq_u32 s63, 1
    s_cselect_b32 s28, s14, s12
    s_cselect_b32 s29, s15, s13
    s_and_b32 s29, s29, 0xffff
    s_mov_b32 s32, s6
    s_and_b32 s33, s7, 0xffff
    s_cmp_eq_u32 s21, 27
    s_cselect_b32 s36, s8, s10
    s_cselect_b32 s37, s9, s11
    s_and_b32 s37, s37, 0xffff
    s_mov_b32 s8, s18
    s_and_b32 s9, s19, 0xffff
    s_mov_b32 s10, {WS_SIZE}
    s_mov_b32 s11, 0x20000
    s_mov_b32 s12, s18
    s_and_b32 s13, s19, 0xffff
    s_mov_b32 s14, {WS_KV + 64*3072}
    s_mov_b32 s15, 0x20000
    s_mov_b32 s69, {WS_F+FQ}
    s_cmp_ge_u32 s21, 27
    s_cbranch_scc1 {L}_ldl_issue
    """)
    a.c("s45/s54 next x half (lds, soffset), s41 k byte offset of the pair, s42 W, s43 wq, s40 wk/wv soffsets, s44 W slot")
    for tag, D in (("ldf", 13), ("ldl", 10)):
        a(f"""
        {L}_{tag}_issue:
        s_mov_b32 m0, s45
        s_add_u32 s46, s46, 1
        """)
        xdma("s54")
        if tag == "ldf":
            a(f"""
            s_add_u32 m0, s44, s49
            s_add_u32 s45, s45, 16384
            buffer_load_dwordx4 v10, s[28:31], s42 offen lds
            buffer_load_dwordx4 v11, s[28:31], s42 offen offset:1024 lds
            buffer_load_dwordx4 v12, s[28:31], s42 offen offset:2048 lds
            buffer_load_dwordx4 v13, s[28:31], s42 offen offset:3072 lds
            """)
        else:
            a(f"""
            s_add_u32 m0, s44, s56
            s_add_u32 s45, s45, 16384
            buffer_load_dwordx4 v15, s[36:39], s40 offen lds
            """)
        a(f"""
        s_add_u32 m0, s44, s50
        s_lshr_b32 s52, s46, 1
        buffer_load_dwordx4 v14, s[32:35], s43 offen lds
        s_lshl_b32 s52, s52, 2
        s_lshr_b64 s[64:65], s[60:61], s52
        s_and_b32 s52, s64, 15
        s_lshl_b32 s52, s52, 1
        s_and_b32 s53, s46, 1
        s_add_u32 s52, s52, s53
        s_mul_i32 s42, s52, {32*3456}
        s_mul_i32 s43, s52, {32*1280}
        s_mul_i32 s40, s52, 1280
        s_add_u32 s40, s40, s51
        s_lshl_b32 s52, s53, 2
        s_lshr_b32 s52, s64, s52
        s_and_b32 s52, s52, 15
        s_lshl_b32 s54, s52, 7
        s_cmp_eq_u32 s53, 0
        s_cselect_b32 s52, 163840, 0
        s_add_u32 s54, s54, s52
        s_add_u32 s44, s44, {WSL}
        s_cmp_ge_u32 s44, {4*WSL}
        s_cselect_b32 s44, 0, s44
        s_cmp_ge_u32 s45, {WB}
        s_cselect_b32 s45, s48, s45
        s_cmp_eq_u32 s46, 19
        s_cselect_b32 s26, 0, s26
        """)
        if tag == "ldf":
            a(f"""
            s_cmp_lg_u32 s46, 12
            s_cbranch_scc1 {L}_ld_e1
            global_load_dwordx2 v[20:21], v16, s[72:73] sc0 sc1
            {L}_ld_e1:
            s_cmp_lg_u32 s46, {E("KVE", "19")}
            s_cbranch_scc1 {L}_ld_e2
            s_mov_b64 exec, 0xffff
            buffer_load_dwordx2 v[24:25], v17, s[8:11], s69 offen sc1
            s_mov_b64 exec, -1
            {L}_ld_e2:
            """)
        a(f"""
        s_cmp_lt_u32 s46, s58
        s_cbranch_scc1 {L}_{tag}_issue
        s_waitcnt vmcnt({D})
        s_barrier
        s_add_u32 s58, s58, 1
        s_cmp_le_u32 s58, 20
        s_cbranch_scc1 {L}_{tag}_issue
        """)
        if tag == "ldf": a(f"s_branch {L}_ld_tailf")
    def kv():
        a(f"""
        s_add_u32 m0, s25, s24
        s_add_u32 s25, s25, {CH}
        buffer_load_dwordx4 v2, s[12:15], s30 offen{SCL} lds
        buffer_load_dwordx4 v2, s[12:15], s30 offen offset:1024{SCL} lds
        buffer_load_dwordx4 v2, s[12:15], s30 offen offset:2048{SCL} lds
        buffer_load_dwordx4 v2, s[12:15], s30 offen offset:3072{SCL} lds
        s_add_u32 m0, m0, 4096
        s_add_u32 s30, s30, {CH}
        buffer_load_dwordx4 v2, s[12:15], s31 offen{SCL} lds
        buffer_load_dwordx4 v2, s[12:15], s31 offen offset:1024{SCL} lds
        s_add_u32 s31, s31, {CH}
        s_cmp_ge_u32 s25, {3*CH}
        s_cselect_b32 s25, 0, s25
        """)
    def common():
        a(f"""
        v_mov_b32 v5, 0
        v_lshlrev_b32 v2, 4, v1
        v_lshlrev_b32 v3, 7, v1
        s_lshl_b32 s33, s20, 5
        s_add_u32 s33, s33, s21
        s_lshl_b32 s34, s33, 7
        s_add_u32 s34, s34, {WS_F}
        s_lshl_b32 s35, s20, 12
        s_add_u32 s35, s35, {WS_F}
        s_mul_i32 s24, s63, 6144
        s_add_u32 s30, s24, {WS_KV}
        s_add_u32 s31, s30, 4096
        s_add_u32 s24, s24, {KVR}
        s_mov_b32 s25, {CH}
        """)
    def first_kv():
        a(f"""
        s_mov_b32 m0, {KMX}
        s_mov_b32 s52, {WS_KV+1024+63*8+4}
        v_mul_u32_u24 v6, 3072, v1
        buffer_load_dword v6, s[8:11], s52 offen{SCL} lds
        """)
        kv(); kv()
    a.c("s34 = own flag line, s35 = flag lines of this row group; s30/s31 kv source, s24 + s25 kv destination")
    a(f"""
    s_branch {L}_ld_tail
    {L}_ld_tailf:
    s_mov_b64 exec, 0xffff
    v_cmp_ne_u64 vcc, v[24:25], v[20:21]
    v_cmp_eq_u32 s[52:53], 0, v20
    s_mov_b64 exec, -1
    s_or_b64 s[52:53], s[52:53], vcc
    s_cmp_lg_u64 s[52:53], 0
    s_cbranch_scc1 {L}_ld_tail
    """)
    common()
    stamp(a, 1); stamp(a, 2)
    first_kv()
    a(f"""
    s_waitcnt vmcnt(13)
    s_barrier
    s_barrier
    s_branch {L}_l_kvok
    {L}_ld_tail:
    s_waitcnt vmcnt(0)
    s_barrier
    global_load_dwordx2 v[20:21], v16, s[72:73] sc0 sc1
    s_barrier
    """)
    common()
    a(f"""
    s_mov_b32 s70, {SPIN}
    s_branch {L}_l_non2
    {L}_l_non:
    global_load_dwordx2 v[20:21], v16, s[72:73] sc0 sc1
    {L}_l_non2:
    s_sub_u32 s70, s70, 1
    s_cbranch_scc1 {L}_l_non3
    s_waitcnt vmcnt(0)
    v_cmp_ne_u32 vcc, 0, v20
    s_cmp_eq_u64 vcc, 0
    s_cbranch_scc1 {L}_l_non
    {L}_l_non3:
    s_sub_u32 s53, s21, 27
    s_cmp_ge_u32 s53, 2
    s_cbranch_scc1 {L}_l_nokv
    s_barrier
    s_cmp_lg_u32 s63, 0
    s_cbranch_scc1 {L}_l_nokv
    s_lshl_b32 s52, s20, 1
    s_add_u32 s52, s52, s53
    s_lshl_b32 s52, s52, 7
    s_add_u32 s52, s52, {WS_F+FQ}
    """)
    flag(a, "s52")
    a(f"""
    {L}_l_nokv:
    s_cmp_lt_u32 s21, 27
    s_cbranch_scc1 {L}_l_now
    s_cmp_eq_u32 s63, 0
    s_cbranch_scc1 {L}_l_now
    s_load_dwordx2 s[16:17], s[0:1], 64
    s_mul_i32 s52, s20, 5
    s_add_u32 s52, s52, s53
    s_mul_i32 s52, s52, {7*8192}
    s_waitcnt lgkmcnt(0)
    s_mov_b32 s56, s16
    s_and_b32 s57, s17, 0xffff
    s_mov_b32 s58, 2211840
    s_mov_b32 s59, 0x20000
    s_mov_b32 s54, 7
    {L}_l_warm:
    buffer_load_dword v31, v3, s[56:59], s52 offen
    s_add_u32 s52, s52, 8192
    s_sub_u32 s54, s54, 1
    s_cmp_lg_u32 s54, 0
    s_cbranch_scc1 {L}_l_warm
    {L}_l_now:
    s_mov_b64 exec, 0xffff
    """)
    stamp(a, 1)
    poll(a, L, "v3", "s69")
    a("s_mov_b64 exec, -1")
    stamp(a, 2)
    first_kv()
    a(f"{L}_l_kvok:")
    a("s_setprio 0")
    a(f"""
    s_lshr_b32 s38, s21, 2
    s_mul_i32 s38, s38, 160
    s_movk_i32 s39, 5462
    s_movk_i32 s40, 1280
    """)
    for i in range(3):
        a(f"""
        v_add_u32 v6, {64*i}, v1
        v_mul_u32_u24 v7, s39, v6
        v_lshrrev_b32 v7, 16, v7
        v_mul_u32_u24 v8, 12, v7
        v_sub_u32 v8, v6, v8
        v_mul_u32_u24 v7, s40, v7
        v_lshl_add_u32 v7, v8, 4, v7
        v_add_u32 v7, s38, v7
        v_subrev_u32 v{10+i}, {1024*i}, v7
        """)
    srd(a, 40, 74, 75, 819200)
    a(f"""
    s_mul_i32 s44, s63, {20*20480}
    s_mul_i32 s45, s63, {20*3072}
    s_waitcnt vmcnt(6)
    """)
    stamp(a, 3)
    a("s_barrier")
    def bar_kv():
        a("s_waitcnt vmcnt(0)")
        a("s_barrier")
        kv()
    bar_kv()
    a(f"""
    s_cmp_eq_u32 s63, 1
    s_cbranch_scc1 {L}_gate
    s_lshl_b32 s52, s2, 6
    v_add_u32 v6, s52, v1
    v_lshlrev_b32 v6, 7, v6
    buffer_load_dword v30, v6, s[40:43], 0 offen
    v_mov_b32 v6, {NONCE}
    ds_write_b64 v6, v[20:21]
    v_mov_b32 v8, 0
    v_mov_b32 v9, 0
    ds_write_b64 v6, v[8:9] offset:8
    ds_write_b64 v6, v[8:9] offset:16
    ds_write_b64 v6, v[8:9] offset:24
    s_waitcnt vmcnt(1) lgkmcnt(0)
    s_barrier
    """)
    a.c("B1 passed: every wave has drained its h stores")
    flag(a, "s34")
    kv()
    a(f"""
    s_waitcnt vmcnt(0)
    s_branch {L}_gate_done
    {L}_gate:
    s_load_dwordx2 s[16:17], s[0:1], 72
    s_load_dwordx2 s[4:5], s[0:1], 0
    v_and_b32 v16, 7, v1
    v_lshlrev_b32 v16, 4, v16
    v_lshrrev_b32 v17, 3, v1
    s_lshl_b32 s53, s33, 3
    v_add_u32 v18, s53, v17
    s_movk_i32 s54, 1280
    v_mul_lo_u32 v17, v18, s54
    v_add_u32 v17, v17, v16
    s_waitcnt lgkmcnt(0)
    """)
    srd(a, 56, 4, 5, 2621440)
    srd(a, 68, 16, 17, 1280)
    for j in range(10):
        a(f"buffer_load_dwordx4 {vr(72+4*j,4)}, v17, s[56:59], 0 offen offset:{128*j}")
    for j in range(10):
        a(f"buffer_load_dwordx4 {vr(32+4*j,4)}, v16, s[68:71], 0 offen offset:{128*j}")
    a(f"""
    v_lshrrev_b32 v19, 3, v1
    v_lshlrev_b32 v19, 2, v19
    v_mov_b32 v27, {f32(-LOG2E)}
    v_mov_b32 v26, 0
    v_mov_b32 v28, 0
    s_waitcnt vmcnt(20)
    s_barrier
    """)
    kv()
    a("s_waitcnt vmcnt(6)")
    for i in range(0, 40, 2):
        a(f"v_dot2_f32_bf16 v26, v{72+i}, v{32+i}, v26")
        a(f"v_dot2_f32_bf16 v28, v{73+i}, v{33+i}, v28")
    a(f"""
    s_nop 3
    v_add_f32 v26, v26, v28
    s_nop 1
    v_add_f32_dpp v26, v26, v26 quad_perm:[1,0,3,2] row_mask:0xf bank_mask:0xf
    s_nop 1
    v_add_f32_dpp v26, v26, v26 quad_perm:[2,3,0,1] row_mask:0xf bank_mask:0xf
    s_nop 1
    v_add_f32_dpp v26, v26, v26 row_half_mirror row_mask:0xf bank_mask:0xf
    v_cvt_pk_bf16_f32 v26, v26, v26
    v_lshlrev_b32 v26, 16, v26
    v_mul_f32 v26, v27, v26
    v_exp_f32 v26, v26
    s_nop 0
    v_add_f32 v26, 1.0, v26
    v_rcp_f32 v26, v26
    s_nop 0
    v_cvt_pk_bf16_f32 v26, v26, v26
    v_lshlrev_b32 v28, 16, v26
    s_lshl_b32 s53, s33, 7
    s_add_u32 s53, s53, {WS_G}
    v_cmp_eq_u32 vcc, 0, v16
    s_nop 1
    s_mov_b64 exec, vcc
    buffer_store_dword v28, v19, s[8:11], s53 offen sc1
    s_mov_b64 exec, -1
    s_waitcnt vmcnt(1)
    {L}_gate_done:
    s_barrier
    """)
    kv()
    a(f"""
    s_cmp_eq_u32 s63, 1
    s_cbranch_scc1 {L}_l_np
    """)
    a("s_mov_b64 exec, 0x7ffffff")
    poll(a, L, "v3", "s35")
    a(f"""
    s_mov_b64 exec, -1
    {L}_l_np:
    s_mov_b32 s46, 3
    {L}_lloop:
    """)
    bar_kv()
    a(f"""
    s_add_u32 s46, s46, 1
    s_cmp_lt_u32 s46, 14
    s_cbranch_scc1 {L}_lloop
    s_setprio 0
    s_add_u32 s34, s34, {F2}
    s_add_u32 s35, s35, {F2}
    """)
    a.c("barrier 13 passed: G waves are done with their ring")
    def wo(n, tag):
        a(f"""
        s_mov_b32 s47, {n}
        {L}_wo{tag}:
        s_mov_b32 m0, s45
        s_add_u32 s45, s45, 3072
        buffer_load_dwordx4 v10, s[40:43], s44 offen lds
        buffer_load_dwordx4 v11, s[40:43], s44 offen offset:1024 lds
        buffer_load_dwordx4 v12, s[40:43], s44 offen offset:2048 lds
        s_add_u32 s44, s44, 20480
        s_sub_u32 s47, s47, 1
        s_cmp_lg_u32 s47, 0
        s_cbranch_scc1 {L}_wo{tag}
        """)
    wo(8, "a")
    a("s_waitcnt vmcnt(24)")
    a("s_barrier")
    a(f"s_cmp_lg_u32 s63, 0\ns_cbranch_scc1 {L}_l_nf2")
    flag(a, "s34")
    a(f"{L}_l_nf2:")
    wo(8, "b")
    a("s_barrier")
    wo(4, "c")
    a(f"s_cmp_eq_u32 s63, 0\ns_cbranch_scc1 {L}_l_np2")
    a("s_mov_b32 exec_hi, 0")
    poll(a, L, "v3", "s35")
    a(f"{L}_l_np2:")
    a(f"""
    s_mov_b64 exec, 1
    v_mov_b32 v22, {NONCE}
    v_mov_b32 v9, 1
    s_waitcnt vmcnt(0)
    ds_add_u32 v22, v9 offset:12
    s_mov_b64 exec, -1
    s_and_b32 s52, s21, 3
    s_lshl_b32 s52, s52, 9
    s_add_u32 s35, s35, s52
    s_add_u32 s35, s35, {F3-F2}
    s_branch {L}_p3
    """)

    a(f"""
    {L}_comp:
    s_and_b32 s63, s22, 3
    s_lshr_b32 s64, s22, 2
    v_and_b32 v13, 31, v1
    v_lshrrev_b32 v14, 5, v1
    v_bfe_u32 v15, v1, 1, 3
    v_xor_b32 v2, v14, v15
    v_lshlrev_b32 v2, 4, v2
    v_lshl_add_u32 v2, v13, 7, v2
    s_lshl_b32 s52, s63, 13
    s_lshl_b32 s53, s64, 12
    s_add_u32 s52, s52, s53
    v_add_u32 v2, s52, v2
    v_xor_b32 v3, 32, v2
    v_xor_b32 v4, 64, v2
    v_xor_b32 v5, 96, v2
    v_bfe_u32 v15, v1, 2, 2
    v_lshlrev_b32 v7, 3, v14
    v_add_u32 v7, v7, v15
    v_mul_u32_u24 v9, 40, v7
    v_lshlrev_b32 v8, 6, v7
    v_lshlrev_b32 v7, 7, v7
    v_lshrrev_b32 v16, 1, v15
    v_xor_b32 v16, s64, v16
    v_lshl_add_u32 v7, v16, 6, v7
    v_bfe_u32 v16, v1, 4, 1
    v_and_b32 v17, 3, v1
    v_lshlrev_b32 v16, 5, v16
    v_lshl_add_u32 v16, v17, 3, v16
    v_add_u32 v7, v7, v16
    v_add_u32 v9, v9, v16
    v_cmp_eq_u32 vcc, 40, v16
    s_nop 1
    v_cndmask_b32 v16, v16, 48, vcc
    v_add_u32 v8, v8, v16
    v_add_u32 v7, {WB}, v7
    v_add_u32 v8, {WB+8192}, v8
    v_add_u32 v9, {WB}, v9
    s_mov_b32 s44, 0
    s_mov_b32 s45, 0
    s_mov_b32 s46, 0
    """)
    a.c("v2..v5 x frag addr (row block 2rp+cp) for the 4 k steps of a pair; v7 W, v8 wq slice, v9 wk/wv slice addr; s63=rp s64=cp")
    for r in range(64, 144, 2):
        a(f"v_mov_b64 v[{r}:{r+1}], 0")
    a("s_waitcnt lgkmcnt(0)")
    srd(a, 8, 18, 19, WS_SIZE)
    a(f"""
    s_or_b32 s52, s22, s2
    s_cmp_lg_u32 s52, 0
    s_cbranch_scc1 {L}_nonon
    s_load_dwordx2 s[52:53], s[0:1], 88
    s_memrealtime s[54:55]
    v_mov_b32 v148, 0
    s_waitcnt lgkmcnt(0)
    s_or_b32 s54, s54, 1
    v_mov_b32 v144, s54
    v_mov_b32 v145, s55
    s_mov_b64 exec, 1
    global_store_dwordx2 v148, v[144:145], s[52:53] sc0 sc1
    s_mov_b64 exec, -1
    {L}_nonon:
    s_lshr_b32 s52, s21, 4
    s_xor_b32 s53, s22, 1
    s_or_b32 s52, s52, s53
    s_cmp_lg_u32 s52, 0
    s_cbranch_scc1 {L}_noin
    s_lshl_b32 s52, s20, 5
    s_add_u32 s52, s52, s21
    s_lshl_b32 s52, s52, 7
    s_add_u32 s52, s52, {WS_F+F3}
    s_mov_b64 exec, 1
    buffer_store_dword v64, v64, s[8:11], s52 offen sc1
    s_mov_b64 exec, -1
    {L}_noin:
    """)
    if E("CPF", "0") == "1":
        a(f"""
        s_lshr_b32 s52, s2, {3 + int(E("CPFS", "0"))}
        s_xor_b32 s53, s22, 2
        s_or_b32 s52, s52, s53
        s_cmp_lg_u32 s52, 0
        s_cbranch_scc1 {L}_nocpf
        s_getpc_b64 s[52:53]
        {L}_pc:
        s_sub_u32 s52, s52, {L}_pc-{L}
        s_subb_u32 s53, s53, 0
        v_lshlrev_b32 v144, 7, v1
        global_load_dword v145, v144, s[52:53]
        v_add_u32 v144, 8192, v144
        v_cmp_gt_u32 vcc, {L}_end-{L}, v144
        s_nop 1
        s_mov_b64 exec, vcc
        global_load_dword v145, v144, s[52:53]
        s_mov_b64 exec, -1
        {L}_nocpf:
        """)
    a(f"""
    s_cmp_eq_u32 s21, 27
    s_cbranch_scc1 {L}_modeK
    s_cmp_eq_u32 s21, 28
    s_cbranch_scc1 {L}_modeV
    s_cmp_gt_u32 s21, 28
    s_cbranch_scc1 {L}_modeQ
    """)
    XA = [16, 36]
    XC = [56, 57, 58, 59]
    XD = [60, 61, 62, 63]
    def xaddrs(full):
        l = [f"v_add_u32 v{XC[j]}, s45, v{2+j}" for j in range(4)]
        if full: l += [f"v_xor_b32 v{XD[j]}, 4096, v{XC[j]}" for j in range(4)]
        return l + [f"s_add_u32 s45, s45, {XSL}", f"s_cmp_ge_u32 s45, {WB}", "s_cselect_b32 s45, 0, s45"]
    def waddrs(mode):
        l = ["v_add_u32 v12, s44, v8"]
        if mode == 0: l.append("v_add_u32 v11, s44, v7")
        if mode in (1, 2): l.append("v_add_u32 v11, s44, v9")
        return l + [f"s_add_u32 s44, s44, {WSL}", f"s_cmp_ge_u32 s44, {4*WSL}", "s_cselect_b32 s44, 0, s44"]
    def read_list(j, mode):
        ks = j & 1
        b = XA[ks]
        l = [f"ds_read_b128 {vr(b,4)}, v{XC[j]}"]
        if mode == 0:
            l += [f"ds_read_b64_tr_b16 {vr(b+8,2)}, v11 offset:{ks*2048}",
                  f"ds_read_b64_tr_b16 {vr(b+10,2)}, v11 offset:{ks*2048+512}",
                  f"ds_read_b64_tr_b16 {vr(b+12,2)}, v11 offset:{4096+ks*2048}",
                  f"ds_read_b64_tr_b16 {vr(b+14,2)}, v11 offset:{4096+ks*2048+512}",
                  f"ds_read_b128 {vr(b+4,4)}, v{XD[j]}"]
        if mode in (1, 2):
            l += [f"ds_read_b64_tr_b16 {vr(b+8,2)}, v11 offset:{ks*640}",
                  f"ds_read_b64_tr_b16 {vr(b+10,2)}, v11 offset:{ks*640+160}"]
        l += [f"ds_read_b64_tr_b16 {vr(b+16,2)}, v12 offset:{ks*1024}",
              f"ds_read_b64_tr_b16 {vr(b+18,2)}, v12 offset:{ks*1024+256}"]
        return l
    def mfma_list(ks, mode):
        b = XA[ks]
        x0, x1, wg, wu, ws = vr(b,4), vr(b+4,4), vr(b+8,4), vr(b+12,4), vr(b+16,4)
        l = []
        if mode == 0:
            l = [f"{M} v[64:79], {wg}, {x0}, v[64:79]", f"{M} v[80:95], {wu}, {x0}, v[80:95]",
                 f"{M} v[96:111], {wg}, {x1}, v[96:111]", f"{M} v[112:127], {wu}, {x1}, v[112:127]"]
        if mode == 1: l = [f"{M} v[64:79], {wg}, {x0}, v[64:79]"]
        if mode == 2: l = [f"{M} v[64:79], {x0}, {wg}, v[64:79]"]
        l = l + [f"{M} v[128:143], {ws}, {x0}, v[128:143]"]
        if E("HACK16", "0") == "1" and mode == 0:
            import re
            l2 = []
            for m in l:
                b0 = int(re.search(r"v\[(\d+):", m).group(1)); ops = m.split(", ")
                t = f"v_mfma_f32_16x16x32_bf16 {{d}}, {ops[1]}, {ops[2]}, {{d}}"
                l2.append(t.format(d=vr(b0+8*ks,4)) + "\n" + t.format(d=vr(b0+8*ks+4,4)))
            l = l2
        return l
    def half(ml, rl, post):
        n = len(ml)
        if n == 5 and E("P1V", "1") == "1":
            a("s_waitcnt lgkmcnt(2)")
            if E("P1PRIO"): a("s_setprio 1")
            if E("P1ORD"): ml = [ml[0], ml[1], ml[3], ml[2], ml[4]]
            cuts = [int(x) for x in E("P1CUT", "3,6,8,8").split(",")]
            lo = 0
            for i, m in enumerate(ml):
                if i == 4: a("s_waitcnt lgkmcnt(8)")
                a(m)
                if i < 4:
                    for x in rl[lo:cuts[i]]: a(x)
                    lo = cuts[i]
                if i == 3:
                    for x in post: a(x)
            if E("P1PRIO"): a("s_setprio 0")
            return
        a("s_waitcnt lgkmcnt(0)")
        per = -(-len(rl) // max(n - 1, 1))
        for i, m in enumerate(ml):
            a(m)
            if n == 1:
                for x in rl + post: a(x)
                continue
            for x in rl[per*i:per*i+per]: a(x)
            if i == n - 2:
                for x in post: a(x)
    for mode, tag in ((0, "full"), (1, "modeK"), (2, "modeV"), (3, "modeQ")):
        a(f"{L}_{tag}:")
        for x in xaddrs(mode == 0) + waddrs(mode): a(x)
        a("s_barrier")
        for x in read_list(0, mode): a(x)
        stamp(a, 1)
        if mode == 0: a(".p2align 6")
        a(f"{L}_{tag}_loop:")
        half(mfma_list(0, mode), read_list(1, mode), waddrs(mode))
        a("s_barrier")
        half(mfma_list(1, mode), read_list(2, mode), [])
        half(mfma_list(0, mode), read_list(3, mode), waddrs(mode) + xaddrs(mode == 0))
        a("s_barrier")
        half(mfma_list(1, mode), read_list(0, mode), ["s_add_u32 s46, s46, 1", "s_cmp_lt_u32 s46, 10"])
        a(f"s_cbranch_scc1 {L}_{tag}_loop")
        stamp(a, 2)
        a(f"""
        s_lshl_b32 s52, s20, 3
        s_lshl_b32 s53, s63, 1
        s_add_u32 s52, s52, s53
        s_add_u32 s52, s52, s64
        v_lshlrev_b32 v2, 4, v1
        """)
        a(f"s_branch {L}_epi{mode}")
    a.c("s52 = global row block of acc set 0 and of the q chain (set 1 is s52 ^ 1)")
    EK = 64
    a(f"""
    {L}_epi1:
    s_mul_i32 s53, s52, 3072
    s_add_u32 s53, s53, {WS_KV}
    s_nop 7
    s_waitcnt lgkmcnt(0)
    """)
    for i in range(4): a(f"v_cvt_pk_bf16_f32 v{20+i}, v{EK+2*i}, v{EK+2*i+1}")
    a(f"buffer_store_dwordx4 v[20:23], v2, s[8:11], s53 offen{SC}")
    a(f"v_cvt_pk_bf16_f32 v24, v{EK+8}, v{EK+9}")
    a(f"v_cvt_pk_bf16_f32 v25, v{EK+10}, v{EK+11}")
    a("v_mov_b32 v26, 0x3f803f80")
    a("v_mov_b32 v27, 0x00003f80")
    a(f"v_mul_f32 v30, v{EK}, v{EK}")
    for i in range(1, 8): a(f"v_fmac_f32 v30, v{EK+i}, v{EK+i}")
    a(f"v_mul_f32 v31, v{EK+8}, v{EK+8}")
    for i in range(9, 12): a(f"v_fmac_f32 v31, v{EK+i}, v{EK+i}")
    a(f"""
    v_cmp_gt_u32 vcc, 32, v1
    s_nop 1
    v_cndmask_b32 v31, 0, v31, vcc
    v_add_f32 v30, v30, v31
    v_mov_b32 v31, v30
    s_nop 1
    v_permlane32_swap_b32 v30, v31
    s_nop 1
    v_add_f32 v30, v30, v31
    """)
    for sh in (1, 2, 4, 8):
        a("s_nop 1")
        a(f"v_max_f32_dpp v30, v30, v30 row_shr:{sh} row_mask:0xf bank_mask:0xf")
    a(f"""
    s_nop 1
    v_max_f32_dpp v30, v30, v30 row_bcast:15 row_mask:0xa bank_mask:0xf
    v_cmp_eq_u32 vcc, 63, v1
    v_and_b32 v30, 0xffff0000, v30
    v_or_b32 v30, 0x3f80, v30
    v_cndmask_b32 v27, v27, v30, vcc
    v_cmp_gt_u32 vcc, 32, v1
    v_lshlrev_b32 v16, 3, v1
    s_nop 0
    v_cndmask_b32 v24, v26, v24, vcc
    v_cndmask_b32 v25, v27, v25, vcc
    buffer_store_dwordx2 v[24:25], v16, s[8:11], s53 offen offset:1024{SC}
    s_branch {L}_kvdone
    {L}_epi2:
    s_mul_i32 s53, s52, 3072
    s_add_u32 s53, s53, {WS_KV+1536}
    v_and_b32 v17, 31, v1
    v_lshrrev_b32 v18, 5, v1
    v_mul_u32_u24 v18, 384, v18
    v_lshl_add_u32 v16, v17, 4, v18
    v_mov_b32 v19, 0x3f803f80
    v_cmp_eq_u32 vcc, 20, v17
    v_cmp_lt_u32 s[54:55], 19, v17
    s_nop 3
    v_cndmask_b32 v19, 0, v19, vcc
    s_waitcnt lgkmcnt(0)
    """)
    for i in range(8): a(f"v_cvt_pk_bf16_f32 v{20+i}, v{EK+2*i}, v{EK+2*i+1}")
    for i in range(8): a(f"v_cndmask_b32 v{20+i}, v{20+i}, v19, s[54:55]")
    a(f"""
    v_cmp_gt_u32 vcc, 24, v17
    s_nop 1
    s_and_b64 exec, exec, vcc
    buffer_store_dwordx4 v[20:23], v16, s[8:11], s53 offen{SC}
    buffer_store_dwordx4 v[24:27], v16, s[8:11], s53 offen offset:768{SC}
    {L}_kvdone:
    s_mov_b64 exec, -1
    s_waitcnt vmcnt(0)
    s_barrier
    s_branch {L}_epi3
    """)
    C0 = -2.0 * 0.7978845608028654 * LOG2E
    C1 = C0 * 0.044715
    a(f"""
    {L}_epi0:
    v_mov_b32 v16, {f32(C0)}
    v_mov_b32 v17, {f32(C0)}
    v_mov_b32 v18, {f32(C1)}
    v_mov_b32 v19, {f32(C1)}
    v_mov_b32 v44, 1.0
    v_mov_b32 v45, 1.0
    s_and_b32 s54, s21, 3
    s_mul_i32 s54, s54, 7
    s_add_u32 s54, s54, s68
    s_lshl_b32 s54, s54, 12
    s_lshl_b32 s55, s64, 11
    s_add_u32 s54, s54, s55
    s_add_u32 s54, s54, {WS_H}
    s_mul_i32 s53, s52, {108*1024}
    s_add_u32 s53, s53, s54
    s_xor_b32 s55, s52, 1
    s_mul_i32 s55, s55, {108*1024}
    s_add_u32 s54, s54, s55
    s_waitcnt lgkmcnt(0)
    """)
    for j in range(2):
        G, U = 64 + 32*j, 80 + 32*j
        for hf in range(2):
            T = 20
            p2 = lambda r: f"v[{r}:{r+1}]"
            rs = list(range(8*hf, 8*hf+8, 2))
            for i, r in enumerate(rs): a(f"v_pk_mul_f32 {p2(T+2*i)}, {p2(G+r)}, {p2(G+r)}")
            for i, r in enumerate(rs): a(f"v_pk_fma_f32 {p2(T+2*i)}, {p2(T+2*i)}, v[18:19], v[16:17]")
            for i, r in enumerate(rs): a(f"v_pk_mul_f32 {p2(T+2*i)}, {p2(G+r)}, {p2(T+2*i)}")
            for i in range(8): a(f"v_exp_f32 v{T+i}, v{T+i}")
            for i, r in enumerate(rs): a(f"v_pk_mul_f32 {p2(U+r)}, {p2(G+r)}, {p2(U+r)}")
            for i, r in enumerate(rs): a(f"v_pk_add_f32 {p2(T+2*i)}, {p2(T+2*i)}, v[44:45]")
            for i in range(8): a(f"v_rcp_f32 v{T+i}, v{T+i}")
            a("s_nop 0")
            for i, r in enumerate(rs): a(f"v_pk_mul_f32 {p2(T+2*i)}, {p2(U+r)}, {p2(T+2*i)}")
            O = 28 + 4*(2*j+hf)
            for i in range(4): a(f"v_cvt_pk_bf16_f32 v{O+i}, v{T+2*i}, v{T+2*i+1}")
            a(f"buffer_store_dwordx4 {vr(O,4)}, v2, s[8:11], s{53+j} offen offset:{1024*hf}{SC}")
    a(f"""
    {L}_epi3:
    """)
    if E("ES"): stamp(a, 6)
    a(f"""
    s_nop 7
    v_mov_b32 v144, {f32(QSCALE)}
    v_mov_b32 v145, {f32(QSCALE)}
    s_waitcnt lgkmcnt(0)
    """)
    for i in range(0, 12, 2): a(f"v_pk_mul_f32 v[{128+i}:{129+i}], v[144:145], v[{128+i}:{129+i}]")
    for i in range(6): a(f"v_cvt_pk_bf16_f32 v{QA1+i}, v{128+2*i}, v{129+2*i}")
    a(f"""
    s_mul_i32 s52, s63, 1536
    s_add_u32 s52, s52, {QST}
    v_add_u32 v144, s52, v2
    v_lshl_add_u32 v145, v1, 3, s52
    s_cmp_ge_u32 s22, 4
    s_cbranch_scc1 {L}_gwave
    """)
    a(f"""
    s_setprio {E("APRIO", "1")}
    v_and_b32 v9, 31, v1
    v_lshrrev_b32 v10, 5, v1
    v_add_u32 v3, {KVR}, v2
    v_lshlrev_b32 v4, 3, v1
    v_add_u32 v4, {KVR+1024}, v4
    v_min_u32 v5, 23, v9
    v_mul_u32_u24 v11, 384, v10
    v_lshl_add_u32 v5, v5, 4, v11
    v_add_u32 v5, {KVR+1536}, v5
    v_lshlrev_b32 v146, 2, v1
    v_add_u32 v146, {KMX}, v146
    s_mov_b32 s27, 0
    s_mov_b32 s30, 0
    v_cmp_gt_u32 s[28:29], 32, v1
    v_lshlrev_b32 v60, 3, v9
    v_lshl_add_u32 v60, v10, 8, v60
    s_lshl_b32 s33, s20, 3
    s_lshl_b32 s52, s22, 1
    s_add_u32 s33, s33, s52
    s_mul_i32 s33, s33, 40960
    s_mul_i32 s52, s21, 1280
    s_add_u32 s33, s33, s52
    s_add_u32 s33, s33, {WS_O}
    s_add_u32 s31, s33, 40960
    """)
    a.c("v60 = o store offset, s33/s31 = o image base of block a / b")
    for r in list(range(OA, OA+32, 2)) + list(range(PB, PB+8, 2)) + list(range(KVB[1]+8, KVB[1]+16, 2)):
        a(f"v_mov_b64 v[{r}:{r+1}], 0")
    def qnorm(q1, q2, t, extra=()):
        ex = list(extra) + [""] * 2
        a(f"""
        v_cndmask_b32 v{q2}, 0, v{q2}, s[28:29]
        v_cndmask_b32 v{q2+1}, 0, v{q2+1}, s[28:29]
        v_mov_b32 v{t}, 0
        {ex[0]}
        v_dot2_f32_bf16 v{t}, v{q1}, v{q1}, v{t}
        v_dot2_f32_bf16 v{t}, v{q1+1}, v{q1+1}, v{t}
        v_dot2_f32_bf16 v{t}, v{q1+2}, v{q1+2}, v{t}
        {ex[1]}
        v_dot2_f32_bf16 v{t}, v{q1+3}, v{q1+3}, v{t}
        v_dot2_f32_bf16 v{t}, v{q2}, v{q2}, v{t}
        v_dot2_f32_bf16 v{t}, v{q2+1}, v{q2+1}, v{t}
        """)
    qnorm(QA1, QA2, 147)
    if E("ES"): stamp(a, 3)
    a(f"""
    s_barrier
    ds_read_b32 v146, v146
    ds_read_b128 {vr(QB1,4)}, v144
    ds_read_b64 {vr(QB2,2)}, v145 offset:1024
    ds_read_b128 {vr(KVB[0],4)}, v3 offset:{CH}
    ds_read_b64 {vr(KVB[0]+4,2)}, v4 offset:{CH}
    ds_read_b128 {vr(KVB[1],4)}, v3 offset:{CH+3072}
    ds_read_b64 {vr(KVB[1]+4,2)}, v4 offset:{CH+3072}
    ds_read_b128 {vr(KVB[0]+8,4)}, v5 offset:{CH}
    ds_read_b128 {vr(KVB[0]+12,4)}, v5 offset:{CH+768}
    """)
    stamp(a, 4)
    dm = lambda k: f"v_max_f32_dpp v146, v146, v146 {k} bank_mask:0xf"
    a(f"""
    v_mov_b32 v149, v147
    s_waitcnt lgkmcnt(6)
    v_and_b32 v146, 0xffff0000, v146
    v_permlane32_swap_b32 v147, v149
    s_nop 0
    {dm("row_shr:1 row_mask:0xf")}
    v_add_f32 v147, v147, v149
    s_nop 0
    {dm("row_shr:2 row_mask:0xf")}
    """)
    qnorm(QB1, QB2, 148, [dm("row_shr:4 row_mask:0xf"), dm("row_shr:8 row_mask:0xf")])
    a(f"""
    {dm("row_bcast:15 row_mask:0xa")}
    s_nop 1
    v_mov_b32 v150, v148
    {dm("row_bcast:31 row_mask:0xc")}
    s_nop 0
    v_permlane32_swap_b32 v148, v150
    v_readlane_b32 s26, v146, 63
    s_nop 0
    v_add_f32 v148, v148, v150
    v_mul_f32 v147, s26, v147
    v_mul_f32 v148, s26, v148
    v_sqrt_f32 v147, v147
    v_sqrt_f32 v148, v148
    v_mul_f32 v147, {f32(1.02)}, v147
    v_mul_f32 v148, {f32(1.02)}, v148
    """)
    def set_shift(ma, mb):
        for m, q2 in ((ma, QA2), (mb, QB2)):
            split3(a, m, q2+2, q2+3, 149, 150)
            a(f"v_cndmask_b32 v{q2}, v{q2+2}, v{q2}, s[28:29]")
            a(f"v_cndmask_b32 v{q2+1}, v{q2+3}, v{q2+1}, s[28:29]")
    set_shift(147, 148)
    a("s_waitcnt lgkmcnt(0)")
    for x in qk(SA, KVB[0], QA1, QA2): a(x)
    a("s_nop 11")
    a(".p2align 6")
    a(f"{L}_aloop:")
    for c in range(3):
        sl_cur, sl_nxt = ((c + 1) % 3) * CH, ((c + 2) % 3) * CH
        for t in range(4):
            cur, nxt = KVB[t & 1], KVB[(t + 1) & 1]
            aslot(a, SA, PA, qk(SB, cur, QB1, QB2) + pv(OB, nxt, PB))
            pre = ["s_waitcnt lgkmcnt(0)" if (t, c) != (3, 0) else "s_waitcnt vmcnt(0) lgkmcnt(0)"]
            if t == 0 and STAMP: pre.append("s_memtime s[38:39]")
            if t == 0: pre.append("s_barrier")
            if t == 0 and STAMP: pre.append("s_memtime s[36:37]")
            if t == 1 and STAMP: pre += ["s_mov_b32 m0, s27", "s_add_u32 s27, s27, 1", "v_writelane_b32 v61, s36, m0", "v_writelane_b32 v62, s38, m0"]
            ko = ((t + 2) & 3) * 3072 + (sl_cur if t < 2 else sl_nxt)
            vo = ((t + 1) & 3) * 3072 + (sl_cur if t < 3 else sl_nxt)
            rd = [f"ds_read_b128 {vr(cur,4)}, v3 offset:{ko}",
                  f"ds_read_b64 {vr(cur+4,2)}, v4 offset:{ko}",
                  f"ds_read_b128 {vr(nxt+8,4)}, v5 offset:{vo}",
                  f"ds_read_b128 {vr(nxt+12,4)}, v5 offset:{vo+768}"]
            if (t, c) == (3, 0): rd[3] += "\ns_cmp_eq_u32 s30, 5"
            if (t, c) == (3, 2): rd[3] += "\ns_add_u32 s30, s30, 1"
            aslot(a, SB, PB, qk(SA, nxt, QA1, QA2) + pv(OA, cur, PA), pre, rd)
        if c == 0: a(f"s_cbranch_scc1 {L}_adone")
    a(f"""
    s_branch {L}_aloop
    {L}_adone:
    s_nop 1
    """)
    for x in pv(OB, KVB[1], PB): a(x)
    stamp(a, 5)
    a(f"""
    s_mov_b32 s34, 0
    {L}_aepi:
    s_mov_b32 s35, {f32(2.0**-90)}
    s_waitcnt lgkmcnt(0)
    s_nop 11
    v_mov_b32 v144, v{OA+8}
    v_mov_b32 v145, v{OA+8}
    v_mov_b32 v146, v{OB+8}
    v_mov_b32 v147, v{OB+8}
    s_nop 0
    v_permlane32_swap_b32 v144, v145
    v_permlane32_swap_b32 v146, v147
    s_nop 0
    v_cmp_nle_f32 vcc, s35, v145
    v_cmp_nle_f32 s[36:37], s35, v147
    v_rcp_f32 v145, v145
    v_rcp_f32 v147, v147
    s_or_b64 s[36:37], vcc, s[36:37]
    s_cmp_eq_u32 s34, 0
    s_cselect_b64 s[36:37], s[36:37], 0
    s_cmp_lg_u64 s[36:37], 0
    s_cbranch_scc1 {L}_slow
    """)
    for blk, O in enumerate((OA, OB)):
        R = 145 + 2*blk
        for q in range(3):
            for i in range(4): a(f"v_mul_f32 v{O+4*q+i}, v{R}, v{O+4*q+i}")
            D = 64 + 8*blk + 2*q
            a(f"v_cvt_pk_bf16_f32 v{D}, v{O+4*q}, v{O+4*q+1}")
            a(f"v_cvt_pk_bf16_f32 v{D+1}, v{O+4*q+2}, v{O+4*q+3}")
            if q == 2: a("s_mov_b32 exec_hi, 0")
            a(f"buffer_store_dwordx2 {vr(D,2)}, v60, s[8:11], s{33 if blk == 0 else 31} offen offset:{512*q} sc1")
            if q == 2: a("s_mov_b64 exec, -1")
    if STAMP:
        a(f"""
        s_lshl_b32 s36, s2, 2
        s_add_u32 s36, s36, s22
        s_lshl_b32 s36, s36, 9
        s_add_u32 s36, s36, {0x1900000}
        v_lshlrev_b32 v63, 2, v1
        buffer_store_dword v61, v63, s[8:11], s36 offen
        buffer_store_dword v62, v63, s[8:11], s36 offen offset:256
        """)
    a(f"""
    s_setprio 0
    s_lshl_b32 s36, s20, 5
    s_lshl_b32 s37, s22, 2
    s_add_u32 s36, s36, s37
    s_lshr_b32 s37, s21, 3
    s_add_u32 s36, s36, s37
    s_lshl_b32 s36, s36, 7
    s_add_u32 s36, s36, {WS_F+F3}
    v_mov_b32 v9, 1
    v_mov_b32 v5, 0
    s_waitcnt vmcnt(0)
    s_mov_b64 exec, 1
    buffer_atomic_add v9, v5, s[8:11], s36 offen sc1
    s_mov_b64 exec, -1
    """)
    if not E("ES"): stamp(a, 3)
    a(f"""
    s_branch {L}_p3
    """)
    kb = KVB[0]
    a(f"""
    {L}_slow:
    s_mov_b32 s34, 1
    v_cndmask_b32 v{QA2}, 0, v{QA2}, s[28:29]
    v_cndmask_b32 v{QA2+1}, 0, v{QA2+1}, s[28:29]
    v_cndmask_b32 v{QB2}, 0, v{QB2}, s[28:29]
    v_cndmask_b32 v{QB2+1}, 0, v{QB2+1}, s[28:29]
    v_mov_b32 v147, 0xff800000
    v_mov_b32 v148, 0xff800000
    s_mov_b32 s36, {WS_KV - KVR}
    {L}_slow1:
    buffer_load_dwordx4 {vr(kb,4)}, v3, s[8:11], s36 offen sc1
    buffer_load_dwordx2 {vr(kb+4,2)}, v4, s[8:11], s36 offen sc1
    s_add_u32 s36, s36, 3072
    s_waitcnt vmcnt(0)
    """)
    for x in qk(SA, kb, QA1, QA2) + qk(SB, kb, QB1, QB2): a(x)
    a("s_nop 15")
    for i in range(0, 16, 2):
        a(f"v_max3_f32 v147, v{SA+i}, v{SA+i+1}, v147")
        a(f"v_max3_f32 v148, v{SB+i}, v{SB+i+1}, v148")
    a(f"""
    s_cmp_lt_u32 s36, {WS_KV - KVR + 64*3072}
    s_cbranch_scc1 {L}_slow1
    v_mov_b32 v149, v147
    v_mov_b32 v150, v148
    s_nop 1
    v_permlane32_swap_b32 v147, v149
    v_permlane32_swap_b32 v148, v150
    s_nop 1
    v_max_f32 v147, v147, v149
    v_max_f32 v148, v148, v150
    """)
    set_shift(147, 148)
    for r in range(OA, OA+32): a(f"v_mov_b32 v{r}, 0")
    a(f"""
    s_mov_b32 s36, {WS_KV - KVR}
    {L}_slow2:
    buffer_load_dwordx4 {vr(kb,4)}, v3, s[8:11], s36 offen sc1
    buffer_load_dwordx2 {vr(kb+4,2)}, v4, s[8:11], s36 offen sc1
    buffer_load_dwordx4 {vr(kb+8,4)}, v5, s[8:11], s36 offen sc1
    buffer_load_dwordx4 {vr(kb+12,4)}, v5, s[8:11], s36 offen offset:768 sc1
    s_add_u32 s36, s36, 3072
    s_waitcnt vmcnt(0)
    """)
    for x in qk(SA, kb, QA1, QA2) + qk(SB, kb, QB1, QB2): a(x)
    a("s_nop 15")
    for g in exp_groups(SA, PA) + exp_groups(SB, PB):
        for x in g: a(x)
    a("s_nop 1")
    for x in pv(OA, kb, PA) + pv(OB, kb, PB): a(x)
    a(f"""
    s_cmp_lt_u32 s36, {WS_KV - KVR + 64*3072}
    s_cbranch_scc1 {L}_slow2
    s_nop 7
    s_branch {L}_aepi
    """)

    a(f"""
    {L}_gwave:
    ds_write_b128 v144, {vr(QA1,4)}
    ds_write_b64 v145, {vr(QA2,2)} offset:1024
    s_load_dwordx2 s[6:7], s[0:1], 64
    s_and_b32 s16, s22, 3
    s_and_b32 s57, s21, 3
    s_lshl_b32 s57, s57, 3
    s_lshr_b32 s34, s21, 2
    s_add_u32 s57, s57, s34
    s_cmp_ge_u32 s57, 15
    s_cselect_b32 s33, 1, 0
    s_cselect_b32 s34, 15, 0
    s_sub_u32 s34, s57, s34
    s_lshl_b32 s35, s20, 1
    s_add_u32 s33, s33, s35
    s_mul_i32 s35, s34, 13
    s_lshr_b32 s35, s35, 6
    s_mul_i32 s36, s35, 5
    s_sub_u32 s34, s34, s36
    s_waitcnt lgkmcnt(0)
    """)
    if E("ES"): stamp(a, 3)
    a(f"""
    s_barrier
    s_lshl_b32 s36, s33, 2
    s_add_u32 s36, s36, s16
    s_mul_i32 s36, s36, 108
    s_mul_i32 s37, s35, 36
    s_add_u32 s36, s36, s37
    s_lshl_b32 s36, s36, 10
    s_add_u32 s40, s36, {WS_H}
    s_mul_i32 s41, s35, {576*1280}
    s_mul_i32 s36, s16, {16*1280}
    s_add_u32 s41, s41, s36
    s_lshl_b32 s36, s34, 8
    s_add_u32 s41, s41, s36
    v_lshrrev_b32 v3, 4, v1
    v_lshlrev_b32 v4, 2, v3
    v_and_b32 v5, 15, v1
    v_xor_b32 v4, v4, v5
    s_movk_i32 s36, 1280
    v_mul_u32_u24 v3, s36, v3
    v_lshl_add_u32 v3, v4, 4, v3
    v_add_u32 v4, {5120-1024}, v3
    v_add_u32 v5, {2*(5120-1024)}, v3
    v_add_u32 v13, {3*(5120-1024)}, v3
    s_lshl_b32 s42, s16, 12
    s_add_u32 s43, s42, 16384
    s_mov_b32 s45, 0
    s_mov_b32 s30, 0
    s_mov_b32 s46, 0
    s_cmp_lt_u32 s57, 30
    s_cselect_b32 s47, 9, 0
    s_cselect_b32 s50, {WS_SIZE}, 0
    s_cselect_b32 s54, 2211840, 0
    s_mov_b32 s48, s18
    s_and_b32 s49, s19, 0xffff
    s_mov_b32 s51, 0x20000
    s_mov_b32 s55, 0x20000
    s_mov_b32 m0, s43
    s_mov_b32 s52, s6
    s_and_b32 s53, s7, 0xffff
    """)
    a.c("s33 = row group (128 rows), s34 = col group (128 cols), s35 = k split, s47 = stages of this WG")
    def gw():
        a(f"""
        buffer_load_dwordx4 v3, s[52:55], s41 offen lds
        buffer_load_dwordx4 v4, s[52:55], s41 offen offset:1024 lds
        buffer_load_dwordx4 v5, s[52:55], s41 offen offset:2048 lds
        buffer_load_dwordx4 v13, s[52:55], s41 offen offset:3072 lds
        s_add_u32 s41, s41, {64*1280}
        """)
    def gh():
        a(f"""
        buffer_load_dwordx4 v2, s[48:51], s40 offen{SCL} lds
        buffer_load_dwordx4 v2, s[48:51], s40 offen offset:1024{SCL} lds
        buffer_load_dwordx4 v2, s[48:51], s40 offen offset:2048{SCL} lds
        buffer_load_dwordx4 v2, s[48:51], s40 offen offset:3072{SCL} lds
        s_add_u32 s40, s40, 4096
        """)
    gw()
    a(f"""
    s_and_b32 s36, s16, 1
    s_lshr_b32 s37, s16, 1
    s_lshl_b32 s38, s36, 13
    v_add_u32 v6, s38, v2
    v_lshrrev_b32 v8, 5, v1
    v_bfe_u32 v9, v1, 2, 2
    v_lshl_add_u32 v8, v8, 2, v9
    v_lshlrev_b32 v8, 8, v8
    s_lshl_b32 s38, s37, 1
    v_xor_b32 v9, s38, v9
    v_lshl_add_u32 v8, v9, 6, v8
    v_bfe_u32 v9, v1, 4, 1
    v_lshl_add_u32 v8, v9, 5, v8
    v_and_b32 v9, 3, v1
    v_lshl_add_u32 v8, v9, 3, v8
    v_add_u32 v7, 16384, v8
    v_xor_b32 v8, 64, v7
    """)
    for r in range(64, 128, 2): a(f"v_mov_b64 v[{r}:{r+1}], 0")
    a(f"""
    s_mov_b32 m0, s42
    s_barrier
    s_waitcnt vmcnt(0)
    s_barrier
    s_barrier
    s_barrier
    """)
    gh()
    a(f"""
    s_mov_b32 s44, {GSL}
    s_branch {L}_gin
    {L}_gloop:
    s_barrier
    {L}_gin:
    s_add_u32 s46, s46, 1
    s_cmp_ge_u32 s46, s47
    s_cbranch_scc1 {L}_gnod
    s_add_u32 m0, s44, s42
    s_nop 0
    """)
    gh()
    a("s_add_u32 m0, s44, s43")
    a(f"s_add_u32 s44, s44, {GSL}")
    gw()
    a(f"""
    s_cmp_ge_u32 s44, {3*GSL}
    s_cselect_b32 s44, 0, s44
    {L}_gnod:
    s_sub_u32 s36, s30, 1
    s_cmp_ge_u32 s36, s47
    s_cbranch_scc1 {L}_gskip
    v_add_u32 v10, s45, v6
    v_add_u32 v11, s45, v7
    v_add_u32 v12, s45, v8
    s_add_u32 s45, s45, {GSL}
    s_cmp_ge_u32 s45, {3*GSL}
    s_cselect_b32 s45, 0, s45
    """)
    FB = [16, 32]
    def rl(ks):
        b = FB[ks & 1]
        return [f"ds_read_b128 {vr(b,4)}, v10 offset:{ks*1024}",
                f"ds_read_b64_tr_b16 {vr(b+8,2)}, v11 offset:{ks*4096}",
                f"ds_read_b64_tr_b16 {vr(b+10,2)}, v11 offset:{ks*4096+2048}",
                f"ds_read_b64_tr_b16 {vr(b+12,2)}, v12 offset:{ks*4096}",
                f"ds_read_b64_tr_b16 {vr(b+14,2)}, v12 offset:{ks*4096+2048}",
                f"ds_read_b128 {vr(b+4,4)}, v10 offset:{ks*1024+4096}"]
    def ml(ks):
        b = FB[ks & 1]
        x0, x1, w0, w1 = vr(b,4), vr(b+4,4), vr(b+8,4), vr(b+12,4)
        return [f"{M} v[64:79], {w0}, {x0}, v[64:79]", f"{M} v[80:95], {w1}, {x0}, v[80:95]",
                f"{M} v[96:111], {w0}, {x1}, v[96:111]", f"{M} v[112:127], {w1}, {x1}, v[112:127]"]
    for x in rl(0): a(x)
    for ks in range(4):
        a("s_waitcnt lgkmcnt(0)")
        r = rl(ks + 1) if ks < 3 else []
        for i, m in enumerate(ml(ks)):
            a(m)
            for x in r[2*i:2*i+2]: a(x)
    a(f"""
    s_cmp_lg_u32 s30, s47
    s_cbranch_scc1 {L}_gskip
    s_lshl_b32 s36, s35, 6
    s_lshl_b32 s37, s33, 2
    s_add_u32 s36, s36, s37
    s_and_b32 s37, s16, 1
    s_lshl_b32 s37, s37, 1
    s_add_u32 s36, s36, s37
    s_mul_i32 s36, s36, 40
    s_lshl_b32 s37, s34, 3
    s_add_u32 s36, s36, s37
    s_lshr_b32 s37, s16, 1
    s_lshl_b32 s37, s37, 2
    s_add_u32 s36, s36, s37
    s_lshl_b32 s36, s36, 10
    s_add_u32 s36, s36, {WS_B}
    s_add_u32 s37, s36, 40960
    s_nop 7
    """)
    for u in range(4):
        A = 64 + 16*u
        for qp in range(2):
            O = 16 + 4*((2*u+qp) % 8)
            for i in range(4):
                a(f"v_cvt_pk_bf16_f32 v{O+i}, v{A+8*qp+2*i}, v{A+8*qp+2*i+1}")
            a(f"buffer_store_dwordx4 {vr(O,4)}, v2, s[8:11], s{36 + (u>>1)} offen offset:{(u&1)*2048 + qp*1024} sc1")
    a(f"""
    s_branch {L}_gend
    {L}_gskip:
    s_add_u32 s30, s30, 1
    s_cmp_ge_u32 s30, 10
    s_cbranch_scc1 {L}_gend
    s_cmp_lt_u32 s46, s47
    s_cbranch_scc1 {L}_gw8
    s_waitcnt vmcnt(0)
    {L}_gw8:
    s_waitcnt vmcnt(8)
    s_branch {L}_gloop
    {L}_gend:
    s_barrier
    s_waitcnt vmcnt(0)
    s_barrier
    s_barrier
    """)

    a(f"""
    {L}_p3:
    s_load_dwordx2 s[4:5], s[0:1], 80
    s_lshl_b32 s17, s20, 3
    s_and_b32 s16, s21, 3
    s_lshl_b32 s16, s16, 1
    s_add_u32 s17, s17, s16
    s_lshr_b32 s16, s21, 2
    s_and_b32 s36, s22, 1
    s_lshr_b32 s39, s22, 1
    s_add_u32 s36, s17, s36
    s_mul_i32 s36, s36, 40
    s_mul_i32 s37, s39, 10
    s_add_u32 s36, s36, s37
    s_lshl_b32 s36, s36, 10
    s_add_u32 s36, s36, {WS_O}
    s_add_u32 s37, s36, 4096
    s_add_u32 s38, s36, 8192
    v_lshrrev_b32 v8, 5, v1
    v_bfe_u32 v9, v1, 2, 2
    v_lshl_add_u32 v8, v8, 2, v9
    v_mul_u32_u24 v8, 192, v8
    v_bfe_u32 v9, v1, 4, 1
    v_lshl_add_u32 v8, v9, 5, v8
    v_and_b32 v9, 3, v1
    v_lshl_add_u32 v8, v9, 3, v8
    s_lshl_b32 s48, s39, 2
    s_mul_i32 s49, s39, 30720
    v_add_u32 v8, s49, v8
    v_lshlrev_b32 v7, 3, v1
    v_and_b32 v6, 31, v1
    s_lshl_b32 s39, s17, 5
    v_add_u32 v6, s39, v6
    v_lshrrev_b32 v4, 3, v6
    v_lshlrev_b32 v4, 7, v4
    v_and_b32 v9, 7, v1
    v_lshl_add_u32 v4, v9, 2, v4
    s_mov_b32 s40, {WS_G}
    s_mul_i32 s41, s16, 10
    s_add_u32 s41, s41, s22
    s_lshr_b32 s42, s41, 1
    s_lshl_b32 s42, s42, 10
    s_and_b32 s43, s41, 1
    s_lshl_b32 s43, s43, 3
    s_add_u32 s42, s42, s43
    s_mul_i32 s43, s17, 40960
    s_add_u32 s42, s42, s43
    s_add_u32 s42, s42, {WS_B}
    v_mov_b32 v22, {NONCE}
    s_lshr_b32 s46, s22, 1
    s_lshl_b32 s45, 1, s46
    """)
    a.c("s17 = first row block of the tile, s16 = column group; final items: quad = wave, both row blocks")
    def bg():
        a("buffer_load_dword v140, v4, s[8:11], s40 offen sc1")
        a("buffer_load_dword v141, v4, s[8:11], s40 offen offset:512 sc1")
        for j in range(2):
            for sk in range(3):
                a(f"s_add_u32 s43, s42, {j*40960 + sk*64*40960}")
                a(f"buffer_load_dwordx2 {vr(128+6*j+2*sk,2)}, v2, s[8:11], s43 offen sc1")
    a(f"""
    s_movk_i32 s43, 1280
    v_mul_lo_u32 v6, v6, s43
    v_lshrrev_b32 v9, 5, v1
    v_lshl_add_u32 v6, v9, 3, v6
    s_lshl_b32 s41, s41, 4
    s_add_u32 s44, s41, 40960
    s_waitcnt lgkmcnt(0)
    """)
    srd(a, 12, 4, 5, 2621440)
    for r in range(64, 112, 2): a(f"v_mov_b64 v[{r}:{r+1}], 0")
    WF = [112, 144]
    def wr(ks):
        b = WF[ks & 1]
        return [f"ds_read_b64_tr_b16 {vr(b+4*cb+2*t,2)}, v8 offset:{ks*3072 + t*1536 + 64*cb}" for cb in range(3) for t in range(2)]
    a(f"""
    s_mov_b32 s70, {SPIN}
    s_cmp_lg_u32 s22, 8
    s_cbranch_scc1 {L}_p3w1
    s_mov_b64 exec, 0xf
    {L}_p3poll:
    buffer_load_dword v24, v3, s[8:11], s35 offen sc1
    s_sub_u32 s70, s70, 1
    s_cselect_b32 s47, -1, 0
    s_waitcnt vmcnt(0)
    v_cmp_eq_u32 vcc, 8, v24
    s_or_b32 s47, s47, vcc_lo
    s_or_b32 s47, s47, 0xfffffff0
    v_mov_b32 v23, s47
    ds_write_b32 v22, v23 offset:8
    s_sleep {E("PSLEEP", "2")}
    s_cmp_lg_u32 s47, -1
    s_cbranch_scc1 {L}_p3poll
    """)
    stamp(a, 6)
    a(f"""
    s_mov_b64 exec, -1
    {L}_p3w1:
    ds_read_b32 v10, v22 offset:12
    s_waitcnt lgkmcnt(0)
    v_readfirstlane_b32 s46, v10
    s_cmp_eq_u32 s46, 2
    s_cbranch_scc1 {L}_p3rdy
    s_sleep 1
    s_branch {L}_p3w1
    {L}_p3rdy:
    """)
    bg()
    for x in wr(0): a(x)
    a("s_waitcnt vmcnt(0)")
    for j in range(2):
        a(f"""
        v_sub_f32 v142, 1.0, v{140+j}
        v_cvt_pk_bf16_f32 v142, v142, v142
        v_lshlrev_b32 v142, 16, v142
        """)
        B = 128 + 6*j
        for i in range(4):
            ex = (lambda d, r: f"v_lshlrev_b32 v{d}, 16, v{r}") if i % 2 == 0 else (lambda d, r: f"v_and_b32 v{d}, 0xffff0000, v{r}")
            a(f"""
            {ex(12+4*j+i, B + i//2)}
            {ex(143, B + 2 + i//2)}
            v_add_f32 v{12+4*j+i}, v{12+4*j+i}, v143
            {ex(143, B + 4 + i//2)}
            v_add_f32 v{12+4*j+i}, v{12+4*j+i}, v143
            v_mul_f32 v{12+4*j+i}, v142, v{12+4*j+i}
            """)
    a(f"""
    s_cmp_ge_u32 s22, 8
    s_cbranch_scc1 {L}_p3r
    {L}_p3w:
    ds_read_b32 v10, v22 offset:8
    s_waitcnt lgkmcnt(0)
    v_readfirstlane_b32 s47, v10
    s_and_b32 s47, s47, s45
    s_cmp_eq_u32 s47, s45
    s_cbranch_scc1 {L}_p3m
    s_sleep 1
    s_branch {L}_p3w
    {L}_p3m:
    """)
    if not E("ES"): stamp(a, 6)
    OF = 24
    for ks in range(10):
        for sl in range(2):
            a(f"buffer_load_dwordx2 {vr(OF+4*ks+2*sl,2)}, v7, s[8:11], s{36+ks//4} offen offset:{(ks%4)*1024+512*sl}{E('OSC', ' sc1')}")
    for ks in range(10):
        a(f"s_waitcnt vmcnt({18-2*ks}) lgkmcnt(0)")
        r = wr(ks+1) if ks < 9 else []
        b = WF[ks & 1]
        for cb in range(3):
            a(f"{M} {vr(64+16*cb,16)}, {vr(b+4*cb,4)}, {vr(OF+4*ks,4)}, {vr(64+16*cb,16)}")
            for x in r[2*cb:2*cb+2]: a(x)
    a(f"""
    v_add_u32 v23, s48, v22
    v_mov_b32 v9, 1
    s_mov_b64 exec, 1
    ds_add_u32 v23, v9 offset:16
    s_mov_b64 exec, -1
    s_and_b32 s47, s22, 1
    s_mul_i32 s47, s47, 10240
    s_add_u32 s39, s49, s47
    v_add_u32 v5, s39, v2
    {L}_p3pw:
    ds_read_b32 v9, v23 offset:16
    s_waitcnt lgkmcnt(0)
    v_readfirstlane_b32 s47, v9
    s_cmp_lg_u32 s47, 2
    s_cbranch_scc1 {L}_p3pw
    """)
    for q in range(10):
        a(f"ds_write_b128 v5, {vr(64+4*q,4)} offset:{1024*q}")
    a(f"""
    s_waitcnt lgkmcnt(0)
    {L}_p3r:
    """)
    if STAMP:
        a(f"s_cmp_lt_u32 s22, 4\ns_cbranch_scc1 {L}_st4")
        stamp(a, 4)
        a(f"{L}_st4:")
    a(f"""
    s_lshl_b32 s39, s22, 10
    v_add_u32 v5, s39, v2
    v_add_u32 v7, 61440, v5
    s_barrier
    """)
    for j in range(2):
        for kq in range(4):
            a(f"ds_read_b128 {vr(24+16*j+4*kq,4)}, v{5 if kq < 2 else 7} offset:{j*10240 + (kq%2)*30720}")
    for j in range(2):
        P = 24 + 16*j
        a(f"s_waitcnt lgkmcnt({4 - 4*j})")
        for i in range(4):
            a(f"""
            v_add_f32 v{P+i}, v{P+i}, v{P+4+i}
            v_add_f32 v{P+8+i}, v{P+8+i}, v{P+12+i}
            v_add_f32 v{P+i}, v{P+i}, v{P+8+i}
            v_fma_f32 v{P+i}, v{140+j}, v{P+i}, v{12+4*j+i}
            """)
        a(f"""
        v_cvt_pk_bf16_f32 v{P}, v{P}, v{P+1}
        v_cvt_pk_bf16_f32 v{P+1}, v{P+2}, v{P+3}
        buffer_store_dwordx2 {vr(P,2)}, v6, s[12:15], s{41 if j == 0 else 44} offen
        """)
    stamp_out(a, 7, 0)
    a(f"{L}_end:")
    a("s_endpgm")
    kernel_desc(a, name, 160, 100)
```
